```python
import torch

def _softmax(x, axis=-1):
    return torch.softmax(x, dim=axis)
def _gelu(x):
    return torch.nn.functional.gelu(x, approximate="tanh")
def _silu(x):
    return torch.nn.functional.silu(x)
def _sigmoid(x):
    return torch.sigmoid(x)
def _layernorm(x, axis=-1, eps=1e-5):
    m = x.mean(dim=axis, keepdim=True)
    v = x.var(dim=axis, keepdim=True, unbiased=False)
    return (x - m) / torch.sqrt(v + eps)
def _scatter_add(tgt, idx, src, axis=0):
    return tgt.clone().index_add_(axis, idx, src)
def _segment_sum(src, seg, n):
    out = torch.zeros((n,) + src.shape[1:], dtype=src.dtype)
    return out.index_add_(0, seg, src)
def _pad(x, pw):
    flat = tuple(v for pair in reversed(pw) for v in pair)
    return torch.nn.functional.pad(x, flat)

kernel_name = 'recurrent_scan__sliding_local_dilated__dense_activation_relu__prompt'

def setup_inputs():

    _w = (lambda a: (lambda t: t.to(torch.bfloat16) if t.is_floating_point() else t)(torch.as_tensor(a)))
    def _A_setup():
        B, S, D = 1, 2048, 448
        return {
            "x": _w((lambda *s: torch.randn(*s, dtype=torch.bfloat16) * 0.05)(B, S, D)),
            "wqkv": _w((lambda *s: torch.randn(*s, dtype=torch.bfloat16) * 0.05)(D, 3 * D)),
            "wo": _w((lambda *s: torch.randn(*s, dtype=torch.bfloat16) * 0.05)(D, D)),
        }
    _A_in = _A_setup()

    def _B_setup():
        B, S, D, Dff = 1, 2048, 448, 1792
        return {
            "x": _w((lambda *s: torch.randn(*s, dtype=torch.bfloat16) * 0.05)(B, S, D)),
            "w1": _w((lambda *s: torch.randn(*s, dtype=torch.bfloat16) * 0.05)(D, Dff)),
            "w2": _w((lambda *s: torch.randn(*s, dtype=torch.bfloat16) * 0.05)(Dff, D)),
        }
    _B_in = _B_setup()

    return {
        "A_x": _A_in["x"],
        "A_wqkv": _A_in["wqkv"],
        "A_wo": _A_in["wo"],
        "B_x": _B_in["x"],
        "B_w1": _B_in["w1"],
        "B_w2": _B_in["w2"],
    }

def reference(A_x, A_wqkv, A_wo, B_x, B_w1, B_w2):
    def _A_ref(x, wqkv, wo):
        B, S, D = x.shape
        H = 16; Dh = D // H
        W, dil = 8, 2
        qkv = (lambda x, *d: x.permute(*d))((x @ wqkv).reshape(B, S, 3, H, Dh), 2, 0, 3, 1, 4)
        q, k, v = qkv[0], qkv[1], qkv[2]
        scale = Dh ** -0.5
        pos = torch.arange(S)
        off = torch.arange(W) * dil
        idx = pos[:, None] - off[None, :]
        mask = idx >= 0
        idx_c = torch.where(mask, idx, 0).reshape(-1)
        kg = k[:, :, idx_c, :].reshape(B, H, S, W, Dh)
        vg = v[:, :, idx_c, :].reshape(B, H, S, W, Dh)
        logits = torch.einsum("bhsd,bhswd->bhsw", q, kg) * scale
        logits = torch.where(mask[None, None, :, :], logits, -1e9)
        attn = _softmax(logits, axis=-1)
        o = torch.einsum("bhsw,bhswd->bhsd", attn, vg)
        return (lambda x, *d: x.permute(*d))(o, 0, 2, 1, 3).reshape(B, S, D) @ wo

    def _B_ref(x, w1, w2):
        h = torch.einsum("bsd,df->bsf", x, w1)
        zero = torch.zeros_like(h)
        h = torch.maximum(h, zero)
        return torch.einsum("bsf,fd->bsd", h, w2)

    x = A_x
    xn = _layernorm(x, axis=-1)
    s = _A_ref(xn, A_wqkv, A_wo)
    g = _silu(_B_ref(xn, B_w1, B_w2))
    return x + s * g
```

```python
import re

class R:
    def __init__(self, f, i, n=1):
        self.f, self.i, self.n = f, i, n
    def __str__(self):
        return f"{self.f}{self.i}" if self.n == 1 else f"{self.f}[{self.i}:{self.i+self.n-1}]"
    __repr__ = __str__
    def __getitem__(self, k):
        if isinstance(k, slice):
            a = k.start or 0
            b = self.n if k.stop is None else k.stop
            assert 0 <= a < b <= self.n, (self, k)
            return R(self.f, self.i + a, b - a)
        assert 0 <= k < self.n, (self, k)
        return R(self.f, self.i + k, 1)
    def sub(self, a, n):
        return self[a:a+n]

class Alloc:
    def __init__(self, f, start, limit):
        self.f, self.p, self.limit, self.hi = f, start, limit, start
    def __call__(self, n=1, align=None):
        if align is None:
            align = 1 if n == 1 else (2 if self.f != 's' else (4 if n >= 4 else 2))
        self.p = (self.p + align - 1) // align * align
        r = R(self.f, self.p, n)
        self.p += n
        assert self.p <= self.limit, f"out of {self.f} regs"
        self.hi = max(self.hi, self.p)
        return r
    def mark(self): return self.p
    def reset(self, p): self.p = p

_reg_re = re.compile(r"^-?\|?([vas])(?:(\d+)|\[(\d+):(\d+)\])\|?$")
def regs_of(tok):
    tok = tok.strip()
    if tok in ("vcc",): return {("s", 106), ("s", 107)}
    if tok == "exec": return {("s", 126), ("s", 127)}
    if tok == "m0": return {("s", 124)}
    m = _reg_re.match(tok)
    if not m: return set()
    f = m.group(1)
    if m.group(2) is not None: return {(f, int(m.group(2)))}
    return {(f, i) for i in range(int(m.group(3)), int(m.group(4)) + 1)}

TRANS = ("v_exp_f32", "v_log_f32", "v_rcp_f32", "v_rsq_f32", "v_sqrt_f32", "v_sin_f32", "v_cos_f32")

class Ins:
    def __init__(self, text):
        self.text = text
        t = text.split(";")[0].strip()
        self.label = t.endswith(":")
        self.directive = t.startswith(".")
        self.op = t.split()[0] if t and not self.label else ""
        rest = t[len(self.op):].strip() if self.op else ""
        ops = [o.strip() for o in rest.split(",")] if rest else []
        clean = []
        for o in ops:
            clean.append(o.split()[0] if o else o)
        self.ops = clean
        self.mods = rest
        op = self.op
        self.mfma = op.startswith("v_mfma")
        self.valu = op.startswith("v_") and not self.mfma
        self.salu = op.startswith("s_")
        self.ds = op.startswith("ds_")
        self.vmem = op.startswith("buffer_") or op.startswith("global_")
        self.trans = op.replace("_e32", "").replace("_e64", "") in TRANS
        self.dpp = "row_" in rest or "quad_perm" in rest or op.endswith("_dpp")
        self.perm = op.startswith("v_permlane")
        self.lds_dma = self.vmem and (" lds" in rest or "_lds_" in op)
        w, r = set(), set()
        C = set()
        if self.mfma:
            w |= regs_of(clean[0]); r |= regs_of(clean[1]) | regs_of(clean[2]); C = regs_of(clean[3])
            self.passes = 8 if "32x32" in op else 4
            self.cexact = clean[3]
        elif self.valu:
            if self.perm:
                w |= regs_of(clean[0]) | regs_of(clean[1]); r |= w
            else:
                w |= regs_of(clean[0])
                k = 1
                if op.startswith(("v_add_co", "v_sub_co", "v_addc_co", "v_subb_co")):
                    w |= regs_of(clean[1]); k = 2
                for o in clean[k:]: r |= regs_of(o)
                if op.startswith(("v_fmac", "v_dot2c", "v_pk_fmac")) or self.dpp: r |= regs_of(clean[0])
        elif self.ds:
            if op.startswith(("ds_write", "ds_add")):
                for o in clean: r |= regs_of(o)
            else:
                w |= regs_of(clean[0])
                for o in clean[1:]: r |= regs_of(o)
        elif self.vmem:
            st = "store" in op or "atomic" in op
            if self.lds_dma or st or op.startswith(("buffer_wbl2", "buffer_inv")):
                for o in clean: r |= regs_of(o)
                if self.lds_dma: r |= {("s", 124)}
            else:
                w |= regs_of(clean[0])
                for o in clean[1:]: r |= regs_of(o)
            self.wide_store = st and ("x3" in op or "x4" in op)
            self.sdata = set()
            if self.wide_store:
                self.sdata = regs_of(clean[0]) if op.startswith("buffer_") else regs_of(clean[1])
        elif self.salu:
            if op.startswith(("s_cmp", "s_cbranch", "s_branch", "s_waitcnt", "s_barrier", "s_nop", "s_endpgm", "s_setprio", "s_sleep", "s_bitcmp", "s_setpc")):
                for o in clean: r |= regs_of(o)
            else:
                if clean: w |= regs_of(clean[0])
                for o in clean[1:]: r |= regs_of(o)
                if "saveexec" in op: w |= regs_of("exec")
        self.w, self.r, self.C = w, r, C
    def states(self):
        if self.label or self.directive or not self.op: return 0
        if self.op == "s_nop": return int(self.ops[0], 0) + 1
        return 1

def need(p, c):
    n = 0
    pv = {x for x in p.w if x[0] in "va"}
    ps = {x for x in p.w if x[0] == "s"}
    if p.valu:
        if c.mfma and pv & (c.r | c.C): n = max(n, 2)
        if c.valu and c.dpp and pv & c.r: n = max(n, 2)
        if c.perm and pv & c.r: n = max(n, 2)
        if c.op.startswith(("v_readfirstlane", "v_readlane")) and pv & c.r: n = max(n, 1)
        if p.trans and (c.valu or c.mfma) and not c.trans and pv & c.r: n = max(n, 1)
        if p.trans and c.trans and pv & c.r: n = max(n, 1)
        if ps:
            if c.valu and ps & c.r: n = max(n, 2)
            if c.valu and c.op.startswith("v_cndmask") and len(c.ops) == 3 and ("s", 106) in ps: n = max(n, 2)
            if c.vmem and ps & c.r: n = max(n, 5)
            if c.op.startswith(("v_readlane", "v_writelane")) and ps & c.r: n = max(n, 4)
            if c.salu and ps & c.r: n = max(n, 1)
            if ("s", 126) in ps and (c.mfma or c.perm or c.dpp): n = max(n, 5)
    if p.op.startswith("v_dot") and (c.valu or c.mfma or c.ds or c.vmem) and pv & (c.r | c.w | c.C):
        same_c = c.op == p.op and not (pv & (regs_of(c.ops[1]) | regs_of(c.ops[2])))
        if not same_c: n = max(n, 3)
    if p.mfma:
        big = p.passes == 8
        if c.mfma:
            if pv & c.r: n = max(n, 12 if big else 8)
            if pv & c.C and not (c.cexact == p.ops[0] and c.passes == p.passes): n = max(n, 10 if big else 6)
            if pv & c.w and not (pv & c.C): n = max(n, 12 if big else 8)
        elif (c.valu or c.ds or c.vmem) and pv & (c.r | c.w): n = max(n, 12 if big else 8)
        if c.valu and p.C & c.w: n = max(n, 7 if big else 3)
    if p.salu and ("s", 124) in p.w and c.lds_dma: n = max(n, 1)
    if p.vmem and getattr(p, "wide_store", False) and (c.valu or c.mfma or c.ds or c.vmem) and p.sdata & c.w: n = max(n, 2)
    return n

def pad_hazards(lines):
    out = []
    hist = []
    npad = 0
    for t in lines:
        ins = Ins(t)
        if ins.op and not ins.directive:
            dist = 0
            req = 0
            for p in reversed(hist):
                k = need(p, ins)
                if k > dist: req = max(req, k - dist)
                dist += p.states()
                if dist >= 20: break
            if req:
                npad += req
                nop = Ins(f"s_nop {req-1}")
                out.append(nop.text); hist.append(nop)
            hist.append(ins)
            if len(hist) > 64: hist = hist[-40:]
        out.append(t)
    return out, npad

class Prog:
    def __init__(self):
        self.l = []
    def __call__(self, s, *a):
        for x in s.split("\n"):
            x = x.strip()
            if x: self.l.append(x)
    def ext(self, items):
        for x in items: self(x)

def interleave(main, fillers, start=0, end=None):
    end = len(main) if end is None else end
    out = []
    n = len(fillers)
    slots = end - start
    k = 0
    for i, m in enumerate(main):
        out.append(m)
        if start <= i < end and n:
            tgt = (i - start + 1) * n // slots
            while k < tgt:
                out.append(fillers[k]); k += 1
    while k < n:
        out.append(fillers[k]); k += 1
    return out

def merge(main, *streams):
    after = [[] for _ in main]
    for fillers, start, end in streams:
        n = len(fillers)
        if not n: continue
        end = min(end, len(main))
        slots = max(end - start, 1)
        for k, f in enumerate(fillers):
            pos = start + (k * slots) // n
            after[min(pos, len(main) - 1)].append(f)
    out = []
    for m, a in zip(main, after):
        out.append(m); out.extend(a)
    return out

def kernel_desc(name, nv, na, ns):
    acc = (nv + 3) // 4 * 4
    tot = acc + na if na else nv
    return f""".section .rodata,"a"
.p2align 6
.amdhsa_kernel {name}
  .amdhsa_next_free_vgpr {tot}
  .amdhsa_next_free_sgpr {ns}
  .amdhsa_accum_offset {acc}
  .amdhsa_group_segment_fixed_size 0
  .amdhsa_kernarg_size 72
  .amdhsa_user_sgpr_count 2
  .amdhsa_user_sgpr_kernarg_segment_ptr 1
  .amdhsa_system_sgpr_workgroup_id_x 1
  .amdhsa_float_denorm_mode_32 3
.end_amdhsa_kernel
.text"""
```

```python
import sys, math
from asmlib import *

NAME = "recurrent_scan__sliding_local_dilated__dense_activation_relu__prompt"
OPT = dict(rot=1, pro=3, rate=8, L2=4, stamps=0, sc1=0, pf2=0)
for a in sys.argv[1:]:
    k, v = a.split("="); OPT[k] = int(v)

A2_KS = 140
RSTD_OFF = 2048 * 2240 * 2
WS_USED = RSTD_OFF + 8192
STAMP_OFF = 16 << 20
XBYTES = 2048 * 896
SC = " sc1" if OPT["sc1"] else ""
ONES = "0x3f803f80"
NINF = "0xff800000"

def srd(P, d, base_lo, base_hi, n):
    P(f"s_mov_b32 {d[0]}, {base_lo}\ns_mov_b32 {d[1]}, {base_hi}\ns_mov_b32 {d[2]}, {n}\ns_mov_b32 {d[3]}, 0x20000")

class VM:
    def __init__(self): self.q = []
    def issue(self, tag): self.q.append(tag)
    def wait_for(self, pred):
        last = -1
        for i, t in enumerate(self.q):
            if pred(t): last = i
        n = len(self.q) - 1 - last
        assert n <= 63
        return f"s_waitcnt vmcnt({n})"

def stamp(P, S, idx):
    if OPT["stamps"]:
        P(f"s_memrealtime {S['st'].sub(2*idx,2)}")

def stamp_flush(P, S, V, kern, n, srdws):
    if not OPT["stamps"]: return
    P("s_waitcnt lgkmcnt(0)")
    P(f"s_lshl_b32 {S['t0']}, s2, 2\ns_add_u32 {S['t0']}, {S['t0']}, {S['w']}\ns_lshl_b32 {S['t0']}, {S['t0']}, 6")
    P(f"s_add_u32 {S['t0']}, {S['t0']}, {STAMP_OFF + kern*(1<<17)}")
    P(f"v_mov_b32 {V[0]}, {S['t0']}")
    for i in range(n):
        P(f"v_mov_b32 {V[1]}, {S['st'][2*i]}\nbuffer_store_dword {V[1]}, {V[0]}, {srdws}, 0 offen offset:{4*i}")

def schedule_dma(items, pro, rate, nsteps):
    sched = {s: [] for s in range(-1, nsteps)}
    i = 0
    for s in range(-1, nsteps):
        cap = pro if s == -1 else rate
        n = 0
        while i < len(items) and items[i]["free"] <= s and (n < cap or items[i]["need"] - 2 <= s):
            sched[s].append(i); i += 1; n += 1
    assert i == len(items)
    for s, l in sched.items():
        for j in l: assert items[j]["need"] - 2 >= s or s == -1, (s, items[j])
    return sched

def k1():
    P = Prog()
    sa = Alloc("s", 4, 100)
    S = {}
    ptr = sa(16, 4)
    wsp = sa(2)
    sX, sW, sWS = sa(4), sa(4), sa(4)
    for n in "w e rbl cb t0 t1 t2 kx kw wm0 xm0 b1 b2 hh half".split(): S[n] = sa()
    pc = sa(2); mW = sa(2); mH = sa(2); mT = sa(2)
    S['st'] = sa(16, 2)
    P(f"{NAME}_k1_kernel:")
    stamp(P, S, 0)
    P("s_cmp_ge_u32 s2, 256\ns_cbranch_scc1 K1_END")
    P(f"s_load_dwordx16 {ptr}, s[0:1], 0\ns_load_dwordx2 {wsp}, s[0:1], 64")
    P(f"s_getpc_b64 {pc}\nv_lshlrev_b32 v1, 7, v0\nglobal_load_dword v2, v1, {pc}")
    P(f"v_lshrrev_b32 v1, 6, v0\nv_and_b32 v0, 63, v0\nv_readfirstlane_b32 {S['w']}, v1")
    P(f"s_bfe_u32 {S['e']}, s2, 0x10002")
    P(f"s_bfe_u32 {S['rbl']}, s2, 0x30003")
    P(f"s_and_b32 {S['t0']}, s2, 3\ns_lshl_b32 {S['t0']}, {S['t0']}, 1\ns_bfe_u32 {S['t1']}, s2, 0x10006\ns_add_u32 {S['cb']}, {S['t0']}, {S['t1']}")
    if OPT["rot"]:
        P(f"s_bfe_u32 {S['t0']}, s2, 0x20006\ns_lshl_b32 {S['t0']}, {S['t0']}, 1\ns_add_u32 {S['t0']}, {S['t0']}, {S['rbl']}")
        P(f"s_sub_u32 {S['t1']}, {S['t0']}, 7\ns_cmp_ge_u32 {S['t0']}, 7\ns_cselect_b32 {S['t0']}, {S['t1']}, {S['t0']}")
    else:
        P(f"s_mov_b32 {S['t0']}, 0")
    P(f"s_lshl_b32 {S['kx']}, {S['t0']}, 7")
    P(f"s_mul_i32 {S['t2']}, {S['e']}, 896")
    P("s_cmp_ge_u32 s2, 128\ns_cbranch_scc1 K1_QKV")
    common = dict(P=P, S=S, ptr=ptr, wsp=wsp, sX=sX, sW=sW, sWS=sWS, mW=mW, mH=mH, mT=mT)
    nv1, na1 = k1_ffn(**common)
    P("K1_QKV:")
    nv2, na2 = k1_qkv(**common)
    P("K1_END:\ns_endpgm")
    return P.l, max(nv1, nv2), max(na1, na2), sa.hi

def xsrd(P, S, ptr, wsp, sX, sWS):
    P("s_waitcnt lgkmcnt(0)")
    P(f"s_add_u32 {sX[0]}, {ptr[0]}, {S['t2']}\ns_addc_u32 {sX[1]}, {ptr[1]}, 0\ns_sub_u32 {sX[2]}, {XBYTES}, {S['t2']}\ns_mov_b32 {sX[3]}, 0x20000")
    srd(P, sWS, wsp[0], wsp[1], (STAMP_OFF + (1 << 20)) if OPT["stamps"] else WS_USED)

def adv(P_list, reg, step, wrap):
    P_list.append(f"s_add_u32 {reg}, {reg}, {step}\ns_cmp_eq_u32 {reg}, {wrap}\ns_cselect_b32 {reg}, 0, {reg}")

def main_loop(P, S, items, emit_item, reads, mfmas, nsteps=14):
    vm = VM(); vm.issue(("pf", -9))
    sched = schedule_dma(items, OPT["pro"], OPT["rate"], nsteps)
    def issue(i):
        for _ in range(items[i]["n"]): vm.issue(("d", items[i]["need"]))
        return emit_item(i)
    for i in sched[-1]: P(issue(i))
    return vm, sched, issue

def run_loop(P, S, vm, sched, issue, reads, mfmas, nsteps=14):
    P(vm.wait_for(lambda t: t[1] <= 0) + " lgkmcnt(0)")
    P("s_barrier")
    stamp(P, S, 1)
    P.ext(reads(0))
    for s in range(nsteps):
        if s + 1 < nsteps:
            P(vm.wait_for(lambda t: t[1] <= s + 1) + " lgkmcnt(0)")
            P("s_barrier")
        else:
            P("s_waitcnt lgkmcnt(0)\ns_barrier")
        if s == 2: stamp(P, S, 2)
        m = mfmas(s)
        rd = reads(s + 1) if s + 1 < nsteps else []
        dm = [issue(i) for i in sched[s]]
        P.ext(merge(m, (rd, 0, (len(m) * 2) // 3), (dm, 0, len(m))))
    stamp(P, S, 3)

def k1_ffn(P, S, ptr, wsp, sX, sW, sWS, mW, mH, mT):
    va = Alloc("v", 3, 256); aa = Alloc("a", 0, 256)
    NW, NX = 4, 3
    WB, XB = 0, 65536
    lane = R("v", 0)
    t = [va() for _ in range(8)]
    xd = [va() for _ in range(4)]; wd = [va() for _ in range(4)]
    xr = [[va() for _ in range(2)] for _ in range(2)]
    wr_ = [va() for _ in range(7)]
    acc = [[va(4, 4) for _ in range(4)] for _ in range(7)]
    cs = [va(4, 4) for _ in range(7)]
    rs = [va(4, 4) for _ in range(2)]
    ones = aa(4)
    fb = [dict(x=[aa(4) for _ in range(4)], w=[aa(4) for _ in range(7)]) for _ in range(2)]
    w = S['w']
    P(f"s_lshl_b32 {S['t0']}, {S['rbl']}, 7\ns_lshl_b32 {S['t1']}, {w}, 5\ns_add_u32 {S['t0']}, {S['t0']}, {S['t1']}")
    P(f"v_lshrrev_b32 {t[0]}, 3, {lane}\nv_add_u32 {t[0]}, {S['t0']}, {t[0]}\nv_mul_u32_u24 {t[0]}, 1792, {t[0]}")
    P(f"v_lshrrev_b32 {t[1]}, 4, {lane}\nv_and_b32 {t[2]}, 7, {lane}\nv_xor_b32 {t[2]}, {t[1]}, {t[2]}")
    P(f"v_lshl_add_u32 {xd[0]}, {t[2]}, 4, {t[0]}")
    P(f"v_xor_b32 {t[3]}, 64, {xd[0]}\nv_add_u32 {xd[1]}, {8*1792}, {t[3]}\nv_add_u32 {xd[2]}, {16*1792}, {xd[0]}\nv_add_u32 {xd[3]}, {24*1792}, {t[3]}")
    P(f"s_mul_i32 {S['t0']}, {S['cb']}, 448\ns_and_b32 {S['t0']}, {S['t0']}, 0xffffff80\ns_mul_i32 {S['t1']}, {w}, {8*3584}\ns_add_u32 {S['t0']}, {S['t0']}, {S['t1']}")
    P(f"s_and_b32 {S['t1']}, {w}, 1\ns_lshl_b32 {S['t1']}, {S['t1']}, 2")
    P(f"v_lshrrev_b32 {t[0]}, 5, {lane}\nv_bfe_u32 {t[1]}, {lane}, 1, 4\nv_xor_b32 {t[1]}, {t[0]}, {t[1]}\nv_xor_b32 {t[1]}, {S['t1']}, {t[1]}")
    P(f"v_mul_u32_u24 {t[0]}, 3584, {t[0]}\nv_lshl_add_u32 {t[0]}, {t[1]}, 5, {t[0]}\nv_and_b32 {t[1]}, 1, {lane}\nv_lshl_add_u32 {t[0]}, {t[1]}, 4, {t[0]}")
    P(f"v_add_u32 {wd[0]}, {S['t0']}, {t[0]}\nv_xor_b32 {t[3]}, 64, {wd[0]}")
    P(f"v_add_u32 {wd[1]}, {2*3584}, {t[3]}\nv_add_u32 {wd[2]}, {4*3584}, {wd[0]}\nv_add_u32 {wd[3]}, {6*3584}, {t[3]}")
    P(f"s_mul_i32 {S['kw']}, {S['kx']}, {64*3584//128}")
    P(f"s_lshl_b32 {S['wm0']}, {w}, 12")
    xsrd(P, S, ptr, wsp, sX, sWS)
    srd(P, sW, ptr[8], ptr[9], 448 * 3584)
    items = []
    for d in range(7):
        for h in range(2): items.append(dict(k="x", d=d, h=h, n=2, need=2*d, free=(2*(d-NX)+1 if d >= NX else -1)))
        for s in (2*d, 2*d+1):
            for h in range(2): items.append(dict(k="w", s=s, h=h, n=2, need=s, free=(s-NW if s >= NW else -1)))
    def emit_item(i):
        it = items[i]; o = []
        if it["k"] == "x":
            for j in (2*it["h"], 2*it["h"]+1):
                o.append(f"s_add_u32 m0, {S['wm0']}, {XB + (it['d'] % NX)*16384 + j*1024}\nbuffer_load_dwordx4 {xd[j]}, {sX}, {S['kx']} offen lds")
            if it["h"] == 1: adv(o, S['kx'], 128, 896)
        else:
            for j in (2*it["h"], 2*it["h"]+1):
                o.append(f"s_add_u32 m0, {S['wm0']}, {WB + (it['s'] % NW)*16384 + j*1024}\nbuffer_load_dwordx4 {wd[j]}, {sW}, {S['kw']} offen lds")
            if it["h"] == 1: adv(o, S['kw'], 32*3584, 448*3584)
        return "\n".join(o)
    save = OPT["pro"], OPT["rate"]
    OPT["pro"], OPT["rate"] = 2*save[0], save[1]//2
    vm, sched, issue = main_loop(P, S, items, emit_item, None, None)
    OPT["pro"], OPT["rate"] = save
    wr, wc = S['half'], S['hh']
    P(f"s_lshr_b32 {wr}, {w}, 1\ns_and_b32 {wc}, {w}, 1")
    n_, g_ = t[4], t[5]
    P(f"v_and_b32 {n_}, 15, {lane}\nv_lshrrev_b32 {g_}, 4, {lane}")
    P(f"s_lshl_b32 {S['t0']}, {wr}, 13\ns_lshl_b32 {S['t1']}, {wc}, 12\ns_add_u32 {S['t0']}, {S['t0']}, {S['t1']}\ns_add_u32 {S['t0']}, {S['t0']}, {XB}")
    P(f"v_lshrrev_b32 {t[0]}, 1, {n_}\nv_xor_b32 {t[0]}, {g_}, {t[0]}\nv_lshlrev_b32 {t[0]}, 4, {t[0]}\nv_lshl_add_u32 {t[0]}, {n_}, 7, {t[0]}")
    P(f"v_add_u32 {xr[0][0]}, {S['t0']}, {t[0]}\nv_xor_b32 {xr[0][1]}, 64, {xr[0][0]}\nv_xor_b32 {xr[1][0]}, 4096, {xr[0][0]}\nv_xor_b32 {xr[1][1]}, 4096, {xr[0][1]}")
    P(f"v_bfe_u32 {t[0]}, {lane}, 2, 2\nv_lshl_add_u32 {t[1]}, {g_}, 3, {t[0]}\nv_lshlrev_b32 {t[1]}, 9, {t[1]}\nv_and_b32 {t[2]}, 3, {lane}\nv_lshl_add_u32 {t[1]}, {t[2]}, 3, {t[1]}")
    P(f"v_bfe_u32 {t[0]}, {lane}, 2, 3")
    P(f"s_lshl_b32 {S['b1']}, {wr}, 2\ns_mul_i32 {S['b2']}, {wr}, -3")
    P(f"s_and_b32 {S['t0']}, {S['cb']}, 1\ns_lshl_b32 {S['t0']}, {S['t0']}, 1\ns_mul_i32 {S['t1']}, {wc}, 7\ns_add_u32 {S['t0']}, {S['t0']}, {S['t1']}")
    P(f"s_add_u32 {S['t1']}, {S['t0']}, {S['b2']}\ns_add_u32 {S['t0']}, {S['t0']}, {S['b1']}")
    for c in range(7):
        P(f"s_add_u32 {S['t2']}, {S['t0'] if c <= 2 else S['t1']}, {c}")
        P(f"v_xor_b32 {t[2]}, {S['t2']}, {t[0]}\nv_lshl_add_u32 {wr_[c]}, {t[2]}, 5, {t[1]}")
    P(f"v_mov_b32 {t[0]}, {ONES}")
    for i in range(4): P(f"v_accvgpr_write_b32 {ones[i]}, {t[0]}")
    def reads(s):
        b = fb[s & 1]; o = []
        xs = ((s >> 1) % NX) * 16384; ws = WB + (s % NW) * 16384
        X = [f"ds_read_b128 {b['x'][i]}, {xr[i>>1][s&1]} offset:{xs + (i&1)*2048}" for i in range(4)]
        W = []
        for c in range(7):
            W.append(f"ds_read_b64_tr_b16 {b['w'][c][0:2]}, {wr_[c]} offset:{ws}")
            W.append(f"ds_read_b64_tr_b16 {b['w'][c][2:4]}, {wr_[c]} offset:{ws + 2048}")
        return X + W
    def mfmas(s):
        b = fb[s & 1]; o = []
        def mm(d, a, bb): o.append(f"v_mfma_f32_16x16x32_bf16 {d}, {a}, {bb}, {d if s else 0}")
        for i in range(2): mm(rs[i], ones, b['x'][i])
        for c in range(7):
            if c < 4: mm(cs[c], b['w'][c], ones)
            for i in range(4): mm(acc[c][i], b['w'][c], b['x'][i])
        return o
    run_loop(P, S, vm, sched, issue, reads, mfmas)
    RSB, CSB = 0, 1024
    a_rs, a_rs2, a_cs, a_cs2 = t[0], t[1], t[2], t[3]
    P(f"s_lshl_b32 {S['t0']}, {wr}, 8\ns_lshl_b32 {S['t1']}, {wc}, 7\ns_add_u32 {S['t0']}, {S['t0']}, {S['t1']}")
    P(f"v_lshlrev_b32 {a_rs}, 2, {n_}\nv_add_u32 {a_rs}, {S['t0']}, {a_rs}\nv_xor_b32 {a_rs2}, 128, {a_rs}")
    P(f"s_lshl_b32 {S['t0']}, {wc}, 3\ns_add_u32 {S['t1']}, {S['t0']}, {S['b2']}\ns_add_u32 {S['t0']}, {S['t0']}, {S['b1']}")
    P(f"s_lshl_b32 {S['t0']}, {S['t0']}, 6\ns_add_u32 {S['t1']}, {S['t1']}, 4\ns_lshl_b32 {S['t1']}, {S['t1']}, 6")
    P(f"v_lshlrev_b32 {a_cs}, 4, {g_}\nv_add_u32 {a_cs2}, {S['t1']}, {a_cs}\nv_add_u32 {a_cs}, {S['t0']}, {a_cs}")
    for i in range(2): P(f"ds_write_b32 {a_rs}, {rs[i][0]} offset:{RSB + i*64}")
    for c in range(4): P(f"ds_write_b128 {a_cs}, {cs[c]} offset:{CSB + c*64}")
    P("s_waitcnt lgkmcnt(0)\ns_barrier")
    nm = [va(2), va(2)]
    P(f"ds_read_b32 {nm[1][0]}, {a_rs2} offset:{RSB}\nds_read_b32 {nm[1][1]}, {a_rs2} offset:{RSB+64}")
    for c in range(4, 7): P(f"ds_read_b128 {cs[c]}, {a_cs2} offset:{CSB + (c-4)*64}")
    NEG = "0xbb124925"
    import struct
    NEG = hex(struct.unpack("<I", struct.pack("<f", -1.0/448))[0])
    P(f"v_mul_f32 {nm[0][0]}, {NEG}, {rs[0][0]}\nv_mul_f32 {nm[0][1]}, {NEG}, {rs[1][0]}")
    st = [t[6], t[7]]
    P(f"s_lshl_b32 {S['t0']}, {wc}, 10\nv_lshlrev_b32 {st[0]}, 4, {lane}\nv_add_u32 {st[0]}, {S['t0']}, {st[0]}\nv_xor_b32 {st[1]}, 1024, {st[0]}")
    P(f"s_lshl_b32 {S['t0']}, {S['e']}, 3\ns_add_u32 {S['t0']}, {S['t0']}, {S['rbl']}\ns_lshl_b32 {S['t0']}, {S['t0']}, 1\ns_add_u32 {S['t0']}, {S['t0']}, {wr}")
    P(f"s_mul_i32 {S['t0']}, {S['t0']}, {A2_KS}\ns_mul_i32 {S['t1']}, {S['cb']}, 14\ns_add_u32 {S['t0']}, {S['t0']}, {S['t1']}\ns_mul_i32 {S['t1']}, {wc}, 7\ns_add_u32 {S['t0']}, {S['t0']}, {S['t1']}\ns_add_u32 {S['t0']}, {S['t0']}, 28")
    P(f"s_add_u32 {S['b1']}, {S['b1']}, {S['t0']}\ns_add_u32 {S['b2']}, {S['b2']}, {S['t0']}\ns_lshl_b32 {S['b1']}, {S['b1']}, 11\ns_lshl_b32 {S['b2']}, {S['b2']}, 11")
    Z = [va(4, 4) for _ in range(4)]
    units = [(c, 0) for c in range(4)] + [(c, 1) for c in range(4)] + [(c, pr) for c in range(4, 7) for pr in range(2)]
    zi = 0
    pend = None
    for ui, (c, pr) in enumerate(units):
        if ui == 4:
            P("s_waitcnt lgkmcnt(0)")
            P(f"v_mul_f32 {nm[1][0]}, {NEG}, {nm[1][0]}\nv_mul_f32 {nm[1][1]}, {NEG}, {nm[1][1]}")
        z = Z[zi % 4]; zi += 1
        for ii in range(2):
            a = acc[c][2*pr+ii]
            sel = "op_sel_hi:[1,0,1]" if ii == 0 else "op_sel:[0,1,0] op_sel_hi:[1,1,1]"
            P(f"v_pk_fma_f32 {a[0:2]}, {cs[c][0:2]}, {nm[pr]}, {a[0:2]} {sel}")
            P(f"v_pk_fma_f32 {a[2:4]}, {cs[c][2:4]}, {nm[pr]}, {a[2:4]} {sel}")
        if pend: P(pend)
        for ii in range(2):
            a = acc[c][2*pr+ii]
            P(f"v_cvt_pk_bf16_f32 {z[2*ii]}, {a[0]}, {a[1]}\nv_cvt_pk_bf16_f32 {z[2*ii+1]}, {a[2]}, {a[3]}")
        for q in range(4): P(f"v_pk_max_i16 {z[q]}, {z[q]}, 0")
        pend = (f"s_add_u32 {S['t0']}, {S['b1'] if c <= 2 else S['b2']}, {c*2048}\n"
                f"v_permlane16_swap_b32 {z[0]}, {z[2]}\nv_permlane16_swap_b32 {z[1]}, {z[3]}\n"
                f"buffer_store_dwordx4 {z}, {st[pr]}, {sWS}, {S['t0']} offen{SC}")
    P(pend)
    stamp(P, S, 4)
    if OPT["stamps"]:
        P("s_waitcnt vmcnt(0)"); stamp(P, S, 5)
    stamp_flush(P, S, t, 0, 6, sWS)
    P("s_endpgm")
    return va.hi, aa.hi

def k1_qkv(P, S, ptr, wsp, sX, sW, sWS, mW, mH, mT):
    import struct
    f2h = lambda x: hex(struct.unpack("<I", struct.pack("<f", x))[0])
    va = Alloc("v", 3, 256); aa = Alloc("a", 0, 256)
    NW, NX = 4, 3
    XS = 18432
    XB, WB = 0, 3 * XS
    lane = R("v", 0)
    t = [va() for _ in range(8)]
    xd = [va() for _ in range(4)]; xh = va(); wd = va()
    xr = [va() for _ in range(2)]; xr0 = [va() for _ in range(2)]
    wr_ = [va() for _ in range(2)]
    acc = [[[va(4, 4) for _ in range(5)] for _ in range(2)] for _ in range(3)]
    dg = [va(4, 4) for _ in range(5)]
    cprev, ccur, cfirst = va(4, 4), va(4, 4), va(4, 4)
    mprev, mcur = va(2), va(2)
    fb = [dict(x=[aa(4) for _ in range(5)], w=[[aa(4) for _ in range(2)] for _ in range(3)]) for _ in range(2)]
    w = S['w']; hp = S['cb']
    P(f"s_lshl_b32 {S['t0']}, {S['rbl']}, 7\ns_lshl_b32 {S['t1']}, {w}, 5\ns_add_u32 {S['t1']}, {S['t0']}, {S['t1']}")
    P(f"v_lshrrev_b32 {t[4]}, 3, {lane}\nv_add_u32 {t[0]}, {S['t1']}, {t[4]}\nv_mul_u32_u24 {t[0]}, 1792, {t[0]}")
    P(f"v_lshrrev_b32 {t[1]}, 4, {lane}\nv_and_b32 {t[5]}, 7, {lane}\nv_xor_b32 {t[2]}, {t[1]}, {t[5]}")
    P(f"v_lshl_add_u32 {xd[0]}, {t[2]}, 4, {t[0]}")
    P(f"v_xor_b32 {t[3]}, 64, {xd[0]}\nv_add_u32 {xd[1]}, {8*1792}, {t[3]}\nv_add_u32 {xd[2]}, {16*1792}, {xd[0]}\nv_add_u32 {xd[3]}, {24*1792}, {t[3]}")
    P(f"s_mul_i32 {S['t1']}, {w}, {32*1792}\ns_add_u32 {S['t1']}, {S['t1']}, {8*1792}\ns_cmp_eq_u32 {S['rbl']}, 0\ns_cselect_b32 {S['t1']}, 0x80000000, {S['t1']}")
    P(f"v_subrev_u32 {xh}, {S['t1']}, {t[3]}")
    P(f"s_lshl_b32 {S['t1']}, {w}, 4\ns_mov_b64 {mH}, 0xffff\ns_lshl_b64 {mH}, {mH}, {S['t1']}")
    P(f"s_and_b32 {S['hh']}, {w}, 1\ns_lshl_b32 {S['t1']}, {S['hh']}, 2")
    P(f"v_and_b32 {t[0]}, 2, {t[4]}\nv_add_u32 {t[0]}, {S['t1']}, {t[0]}\nv_sub_u32 {t[0]}, {t[5]}, {t[0]}\nv_and_b32 {t[0]}, 7, {t[0]}")
    P(f"v_cmp_ne_u32 {mW}, 7, {t[0]}")
    P(f"s_mul_i32 {S['t0']}, {hp}, 112\ns_mul_i32 {S['t1']}, {w}, {8*2688}\ns_add_u32 {S['t0']}, {S['t0']}, {S['t1']}")
    P(f"v_mul_u32_u24 {t[1]}, 2688, {t[4]}\nv_lshl_add_u32 {t[1]}, {t[0]}, 4, {t[1]}\nv_add_u32 {wd}, {S['t0']}, {t[1]}")
    P(f"s_mul_i32 {S['kw']}, {S['kx']}, {64*2688//128}")
    P(f"s_lshl_b32 {S['wm0']}, {w}, 10\ns_lshl_b32 {S['xm0']}, {w}, 12")
    xsrd(P, S, ptr, wsp, sX, sWS)
    srd(P, sW, ptr[2], ptr[3], 448 * 2688)
    items = []
    for d in range(7):
        fr = (2*(d-NX)+1 if d >= NX else -1)
        items.append(dict(k="x", d=d, h=0, n=3, need=2*d, free=fr))
        items.append(dict(k="x", d=d, h=1, n=2, need=2*d, free=fr))
        for s in (2*d, 2*d+1):
            items.append(dict(k="w", s=s, n=3, need=s, free=(s-NW if s >= NW else -1)))
    def emit_item(i):
        it = items[i]; o = []
        if it["k"] == "x":
            sb = XB + (it['d'] % NX) * XS
            if it["h"] == 0:
                o.append(f"s_mov_b32 m0, {sb + 1024}\ns_mov_b64 exec, {mH}\nbuffer_load_dwordx4 {xh}, {sX}, {S['kx']} offen lds\ns_mov_b64 exec, -1")
            for j in (2*it["h"], 2*it["h"]+1):
                o.append(f"s_add_u32 m0, {S['xm0']}, {sb + 2048 + j*1024}\nbuffer_load_dwordx4 {xd[j]}, {sX}, {S['kx']} offen lds")
            if it["h"] == 1: adv(o, S['kx'], 128, 896)
        else:
            for p in range(3):
                pre = f"s_mov_b64 exec, {mW}\n" if p == 0 else ""
                o.append(f"s_add_u32 m0, {S['wm0']}, {WB + (it['s'] % NW)*12288 + p*4096 - p*896}\n{pre}buffer_load_dwordx4 {wd}, {sW}, {S['kw']} offen offset:{p*896} lds")
            o.append("s_mov_b64 exec, -1")
            adv(o, S['kw'], 32*2688, 448*2688)
        return "\n".join(o)
    save = OPT["pro"], OPT["rate"]
    OPT["pro"], OPT["rate"] = save[0] + 1, (save[1] + 2) // 3
    vm, sched, issue = main_loop(P, S, items, emit_item, None, None)
    OPT["pro"], OPT["rate"] = save
    hh, half = S['hh'], S['half']
    P(f"s_lshr_b32 {half}, {w}, 1")
    n_, g_ = va(), va()
    P(f"v_and_b32 {n_}, 15, {lane}\nv_lshrrev_b32 {g_}, 4, {lane}")
    c1 = va(4, 4); c0 = va(4, 4)
    for i in range(4): P(f"v_mov_b32 {c1[i]}, {ONES}\nv_mov_b32 {c0[i]}, 0")
    P(f"v_and_b32 {t[0]}, 31, {lane}\nv_and_b32 {t[1]}, 2, {lane}\nv_bfe_u32 {t[2]}, {lane}, 3, 1\nv_lshl_add_u32 {t[1]}, {t[2]}, 2, {t[1]}")
    P(f"v_add_u32 {t[1]}, 7, {t[1]}\nv_and_b32 {t[1]}, 7, {t[1]}\nv_lshlrev_b32 {t[1]}, 4, {t[1]}\nv_lshl_add_u32 {t[0]}, {t[0]}, 7, {t[1]}")
    P(f"v_lshrrev_b32 {t[1]}, 5, {lane}\nv_mul_u32_u24 {t[1]}, 12288, {t[1]}\ns_mul_i32 {S['t0']}, {hh}, {2*12288}\ns_add_u32 {S['t0']}, {S['t0']}, {WB}")
    P(f"v_add3_u32 {t[0]}, {t[0]}, {t[1]}, {S['t0']}")
    P(f"ds_write_b128 {t[0]}, {c0}\nds_write_b128 {t[0]}, {c1} offset:4096\nds_write_b128 {t[0]}, {c0} offset:8192")
    P(f"s_min_u32 {S['t0']}, {w}, 2\ns_mul_i32 {S['t0']}, {S['t0']}, {XS}\nv_lshlrev_b32 {t[1]}, 4, {lane}\nv_add_u32 {t[1]}, {S['t0']}, {t[1]}\nds_write_b128 {t[1]}, {c1} offset:{XB}")
    P(f"v_lshrrev_b32 {t[0]}, 1, {n_}\nv_xor_b32 {t[0]}, {g_}, {t[0]}\nv_lshlrev_b32 {t[0]}, 4, {t[0]}\nv_lshl_add_u32 {t[0]}, {n_}, 7, {t[0]}")
    P(f"s_lshl_b32 {S['t0']}, {half}, 13\nv_add_u32 {t[1]}, {S['t0']}, {t[0]}\nv_add_u32 {xr[0]}, {XB + 2048}, {t[1]}\nv_xor_b32 {xr[1]}, 64, {xr[0]}")
    P(f"v_cmp_gt_u32 vcc, 8, {n_}\nv_cndmask_b32 {xr0[0]}, {t[1]}, {t[0]}, vcc\nv_xor_b32 {xr0[1]}, 64, {xr0[0]}")
    assert XB == 0
    P(f"v_bfe_u32 {t[0]}, {lane}, 2, 2\nv_lshl_add_u32 {t[0]}, {g_}, 3, {t[0]}\nv_lshlrev_b32 {t[0]}, 7, {t[0]}\nv_add_u32 {t[0]}, {WB}, {t[0]}")
    P(f"v_bfe_u32 {t[1]}, {lane}, 3, 2\nv_lshlrev_b32 {t[1]}, 5, {t[1]}\nv_and_b32 {t[2]}, 3, {lane}")
    P(f"s_mul_i32 {S['t0']}, {hh}, 56\nv_lshl_add_u32 {t[3]}, {t[2]}, 3, {S['t0']}")
    P(f"v_add_u32 {t[4]}, {t[3]}, {t[1]}\nv_and_b32 {t[4]}, 127, {t[4]}\nv_add_u32 {wr_[0]}, {t[0]}, {t[4]}")
    P(f"s_lshl_b32 {S['t0']}, {hh}, 3\ns_sub_u32 {S['t0']}, 120, {S['t0']}\nv_mov_b32 {t[4]}, {S['t0']}\nv_add_u32 {t[3]}, 32, {t[3]}")
    P(f"v_cmp_eq_u32 vcc, 3, {t[2]}\nv_cndmask_b32 {t[3]}, {t[3]}, {t[4]}, vcc")
    P(f"v_add_u32 {t[4]}, {t[3]}, {t[1]}\nv_and_b32 {t[4]}, 127, {t[4]}\nv_add_u32 {wr_[1]}, {t[0]}, {t[4]}")
    P(f"v_lshlrev_b32 {t[0]}, 2, {g_}\nv_sub_u32 {t[0]}, {n_}, {t[0]}\nv_mov_b32 {t[1]}, {NINF}")
    P(f"s_or_b32 {S['t0']}, {S['rbl']}, {half}\ns_cmp_eq_u32 {S['t0']}, 0\ns_cselect_b32 {S['t0']}, {NINF}, 0")
    for r in range(4):
        P(f"v_subrev_u32 {t[2]}, {r}, {t[0]}")
        P(f"v_cmp_gt_i32 vcc, -8, {t[2]}\nv_cndmask_b32 {cprev[r]}, {t[1]}, {c0[0]}, vcc")
        P(f"v_cmp_gt_u32 vcc, 8, {t[2]}\nv_cndmask_b32 {ccur[r]}, {t[1]}, {c0[0]}, vcc")
        P(f"v_or_b32 {cfirst[r]}, {S['t0']}, {cprev[r]}")
    for (m, c) in ((mprev, cprev), (mcur, ccur)):
        for q in range(2):
            P(f"v_ashrrev_i32 {t[2]}, 31, {c[2*q]}\nv_ashrrev_i32 {t[3]}, 31, {c[2*q+1]}\nv_and_b32 {t[2]}, 0xffff, {t[2]}\nv_and_b32 {t[3]}, 0xffff0000, {t[3]}")
            P(f"v_or_b32 {t[2]}, {t[2]}, {t[3]}\nv_not_b32 {m[q]}, {t[2]}")
    def reads(s):
        b = fb[s & 1]
        xs = ((s >> 1) % NX) * XS; ws = (s % NW) * 12288
        X = [f"ds_read_b128 {b['x'][0]}, {xr0[s&1]} offset:{xs}"] + [f"ds_read_b128 {b['x'][j]}, {xr[s&1]} offset:{xs + (j-1)*2048}" for j in range(1, 5)]
        W = []
        for p in (1, 0, 2):
            for tt in range(2):
                W.append(f"ds_read_b64_tr_b16 {b['w'][p][tt][0:2]}, {wr_[tt]} offset:{ws + p*4096}")
                W.append(f"ds_read_b64_tr_b16 {b['w'][p][tt][2:4]}, {wr_[tt]} offset:{ws + p*4096 + 512}")
        return X + W
    def mfmas(s):
        b = fb[s & 1]; o = []
        def mm(d, a, bb): o.append(f"v_mfma_f32_16x16x32_bf16 {d}, {a}, {bb}, {d if s else 0}")
        for j in range(5): mm(dg[j], b['x'][j], b['x'][j])
        for p in (1, 0, 2):
            for tt in (1, 0):
                for j in range(5): mm(acc[p][tt][j], b['w'][p][tt], b['x'][j])
        return o
    run_loop(P, S, vm, sched, issue, reads, mfmas)
    Q, K, V = acc
    ST = [va(2) for _ in range(5)]
    sq = [va() for _ in range(5)]
    a1, a2 = t[0], t[1]
    P(f"v_lshlrev_b32 {a1}, 2, {n_}\nv_bfe_u32 {a2}, {lane}, 2, 2\nv_lshl_add_u32 {a2}, {a2}, 6, {a1}\nv_add_u32 {a1}, 192, {a1}")
    P(f"v_and_b32 {t[2]}, 1, {lane}\nv_cmp_eq_u32 {mT}, 1, {t[2]}\nv_and_b32 {t[2]}, 2, {lane}\nv_cmp_eq_u32 vcc, 2, {t[2]}")
    for j in range(5):
        P(f"v_cndmask_b32 {dg[j][0]}, {dg[j][0]}, {dg[j][1]}, {mT}\nv_cndmask_b32 {dg[j][2]}, {dg[j][2]}, {dg[j][3]}, {mT}\nv_cndmask_b32 {dg[j][0]}, {dg[j][0]}, {dg[j][2]}, vcc")
        P(f"ds_bpermute_b32 {sq[j]}, {a2}, {dg[j][0]}\nds_bpermute_b32 {ST[j][0]}, {a1}, {K[1][j][0]}")
    csK = [dg[1], dg[2]]; csV = [dg[3], dg[4]]
    tmpcs = [va(4, 4) for _ in range(4)]
    csK = tmpcs[0:2]; csV = tmpcs[2:4]; csQ = [Q[0][0], Q[1][0]]
    for tt in range(2):
        for r in range(4):
            P(f"v_mov_b32_dpp {csK[tt][r]}, {K[tt][0][r]} row_newbcast:0 row_mask:0xf bank_mask:0xf")
    for tt in range(2):
        for r in range(4):
            P(f"v_mov_b32_dpp {csQ[tt][r]}, {Q[tt][0][r]} row_newbcast:0 row_mask:0xf bank_mask:0xf")
    for tt in range(2):
        for r in range(4):
            P(f"v_mov_b32_dpp {csV[tt][r]}, {V[tt][0][r]} row_newbcast:0 row_mask:0xf bank_mask:0xf")
    P("s_waitcnt lgkmcnt(0)")
    P(f"s_mov_b32 {S['t0']}, {f2h(1.0/448)}")
    for j in range(5): P(f"v_mul_f32 {ST[j][0]}, {f2h(-1.0/448)}, {ST[j][0]}")
    for j in range(5): P(f"v_mul_f32 {ST[j][1]}, {ST[j][0]}, {ST[j][0]}")
    for j in range(5): P(f"v_fma_f32 {ST[j][1]}, {sq[j]}, {S['t0']}, -{ST[j][1]}")
    for j in range(5): P(f"v_max_f32 {ST[j][1]}, 0, {ST[j][1]}")
    for j in range(5): P(f"v_add_f32 {ST[j][1]}, {f2h(1e-5)}, {ST[j][1]}")
    for j in range(5): P(f"v_rsq_f32 {ST[j][1]}, {ST[j][1]}")
    LO = "op_sel_hi:[1,0,1]"; HI = "op_sel:[0,1] op_sel_hi:[1,1]"
    def correct(A_, cs_, j, scale, dst):
        o = []
        for tt in range(2):
            a = A_[tt][j]
            o.append(f"v_pk_fma_f32 {a[0:2]}, {cs_[tt][0:2]}, {ST[j]}, {a[0:2]} {LO}")
            o.append(f"v_pk_fma_f32 {a[2:4]}, {cs_[tt][2:4]}, {ST[j]}, {a[2:4]} {LO}")
        if scale:
            for tt in range(2):
                a = A_[tt][j]
                o.append(f"v_pk_mul_f32 {a[0:2]}, {a[0:2]}, {ST[j]} {HI}")
                o.append(f"v_pk_mul_f32 {a[2:4]}, {a[2:4]}, {ST[j]} {HI}")
        for tt in range(2):
            a = A_[tt][j]
            o.append(f"v_cvt_pk_bf16_f32 {dst[2*tt]}, {a[0]}, {a[1]}")
            o.append(f"v_cvt_pk_bf16_f32 {dst[2*tt+1]}, {a[2]}, {a[3]}")
        return o
    for j in range(5): P.ext(correct(V, csV, j, True, V[0][j]))
    VB = 0
    av_w, av_r = t[2], t[3]
    P(f"s_mul_i32 {S['t1']}, {w}, 6400\nv_mul_u32_u24 {av_w}, 80, {n_}\nv_lshl_add_u32 {av_w}, {g_}, 4, {av_w}\nv_add_u32 {av_w}, {S['t1']}, {av_w}")
    P(f"v_lshrrev_b32 {av_r}, 2, {lane}\nv_mul_u32_u24 {av_r}, 80, {av_r}\nv_and_b32 {t[4]}, 3, {lane}\nv_lshl_add_u32 {av_r}, {t[4]}, 4, {av_r}\nv_add_u32 {av_r}, {S['t1']}, {av_r}")
    for j in range(5): P(f"ds_write_b128 {av_w}, {V[0][j]} offset:{VB + j*1280}")
    for j in range(5): P.ext(correct(K, csK, j, True, K[0][j]))
    Vt = [aa(10), aa(10)]
    P("s_waitcnt lgkmcnt(0)")
    for tt in range(2):
        for j in range(5): P(f"ds_read_b64_tr_b16 {Vt[tt][2*j:2*j+2]}, {av_r} offset:{VB + j*1280 + 8*tt}")
    for j in range(1, 5): P.ext(correct(Q, csQ, j, False, Q[0][j]))
    S0 = {j: K[1][j] for j in range(1, 5)}; S1 = {j: V[1][j] for j in range(1, 5)}
    for j in range(1, 5):
        P(f"v_mfma_f32_16x16x32_bf16 {S0[j]}, {K[0][j-1]}, {Q[0][j]}, {cfirst if j == 1 else cprev}")
        P(f"v_mfma_f32_16x16x32_bf16 {S1[j]}, {K[0][j]}, {Q[0][j]}, {ccur}")
    so = [t[4], t[5]]; sr = t[6]
    P(f"s_lshl_b32 {S['t0']}, {hp}, 1\ns_add_u32 {S['t0']}, {S['t0']}, {hh}\ns_mul_i32 {S['t1']}, {S['t0']}, 28")
    P(f"v_lshl_add_u32 {t[7]}, {g_}, 2, {S['t1']}")
    P(f"v_lshrrev_b32 {so[0]}, 4, {t[7]}\nv_lshlrev_b32 {so[0]}, 11, {so[0]}\nv_bfe_u32 {so[1]}, {t[7]}, 3, 1\nv_lshl_add_u32 {so[0]}, {so[1]}, 9, {so[0]}")
    P(f"v_bfe_u32 {so[1]}, {t[7]}, 2, 1\nv_lshl_add_u32 {so[0]}, {so[1]}, 3, {so[0]}\nv_lshl_add_u32 {so[0]}, {n_}, 4, {so[0]}")
    P(f"v_add_u32 {so[1]}, 2048, {so[0]}\nv_mov_b32 {t[7]}, 0x80000000\nv_cmp_eq_u32 vcc, 3, {g_}\nv_cndmask_b32 {so[1]}, {so[1]}, {t[7]}, vcc")
    P(f"s_lshl_b32 {S['t1']}, {S['e']}, 3\ns_add_u32 {S['t1']}, {S['t1']}, {S['rbl']}\ns_lshl_b32 {S['t1']}, {S['t1']}, 1\ns_add_u32 {S['t1']}, {S['t1']}, {half}")
    P(f"s_mul_i32 {S['b1']}, {S['t1']}, {A2_KS*2048}")
    P(f"s_lshl_b32 {S['t1']}, {S['t1']}, 8\ns_add_u32 {S['t1']}, {S['t1']}, {RSTD_OFF}\ns_cmp_eq_u32 {S['t0']}, 0\ns_cselect_b32 {S['t1']}, {S['t1']}, 0x80000000")
    P(f"v_lshl_add_u32 {sr}, {n_}, 2, {S['t1']}\nv_cmp_ne_u32 vcc, 0, {g_}\nv_cndmask_b32 {sr}, {sr}, {t[7]}, vcc")
    for j in range(1, 5): P(f"buffer_store_dword {ST[j][1]}, {sr}, {sWS}, 0 offen offset:{(j-1)*64}{SC}")
    cq = f2h(28 ** -0.5 * math.log2(math.e))
    P(f"v_cmp_lt_u32 vcc, 31, {lane}")
    def softmax(a, b, tm):
        o = []
        X, Y = S0[a], S0[b]
        c, m1, m2 = tm[0], tm[1], tm[2]
        o.append(f"v_cndmask_b32 {c}, {ST[a][1]}, {ST[b][1]}, vcc")
        for r in range(4): o.append(f"v_max_f32 {X[r]}, {X[r]}, {S1[a][r]}")
        for r in range(4): o.append(f"v_max_f32 {Y[r]}, {Y[r]}, {S1[b][r]}")
        o.append(f"v_mul_f32 {c}, {cq}, {c}")
        for r in range(4): o.append(f"v_permlane32_swap_b32 {X[r]}, {Y[r]}")
        for r in range(4): o.append(f"v_max_f32 {X[r]}, {X[r]}, {Y[r]}")
        o.append(f"v_max3_f32 {m1}, {X[0]}, {X[1]}, {X[2]}")
        o.append(f"v_max_f32 {m1}, {m1}, {X[3]}")
        o.append(f"v_mov_b32 {m2}, {m1}")
        o.append(f"v_permlane16_swap_b32 {m1}, {m2}")
        o.append(f"v_max_f32 {m1}, {m1}, {m2}")
        o.append(f"v_mul_f32 {m1}, {m1}, {c}")
        for r in range(4): o.append(f"v_fma_f32 {X[r]}, {X[r]}, {c}, -{m1}")
        for r in range(4): o.append(f"v_exp_f32 {X[r]}, {X[r]}")
        o.append(f"v_add_f32 {m1}, {X[0]}, {X[1]}")
        o.append(f"v_add_f32 {m2}, {X[2]}, {X[3]}")
        o.append(f"v_add_f32 {m1}, {m1}, {m2}")
        o.append(f"v_mov_b32 {m2}, {m1}")
        o.append(f"v_permlane16_swap_b32 {m1}, {m2}")
        o.append(f"v_add_f32 {m1}, {m1}, {m2}")
        o.append(f"v_rcp_f32 {m1}, {m1}")
        for r in range(4): o.append(f"v_mul_f32 {X[r]}, {X[r]}, {m1}")
        o.append(f"v_cvt_pk_bf16_f32 {X[0]}, {X[0]}, {X[1]}")
        o.append(f"v_cvt_pk_bf16_f32 {X[1]}, {X[2]}, {X[3]}")
        o.append(f"v_mov_b32 {Y[0]}, {X[0]}")
        o.append(f"v_mov_b32 {Y[1]}, {X[1]}")
        o.append(f"v_permlane32_swap_b32 {X[0]}, {Y[0]}")
        o.append(f"v_permlane32_swap_b32 {X[1]}, {Y[1]}")
        for Zr in (X, Y):
            o.append(f"v_and_b32 {Zr[2]}, {Zr[0]}, {mcur[0]}")
            o.append(f"v_and_b32 {Zr[3]}, {Zr[1]}, {mcur[1]}")
            o.append(f"v_and_b32 {Zr[0]}, {Zr[0]}, {mprev[0]}")
            o.append(f"v_and_b32 {Zr[1]}, {Zr[1]}, {mprev[1]}")
        return o
    sa_, sb_ = softmax(1, 2, dg[1]), softmax(3, 4, dg[2])
    for x_, y_ in zip(sa_, sb_): P(x_); P(y_)
    P("s_waitcnt lgkmcnt(0)")
    O = [{j: Q[1][j] for j in range(1, 5)}, {j: V[1][j] for j in range(1, 5)}]
    for j in range(1, 5):
        for tt in range(2):
            P(f"v_mfma_f32_16x16x32_bf16 {O[tt][j]}, {Vt[tt][2*(j-1):2*(j-1)+4]}, {S0[j]}, 0")
    for j in range(1, 5):
        for tt in range(2):
            o_ = O[tt][j]
            P(f"v_cvt_pk_bf16_f32 {o_[0]}, {o_[0]}, {o_[1]}\nv_cvt_pk_bf16_f32 {o_[1]}, {o_[2]}, {o_[3]}")
            jt = j - 1
            P(f"buffer_store_dwordx2 {o_[0:2]}, {so[tt]}, {sWS}, {S['b1']} offen offset:{(jt>>1)*1024 + (jt&1)*256}{SC}")
    stamp(P, S, 4)
    if OPT["stamps"]:
        P("s_waitcnt vmcnt(0)"); stamp(P, S, 5)
    stamp_flush(P, S, t, 0, 6, sWS)
    return va.hi, aa.hi

def k2():
    import struct
    f2h = lambda x: hex(struct.unpack("<I", struct.pack("<f", x))[0])
    P = Prog()
    sa = Alloc("s", 4, 100); va = Alloc("v", 3, 256); aa = Alloc("a", 0, 256)
    S = {}
    ptr = sa(16, 4); wsp = sa(2)
    sA, sB1, sB2, sX, sO = sa(4), sa(4), sa(4), sa(4), sa(4)
    for n in "w T cb t0 t1 t2 ao bo bo2 bm0".split(): S[n] = sa()
    pc = sa(2)
    S['st'] = sa(16, 2)
    L = OPT["L2"]; NA = L + 1; NB = L + 1
    RED = 4 * NB * 2048; SAR = RED + 12 * 4096
    LDS = SAR + 16384
    lane = R("v", 0); w = S['w']
    t = [va() for _ in range(6)]
    vA = [va(), va()]; vB = [va(), va()]; rB = [va(), va()]
    acc = [[va(16, 4) for _ in range(2)] for _ in range(2)]
    xv = [va(2) for _ in range(4)]; rstd = va()
    aring = [[aa(4) for _ in range(2)] for _ in range(NA)]
    bf = [[aa(4) for _ in range(2)] for _ in range(2)]
    P(f"{NAME}_k2_kernel:")
    stamp(P, S, 0)
    P("s_cmp_ge_u32 s2, 224\ns_cbranch_scc1 K2_END")
    P(f"s_load_dwordx16 {ptr}, s[0:1], 0\ns_load_dwordx2 {wsp}, s[0:1], 64")
    P(f"s_getpc_b64 {pc}\nv_lshlrev_b32 v1, 5, v0\nglobal_load_dword v2, v1, {pc}")
    P(f"v_lshrrev_b32 v1, 6, v0\nv_and_b32 v0, 63, v0\nv_readfirstlane_b32 {w}, v1")
    P(f"s_and_b32 {S['t0']}, s2, 7\ns_lshl_b32 {S['t0']}, {S['t0']}, 2\ns_bfe_u32 {S['t1']}, s2, 0x20003\ns_add_u32 {S['T']}, {S['t0']}, {S['t1']}\ns_lshr_b32 {S['cb']}, s2, 5")
    P(f"s_mul_i32 {S['ao']}, {S['T']}, {A2_KS}\ns_mul_i32 {S['t0']}, {w}, 35\ns_add_u32 {S['ao']}, {S['ao']}, {S['t0']}\ns_lshl_b32 {S['ao']}, {S['ao']}, 11")
    P(f"s_and_b32 {S['t1']}, {w}, 1\ns_lshl_b32 {S['t1']}, {S['t1']}, 10\nv_lshl_add_u32 {vA[0]}, {lane}, 4, {S['t1']}\nv_xor_b32 {vA[1]}, 1024, {vA[0]}")
    P(f"s_mul_i32 {S['bo2']}, {S['t0']}, 14336\ns_sub_u32 {S['bo']}, {S['bo2']}, {28*14336}\ns_cmp_eq_u32 {w}, 0\ns_cselect_b32 {S['bo']}, 0, {S['bo']}")
    P(f"v_lshrrev_b32 {t[0]}, 3, {lane}\nv_mul_u32_u24 {t[0]}, 896, {t[0]}\nv_bfe_u32 {t[1]}, {lane}, 4, 1\nv_lshlrev_b32 {t[1]}, 2, {t[1]}\nv_and_b32 {t[2]}, 7, {lane}\nv_xor_b32 {t[1]}, {t[1]}, {t[2]}")
    P(f"s_lshl_b32 {S['t1']}, {S['cb']}, 7\nv_lshl_add_u32 {t[0]}, {t[1]}, 4, {t[0]}\nv_add_u32 {vB[0]}, {S['t1']}, {t[0]}\nv_add_u32 {vB[1]}, 7168, {vB[0]}")
    P(f"s_mul_i32 {S['bm0']}, {w}, {NB*2048}")
    P("s_waitcnt lgkmcnt(0)")
    srd(P, sA, wsp[0], wsp[1], (STAMP_OFF + (1 << 20)) if OPT["stamps"] else WS_USED)
    srd(P, sB2, ptr[10], ptr[11], 1792 * 896)
    P(f"s_cmp_eq_u32 {w}, 0\ns_cselect_b32 {sB1[0]}, {ptr[4]}, {ptr[10]}\ns_cselect_b32 {sB1[1]}, {ptr[5]}, {ptr[11]}\ns_cselect_b32 {sB1[2]}, {448*896}, {sB2[2]}\ns_mov_b32 {sB1[3]}, 0x20000")
    vm = VM(); vm.issue(("pf", -9))
    def loads(tt):
        o = []
        sB = sB1 if tt < 28 else sB2
        bo = S['bo'] if tt < 28 else S['bo2']
        for j in range(2):
            o.append(f"s_add_u32 m0, {S['bm0']}, {(tt % NB)*2048 + j*1024}\nbuffer_load_dwordx4 {vB[j]}, {sB}, {bo} offen lds"
                     + (f"\ns_add_u32 {bo}, {bo}, 14336" if j == 1 else ""))
            vm.issue(("d", tt))
        for j in range(2):
            o.append(f"buffer_load_dwordx4 {aring[tt % NA][j]}, {vA[j]}, {sA}, {S['ao']} offen offset:{(tt&1)*2048}{SC}"
                     + (f"\ns_add_u32 {S['ao']}, {S['ao']}, 4096" if (j == 1 and tt & 1) else ""))
            vm.issue(("d", tt))
        return o
    for tt in range(min(L, 3)): P.ext(loads(tt))
    srd(P, sX, ptr[0], ptr[1], XBYTES)
    srd(P, sO, ptr[12], ptr[13], XBYTES)
    n_, hf = t[3], t[4]
    vO = va()
    P(f"v_and_b32 {n_}, 31, {lane}\nv_lshrrev_b32 {hf}, 5, {lane}")
    P(f"s_lshl_b32 {S['t0']}, {S['T']}, 1\ns_and_b32 {S['t1']}, {w}, 1\ns_add_u32 {S['t0']}, {S['t0']}, {S['t1']}\ns_lshl_b32 {S['t0']}, {S['t0']}, 5")
    P(f"s_lshl_b32 {S['t1']}, {S['t0']}, 2\ns_add_u32 {S['t1']}, {S['t1']}, {RSTD_OFF}\nv_lshl_add_u32 {t[0]}, {n_}, 2, {S['t1']}")
    P(f"buffer_load_dword {rstd}, {t[0]}, {sA}, 0 offen{SC}"); vm.issue(("e", 99))
    P(f"s_and_b32 {S['t1']}, {S['t0']}, 1023\ns_mul_i32 {S['t1']}, {S['t1']}, 1792\ns_lshr_b32 {S['t0']}, {S['t0']}, 10\ns_mul_i32 {S['t0']}, {S['t0']}, 896\ns_add_u32 {S['t0']}, {S['t0']}, {S['t1']}")
    P(f"s_lshl_b32 {S['t1']}, {S['cb']}, 7\ns_add_u32 {S['t0']}, {S['t0']}, {S['t1']}\ns_lshr_b32 {S['t1']}, {w}, 1\ns_lshl_b32 {S['t1']}, {S['t1']}, 6\ns_add_u32 {S['t0']}, {S['t0']}, {S['t1']}")
    P(f"v_mul_u32_u24 {t[0]}, 1792, {n_}\nv_add_u32 {t[0]}, {S['t0']}, {t[0]}\nv_lshl_add_u32 {vO}, {hf}, 4, {t[0]}\nv_lshl_add_u32 {t[0]}, {hf}, 3, {t[0]}")
    for a in range(4):
        P(f"buffer_load_dwordx2 {xv[a]}, {t[0]}, {sX}, 0 offen offset:{a*16}"); vm.issue(("e", 99))
    P(f"v_bfe_u32 {t[0]}, {lane}, 2, 2\nv_lshl_add_u32 {t[0]}, {hf}, 3, {t[0]}\nv_lshlrev_b32 {t[0]}, 7, {t[0]}")
    P(f"v_bfe_u32 {t[1]}, {lane}, 3, 1\nv_lshl_add_u32 {t[0]}, {t[1]}, 6, {t[0]}\nv_bfe_u32 {t[1]}, {lane}, 4, 1\nv_lshl_add_u32 {t[0]}, {t[1]}, 5, {t[0]}")
    P(f"v_and_b32 {t[1]}, 3, {lane}\nv_lshl_add_u32 {t[0]}, {t[1]}, 3, {t[0]}\nv_xor_b32 {t[0]}, {S['t1']}, {t[0]}\nv_add_u32 {rB[0]}, {S['bm0']}, {t[0]}\nv_xor_b32 {rB[1]}, 64, {rB[0]}")
    vL = va()
    P(f"v_lshlrev_b32 {vL}, 4, {lane}")
    for tt in range(min(L, 3), L): P.ext(loads(tt))
    def trs(tt):
        o = []
        for f in range(2):
            o.append(f"ds_read_b64_tr_b16 {bf[tt&1][f][0:2]}, {rB[f]} offset:{(tt % NB)*2048}")
            o.append(f"ds_read_b64_tr_b16 {bf[tt&1][f][2:4]}, {rB[f]} offset:{(tt % NB)*2048 + 512}")
        return o
    P(vm.wait_for(lambda q: q[0] == "d" and q[1] <= 0))
    stamp(P, S, 1)
    P.ext(trs(0))
    for tt in range(35):
        if tt + 1 < 35:
            P(vm.wait_for(lambda q: q[0] == "d" and q[1] <= tt + 1))
            P.ext(trs(tt + 1))
            P("s_waitcnt lgkmcnt(4)")
        else:
            P("s_waitcnt lgkmcnt(0)")
        if tt == 28:
            P(f"s_cmp_lg_u32 {w}, 0\ns_cbranch_scc1 K2_NOS\ns_nop 7")
            for f in range(2):
                for p in range(2):
                    for a in range(4): P(f"ds_write_b128 {vL}, {acc[f][p][4*a:4*a+4]} offset:{(2*f+p)*4096 + a*1024 + SAR - 65536*(SAR >= 65536)}" if SAR + 16384 <= 65536 else
                                         f"ds_write_b128 {t[5]}, {acc[f][p][4*a:4*a+4]} offset:{(2*f+p)*4096 + a*1024}")
            P("s_waitcnt lgkmcnt(0)")
            for f in range(2):
                for p in range(2):
                    for a in range(16): P(f"v_mov_b32 {acc[f][p][a]}, 0")
            P("s_nop 1\nK2_NOS:")
        if tt == 0: P(f"v_add_u32 {t[5]}, {SAR}, {vL}")
        m = [f"v_mfma_f32_32x32x16_bf16 {acc[f][p]}, {bf[tt&1][f]}, {aring[tt % NA][p]}, {acc[f][p] if tt else 0}" for f in range(2) for p in range(2)]
        ld = loads(tt + L) if tt + L < 35 else []
        P.ext(merge(m, (ld, 0, 4)))
    stamp(P, S, 2)
    for q in range(1, 4):
        P(f"s_xor_b32 {S['t0']}, {w}, {q}\ns_mul_i32 {S['t0']}, {S['t0']}, 12288\ns_add_u32 {S['t0']}, {S['t0']}, {RED + (q-1)*4096}\nv_add_u32 {t[q-1]}, {S['t0']}, {vL}")
    for q in range(1, 4):
        for a in range(4): P(f"ds_write_b128 {t[q-1]}, {acc[q>>1][q&1][4*a:4*a+4]} offset:{a*1024}")
    P(f"s_mul_i32 {S['t0']}, {w}, 12288\ns_add_u32 {S['t0']}, {S['t0']}, {RED}\ns_lshl_b32 {S['t1']}, {w}, 12")
    P(f"v_add_u32 {t[3]}, {S['t0']}, {vL}\nv_add_u32 {t[4]}, {S['t1']}, {t[5]}")
    P("s_waitcnt lgkmcnt(0)\ns_barrier")
    sv = va(16, 4)
    parts = [acc[0][1], acc[1][0], acc[1][1]]
    for a in range(4):
        for i in range(3): P(f"ds_read_b128 {parts[i][4*a:4*a+4]}, {t[3]} offset:{i*4096 + a*1024}")
        P(f"ds_read_b128 {sv[4*a:4*a+4]}, {t[4]} offset:{a*1024}")
    P("s_waitcnt vmcnt(0)")
    kk = va(2)
    P(f"v_mov_b32 {kk[0]}, {rstd}\nv_mul_f32 {kk[1]}, {f2h(-math.log2(math.e))}, {rstd}")
    F = acc[0][0]
    Rr = va(8, 4)
    for a in range(4):
        P(f"s_waitcnt lgkmcnt({12 - 4*a})")
        f4 = F[4*a:4*a+4]; e4 = parts[0][4*a:4*a+4]; s4 = sv[4*a:4*a+4]; x4 = parts[1][4*a:4*a+4]
        for h in range(2):
            P(f"v_pk_add_f32 {f4[2*h:2*h+2]}, {f4[2*h:2*h+2]}, {parts[0][4*a+2*h:4*a+2*h+2]}")
            P(f"v_pk_add_f32 {parts[1][4*a+2*h:4*a+2*h+2]}, {parts[1][4*a+2*h:4*a+2*h+2]}, {parts[2][4*a+2*h:4*a+2*h+2]}")
        for h in range(2):
            P(f"v_pk_add_f32 {f4[2*h:2*h+2]}, {f4[2*h:2*h+2]}, {parts[1][4*a+2*h:4*a+2*h+2]}")
        for h in range(2):
            P(f"v_pk_mul_f32 {e4[2*h:2*h+2]}, {f4[2*h:2*h+2]}, {kk} op_sel:[0,1] op_sel_hi:[1,1]")
            P(f"v_pk_mul_f32 {f4[2*h:2*h+2]}, {f4[2*h:2*h+2]}, {kk} op_sel_hi:[1,0]")
        for r in range(4): P(f"v_exp_f32 {e4[r]}, {e4[r]}")
        for h in range(2): P(f"v_pk_mul_f32 {f4[2*h:2*h+2]}, {f4[2*h:2*h+2]}, {s4[2*h:2*h+2]}")
        for r in range(4): P(f"v_add_f32 {e4[r]}, 1.0, {e4[r]}")
        for r in range(4): P(f"v_rcp_f32 {e4[r]}, {e4[r]}")
        for h in range(2):
            P(f"v_lshlrev_b32 {x4[2*h]}, 16, {xv[a][h]}\nv_and_b32 {x4[2*h+1]}, 0xffff0000, {xv[a][h]}")
        for h in range(2): P(f"v_pk_fma_f32 {f4[2*h:2*h+2]}, {f4[2*h:2*h+2]}, {e4[2*h:2*h+2]}, {x4[2*h:2*h+2]}")
        P(f"v_cvt_pk_bf16_f32 {Rr[2*a]}, {f4[0]}, {f4[1]}\nv_cvt_pk_bf16_f32 {Rr[2*a+1]}, {f4[2]}, {f4[3]}")
        if a & 1:
            p = a >> 1
            P(f"v_permlane32_swap_b32 {Rr[4*p]}, {Rr[4*p+2]}\nv_permlane32_swap_b32 {Rr[4*p+1]}, {Rr[4*p+3]}")
            P(f"buffer_store_dwordx4 {Rr[4*p:4*p+4]}, {vO}, {sO}, 0 offen offset:{32*p}")
    stamp(P, S, 3)
    if OPT["stamps"]:
        P("s_waitcnt vmcnt(0)"); stamp(P, S, 4)
    stamp_flush(P, S, t, 1, 5, sA)
    P("K2_END:\ns_endpgm")
    return P.l, va.hi, aa.hi, sa.hi, LDS

def main():
    l1, nv1, na1, ns1 = k1()
    l2, nv2, na2, ns2, lds2 = k2()
    l1, p1 = pad_hazards(l1); l2, p2 = pad_hazards(l2)
    out = []
    out.append(f"; @launch kernel={NAME}_k1_kernel grid=(256,1,1) block=(256,1,1) lds=114688")
    out.append(f"; @launch kernel={NAME}_k2_kernel grid=(224,1,1) block=(256,1,1) lds={lds2}")
    out.append('.amdgcn_target "amdgcn-amd-amdhsa--gfx950"\n.text')
    for nm, l in ((f"{NAME}_k1_kernel", l1), (f"{NAME}_k2_kernel", l2)):
        out.append(f".globl {nm}\n.p2align 8\n.type {nm},@function")
        out.extend(l)
    out.append(".fill 8192, 4, 0xbf800000")
    out.append(kernel_desc(f"{NAME}_k1_kernel", nv1, na1, ns1))
    out.append(kernel_desc(f"{NAME}_k2_kernel", nv2, na2, ns2))
    print("\n".join(out))
main()
```

```python
import sys, math
from asmlib import *

NAME = "recurrent_scan__sliding_local_dilated__dense_activation_relu__prompt"
OPT = dict(empty=0, x_nodma=0, x_nord=0, x_nobar=0, x_nomfma=0, rot=1, pro=3, rate=8, L2=4, stamps=0, sc1=0, pf2=0)
for a in sys.argv[1:]:
    k, v = a.split("="); OPT[k] = int(v)

A2_KS = 140
RSTD_OFF = 2048 * 2240 * 2
WS_USED = RSTD_OFF + 8192
STAMP_OFF = 16 << 20
XBYTES = 2048 * 896
SC = " sc1" if OPT["sc1"] else ""
ONES = "0x3f803f80"
NINF = "0xff800000"

def srd(P, d, base_lo, base_hi, n):
    P(f"s_mov_b32 {d[0]}, {base_lo}\ns_mov_b32 {d[1]}, {base_hi}\ns_mov_b32 {d[2]}, {n}\ns_mov_b32 {d[3]}, 0x20000")

class VM:
    def __init__(self): self.q = []
    def issue(self, tag): self.q.append(tag)
    def wait_for(self, pred):
        last = -1
        for i, t in enumerate(self.q):
            if pred(t): last = i
        n = len(self.q) - 1 - last
        assert n <= 63
        return f"s_waitcnt vmcnt({n})"

def stamp(P, S, idx):
    if OPT["stamps"]:
        P(f"{'s_memrealtime' if OPT['stamps'] == 1 else 's_memtime'} {S['st'].sub(2*idx,2)}")

def stamp_flush(P, S, V, kern, n, srdws):
    if not OPT["stamps"]: return
    P("s_waitcnt lgkmcnt(0)")
    P(f"s_lshl_b32 {S['t0']}, s2, 2\ns_add_u32 {S['t0']}, {S['t0']}, {S['w']}\ns_lshl_b32 {S['t0']}, {S['t0']}, 6")
    P(f"s_add_u32 {S['t0']}, {S['t0']}, {STAMP_OFF + kern*(1<<17)}")
    P(f"v_mov_b32 {V[0]}, {S['t0']}")
    for i in range(n):
        P(f"v_mov_b32 {V[1]}, {S['st'][2*i]}\nbuffer_store_dword {V[1]}, {V[0]}, {srdws}, 0 offen offset:{4*i}")

def schedule_dma(items, pro, rate, nsteps):
    sched = {s: [] for s in range(-1, nsteps)}
    i = 0
    for s in range(-1, nsteps):
        cap = pro if s == -1 else rate
        n = 0
        while i < len(items) and items[i]["free"] <= s and (n < cap or items[i]["need"] - 2 <= s):
            sched[s].append(i); i += 1; n += 1
    assert i == len(items)
    for s, l in sched.items():
        for j in l: assert items[j]["need"] - 2 >= s or s == -1, (s, items[j])
    return sched

def k1():
    P = Prog()
    sa = Alloc("s", 4, 100)
    S = {}
    ptr = sa(16, 4)
    wsp = sa(2)
    sX, sW, sWS = sa(4), sa(4), sa(4)
    for n in "w e rbl cb t0 t1 t2 kx kw wm0 xm0 b1 b2 hh half".split(): S[n] = sa()
    pc = sa(2); mW = sa(2); mH = sa(2); mT = sa(2)
    S['st'] = sa(16, 2)
    P(f"{NAME}_k1_kernel:")
    stamp(P, S, 0)
    P("s_cmp_ge_u32 s2, 256\ns_cbranch_scc1 K1_END")
    P(f"s_load_dwordx16 {ptr}, s[0:1], 0\ns_load_dwordx2 {wsp}, s[0:1], 64")
    P(f"s_getpc_b64 {pc}\nv_lshlrev_b32 v1, 7, v0\nglobal_load_dword v2, v1, {pc}")
    P(f"v_lshrrev_b32 v1, 6, v0\nv_and_b32 v0, 63, v0\nv_readfirstlane_b32 {S['w']}, v1")
    P(f"s_bfe_u32 {S['e']}, s2, 0x10002")
    P(f"s_bfe_u32 {S['rbl']}, s2, 0x30003")
    P(f"s_and_b32 {S['t0']}, s2, 3\ns_lshl_b32 {S['t0']}, {S['t0']}, 1\ns_bfe_u32 {S['t1']}, s2, 0x10006\ns_add_u32 {S['cb']}, {S['t0']}, {S['t1']}")
    if OPT["rot"]:
        P(f"s_bfe_u32 {S['t0']}, s2, 0x20006\ns_lshl_b32 {S['t0']}, {S['t0']}, 1\ns_add_u32 {S['t0']}, {S['t0']}, {S['rbl']}")
        P(f"s_sub_u32 {S['t1']}, {S['t0']}, 7\ns_cmp_ge_u32 {S['t0']}, 7\ns_cselect_b32 {S['t0']}, {S['t1']}, {S['t0']}")
    else:
        P(f"s_mov_b32 {S['t0']}, 0")
    P(f"s_lshl_b32 {S['kx']}, {S['t0']}, 7")
    P(f"s_mul_i32 {S['t2']}, {S['e']}, 896")
    P("s_cmp_ge_u32 s2, 128\ns_cbranch_scc1 K1_QKV")
    common = dict(P=P, S=S, ptr=ptr, wsp=wsp, sX=sX, sW=sW, sWS=sWS, mW=mW, mH=mH, mT=mT)
    nv1, na1 = k1_ffn(**common)
    P("K1_QKV:")
    nv2, na2 = k1_qkv(**common)
    P("K1_END:\ns_endpgm")
    return P.l, max(nv1, nv2), max(na1, na2), max(sa.hi, 84)

def xsrd(P, S, ptr, wsp, sX, sWS):
    P("s_waitcnt lgkmcnt(0)")
    P(f"s_add_u32 {sX[0]}, {ptr[0]}, {S['t2']}\ns_addc_u32 {sX[1]}, {ptr[1]}, 0\ns_sub_u32 {sX[2]}, {XBYTES}, {S['t2']}\ns_mov_b32 {sX[3]}, 0x20000")
    srd(P, sWS, wsp[0], wsp[1], (STAMP_OFF + (1 << 20)) if OPT["stamps"] else WS_USED)

def adv(P_list, reg, step, wrap):
    P_list.append(f"s_add_u32 {reg}, {reg}, {step}\ns_cmp_eq_u32 {reg}, {wrap}\ns_cselect_b32 {reg}, 0, {reg}")

def main_loop(P, S, items, emit_item, reads, mfmas, nsteps=14):
    vm = VM(); vm.issue(("pf", -9))
    sched = schedule_dma(items, OPT["pro"], OPT["rate"], nsteps)
    def issue(i):
        for _ in range(items[i]["n"]): vm.issue(("d", items[i]["need"]))
        return emit_item(i)
    for i in sched[-1]: P(issue(i))
    return vm, sched, issue

def run_loop(P, S, vm, sched, issue, reads, mfmas, nsteps=14, extra=None):
    P(vm.wait_for(lambda t: t[1] <= 0) + " lgkmcnt(0)")
    P("s_barrier")
    stamp(P, S, 1)
    P.ext(reads(0))
    for s in range(nsteps):
        if s + 1 < nsteps:
            P((vm.wait_for(lambda t: t[1] <= s + 1) if not OPT["x_nodma"] else "s_waitcnt") + " lgkmcnt(0)")
            if not OPT["x_nobar"]: P("s_barrier")
        else:
            P("s_waitcnt lgkmcnt(0)\ns_barrier")
        if s == 2: stamp(P, S, 2)
        m = mfmas(s)
        rd = reads(s + 1) if s + 1 < nsteps else []
        dm = [issue(i) for i in sched[s]]
        if extra and s in extra:
            for e_ in extra[s]:
                vm.issue(("x", 99)); dm.append(e_)
        if OPT["x_nodma"]: dm = []
        if OPT["x_nord"]: rd = []
        if OPT["x_nomfma"]: m = ["s_nop 0" for _ in m]
        P.ext(merge(m, (rd, 0, (len(m) * 2) // 3), (dm, 0, len(m))))
    stamp(P, S, 3)

def k1_ffn(P, S, ptr, wsp, sX, sW, sWS, mW, mH, mT):
    va = Alloc("v", 3, 256); aa = Alloc("a", 0, 256)
    NW, NX = 4, 3
    WB, XB = 0, 65536
    lane = R("v", 0)
    t = [va() for _ in range(8)]
    xd = [va() for _ in range(4)]; wd = [va() for _ in range(4)]
    xr = [[va() for _ in range(2)] for _ in range(2)]
    wr_ = [va() for _ in range(7)]
    acc = [[va(4, 4) for _ in range(4)] for _ in range(7)]
    cs = [va(4, 4) for _ in range(7)]
    rs = [va(4, 4) for _ in range(2)]
    ones = aa(4)
    fb = [dict(x=[aa(4) for _ in range(4)], w=[aa(4) for _ in range(7)]) for _ in range(2)]
    w = S['w']
    P(f"s_lshl_b32 {S['t0']}, {S['rbl']}, 7\ns_lshl_b32 {S['t1']}, {w}, 5\ns_add_u32 {S['t0']}, {S['t0']}, {S['t1']}")
    P(f"v_lshrrev_b32 {t[0]}, 3, {lane}\nv_add_u32 {t[0]}, {S['t0']}, {t[0]}\nv_mul_u32_u24 {t[0]}, 1792, {t[0]}")
    P(f"v_lshrrev_b32 {t[1]}, 4, {lane}\nv_and_b32 {t[2]}, 7, {lane}\nv_xor_b32 {t[2]}, {t[1]}, {t[2]}")
    P(f"v_lshl_add_u32 {xd[0]}, {t[2]}, 4, {t[0]}")
    P(f"v_xor_b32 {t[3]}, 64, {xd[0]}\nv_add_u32 {xd[1]}, {8*1792}, {t[3]}\nv_add_u32 {xd[2]}, {16*1792}, {xd[0]}\nv_add_u32 {xd[3]}, {24*1792}, {t[3]}")
    P(f"s_mul_i32 {S['t0']}, {S['cb']}, 448\ns_and_b32 {S['t0']}, {S['t0']}, 0xffffff80\ns_mul_i32 {S['t1']}, {w}, {8*3584}\ns_add_u32 {S['t0']}, {S['t0']}, {S['t1']}")
    P(f"s_and_b32 {S['t1']}, {w}, 1\ns_lshl_b32 {S['t1']}, {S['t1']}, 2")
    P(f"v_lshrrev_b32 {t[0]}, 5, {lane}\nv_bfe_u32 {t[1]}, {lane}, 1, 4\nv_xor_b32 {t[1]}, {t[0]}, {t[1]}\nv_xor_b32 {t[1]}, {S['t1']}, {t[1]}")
    P(f"v_mul_u32_u24 {t[0]}, 3584, {t[0]}\nv_lshl_add_u32 {t[0]}, {t[1]}, 5, {t[0]}\nv_and_b32 {t[1]}, 1, {lane}\nv_lshl_add_u32 {t[0]}, {t[1]}, 4, {t[0]}")
    P(f"v_add_u32 {wd[0]}, {S['t0']}, {t[0]}\nv_xor_b32 {t[3]}, 64, {wd[0]}")
    P(f"v_add_u32 {wd[1]}, {2*3584}, {t[3]}\nv_add_u32 {wd[2]}, {4*3584}, {wd[0]}\nv_add_u32 {wd[3]}, {6*3584}, {t[3]}")
    P(f"s_mul_i32 {S['kw']}, {S['kx']}, {64*3584//128}")
    P(f"s_lshl_b32 {S['wm0']}, {w}, 12")
    xsrd(P, S, ptr, wsp, sX, sWS)
    srd(P, sW, ptr[8], ptr[9], 448 * 3584)
    items = []
    for d in range(7):
        for h in range(2): items.append(dict(k="x", d=d, h=h, n=2, need=2*d, free=(2*(d-NX)+1 if d >= NX else -1)))
        for s in (2*d, 2*d+1):
            for h in range(2): items.append(dict(k="w", s=s, h=h, n=2, need=s, free=(s-NW if s >= NW else -1)))
    def emit_item(i):
        it = items[i]; o = []
        if it["k"] == "x":
            for j in (2*it["h"], 2*it["h"]+1):
                o.append(f"s_add_u32 m0, {S['wm0']}, {XB + (it['d'] % NX)*16384 + j*1024}\nbuffer_load_dwordx4 {xd[j]}, {sX}, {S['kx']} offen lds")
            if it["h"] == 1: adv(o, S['kx'], 128, 896)
        else:
            for j in (2*it["h"], 2*it["h"]+1):
                o.append(f"s_add_u32 m0, {S['wm0']}, {WB + (it['s'] % NW)*16384 + j*1024}\nbuffer_load_dwordx4 {wd[j]}, {sW}, {S['kw']} offen lds")
            if it["h"] == 1: adv(o, S['kw'], 32*3584, 448*3584)
        return "\n".join(o)
    save = OPT["pro"], OPT["rate"]
    OPT["pro"], OPT["rate"] = 2*save[0], save[1]//2
    vm, sched, issue = main_loop(P, S, items, emit_item, None, None)
    OPT["pro"], OPT["rate"] = save
    wr, wc = S['half'], S['hh']
    P(f"s_lshr_b32 {wr}, {w}, 1\ns_and_b32 {wc}, {w}, 1")
    n_, g_ = t[4], t[5]
    P(f"v_and_b32 {n_}, 15, {lane}\nv_lshrrev_b32 {g_}, 4, {lane}")
    P(f"s_lshl_b32 {S['t0']}, {wr}, 13\ns_lshl_b32 {S['t1']}, {wc}, 12\ns_add_u32 {S['t0']}, {S['t0']}, {S['t1']}\ns_add_u32 {S['t0']}, {S['t0']}, {XB}")
    P(f"v_lshrrev_b32 {t[0]}, 1, {n_}\nv_xor_b32 {t[0]}, {g_}, {t[0]}\nv_lshlrev_b32 {t[0]}, 4, {t[0]}\nv_lshl_add_u32 {t[0]}, {n_}, 7, {t[0]}")
    P(f"v_add_u32 {xr[0][0]}, {S['t0']}, {t[0]}\nv_xor_b32 {xr[0][1]}, 64, {xr[0][0]}\nv_xor_b32 {xr[1][0]}, 4096, {xr[0][0]}\nv_xor_b32 {xr[1][1]}, 4096, {xr[0][1]}")
    P(f"v_bfe_u32 {t[0]}, {lane}, 2, 2\nv_lshl_add_u32 {t[1]}, {g_}, 3, {t[0]}\nv_lshlrev_b32 {t[1]}, 9, {t[1]}\nv_and_b32 {t[2]}, 3, {lane}\nv_lshl_add_u32 {t[1]}, {t[2]}, 3, {t[1]}")
    P(f"v_bfe_u32 {t[0]}, {lane}, 2, 3")
    P(f"s_lshl_b32 {S['b1']}, {wr}, 2\ns_mul_i32 {S['b2']}, {wr}, -3")
    P(f"s_and_b32 {S['t0']}, {S['cb']}, 1\ns_lshl_b32 {S['t0']}, {S['t0']}, 1\ns_mul_i32 {S['t1']}, {wc}, 7\ns_add_u32 {S['t0']}, {S['t0']}, {S['t1']}")
    P(f"s_add_u32 {S['t1']}, {S['t0']}, {S['b2']}\ns_add_u32 {S['t0']}, {S['t0']}, {S['b1']}")
    for c in range(7):
        P(f"s_add_u32 {S['t2']}, {S['t0'] if c <= 2 else S['t1']}, {c}")
        P(f"v_xor_b32 {t[2]}, {S['t2']}, {t[0]}\nv_lshl_add_u32 {wr_[c]}, {t[2]}, 5, {t[1]}")
    P(f"v_mov_b32 {t[0]}, {ONES}")
    for i in range(4): P(f"v_accvgpr_write_b32 {ones[i]}, {t[0]}")
    def reads(s):
        b = fb[s & 1]; o = []
        xs = ((s >> 1) % NX) * 16384; ws = WB + (s % NW) * 16384
        X = [f"ds_read_b128 {b['x'][i]}, {xr[i>>1][s&1]} offset:{xs + (i&1)*2048}" for i in range(4)]
        W = []
        for c in range(7):
            W.append(f"ds_read_b64_tr_b16 {b['w'][c][0:2]}, {wr_[c]} offset:{ws}")
            W.append(f"ds_read_b64_tr_b16 {b['w'][c][2:4]}, {wr_[c]} offset:{ws + 2048}")
        return X + W
    def mfmas(s):
        b = fb[s & 1]; o = []
        def mm(d, a, bb): o.append(f"v_mfma_f32_16x16x32_bf16 {d}, {a}, {bb}, {d if s else 0}")
        for i in range(2): mm(rs[i], ones, b['x'][i])
        for c in range(7):
            if c < 4: mm(cs[c], b['w'][c], ones)
            for i in range(4): mm(acc[c][i], b['w'][c], b['x'][i])
        return o
    extra = None
    if OPT["pf2"]:
        sP = R("s", 80, 4); vp = va(); vd = va()
        P(f"s_bfe_u32 {S['t0']}, s2, 0x40003\ns_lshl_b32 {S['t0']}, {S['t0']}, 2\ns_add_u32 {S['t0']}, {S['t0']}, {w}")
        P(f"s_sub_u32 {S['t1']}, {S['t0']}, 49\ns_cmp_lt_u32 {S['t0']}, 49\ns_cselect_b32 {S['t0']}, {S['t0']}, {S['t1']}")
        P(f"s_cselect_b32 {sP[0]}, {ptr[10]}, {ptr[4]}\ns_cselect_b32 {sP[1]}, {ptr[11]}, {ptr[5]}\ns_mov_b32 {sP[2]}, {448*896}\ns_cselect_b32 {sP[2]}, {1792*896}, {sP[2]}\ns_mov_b32 {sP[3]}, 0x20000")
        P(f"s_lshl_b32 {S['t0']}, {S['t0']}, 15\nv_lshlrev_b32 {vp}, 7, {lane}\nv_add_u32 {vp}, {S['t0']}, {vp}")
        s0 = OPT["pf2"]
        extra = {}
        for i in range(4):
            extra.setdefault(min(s0 + i, 13), []).append(f"buffer_load_dword {vd}, {vp}, {sP}, 0 offen\nv_add_u32 {vp}, 8192, {vp}")
    run_loop(P, S, vm, sched, issue, reads, mfmas, extra=extra)
    RSB, CSB = 0, 1024
    a_rs, a_rs2, a_cs, a_cs2 = t[0], t[1], t[2], t[3]
    P(f"s_lshl_b32 {S['t0']}, {wr}, 8\ns_lshl_b32 {S['t1']}, {wc}, 7\ns_add_u32 {S['t0']}, {S['t0']}, {S['t1']}")
    P(f"v_lshlrev_b32 {a_rs}, 2, {n_}\nv_add_u32 {a_rs}, {S['t0']}, {a_rs}\nv_xor_b32 {a_rs2}, 128, {a_rs}")
    P(f"s_lshl_b32 {S['t0']}, {wc}, 3\ns_add_u32 {S['t1']}, {S['t0']}, {S['b2']}\ns_add_u32 {S['t0']}, {S['t0']}, {S['b1']}")
    P(f"s_lshl_b32 {S['t0']}, {S['t0']}, 6\ns_add_u32 {S['t1']}, {S['t1']}, 4\ns_lshl_b32 {S['t1']}, {S['t1']}, 6")
    P(f"v_lshlrev_b32 {a_cs}, 4, {g_}\nv_add_u32 {a_cs2}, {S['t1']}, {a_cs}\nv_add_u32 {a_cs}, {S['t0']}, {a_cs}")
    for i in range(2): P(f"ds_write_b32 {a_rs}, {rs[i][0]} offset:{RSB + i*64}")
    for c in range(4): P(f"ds_write_b128 {a_cs}, {cs[c]} offset:{CSB + c*64}")
    P("s_waitcnt lgkmcnt(0)\ns_barrier")
    nm = [va(2), va(2)]
    P(f"ds_read_b32 {nm[1][0]}, {a_rs2} offset:{RSB}\nds_read_b32 {nm[1][1]}, {a_rs2} offset:{RSB+64}")
    for c in range(4, 7): P(f"ds_read_b128 {cs[c]}, {a_cs2} offset:{CSB + (c-4)*64}")
    NEG = "0xbb124925"
    import struct
    NEG = hex(struct.unpack("<I", struct.pack("<f", -1.0/448))[0])
    P(f"v_mul_f32 {nm[0][0]}, {NEG}, {rs[0][0]}\nv_mul_f32 {nm[0][1]}, {NEG}, {rs[1][0]}")
    st = [t[6], t[7]]
    P(f"s_lshl_b32 {S['t0']}, {wc}, 10\nv_lshlrev_b32 {st[0]}, 4, {lane}\nv_add_u32 {st[0]}, {S['t0']}, {st[0]}\nv_xor_b32 {st[1]}, 1024, {st[0]}")
    P(f"s_lshl_b32 {S['t0']}, {S['e']}, 3\ns_add_u32 {S['t0']}, {S['t0']}, {S['rbl']}\ns_lshl_b32 {S['t0']}, {S['t0']}, 1\ns_add_u32 {S['t0']}, {S['t0']}, {wr}")
    P(f"s_mul_i32 {S['t0']}, {S['t0']}, {A2_KS}\ns_mul_i32 {S['t1']}, {S['cb']}, 14\ns_add_u32 {S['t0']}, {S['t0']}, {S['t1']}\ns_mul_i32 {S['t1']}, {wc}, 7\ns_add_u32 {S['t0']}, {S['t0']}, {S['t1']}\ns_add_u32 {S['t0']}, {S['t0']}, 28")
    P(f"s_add_u32 {S['b1']}, {S['b1']}, {S['t0']}\ns_add_u32 {S['b2']}, {S['b2']}, {S['t0']}\ns_lshl_b32 {S['b1']}, {S['b1']}, 11\ns_lshl_b32 {S['b2']}, {S['b2']}, 11")
    Z = [va(4, 4) for _ in range(4)]
    units = [(c, 0) for c in range(4)] + [(c, 1) for c in range(4)] + [(c, pr) for c in range(4, 7) for pr in range(2)]
    zi = 0
    pend = None
    for ui, (c, pr) in enumerate(units):
        if ui == 4:
            P("s_waitcnt lgkmcnt(0)")
            P(f"v_mul_f32 {nm[1][0]}, {NEG}, {nm[1][0]}\nv_mul_f32 {nm[1][1]}, {NEG}, {nm[1][1]}")
        z = Z[zi % 4]; zi += 1
        for ii in range(2):
            a = acc[c][2*pr+ii]
            sel = "op_sel_hi:[1,0,1]" if ii == 0 else "op_sel:[0,1,0] op_sel_hi:[1,1,1]"
            P(f"v_pk_fma_f32 {a[0:2]}, {cs[c][0:2]}, {nm[pr]}, {a[0:2]} {sel}")
            P(f"v_pk_fma_f32 {a[2:4]}, {cs[c][2:4]}, {nm[pr]}, {a[2:4]} {sel}")
        if pend: P(pend)
        for ii in range(2):
            a = acc[c][2*pr+ii]
            P(f"v_cvt_pk_bf16_f32 {z[2*ii]}, {a[0]}, {a[1]}\nv_cvt_pk_bf16_f32 {z[2*ii+1]}, {a[2]}, {a[3]}")
        for q in range(4): P(f"v_pk_max_i16 {z[q]}, {z[q]}, 0")
        pend = (f"s_add_u32 {S['t0']}, {S['b1'] if c <= 2 else S['b2']}, {c*2048}\n"
                f"v_permlane16_swap_b32 {z[0]}, {z[2]}\nv_permlane16_swap_b32 {z[1]}, {z[3]}\n"
                f"buffer_store_dwordx4 {z}, {st[pr]}, {sWS}, {S['t0']} offen{SC}")
    P(pend)
    stamp(P, S, 4)
    if OPT["stamps"]:
        P("s_waitcnt vmcnt(0)"); stamp(P, S, 5)
    stamp_flush(P, S, t, 0, 6, sWS)
    P("s_endpgm")
    return va.hi, aa.hi

def k1_qkv(P, S, ptr, wsp, sX, sW, sWS, mW, mH, mT):
    import struct
    f2h = lambda x: hex(struct.unpack("<I", struct.pack("<f", x))[0])
    va = Alloc("v", 3, 256); aa = Alloc("a", 0, 256)
    NW, NX = 4, 3
    XS = 18432
    XB, WB = 0, 3 * XS
    lane = R("v", 0)
    t = [va() for _ in range(8)]
    xd = [va() for _ in range(4)]; xh = va(); wd = va()
    xr = [va() for _ in range(2)]; xr0 = [va() for _ in range(2)]
    wr_ = [va() for _ in range(2)]
    acc = [[[va(4, 4) for _ in range(5)] for _ in range(2)] for _ in range(3)]
    dg = [va(4, 4) for _ in range(5)]
    cprev, ccur, cfirst = va(4, 4), va(4, 4), va(4, 4)
    mprev, mcur = va(2), va(2)
    fb = [dict(x=[aa(4) for _ in range(5)], w=[[aa(4) for _ in range(2)] for _ in range(3)]) for _ in range(2)]
    w = S['w']; hp = S['cb']
    P(f"s_lshl_b32 {S['t0']}, {S['rbl']}, 7\ns_lshl_b32 {S['t1']}, {w}, 5\ns_add_u32 {S['t1']}, {S['t0']}, {S['t1']}")
    P(f"v_lshrrev_b32 {t[4]}, 3, {lane}\nv_add_u32 {t[0]}, {S['t1']}, {t[4]}\nv_mul_u32_u24 {t[0]}, 1792, {t[0]}")
    P(f"v_lshrrev_b32 {t[1]}, 4, {lane}\nv_and_b32 {t[5]}, 7, {lane}\nv_xor_b32 {t[2]}, {t[1]}, {t[5]}")
    P(f"v_lshl_add_u32 {xd[0]}, {t[2]}, 4, {t[0]}")
    P(f"v_xor_b32 {t[3]}, 64, {xd[0]}\nv_add_u32 {xd[1]}, {8*1792}, {t[3]}\nv_add_u32 {xd[2]}, {16*1792}, {xd[0]}\nv_add_u32 {xd[3]}, {24*1792}, {t[3]}")
    P(f"s_mul_i32 {S['t1']}, {w}, {32*1792}\ns_add_u32 {S['t1']}, {S['t1']}, {8*1792}\ns_cmp_eq_u32 {S['rbl']}, 0\ns_cselect_b32 {S['t1']}, 0x80000000, {S['t1']}")
    P(f"v_subrev_u32 {xh}, {S['t1']}, {t[3]}")
    P(f"s_lshl_b32 {S['t1']}, {w}, 4\ns_mov_b64 {mH}, 0xffff\ns_lshl_b64 {mH}, {mH}, {S['t1']}")
    P(f"s_and_b32 {S['hh']}, {w}, 1\ns_lshl_b32 {S['t1']}, {S['hh']}, 2")
    P(f"v_and_b32 {t[0]}, 2, {t[4]}\nv_add_u32 {t[0]}, {S['t1']}, {t[0]}\nv_sub_u32 {t[0]}, {t[5]}, {t[0]}\nv_and_b32 {t[0]}, 7, {t[0]}")
    P(f"v_cmp_ne_u32 {mW}, 7, {t[0]}")
    P(f"s_mul_i32 {S['t0']}, {hp}, 112\ns_mul_i32 {S['t1']}, {w}, {8*2688}\ns_add_u32 {S['t0']}, {S['t0']}, {S['t1']}")
    P(f"v_mul_u32_u24 {t[1]}, 2688, {t[4]}\nv_lshl_add_u32 {t[1]}, {t[0]}, 4, {t[1]}\nv_add_u32 {wd}, {S['t0']}, {t[1]}")
    P(f"s_mul_i32 {S['kw']}, {S['kx']}, {64*2688//128}")
    P(f"s_lshl_b32 {S['wm0']}, {w}, 10\ns_lshl_b32 {S['xm0']}, {w}, 12")
    xsrd(P, S, ptr, wsp, sX, sWS)
    srd(P, sW, ptr[2], ptr[3], 448 * 2688)
    items = []
    for d in range(7):
        fr = (2*(d-NX)+1 if d >= NX else -1)
        items.append(dict(k="x", d=d, h=0, n=3, need=2*d, free=fr))
        items.append(dict(k="x", d=d, h=1, n=2, need=2*d, free=fr))
        for s in (2*d, 2*d+1):
            items.append(dict(k="w", s=s, n=3, need=s, free=(s-NW if s >= NW else -1)))
    def emit_item(i):
        it = items[i]; o = []
        if it["k"] == "x":
            sb = XB + (it['d'] % NX) * XS
            if it["h"] == 0:
                o.append(f"s_mov_b32 m0, {sb + 1024}\ns_mov_b64 exec, {mH}\nbuffer_load_dwordx4 {xh}, {sX}, {S['kx']} offen lds\ns_mov_b64 exec, -1")
            for j in (2*it["h"], 2*it["h"]+1):
                o.append(f"s_add_u32 m0, {S['xm0']}, {sb + 2048 + j*1024}\nbuffer_load_dwordx4 {xd[j]}, {sX}, {S['kx']} offen lds")
            if it["h"] == 1: adv(o, S['kx'], 128, 896)
        else:
            for p in range(3):
                pre = f"s_mov_b64 exec, {mW}\n" if p == 0 else ""
                o.append(f"s_add_u32 m0, {S['wm0']}, {WB + (it['s'] % NW)*12288 + p*4096 - p*896}\n{pre}buffer_load_dwordx4 {wd}, {sW}, {S['kw']} offen offset:{p*896} lds")
            o.append("s_mov_b64 exec, -1")
            adv(o, S['kw'], 32*2688, 448*2688)
        return "\n".join(o)
    save = OPT["pro"], OPT["rate"]
    OPT["pro"], OPT["rate"] = save[0] + 1, (save[1] + 2) // 3
    vm, sched, issue = main_loop(P, S, items, emit_item, None, None)
    OPT["pro"], OPT["rate"] = save
    hh, half = S['hh'], S['half']
    P(f"s_lshr_b32 {half}, {w}, 1")
    n_, g_ = va(), va()
    P(f"v_and_b32 {n_}, 15, {lane}\nv_lshrrev_b32 {g_}, 4, {lane}")
    c1 = va(4, 4); c0 = va(4, 4)
    for i in range(4): P(f"v_mov_b32 {c1[i]}, {ONES}\nv_mov_b32 {c0[i]}, 0")
    P(f"v_and_b32 {t[0]}, 31, {lane}\nv_and_b32 {t[1]}, 2, {lane}\nv_bfe_u32 {t[2]}, {lane}, 3, 1\nv_lshl_add_u32 {t[1]}, {t[2]}, 2, {t[1]}")
    P(f"v_add_u32 {t[1]}, 7, {t[1]}\nv_and_b32 {t[1]}, 7, {t[1]}\nv_lshlrev_b32 {t[1]}, 4, {t[1]}\nv_lshl_add_u32 {t[0]}, {t[0]}, 7, {t[1]}")
    P(f"v_lshrrev_b32 {t[1]}, 5, {lane}\nv_mul_u32_u24 {t[1]}, 12288, {t[1]}\ns_mul_i32 {S['t0']}, {hh}, {2*12288}\ns_add_u32 {S['t0']}, {S['t0']}, {WB}")
    P(f"v_add3_u32 {t[0]}, {t[0]}, {t[1]}, {S['t0']}")
    P(f"ds_write_b128 {t[0]}, {c0}\nds_write_b128 {t[0]}, {c1} offset:4096\nds_write_b128 {t[0]}, {c0} offset:8192")
    P(f"s_min_u32 {S['t0']}, {w}, 2\ns_mul_i32 {S['t0']}, {S['t0']}, {XS}\nv_lshlrev_b32 {t[1]}, 4, {lane}\nv_add_u32 {t[1]}, {S['t0']}, {t[1]}\nds_write_b128 {t[1]}, {c1} offset:{XB}")
    P(f"v_lshrrev_b32 {t[0]}, 1, {n_}\nv_xor_b32 {t[0]}, {g_}, {t[0]}\nv_lshlrev_b32 {t[0]}, 4, {t[0]}\nv_lshl_add_u32 {t[0]}, {n_}, 7, {t[0]}")
    P(f"s_lshl_b32 {S['t0']}, {half}, 13\nv_add_u32 {t[1]}, {S['t0']}, {t[0]}\nv_add_u32 {xr[0]}, {XB + 2048}, {t[1]}\nv_xor_b32 {xr[1]}, 64, {xr[0]}")
    P(f"v_cmp_gt_u32 vcc, 8, {n_}\nv_cndmask_b32 {xr0[0]}, {t[1]}, {t[0]}, vcc\nv_xor_b32 {xr0[1]}, 64, {xr0[0]}")
    assert XB == 0
    P(f"v_bfe_u32 {t[0]}, {lane}, 2, 2\nv_lshl_add_u32 {t[0]}, {g_}, 3, {t[0]}\nv_lshlrev_b32 {t[0]}, 7, {t[0]}\nv_add_u32 {t[0]}, {WB}, {t[0]}")
    P(f"v_bfe_u32 {t[1]}, {lane}, 3, 2\nv_lshlrev_b32 {t[1]}, 5, {t[1]}\nv_and_b32 {t[2]}, 3, {lane}")
    P(f"s_mul_i32 {S['t0']}, {hh}, 56\nv_lshl_add_u32 {t[3]}, {t[2]}, 3, {S['t0']}")
    P(f"v_add_u32 {t[4]}, {t[3]}, {t[1]}\nv_and_b32 {t[4]}, 127, {t[4]}\nv_add_u32 {wr_[0]}, {t[0]}, {t[4]}")
    P(f"s_lshl_b32 {S['t0']}, {hh}, 3\ns_sub_u32 {S['t0']}, 120, {S['t0']}\nv_mov_b32 {t[4]}, {S['t0']}\nv_add_u32 {t[3]}, 32, {t[3]}")
    P(f"v_cmp_eq_u32 vcc, 3, {t[2]}\nv_cndmask_b32 {t[3]}, {t[3]}, {t[4]}, vcc")
    P(f"v_add_u32 {t[4]}, {t[3]}, {t[1]}\nv_and_b32 {t[4]}, 127, {t[4]}\nv_add_u32 {wr_[1]}, {t[0]}, {t[4]}")
    P(f"v_lshlrev_b32 {t[0]}, 2, {g_}\nv_sub_u32 {t[0]}, {n_}, {t[0]}\nv_mov_b32 {t[1]}, {NINF}")
    P(f"s_or_b32 {S['t0']}, {S['rbl']}, {half}\ns_cmp_eq_u32 {S['t0']}, 0\ns_cselect_b32 {S['t0']}, {NINF}, 0")
    for r in range(4):
        P(f"v_subrev_u32 {t[2]}, {r}, {t[0]}")
        P(f"v_cmp_gt_i32 vcc, -8, {t[2]}\nv_cndmask_b32 {cprev[r]}, {t[1]}, {c0[0]}, vcc")
        P(f"v_cmp_gt_u32 vcc, 8, {t[2]}\nv_cndmask_b32 {ccur[r]}, {t[1]}, {c0[0]}, vcc")
        P(f"v_or_b32 {cfirst[r]}, {S['t0']}, {cprev[r]}")
    for (m, c) in ((mprev, cprev), (mcur, ccur)):
        for q in range(2):
            P(f"v_ashrrev_i32 {t[2]}, 31, {c[2*q]}\nv_ashrrev_i32 {t[3]}, 31, {c[2*q+1]}\nv_and_b32 {t[2]}, 0xffff, {t[2]}\nv_and_b32 {t[3]}, 0xffff0000, {t[3]}")
            P(f"v_or_b32 {t[2]}, {t[2]}, {t[3]}\nv_not_b32 {m[q]}, {t[2]}")
    def reads(s):
        b = fb[s & 1]
        xs = ((s >> 1) % NX) * XS; ws = (s % NW) * 12288
        X = [f"ds_read_b128 {b['x'][0]}, {xr0[s&1]} offset:{xs}"] + [f"ds_read_b128 {b['x'][j]}, {xr[s&1]} offset:{xs + (j-1)*2048}" for j in range(1, 5)]
        W = []
        for p in (1, 0, 2):
            for tt in range(2):
                W.append(f"ds_read_b64_tr_b16 {b['w'][p][tt][0:2]}, {wr_[tt]} offset:{ws + p*4096}")
                W.append(f"ds_read_b64_tr_b16 {b['w'][p][tt][2:4]}, {wr_[tt]} offset:{ws + p*4096 + 512}")
        return X + W
    def mfmas(s):
        b = fb[s & 1]; o = []
        def mm(d, a, bb): o.append(f"v_mfma_f32_16x16x32_bf16 {d}, {a}, {bb}, {d if s else 0}")
        for j in range(5): mm(dg[j], b['x'][j], b['x'][j])
        for p in (1, 0, 2):
            for tt in (1, 0):
                for j in range(5): mm(acc[p][tt][j], b['w'][p][tt], b['x'][j])
        return o
    run_loop(P, S, vm, sched, issue, reads, mfmas)
    Q, K, V = acc
    ST = [va(2) for _ in range(5)]
    sq = [va() for _ in range(5)]
    a1, a2 = t[0], t[1]
    P(f"v_lshlrev_b32 {a1}, 2, {n_}\nv_bfe_u32 {a2}, {lane}, 2, 2\nv_lshl_add_u32 {a2}, {a2}, 6, {a1}\nv_add_u32 {a1}, 192, {a1}")
    P(f"v_and_b32 {t[2]}, 1, {lane}\nv_cmp_eq_u32 {mT}, 1, {t[2]}\nv_and_b32 {t[2]}, 2, {lane}\nv_cmp_eq_u32 vcc, 2, {t[2]}")
    for j in range(5):
        P(f"v_cndmask_b32 {dg[j][0]}, {dg[j][0]}, {dg[j][1]}, {mT}\nv_cndmask_b32 {dg[j][2]}, {dg[j][2]}, {dg[j][3]}, {mT}\nv_cndmask_b32 {dg[j][0]}, {dg[j][0]}, {dg[j][2]}, vcc")
        P(f"ds_bpermute_b32 {sq[j]}, {a2}, {dg[j][0]}\nds_bpermute_b32 {ST[j][0]}, {a1}, {K[1][j][0]}")
    csK = [dg[1], dg[2]]; csV = [dg[3], dg[4]]
    tmpcs = [va(4, 4) for _ in range(4)]
    csK = tmpcs[0:2]; csV = tmpcs[2:4]; csQ = [Q[0][0], Q[1][0]]
    for tt in range(2):
        for r in range(4):
            P(f"v_mov_b32_dpp {csK[tt][r]}, {K[tt][0][r]} row_newbcast:0 row_mask:0xf bank_mask:0xf")
    for tt in range(2):
        for r in range(4):
            P(f"v_mov_b32_dpp {csQ[tt][r]}, {Q[tt][0][r]} row_newbcast:0 row_mask:0xf bank_mask:0xf")
    for tt in range(2):
        for r in range(4):
            P(f"v_mov_b32_dpp {csV[tt][r]}, {V[tt][0][r]} row_newbcast:0 row_mask:0xf bank_mask:0xf")
    P("s_waitcnt lgkmcnt(0)")
    P(f"s_mov_b32 {S['t0']}, {f2h(1.0/448)}")
    for j in range(5): P(f"v_mul_f32 {ST[j][0]}, {f2h(-1.0/448)}, {ST[j][0]}")
    for j in range(5): P(f"v_mul_f32 {ST[j][1]}, {ST[j][0]}, {ST[j][0]}")
    for j in range(5): P(f"v_fma_f32 {ST[j][1]}, {sq[j]}, {S['t0']}, -{ST[j][1]}")
    for j in range(5): P(f"v_max_f32 {ST[j][1]}, 0, {ST[j][1]}")
    for j in range(5): P(f"v_add_f32 {ST[j][1]}, {f2h(1e-5)}, {ST[j][1]}")
    for j in range(5): P(f"v_rsq_f32 {ST[j][1]}, {ST[j][1]}")
    LO = "op_sel_hi:[1,0,1]"; HI = "op_sel:[0,1] op_sel_hi:[1,1]"
    def correct(A_, cs_, j, scale, dst):
        o = []
        for tt in range(2):
            a = A_[tt][j]
            o.append(f"v_pk_fma_f32 {a[0:2]}, {cs_[tt][0:2]}, {ST[j]}, {a[0:2]} {LO}")
            o.append(f"v_pk_fma_f32 {a[2:4]}, {cs_[tt][2:4]}, {ST[j]}, {a[2:4]} {LO}")
        if scale:
            for tt in range(2):
                a = A_[tt][j]
                o.append(f"v_pk_mul_f32 {a[0:2]}, {a[0:2]}, {ST[j]} {HI}")
                o.append(f"v_pk_mul_f32 {a[2:4]}, {a[2:4]}, {ST[j]} {HI}")
        for tt in range(2):
            a = A_[tt][j]
            o.append(f"v_cvt_pk_bf16_f32 {dst[2*tt]}, {a[0]}, {a[1]}")
            o.append(f"v_cvt_pk_bf16_f32 {dst[2*tt+1]}, {a[2]}, {a[3]}")
        return o
    for j in range(5): P.ext(correct(V, csV, j, True, V[0][j]))
    VB = 0
    av_w, av_r = t[2], t[3]
    P(f"s_mul_i32 {S['t1']}, {w}, 6400\nv_mul_u32_u24 {av_w}, 80, {n_}\nv_lshl_add_u32 {av_w}, {g_}, 4, {av_w}\nv_add_u32 {av_w}, {S['t1']}, {av_w}")
    P(f"v_lshrrev_b32 {av_r}, 2, {lane}\nv_mul_u32_u24 {av_r}, 80, {av_r}\nv_and_b32 {t[4]}, 3, {lane}\nv_lshl_add_u32 {av_r}, {t[4]}, 4, {av_r}\nv_add_u32 {av_r}, {S['t1']}, {av_r}")
    for j in range(5): P(f"ds_write_b128 {av_w}, {V[0][j]} offset:{VB + j*1280}")
    for j in range(5): P.ext(correct(K, csK, j, True, K[0][j]))
    Vt = [aa(10), aa(10)]
    P("s_waitcnt lgkmcnt(0)")
    for tt in range(2):
        for j in range(5): P(f"ds_read_b64_tr_b16 {Vt[tt][2*j:2*j+2]}, {av_r} offset:{VB + j*1280 + 8*tt}")
    for j in range(1, 5): P.ext(correct(Q, csQ, j, False, Q[0][j]))
    S0 = {j: K[1][j] for j in range(1, 5)}; S1 = {j: V[1][j] for j in range(1, 5)}
    for j in range(1, 5):
        P(f"v_mfma_f32_16x16x32_bf16 {S0[j]}, {K[0][j-1]}, {Q[0][j]}, {cfirst if j == 1 else cprev}")
        P(f"v_mfma_f32_16x16x32_bf16 {S1[j]}, {K[0][j]}, {Q[0][j]}, {ccur}")
    so = [t[4], t[5]]; sr = t[6]
    P(f"s_lshl_b32 {S['t0']}, {hp}, 1\ns_add_u32 {S['t0']}, {S['t0']}, {hh}\ns_mul_i32 {S['t1']}, {S['t0']}, 28")
    P(f"v_lshl_add_u32 {t[7]}, {g_}, 2, {S['t1']}")
    P(f"v_lshrrev_b32 {so[0]}, 4, {t[7]}\nv_lshlrev_b32 {so[0]}, 11, {so[0]}\nv_bfe_u32 {so[1]}, {t[7]}, 3, 1\nv_lshl_add_u32 {so[0]}, {so[1]}, 9, {so[0]}")
    P(f"v_bfe_u32 {so[1]}, {t[7]}, 2, 1\nv_lshl_add_u32 {so[0]}, {so[1]}, 3, {so[0]}\nv_lshl_add_u32 {so[0]}, {n_}, 4, {so[0]}")
    P(f"v_add_u32 {so[1]}, 2048, {so[0]}\nv_mov_b32 {t[7]}, 0x80000000\nv_cmp_eq_u32 vcc, 3, {g_}\nv_cndmask_b32 {so[1]}, {so[1]}, {t[7]}, vcc")
    P(f"s_lshl_b32 {S['t1']}, {S['e']}, 3\ns_add_u32 {S['t1']}, {S['t1']}, {S['rbl']}\ns_lshl_b32 {S['t1']}, {S['t1']}, 1\ns_add_u32 {S['t1']}, {S['t1']}, {half}")
    P(f"s_mul_i32 {S['b1']}, {S['t1']}, {A2_KS*2048}")
    P(f"s_lshl_b32 {S['t1']}, {S['t1']}, 8\ns_add_u32 {S['t1']}, {S['t1']}, {RSTD_OFF}\ns_cmp_eq_u32 {S['t0']}, 0\ns_cselect_b32 {S['t1']}, {S['t1']}, 0x80000000")
    P(f"v_lshl_add_u32 {sr}, {n_}, 2, {S['t1']}\nv_cmp_ne_u32 vcc, 0, {g_}\nv_cndmask_b32 {sr}, {sr}, {t[7]}, vcc")
    for j in range(1, 5): P(f"buffer_store_dword {ST[j][1]}, {sr}, {sWS}, 0 offen offset:{(j-1)*64}{SC}")
    cq = f2h(28 ** -0.5 * math.log2(math.e))
    P(f"v_cmp_lt_u32 vcc, 31, {lane}")
    def softmax(a, b, tm):
        o = []
        X, Y = S0[a], S0[b]
        c, m1, m2 = tm[0], tm[1], tm[2]
        o.append(f"v_cndmask_b32 {c}, {ST[a][1]}, {ST[b][1]}, vcc")
        for r in range(4): o.append(f"v_max_f32 {X[r]}, {X[r]}, {S1[a][r]}")
        for r in range(4): o.append(f"v_max_f32 {Y[r]}, {Y[r]}, {S1[b][r]}")
        o.append(f"v_mul_f32 {c}, {cq}, {c}")
        for r in range(4): o.append(f"v_permlane32_swap_b32 {X[r]}, {Y[r]}")
        for r in range(4): o.append(f"v_max_f32 {X[r]}, {X[r]}, {Y[r]}")
        o.append(f"v_max3_f32 {m1}, {X[0]}, {X[1]}, {X[2]}")
        o.append(f"v_max_f32 {m1}, {m1}, {X[3]}")
        o.append(f"v_mov_b32 {m2}, {m1}")
        o.append(f"v_permlane16_swap_b32 {m1}, {m2}")
        o.append(f"v_max_f32 {m1}, {m1}, {m2}")
        o.append(f"v_mul_f32 {m1}, {m1}, {c}")
        for r in range(4): o.append(f"v_fma_f32 {X[r]}, {X[r]}, {c}, -{m1}")
        for r in range(4): o.append(f"v_exp_f32 {X[r]}, {X[r]}")
        o.append(f"v_add_f32 {m1}, {X[0]}, {X[1]}")
        o.append(f"v_add_f32 {m2}, {X[2]}, {X[3]}")
        o.append(f"v_add_f32 {m1}, {m1}, {m2}")
        o.append(f"v_mov_b32 {m2}, {m1}")
        o.append(f"v_permlane16_swap_b32 {m1}, {m2}")
        o.append(f"v_add_f32 {m1}, {m1}, {m2}")
        o.append(f"v_rcp_f32 {m1}, {m1}")
        for r in range(4): o.append(f"v_mul_f32 {X[r]}, {X[r]}, {m1}")
        o.append(f"v_cvt_pk_bf16_f32 {X[0]}, {X[0]}, {X[1]}")
        o.append(f"v_cvt_pk_bf16_f32 {X[1]}, {X[2]}, {X[3]}")
        o.append(f"v_mov_b32 {Y[0]}, {X[0]}")
        o.append(f"v_mov_b32 {Y[1]}, {X[1]}")
        o.append(f"v_permlane32_swap_b32 {X[0]}, {Y[0]}")
        o.append(f"v_permlane32_swap_b32 {X[1]}, {Y[1]}")
        for Zr in (X, Y):
            o.append(f"v_and_b32 {Zr[2]}, {Zr[0]}, {mcur[0]}")
            o.append(f"v_and_b32 {Zr[3]}, {Zr[1]}, {mcur[1]}")
            o.append(f"v_and_b32 {Zr[0]}, {Zr[0]}, {mprev[0]}")
            o.append(f"v_and_b32 {Zr[1]}, {Zr[1]}, {mprev[1]}")
        return o
    sa_, sb_ = softmax(1, 2, dg[1]), softmax(3, 4, dg[2])
    for x_, y_ in zip(sa_, sb_): P(x_); P(y_)
    P("s_waitcnt lgkmcnt(0)")
    O = [{j: Q[1][j] for j in range(1, 5)}, {j: V[1][j] for j in range(1, 5)}]
    for j in range(1, 5):
        for tt in range(2):
            P(f"v_mfma_f32_16x16x32_bf16 {O[tt][j]}, {Vt[tt][2*(j-1):2*(j-1)+4]}, {S0[j]}, 0")
    for j in range(1, 5):
        for tt in range(2):
            o_ = O[tt][j]
            P(f"v_cvt_pk_bf16_f32 {o_[0]}, {o_[0]}, {o_[1]}\nv_cvt_pk_bf16_f32 {o_[1]}, {o_[2]}, {o_[3]}")
            jt = j - 1
            P(f"buffer_store_dwordx2 {o_[0:2]}, {so[tt]}, {sWS}, {S['b1']} offen offset:{(jt>>1)*1024 + (jt&1)*256}{SC}")
    stamp(P, S, 4)
    if OPT["stamps"]:
        P("s_waitcnt vmcnt(0)"); stamp(P, S, 5)
    stamp_flush(P, S, t, 0, 6, sWS)
    return va.hi, aa.hi

def k2():
    import struct
    f2h = lambda x: hex(struct.unpack("<I", struct.pack("<f", x))[0])
    P = Prog()
    sa = Alloc("s", 4, 100); va = Alloc("v", 3, 256); aa = Alloc("a", 0, 256)
    S = {}
    ptr = sa(16, 4); wsp = sa(2)
    sA, sB1, sB2, sX, sO = sa(4), sa(4), sa(4), sa(4), sa(4)
    for n in "w T cb t0 t1 t2 ao bo bo2 bm0".split(): S[n] = sa()
    pc = sa(2)
    S['st'] = sa(16, 2)
    L = OPT["L2"]; NA = L + 1; NB = L + 1
    RED = 4 * NB * 2048; SAR = RED + 12 * 4096
    LDS = SAR + 16384
    lane = R("v", 0); w = S['w']
    t = [va() for _ in range(6)]
    vA = [va(), va()]; vB = [va(), va()]; rB = [va(), va()]
    acc = [[va(16, 4) for _ in range(2)] for _ in range(2)]
    xv = [va(2) for _ in range(4)]; rstd = va()
    aring = [[aa(4) for _ in range(2)] for _ in range(NA)]
    bf = [[aa(4) for _ in range(2)] for _ in range(2)]
    P(f"{NAME}_k2_kernel:")
    stamp(P, S, 0)
    P("s_cmp_ge_u32 s2, 224\ns_cbranch_scc1 K2_END")
    P(f"s_load_dwordx16 {ptr}, s[0:1], 0\ns_load_dwordx2 {wsp}, s[0:1], 64")
    P(f"s_getpc_b64 {pc}\nv_lshlrev_b32 v1, 5, v0\nglobal_load_dword v2, v1, {pc}")
    P(f"v_lshrrev_b32 v1, 6, v0\nv_and_b32 v0, 63, v0\nv_readfirstlane_b32 {w}, v1")
    P(f"s_and_b32 {S['t0']}, s2, 7\ns_lshl_b32 {S['t0']}, {S['t0']}, 2\ns_bfe_u32 {S['t1']}, s2, 0x20003\ns_add_u32 {S['T']}, {S['t0']}, {S['t1']}\ns_lshr_b32 {S['cb']}, s2, 5")
    P(f"s_mul_i32 {S['ao']}, {S['T']}, {A2_KS}\ns_mul_i32 {S['t0']}, {w}, 35\ns_add_u32 {S['ao']}, {S['ao']}, {S['t0']}\ns_lshl_b32 {S['ao']}, {S['ao']}, 11")
    P(f"s_and_b32 {S['t1']}, {w}, 1\ns_lshl_b32 {S['t1']}, {S['t1']}, 10\nv_lshl_add_u32 {vA[0]}, {lane}, 4, {S['t1']}\nv_xor_b32 {vA[1]}, 1024, {vA[0]}")
    P(f"s_mul_i32 {S['bo2']}, {S['t0']}, 14336\ns_sub_u32 {S['bo']}, {S['bo2']}, {28*14336}\ns_cmp_eq_u32 {w}, 0\ns_cselect_b32 {S['bo']}, 0, {S['bo']}")
    P(f"v_lshrrev_b32 {t[0]}, 3, {lane}\nv_mul_u32_u24 {t[0]}, 896, {t[0]}\nv_bfe_u32 {t[1]}, {lane}, 4, 1\nv_lshlrev_b32 {t[1]}, 2, {t[1]}\nv_and_b32 {t[2]}, 7, {lane}\nv_xor_b32 {t[1]}, {t[1]}, {t[2]}")
    P(f"s_lshl_b32 {S['t1']}, {S['cb']}, 7\nv_lshl_add_u32 {t[0]}, {t[1]}, 4, {t[0]}\nv_add_u32 {vB[0]}, {S['t1']}, {t[0]}\nv_add_u32 {vB[1]}, 7168, {vB[0]}")
    P(f"s_mul_i32 {S['bm0']}, {w}, {NB*2048}")
    P("s_waitcnt lgkmcnt(0)")
    srd(P, sA, wsp[0], wsp[1], (STAMP_OFF + (1 << 20)) if OPT["stamps"] else WS_USED)
    srd(P, sB2, ptr[10], ptr[11], 1792 * 896)
    P(f"s_cmp_eq_u32 {w}, 0\ns_cselect_b32 {sB1[0]}, {ptr[4]}, {ptr[10]}\ns_cselect_b32 {sB1[1]}, {ptr[5]}, {ptr[11]}\ns_cselect_b32 {sB1[2]}, {448*896}, {sB2[2]}\ns_mov_b32 {sB1[3]}, 0x20000")
    vm = VM(); vm.issue(("pf", -9))
    def loads(tt):
        o = []
        sB = sB1 if tt < 28 else sB2
        bo = S['bo'] if tt < 28 else S['bo2']
        for j in range(2):
            o.append(f"s_add_u32 m0, {S['bm0']}, {(tt % NB)*2048 + j*1024}\nbuffer_load_dwordx4 {vB[j]}, {sB}, {bo} offen lds"
                     + (f"\ns_add_u32 {bo}, {bo}, 14336" if j == 1 else ""))
            vm.issue(("d", tt))
        for j in range(2):
            o.append(f"buffer_load_dwordx4 {aring[tt % NA][j]}, {vA[j]}, {sA}, {S['ao']} offen offset:{(tt&1)*2048}{SC}"
                     + (f"\ns_add_u32 {S['ao']}, {S['ao']}, 4096" if (j == 1 and tt & 1) else ""))
            vm.issue(("d", tt))
        return o
    for tt in range(min(L, 3)): P.ext(loads(tt))
    srd(P, sX, ptr[0], ptr[1], XBYTES)
    srd(P, sO, ptr[12], ptr[13], XBYTES)
    n_, hf = t[3], t[4]
    vO = va()
    P(f"v_and_b32 {n_}, 31, {lane}\nv_lshrrev_b32 {hf}, 5, {lane}")
    P(f"s_lshl_b32 {S['t0']}, {S['T']}, 1\ns_and_b32 {S['t1']}, {w}, 1\ns_add_u32 {S['t0']}, {S['t0']}, {S['t1']}\ns_lshl_b32 {S['t0']}, {S['t0']}, 5")
    P(f"s_lshl_b32 {S['t1']}, {S['t0']}, 2\ns_add_u32 {S['t1']}, {S['t1']}, {RSTD_OFF}\nv_lshl_add_u32 {t[0]}, {n_}, 2, {S['t1']}")
    P(f"buffer_load_dword {rstd}, {t[0]}, {sA}, 0 offen{SC}"); vm.issue(("e", 99))
    P(f"s_and_b32 {S['t1']}, {S['t0']}, 1023\ns_mul_i32 {S['t1']}, {S['t1']}, 1792\ns_lshr_b32 {S['t0']}, {S['t0']}, 10\ns_mul_i32 {S['t0']}, {S['t0']}, 896\ns_add_u32 {S['t0']}, {S['t0']}, {S['t1']}")
    P(f"s_lshl_b32 {S['t1']}, {S['cb']}, 7\ns_add_u32 {S['t0']}, {S['t0']}, {S['t1']}\ns_lshr_b32 {S['t1']}, {w}, 1\ns_lshl_b32 {S['t1']}, {S['t1']}, 6\ns_add_u32 {S['t0']}, {S['t0']}, {S['t1']}")
    P(f"v_mul_u32_u24 {t[0]}, 1792, {n_}\nv_add_u32 {t[0]}, {S['t0']}, {t[0]}\nv_lshl_add_u32 {vO}, {hf}, 4, {t[0]}\nv_lshl_add_u32 {t[0]}, {hf}, 3, {t[0]}")
    for a in range(4):
        P(f"buffer_load_dwordx2 {xv[a]}, {t[0]}, {sX}, 0 offen offset:{a*16}"); vm.issue(("e", 99))
    P(f"v_bfe_u32 {t[0]}, {lane}, 2, 2\nv_lshl_add_u32 {t[0]}, {hf}, 3, {t[0]}\nv_lshlrev_b32 {t[0]}, 7, {t[0]}")
    P(f"v_bfe_u32 {t[1]}, {lane}, 3, 1\nv_lshl_add_u32 {t[0]}, {t[1]}, 6, {t[0]}\nv_bfe_u32 {t[1]}, {lane}, 4, 1\nv_lshl_add_u32 {t[0]}, {t[1]}, 5, {t[0]}")
    P(f"v_and_b32 {t[1]}, 3, {lane}\nv_lshl_add_u32 {t[0]}, {t[1]}, 3, {t[0]}\nv_xor_b32 {t[0]}, {S['t1']}, {t[0]}\nv_add_u32 {rB[0]}, {S['bm0']}, {t[0]}\nv_xor_b32 {rB[1]}, 64, {rB[0]}")
    vL = va()
    P(f"v_lshlrev_b32 {vL}, 4, {lane}")
    for tt in range(min(L, 3), L): P.ext(loads(tt))
    def trs(tt):
        o = []
        for f in range(2):
            o.append(f"ds_read_b64_tr_b16 {bf[tt&1][f][0:2]}, {rB[f]} offset:{(tt % NB)*2048}")
            o.append(f"ds_read_b64_tr_b16 {bf[tt&1][f][2:4]}, {rB[f]} offset:{(tt % NB)*2048 + 512}")
        return o
    P(vm.wait_for(lambda q: q[0] == "d" and q[1] <= 0))
    stamp(P, S, 1)
    P.ext(trs(0))
    for tt in range(35):
        if tt + 1 < 35:
            P(vm.wait_for(lambda q: q[0] == "d" and q[1] <= tt + 1))
            P.ext(trs(tt + 1))
            P("s_waitcnt lgkmcnt(4)")
        else:
            P("s_waitcnt lgkmcnt(0)")
        if tt == 28:
            P(f"s_cmp_lg_u32 {w}, 0\ns_cbranch_scc1 K2_NOS\ns_nop 7")
            for f in range(2):
                for p in range(2):
                    for a in range(4): P(f"ds_write_b128 {vL}, {acc[f][p][4*a:4*a+4]} offset:{(2*f+p)*4096 + a*1024 + SAR - 65536*(SAR >= 65536)}" if SAR + 16384 <= 65536 else
                                         f"ds_write_b128 {t[5]}, {acc[f][p][4*a:4*a+4]} offset:{(2*f+p)*4096 + a*1024}")
            P("s_waitcnt lgkmcnt(0)")
            for f in range(2):
                for p in range(2):
                    for a in range(16): P(f"v_mov_b32 {acc[f][p][a]}, 0")
            P("s_nop 1\nK2_NOS:")
        if tt == 0: P(f"v_add_u32 {t[5]}, {SAR}, {vL}")
        m = [f"v_mfma_f32_32x32x16_bf16 {acc[f][p]}, {bf[tt&1][f]}, {aring[tt % NA][p]}, {acc[f][p] if tt else 0}" for f in range(2) for p in range(2)]
        ld = loads(tt + L) if tt + L < 35 else []
        P.ext(merge(m, (ld, 0, 4)))
    stamp(P, S, 2)
    for q in range(1, 4):
        P(f"s_xor_b32 {S['t0']}, {w}, {q}\ns_mul_i32 {S['t0']}, {S['t0']}, 12288\ns_add_u32 {S['t0']}, {S['t0']}, {RED + (q-1)*4096}\nv_add_u32 {t[q-1]}, {S['t0']}, {vL}")
    for q in range(1, 4):
        for a in range(4): P(f"ds_write_b128 {t[q-1]}, {acc[q>>1][q&1][4*a:4*a+4]} offset:{a*1024}")
    P(f"s_mul_i32 {S['t0']}, {w}, 12288\ns_add_u32 {S['t0']}, {S['t0']}, {RED}\ns_lshl_b32 {S['t1']}, {w}, 12")
    P(f"v_add_u32 {t[3]}, {S['t0']}, {vL}\nv_add_u32 {t[4]}, {S['t1']}, {t[5]}")
    P("s_waitcnt lgkmcnt(0)\ns_barrier")
    sv = va(16, 4)
    parts = [acc[0][1], acc[1][0], acc[1][1]]
    for a in range(4):
        for i in range(3): P(f"ds_read_b128 {parts[i][4*a:4*a+4]}, {t[3]} offset:{i*4096 + a*1024}")
        P(f"ds_read_b128 {sv[4*a:4*a+4]}, {t[4]} offset:{a*1024}")
    P("s_waitcnt vmcnt(0)")
    kk = va(2)
    P(f"v_mov_b32 {kk[0]}, {rstd}\nv_mul_f32 {kk[1]}, {f2h(-math.log2(math.e))}, {rstd}")
    F = acc[0][0]
    Rr = va(8, 4)
    for a in range(4):
        P(f"s_waitcnt lgkmcnt({12 - 4*a})")
        f4 = F[4*a:4*a+4]; e4 = parts[0][4*a:4*a+4]; s4 = sv[4*a:4*a+4]; x4 = parts[1][4*a:4*a+4]
        for h in range(2):
            P(f"v_pk_add_f32 {f4[2*h:2*h+2]}, {f4[2*h:2*h+2]}, {parts[0][4*a+2*h:4*a+2*h+2]}")
            P(f"v_pk_add_f32 {parts[1][4*a+2*h:4*a+2*h+2]}, {parts[1][4*a+2*h:4*a+2*h+2]}, {parts[2][4*a+2*h:4*a+2*h+2]}")
        for h in range(2):
            P(f"v_pk_add_f32 {f4[2*h:2*h+2]}, {f4[2*h:2*h+2]}, {parts[1][4*a+2*h:4*a+2*h+2]}")
        for h in range(2):
            P(f"v_pk_mul_f32 {e4[2*h:2*h+2]}, {f4[2*h:2*h+2]}, {kk} op_sel:[0,1] op_sel_hi:[1,1]")
            P(f"v_pk_mul_f32 {f4[2*h:2*h+2]}, {f4[2*h:2*h+2]}, {kk} op_sel_hi:[1,0]")
        for r in range(4): P(f"v_exp_f32 {e4[r]}, {e4[r]}")
        for h in range(2): P(f"v_pk_mul_f32 {f4[2*h:2*h+2]}, {f4[2*h:2*h+2]}, {s4[2*h:2*h+2]}")
        for r in range(4): P(f"v_add_f32 {e4[r]}, 1.0, {e4[r]}")
        for r in range(4): P(f"v_rcp_f32 {e4[r]}, {e4[r]}")
        for h in range(2):
            P(f"v_lshlrev_b32 {x4[2*h]}, 16, {xv[a][h]}\nv_and_b32 {x4[2*h+1]}, 0xffff0000, {xv[a][h]}")
        for h in range(2): P(f"v_pk_fma_f32 {f4[2*h:2*h+2]}, {f4[2*h:2*h+2]}, {e4[2*h:2*h+2]}, {x4[2*h:2*h+2]}")
        P(f"v_cvt_pk_bf16_f32 {Rr[2*a]}, {f4[0]}, {f4[1]}\nv_cvt_pk_bf16_f32 {Rr[2*a+1]}, {f4[2]}, {f4[3]}")
        if a & 1:
            p = a >> 1
            P(f"v_permlane32_swap_b32 {Rr[4*p]}, {Rr[4*p+2]}\nv_permlane32_swap_b32 {Rr[4*p+1]}, {Rr[4*p+3]}")
            P(f"buffer_store_dwordx4 {Rr[4*p:4*p+4]}, {vO}, {sO}, 0 offen offset:{32*p}")
    stamp(P, S, 3)
    if OPT["stamps"]:
        P("s_waitcnt vmcnt(0)"); stamp(P, S, 4)
    stamp_flush(P, S, t, 1, 5, sA)
    P("K2_END:\ns_endpgm")
    return P.l, va.hi, aa.hi, sa.hi, LDS

def main():
    l1, nv1, na1, ns1 = k1()
    l2, nv2, na2, ns2, lds2 = k2()
    l1, p1 = pad_hazards(l1); l2, p2 = pad_hazards(l2)
    out = []
    out.append(f"; @launch kernel={NAME}_k1_kernel grid=(256,1,1) block=(256,1,1) lds=114688")
    out.append(f"; @launch kernel={NAME}_k2_kernel grid=(224,1,1) block=(256,1,1) lds={lds2}")
    for _ in range(OPT["empty"]): out.append(f"; @launch kernel={NAME}_e_kernel grid=(256,1,1) block=(256,1,1) lds=0")
    out.append('.amdgcn_target "amdgcn-amd-amdhsa--gfx950"\n.text')
    for nm, l in ((f"{NAME}_k1_kernel", l1), (f"{NAME}_k2_kernel", l2)):
        out.append(f".globl {nm}\n.p2align 8\n.type {nm},@function")
        out.extend(l)
    if OPT["empty"]: out.append(f".globl {NAME}_e_kernel\n.p2align 8\n.type {NAME}_e_kernel,@function\n{NAME}_e_kernel:\ns_endpgm")
    out.append(".fill 8192, 4, 0xbf800000")
    out.append(kernel_desc(f"{NAME}_k1_kernel", nv1, na1, ns1))
    out.append(kernel_desc(f"{NAME}_k2_kernel", nv2, na2, ns2))
    if OPT["empty"]: out.append(kernel_desc(f"{NAME}_e_kernel", 8, 0, 16))
    print("\n".join(out))
main()
```

```python
import sys, math
from asmlib import *

NAME = "recurrent_scan__sliding_local_dilated__dense_activation_relu__prompt"
OPT = dict(spin=0, empty=0, x_nodma=0, x_nord=0, x_nobar=0, x_nomfma=0, rot=1, pro=3, rate=8, L2=4, stamps=0, sc1=0, pf2=0)
for a in sys.argv[1:]:
    k, v = a.split("="); OPT[k] = int(v)

A2_KS = 140
RSTD_OFF = 2048 * 2240 * 2
WS_USED = RSTD_OFF + 8192
STAMP_OFF = 16 << 20
XBYTES = 2048 * 896
SC = " sc1" if OPT["sc1"] else ""
ONES = "0x3f803f80"
NINF = "0xff800000"

def srd(P, d, base_lo, base_hi, n):
    P(f"s_mov_b32 {d[0]}, {base_lo}\ns_mov_b32 {d[1]}, {base_hi}\ns_mov_b32 {d[2]}, {n}\ns_mov_b32 {d[3]}, 0x20000")

class VM:
    def __init__(self): self.q = []
    def issue(self, tag): self.q.append(tag)
    def wait_for(self, pred):
        last = -1
        for i, t in enumerate(self.q):
            if pred(t): last = i
        n = len(self.q) - 1 - last
        assert n <= 63
        return f"s_waitcnt vmcnt({n})"

def stamp(P, S, idx):
    if OPT["stamps"]:
        P(f"{'s_memrealtime' if OPT['stamps'] == 1 else 's_memtime'} {S['st'].sub(2*idx,2)}")

def stamp_flush(P, S, V, kern, n, srdws):
    if not OPT["stamps"]: return
    P("s_waitcnt lgkmcnt(0)")
    P(f"s_lshl_b32 {S['t0']}, s2, 2\ns_add_u32 {S['t0']}, {S['t0']}, {S['w']}\ns_lshl_b32 {S['t0']}, {S['t0']}, 6")
    P(f"s_add_u32 {S['t0']}, {S['t0']}, {STAMP_OFF + kern*(1<<17)}")
    P(f"v_mov_b32 {V[0]}, {S['t0']}")
    for i in range(n):
        P(f"v_mov_b32 {V[1]}, {S['st'][2*i]}\nbuffer_store_dword {V[1]}, {V[0]}, {srdws}, 0 offen offset:{4*i}")

def schedule_dma(items, pro, rate, nsteps):
    sched = {s: [] for s in range(-1, nsteps)}
    i = 0
    for s in range(-1, nsteps):
        cap = pro if s == -1 else rate
        n = 0
        while i < len(items) and items[i]["free"] <= s and (n < cap or items[i]["need"] - 2 <= s):
            sched[s].append(i); i += 1; n += 1
    assert i == len(items)
    for s, l in sched.items():
        for j in l: assert items[j]["need"] - 2 >= s or s == -1, (s, items[j])
    return sched

def k1():
    P = Prog()
    sa = Alloc("s", 4, 100)
    S = {}
    ptr = sa(16, 4)
    wsp = sa(2)
    sX, sW, sWS = sa(4), sa(4), sa(4)
    for n in "w e rbl cb t0 t1 t2 kx kw wm0 xm0 b1 b2 hh half".split(): S[n] = sa()
    pc = sa(2); mW = sa(2); mH = sa(2); mT = sa(2)
    S['st'] = sa(16, 2)
    P(f"{NAME}_k1_kernel:")
    stamp(P, S, 0)
    if OPT["spin"]: P("s_memrealtime s[90:91]")
    P("s_cmp_ge_u32 s2, 256\ns_cbranch_scc1 K1_END")
    P(f"s_load_dwordx16 {ptr}, s[0:1], 0\ns_load_dwordx2 {wsp}, s[0:1], 64")
    P(f"s_getpc_b64 {pc}\nv_lshlrev_b32 v1, 7, v0\nglobal_load_dword v2, v1, {pc}")
    P(f"v_lshrrev_b32 v1, 6, v0\nv_and_b32 v0, 63, v0\nv_readfirstlane_b32 {S['w']}, v1")
    P(f"s_bfe_u32 {S['e']}, s2, 0x10002")
    P(f"s_bfe_u32 {S['rbl']}, s2, 0x30003")
    P(f"s_and_b32 {S['t0']}, s2, 3\ns_lshl_b32 {S['t0']}, {S['t0']}, 1\ns_bfe_u32 {S['t1']}, s2, 0x10006\ns_add_u32 {S['cb']}, {S['t0']}, {S['t1']}")
    if OPT["rot"]:
        P(f"s_bfe_u32 {S['t0']}, s2, 0x20006\ns_lshl_b32 {S['t0']}, {S['t0']}, 1\ns_add_u32 {S['t0']}, {S['t0']}, {S['rbl']}")
        P(f"s_sub_u32 {S['t1']}, {S['t0']}, 7\ns_cmp_ge_u32 {S['t0']}, 7\ns_cselect_b32 {S['t0']}, {S['t1']}, {S['t0']}")
    else:
        P(f"s_mov_b32 {S['t0']}, 0")
    P(f"s_lshl_b32 {S['kx']}, {S['t0']}, 7")
    P(f"s_mul_i32 {S['t2']}, {S['e']}, 896")
    P("s_cmp_ge_u32 s2, 128\ns_cbranch_scc1 K1_QKV")
    common = dict(P=P, S=S, ptr=ptr, wsp=wsp, sX=sX, sW=sW, sWS=sWS, mW=mW, mH=mH, mT=mT)
    nv1, na1 = k1_ffn(**common)
    P("K1_QKV:")
    nv2, na2 = k1_qkv(**common)
    P("K1_END:\ns_endpgm")
    return P.l, max(nv1, nv2), max(na1, na2), max(sa.hi, 96)

def xsrd(P, S, ptr, wsp, sX, sWS):
    P("s_waitcnt lgkmcnt(0)")
    P(f"s_add_u32 {sX[0]}, {ptr[0]}, {S['t2']}\ns_addc_u32 {sX[1]}, {ptr[1]}, 0\ns_sub_u32 {sX[2]}, {XBYTES}, {S['t2']}\ns_mov_b32 {sX[3]}, 0x20000")
    srd(P, sWS, wsp[0], wsp[1], (STAMP_OFF + (1 << 20)) if (OPT["stamps"] or OPT["spin"]) else WS_USED)

def adv(P_list, reg, step, wrap):
    P_list.append(f"s_add_u32 {reg}, {reg}, {step}\ns_cmp_eq_u32 {reg}, {wrap}\ns_cselect_b32 {reg}, 0, {reg}")

def main_loop(P, S, items, emit_item, reads, mfmas, nsteps=14):
    vm = VM(); vm.issue(("pf", -9))
    sched = schedule_dma(items, OPT["pro"], OPT["rate"], nsteps)
    def issue(i):
        for _ in range(items[i]["n"]): vm.issue(("d", items[i]["need"]))
        return emit_item(i)
    for i in sched[-1]: P(issue(i))
    return vm, sched, issue

def run_loop(P, S, vm, sched, issue, reads, mfmas, nsteps=14, extra=None):
    P(vm.wait_for(lambda t: t[1] <= 0) + " lgkmcnt(0)")
    P("s_barrier")
    stamp(P, S, 1)
    P.ext(reads(0))
    for s in range(nsteps):
        if s + 1 < nsteps:
            P((vm.wait_for(lambda t: t[1] <= s + 1) if not OPT["x_nodma"] else "s_waitcnt") + " lgkmcnt(0)")
            if not OPT["x_nobar"]: P("s_barrier")
        else:
            P("s_waitcnt lgkmcnt(0)\ns_barrier")
        if s == 2: stamp(P, S, 2)
        m = mfmas(s)
        rd = reads(s + 1) if s + 1 < nsteps else []
        dm = [issue(i) for i in sched[s]]
        if extra and s in extra:
            for e_ in extra[s]:
                vm.issue(("x", 99)); dm.append(e_)
        if OPT["x_nodma"]: dm = []
        if OPT["x_nord"]: rd = []
        if OPT["x_nomfma"]: m = ["s_nop 0" for _ in m]
        P.ext(merge(m, (rd, 0, (len(m) * 2) // 3), (dm, 0, len(m))))
    stamp(P, S, 3)

def k1_ffn(P, S, ptr, wsp, sX, sW, sWS, mW, mH, mT):
    va = Alloc("v", 3, 256); aa = Alloc("a", 0, 256)
    NW, NX = 4, 3
    WB, XB = 0, 65536
    lane = R("v", 0)
    t = [va() for _ in range(8)]
    xd = [va() for _ in range(4)]; wd = [va() for _ in range(4)]
    xr = [[va() for _ in range(2)] for _ in range(2)]
    wr_ = [va() for _ in range(7)]
    acc = [[va(4, 4) for _ in range(4)] for _ in range(7)]
    cs = [va(4, 4) for _ in range(7)]
    rs = [va(4, 4) for _ in range(2)]
    ones = aa(4)
    fb = [dict(x=[aa(4) for _ in range(4)], w=[aa(4) for _ in range(7)]) for _ in range(2)]
    w = S['w']
    P(f"s_lshl_b32 {S['t0']}, {S['rbl']}, 7\ns_lshl_b32 {S['t1']}, {w}, 5\ns_add_u32 {S['t0']}, {S['t0']}, {S['t1']}")
    P(f"v_lshrrev_b32 {t[0]}, 3, {lane}\nv_add_u32 {t[0]}, {S['t0']}, {t[0]}\nv_mul_u32_u24 {t[0]}, 1792, {t[0]}")
    P(f"v_lshrrev_b32 {t[1]}, 4, {lane}\nv_and_b32 {t[2]}, 7, {lane}\nv_xor_b32 {t[2]}, {t[1]}, {t[2]}")
    P(f"v_lshl_add_u32 {xd[0]}, {t[2]}, 4, {t[0]}")
    P(f"v_xor_b32 {t[3]}, 64, {xd[0]}\nv_add_u32 {xd[1]}, {8*1792}, {t[3]}\nv_add_u32 {xd[2]}, {16*1792}, {xd[0]}\nv_add_u32 {xd[3]}, {24*1792}, {t[3]}")
    P(f"s_mul_i32 {S['t0']}, {S['cb']}, 448\ns_and_b32 {S['t0']}, {S['t0']}, 0xffffff80\ns_mul_i32 {S['t1']}, {w}, {8*3584}\ns_add_u32 {S['t0']}, {S['t0']}, {S['t1']}")
    P(f"s_and_b32 {S['t1']}, {w}, 1\ns_lshl_b32 {S['t1']}, {S['t1']}, 2")
    P(f"v_lshrrev_b32 {t[0]}, 5, {lane}\nv_bfe_u32 {t[1]}, {lane}, 1, 4\nv_xor_b32 {t[1]}, {t[0]}, {t[1]}\nv_xor_b32 {t[1]}, {S['t1']}, {t[1]}")
    P(f"v_mul_u32_u24 {t[0]}, 3584, {t[0]}\nv_lshl_add_u32 {t[0]}, {t[1]}, 5, {t[0]}\nv_and_b32 {t[1]}, 1, {lane}\nv_lshl_add_u32 {t[0]}, {t[1]}, 4, {t[0]}")
    P(f"v_add_u32 {wd[0]}, {S['t0']}, {t[0]}\nv_xor_b32 {t[3]}, 64, {wd[0]}")
    P(f"v_add_u32 {wd[1]}, {2*3584}, {t[3]}\nv_add_u32 {wd[2]}, {4*3584}, {wd[0]}\nv_add_u32 {wd[3]}, {6*3584}, {t[3]}")
    P(f"s_mul_i32 {S['kw']}, {S['kx']}, {64*3584//128}")
    P(f"s_lshl_b32 {S['wm0']}, {w}, 12")
    xsrd(P, S, ptr, wsp, sX, sWS)
    srd(P, sW, ptr[8], ptr[9], 448 * 3584)
    items = []
    for d in range(7):
        for h in range(2): items.append(dict(k="x", d=d, h=h, n=2, need=2*d, free=(2*(d-NX)+1 if d >= NX else -1)))
        for s in (2*d, 2*d+1):
            for h in range(2): items.append(dict(k="w", s=s, h=h, n=2, need=s, free=(s-NW if s >= NW else -1)))
    def emit_item(i):
        it = items[i]; o = []
        if it["k"] == "x":
            for j in (2*it["h"], 2*it["h"]+1):
                o.append(f"s_add_u32 m0, {S['wm0']}, {XB + (it['d'] % NX)*16384 + j*1024}\nbuffer_load_dwordx4 {xd[j]}, {sX}, {S['kx']} offen lds")
            if it["h"] == 1: adv(o, S['kx'], 128, 896)
        else:
            for j in (2*it["h"], 2*it["h"]+1):
                o.append(f"s_add_u32 m0, {S['wm0']}, {WB + (it['s'] % NW)*16384 + j*1024}\nbuffer_load_dwordx4 {wd[j]}, {sW}, {S['kw']} offen lds")
            if it["h"] == 1: adv(o, S['kw'], 32*3584, 448*3584)
        return "\n".join(o)
    save = OPT["pro"], OPT["rate"]
    OPT["pro"], OPT["rate"] = 2*save[0], save[1]//2
    vm, sched, issue = main_loop(P, S, items, emit_item, None, None)
    OPT["pro"], OPT["rate"] = save
    wr, wc = S['half'], S['hh']
    P(f"s_lshr_b32 {wr}, {w}, 1\ns_and_b32 {wc}, {w}, 1")
    n_, g_ = t[4], t[5]
    P(f"v_and_b32 {n_}, 15, {lane}\nv_lshrrev_b32 {g_}, 4, {lane}")
    P(f"s_lshl_b32 {S['t0']}, {wr}, 13\ns_lshl_b32 {S['t1']}, {wc}, 12\ns_add_u32 {S['t0']}, {S['t0']}, {S['t1']}\ns_add_u32 {S['t0']}, {S['t0']}, {XB}")
    P(f"v_lshrrev_b32 {t[0]}, 1, {n_}\nv_xor_b32 {t[0]}, {g_}, {t[0]}\nv_lshlrev_b32 {t[0]}, 4, {t[0]}\nv_lshl_add_u32 {t[0]}, {n_}, 7, {t[0]}")
    P(f"v_add_u32 {xr[0][0]}, {S['t0']}, {t[0]}\nv_xor_b32 {xr[0][1]}, 64, {xr[0][0]}\nv_xor_b32 {xr[1][0]}, 4096, {xr[0][0]}\nv_xor_b32 {xr[1][1]}, 4096, {xr[0][1]}")
    P(f"v_bfe_u32 {t[0]}, {lane}, 2, 2\nv_lshl_add_u32 {t[1]}, {g_}, 3, {t[0]}\nv_lshlrev_b32 {t[1]}, 9, {t[1]}\nv_and_b32 {t[2]}, 3, {lane}\nv_lshl_add_u32 {t[1]}, {t[2]}, 3, {t[1]}")
    P(f"v_bfe_u32 {t[0]}, {lane}, 2, 3")
    P(f"s_lshl_b32 {S['b1']}, {wr}, 2\ns_mul_i32 {S['b2']}, {wr}, -3")
    P(f"s_and_b32 {S['t0']}, {S['cb']}, 1\ns_lshl_b32 {S['t0']}, {S['t0']}, 1\ns_mul_i32 {S['t1']}, {wc}, 7\ns_add_u32 {S['t0']}, {S['t0']}, {S['t1']}")
    P(f"s_add_u32 {S['t1']}, {S['t0']}, {S['b2']}\ns_add_u32 {S['t0']}, {S['t0']}, {S['b1']}")
    for c in range(7):
        P(f"s_add_u32 {S['t2']}, {S['t0'] if c <= 2 else S['t1']}, {c}")
        P(f"v_xor_b32 {t[2]}, {S['t2']}, {t[0]}\nv_lshl_add_u32 {wr_[c]}, {t[2]}, 5, {t[1]}")
    P(f"v_mov_b32 {t[0]}, {ONES}")
    for i in range(4): P(f"v_accvgpr_write_b32 {ones[i]}, {t[0]}")
    def reads(s):
        b = fb[s & 1]; o = []
        xs = ((s >> 1) % NX) * 16384; ws = WB + (s % NW) * 16384
        X = [f"ds_read_b128 {b['x'][i]}, {xr[i>>1][s&1]} offset:{xs + (i&1)*2048}" for i in range(4)]
        W = []
        for c in range(7):
            W.append(f"ds_read_b64_tr_b16 {b['w'][c][0:2]}, {wr_[c]} offset:{ws}")
            W.append(f"ds_read_b64_tr_b16 {b['w'][c][2:4]}, {wr_[c]} offset:{ws + 2048}")
        return X + W
    def mfmas(s):
        b = fb[s & 1]; o = []
        def mm(d, a, bb): o.append(f"v_mfma_f32_16x16x32_bf16 {d}, {a}, {bb}, {d if s else 0}")
        for i in range(2): mm(rs[i], ones, b['x'][i])
        for c in range(7):
            if c < 4: mm(cs[c], b['w'][c], ones)
            for i in range(4): mm(acc[c][i], b['w'][c], b['x'][i])
        return o
    extra = None
    if OPT["pf2"]:
        sP = R("s", 80, 4); vp = va(); vd = va()
        P(f"s_bfe_u32 {S['t0']}, s2, 0x40003\ns_lshl_b32 {S['t0']}, {S['t0']}, 2\ns_add_u32 {S['t0']}, {S['t0']}, {w}")
        P(f"s_sub_u32 {S['t1']}, {S['t0']}, 49\ns_cmp_lt_u32 {S['t0']}, 49\ns_cselect_b32 {S['t0']}, {S['t0']}, {S['t1']}")
        P(f"s_cselect_b32 {sP[0]}, {ptr[10]}, {ptr[4]}\ns_cselect_b32 {sP[1]}, {ptr[11]}, {ptr[5]}\ns_mov_b32 {sP[2]}, {448*896}\ns_cselect_b32 {sP[2]}, {1792*896}, {sP[2]}\ns_mov_b32 {sP[3]}, 0x20000")
        P(f"s_lshl_b32 {S['t0']}, {S['t0']}, 15\nv_lshlrev_b32 {vp}, 7, {lane}\nv_add_u32 {vp}, {S['t0']}, {vp}")
        s0 = OPT["pf2"]
        extra = {}
        for i in range(4):
            extra.setdefault(min(s0 + i, 13), []).append(f"buffer_load_dword {vd}, {vp}, {sP}, 0 offen\nv_add_u32 {vp}, 8192, {vp}")
    run_loop(P, S, vm, sched, issue, reads, mfmas, extra=extra)
    RSB, CSB = 0, 1024
    a_rs, a_rs2, a_cs, a_cs2 = t[0], t[1], t[2], t[3]
    P(f"s_lshl_b32 {S['t0']}, {wr}, 8\ns_lshl_b32 {S['t1']}, {wc}, 7\ns_add_u32 {S['t0']}, {S['t0']}, {S['t1']}")
    P(f"v_lshlrev_b32 {a_rs}, 2, {n_}\nv_add_u32 {a_rs}, {S['t0']}, {a_rs}\nv_xor_b32 {a_rs2}, 128, {a_rs}")
    P(f"s_lshl_b32 {S['t0']}, {wc}, 3\ns_add_u32 {S['t1']}, {S['t0']}, {S['b2']}\ns_add_u32 {S['t0']}, {S['t0']}, {S['b1']}")
    P(f"s_lshl_b32 {S['t0']}, {S['t0']}, 6\ns_add_u32 {S['t1']}, {S['t1']}, 4\ns_lshl_b32 {S['t1']}, {S['t1']}, 6")
    P(f"v_lshlrev_b32 {a_cs}, 4, {g_}\nv_add_u32 {a_cs2}, {S['t1']}, {a_cs}\nv_add_u32 {a_cs}, {S['t0']}, {a_cs}")
    for i in range(2): P(f"ds_write_b32 {a_rs}, {rs[i][0]} offset:{RSB + i*64}")
    for c in range(4): P(f"ds_write_b128 {a_cs}, {cs[c]} offset:{CSB + c*64}")
    P("s_waitcnt lgkmcnt(0)\ns_barrier")
    nm = [va(2), va(2)]
    P(f"ds_read_b32 {nm[1][0]}, {a_rs2} offset:{RSB}\nds_read_b32 {nm[1][1]}, {a_rs2} offset:{RSB+64}")
    for c in range(4, 7): P(f"ds_read_b128 {cs[c]}, {a_cs2} offset:{CSB + (c-4)*64}")
    NEG = "0xbb124925"
    import struct
    NEG = hex(struct.unpack("<I", struct.pack("<f", -1.0/448))[0])
    P(f"v_mul_f32 {nm[0][0]}, {NEG}, {rs[0][0]}\nv_mul_f32 {nm[0][1]}, {NEG}, {rs[1][0]}")
    st = [t[6], t[7]]
    P(f"s_lshl_b32 {S['t0']}, {wc}, 10\nv_lshlrev_b32 {st[0]}, 4, {lane}\nv_add_u32 {st[0]}, {S['t0']}, {st[0]}\nv_xor_b32 {st[1]}, 1024, {st[0]}")
    P(f"s_lshl_b32 {S['t0']}, {S['e']}, 3\ns_add_u32 {S['t0']}, {S['t0']}, {S['rbl']}\ns_lshl_b32 {S['t0']}, {S['t0']}, 1\ns_add_u32 {S['t0']}, {S['t0']}, {wr}")
    P(f"s_mul_i32 {S['t0']}, {S['t0']}, {A2_KS}\ns_mul_i32 {S['t1']}, {S['cb']}, 14\ns_add_u32 {S['t0']}, {S['t0']}, {S['t1']}\ns_mul_i32 {S['t1']}, {wc}, 7\ns_add_u32 {S['t0']}, {S['t0']}, {S['t1']}\ns_add_u32 {S['t0']}, {S['t0']}, 28")
    P(f"s_add_u32 {S['b1']}, {S['b1']}, {S['t0']}\ns_add_u32 {S['b2']}, {S['b2']}, {S['t0']}\ns_lshl_b32 {S['b1']}, {S['b1']}, 11\ns_lshl_b32 {S['b2']}, {S['b2']}, 11")
    Z = [va(4, 4) for _ in range(4)]
    units = [(c, 0) for c in range(4)] + [(c, 1) for c in range(4)] + [(c, pr) for c in range(4, 7) for pr in range(2)]
    zi = 0
    pend = None
    for ui, (c, pr) in enumerate(units):
        if ui == 4:
            P("s_waitcnt lgkmcnt(0)")
            P(f"v_mul_f32 {nm[1][0]}, {NEG}, {nm[1][0]}\nv_mul_f32 {nm[1][1]}, {NEG}, {nm[1][1]}")
        z = Z[zi % 4]; zi += 1
        for ii in range(2):
            a = acc[c][2*pr+ii]
            sel = "op_sel_hi:[1,0,1]" if ii == 0 else "op_sel:[0,1,0] op_sel_hi:[1,1,1]"
            P(f"v_pk_fma_f32 {a[0:2]}, {cs[c][0:2]}, {nm[pr]}, {a[0:2]} {sel}")
            P(f"v_pk_fma_f32 {a[2:4]}, {cs[c][2:4]}, {nm[pr]}, {a[2:4]} {sel}")
        if pend: P(pend)
        for ii in range(2):
            a = acc[c][2*pr+ii]
            P(f"v_cvt_pk_bf16_f32 {z[2*ii]}, {a[0]}, {a[1]}\nv_cvt_pk_bf16_f32 {z[2*ii+1]}, {a[2]}, {a[3]}")
        for q in range(4): P(f"v_pk_max_i16 {z[q]}, {z[q]}, 0")
        pend = (f"s_add_u32 {S['t0']}, {S['b1'] if c <= 2 else S['b2']}, {c*2048}\n"
                f"v_permlane16_swap_b32 {z[0]}, {z[2]}\nv_permlane16_swap_b32 {z[1]}, {z[3]}\n"
                f"buffer_store_dwordx4 {z}, {st[pr]}, {sWS}, {S['t0']} offen{SC}")
    P(pend)
    if OPT["spin"]:
        P(f"s_cmp_lg_u32 s2, 0\ns_cbranch_scc1 SPN0\nv_mov_b32 {t[0]}, {WS_USED}\nv_mov_b32 {t[1]}, s90\nbuffer_store_dword {t[1]}, {t[0]}, {sWS}, 0 offen\nSPN0:")
    stamp(P, S, 4)
    if OPT["stamps"]:
        P("s_waitcnt vmcnt(0)"); stamp(P, S, 5)
    stamp_flush(P, S, t, 0, 6, sWS)
    P("s_endpgm")
    return va.hi, aa.hi

def k1_qkv(P, S, ptr, wsp, sX, sW, sWS, mW, mH, mT):
    import struct
    f2h = lambda x: hex(struct.unpack("<I", struct.pack("<f", x))[0])
    va = Alloc("v", 3, 256); aa = Alloc("a", 0, 256)
    NW, NX = 4, 3
    XS = 18432
    XB, WB = 0, 3 * XS
    lane = R("v", 0)
    t = [va() for _ in range(8)]
    xd = [va() for _ in range(4)]; xh = va(); wd = va()
    xr = [va() for _ in range(2)]; xr0 = [va() for _ in range(2)]
    wr_ = [va() for _ in range(2)]
    acc = [[[va(4, 4) for _ in range(5)] for _ in range(2)] for _ in range(3)]
    dg = [va(4, 4) for _ in range(5)]
    cprev, ccur, cfirst = va(4, 4), va(4, 4), va(4, 4)
    mprev, mcur = va(2), va(2)
    fb = [dict(x=[aa(4) for _ in range(5)], w=[[aa(4) for _ in range(2)] for _ in range(3)]) for _ in range(2)]
    w = S['w']; hp = S['cb']
    P(f"s_lshl_b32 {S['t0']}, {S['rbl']}, 7\ns_lshl_b32 {S['t1']}, {w}, 5\ns_add_u32 {S['t1']}, {S['t0']}, {S['t1']}")
    P(f"v_lshrrev_b32 {t[4]}, 3, {lane}\nv_add_u32 {t[0]}, {S['t1']}, {t[4]}\nv_mul_u32_u24 {t[0]}, 1792, {t[0]}")
    P(f"v_lshrrev_b32 {t[1]}, 4, {lane}\nv_and_b32 {t[5]}, 7, {lane}\nv_xor_b32 {t[2]}, {t[1]}, {t[5]}")
    P(f"v_lshl_add_u32 {xd[0]}, {t[2]}, 4, {t[0]}")
    P(f"v_xor_b32 {t[3]}, 64, {xd[0]}\nv_add_u32 {xd[1]}, {8*1792}, {t[3]}\nv_add_u32 {xd[2]}, {16*1792}, {xd[0]}\nv_add_u32 {xd[3]}, {24*1792}, {t[3]}")
    P(f"s_mul_i32 {S['t1']}, {w}, {32*1792}\ns_add_u32 {S['t1']}, {S['t1']}, {8*1792}\ns_cmp_eq_u32 {S['rbl']}, 0\ns_cselect_b32 {S['t1']}, 0x80000000, {S['t1']}")
    P(f"v_subrev_u32 {xh}, {S['t1']}, {t[3]}")
    P(f"s_lshl_b32 {S['t1']}, {w}, 4\ns_mov_b64 {mH}, 0xffff\ns_lshl_b64 {mH}, {mH}, {S['t1']}")
    P(f"s_and_b32 {S['hh']}, {w}, 1\ns_lshl_b32 {S['t1']}, {S['hh']}, 2")
    P(f"v_and_b32 {t[0]}, 2, {t[4]}\nv_add_u32 {t[0]}, {S['t1']}, {t[0]}\nv_sub_u32 {t[0]}, {t[5]}, {t[0]}\nv_and_b32 {t[0]}, 7, {t[0]}")
    P(f"v_cmp_ne_u32 {mW}, 7, {t[0]}")
    P(f"s_mul_i32 {S['t0']}, {hp}, 112\ns_mul_i32 {S['t1']}, {w}, {8*2688}\ns_add_u32 {S['t0']}, {S['t0']}, {S['t1']}")
    P(f"v_mul_u32_u24 {t[1]}, 2688, {t[4]}\nv_lshl_add_u32 {t[1]}, {t[0]}, 4, {t[1]}\nv_add_u32 {wd}, {S['t0']}, {t[1]}")
    P(f"s_mul_i32 {S['kw']}, {S['kx']}, {64*2688//128}")
    P(f"s_lshl_b32 {S['wm0']}, {w}, 10\ns_lshl_b32 {S['xm0']}, {w}, 12")
    xsrd(P, S, ptr, wsp, sX, sWS)
    srd(P, sW, ptr[2], ptr[3], 448 * 2688)
    items = []
    for d in range(7):
        fr = (2*(d-NX)+1 if d >= NX else -1)
        items.append(dict(k="x", d=d, h=0, n=3, need=2*d, free=fr))
        items.append(dict(k="x", d=d, h=1, n=2, need=2*d, free=fr))
        for s in (2*d, 2*d+1):
            items.append(dict(k="w", s=s, n=3, need=s, free=(s-NW if s >= NW else -1)))
    def emit_item(i):
        it = items[i]; o = []
        if it["k"] == "x":
            sb = XB + (it['d'] % NX) * XS
            if it["h"] == 0:
                o.append(f"s_mov_b32 m0, {sb + 1024}\ns_mov_b64 exec, {mH}\nbuffer_load_dwordx4 {xh}, {sX}, {S['kx']} offen lds\ns_mov_b64 exec, -1")
            for j in (2*it["h"], 2*it["h"]+1):
                o.append(f"s_add_u32 m0, {S['xm0']}, {sb + 2048 + j*1024}\nbuffer_load_dwordx4 {xd[j]}, {sX}, {S['kx']} offen lds")
            if it["h"] == 1: adv(o, S['kx'], 128, 896)
        else:
            for p in range(3):
                pre = f"s_mov_b64 exec, {mW}\n" if p == 0 else ""
                o.append(f"s_add_u32 m0, {S['wm0']}, {WB + (it['s'] % NW)*12288 + p*4096 - p*896}\n{pre}buffer_load_dwordx4 {wd}, {sW}, {S['kw']} offen offset:{p*896} lds")
            o.append("s_mov_b64 exec, -1")
            adv(o, S['kw'], 32*2688, 448*2688)
        return "\n".join(o)
    save = OPT["pro"], OPT["rate"]
    OPT["pro"], OPT["rate"] = save[0] + 1, (save[1] + 2) // 3
    vm, sched, issue = main_loop(P, S, items, emit_item, None, None)
    OPT["pro"], OPT["rate"] = save
    hh, half = S['hh'], S['half']
    P(f"s_lshr_b32 {half}, {w}, 1")
    n_, g_ = va(), va()
    P(f"v_and_b32 {n_}, 15, {lane}\nv_lshrrev_b32 {g_}, 4, {lane}")
    c1 = va(4, 4); c0 = va(4, 4)
    for i in range(4): P(f"v_mov_b32 {c1[i]}, {ONES}\nv_mov_b32 {c0[i]}, 0")
    P(f"v_and_b32 {t[0]}, 31, {lane}\nv_and_b32 {t[1]}, 2, {lane}\nv_bfe_u32 {t[2]}, {lane}, 3, 1\nv_lshl_add_u32 {t[1]}, {t[2]}, 2, {t[1]}")
    P(f"v_add_u32 {t[1]}, 7, {t[1]}\nv_and_b32 {t[1]}, 7, {t[1]}\nv_lshlrev_b32 {t[1]}, 4, {t[1]}\nv_lshl_add_u32 {t[0]}, {t[0]}, 7, {t[1]}")
    P(f"v_lshrrev_b32 {t[1]}, 5, {lane}\nv_mul_u32_u24 {t[1]}, 12288, {t[1]}\ns_mul_i32 {S['t0']}, {hh}, {2*12288}\ns_add_u32 {S['t0']}, {S['t0']}, {WB}")
    P(f"v_add3_u32 {t[0]}, {t[0]}, {t[1]}, {S['t0']}")
    P(f"ds_write_b128 {t[0]}, {c0}\nds_write_b128 {t[0]}, {c1} offset:4096\nds_write_b128 {t[0]}, {c0} offset:8192")
    P(f"s_min_u32 {S['t0']}, {w}, 2\ns_mul_i32 {S['t0']}, {S['t0']}, {XS}\nv_lshlrev_b32 {t[1]}, 4, {lane}\nv_add_u32 {t[1]}, {S['t0']}, {t[1]}\nds_write_b128 {t[1]}, {c1} offset:{XB}")
    P(f"v_lshrrev_b32 {t[0]}, 1, {n_}\nv_xor_b32 {t[0]}, {g_}, {t[0]}\nv_lshlrev_b32 {t[0]}, 4, {t[0]}\nv_lshl_add_u32 {t[0]}, {n_}, 7, {t[0]}")
    P(f"s_lshl_b32 {S['t0']}, {half}, 13\nv_add_u32 {t[1]}, {S['t0']}, {t[0]}\nv_add_u32 {xr[0]}, {XB + 2048}, {t[1]}\nv_xor_b32 {xr[1]}, 64, {xr[0]}")
    P(f"v_cmp_gt_u32 vcc, 8, {n_}\nv_cndmask_b32 {xr0[0]}, {t[1]}, {t[0]}, vcc\nv_xor_b32 {xr0[1]}, 64, {xr0[0]}")
    assert XB == 0
    P(f"v_bfe_u32 {t[0]}, {lane}, 2, 2\nv_lshl_add_u32 {t[0]}, {g_}, 3, {t[0]}\nv_lshlrev_b32 {t[0]}, 7, {t[0]}\nv_add_u32 {t[0]}, {WB}, {t[0]}")
    P(f"v_bfe_u32 {t[1]}, {lane}, 3, 2\nv_lshlrev_b32 {t[1]}, 5, {t[1]}\nv_and_b32 {t[2]}, 3, {lane}")
    P(f"s_mul_i32 {S['t0']}, {hh}, 56\nv_lshl_add_u32 {t[3]}, {t[2]}, 3, {S['t0']}")
    P(f"v_add_u32 {t[4]}, {t[3]}, {t[1]}\nv_and_b32 {t[4]}, 127, {t[4]}\nv_add_u32 {wr_[0]}, {t[0]}, {t[4]}")
    P(f"s_lshl_b32 {S['t0']}, {hh}, 3\ns_sub_u32 {S['t0']}, 120, {S['t0']}\nv_mov_b32 {t[4]}, {S['t0']}\nv_add_u32 {t[3]}, 32, {t[3]}")
    P(f"v_cmp_eq_u32 vcc, 3, {t[2]}\nv_cndmask_b32 {t[3]}, {t[3]}, {t[4]}, vcc")
    P(f"v_add_u32 {t[4]}, {t[3]}, {t[1]}\nv_and_b32 {t[4]}, 127, {t[4]}\nv_add_u32 {wr_[1]}, {t[0]}, {t[4]}")
    P(f"v_lshlrev_b32 {t[0]}, 2, {g_}\nv_sub_u32 {t[0]}, {n_}, {t[0]}\nv_mov_b32 {t[1]}, {NINF}")
    P(f"s_or_b32 {S['t0']}, {S['rbl']}, {half}\ns_cmp_eq_u32 {S['t0']}, 0\ns_cselect_b32 {S['t0']}, {NINF}, 0")
    for r in range(4):
        P(f"v_subrev_u32 {t[2]}, {r}, {t[0]}")
        P(f"v_cmp_gt_i32 vcc, -8, {t[2]}\nv_cndmask_b32 {cprev[r]}, {t[1]}, {c0[0]}, vcc")
        P(f"v_cmp_gt_u32 vcc, 8, {t[2]}\nv_cndmask_b32 {ccur[r]}, {t[1]}, {c0[0]}, vcc")
        P(f"v_or_b32 {cfirst[r]}, {S['t0']}, {cprev[r]}")
    for (m, c) in ((mprev, cprev), (mcur, ccur)):
        for q in range(2):
            P(f"v_ashrrev_i32 {t[2]}, 31, {c[2*q]}\nv_ashrrev_i32 {t[3]}, 31, {c[2*q+1]}\nv_and_b32 {t[2]}, 0xffff, {t[2]}\nv_and_b32 {t[3]}, 0xffff0000, {t[3]}")
            P(f"v_or_b32 {t[2]}, {t[2]}, {t[3]}\nv_not_b32 {m[q]}, {t[2]}")
    def reads(s):
        b = fb[s & 1]
        xs = ((s >> 1) % NX) * XS; ws = (s % NW) * 12288
        X = [f"ds_read_b128 {b['x'][0]}, {xr0[s&1]} offset:{xs}"] + [f"ds_read_b128 {b['x'][j]}, {xr[s&1]} offset:{xs + (j-1)*2048}" for j in range(1, 5)]
        W = []
        for p in (1, 0, 2):
            for tt in range(2):
                W.append(f"ds_read_b64_tr_b16 {b['w'][p][tt][0:2]}, {wr_[tt]} offset:{ws + p*4096}")
                W.append(f"ds_read_b64_tr_b16 {b['w'][p][tt][2:4]}, {wr_[tt]} offset:{ws + p*4096 + 512}")
        return X + W
    def mfmas(s):
        b = fb[s & 1]; o = []
        def mm(d, a, bb): o.append(f"v_mfma_f32_16x16x32_bf16 {d}, {a}, {bb}, {d if s else 0}")
        for j in range(5): mm(dg[j], b['x'][j], b['x'][j])
        for p in (1, 0, 2):
            for tt in (1, 0):
                for j in range(5): mm(acc[p][tt][j], b['w'][p][tt], b['x'][j])
        return o
    run_loop(P, S, vm, sched, issue, reads, mfmas)
    Q, K, V = acc
    ST = [va(2) for _ in range(5)]
    sq = [va() for _ in range(5)]
    a1, a2 = t[0], t[1]
    P(f"v_lshlrev_b32 {a1}, 2, {n_}\nv_bfe_u32 {a2}, {lane}, 2, 2\nv_lshl_add_u32 {a2}, {a2}, 6, {a1}\nv_add_u32 {a1}, 192, {a1}")
    P(f"v_and_b32 {t[2]}, 1, {lane}\nv_cmp_eq_u32 {mT}, 1, {t[2]}\nv_and_b32 {t[2]}, 2, {lane}\nv_cmp_eq_u32 vcc, 2, {t[2]}")
    for j in range(5):
        P(f"v_cndmask_b32 {dg[j][0]}, {dg[j][0]}, {dg[j][1]}, {mT}\nv_cndmask_b32 {dg[j][2]}, {dg[j][2]}, {dg[j][3]}, {mT}\nv_cndmask_b32 {dg[j][0]}, {dg[j][0]}, {dg[j][2]}, vcc")
        P(f"ds_bpermute_b32 {sq[j]}, {a2}, {dg[j][0]}\nds_bpermute_b32 {ST[j][0]}, {a1}, {K[1][j][0]}")
    csK = [dg[1], dg[2]]; csV = [dg[3], dg[4]]
    tmpcs = [va(4, 4) for _ in range(4)]
    csK = tmpcs[0:2]; csV = tmpcs[2:4]; csQ = [Q[0][0], Q[1][0]]
    for tt in range(2):
        for r in range(4):
            P(f"v_mov_b32_dpp {csK[tt][r]}, {K[tt][0][r]} row_newbcast:0 row_mask:0xf bank_mask:0xf")
    for tt in range(2):
        for r in range(4):
            P(f"v_mov_b32_dpp {csQ[tt][r]}, {Q[tt][0][r]} row_newbcast:0 row_mask:0xf bank_mask:0xf")
    for tt in range(2):
        for r in range(4):
            P(f"v_mov_b32_dpp {csV[tt][r]}, {V[tt][0][r]} row_newbcast:0 row_mask:0xf bank_mask:0xf")
    P("s_waitcnt lgkmcnt(0)")
    P(f"s_mov_b32 {S['t0']}, {f2h(1.0/448)}")
    for j in range(5): P(f"v_mul_f32 {ST[j][0]}, {f2h(-1.0/448)}, {ST[j][0]}")
    for j in range(5): P(f"v_mul_f32 {ST[j][1]}, {ST[j][0]}, {ST[j][0]}")
    for j in range(5): P(f"v_fma_f32 {ST[j][1]}, {sq[j]}, {S['t0']}, -{ST[j][1]}")
    for j in range(5): P(f"v_max_f32 {ST[j][1]}, 0, {ST[j][1]}")
    for j in range(5): P(f"v_add_f32 {ST[j][1]}, {f2h(1e-5)}, {ST[j][1]}")
    for j in range(5): P(f"v_rsq_f32 {ST[j][1]}, {ST[j][1]}")
    LO = "op_sel_hi:[1,0,1]"; HI = "op_sel:[0,1] op_sel_hi:[1,1]"
    def correct(A_, cs_, j, scale, dst):
        o = []
        for tt in range(2):
            a = A_[tt][j]
            o.append(f"v_pk_fma_f32 {a[0:2]}, {cs_[tt][0:2]}, {ST[j]}, {a[0:2]} {LO}")
            o.append(f"v_pk_fma_f32 {a[2:4]}, {cs_[tt][2:4]}, {ST[j]}, {a[2:4]} {LO}")
        if scale:
            for tt in range(2):
                a = A_[tt][j]
                o.append(f"v_pk_mul_f32 {a[0:2]}, {a[0:2]}, {ST[j]} {HI}")
                o.append(f"v_pk_mul_f32 {a[2:4]}, {a[2:4]}, {ST[j]} {HI}")
        for tt in range(2):
            a = A_[tt][j]
            o.append(f"v_cvt_pk_bf16_f32 {dst[2*tt]}, {a[0]}, {a[1]}")
            o.append(f"v_cvt_pk_bf16_f32 {dst[2*tt+1]}, {a[2]}, {a[3]}")
        return o
    for j in range(5): P.ext(correct(V, csV, j, True, V[0][j]))
    VB = 0
    av_w, av_r = t[2], t[3]
    P(f"s_mul_i32 {S['t1']}, {w}, 6400\nv_mul_u32_u24 {av_w}, 80, {n_}\nv_lshl_add_u32 {av_w}, {g_}, 4, {av_w}\nv_add_u32 {av_w}, {S['t1']}, {av_w}")
    P(f"v_lshrrev_b32 {av_r}, 2, {lane}\nv_mul_u32_u24 {av_r}, 80, {av_r}\nv_and_b32 {t[4]}, 3, {lane}\nv_lshl_add_u32 {av_r}, {t[4]}, 4, {av_r}\nv_add_u32 {av_r}, {S['t1']}, {av_r}")
    for j in range(5): P(f"ds_write_b128 {av_w}, {V[0][j]} offset:{VB + j*1280}")
    for j in range(5): P.ext(correct(K, csK, j, True, K[0][j]))
    Vt = [aa(10), aa(10)]
    P("s_waitcnt lgkmcnt(0)")
    for tt in range(2):
        for j in range(5): P(f"ds_read_b64_tr_b16 {Vt[tt][2*j:2*j+2]}, {av_r} offset:{VB + j*1280 + 8*tt}")
    for j in range(1, 5): P.ext(correct(Q, csQ, j, False, Q[0][j]))
    S0 = {j: K[1][j] for j in range(1, 5)}; S1 = {j: V[1][j] for j in range(1, 5)}
    for j in range(1, 5):
        P(f"v_mfma_f32_16x16x32_bf16 {S0[j]}, {K[0][j-1]}, {Q[0][j]}, {cfirst if j == 1 else cprev}")
        P(f"v_mfma_f32_16x16x32_bf16 {S1[j]}, {K[0][j]}, {Q[0][j]}, {ccur}")
    so = [t[4], t[5]]; sr = t[6]
    P(f"s_lshl_b32 {S['t0']}, {hp}, 1\ns_add_u32 {S['t0']}, {S['t0']}, {hh}\ns_mul_i32 {S['t1']}, {S['t0']}, 28")
    P(f"v_lshl_add_u32 {t[7]}, {g_}, 2, {S['t1']}")
    P(f"v_lshrrev_b32 {so[0]}, 4, {t[7]}\nv_lshlrev_b32 {so[0]}, 11, {so[0]}\nv_bfe_u32 {so[1]}, {t[7]}, 3, 1\nv_lshl_add_u32 {so[0]}, {so[1]}, 9, {so[0]}")
    P(f"v_bfe_u32 {so[1]}, {t[7]}, 2, 1\nv_lshl_add_u32 {so[0]}, {so[1]}, 3, {so[0]}\nv_lshl_add_u32 {so[0]}, {n_}, 4, {so[0]}")
    P(f"v_add_u32 {so[1]}, 2048, {so[0]}\nv_mov_b32 {t[7]}, 0x80000000\nv_cmp_eq_u32 vcc, 3, {g_}\nv_cndmask_b32 {so[1]}, {so[1]}, {t[7]}, vcc")
    P(f"s_lshl_b32 {S['t1']}, {S['e']}, 3\ns_add_u32 {S['t1']}, {S['t1']}, {S['rbl']}\ns_lshl_b32 {S['t1']}, {S['t1']}, 1\ns_add_u32 {S['t1']}, {S['t1']}, {half}")
    P(f"s_mul_i32 {S['b1']}, {S['t1']}, {A2_KS*2048}")
    P(f"s_lshl_b32 {S['t1']}, {S['t1']}, 8\ns_add_u32 {S['t1']}, {S['t1']}, {RSTD_OFF}\ns_cmp_eq_u32 {S['t0']}, 0\ns_cselect_b32 {S['t1']}, {S['t1']}, 0x80000000")
    P(f"v_lshl_add_u32 {sr}, {n_}, 2, {S['t1']}\nv_cmp_ne_u32 vcc, 0, {g_}\nv_cndmask_b32 {sr}, {sr}, {t[7]}, vcc")
    for j in range(1, 5): P(f"buffer_store_dword {ST[j][1]}, {sr}, {sWS}, 0 offen offset:{(j-1)*64}{SC}")
    cq = f2h(28 ** -0.5 * math.log2(math.e))
    P(f"v_cmp_lt_u32 vcc, 31, {lane}")
    def softmax(a, b, tm):
        o = []
        X, Y = S0[a], S0[b]
        c, m1, m2 = tm[0], tm[1], tm[2]
        o.append(f"v_cndmask_b32 {c}, {ST[a][1]}, {ST[b][1]}, vcc")
        for r in range(4): o.append(f"v_max_f32 {X[r]}, {X[r]}, {S1[a][r]}")
        for r in range(4): o.append(f"v_max_f32 {Y[r]}, {Y[r]}, {S1[b][r]}")
        o.append(f"v_mul_f32 {c}, {cq}, {c}")
        for r in range(4): o.append(f"v_permlane32_swap_b32 {X[r]}, {Y[r]}")
        for r in range(4): o.append(f"v_max_f32 {X[r]}, {X[r]}, {Y[r]}")
        o.append(f"v_max3_f32 {m1}, {X[0]}, {X[1]}, {X[2]}")
        o.append(f"v_max_f32 {m1}, {m1}, {X[3]}")
        o.append(f"v_mov_b32 {m2}, {m1}")
        o.append(f"v_permlane16_swap_b32 {m1}, {m2}")
        o.append(f"v_max_f32 {m1}, {m1}, {m2}")
        o.append(f"v_mul_f32 {m1}, {m1}, {c}")
        for r in range(4): o.append(f"v_fma_f32 {X[r]}, {X[r]}, {c}, -{m1}")
        for r in range(4): o.append(f"v_exp_f32 {X[r]}, {X[r]}")
        o.append(f"v_add_f32 {m1}, {X[0]}, {X[1]}")
        o.append(f"v_add_f32 {m2}, {X[2]}, {X[3]}")
        o.append(f"v_add_f32 {m1}, {m1}, {m2}")
        o.append(f"v_mov_b32 {m2}, {m1}")
        o.append(f"v_permlane16_swap_b32 {m1}, {m2}")
        o.append(f"v_add_f32 {m1}, {m1}, {m2}")
        o.append(f"v_rcp_f32 {m1}, {m1}")
        for r in range(4): o.append(f"v_mul_f32 {X[r]}, {X[r]}, {m1}")
        o.append(f"v_cvt_pk_bf16_f32 {X[0]}, {X[0]}, {X[1]}")
        o.append(f"v_cvt_pk_bf16_f32 {X[1]}, {X[2]}, {X[3]}")
        o.append(f"v_mov_b32 {Y[0]}, {X[0]}")
        o.append(f"v_mov_b32 {Y[1]}, {X[1]}")
        o.append(f"v_permlane32_swap_b32 {X[0]}, {Y[0]}")
        o.append(f"v_permlane32_swap_b32 {X[1]}, {Y[1]}")
        for Zr in (X, Y):
            o.append(f"v_and_b32 {Zr[2]}, {Zr[0]}, {mcur[0]}")
            o.append(f"v_and_b32 {Zr[3]}, {Zr[1]}, {mcur[1]}")
            o.append(f"v_and_b32 {Zr[0]}, {Zr[0]}, {mprev[0]}")
            o.append(f"v_and_b32 {Zr[1]}, {Zr[1]}, {mprev[1]}")
        return o
    sa_, sb_ = softmax(1, 2, dg[1]), softmax(3, 4, dg[2])
    for x_, y_ in zip(sa_, sb_): P(x_); P(y_)
    P("s_waitcnt lgkmcnt(0)")
    O = [{j: Q[1][j] for j in range(1, 5)}, {j: V[1][j] for j in range(1, 5)}]
    for j in range(1, 5):
        for tt in range(2):
            P(f"v_mfma_f32_16x16x32_bf16 {O[tt][j]}, {Vt[tt][2*(j-1):2*(j-1)+4]}, {S0[j]}, 0")
    for j in range(1, 5):
        for tt in range(2):
            o_ = O[tt][j]
            P(f"v_cvt_pk_bf16_f32 {o_[0]}, {o_[0]}, {o_[1]}\nv_cvt_pk_bf16_f32 {o_[1]}, {o_[2]}, {o_[3]}")
            jt = j - 1
            P(f"buffer_store_dwordx2 {o_[0:2]}, {so[tt]}, {sWS}, {S['b1']} offen offset:{(jt>>1)*1024 + (jt&1)*256}{SC}")
    stamp(P, S, 4)
    if OPT["stamps"]:
        P("s_waitcnt vmcnt(0)"); stamp(P, S, 5)
    stamp_flush(P, S, t, 0, 6, sWS)
    return va.hi, aa.hi

def k2():
    import struct
    f2h = lambda x: hex(struct.unpack("<I", struct.pack("<f", x))[0])
    P = Prog()
    sa = Alloc("s", 4, 100); va = Alloc("v", 3, 256); aa = Alloc("a", 0, 256)
    S = {}
    ptr = sa(16, 4); wsp = sa(2)
    sA, sB1, sB2, sX, sO = sa(4), sa(4), sa(4), sa(4), sa(4)
    for n in "w T cb t0 t1 t2 ao bo bo2 bm0".split(): S[n] = sa()
    pc = sa(2)
    S['st'] = sa(16, 2)
    L = OPT["L2"]; NA = L + 1; NB = L + 1
    RED = 4 * NB * 2048; SAR = RED + 12 * 4096
    LDS = SAR + 16384
    lane = R("v", 0); w = S['w']
    t = [va() for _ in range(6)]
    vA = [va(), va()]; vB = [va(), va()]; rB = [va(), va()]
    acc = [[va(16, 4) for _ in range(2)] for _ in range(2)]
    xv = [va(2) for _ in range(4)]; rstd = va()
    aring = [[aa(4) for _ in range(2)] for _ in range(NA)]
    bf = [[aa(4) for _ in range(2)] for _ in range(2)]
    P(f"{NAME}_k2_kernel:")
    stamp(P, S, 0)
    P("s_cmp_ge_u32 s2, 224\ns_cbranch_scc1 K2_END")
    P(f"s_load_dwordx16 {ptr}, s[0:1], 0\ns_load_dwordx2 {wsp}, s[0:1], 64")
    P(f"s_getpc_b64 {pc}\nv_lshlrev_b32 v1, 5, v0\nglobal_load_dword v2, v1, {pc}")
    P(f"v_lshrrev_b32 v1, 6, v0\nv_and_b32 v0, 63, v0\nv_readfirstlane_b32 {w}, v1")
    P(f"s_and_b32 {S['t0']}, s2, 7\ns_lshl_b32 {S['t0']}, {S['t0']}, 2\ns_bfe_u32 {S['t1']}, s2, 0x20003\ns_add_u32 {S['T']}, {S['t0']}, {S['t1']}\ns_lshr_b32 {S['cb']}, s2, 5")
    P(f"s_mul_i32 {S['ao']}, {S['T']}, {A2_KS}\ns_mul_i32 {S['t0']}, {w}, 35\ns_add_u32 {S['ao']}, {S['ao']}, {S['t0']}\ns_lshl_b32 {S['ao']}, {S['ao']}, 11")
    P(f"s_and_b32 {S['t1']}, {w}, 1\ns_lshl_b32 {S['t1']}, {S['t1']}, 10\nv_lshl_add_u32 {vA[0]}, {lane}, 4, {S['t1']}\nv_xor_b32 {vA[1]}, 1024, {vA[0]}")
    P(f"s_mul_i32 {S['bo2']}, {S['t0']}, 14336\ns_sub_u32 {S['bo']}, {S['bo2']}, {28*14336}\ns_cmp_eq_u32 {w}, 0\ns_cselect_b32 {S['bo']}, 0, {S['bo']}")
    P(f"v_lshrrev_b32 {t[0]}, 3, {lane}\nv_mul_u32_u24 {t[0]}, 896, {t[0]}\nv_bfe_u32 {t[1]}, {lane}, 4, 1\nv_lshlrev_b32 {t[1]}, 2, {t[1]}\nv_and_b32 {t[2]}, 7, {lane}\nv_xor_b32 {t[1]}, {t[1]}, {t[2]}")
    P(f"s_lshl_b32 {S['t1']}, {S['cb']}, 7\nv_lshl_add_u32 {t[0]}, {t[1]}, 4, {t[0]}\nv_add_u32 {vB[0]}, {S['t1']}, {t[0]}\nv_add_u32 {vB[1]}, 7168, {vB[0]}")
    P(f"s_mul_i32 {S['bm0']}, {w}, {NB*2048}")
    P("s_waitcnt lgkmcnt(0)")
    srd(P, sA, wsp[0], wsp[1], (STAMP_OFF + (1 << 20)) if (OPT["stamps"] or OPT["spin"]) else WS_USED)
    srd(P, sB2, ptr[10], ptr[11], 1792 * 896)
    P(f"s_cmp_eq_u32 {w}, 0\ns_cselect_b32 {sB1[0]}, {ptr[4]}, {ptr[10]}\ns_cselect_b32 {sB1[1]}, {ptr[5]}, {ptr[11]}\ns_cselect_b32 {sB1[2]}, {448*896}, {sB2[2]}\ns_mov_b32 {sB1[3]}, 0x20000")
    vm = VM(); vm.issue(("pf", -9))
    def loads(tt):
        o = []
        sB = sB1 if tt < 28 else sB2
        bo = S['bo'] if tt < 28 else S['bo2']
        for j in range(2):
            o.append(f"s_add_u32 m0, {S['bm0']}, {(tt % NB)*2048 + j*1024}\nbuffer_load_dwordx4 {vB[j]}, {sB}, {bo} offen lds"
                     + (f"\ns_add_u32 {bo}, {bo}, 14336" if j == 1 else ""))
            vm.issue(("d", tt))
        for j in range(2):
            o.append(f"buffer_load_dwordx4 {aring[tt % NA][j]}, {vA[j]}, {sA}, {S['ao']} offen offset:{(tt&1)*2048}{SC}"
                     + (f"\ns_add_u32 {S['ao']}, {S['ao']}, 4096" if (j == 1 and tt & 1) else ""))
            vm.issue(("d", tt))
        return o
    for tt in range(min(L, 3)): P.ext(loads(tt))
    srd(P, sX, ptr[0], ptr[1], XBYTES)
    srd(P, sO, ptr[12], ptr[13], XBYTES)
    n_, hf = t[3], t[4]
    vO = va()
    P(f"v_and_b32 {n_}, 31, {lane}\nv_lshrrev_b32 {hf}, 5, {lane}")
    P(f"s_lshl_b32 {S['t0']}, {S['T']}, 1\ns_and_b32 {S['t1']}, {w}, 1\ns_add_u32 {S['t0']}, {S['t0']}, {S['t1']}\ns_lshl_b32 {S['t0']}, {S['t0']}, 5")
    P(f"s_lshl_b32 {S['t1']}, {S['t0']}, 2\ns_add_u32 {S['t1']}, {S['t1']}, {RSTD_OFF}\nv_lshl_add_u32 {t[0]}, {n_}, 2, {S['t1']}")
    P(f"buffer_load_dword {rstd}, {t[0]}, {sA}, 0 offen{SC}"); vm.issue(("e", 99))
    P(f"s_and_b32 {S['t1']}, {S['t0']}, 1023\ns_mul_i32 {S['t1']}, {S['t1']}, 1792\ns_lshr_b32 {S['t0']}, {S['t0']}, 10\ns_mul_i32 {S['t0']}, {S['t0']}, 896\ns_add_u32 {S['t0']}, {S['t0']}, {S['t1']}")
    P(f"s_lshl_b32 {S['t1']}, {S['cb']}, 7\ns_add_u32 {S['t0']}, {S['t0']}, {S['t1']}\ns_lshr_b32 {S['t1']}, {w}, 1\ns_lshl_b32 {S['t1']}, {S['t1']}, 6\ns_add_u32 {S['t0']}, {S['t0']}, {S['t1']}")
    P(f"v_mul_u32_u24 {t[0]}, 1792, {n_}\nv_add_u32 {t[0]}, {S['t0']}, {t[0]}\nv_lshl_add_u32 {vO}, {hf}, 4, {t[0]}\nv_lshl_add_u32 {t[0]}, {hf}, 3, {t[0]}")
    for a in range(4):
        P(f"buffer_load_dwordx2 {xv[a]}, {t[0]}, {sX}, 0 offen offset:{a*16}"); vm.issue(("e", 99))
    P(f"v_bfe_u32 {t[0]}, {lane}, 2, 2\nv_lshl_add_u32 {t[0]}, {hf}, 3, {t[0]}\nv_lshlrev_b32 {t[0]}, 7, {t[0]}")
    P(f"v_bfe_u32 {t[1]}, {lane}, 3, 1\nv_lshl_add_u32 {t[0]}, {t[1]}, 6, {t[0]}\nv_bfe_u32 {t[1]}, {lane}, 4, 1\nv_lshl_add_u32 {t[0]}, {t[1]}, 5, {t[0]}")
    P(f"v_and_b32 {t[1]}, 3, {lane}\nv_lshl_add_u32 {t[0]}, {t[1]}, 3, {t[0]}\nv_xor_b32 {t[0]}, {S['t1']}, {t[0]}\nv_add_u32 {rB[0]}, {S['bm0']}, {t[0]}\nv_xor_b32 {rB[1]}, 64, {rB[0]}")
    vL = va()
    P(f"v_lshlrev_b32 {vL}, 4, {lane}")
    for tt in range(min(L, 3), L): P.ext(loads(tt))
    def trs(tt):
        o = []
        for f in range(2):
            o.append(f"ds_read_b64_tr_b16 {bf[tt&1][f][0:2]}, {rB[f]} offset:{(tt % NB)*2048}")
            o.append(f"ds_read_b64_tr_b16 {bf[tt&1][f][2:4]}, {rB[f]} offset:{(tt % NB)*2048 + 512}")
        return o
    P(vm.wait_for(lambda q: q[0] == "d" and q[1] <= 0))
    stamp(P, S, 1)
    P.ext(trs(0))
    for tt in range(35):
        if tt + 1 < 35:
            P(vm.wait_for(lambda q: q[0] == "d" and q[1] <= tt + 1))
            P.ext(trs(tt + 1))
            P("s_waitcnt lgkmcnt(4)")
        else:
            P("s_waitcnt lgkmcnt(0)")
        if tt == 28:
            P(f"s_cmp_lg_u32 {w}, 0\ns_cbranch_scc1 K2_NOS\ns_nop 7")
            for f in range(2):
                for p in range(2):
                    for a in range(4): P(f"ds_write_b128 {vL}, {acc[f][p][4*a:4*a+4]} offset:{(2*f+p)*4096 + a*1024 + SAR - 65536*(SAR >= 65536)}" if SAR + 16384 <= 65536 else
                                         f"ds_write_b128 {t[5]}, {acc[f][p][4*a:4*a+4]} offset:{(2*f+p)*4096 + a*1024}")
            P("s_waitcnt lgkmcnt(0)")
            for f in range(2):
                for p in range(2):
                    for a in range(16): P(f"v_mov_b32 {acc[f][p][a]}, 0")
            P("s_nop 1\nK2_NOS:")
        if tt == 0: P(f"v_add_u32 {t[5]}, {SAR}, {vL}")
        m = [f"v_mfma_f32_32x32x16_bf16 {acc[f][p]}, {bf[tt&1][f]}, {aring[tt % NA][p]}, {acc[f][p] if tt else 0}" for f in range(2) for p in range(2)]
        ld = loads(tt + L) if tt + L < 35 else []
        P.ext(merge(m, (ld, 0, 4)))
    stamp(P, S, 2)
    for q in range(1, 4):
        P(f"s_xor_b32 {S['t0']}, {w}, {q}\ns_mul_i32 {S['t0']}, {S['t0']}, 12288\ns_add_u32 {S['t0']}, {S['t0']}, {RED + (q-1)*4096}\nv_add_u32 {t[q-1]}, {S['t0']}, {vL}")
    for q in range(1, 4):
        for a in range(4): P(f"ds_write_b128 {t[q-1]}, {acc[q>>1][q&1][4*a:4*a+4]} offset:{a*1024}")
    P(f"s_mul_i32 {S['t0']}, {w}, 12288\ns_add_u32 {S['t0']}, {S['t0']}, {RED}\ns_lshl_b32 {S['t1']}, {w}, 12")
    P(f"v_add_u32 {t[3]}, {S['t0']}, {vL}\nv_add_u32 {t[4]}, {S['t1']}, {t[5]}")
    P("s_waitcnt lgkmcnt(0)\ns_barrier")
    sv = va(16, 4)
    parts = [acc[0][1], acc[1][0], acc[1][1]]
    for a in range(4):
        for i in range(3): P(f"ds_read_b128 {parts[i][4*a:4*a+4]}, {t[3]} offset:{i*4096 + a*1024}")
        P(f"ds_read_b128 {sv[4*a:4*a+4]}, {t[4]} offset:{a*1024}")
    P("s_waitcnt vmcnt(0)")
    kk = va(2)
    P(f"v_mov_b32 {kk[0]}, {rstd}\nv_mul_f32 {kk[1]}, {f2h(-math.log2(math.e))}, {rstd}")
    F = acc[0][0]
    Rr = va(8, 4)
    for a in range(4):
        P(f"s_waitcnt lgkmcnt({12 - 4*a})")
        f4 = F[4*a:4*a+4]; e4 = parts[0][4*a:4*a+4]; s4 = sv[4*a:4*a+4]; x4 = parts[1][4*a:4*a+4]
        for h in range(2):
            P(f"v_pk_add_f32 {f4[2*h:2*h+2]}, {f4[2*h:2*h+2]}, {parts[0][4*a+2*h:4*a+2*h+2]}")
            P(f"v_pk_add_f32 {parts[1][4*a+2*h:4*a+2*h+2]}, {parts[1][4*a+2*h:4*a+2*h+2]}, {parts[2][4*a+2*h:4*a+2*h+2]}")
        for h in range(2):
            P(f"v_pk_add_f32 {f4[2*h:2*h+2]}, {f4[2*h:2*h+2]}, {parts[1][4*a+2*h:4*a+2*h+2]}")
        for h in range(2):
            P(f"v_pk_mul_f32 {e4[2*h:2*h+2]}, {f4[2*h:2*h+2]}, {kk} op_sel:[0,1] op_sel_hi:[1,1]")
            P(f"v_pk_mul_f32 {f4[2*h:2*h+2]}, {f4[2*h:2*h+2]}, {kk} op_sel_hi:[1,0]")
        for r in range(4): P(f"v_exp_f32 {e4[r]}, {e4[r]}")
        for h in range(2): P(f"v_pk_mul_f32 {f4[2*h:2*h+2]}, {f4[2*h:2*h+2]}, {s4[2*h:2*h+2]}")
        for r in range(4): P(f"v_add_f32 {e4[r]}, 1.0, {e4[r]}")
        for r in range(4): P(f"v_rcp_f32 {e4[r]}, {e4[r]}")
        for h in range(2):
            P(f"v_lshlrev_b32 {x4[2*h]}, 16, {xv[a][h]}\nv_and_b32 {x4[2*h+1]}, 0xffff0000, {xv[a][h]}")
        for h in range(2): P(f"v_pk_fma_f32 {f4[2*h:2*h+2]}, {f4[2*h:2*h+2]}, {e4[2*h:2*h+2]}, {x4[2*h:2*h+2]}")
        P(f"v_cvt_pk_bf16_f32 {Rr[2*a]}, {f4[0]}, {f4[1]}\nv_cvt_pk_bf16_f32 {Rr[2*a+1]}, {f4[2]}, {f4[3]}")
        if a & 1:
            p = a >> 1
            P(f"v_permlane32_swap_b32 {Rr[4*p]}, {Rr[4*p+2]}\nv_permlane32_swap_b32 {Rr[4*p+1]}, {Rr[4*p+3]}")
            P(f"buffer_store_dwordx4 {Rr[4*p:4*p+4]}, {vO}, {sO}, 0 offen offset:{32*p}")
    if OPT["spin"]:
        P(f"s_cmp_lg_u32 s2, 0\ns_cbranch_scc1 SPN2\nv_mov_b32 {t[0]}, {WS_USED}\nbuffer_load_dword {t[1]}, {t[0]}, {sA}, 0 offen\ns_waitcnt vmcnt(0)\nv_readfirstlane_b32 s92, {t[1]}")
        P(f"SPN1:\ns_memrealtime s[90:91]\ns_waitcnt lgkmcnt(0)\ns_sub_u32 s93, s90, s92\ns_cmp_lt_u32 s93, {OPT['spin']}\ns_cbranch_scc1 SPN1\nSPN2:")
    stamp(P, S, 3)
    if OPT["stamps"]:
        P("s_waitcnt vmcnt(0)"); stamp(P, S, 4)
    stamp_flush(P, S, t, 1, 5, sA)
    P("K2_END:\ns_endpgm")
    return P.l, va.hi, aa.hi, max(sa.hi, 96), LDS

def main():
    l1, nv1, na1, ns1 = k1()
    l2, nv2, na2, ns2, lds2 = k2()
    l1, p1 = pad_hazards(l1); l2, p2 = pad_hazards(l2)
    out = []
    out.append(f"; @launch kernel={NAME}_k1_kernel grid=(256,1,1) block=(256,1,1) lds=114688")
    out.append(f"; @launch kernel={NAME}_k2_kernel grid=(224,1,1) block=(256,1,1) lds={lds2}")
    for _ in range(OPT["empty"]): out.append(f"; @launch kernel={NAME}_e_kernel grid=(256,1,1) block=(256,1,1) lds=0")
    out.append('.amdgcn_target "amdgcn-amd-amdhsa--gfx950"\n.text')
    for nm, l in ((f"{NAME}_k1_kernel", l1), (f"{NAME}_k2_kernel", l2)):
        out.append(f".globl {nm}\n.p2align 8\n.type {nm},@function")
        out.extend(l)
    if OPT["empty"]: out.append(f".globl {NAME}_e_kernel\n.p2align 8\n.type {NAME}_e_kernel,@function\n{NAME}_e_kernel:\ns_endpgm")
    out.append(".fill 8192, 4, 0xbf800000")
    out.append(kernel_desc(f"{NAME}_k1_kernel", nv1, na1, ns1))
    out.append(kernel_desc(f"{NAME}_k2_kernel", nv2, na2, ns2))
    if OPT["empty"]: out.append(kernel_desc(f"{NAME}_e_kernel", 8, 0, 16))
    print("\n".join(out))
main()
```

```python
import sys, math, struct
from asmlib import *

NAME = "recurrent_scan__sliding_local_dilated__dense_activation_relu__prompt"
OPT = dict(rot=1, pro=20, rate=8, LA=5, stamps=0, b2start=10, b2rate=6, pfm=1, rot2=1, post=8, spin=0)
for a in sys.argv[1:]:
    k, v = a.split("="); assert k in OPT, k; OPT[k] = int(v)

f2h = lambda x: hex(struct.unpack("<I", struct.pack("<f", x))[0])
A2_KS = 140
RSTD_OFF = 2048 * 2240 * 2
FLAG_OFF = RSTD_OFF + 8 * 8192
WS_USED = FLAG_OFF + 256 * 128
STAMP_OFF = 16 << 20
WS_REC = (STAMP_OFF + (1 << 20)) if (OPT["stamps"] or OPT["spin"]) else WS_USED
XBYTES = 2048 * 896
ONES = "0x3f803f80"; NINF = "0xff800000"; BIG = "0x80000000"
NREG, NRING, NBIG = 16, 6, 13
RING0 = 114688; RINGW = NRING * 2048
BIGW = 28672
SCR = NBIG * 2048
SPIN_MAX = 1 << 16

def srd(P, d, lo, hi, n):
    P(f"s_mov_b32 {d[0]}, {lo}\ns_mov_b32 {d[1]}, {hi}\ns_mov_b32 {d[2]}, {n}\ns_mov_b32 {d[3]}, 0x20000")

class VM:
    def __init__(self): self.q = []
    def issue(self, tag): self.q.append(tag)
    def cnt(self, pred):
        last = -1
        for i, t in enumerate(self.q):
            if pred(t): last = i
        n = len(self.q) - 1 - last
        return min(n, 63)
    def wait(self, pred): return f"s_waitcnt vmcnt({self.cnt(pred)})"

class Ctx: pass

def stamp(C, idx):
    if OPT["stamps"]:
        C.P(f"{'s_memrealtime' if OPT['stamps'] == 1 else 's_memtime'} {C.stp[idx]}")

def stamp_flush(C, n):
    if not OPT["stamps"]: return
    P, S = C.P, C.S
    P("s_waitcnt lgkmcnt(0)")
    P(f"s_lshl_b32 {S['t0']}, s2, 2\ns_add_u32 {S['t0']}, {S['t0']}, {S['w']}\ns_lshl_b32 {S['t0']}, {S['t0']}, 6\ns_add_u32 {S['t0']}, {S['t0']}, {STAMP_OFF}")
    P(f"v_mov_b32 v1, {S['t0']}")
    for i in range(n):
        P(f"v_mov_b32 v2, {C.stp[i][0]}\nbuffer_store_dword v2, v1, {C.sWS}, 0 offen offset:{4*i}")

def adv(reg, step, wrap, start=0):
    return f"s_add_u32 {reg}, {reg}, {step}\ns_cmp_eq_u32 {reg}, {wrap}\ns_cselect_b32 {reg}, {start}, {reg}"

def schedule(items, pro, rate, nsteps):
    sched = {s: [] for s in range(-1, nsteps)}
    i = 0
    for s in range(-1, nsteps):
        cap = pro if s == -1 else rate
        n = 0
        while i < len(items) and items[i]["free"] <= s and (n < cap or items[i]["need"] - 2 <= s):
            sched[s].append(i); i += 1; n += 1
    assert i == len(items)
    return sched

class Lazy:
    def __init__(self, fn): self.fn = fn

def emit(C, seq):
    for x in seq:
        C.P(x.fn() if isinstance(x, Lazy) else x)

class B2:
    def __init__(self, C):
        self.C = C
        self.loaded = 0
        self.moved = 0
        self.big = 0
    def lds(self, t):
        if t < NREG + NRING: return ("r", (t % NRING) * 2048)
        return ("b", (t - NREG - NRING) * 2048)
    def dma(self, t):
        C = self.C; S = C.S
        kind, off = self.lds(t)
        base = S['rm0'] if kind == "r" else S['bm0']
        ring = t < NREG + NRING
        if t < 28:
            sB = C.sB2; so = S['bo'] if ring else S['bo_b']
        else:
            sB = C.sBo; so = S['bo_s']
        out = []
        for j in range(2):
            out.append(f"s_add_u32 m0, {base}, {off + j*1024}")
            def ld(j=j):
                C.vm.issue(("b2", t))
                s = f"buffer_load_dwordx4 {C.vB[j]}, {sB}, {so} offen lds"
                if j == 1:
                    s += "\n" + (adv(so, 14336, S['bend'], S['bbeg']) if t < 28 else f"s_add_u32 {so}, {so}, 14336")
                return s
            out.append(Lazy(ld))
        return out
    def tr(self, t, dst):
        C = self.C
        kind, off = self.lds(t)
        rb = C.rBr if kind == "r" else C.rBb
        o = []
        for f in range(2):
            o.append(f"ds_read_b64_tr_b16 {dst[f][0:2]}, {rb[f]} offset:{off}")
            o.append(f"ds_read_b64_tr_b16 {dst[f][2:4]}, {rb[f]} offset:{off + 512}")
        return o
    def move(self, t):
        C = self.C
        o = self.tr(t, C.breg[t])
        return [Lazy(lambda: C.vm.wait(lambda q: q == ("b2", t)))] + o

def p2_setup(C):
    P, S, t, lane, w = C.P, C.S, C.t, C.lane, C.S['w']
    P(f"s_and_b32 {S['t0']}, s2, 7\ns_lshl_b32 {S['t0']}, {S['t0']}, 2\ns_bfe_u32 {S['t1']}, s2, 0x20003\ns_add_u32 {S['T']}, {S['t0']}, {S['t1']}\ns_lshr_b32 {S['cb2']}, s2, 5")
    if OPT["rot2"]:
        P(f"s_mul_i32 {S['t1']}, {S['t1']}, 7\ns_lshl_b32 {S['t0']}, {S['cb2']}, 2\ns_add_u32 {S['t0']}, {S['t0']}, {S['t1']}")
        P(f"s_sub_u32 {S['t1']}, {S['t0']}, 28\ns_cmp_ge_u32 {S['t0']}, 28\ns_cselect_b32 {S['t0']}, {S['t1']}, {S['t0']}")
    else:
        P(f"s_mov_b32 {S['t0']}, 0")
    P(f"s_mul_i32 {S['bbeg']}, {w}, {28*14336}\ns_add_u32 {S['bend']}, {S['bbeg']}, {28*14336}\ns_mul_i32 {S['t1']}, {S['t0']}, 14336\ns_add_u32 {S['bo']}, {S['bbeg']}, {S['t1']}")
    P(f"s_add_u32 {S['bo_b']}, {S['bo']}, {(NREG+NRING)*14336}\ns_sub_u32 {S['t1']}, {S['bo_b']}, {28*14336}\ns_cmp_ge_u32 {S['bo_b']}, {S['bend']}\ns_cselect_b32 {S['bo_b']}, {S['t1']}, {S['bo_b']}")
    P(f"s_mul_i32 {S['bo_s']}, {w}, {7*14336}")
    P(f"s_mul_i32 {S['t1']}, {S['T']}, {A2_KS}\ns_mul_i32 {S['t2']}, {w}, 7\ns_add_u32 {S['ao_s']}, {S['t1']}, {S['t2']}\ns_lshl_b32 {S['ao_s']}, {S['ao_s']}, 11")
    P(f"s_mul_i32 {S['t2']}, {w}, 28\ns_add_u32 {S['t1']}, {S['t1']}, {S['t2']}\ns_add_u32 {S['t1']}, {S['t1']}, 28\ns_lshl_b32 {S['abeg']}, {S['t1']}, 11\ns_add_u32 {S['aend']}, {S['abeg']}, {28*2048}")
    P(f"s_lshl_b32 {S['t0']}, {S['t0']}, 11\ns_add_u32 {S['ao']}, {S['abeg']}, {S['t0']}")
    P(f"s_and_b32 {S['t1']}, {w}, 1\ns_lshl_b32 {S['t1']}, {S['t1']}, 10\nv_lshl_add_u32 {C.vA[0]}, {lane}, 4, {S['t1']}\nv_xor_b32 {C.vA[1]}, 1024, {C.vA[0]}")
    P(f"v_lshrrev_b32 {t[0]}, 3, {lane}\nv_mul_u32_u24 {t[0]}, 896, {t[0]}\nv_bfe_u32 {t[1]}, {lane}, 4, 1\nv_lshlrev_b32 {t[1]}, 2, {t[1]}\nv_and_b32 {t[2]}, 7, {lane}\nv_xor_b32 {t[1]}, {t[1]}, {t[2]}")
    P(f"s_lshl_b32 {S['t1']}, {S['cb2']}, 7\nv_lshl_add_u32 {t[0]}, {t[1]}, 4, {t[0]}\nv_add_u32 {C.vB[0]}, {S['t1']}, {t[0]}\nv_add_u32 {C.vB[1]}, 7168, {C.vB[0]}")
    P(f"s_mul_i32 {S['rm0']}, {w}, {RINGW}\ns_add_u32 {S['rm0']}, {S['rm0']}, {RING0}\ns_mul_i32 {S['bm0']}, {w}, {BIGW}")
    P(f"s_cmp_lt_u32 s2, 224\ns_cselect_b32 {S['t0']}, {1792*896}, 0\ns_cselect_b32 {S['t1']}, {448*896}, 0")
    srd(P, C.sB2, C.ptr[10], C.ptr[11], S['t0'])
    srd(P, C.sBo, C.ptr[4], C.ptr[5], S['t1'])
    P(f"s_lshr_b32 {S['t1']}, {w}, 1\ns_lshl_b32 {S['t1']}, {S['t1']}, 6")
    P(f"v_bfe_u32 {t[0]}, {lane}, 2, 2\nv_lshrrev_b32 {t[1]}, 5, {lane}\nv_lshl_add_u32 {t[0]}, {t[1]}, 3, {t[0]}\nv_lshlrev_b32 {t[0]}, 7, {t[0]}")
    P(f"v_bfe_u32 {t[1]}, {lane}, 3, 1\nv_lshl_add_u32 {t[0]}, {t[1]}, 6, {t[0]}\nv_bfe_u32 {t[1]}, {lane}, 4, 1\nv_lshl_add_u32 {t[0]}, {t[1]}, 5, {t[0]}")
    P(f"v_and_b32 {t[1]}, 3, {lane}\nv_lshl_add_u32 {t[0]}, {t[1]}, 3, {t[0]}\nv_xor_b32 {t[0]}, {S['t1']}, {t[0]}")
    P(f"v_add_u32 {C.rBr[0]}, {S['rm0']}, {t[0]}\nv_xor_b32 {C.rBr[1]}, 64, {C.rBr[0]}\nv_add_u32 {C.rBb[0]}, {S['bm0']}, {t[0]}\nv_xor_b32 {C.rBb[1]}, 64, {C.rBb[0]}")
    P(f"s_lshr_b32 {S['t0']}, {S['T']}, 4\ns_lshl_b32 {S['t0']}, {S['t0']}, 2\ns_add_u32 {S['t0']}, {S['t0']}, {w}\ns_bfe_u32 {S['t1']}, {S['T']}, 0x30001\ns_lshl_b32 {S['t1']}, {S['t1']}, 3\ns_add_u32 {S['t0']}, {S['t0']}, {S['t1']}")
    P(f"s_lshl_b32 {S['t0']}, {S['t0']}, 7\ns_add_u32 {S['t0']}, {S['t0']}, {FLAG_OFF}\nv_and_b32 {t[0]}, 3, {lane}\nv_lshl_add_u32 {C.vF}, {t[0]}, 13, {S['t0']}")
    srd(P, C.sD, C.ptr[14], C.ptr[15], 256)
    P(f"v_mov_b32 {C.vZ}, 0")
    P(f"s_or_b32 {S['t0']}, s2, {w}\ns_cmp_lg_u32 {S['t0']}, 0\ns_cbranch_scc1 NON_{C.role}")
    P(f"s_memrealtime {C.tm}\ns_waitcnt lgkmcnt(0)\ns_or_b32 {S['t0']}, {C.tm[0]}, 1\nv_mov_b32 {t[0]}, {S['t0']}\nbuffer_store_dword {t[0]}, {C.vZ}, {C.sD}, 0 offen sc1")
    P(f"NON_{C.role}:")
    if OPT["pfm"]:
        P(f"s_lshl_b32 {S['t0']}, s2, 2\ns_add_u32 {S['t0']}, {S['t0']}, {w}\ns_sub_u32 {S['t1']}, {S['t0']}, 784\ns_cmp_lt_u32 {S['t0']}, 784\ns_cselect_b32 {S['t0']}, {S['t0']}, {S['t1']}")
        P(f"s_cselect_b32 {C.sP[0]}, {C.ptr[10]}, {C.ptr[4]}\ns_cselect_b32 {C.sP[1]}, {C.ptr[11]}, {C.ptr[5]}\ns_mov_b32 {C.sP[2]}, {448*896}\ns_cselect_b32 {C.sP[2]}, {1792*896}, {C.sP[2]}\ns_mov_b32 {C.sP[3]}, 0x20000")
        P(f"s_lshl_b32 {S['t0']}, {S['t0']}, 11\nv_and_b32 {t[0]}, 15, {lane}\nv_lshl_add_u32 {C.vPF}, {t[0]}, 7, {S['t0']}")

def run_loop(C, items, emit_item, sched, reads, mfmas, b2, nsteps=14):
    P, S, vm = C.P, C.S, C.vm
    P(vm.wait(lambda q: q[0] == "d" and q[1] <= 0) + " lgkmcnt(0)")
    P("s_barrier")
    stamp(C, 1)
    P.ext(reads(0))
    pend_moves = []
    for s in range(nsteps):
        if s + 1 < nsteps:
            P(vm.wait(lambda q: q[0] == "d" and q[1] <= s + 1) + " lgkmcnt(0)")
        else:
            P("s_waitcnt lgkmcnt(0)")
        P("s_barrier")
        if s == 2: stamp(C, 2)
        m = mfmas(s)
        rd = reads(s + 1) if s + 1 < nsteps else []
        dm = []
        for i in sched[s]: dm.extend(emit_item(i))
        if s == 1 and OPT["pfm"]:
            def pf():
                vm.issue(("pf", 0)); return f"buffer_load_dword v2, {C.vPF}, {C.sP}, 0 offen"
            dm.append(Lazy(pf))
        if s == 6:
            def nl():
                vm.issue(("nonce", 0)); return f"buffer_load_dword {C.vN}, {C.vZ}, {C.sD}, 0 offen sc1"
            dm.append(Lazy(nl))
        mv = []
        if s >= OPT["b2start"]:
            free_upto = b2.moved + NRING
            nmv = 0
            while b2.moved < min(b2.loaded - 1, NREG) and nmv < 3:
                mv.extend(b2.move(b2.moved)); b2.moved += 1; nmv += 1
            n = sum(1 for x in dm if isinstance(x, Lazy))
            while n + 2 <= OPT["b2rate"] + 1 and b2.loaded < min(free_upto, NREG + NRING):
                dm.extend(b2.dma(b2.loaded)); b2.loaded += 1; n += 2
            if s == nsteps - 1:
                while n + 2 <= OPT["b2rate"] + 1 and b2.big < C.big_early:
                    dm.extend(b2.dma(NREG + NRING + b2.big)); b2.big += 1; n += 2
        emit(C, merge(m, (rd, 0, (len(m) * 2) // 3), (dm, 0, len(m)), (mv, len(m) // 2, len(m))))
    stamp(C, 3)

def publish_and_p2(C, b2):
    P, S, vm, t, lane, w = C.P, C.S, C.vm, C.t, C.lane, C.S['w']
    role = C.role
    stamp(C, 4)
    def next_b2():
        if b2.big < NBIG:
            o = b2.dma(NREG + NRING + b2.big); b2.big += 1; return o
        return None
    n = 0
    while n < OPT["post"]:
        o = next_b2()
        if o is None: break
        emit(C, o); n += 2
    P(vm.wait(lambda q: q[0] in ("st", "nonce")))
    P(f"v_readfirstlane_b32 {S['tag']}, {C.vN}\ns_mov_b32 {S['t2']}, 0\ns_cmp_lg_u32 {S['tag']}, 0\ns_cbranch_scc1 TAGOK_{role}")
    P(f"TAGLP_{role}:\nbuffer_load_dword {C.vN}, {C.vZ}, {C.sD}, 0 offen sc1\ns_waitcnt vmcnt(0)\nv_readfirstlane_b32 {S['tag']}, {C.vN}\ns_add_u32 {S['t2']}, {S['t2']}, 1")
    P(f"s_cmp_ge_u32 {S['t2']}, {SPIN_MAX}\ns_cbranch_scc1 TAGOK_{role}\ns_cmp_eq_u32 {S['tag']}, 0\ns_cbranch_scc1 TAGLP_{role}\nTAGOK_{role}:")
    P("s_barrier")
    P(f"s_lshl_b32 {S['t0']}, s2, 7\ns_add_u32 {S['t0']}, {S['t0']}, {FLAG_OFF}\ns_cmp_eq_u32 {w}, 0\ns_cselect_b32 {S['t0']}, {S['t0']}, {BIG}")
    P(f"v_mov_b32 {t[0]}, {S['t0']}\nv_mov_b32 {t[1]}, {S['tag']}\ns_mov_b64 exec, 1\nbuffer_store_dword {t[1]}, {t[0]}, {C.sWS}, 0 offen sc1\ns_mov_b64 exec, -1")
    vm.issue(("flag", 0))
    stamp(C, 5)
    if role == "Q":
        P(f"s_cmp_ge_u32 s2, 224\ns_cbranch_scc1 FIN_{role}")
    while True:
        did = False
        if b2.moved < min(b2.loaded, NREG):
            emit(C, b2.move(b2.moved)); b2.moved += 1; did = True
        o = next_b2()
        if o is not None:
            emit(C, o); did = True
        if b2.loaded < NREG + NRING and b2.loaded < b2.moved + NRING:
            P("s_waitcnt lgkmcnt(0)")
            emit(C, b2.dma(b2.loaded)); b2.loaded += 1; did = True
        if not did: break
    assert b2.moved == NREG and b2.loaded == NREG + NRING and b2.big == NBIG
    va = Alloc("v", C.vbase, 256)
    accf = [[va(16, 4) for _ in range(2)] for _ in range(2)]
    accs = [[va(16, 4) for _ in range(2)] for _ in range(2)]
    xv = [va(2) for _ in range(4)]; rstd = va(); vO = va(); vL = va(); fl = va(); kk = va(2); Rr = va(8, 4)
    LA = OPT["LA"]; NA = LA + 1
    aa = Alloc("a", 0, C.abase)
    aring = [[aa(4) for _ in range(2)] for _ in range(NA)]
    bf = [[aa(4) for _ in range(2)] for _ in range(2)]
    srd(P, C.sX, C.ptr[0], C.ptr[1], XBYTES)
    srd(P, C.sW, C.ptr[12], C.ptr[13], XBYTES)
    sO = C.sW
    n_, hf = t[3], t[4]
    P(f"v_and_b32 {n_}, 31, {lane}\nv_lshrrev_b32 {hf}, 5, {lane}\nv_lshlrev_b32 {vL}, 4, {lane}")
    P(f"s_lshl_b32 {S['t0']}, {S['T']}, 1\ns_and_b32 {S['t1']}, {w}, 1\ns_add_u32 {S['t0']}, {S['t0']}, {S['t1']}\ns_lshl_b32 {S['t0']}, {S['t0']}, 5")
    P(f"s_lshl_b32 {S['t1']}, {S['t0']}, 2\ns_lshl_b32 {S['t2']}, {w}, 14\ns_add_u32 {S['t1']}, {S['t1']}, {S['t2']}\ns_add_u32 {S['t1']}, {S['t1']}, {RSTD_OFF}\nv_lshl_add_u32 {t[5]}, {n_}, 2, {S['t1']}")
    P(f"s_and_b32 {S['t1']}, {S['t0']}, 1023\ns_mul_i32 {S['t1']}, {S['t1']}, 1792\ns_lshr_b32 {S['t0']}, {S['t0']}, 10\ns_mul_i32 {S['t0']}, {S['t0']}, 896\ns_add_u32 {S['t0']}, {S['t0']}, {S['t1']}")
    P(f"s_lshl_b32 {S['t1']}, {S['cb2']}, 7\ns_add_u32 {S['t0']}, {S['t0']}, {S['t1']}\ns_lshr_b32 {S['t1']}, {w}, 1\ns_lshl_b32 {S['t1']}, {S['t1']}, 6\ns_add_u32 {S['t0']}, {S['t0']}, {S['t1']}")
    P(f"v_mul_u32_u24 {t[0]}, 1792, {n_}\nv_add_u32 {t[0]}, {S['t0']}, {t[0]}\nv_lshl_add_u32 {vO}, {hf}, 4, {t[0]}\nv_lshl_add_u32 {t[0]}, {hf}, 3, {t[0]}")
    for a in range(4):
        P(f"buffer_load_dwordx2 {xv[a]}, {t[0]}, {C.sX}, 0 offen offset:{a*16}"); vm.issue(("e", 0))
    def poll(label, mask):
        P(f"s_mov_b32 {S['t2']}, 0\n{label}:\nbuffer_load_dword {fl}, {C.vF}, {C.sWS}, 0 offen sc1\ns_waitcnt vmcnt(0)\nv_cmp_eq_u32 vcc, {S['tag']}, {fl}\ns_add_u32 {S['t2']}, {S['t2']}, 1")
        P(f"s_cmp_ge_u32 {S['t2']}, {SPIN_MAX}\ns_cbranch_scc1 {label}_X\ns_and_b32 {S['t0']}, vcc_lo, {mask}\ns_cmp_lg_u32 {S['t0']}, {mask}\ns_cbranch_scc1 {label}\n{label}_X:")
    poll(f"PF_{role}", 3)
    vm.q = []
    stamp(C, 6)
    def aload(tt):
        o = []
        so = S['ao'] if tt < 28 else S['ao_s']
        for j in range(2):
            def ld(j=j):
                vm.issue(("a", tt))
                s = f"buffer_load_dwordx4 {aring[tt % NA][j]}, {C.vA[j]}, {C.sWS}, {so} offen sc1"
                if j == 1: s += "\n" + (adv(so, 2048, S['aend'], S['abeg']) if tt < 28 else f"s_add_u32 {so}, {so}, 2048")
                return s
            o.append(Lazy(ld))
        return o
    for tt in range(LA): emit(C, aload(tt))
    TPOLL = 28 - LA - 4
    red = []
    for tt in range(35):
        P(vm.wait(lambda q: q == ("a", tt)))
        if tt == 0: stamp(C, 7)
        if tt + 1 >= NREG and tt + 1 < 35:
            P.ext(b2.tr(tt + 1, bf[(tt + 1) & 1]))
        if tt >= NREG:
            nds = (4 if tt + 1 < 35 else 0)
            P(f"s_waitcnt lgkmcnt({nds})")
        elif tt == 0:
            P("s_waitcnt lgkmcnt(0)")
        ld = []
        if tt == TPOLL:
            def pl():
                vm.issue(("pl", 0)); return f"buffer_load_dword {fl}, {C.vF}, {C.sWS}, 0 offen sc1"
            ld.append(Lazy(pl))
        if tt + LA == 28:
            P(vm.wait(lambda q: q[0] == "pl"))
            P(f"v_cmp_eq_u32 vcc, {S['tag']}, {fl}\ns_and_b32 {S['t0']}, vcc_lo, 12\ns_cmp_eq_u32 {S['t0']}, 12\ns_cbranch_scc1 PS_{role}_X")
            poll(f"PS_{role}", 12)
            def rl():
                vm.issue(("e", 0)); return f"buffer_load_dword {rstd}, {t[5]}, {C.sWS}, 0 offen sc1"
            ld.append(Lazy(rl))
        if tt + LA < 35: ld.extend(aload(tt + LA))
        acc = accf if tt < 28 else accs
        B = C.breg[tt] if tt < NREG else bf[tt & 1]
        first = tt in (0, 28)
        m = [f"v_mfma_f32_32x32x16_bf16 {acc[f][p]}, {B[f]}, {aring[tt % NA][p]}, {0 if first else acc[f][p]}" for f in range(2) for p in range(2)]
        emit(C, merge(m, (ld, 0, 4)))
    stamp(C, 8)
    P(f"v_add_u32 {t[0]}, {S['rm0']}, {vL}\nv_add_u32 {t[1]}, {S['bm0']}, {vL}")
    for q in range(1, 4):
        for a in range(4): P(f"ds_write_b128 {t[0]}, {accf[q>>1][q&1][4*a:4*a+4]} offset:{(q-1)*4096 + a*1024}")
    for q in range(1, 4):
        for a in range(4): P(f"ds_write_b128 {t[1]}, {accs[q>>1][q&1][4*a:4*a+4]} offset:{(q-1)*4096 + a*1024}")
    ra = [t[0], t[1], t[2]]; rb = [t[3], t[4], t[6]]
    ad = []
    for q in range(1, 4):
        ad.append(f"s_xor_b32 {S['t0']}, {w}, {q}\ns_mul_i32 {S['t1']}, {S['t0']}, {RINGW}\ns_add_u32 {S['t1']}, {S['t1']}, {RING0 + (q-1)*4096}\ns_mul_i32 {S['t0']}, {S['t0']}, {BIGW}\ns_add_u32 {S['t0']}, {S['t0']}, {(q-1)*4096}")
        ad.append(f"v_add_u32 {ra[q-1]}, {S['t1']}, {vL}\nv_add_u32 {rb[q-1]}, {S['t0']}, {vL}")
    P("s_waitcnt lgkmcnt(0)")
    P.ext(ad)
    P("s_barrier")
    pf_ = [accf[0][1], accf[1][0], accf[1][1]]; ps_ = [accs[0][1], accs[1][0], accs[1][1]]
    def rds(a):
        for i in range(3): P(f"ds_read_b128 {pf_[i][4*a:4*a+4]}, {ra[i]} offset:{a*1024}")
        for i in range(3): P(f"ds_read_b128 {ps_[i][4*a:4*a+4]}, {rb[i]} offset:{a*1024}")
    rds(0); rds(1)
    P("s_waitcnt vmcnt(0)")
    P(f"v_mov_b32 {kk[0]}, {rstd}\nv_mul_f32 {kk[1]}, {f2h(-math.log2(math.e))}, {rstd}")
    F = accf[0][0]; Sv = accs[0][0]
    for a in range(4):
        P(f"s_waitcnt lgkmcnt({6 if a < 3 else 0})")
        if a + 2 < 4: rds(a + 2)
        f4 = F[4*a:4*a+4]; s4 = Sv[4*a:4*a+4]; e4 = pf_[0][4*a:4*a+4]; x4 = pf_[1][4*a:4*a+4]
        def pk(op, d, a_, b_, mod=""):
            for h in range(2): P(f"{op} {d[2*h:2*h+2]}, {a_[2*h:2*h+2]}, {b_[2*h:2*h+2] if b_.n == 4 else b_}{mod}")
        pk("v_pk_add_f32", f4, f4, pf_[0][4*a:4*a+4]); pk("v_pk_add_f32", x4, x4, pf_[2][4*a:4*a+4])
        pk("v_pk_add_f32", s4, s4, ps_[0][4*a:4*a+4]); pk("v_pk_add_f32", ps_[1][4*a:4*a+4], ps_[1][4*a:4*a+4], ps_[2][4*a:4*a+4])
        pk("v_pk_add_f32", f4, f4, x4)
        pk("v_pk_add_f32", s4, s4, ps_[1][4*a:4*a+4])
        pk("v_pk_mul_f32", e4, f4, kk, " op_sel:[0,1] op_sel_hi:[1,1]")
        pk("v_pk_mul_f32", f4, f4, kk, " op_sel_hi:[1,0]")
        for r in range(4): P(f"v_exp_f32 {e4[r]}, {e4[r]}")
        pk("v_pk_mul_f32", f4, f4, s4)
        for r in range(4): P(f"v_add_f32 {e4[r]}, 1.0, {e4[r]}")
        for r in range(4): P(f"v_rcp_f32 {e4[r]}, {e4[r]}")
        for h in range(2): P(f"v_lshlrev_b32 {x4[2*h]}, 16, {xv[a][h]}\nv_and_b32 {x4[2*h+1]}, 0xffff0000, {xv[a][h]}")
        for h in range(2): P(f"v_pk_fma_f32 {f4[2*h:2*h+2]}, {f4[2*h:2*h+2]}, {e4[2*h:2*h+2]}, {x4[2*h:2*h+2]}")
        P(f"v_cvt_pk_bf16_f32 {Rr[2*a]}, {f4[0]}, {f4[1]}\nv_cvt_pk_bf16_f32 {Rr[2*a+1]}, {f4[2]}, {f4[3]}")
        if a & 1:
            p = a >> 1
            P(f"v_permlane32_swap_b32 {Rr[4*p]}, {Rr[4*p+2]}\nv_permlane32_swap_b32 {Rr[4*p+1]}, {Rr[4*p+3]}")
            P(f"buffer_store_dwordx4 {Rr[4*p:4*p+4]}, {vO}, {sO}, 0 offen offset:{32*p}")
    if OPT["stamps"]:
        P("s_waitcnt vmcnt(0)"); stamp(C, 9)
    if OPT["spin"] and role == "F":
        P(f"s_cmp_lg_u32 s2, 0\ns_cbranch_scc1 SPN2\nSPN1:\ns_memrealtime {C.tm}\ns_waitcnt lgkmcnt(0)\ns_sub_u32 {S['t0']}, {C.tm[0]}, s98\ns_cmp_lt_u32 {S['t0']}, {OPT['spin']}\ns_cbranch_scc1 SPN1\nSPN2:")
    P(f"FIN_{role}:")
    stamp_flush(C, 10)
    P("s_endpgm")
    return va.hi

def xsrd(C):
    P, S = C.P, C.S
    P("s_waitcnt lgkmcnt(0)")
    P(f"s_add_u32 {C.sX[0]}, {C.ptr[0]}, {S['t2']}\ns_addc_u32 {C.sX[1]}, {C.ptr[1]}, 0\ns_sub_u32 {C.sX[2]}, {XBYTES}, {S['t2']}\ns_mov_b32 {C.sX[3]}, 0x20000")

def dma_item(C, need, m0expr, load, post=None, execmask=None):
    def ld():
        C.vm.issue(("d", need))
        s = load
        if execmask: s = f"s_mov_b64 exec, {execmask}\n{s}\ns_mov_b64 exec, -1"
        if post: s += "\n" + post
        return s
    return [m0expr, Lazy(ld)]

def role_ffn(C):
    P, S, lane, t = C.P, C.S, C.lane, C.t
    C.role = "F"; C.vm = vm = VM(); vm.issue(("pf", 0)); C.big_early = NBIG
    va = Alloc("v", C.vbase, 256); aa = Alloc("a", 0, C.abase)
    NW, NX = 4, 3
    WB, XB = 0, 65536
    sX, sW, sWS = C.sX, C.sW, C.sWS
    xd = [va() for _ in range(4)]; wd = [va() for _ in range(4)]
    xr = [[va() for _ in range(2)] for _ in range(2)]
    wr_ = [va() for _ in range(7)]
    acc = [[va(4, 4) for _ in range(4)] for _ in range(7)]
    cs = [va(4, 4) for _ in range(7)]
    rs = [va(4, 4) for _ in range(2)]
    ones = aa(4)
    fb = [dict(x=[aa(4) for _ in range(4)], w=[aa(4) for _ in range(7)]) for _ in range(2)]
    w = S['w']
    P(f"s_lshl_b32 {S['t0']}, {S['rbl']}, 7\ns_lshl_b32 {S['t1']}, {w}, 5\ns_add_u32 {S['t0']}, {S['t0']}, {S['t1']}")
    P(f"v_lshrrev_b32 {t[0]}, 3, {lane}\nv_add_u32 {t[0]}, {S['t0']}, {t[0]}\nv_mul_u32_u24 {t[0]}, 1792, {t[0]}")
    P(f"v_lshrrev_b32 {t[1]}, 4, {lane}\nv_and_b32 {t[2]}, 7, {lane}\nv_xor_b32 {t[2]}, {t[1]}, {t[2]}")
    P(f"v_lshl_add_u32 {xd[0]}, {t[2]}, 4, {t[0]}")
    P(f"v_xor_b32 {t[3]}, 64, {xd[0]}\nv_add_u32 {xd[1]}, {8*1792}, {t[3]}\nv_add_u32 {xd[2]}, {16*1792}, {xd[0]}\nv_add_u32 {xd[3]}, {24*1792}, {t[3]}")
    P(f"s_mul_i32 {S['t0']}, {S['cb']}, 448\ns_and_b32 {S['t0']}, {S['t0']}, 0xffffff80\ns_mul_i32 {S['t1']}, {w}, {8*3584}\ns_add_u32 {S['t0']}, {S['t0']}, {S['t1']}")
    P(f"s_and_b32 {S['t1']}, {w}, 1\ns_lshl_b32 {S['t1']}, {S['t1']}, 2")
    P(f"v_lshrrev_b32 {t[0]}, 5, {lane}\nv_bfe_u32 {t[1]}, {lane}, 1, 4\nv_xor_b32 {t[1]}, {t[0]}, {t[1]}\nv_xor_b32 {t[1]}, {S['t1']}, {t[1]}")
    P(f"v_mul_u32_u24 {t[0]}, 3584, {t[0]}\nv_lshl_add_u32 {t[0]}, {t[1]}, 5, {t[0]}\nv_and_b32 {t[1]}, 1, {lane}\nv_lshl_add_u32 {t[0]}, {t[1]}, 4, {t[0]}")
    P(f"v_add_u32 {wd[0]}, {S['t0']}, {t[0]}\nv_xor_b32 {t[3]}, 64, {wd[0]}")
    P(f"v_add_u32 {wd[1]}, {2*3584}, {t[3]}\nv_add_u32 {wd[2]}, {4*3584}, {wd[0]}\nv_add_u32 {wd[3]}, {6*3584}, {t[3]}")
    P(f"s_mul_i32 {S['kw']}, {S['kx']}, {64*3584//128}\ns_lshl_b32 {S['wm0']}, {w}, 12")
    xsrd(C)
    srd(P, sW, C.ptr[8], C.ptr[9], 448 * 3584)
    items = []
    for d in range(7):
        for j in range(4): items.append(dict(k="x", d=d, j=j, need=2*d, free=(2*(d-NX)+1 if d >= NX else -1)))
        for s in (2*d, 2*d+1):
            for j in range(4): items.append(dict(k="w", s=s, j=j, need=s, free=(s-NW if s >= NW else -1)))
    def emit_item(i):
        it = items[i]; j = it["j"]
        if it["k"] == "x":
            return dma_item(C, it["need"], f"s_add_u32 m0, {S['wm0']}, {XB + (it['d'] % NX)*16384 + j*1024}",
                            f"buffer_load_dwordx4 {xd[j]}, {sX}, {S['kx']} offen lds", adv(S['kx'], 128, 896) if j == 3 else None)
        return dma_item(C, it["need"], f"s_add_u32 m0, {S['wm0']}, {WB + (it['s'] % NW)*16384 + j*1024}",
                        f"buffer_load_dwordx4 {wd[j]}, {sW}, {S['kw']} offen lds", adv(S['kw'], 32*3584, 448*3584) if j == 3 else None)
    sched = schedule(items, OPT["pro"], OPT["rate"], 14)
    first = sched[-1][:8]; rest = sched[-1][8:]
    for i in first: emit(C, emit_item(i))
    srd(P, sWS, C.wsp[0], C.wsp[1], WS_REC)
    wr, wc = S['half'], S['hh']
    P(f"s_lshr_b32 {wr}, {w}, 1\ns_and_b32 {wc}, {w}, 1")
    n_, g_ = va(), va()
    P(f"v_and_b32 {n_}, 15, {lane}\nv_lshrrev_b32 {g_}, 4, {lane}")
    P(f"s_lshl_b32 {S['t0']}, {wr}, 13\ns_lshl_b32 {S['t1']}, {wc}, 12\ns_add_u32 {S['t0']}, {S['t0']}, {S['t1']}\ns_add_u32 {S['t0']}, {S['t0']}, {XB}")
    P(f"v_lshrrev_b32 {t[0]}, 1, {n_}\nv_xor_b32 {t[0]}, {g_}, {t[0]}\nv_lshlrev_b32 {t[0]}, 4, {t[0]}\nv_lshl_add_u32 {t[0]}, {n_}, 7, {t[0]}")
    P(f"v_add_u32 {xr[0][0]}, {S['t0']}, {t[0]}\nv_xor_b32 {xr[0][1]}, 64, {xr[0][0]}\nv_xor_b32 {xr[1][0]}, 4096, {xr[0][0]}\nv_xor_b32 {xr[1][1]}, 4096, {xr[0][1]}")
    P(f"v_bfe_u32 {t[0]}, {lane}, 2, 2\nv_lshl_add_u32 {t[1]}, {g_}, 3, {t[0]}\nv_lshlrev_b32 {t[1]}, 9, {t[1]}\nv_and_b32 {t[2]}, 3, {lane}\nv_lshl_add_u32 {t[1]}, {t[2]}, 3, {t[1]}")
    P(f"v_bfe_u32 {t[0]}, {lane}, 2, 3")
    P(f"s_lshl_b32 {S['b1']}, {wr}, 2\ns_mul_i32 {S['b2']}, {wr}, -3")
    P(f"s_and_b32 {S['t0']}, {S['cb']}, 1\ns_lshl_b32 {S['t0']}, {S['t0']}, 1\ns_mul_i32 {S['t1']}, {wc}, 7\ns_add_u32 {S['t0']}, {S['t0']}, {S['t1']}")
    P(f"s_add_u32 {S['t1']}, {S['t0']}, {S['b2']}\ns_add_u32 {S['t0']}, {S['t0']}, {S['b1']}")
    for c in range(7):
        P(f"s_add_u32 {S['t2']}, {S['t0'] if c <= 2 else S['t1']}, {c}")
        P(f"v_xor_b32 {t[2]}, {S['t2']}, {t[0]}\nv_lshl_add_u32 {wr_[c]}, {t[2]}, 5, {t[1]}")
    P(f"v_mov_b32 {t[0]}, {ONES}")
    for i in range(4): P(f"v_accvgpr_write_b32 {ones[i]}, {t[0]}")
    RSB, CSB = SCR, SCR + 1024
    a_rs, a_rs2, a_cs, a_cs2 = va(), va(), va(), va()
    st = [va(), va()]
    P(f"s_lshl_b32 {S['t0']}, {wr}, 8\ns_lshl_b32 {S['t1']}, {wc}, 7\ns_add_u32 {S['t0']}, {S['t0']}, {S['t1']}")
    P(f"v_lshlrev_b32 {a_rs}, 2, {n_}\nv_add_u32 {a_rs}, {S['t0']}, {a_rs}\nv_xor_b32 {a_rs2}, 128, {a_rs}")
    P(f"s_lshl_b32 {S['t0']}, {wc}, 3\ns_add_u32 {S['t1']}, {S['t0']}, {S['b2']}\ns_add_u32 {S['t0']}, {S['t0']}, {S['b1']}")
    P(f"s_lshl_b32 {S['t0']}, {S['t0']}, 6\ns_add_u32 {S['t1']}, {S['t1']}, 4\ns_lshl_b32 {S['t1']}, {S['t1']}, 6")
    P(f"v_lshlrev_b32 {a_cs}, 4, {g_}\nv_add_u32 {a_cs2}, {S['t1']}, {a_cs}\nv_add_u32 {a_cs}, {S['t0']}, {a_cs}")
    P(f"s_lshl_b32 {S['t0']}, {wc}, 10\nv_lshlrev_b32 {st[0]}, 4, {lane}\nv_add_u32 {st[0]}, {S['t0']}, {st[0]}\nv_xor_b32 {st[1]}, 1024, {st[0]}")
    P(f"s_lshl_b32 {S['t0']}, {S['e']}, 3\ns_add_u32 {S['t0']}, {S['t0']}, {S['rbl']}\ns_lshl_b32 {S['t0']}, {S['t0']}, 1\ns_add_u32 {S['t0']}, {S['t0']}, {wr}")
    P(f"s_mul_i32 {S['t0']}, {S['t0']}, {A2_KS}\ns_mul_i32 {S['t1']}, {S['cb']}, 14\ns_add_u32 {S['t0']}, {S['t0']}, {S['t1']}\ns_mul_i32 {S['t1']}, {wc}, 7\ns_add_u32 {S['t0']}, {S['t0']}, {S['t1']}\ns_add_u32 {S['t0']}, {S['t0']}, 28")
    P(f"s_add_u32 {S['b1']}, {S['b1']}, {S['t0']}\ns_add_u32 {S['b2']}, {S['b2']}, {S['t0']}\ns_lshl_b32 {S['b1']}, {S['b1']}, 11\ns_lshl_b32 {S['b2']}, {S['b2']}, 11")
    p2_setup(C)
    for i in rest: emit(C, emit_item(i))
    def reads(s):
        b = fb[s & 1]
        xs = ((s >> 1) % NX) * 16384; ws = WB + (s % NW) * 16384
        X = [f"ds_read_b128 {b['x'][i]}, {xr[i>>1][s&1]} offset:{xs + (i&1)*2048}" for i in range(4)]
        W = []
        for c in range(7):
            W.append(f"ds_read_b64_tr_b16 {b['w'][c][0:2]}, {wr_[c]} offset:{ws}")
            W.append(f"ds_read_b64_tr_b16 {b['w'][c][2:4]}, {wr_[c]} offset:{ws + 2048}")
        return X + W
    def mfmas(s):
        b = fb[s & 1]; o = []
        def mm(d, a, bb): o.append(f"v_mfma_f32_16x16x32_bf16 {d}, {a}, {bb}, {d if s else 0}")
        for i in range(2): mm(rs[i], ones, b['x'][i])
        for c in range(4): mm(cs[c], b['w'][c], ones)
        for c in range(7):
            for i in range(4): mm(acc[c][i], b['w'][c], b['x'][i])
        if s == 13:
            wrs = [f"ds_write_b32 {a_rs}, {rs[i][0]} offset:{RSB + i*64}" for i in range(2)] + [f"ds_write_b128 {a_cs}, {cs[c]} offset:{CSB + c*64}" for c in range(4)]
            o = o[:16] + [o[16] + "\n" + "\n".join(wrs)] + o[17:]
        return o
    b2 = B2(C)
    run_loop(C, items, emit_item, sched, reads, mfmas, b2)
    P("s_waitcnt lgkmcnt(0)\ns_barrier")
    nm = [va(2), va(2)]
    P(f"ds_read_b32 {nm[1][0]}, {a_rs2} offset:{RSB}\nds_read_b32 {nm[1][1]}, {a_rs2} offset:{RSB+64}")
    for c in range(4, 7): P(f"ds_read_b128 {cs[c]}, {a_cs2} offset:{CSB + (c-4)*64}")
    NEG = f2h(-1.0/448)
    P(f"v_mul_f32 {nm[0][0]}, {NEG}, {rs[0][0]}\nv_mul_f32 {nm[0][1]}, {NEG}, {rs[1][0]}")
    Z = [va(4, 4) for _ in range(4)]
    units = [(c, 0) for c in range(4)] + [(c, 1) for c in range(4)] + [(c, pr) for c in range(4, 7) for pr in range(2)]
    pend = None
    for ui, (c, pr) in enumerate(units):
        if ui == 4:
            P("s_waitcnt lgkmcnt(0)")
            P(f"v_mul_f32 {nm[1][0]}, {NEG}, {nm[1][0]}\nv_mul_f32 {nm[1][1]}, {NEG}, {nm[1][1]}")
        z = Z[ui % 4]
        for ii in range(2):
            a = acc[c][2*pr+ii]
            sel = "op_sel_hi:[1,0,1]" if ii == 0 else "op_sel:[0,1,0] op_sel_hi:[1,1,1]"
            P(f"v_pk_fma_f32 {a[0:2]}, {cs[c][0:2]}, {nm[pr]}, {a[0:2]} {sel}")
            P(f"v_pk_fma_f32 {a[2:4]}, {cs[c][2:4]}, {nm[pr]}, {a[2:4]} {sel}")
        if pend: P(pend); vm.issue(("st", 0))
        for ii in range(2):
            a = acc[c][2*pr+ii]
            P(f"v_cvt_pk_bf16_f32 {z[2*ii]}, {a[0]}, {a[1]}\nv_cvt_pk_bf16_f32 {z[2*ii+1]}, {a[2]}, {a[3]}")
        for q in range(4): P(f"v_pk_max_i16 {z[q]}, {z[q]}, 0")
        pend = (f"s_add_u32 {S['t0']}, {S['b1'] if c <= 2 else S['b2']}, {c*2048}\n"
                f"v_permlane16_swap_b32 {z[0]}, {z[2]}\nv_permlane16_swap_b32 {z[1]}, {z[3]}\n"
                f"buffer_store_dwordx4 {z}, {st[pr]}, {sWS}, {S['t0']} offen sc1")
    P(pend); vm.issue(("st", 0))
    hi2 = publish_and_p2(C, b2)
    return max(va.hi, hi2)

def role_qkv(C):
    P, S, lane, t = C.P, C.S, C.lane, C.t
    C.role = "Q"; C.vm = vm = VM(); vm.issue(("pf", 0)); C.big_early = NBIG - 3
    va = Alloc("v", C.vbase, 256); aa = Alloc("a", 0, C.abase)
    NW, NX = 4, 3
    XS = 18432
    XB, WB = 0, 3 * XS
    sX, sW, sWS, mW, mH, mT = C.sX, C.sW, C.sWS, C.mW, C.mH, C.mT
    xd = [va() for _ in range(4)]; xh = va(); wd = va()
    xr = [va() for _ in range(2)]; xr0 = [va() for _ in range(2)]
    wr_ = [va() for _ in range(2)]
    acc = [[[va(4, 4) for _ in range(5)] for _ in range(2)] for _ in range(3)]
    dg = [va(4, 4) for _ in range(5)]
    cprev, ccur, cfirst = va(4, 4), va(4, 4), va(4, 4)
    mprev, mcur = va(2), va(2)
    fb = [dict(x=[aa(4) for _ in range(5)], w=[[aa(4) for _ in range(2)] for _ in range(3)]) for _ in range(2)]
    w = S['w']; hp = S['cb']
    P(f"s_lshl_b32 {S['t0']}, {S['rbl']}, 7\ns_lshl_b32 {S['t1']}, {w}, 5\ns_add_u32 {S['t1']}, {S['t0']}, {S['t1']}")
    P(f"v_lshrrev_b32 {t[4]}, 3, {lane}\nv_add_u32 {t[0]}, {S['t1']}, {t[4]}\nv_mul_u32_u24 {t[0]}, 1792, {t[0]}")
    P(f"v_lshrrev_b32 {t[1]}, 4, {lane}\nv_and_b32 {t[5]}, 7, {lane}\nv_xor_b32 {t[2]}, {t[1]}, {t[5]}")
    P(f"v_lshl_add_u32 {xd[0]}, {t[2]}, 4, {t[0]}")
    P(f"v_xor_b32 {t[3]}, 64, {xd[0]}\nv_add_u32 {xd[1]}, {8*1792}, {t[3]}\nv_add_u32 {xd[2]}, {16*1792}, {xd[0]}\nv_add_u32 {xd[3]}, {24*1792}, {t[3]}")
    P(f"s_mul_i32 {S['t1']}, {w}, {32*1792}\ns_add_u32 {S['t1']}, {S['t1']}, {8*1792}\ns_cmp_eq_u32 {S['rbl']}, 0\ns_cselect_b32 {S['t1']}, {BIG}, {S['t1']}")
    P(f"v_subrev_u32 {xh}, {S['t1']}, {t[3]}")
    P(f"s_lshl_b32 {S['t1']}, {w}, 4\ns_mov_b64 {mH}, 0xffff\ns_lshl_b64 {mH}, {mH}, {S['t1']}")
    P(f"s_and_b32 {S['hh']}, {w}, 1\ns_lshl_b32 {S['t1']}, {S['hh']}, 2")
    P(f"v_and_b32 {t[0]}, 2, {t[4]}\nv_add_u32 {t[0]}, {S['t1']}, {t[0]}\nv_sub_u32 {t[0]}, {t[5]}, {t[0]}\nv_and_b32 {t[0]}, 7, {t[0]}")
    P(f"v_cmp_ne_u32 {mW}, 7, {t[0]}")
    P(f"s_mul_i32 {S['t0']}, {hp}, 112\ns_mul_i32 {S['t1']}, {w}, {8*2688}\ns_add_u32 {S['t0']}, {S['t0']}, {S['t1']}")
    P(f"v_mul_u32_u24 {t[1]}, 2688, {t[4]}\nv_lshl_add_u32 {t[1]}, {t[0]}, 4, {t[1]}\nv_add_u32 {wd}, {S['t0']}, {t[1]}")
    P(f"s_mul_i32 {S['kw']}, {S['kx']}, {64*2688//128}")
    P(f"s_lshl_b32 {S['wm0']}, {w}, 10\ns_lshl_b32 {S['xm0']}, {w}, 12")
    xsrd(C)
    srd(P, sW, C.ptr[2], C.ptr[3], 448 * 2688)
    items = []
    for d in range(7):
        fr = (2*(d-NX)+1 if d >= NX else -1)
        for j in range(-1, 4): items.append(dict(k="x", d=d, j=j, need=2*d, free=fr))
        for s in (2*d, 2*d+1):
            for p in range(3): items.append(dict(k="w", s=s, j=p, need=s, free=(s-NW if s >= NW else -1)))
    def emit_item(i):
        it = items[i]; j = it["j"]
        if it["k"] == "x":
            sb = XB + (it['d'] % NX) * XS
            if j < 0: return dma_item(C, it["need"], f"s_mov_b32 m0, {sb + 1024}", f"buffer_load_dwordx4 {xh}, {sX}, {S['kx']} offen lds", None, mH)
            return dma_item(C, it["need"], f"s_add_u32 m0, {S['xm0']}, {sb + 2048 + j*1024}", f"buffer_load_dwordx4 {xd[j]}, {sX}, {S['kx']} offen lds",
                            adv(S['kx'], 128, 896) if j == 3 else None)
        return dma_item(C, it["need"], f"s_add_u32 m0, {S['wm0']}, {WB + (it['s'] % NW)*12288 + j*4096 - j*896}",
                        f"buffer_load_dwordx4 {wd}, {sW}, {S['kw']} offen offset:{j*896} lds", adv(S['kw'], 32*2688, 448*2688) if j == 2 else None, mW)
    sched = schedule(items, OPT["pro"] * 11 // 12, OPT["rate"] - 1, 14)
    first = sched[-1][:8]; rest = sched[-1][8:]
    for i in first: emit(C, emit_item(i))
    srd(P, sWS, C.wsp[0], C.wsp[1], WS_REC)
    hh, half = S['hh'], S['half']
    P(f"s_lshr_b32 {half}, {w}, 1")
    n_, g_ = va(), va()
    P(f"v_and_b32 {n_}, 15, {lane}\nv_lshrrev_b32 {g_}, 4, {lane}")
    tmpcs = [va(4, 4) for _ in range(4)]
    c1, c0 = tmpcs[0], tmpcs[1]
    for i in range(4): P(f"v_mov_b32 {c1[i]}, {ONES}\nv_mov_b32 {c0[i]}, 0")
    P(f"v_and_b32 {t[0]}, 31, {lane}\nv_and_b32 {t[1]}, 2, {lane}\nv_bfe_u32 {t[2]}, {lane}, 3, 1\nv_lshl_add_u32 {t[1]}, {t[2]}, 2, {t[1]}")
    P(f"v_add_u32 {t[1]}, 7, {t[1]}\nv_and_b32 {t[1]}, 7, {t[1]}\nv_lshlrev_b32 {t[1]}, 4, {t[1]}\nv_lshl_add_u32 {t[0]}, {t[0]}, 7, {t[1]}")
    P(f"v_lshrrev_b32 {t[1]}, 5, {lane}\nv_mul_u32_u24 {t[1]}, 12288, {t[1]}\ns_mul_i32 {S['t0']}, {hh}, {2*12288}\ns_add_u32 {S['t0']}, {S['t0']}, {WB}")
    P(f"v_add3_u32 {t[0]}, {t[0]}, {t[1]}, {S['t0']}")
    P(f"ds_write_b128 {t[0]}, {c0}\nds_write_b128 {t[0]}, {c1} offset:4096\nds_write_b128 {t[0]}, {c0} offset:8192")
    P(f"s_min_u32 {S['t0']}, {w}, 2\ns_mul_i32 {S['t0']}, {S['t0']}, {XS}\nv_lshlrev_b32 {t[1]}, 4, {lane}\nv_add_u32 {t[1]}, {S['t0']}, {t[1]}\nds_write_b128 {t[1]}, {c1} offset:{XB}")
    P(f"v_lshrrev_b32 {t[0]}, 1, {n_}\nv_xor_b32 {t[0]}, {g_}, {t[0]}\nv_lshlrev_b32 {t[0]}, 4, {t[0]}\nv_lshl_add_u32 {t[0]}, {n_}, 7, {t[0]}")
    P(f"s_lshl_b32 {S['t0']}, {half}, 13\nv_add_u32 {t[1]}, {S['t0']}, {t[0]}\nv_add_u32 {xr[0]}, {XB + 2048}, {t[1]}\nv_xor_b32 {xr[1]}, 64, {xr[0]}")
    P(f"v_cmp_gt_u32 vcc, 8, {n_}\nv_cndmask_b32 {xr0[0]}, {t[1]}, {t[0]}, vcc\nv_xor_b32 {xr0[1]}, 64, {xr0[0]}")
    P(f"v_bfe_u32 {t[0]}, {lane}, 2, 2\nv_lshl_add_u32 {t[0]}, {g_}, 3, {t[0]}\nv_lshlrev_b32 {t[0]}, 7, {t[0]}\nv_add_u32 {t[0]}, {WB}, {t[0]}")
    P(f"v_bfe_u32 {t[1]}, {lane}, 3, 2\nv_lshlrev_b32 {t[1]}, 5, {t[1]}\nv_and_b32 {t[2]}, 3, {lane}")
    P(f"s_mul_i32 {S['t0']}, {hh}, 56\nv_lshl_add_u32 {t[3]}, {t[2]}, 3, {S['t0']}")
    P(f"v_add_u32 {t[4]}, {t[3]}, {t[1]}\nv_and_b32 {t[4]}, 127, {t[4]}\nv_add_u32 {wr_[0]}, {t[0]}, {t[4]}")
    P(f"s_lshl_b32 {S['t0']}, {hh}, 3\ns_sub_u32 {S['t0']}, 120, {S['t0']}\nv_mov_b32 {t[4]}, {S['t0']}\nv_add_u32 {t[3]}, 32, {t[3]}")
    P(f"v_cmp_eq_u32 vcc, 3, {t[2]}\nv_cndmask_b32 {t[3]}, {t[3]}, {t[4]}, vcc")
    P(f"v_add_u32 {t[4]}, {t[3]}, {t[1]}\nv_and_b32 {t[4]}, 127, {t[4]}\nv_add_u32 {wr_[1]}, {t[0]}, {t[4]}")
    P(f"v_lshlrev_b32 {t[0]}, 2, {g_}\nv_sub_u32 {t[0]}, {n_}, {t[0]}\nv_mov_b32 {t[1]}, {NINF}")
    P(f"s_or_b32 {S['t0']}, {S['rbl']}, {half}\ns_cmp_eq_u32 {S['t0']}, 0\ns_cselect_b32 {S['t0']}, {NINF}, 0")
    for r in range(4):
        P(f"v_subrev_u32 {t[2]}, {r}, {t[0]}")
        P(f"v_cmp_gt_i32 vcc, -8, {t[2]}\nv_cndmask_b32 {cprev[r]}, {t[1]}, {c0[0]}, vcc")
        P(f"v_cmp_gt_u32 vcc, 8, {t[2]}\nv_cndmask_b32 {ccur[r]}, {t[1]}, {c0[0]}, vcc")
        P(f"v_or_b32 {cfirst[r]}, {S['t0']}, {cprev[r]}")
    for (m, c) in ((mprev, cprev), (mcur, ccur)):
        for q in range(2):
            P(f"v_ashrrev_i32 {t[2]}, 31, {c[2*q]}\nv_ashrrev_i32 {t[3]}, 31, {c[2*q+1]}\nv_and_b32 {t[2]}, 0xffff, {t[2]}\nv_and_b32 {t[3]}, 0xffff0000, {t[3]}")
            P(f"v_or_b32 {t[2]}, {t[2]}, {t[3]}\nv_not_b32 {m[q]}, {t[2]}")
    a1, a2, av_w, av_r, sr = va(), va(), va(), va(), va()
    so = [va(), va()]
    VB = (NBIG - 3) * 2048
    P(f"v_lshlrev_b32 {a1}, 2, {n_}\nv_bfe_u32 {a2}, {lane}, 2, 2\nv_lshl_add_u32 {a2}, {a2}, 6, {a1}\nv_add_u32 {a1}, 192, {a1}")
    P(f"v_and_b32 {t[2]}, 1, {lane}\nv_cmp_eq_u32 {mT}, 1, {t[2]}\nv_and_b32 {t[2]}, 2, {lane}\nv_cmp_eq_u32 {C.mU}, 2, {t[2]}")
    P(f"s_mul_i32 {S['t1']}, {w}, {BIGW}\nv_mul_u32_u24 {av_w}, 80, {n_}\nv_lshl_add_u32 {av_w}, {g_}, 4, {av_w}\nv_add_u32 {av_w}, {S['t1']}, {av_w}")
    P(f"v_lshrrev_b32 {av_r}, 2, {lane}\nv_mul_u32_u24 {av_r}, 80, {av_r}\nv_and_b32 {t[4]}, 3, {lane}\nv_lshl_add_u32 {av_r}, {t[4]}, 4, {av_r}\nv_add_u32 {av_r}, {S['t1']}, {av_r}")
    P(f"s_lshl_b32 {S['t0']}, {hp}, 1\ns_add_u32 {S['t0']}, {S['t0']}, {hh}\ns_mul_i32 {S['t1']}, {S['t0']}, 28")
    P(f"v_lshl_add_u32 {t[6]}, {g_}, 2, {S['t1']}")
    P(f"v_lshrrev_b32 {so[0]}, 4, {t[6]}\nv_lshlrev_b32 {so[0]}, 11, {so[0]}\nv_bfe_u32 {so[1]}, {t[6]}, 3, 1\nv_lshl_add_u32 {so[0]}, {so[1]}, 9, {so[0]}")
    P(f"v_bfe_u32 {so[1]}, {t[6]}, 2, 1\nv_lshl_add_u32 {so[0]}, {so[1]}, 3, {so[0]}\nv_lshl_add_u32 {so[0]}, {n_}, 4, {so[0]}")
    P(f"v_add_u32 {so[1]}, 2048, {so[0]}\nv_mov_b32 {t[6]}, {BIG}\nv_cmp_eq_u32 vcc, 3, {g_}\nv_cndmask_b32 {so[1]}, {so[1]}, {t[6]}, vcc")
    P(f"s_lshl_b32 {S['t1']}, {S['e']}, 3\ns_add_u32 {S['t1']}, {S['t1']}, {S['rbl']}\ns_lshl_b32 {S['t1']}, {S['t1']}, 1\ns_add_u32 {S['t1']}, {S['t1']}, {half}")
    P(f"s_mul_i32 {S['b1']}, {S['t1']}, {A2_KS*2048}")
    P(f"s_lshl_b32 {S['t1']}, {S['t1']}, 8\ns_lshl_b32 {S['t0']}, {hp}, 13\ns_add_u32 {S['t1']}, {S['t1']}, {S['t0']}\ns_add_u32 {S['t1']}, {S['t1']}, {RSTD_OFF}\ns_cmp_eq_u32 {hh}, 0\ns_cselect_b32 {S['t1']}, {S['t1']}, {BIG}")
    P(f"v_lshl_add_u32 {sr}, {n_}, 2, {S['t1']}\nv_cmp_ne_u32 vcc, 0, {g_}\nv_cndmask_b32 {sr}, {sr}, {t[6]}, vcc")
    p2_setup(C)
    for i in rest: emit(C, emit_item(i))
    def reads(s):
        b = fb[s & 1]
        xs = ((s >> 1) % NX) * XS; ws = (s % NW) * 12288
        X = [f"ds_read_b128 {b['x'][0]}, {xr0[s&1]} offset:{xs}"] + [f"ds_read_b128 {b['x'][j]}, {xr[s&1]} offset:{xs + (j-1)*2048}" for j in range(1, 5)]
        W = []
        for p in (1, 2, 0):
            for tt in range(2):
                W.append(f"ds_read_b64_tr_b16 {b['w'][p][tt][0:2]}, {wr_[tt]} offset:{ws + p*4096}")
                W.append(f"ds_read_b64_tr_b16 {b['w'][p][tt][2:4]}, {wr_[tt]} offset:{ws + p*4096 + 512}")
        return X + W
    def mfmas(s):
        b = fb[s & 1]; o = []
        def mm(d, a, bb): o.append(f"v_mfma_f32_16x16x32_bf16 {d}, {a}, {bb}, {d if s else 0}")
        for j in range(5): mm(dg[j], b['x'][j], b['x'][j])
        for p in (1, 2, 0):
            for tt in (1, 0):
                for j in range(5): mm(acc[p][tt][j], b['w'][p][tt], b['x'][j])
        return o
    b2 = B2(C)
    run_loop(C, items, emit_item, sched, reads, mfmas, b2)
    Q, K, V = acc
    ST = [va(2) for _ in range(5)]
    sq = [t[0], t[1], t[2], t[3], t[4]]
    for j in range(5):
        P(f"v_cndmask_b32 {dg[j][0]}, {dg[j][0]}, {dg[j][1]}, {mT}\nv_cndmask_b32 {dg[j][2]}, {dg[j][2]}, {dg[j][3]}, {mT}\nv_cndmask_b32 {dg[j][0]}, {dg[j][0]}, {dg[j][2]}, {C.mU}")
        P(f"ds_bpermute_b32 {sq[j]}, {a2}, {dg[j][0]}\nds_bpermute_b32 {ST[j][0]}, {a1}, {K[1][j][0]}")
    csK = tmpcs[0:2]; csV = tmpcs[2:4]; csQ = [Q[0][0], Q[1][0]]
    for (d_, s_) in ((csK, K), (csV, V), (csQ, Q)):
        for tt in (1, 0):
            for r in range(4):
                P(f"v_mov_b32_dpp {d_[tt][r]}, {s_[tt][0][r]} row_newbcast:0 row_mask:0xf bank_mask:0xf")
    P("s_waitcnt lgkmcnt(0)")
    P(f"s_mov_b32 {S['t0']}, {f2h(1.0/448)}")
    for j in range(5): P(f"v_mul_f32 {ST[j][0]}, {f2h(-1.0/448)}, {ST[j][0]}")
    for j in range(5): P(f"v_mul_f32 {ST[j][1]}, {ST[j][0]}, {ST[j][0]}")
    for j in range(5): P(f"v_fma_f32 {ST[j][1]}, {sq[j]}, {S['t0']}, -{ST[j][1]}")
    for j in range(5): P(f"v_max_f32 {ST[j][1]}, 0, {ST[j][1]}")
    for j in range(5): P(f"v_add_f32 {ST[j][1]}, {f2h(1e-5)}, {ST[j][1]}")
    for j in range(5): P(f"v_rsq_f32 {ST[j][1]}, {ST[j][1]}")
    LO = "op_sel_hi:[1,0,1]"; HI = "op_sel:[0,1] op_sel_hi:[1,1]"
    def correct(A_, cs_, j, scale, dst):
        o = []
        for tt in range(2):
            a = A_[tt][j]
            o.append(f"v_pk_fma_f32 {a[0:2]}, {cs_[tt][0:2]}, {ST[j]}, {a[0:2]} {LO}")
            o.append(f"v_pk_fma_f32 {a[2:4]}, {cs_[tt][2:4]}, {ST[j]}, {a[2:4]} {LO}")
        if scale:
            for tt in range(2):
                a = A_[tt][j]
                o.append(f"v_pk_mul_f32 {a[0:2]}, {a[0:2]}, {ST[j]} {HI}")
                o.append(f"v_pk_mul_f32 {a[2:4]}, {a[2:4]}, {ST[j]} {HI}")
        for tt in range(2):
            a = A_[tt][j]
            o.append(f"v_cvt_pk_bf16_f32 {dst[2*tt]}, {a[0]}, {a[1]}")
            o.append(f"v_cvt_pk_bf16_f32 {dst[2*tt+1]}, {a[2]}, {a[3]}")
        return o
    def bigdma(n):
        o = []
        for _ in range(n):
            if b2.big < C.big_early:
                o.extend(b2.dma(NREG + NRING + b2.big)); b2.big += 1
        return o
    seq = []
    for j in range(5): seq.extend(correct(V, csV, j, True, V[0][j]))
    emit(C, merge(seq, (bigdma(3), 0, len(seq))))
    for j in range(5): P(f"ds_write_b128 {av_w}, {V[0][j]} offset:{VB + j*1280}")
    seq = []
    for j in range(5): seq.extend(correct(K, csK, j, True, K[0][j]))
    emit(C, merge(seq, (bigdma(3), 0, len(seq))))
    Vt = [fb[0]['x'][0], fb[0]['x'][3]]
    Vt = [R("a", Vt[0].i, 10), R("a", Vt[1].i, 10)]
    P("s_waitcnt lgkmcnt(0)")
    for tt in range(2):
        for j in range(5): P(f"ds_read_b64_tr_b16 {Vt[tt][2*j:2*j+2]}, {av_r} offset:{VB + j*1280 + 8*tt}")
    seq = []
    for j in range(1, 5): seq.extend(correct(Q, csQ, j, False, Q[0][j]))
    emit(C, merge(seq, (bigdma(2), 0, len(seq))))
    S0 = {j: K[1][j] for j in range(1, 5)}; S1 = {j: V[1][j] for j in range(1, 5)}
    for j in range(1, 5):
        P(f"v_mfma_f32_16x16x32_bf16 {S0[j]}, {K[0][j-1]}, {Q[0][j]}, {cfirst if j == 1 else cprev}")
        P(f"v_mfma_f32_16x16x32_bf16 {S1[j]}, {K[0][j]}, {Q[0][j]}, {ccur}")
        P(f"buffer_store_dword {ST[j][1]}, {sr}, {sWS}, 0 offen offset:{(j-1)*64} sc1"); vm.issue(("st", 0))
    cq = f2h(28 ** -0.5 * math.log2(math.e))
    P(f"v_cmp_lt_u32 vcc, 31, {lane}")
    def softmax(a, b, tm):
        o = []
        X, Y = S0[a], S0[b]
        c, m1, m2 = tm[0], tm[1], tm[2]
        o.append(f"v_cndmask_b32 {c}, {ST[a][1]}, {ST[b][1]}, vcc")
        for r in range(4): o.append(f"v_max_f32 {X[r]}, {X[r]}, {S1[a][r]}")
        for r in range(4): o.append(f"v_max_f32 {Y[r]}, {Y[r]}, {S1[b][r]}")
        o.append(f"v_mul_f32 {c}, {cq}, {c}")
        for r in range(4): o.append(f"v_permlane32_swap_b32 {X[r]}, {Y[r]}")
        for r in range(4): o.append(f"v_max_f32 {X[r]}, {X[r]}, {Y[r]}")
        o.append(f"v_max3_f32 {m1}, {X[0]}, {X[1]}, {X[2]}")
        o.append(f"v_max_f32 {m1}, {m1}, {X[3]}")
        o.append(f"v_mov_b32 {m2}, {m1}")
        o.append(f"v_permlane16_swap_b32 {m1}, {m2}")
        o.append(f"v_max_f32 {m1}, {m1}, {m2}")
        o.append(f"v_mul_f32 {m1}, {m1}, {c}")
        for r in range(4): o.append(f"v_fma_f32 {X[r]}, {X[r]}, {c}, -{m1}")
        for r in range(4): o.append(f"v_exp_f32 {X[r]}, {X[r]}")
        o.append(f"v_add_f32 {m1}, {X[0]}, {X[1]}")
        o.append(f"v_add_f32 {m2}, {X[2]}, {X[3]}")
        o.append(f"v_add_f32 {m1}, {m1}, {m2}")
        o.append(f"v_mov_b32 {m2}, {m1}")
        o.append(f"v_permlane16_swap_b32 {m1}, {m2}")
        o.append(f"v_add_f32 {m1}, {m1}, {m2}")
        o.append(f"v_rcp_f32 {m1}, {m1}")
        for r in range(4): o.append(f"v_mul_f32 {X[r]}, {X[r]}, {m1}")
        o.append(f"v_cvt_pk_bf16_f32 {X[0]}, {X[0]}, {X[1]}")
        o.append(f"v_cvt_pk_bf16_f32 {X[1]}, {X[2]}, {X[3]}")
        o.append(f"v_mov_b32 {Y[0]}, {X[0]}")
        o.append(f"v_mov_b32 {Y[1]}, {X[1]}")
        o.append(f"v_permlane32_swap_b32 {X[0]}, {Y[0]}")
        o.append(f"v_permlane32_swap_b32 {X[1]}, {Y[1]}")
        for Zr in (X, Y):
            o.append(f"v_and_b32 {Zr[2]}, {Zr[0]}, {mcur[0]}")
            o.append(f"v_and_b32 {Zr[3]}, {Zr[1]}, {mcur[1]}")
            o.append(f"v_and_b32 {Zr[0]}, {Zr[0]}, {mprev[0]}")
            o.append(f"v_and_b32 {Zr[1]}, {Zr[1]}, {mprev[1]}")
        return o
    seq = []
    for x_, y_ in zip(softmax(1, 2, dg[1]), softmax(3, 4, dg[2])): seq += [x_, y_]
    emit(C, merge(seq, (bigdma(2), 0, len(seq) // 2)))
    P("s_waitcnt lgkmcnt(0)")
    O = [{j: Q[1][j] for j in range(1, 5)}, {j: V[1][j] for j in range(1, 5)}]
    for j in range(1, 5):
        for tt in range(2):
            P(f"v_mfma_f32_16x16x32_bf16 {O[tt][j]}, {Vt[tt][2*(j-1):2*(j-1)+4]}, {S0[j]}, 0")
    for j in range(1, 5):
        for tt in range(2):
            o_ = O[tt][j]; jt = j - 1
            P(f"v_cvt_pk_bf16_f32 {o_[0]}, {o_[0]}, {o_[1]}\nv_cvt_pk_bf16_f32 {o_[1]}, {o_[2]}, {o_[3]}")
            P(f"buffer_store_dwordx2 {o_[0:2]}, {so[tt]}, {sWS}, {S['b1']} offen offset:{(jt>>1)*1024 + (jt&1)*256} sc1"); vm.issue(("st", 0))
    hi2 = publish_and_p2(C, b2)
    return max(va.hi, hi2)

def main():
    C = Ctx(); P = C.P = Prog()
    sa = Alloc("s", 3, 98); S = C.S = {}
    S['w'] = sa()
    C.ptr = sa(16, 4); C.wsp = sa(2); pc = sa(2)
    C.sX, C.sW, C.sWS, C.sB2, C.sBo, C.sD = [sa(4) for _ in range(6)]
    C.sP = C.sD if not OPT["pfm"] else sa(4)
    C.mW, C.mH, C.mT, C.mU = sa(2), sa(2), sa(2), sa(2)
    C.tm = pc
    for n in "e rbl cb t0 t1 t2 kx kw wm0 xm0 b1 b2 hh half T cb2 bo bo_b bo_s bbeg bend ao ao_s abeg aend rm0 bm0 tag".split(): S[n] = sa()
    ns = 100
    assert sa.hi <= 90, sa.hi
    p = C.ptr
    C.stp = [R("s", 90, 2), p[2:4], p[4:6], p[6:8], p[8:10], p[10:12], p[14:16], C.wsp, R("s", 92, 2), R("s", 94, 2)]
    C.lane = R("v", 0)
    va = Alloc("v", 3, 256)
    C.t = [va() for _ in range(7)]
    C.vA = [va(), va()]; C.vB = [va(), va()]; C.rBr = [va(), va()]; C.rBb = [va(), va()]
    C.vF, C.vZ, C.vN, C.vPF = va(), va(), va(), va()
    C.vbase = va.p
    C.abase = 96
    C.breg = [[R("a", C.abase + 8*i, 4), R("a", C.abase + 8*i + 4, 4)] for i in range(NREG)]
    na = C.abase + 8 * NREG
    P(f"{NAME}_kernel:")
    stamp(C, 0)
    if OPT["spin"]: P("s_memrealtime s[98:99]")
    P("s_cmp_ge_u32 s2, 256\ns_cbranch_scc1 K_END")
    P(f"s_load_dwordx16 {C.ptr}, s[0:1], 0\ns_load_dwordx2 {C.wsp}, s[0:1], 64")
    P(f"s_getpc_b64 {pc}\nPC0:\ns_cmp_ge_u32 s2, 128\ns_cselect_b32 {S['t0']}, R_QKV-PC0, 0\nv_lshl_add_u32 v1, v0, 7, {S['t0']}\nglobal_load_dword v2, v1, {pc}")
    P(f"v_lshrrev_b32 v1, 6, v0\nv_and_b32 v0, 63, v0\nv_readfirstlane_b32 {S['w']}, v1")
    P(f"s_bfe_u32 {S['e']}, s2, 0x10002\ns_bfe_u32 {S['rbl']}, s2, 0x30003")
    P(f"s_and_b32 {S['t0']}, s2, 3\ns_lshl_b32 {S['t0']}, {S['t0']}, 1\ns_bfe_u32 {S['t1']}, s2, 0x10006\ns_add_u32 {S['cb']}, {S['t0']}, {S['t1']}")
    if OPT["rot"]:
        P(f"s_bfe_u32 {S['t0']}, s2, 0x20006\ns_lshl_b32 {S['t0']}, {S['t0']}, 1\ns_add_u32 {S['t0']}, {S['t0']}, {S['rbl']}")
        P(f"s_sub_u32 {S['t1']}, {S['t0']}, 7\ns_cmp_ge_u32 {S['t0']}, 7\ns_cselect_b32 {S['t0']}, {S['t1']}, {S['t0']}")
    else:
        P(f"s_mov_b32 {S['t0']}, 0")
    P(f"s_lshl_b32 {S['kx']}, {S['t0']}, 7\ns_mul_i32 {S['t2']}, {S['e']}, 896")
    P("s_cmp_ge_u32 s2, 128\ns_cbranch_scc1 R_QKV")
    nv1 = role_ffn(C)
    P("R_QKV:")
    nv2 = role_qkv(C)
    P("K_END:\ns_endpgm")
    l, npad = pad_hazards(P.l)
    out = [f"; generated by gen2.py {OPT} (hazard pads {npad})",
           "; @launch grid=(256,1,1) block=(256,1,1) lds=163840",
           '.amdgcn_target "amdgcn-amd-amdhsa--gfx950"\n.text',
           f".globl {NAME}_kernel\n.p2align 8\n.type {NAME}_kernel,@function"]
    out.extend(l)
    out.append(".fill 8192, 4, 0xbf800000")
    out.append(kernel_desc(f"{NAME}_kernel", max(nv1, nv2), na, ns))
    print("\n".join(out))
main()
```

```python
import sys, math, struct
from asmlib import *

NAME = "recurrent_scan__sliding_local_dilated__dense_activation_relu__prompt"
OPT = dict(rot=1, pro=20, rate=8, LA=6, stamps=0, b2start=9, b2rate=8, ringmax=2, TB=30, fe_per=17, pfm=2, rot2=2, post=4, spin=0,
           fearly=1, fstart=3, qearly=1, qstart=5, nreg=17, late=0, fepi=0, qsm=5, ntx=0, ntw=0, first=8, com=0, pfs=0, slp=0, rots=1, cap=2, stfirst=1, rotm=7, rotk=1)
for a in sys.argv[1:]:
    k, v = a.split("="); assert k in OPT, k; OPT[k] = int(v)

f2h = lambda x: hex(struct.unpack("<I", struct.pack("<f", x))[0])
NT2 = 36
A2_KS = 144
RSTD_OFF = 2048 * A2_KS * 32
FLAG_OFF = RSTD_OFF + 8 * 8192
WS_USED = FLAG_OFF + 256 * 128
STAMP_OFF = 16 << 20
WS_REC = (STAMP_OFF + (1 << 20)) if (OPT["stamps"] or OPT["spin"]) else WS_USED
XBYTES = 2048 * 896
NTX = " nt" if OPT["ntx"] else ""; NTW = " nt" if OPT["ntw"] else ""
ONES = "0x3f803f80"; NINF = "0xff800000"; BIG = "0x80000000"
NREG, NRING = OPT["nreg"], 6
NBIG = NT2 - NREG - NRING
assert NBIG <= 13
RING0 = 114688; RINGW = NRING * 2048
REL = {"F": [12, 12, 13, 13, 10, 10, 11, 11, 13, 13, 9, 9, 11, 11],
       "Q": [13, 13, 13, 9, 11, 11, 12, 12, 13, 13, 10, 11, 11, -1]}
SPIN_MAX = 1 << 16

def srd(P, d, lo, hi, n):
    P(f"s_mov_b32 {d[0]}, {lo}\ns_mov_b32 {d[1]}, {hi}\ns_mov_b32 {d[2]}, {n}\ns_mov_b32 {d[3]}, 0x20000")

class Cnt:
    def __init__(self, name, mx): self.q = []; self.name = name; self.mx = mx
    def issue(self, tag): self.q.append(tag)
    def cnt(self, pred):
        last = -1
        for i, t in enumerate(self.q):
            if pred(t): last = i
        return min(len(self.q) - 1 - last, self.mx)
    def wait(self, pred): return f"s_waitcnt {self.name}({self.cnt(pred)})"

class Ctx: pass
class Lazy:
    def __init__(self, fn, n=1): self.fn = fn; self.n = n
def emit(C, seq):
    for x in seq: C.P(x.fn() if isinstance(x, Lazy) else x)
def vop(C, tag, text):
    def f():
        C.vm.issue(tag); return text
    return Lazy(f, text.count("\n") + 1)
def lop(C, tag, text):
    def f():
        C.lg.issue(tag); return text
    return Lazy(f)

def stamp(C, name):
    if not OPT["stamps"]: return
    i = len(C.names); C.names.append(name)
    if i: C.P(f"v_writelane_b32 {C.vST}, s{90 + 2*((i-1)&1)}, {i-1}")
    C.P(f"{'s_memrealtime' if OPT['stamps'] == 1 else 's_memtime'} s[{90 + 2*(i&1)}:{91 + 2*(i&1)}]")

def stamp_flush(C):
    if not OPT["stamps"]: return
    P, S = C.P, C.S
    i = len(C.names)
    P(f"s_waitcnt lgkmcnt(0)\nv_writelane_b32 {C.vST}, s{90 + 2*((i-1)&1)}, {i-1}")
    P(f"s_lshl_b32 {S['t0']}, s2, 2\ns_add_u32 {S['t0']}, {S['t0']}, {S['w']}\ns_lshl_b32 {S['t0']}, {S['t0']}, 8\ns_add_u32 {S['t0']}, {S['t0']}, {STAMP_OFF}")
    P(f"v_lshl_add_u32 v1, v0, 2, {S['t0']}\nbuffer_store_dword {C.vST}, v1, {C.sWS}, 0 offen")
    C.allnames[C.role] = list(C.names)

def spread(main, *streams):
    ev = []
    n = len(main)
    for si, (items, a, b) in enumerate(streams):
        k = len(items)
        for i, it in enumerate(items): ev.append((a * n + (i + 0.5) * (b - a) * n / max(k, 1), si, i, it))
    ev.sort(key=lambda e: (e[0], e[1], e[2]))
    wt = lambda it: (it.n if isinstance(it, Lazy) else it.count("\n") + 1)
    total = sum(wt(e[3]) for e in ev)
    out = []; j = 0; done = 0
    for g, m in enumerate(main):
        out.append(m)
        load = m.count("\n")
        while j < len(ev) and (g == n - 1 or (ev[j][0] <= g + 1.0 and (load == 0 or load + wt(ev[j][3]) <= OPT["cap"]))):
            out.append(ev[j][3]); load += wt(ev[j][3]); j += 1
    return out

def adv(reg, step, wrap, start=0):
    return f"s_add_u32 {reg}, {reg}, {step}\ns_cmp_eq_u32 {reg}, {wrap}\ns_cselect_b32 {reg}, {start}, {reg}"

def schedule(items, pro, rate, nsteps):
    sched = {s: [] for s in range(-1, nsteps)}
    i = 0
    for s in range(-1, nsteps):
        cap = pro if s == -1 else rate
        n = 0
        while i < len(items) and items[i]["free"] <= s and (n < cap or items[i]["need"] - 2 <= s):
            sched[s].append(i); i += 1; n += 1
    assert i == len(items)
    return sched

class B2:
    def __init__(self, C):
        self.C = C; self.loaded = 0; self.moved = 0; self.big = 0; self.safe = 0
        rel = REL[C.role]
        self.order = sorted(range(14), key=lambda i: (rel[i], i))
        self.rel = [rel[i] for i in self.order]
        self.xchunk = self.order[13]
    def avail(self, step): return min(sum(1 for r in self.rel[:13] if r <= step), NBIG)
    def chunk(self, i):
        b = self.order[i] * 8192
        return (b >> 16, b & 0xffff)
    def dma(self, t):
        C = self.C; S = C.S
        ring = t < NREG + NRING
        m0 = f"s_add_u32 m0, {S['rm0']}, {(t % NRING) * 2048}" if ring else f"s_add_u32 m0, {S['bm0']}, {self.order[t - NREG - NRING] * 8192}"
        if t < 28:
            sB = C.sB2; so = S['bo'] if ring else S['bo_b']; post = adv(so, 14336, S['bend'], S['bbeg'])
        else:
            sB = C.sBo; so = S['bo_s']; post = f"s_add_u32 {so}, {so}, {16 * 896}" if (t & 1) == 0 else adv(so, 12 * 896, S['send'], S['sbeg'])
        out = [m0]
        for j in range(2):
            out.append(vop(C, ("b2", t), f"buffer_load_dwordx4 {C.vB[j]}, {sB}, {so} offen offset:{j*1024} lds"))
        pl = post.split("\n")
        out.append(pl[0])
        if len(pl) > 1: out.append("\n".join(pl[1:]))
        return out
    def tr(self, t, dst):
        C = self.C
        if t < NREG + NRING: rb, off = C.rBr, (t % NRING) * 2048
        else:
            win, off = self.chunk(t - NREG - NRING); rb = C.rBb[win]
        o = []
        for f in range(2):
            o.append(f"ds_read_b64_tr_b16 {dst[f][0:2]}, {rb[f]} offset:{off}")
            o.append(f"ds_read_b64_tr_b16 {dst[f][2:4]}, {rb[f]} offset:{off + 512}")
        return o
    def lgkm(self): self.safe = self.moved
    def next_load(self, big_ok, ring_ok=True):
        if ring_ok and self.loaded < min(self.safe + NRING, NREG + NRING):
            self.loaded += 1; return self.dma(self.loaded - 1)
        if self.big < big_ok:
            self.big += 1; return self.dma(NREG + NRING + self.big - 1)
        return None
    def loads(self, n, big_ok, ringmax=99):
        o = []; l0 = self.loaded
        for _ in range(n):
            x = self.next_load(big_ok, self.loaded - l0 < ringmax)
            if x is None: break
            o.extend(x)
        return o
    def moves(self, upto, n=99):
        o = []
        while self.moved < min(upto, NREG) and n > 0:
            t = self.moved
            o.append(Lazy(lambda t=t: self.C.vm.wait(lambda q: q == ("b2", t))))
            o.extend(self.tr(t, self.C.breg[t])); self.moved += 1; n -= 1
        return o
    def drain(self, n, big_ok):
        C = self.C
        while n > 0 and not (self.moved == NREG and self.loaded == NREG + NRING and self.big >= big_ok):
            x = self.next_load(big_ok)
            if x is not None:
                emit(C, x); n -= 1
            else:
                emit(C, self.moves(self.loaded)); C.P("s_waitcnt lgkmcnt(0)"); self.lgkm()

def p2_setup(C):
    P, S, t, lane, w = C.P, C.S, C.t, C.lane, C.S['w']
    P(f"s_and_b32 {S['t0']}, s2, 7\ns_lshl_b32 {S['t0']}, {S['t0']}, 2\ns_bfe_u32 {S['t1']}, s2, 0x20003\ns_add_u32 {S['T']}, {S['t0']}, {S['t1']}\ns_lshr_b32 {S['cb2']}, s2, 5")
    if OPT["rot2"]:
        G = OPT["rot2"]
        tab = sum((((c % G) * 28 // G) // 2) << (4 * c) for c in range(8))
        P(f"s_lshl_b32 {S['t0']}, {S['cb2']}, 2\ns_lshr_b32 {S['t0']}, {tab}, {S['t0']}\ns_and_b32 {S['t0']}, {S['t0']}, 15\ns_lshl_b32 {S['t0']}, {S['t0']}, 1")
        P(f"s_mul_i32 {S['t1']}, {S['t1']}, 7\ns_add_u32 {S['t0']}, {S['t0']}, {S['t1']}")
        P(f"s_sub_u32 {S['t1']}, {S['t0']}, 28\ns_cmp_ge_u32 {S['t0']}, 28\ns_cselect_b32 {S['t0']}, {S['t1']}, {S['t0']}")
    else:
        P(f"s_mov_b32 {S['t0']}, 0")
    P(f"s_mul_i32 {S['bbeg']}, {w}, {28*14336}\ns_add_u32 {S['bend']}, {S['bbeg']}, {28*14336}\ns_mul_i32 {S['t1']}, {S['t0']}, 14336\ns_add_u32 {S['bo']}, {S['bbeg']}, {S['t1']}")
    P(f"s_add_u32 {S['bo_b']}, {S['bo']}, {(NREG+NRING)*14336}\ns_sub_u32 {S['t1']}, {S['bo_b']}, {28*14336}\ns_cmp_ge_u32 {S['bo_b']}, {S['bend']}\ns_cselect_b32 {S['bo_b']}, {S['t1']}, {S['bo_b']}")
    P(f"s_mul_i32 {S['sbeg']}, {w}, {112*896}\ns_add_u32 {S['send']}, {S['sbeg']}, {112*896}\ns_and_b32 {S['t1']}, {S['T']}, {3 if OPT['rots'] else 0}\ns_mul_i32 {S['t2']}, {S['t1']}, {28*896}\ns_add_u32 {S['bo_s']}, {S['sbeg']}, {S['t2']}\ns_lshl_b32 {S['asb']}, {S['t1']}, 12")
    P(f"s_mul_i32 {S['t1']}, {S['T']}, {A2_KS}\ns_lshl_b32 {S['t2']}, {w}, 3\ns_add_u32 {S['t2']}, {S['t1']}, {S['t2']}\ns_lshl_b32 {S['t2']}, {S['t2']}, 11\ns_add_u32 {S['ao_s']}, {S['t2']}, {S['asb']}\ns_mov_b32 {S['asb']}, {S['t2']}")
    P(f"s_mul_i32 {S['t2']}, {w}, 28\ns_add_u32 {S['t1']}, {S['t1']}, {S['t2']}\ns_add_u32 {S['t1']}, {S['t1']}, 32\ns_lshl_b32 {S['abeg']}, {S['t1']}, 11\ns_add_u32 {S['aend']}, {S['abeg']}, {28*2048}")
    P(f"s_lshl_b32 {S['t0']}, {S['t0']}, 11\ns_add_u32 {S['ao']}, {S['abeg']}, {S['t0']}")
    P(f"s_and_b32 {S['t1']}, {w}, 1\ns_lshl_b32 {S['t1']}, {S['t1']}, 10\nv_lshl_add_u32 {C.vA[0]}, {lane}, 4, {S['t1']}\nv_xor_b32 {C.vA[1]}, 1024, {C.vA[0]}")
    P(f"v_lshrrev_b32 {t[0]}, 3, {lane}\nv_mul_u32_u24 {t[0]}, 896, {t[0]}\nv_bfe_u32 {t[1]}, {lane}, 4, 1\nv_lshlrev_b32 {t[1]}, 2, {t[1]}\nv_and_b32 {t[2]}, 7, {lane}\nv_xor_b32 {t[1]}, {t[1]}, {t[2]}")
    P(f"s_lshl_b32 {S['t1']}, {S['cb2']}, 7\nv_lshl_add_u32 {t[0]}, {t[1]}, 4, {t[0]}\nv_add_u32 {C.vB[0]}, {S['t1']}, {t[0]}\nv_add_u32 {C.vB[1]}, {7168 - 1024}, {C.vB[0]}")
    P(f"s_mul_i32 {S['rm0']}, {w}, {RINGW}\ns_add_u32 {S['rm0']}, {S['rm0']}, {RING0}\ns_lshl_b32 {S['bm0']}, {w}, 11")
    P(f"s_cmp_lt_u32 s2, 224\ns_cselect_b32 {S['t0']}, {1792*896}, 0\ns_cselect_b32 {S['t1']}, {448*896}, 0")
    srd(P, C.sB2, C.ptr[10], C.ptr[11], S['t0'])
    srd(P, C.sBo, C.ptr[4], C.ptr[5], S['t1'])
    P(f"s_lshr_b32 {S['t1']}, {w}, 1\ns_lshl_b32 {S['t1']}, {S['t1']}, 6")
    P(f"v_bfe_u32 {t[0]}, {lane}, 2, 2\nv_lshrrev_b32 {t[1]}, 5, {lane}\nv_lshl_add_u32 {t[0]}, {t[1]}, 3, {t[0]}\nv_lshlrev_b32 {t[0]}, 7, {t[0]}")
    P(f"v_bfe_u32 {t[1]}, {lane}, 3, 1\nv_lshl_add_u32 {t[0]}, {t[1]}, 6, {t[0]}\nv_bfe_u32 {t[1]}, {lane}, 4, 1\nv_lshl_add_u32 {t[0]}, {t[1]}, 5, {t[0]}")
    P(f"v_and_b32 {t[1]}, 3, {lane}\nv_lshl_add_u32 {t[0]}, {t[1]}, 3, {t[0]}\nv_xor_b32 {t[0]}, {S['t1']}, {t[0]}")
    P(f"v_add_u32 {C.rBr[0]}, {S['rm0']}, {t[0]}\nv_xor_b32 {C.rBr[1]}, 64, {C.rBr[0]}\nv_add_u32 {C.rBb[0][0]}, {S['bm0']}, {t[0]}\nv_xor_b32 {C.rBb[0][1]}, 64, {C.rBb[0][0]}\nv_add_u32 {C.rBb[1][0]}, 65536, {C.rBb[0][0]}\nv_add_u32 {C.rBb[1][1]}, 65536, {C.rBb[0][1]}")
    P(f"s_lshr_b32 {S['t0']}, {S['T']}, 4\ns_lshl_b32 {S['t0']}, {S['t0']}, 2\ns_add_u32 {S['t0']}, {S['t0']}, {w}\ns_bfe_u32 {S['t1']}, {S['T']}, 0x30001\ns_lshl_b32 {S['t1']}, {S['t1']}, 3\ns_add_u32 {S['t0']}, {S['t0']}, {S['t1']}")
    P(f"s_lshl_b32 {S['t0']}, {S['t0']}, 7\ns_add_u32 {S['t0']}, {S['t0']}, {FLAG_OFF}\nv_and_b32 {t[0]}, 3, {lane}\nv_lshl_add_u32 {C.vF}, {t[0]}, 13, {S['t0']}")
    P(f"v_mov_b32 {t[0]}, {BIG}\nv_cmp_lt_u32 vcc, 3, {lane}\nv_cndmask_b32 {C.vF}, {C.vF}, {t[0]}, vcc")
    srd(P, C.sD, C.ptr[14], C.ptr[15], 256)
    P(f"v_mov_b32 {C.vZ}, 0")
    if C.role == "F":
        P(f"s_or_b32 {S['t0']}, s2, {w}\ns_cmp_eq_u32 {S['t0']}, 0\ns_cbranch_scc1 NON_S\nNON_F:")
        C.slow.append(f"NON_S:\ns_memrealtime {C.tm}\ns_waitcnt lgkmcnt(0)\ns_or_b32 {S['t0']}, {C.tm[0]}, 1\nv_mov_b32 {t[0]}, {S['t0']}\nbuffer_store_dword {t[0]}, {C.vZ}, {C.sD}, 0 offen sc1\ns_branch NON_F")
    if OPT["pfm"] == 2:
        if C.role == "Q":
            P(f"s_sub_u32 {S['t0']}, s2, 224\ns_lshl_b32 {S['t0']}, {S['t0']}, 2\ns_add_u32 {S['t0']}, {S['t0']}, {w}\ns_sub_u32 {S['t1']}, {S['t0']}, 98\ns_cmp_lt_u32 {S['t0']}, 98\ns_cselect_b32 {S['t0']}, {S['t0']}, {S['t1']}")
            P(f"s_cselect_b32 {C.sP[0]}, {C.ptr[10]}, {C.ptr[4]}\ns_cselect_b32 {C.sP[1]}, {C.ptr[11]}, {C.ptr[5]}\ns_mov_b32 {C.sP[2]}, {448*896}\ns_cselect_b32 {C.sP[2]}, {1792*896}, {C.sP[2]}\ns_mov_b32 {C.sP[3]}, 0x20000")
            P(f"s_cmp_lt_u32 s2, 224\ns_cselect_b32 {C.sP[2]}, 0, {C.sP[2]}\ns_cselect_b32 {S['t0']}, 0, {S['t0']}")
            P(f"s_lshl_b32 {S['t0']}, {S['t0']}, 14\nv_lshl_add_u32 {C.vPF}, {lane}, 8, {S['t0']}")
    elif OPT["pfm"]:
        P(f"s_lshl_b32 {S['t0']}, s2, 2\ns_add_u32 {S['t0']}, {S['t0']}, {w}\ns_sub_u32 {S['t1']}, {S['t0']}, 784\ns_cmp_lt_u32 {S['t0']}, 784\ns_cselect_b32 {S['t0']}, {S['t0']}, {S['t1']}")
        P(f"s_cselect_b32 {C.sP[0]}, {C.ptr[10]}, {C.ptr[4]}\ns_cselect_b32 {C.sP[1]}, {C.ptr[11]}, {C.ptr[5]}\ns_mov_b32 {C.sP[2]}, {448*896}\ns_cselect_b32 {C.sP[2]}, {1792*896}, {C.sP[2]}\ns_mov_b32 {C.sP[3]}, 0x20000")
        P(f"s_lshl_b32 {S['t0']}, {S['t0']}, 11\nv_lshl_add_u32 {C.vPF}, {lane}, 5, {S['t0']}")

def run_loop(C, emit_item, sched, reads, mfmas, b2, early, estart, nsteps=14):
    P, S, vm = C.P, C.S, C.vm
    if OPT["pfm"] == 1:
        vm.issue(("pf", 0)); P(f"buffer_load_dword v2, {C.vPF}, {C.sP}, 0 offen")
    if OPT["pfm"] == 2 and C.role == "Q" and OPT["pfs"] < 0:
        for j in range(2): vm.issue(("pf", 0)); P(f"buffer_load_dword v2, {C.vPF}, {C.sP}, 0 offen offset:{128*j}")
    P(vm.wait(lambda q: q[0] == "d" and q[1] <= 0) + " lgkmcnt(0)")
    P("s_barrier")
    stamp(C, "d0")
    P.ext(reads(0))
    hist = {}
    for s in range(nsteps):
        if s + 1 < nsteps: P(vm.wait(lambda q: q[0] == "d" and q[1] <= s + 1) + " lgkmcnt(0)")
        else: P("s_waitcnt lgkmcnt(0)")
        P("s_barrier")
        if s in (1, 2, 4, 7, 10, 13): stamp(C, f"s{s}")
        m = mfmas(s)
        rd = reads(s + 1) if s + 1 < nsteps else []
        dm = []; C.m0 = None
        for i in sched[s]: dm.extend(emit_item(i))
        if OPT["pfm"] == 2 and C.role == "Q" and s == OPT["pfs"]:
            dm = [vop(C, ("pf", 0), f"buffer_load_dword v2, {C.vPF}, {C.sP}, 0 offen offset:{128*j}") for j in range(2)] + dm
        if s == 6: dm.append(vop(C, ("nonce", 0), f"buffer_load_dword {C.vN}, {C.vZ}, {C.sD}, 0 offen sc1"))
        mv = []
        b2.lgkm()
        if s >= estart:
            n = sum(1 for x in dm if isinstance(x, Lazy))
            k = max((OPT["b2rate"] + 1 - n) // 2, early) if s >= OPT["b2start"] else early
            dm.extend(b2.loads(k, min(b2.avail(s), C.big_early), OPT["ringmax"]))
            mv = b2.moves(hist.get(s - 2, 0), 3)
            hist[s] = b2.loaded
        emit(C, spread(m, (rd, 0, 0.8), (dm, 0, 0.95), (mv, 0.3, 0.9)))
    C.hist = hist
    stamp(C, "loopend")

def get_tag(C):
    P, S, role = C.P, C.S, C.role
    P(C.vm.wait(lambda q: q[0] == "nonce"))
    P(f"v_readfirstlane_b32 {S['tag']}, {C.vN}\ns_cmp_eq_u32 {S['tag']}, 0\ns_cbranch_scc1 TAGSL_{role}\nTAGOK_{role}:")
    C.slow.append(f"TAGSL_{role}:\ns_mov_b32 {S['t2']}, 0\nTAGLP_{role}:\nbuffer_load_dword {C.vN}, {C.vZ}, {C.sD}, 0 offen sc1\ns_waitcnt vmcnt(0)\nv_readfirstlane_b32 {S['tag']}, {C.vN}\ns_add_u32 {S['t2']}, {S['t2']}, 1\n"
                  f"s_cmp_ge_u32 {S['t2']}, {SPIN_MAX}\ns_cbranch_scc1 TAGOK_{role}\ns_cmp_eq_u32 {S['tag']}, 0\ns_cbranch_scc1 TAGLP_{role}\ns_branch TAGOK_{role}")

def flag_store(C):
    P, S, t = C.P, C.S, C.t
    P(f"s_lshl_b32 {S['t0']}, s2, 7\ns_add_u32 {S['t0']}, {S['t0']}, {FLAG_OFF}\ns_cmp_eq_u32 {S['w']}, 0\ns_cselect_b32 {S['t0']}, {S['t0']}, {BIG}")
    P(f"v_mov_b32 {t[5]}, {S['t0']}\nv_mov_b32 {t[6]}, {S['tag']}\ns_mov_b64 exec, 1\nbuffer_store_dword {t[6]}, {t[5]}, {C.sWS}, 0 offen sc1\ns_mov_b64 exec, -1")
    C.vm.issue(("flag", 0))

def poll_req(C): return vop(C, ("pl", 0), f"buffer_load_dword {C.vFL}, {C.vF}, {C.sWS}, 0 offen sc1")
def poll_check(C, label, mask, first=True):
    P, S = C.P, C.S
    loop = (f"s_mov_b32 {S['t2']}, 0\n{label}:\nbuffer_load_dword {C.vFL}, {C.vF}, {C.sWS}, 0 offen sc1\ns_waitcnt vmcnt(0)\nv_cmp_eq_u32 vcc, {S['tag']}, {C.vFL}\ns_add_u32 {S['t2']}, {S['t2']}, 1\n"
            f"s_cmp_ge_u32 {S['t2']}, {SPIN_MAX}\ns_cbranch_scc1 {label}_X\ns_and_b32 {S['t0']}, vcc_lo, {mask}\ns_cmp_lg_u32 {S['t0']}, {mask}\ns_cbranch_scc1 {label}")
    if OPT["slp"]: loop = loop.replace(f"{label}:\nbuffer_load", f"s_branch {label}_F\n{label}:\ns_sleep {OPT['slp']}\n{label}_F:\nbuffer_load") if not first else loop.replace(f"{label}:\nbuffer_load", f"{label}:\ns_sleep {OPT['slp']}\nbuffer_load")
    if first:
        P(C.vm.wait(lambda q: q[0] == "pl"))
        P(f"v_cmp_eq_u32 vcc, {S['tag']}, {C.vFL}\ns_and_b32 {S['t0']}, vcc_lo, {mask}\ns_cmp_lg_u32 {S['t0']}, {mask}\ns_cbranch_scc1 {label}_S\n{label}_X:")
        C.slow.append(f"{label}_S:\n{loop}\ns_branch {label}_X")
    else:
        P(loop + f"\n{label}_X:")

def aload(C, tt):
    S = C.S
    so = S['ao'] if tt < 28 else S['ao_s']
    post = adv(so, 2048, S['aend'], S['abeg'])
    if tt == 27: post = f"s_mov_b32 {S['abeg']}, {S['asb']}\ns_add_u32 {S['aend']}, {S['asb']}, {8*2048}"
    return [vop(C, ("a", tt), f"buffer_load_dwordx4 {C.aring[tt % C.NA][j]}, {C.vA[j]}, {C.sWS}, {so} offen sc1" + ("\n" + post if j else "")) for j in range(2)]

def phase2(C, b2, flag_at):
    P, S, vm, t, lane, w = C.P, C.S, C.vm, C.t, C.lane, C.S['w']
    role = C.role; LA = OPT["LA"]; NA = C.NA; aring = C.aring; bf = C.bf
    lg = C.lg = Cnt("lgkmcnt", 15)
    va = Alloc("v", C.vbase, 256)
    accf = [[va(16, 4) for _ in range(2)] for _ in range(2)]
    accs = [[va(16, 4) for _ in range(2)] for _ in range(2)]
    xv = [va(2) for _ in range(4)]; rstd = va(); vO = va(); vL = va(); k1 = va(); Rr = va(8, 4)
    vXd = va(); vXr = va(); wa = va(); wb = va(); vR = va()
    ra = [va() for _ in range(3)]; rb = [va() for _ in range(3)]
    sO = C.sW
    n_, hf = t[3], t[4]
    su = []
    def U(s): su.extend(s.split("\n"))
    U(f"s_mov_b32 {C.sX[0]}, {C.ptr[0]}\ns_mov_b32 {C.sX[1]}, {C.ptr[1]}\ns_mov_b32 {C.sX[2]}, {XBYTES}")
    U(f"s_mov_b32 {sO[0]}, {C.ptr[12]}\ns_mov_b32 {sO[1]}, {C.ptr[13]}\ns_mov_b32 {sO[2]}, {XBYTES}")
    U(f"v_and_b32 {n_}, 31, {lane}\nv_lshrrev_b32 {hf}, 5, {lane}\nv_lshlrev_b32 {vL}, 4, {lane}")
    U(f"s_and_b32 {S['b1']}, {S['T']}, 15\ns_mul_i32 {S['b1']}, {S['b1']}, {64*1792}\ns_lshr_b32 {S['b2']}, {S['T']}, 4\ns_mul_i32 {S['b2']}, {S['b2']}, 896\ns_add_u32 {S['b1']}, {S['b1']}, {S['b2']}")
    U(f"s_lshl_b32 {S['b2']}, {S['cb2']}, 7\ns_add_u32 {S['b1']}, {S['b1']}, {S['b2']}")
    U(f"v_lshrrev_b32 {t[0]}, 3, {lane}\nv_and_b32 {t[1]}, 7, {lane}\nv_xor_b32 {t[1]}, {t[0]}, {t[1]}\nv_mul_u32_u24 {t[0]}, 1792, {t[0]}\nv_lshl_add_u32 {vXd}, {t[1]}, 4, {t[0]}")
    U(f"s_mul_i32 {S['kx']}, {w}, {16*1792}\ns_add_u32 {S['kx']}, {S['kx']}, {S['b1']}\ns_add_u32 {S['kw']}, {S['kx']}, {8*1792}")
    U(f"s_and_b32 {S['hh']}, {w}, 1\ns_lshr_b32 {S['half']}, {w}, 1\ns_lshl_b32 {S['b2']}, {S['hh']}, 12\ns_add_u32 {S['b2']}, {S['b2']}, {b2.xchunk*8192}")
    U(f"v_lshlrev_b32 {t[0]}, 7, {n_}\nv_lshl_add_u32 {t[0]}, {hf}, 3, {t[0]}")
    U(f"s_lshl_b32 {S['wm0']}, {S['half']}, 2\nv_and_b32 {t[1]}, 7, {lane}\nv_xor_b32 {t[1]}, {S['wm0']}, {t[1]}\nv_lshl_add_u32 {t[0]}, {t[1]}, 4, {t[0]}\nv_add_u32 {vXr}, {S['b2']}, {t[0]}")
    U(f"s_mul_i32 {S['b2']}, {S['hh']}, {32*1792}\ns_add_u32 {S['b2']}, {S['b2']}, {S['b1']}\ns_lshl_b32 {S['wm0']}, {S['half']}, 6\ns_add_u32 {S['b2']}, {S['b2']}, {S['wm0']}")
    U(f"v_mul_u32_u24 {t[0]}, 1792, {n_}\nv_add_u32 {t[0]}, {S['b2']}, {t[0]}\nv_lshl_add_u32 {vO}, {hf}, 4, {t[0]}")
    U(f"s_lshl_b32 {S['b2']}, {S['T']}, 1\ns_add_u32 {S['b2']}, {S['b2']}, {S['hh']}\ns_lshl_b32 {S['b2']}, {S['b2']}, 7\ns_lshl_b32 {S['wm0']}, {w}, 14\ns_add_u32 {S['b2']}, {S['b2']}, {S['wm0']}\ns_add_u32 {S['b2']}, {S['b2']}, {RSTD_OFF}")
    U(f"v_lshl_add_u32 {vR}, {n_}, 2, {S['b2']}")
    U(f"v_add_u32 {wa}, {S['rm0']}, {vL}\nv_add_u32 {wb}, {S['bm0']}, {vL}")
    for q in range(1, 4):
        U(f"s_xor_b32 {S['b2']}, {w}, {q}\ns_mul_i32 {S['wm0']}, {S['b2']}, {RINGW}\ns_add_u32 {S['wm0']}, {S['wm0']}, {RING0 + (q-1)*4096}\ns_lshl_b32 {S['b2']}, {S['b2']}, 11")
        U(f"v_add_u32 {ra[q-1]}, {S['wm0']}, {vL}\nv_add_u32 {rb[q-1]}, {S['b2']}, {vL}")
    NSU = 8
    pf_ = [accf[0][1], accf[1][0], accf[1][1]]; ps_ = [accs[0][1], accs[1][0], accs[1][1]]
    F = accf[0][0]; Sv = accs[0][0]
    fe = []
    for a in range(4):
        fe.append(Lazy(lambda a=a: lg.wait(lambda q: q == ("fr", a))))
        for r in range(4*a, 4*a+4): fe.append(f"v_add_f32 {F[r]}, {F[r]}, {pf_[0][r]}")
        for r in range(4*a, 4*a+4): fe.append(f"v_add_f32 {pf_[1][r]}, {pf_[1][r]}, {pf_[2][r]}")
        for r in range(4*a, 4*a+4): fe.append(f"v_add_f32 {F[r]}, {F[r]}, {pf_[1][r]}")
        for r in range(4*a, 4*a+4): fe.append(f"v_mul_f32 {pf_[0][r]}, {F[r]}, {k1}")
        for r in range(4*a, 4*a+4): fe.append(f"v_exp_f32 {pf_[0][r]}, {pf_[0][r]}")
        for r in range(4*a, 4*a+4): fe.append(f"v_mul_f32 {F[r]}, {F[r]}, {rstd}")
        for r in range(4*a, 4*a+4): fe.append(f"v_add_f32 {pf_[0][r]}, 1.0, {pf_[0][r]}")
        for r in range(4*a, 4*a+4): fe.append(f"v_rcp_f32 {pf_[0][r]}, {pf_[0][r]}")
        for h in range(2): fe.append(f"v_lshlrev_b32 {pf_[1][4*a+2*h]}, 16, {xv[a][h]}"); fe.append(f"v_and_b32 {pf_[1][4*a+2*h+1]}, 0xffff0000, {xv[a][h]}")
        for r in range(4*a, 4*a+4): fe.append(f"v_mul_f32 {F[r]}, {F[r]}, {pf_[0][r]}")
    fw = [lop(C, ("fw", 0), f"ds_write_b128 {wa}, {accf[q>>1][q&1][4*a:4*a+4]} offset:{(q-1)*4096 + a*1024}") for q in (3, 2, 1) for a in range(4)]
    TPOLL = 28 - LA - 4
    TB = OPT["TB"]; fe_per = OPT["fe_per"]
    sch = [c for c in range(8) if c != b2.xchunk][:6]; early_sw = True
    soff = lambda q, a: sch[(q-1)*2 + (a >> 1)] * 8192 + (a & 1) * 1024
    sw = {q: [lop(C, ("sw", 0), f"ds_write_b128 {wb}, {accs[q>>1][q&1][4*a:4*a+4]} offset:{soff(q, a)}") for a in range(4)] for q in (1, 2, 3)}
    P("s_waitcnt lgkmcnt(0)")
    for tt in range(NT2):
        need_b = (lambda q: q[0] == "b2" and q[1] <= tt + 1 + (tt == NT2 - 3)) if (tt + 1 >= NREG and tt + 1 < NT2) else (lambda q: False)
        assert tt + 1 >= NT2 or tt + 1 < NREG + NRING + b2.big
        P(vm.wait(lambda q: q == ("a", tt) or need_b(q) or (tt == flag_at and q[0] == "st") or (tt == TB and q[0] == "e")))
        if tt in (0, 7, 14, 21, 28): stamp(C, f"a{tt}")
        if tt == flag_at:
            P("s_barrier"); flag_store(C); stamp(C, "flag")
        if tt == TB:
            P(lg.wait(lambda q: q[0] == "fw")); P("s_barrier")
            P(f"v_mul_f32 {k1}, {f2h(-math.log2(math.e))}, {rstd}")
        if tt + 1 >= NREG and tt + 1 < NT2 - 1:
            emit(C, [lop(C, ("tr", tt + 1), x) for x in b2.tr(tt + 1, bf[(tt + 1) & 1])])
        if tt == NT2 - 3:
            emit(C, [lop(C, ("tr", NT2 - 1), x) for x in b2.tr(NT2 - 1, C.breg[0])])
        if tt >= NREG: P(lg.wait(lambda q: q == ("tr", tt)))
        ld = []; va_ = []
        if tt < NSU:
            k = len(su); va_ = su[tt * k // NSU:(tt + 1) * k // NSU]
        if tt == TPOLL: ld.append(poll_req(C))
        if tt + LA == 28:
            poll_check(C, f"PS_{role}", 12)
            ld.append(vop(C, ("e", 0), f"buffer_load_dword {rstd}, {vR}, {C.sWS}, 0 offen sc1"))
        if tt + LA < NT2: ld.extend(aload(C, tt + LA))
        if tt >= 1 and tt % 2 == 1: ld.extend(b2.loads(1, NBIG))
        if tt == NSU + 1:
            for j in range(2):
                ld.append(f"s_add_u32 m0, {S['bm0']}, {b2.xchunk*8192 + j*1024}")
                ld.append(vop(C, ("e", 0), f"buffer_load_dwordx4 {vXd}, {C.sX}, {S['kw'] if j else S['kx']} offen lds"))
        if 28 <= tt < TB: va_ = fw[(tt - 28) * 12 // (TB - 28):(tt - 27) * 12 // (TB - 28)]
        if tt == TB:
            rd = []
            for a in range(4):
                for i in range(3): rd.append(lop(C, ("fr", a), f"ds_read_b128 {pf_[i][4*a:4*a+4]}, {ra[i]} offset:{a*1024}"))
                rd.append(f"v_xor_b32 {t[0]}, {16*a}, {vXr}")
                rd.append(lop(C, ("fr", a), f"ds_read_b64 {xv[a]}, {t[0]}"))
            va_ = rd
        if tt > TB:
            va_ = fe[:fe_per]; fe = fe[fe_per:]
        acc = accf if tt < 28 else accs
        B = C.breg[tt] if tt < NREG else (bf[tt & 1] if tt < NT2 - 1 else C.breg[0])
        first = tt in (0, 28)
        m = [f"v_mfma_f32_32x32x16_bf16 {acc[f][p]}, {B[f]}, {aring[tt % NA][p]}, {0 if first else acc[f][p]}" for f, p in ((1, 1), (1, 0), (0, 1), (0, 0))]
        st_ = 1 if tt == 28 else 0
        if tt == NT2 - 2:
            held = (m, va_); continue
        if tt == NT2 - 1:
            m0_, v0_ = held
            m = [x for pair in zip(m0_, m) for x in pair]
            va_ = v0_ + va_
            wr = (sw[3] + sw[2]) if early_sw else []
            emit(C, merge(m, (va_, 0, 8), (wr[:4], 4, 6), (wr[4:], 6, 8)))
            continue
        emit(C, merge(m, (ld, 0, 4), (va_, st_, 4)))
    assert b2.big == NBIG
    stamp(C, "p2end")
    rest = sw[1] if early_sw else sw[3] + sw[2] + sw[1]
    h = min(len(fe), 2 * len(rest) + 6)
    emit(C, merge(fe[:h], (rest, 3, h)) if h > 3 else rest)
    P(lg.wait(lambda q: q[0] == "sw")); P("s_barrier")
    for a in range(4):
        for i in range(3): emit(C, [lop(C, ("sr", a), f"ds_read_b128 {ps_[i][4*a:4*a+4]}, {rb[i]} offset:{soff(i + 1, a)}")])
    emit(C, fe[h:])
    for a in range(4):
        P(lg.wait(lambda q: q == ("sr", a)))
        s4 = Sv[4*a:4*a+4]
        for hh in range(2):
            sl = slice(4*a+2*hh, 4*a+2*hh+2)
            P(f"v_pk_add_f32 {Sv[sl]}, {Sv[sl]}, {ps_[0][sl]}\nv_pk_add_f32 {ps_[1][sl]}, {ps_[1][sl]}, {ps_[2][sl]}")
        for hh in range(2):
            sl = slice(4*a+2*hh, 4*a+2*hh+2)
            P(f"v_pk_add_f32 {Sv[sl]}, {Sv[sl]}, {ps_[1][sl]}")
        for hh in range(2):
            sl = slice(4*a+2*hh, 4*a+2*hh+2)
            P(f"v_pk_fma_f32 {Sv[sl]}, {Sv[sl]}, {F[sl]}, {pf_[1][sl]}")
        P(f"v_cvt_pk_bf16_f32 {Rr[2*a]}, {s4[0]}, {s4[1]}\nv_cvt_pk_bf16_f32 {Rr[2*a+1]}, {s4[2]}, {s4[3]}")
        if a & 1:
            p = a >> 1
            P(f"v_permlane32_swap_b32 {Rr[4*p]}, {Rr[4*p+2]}\nv_permlane32_swap_b32 {Rr[4*p+1]}, {Rr[4*p+3]}")
            P(f"buffer_store_dwordx4 {Rr[4*p:4*p+4]}, {vO}, {sO}, 0 offen offset:{32*p}")
    if OPT["stamps"]:
        stamp(C, "stored"); P("s_waitcnt vmcnt(0)"); stamp(C, "end")
    if OPT["spin"] and role == "F":
        P(f"s_cmp_lg_u32 s2, 0\ns_cbranch_scc1 SPN2\nSPN1:\ns_memrealtime {C.tm}\ns_waitcnt lgkmcnt(0)\ns_sub_u32 {S['t0']}, {C.tm[0]}, s98\ns_cmp_lt_u32 {S['t0']}, {OPT['spin']}\ns_cbranch_scc1 SPN1\nSPN2:")
    stamp_flush(C)
    P("s_endpgm")
    del C.lg
    return va.hi

def dma_item(C, need, m0expr, load, execmask=None):
    s = load
    if execmask: s = f"s_mov_b64 exec, {execmask}\n{s}\ns_mov_b64 exec, -1"
    o = []
    if C.m0 != m0expr: o.append(m0expr)
    C.m0 = m0expr
    return o + [vop(C, ("d", need), s)]

def slab_tables(C, wmul):
    P, S = C.P, C.S
    if OPT["com"]:
        P(f"s_bfe_u32 {S['t0']}, s2, 0x20006\ns_mul_i32 {S['t0']}, {S['t0']}, 3\ns_lshr_b32 {S['t0']}, {S['t0']}, 1\ns_add_u32 {S['t0']}, {S['t0']}, {S['rbl']}")
        P(f"s_sub_u32 {S['t1']}, {S['t0']}, 6\ns_cmp_ge_u32 {S['t0']}, 6\ns_cselect_b32 {S['t0']}, {S['t1']}, {S['t0']}\ns_lshl_b32 {S['t0']}, {S['t0']}, 7")
        for d in range(1, 7):
            P(f"s_add_u32 {C.kxs[d]}, {C.kxs[d-1] if d > 1 else S['t0']}, 128\ns_cmp_eq_u32 {C.kxs[d]}, 896\ns_cselect_b32 {C.kxs[d]}, 128, {C.kxs[d]}\ns_mul_i32 {C.kws[d]}, {C.kxs[d]}, {wmul}")
        return
    for d in range(1, 7):
        P(f"s_add_u32 {C.kxs[d]}, {C.kxs[d-1]}, 128\ns_cmp_eq_u32 {C.kxs[d]}, 896\ns_cselect_b32 {C.kxs[d]}, 0, {C.kxs[d]}\ns_mul_i32 {C.kws[d]}, {C.kxs[d]}, {wmul}")

class Role: pass

def ffn_head(C):
    P, S, lane, t = C.P, C.S, C.lane, C.t
    Rl = Role(); Rl.vm = C.vm = Cnt("vmcnt", 63); C.vm.issue(("pf", 0)); C.m0 = None
    va = Rl.va = Alloc("v", C.vbase, 256)
    NW, NX = 4, 3; WB, XB = 0, 65536
    xd = C.xd; wd = Rl.wd = [va() for _ in range(8)]
    w = S['w']
    P(f"s_mul_i32 {S['t0']}, {S['cb']}, 448\ns_and_b32 {S['t0']}, {S['t0']}, 0xffffff80\ns_mul_i32 {S['t1']}, {w}, {8*3584}\ns_add_u32 {S['t0']}, {S['t0']}, {S['t1']}")
    P(f"v_lshrrev_b32 {t[0]}, 5, {lane}\nv_bfe_u32 {t[1]}, {lane}, 1, 4\nv_xor_b32 {t[1]}, {t[0]}, {t[1]}\nv_xor_b32 {t[1]}, {S['b1']}, {t[1]}")
    P(f"v_mul_u32_u24 {t[0]}, 3584, {t[0]}\nv_lshl_add_u32 {t[0]}, {t[1]}, 5, {t[0]}\nv_and_b32 {t[1]}, 1, {lane}\nv_lshl_add_u32 {t[0]}, {t[1]}, 4, {t[0]}")
    P(f"v_add_u32 {wd[0]}, {S['t0']}, {t[0]}\nv_xor_b32 {t[3]}, 64, {wd[0]}")
    P(f"v_add_u32 {wd[1]}, {2*3584 - 1024}, {t[3]}\nv_add_u32 {wd[2]}, {4*3584 - 2048}, {wd[0]}\nv_add_u32 {wd[3]}, {6*3584 - 3072}, {t[3]}")
    P(f"s_mul_i32 {S['kw']}, {S['kx']}, {64*3584//128}")
    karg(C)
    srd(P, C.sW, C.ptr[8], C.ptr[9], 448 * 3584)
    items = []
    for d in range(7):
        for j in range(4): items.append(dict(k="x", d=d, j=j, need=2*d, free=(2*(d-NX)+1 if d >= NX else -1)))
        for s in (2*d, 2*d+1):
            for j in range(4): items.append(dict(k="w", s=s, j=j, need=s, free=(s-NW if s >= NW else -1)))
    def emit_item(i):
        it = items[i]; j = it["j"]
        if it["k"] == "x":
            return dma_item(C, it["need"], f"s_add_u32 m0, {S['xm0']}, {XB + (it['d'] % NX)*16384}",
                            f"buffer_load_dwordx4 {xd[j]}, {C.sX}, {C.kxs[it['d']]} offen offset:{j*1024}{NTX} lds")
        return dma_item(C, it["need"], f"s_add_u32 m0, {S['xm0']}, {WB + (it['s'] % NW)*16384}",
                        f"buffer_load_dwordx4 {wd[j + 4*(it['s']&1)]}, {C.sW}, {C.kws[it['s']>>1]} offen offset:{j*1024}{NTW} lds")
    Rl.sched = schedule(items, OPT["pro"], OPT["rate"], 14); Rl.emit_item = emit_item
    for i in Rl.sched[-1][:8]: emit(C, emit_item(i))
    for j in range(4): P(f"v_add_u32 {wd[4+j]}, {32*3584}, {wd[j]}")
    for i in Rl.sched[-1][8:OPT["first"]]: emit(C, emit_item(i))
    return Rl

def karg(C):
    P, S = C.P, C.S
    P("s_waitcnt lgkmcnt(0)")
    P(f"s_add_u32 {C.sX[0]}, {C.ptr[0]}, {S['t2']}\ns_addc_u32 {C.sX[1]}, {C.ptr[1]}, 0\ns_sub_u32 {C.sX[2]}, {XBYTES}, {S['t2']}\ns_mov_b32 {C.sX[3]}, 0x20000")

def ffn_body(C, Rl):
    P, S, lane, t = C.P, C.S, C.lane, C.t
    C.role = "F"; vm = C.vm = Rl.vm; C.big_early = max(NBIG - OPT["late"], 0)
    va = Rl.va; aa = Alloc("a", 0, C.abase)
    NW, NX = 4, 3; WB, XB = 0, 65536
    sWS = C.sWS; w = S['w']
    stamp(C, "iss")
    xr = [[va() for _ in range(2)] for _ in range(2)]
    wr_ = [va() for _ in range(7)]
    acc = [[va(4, 4) for _ in range(4)] for _ in range(7)]
    cs = [va(4, 4) for _ in range(7)]
    rs = [va(4, 4) for _ in range(2)]
    ones = aa(4)
    fb = [dict(x=[aa(4) for _ in range(4)], w=[aa(4) for _ in range(7)]) for _ in range(2)]
    srd(P, sWS, C.wsp[0], C.wsp[1], WS_REC)
    wr, wc = S['half'], S['hh']
    n_, g_ = va(), va()
    P(f"v_and_b32 {n_}, 15, {lane}\nv_lshrrev_b32 {g_}, 4, {lane}")
    P(f"s_lshl_b32 {S['t0']}, {wr}, 13\ns_lshl_b32 {S['t1']}, {wc}, 12\ns_add_u32 {S['t0']}, {S['t0']}, {S['t1']}\ns_add_u32 {S['t0']}, {S['t0']}, {XB}")
    P(f"v_lshrrev_b32 {t[0]}, 1, {n_}\nv_xor_b32 {t[0]}, {g_}, {t[0]}\nv_lshlrev_b32 {t[0]}, 4, {t[0]}\nv_lshl_add_u32 {t[0]}, {n_}, 7, {t[0]}")
    P(f"v_add_u32 {xr[0][0]}, {S['t0']}, {t[0]}\nv_xor_b32 {xr[0][1]}, 64, {xr[0][0]}\nv_xor_b32 {xr[1][0]}, 4096, {xr[0][0]}\nv_xor_b32 {xr[1][1]}, 4096, {xr[0][1]}")
    P(f"v_bfe_u32 {t[0]}, {lane}, 2, 2\nv_lshl_add_u32 {t[1]}, {g_}, 3, {t[0]}\nv_lshlrev_b32 {t[1]}, 9, {t[1]}\nv_and_b32 {t[2]}, 3, {lane}\nv_lshl_add_u32 {t[1]}, {t[2]}, 3, {t[1]}")
    P(f"v_bfe_u32 {t[0]}, {lane}, 2, 3")
    P(f"s_lshl_b32 {S['b1']}, {wr}, 2\ns_mul_i32 {S['b2']}, {wr}, -3")
    P(f"s_and_b32 {S['t0']}, {S['cb']}, 1\ns_lshl_b32 {S['t0']}, {S['t0']}, 1\ns_mul_i32 {S['t1']}, {wc}, 7\ns_add_u32 {S['t0']}, {S['t0']}, {S['t1']}")
    P(f"s_add_u32 {S['t1']}, {S['t0']}, {S['b2']}\ns_add_u32 {S['t0']}, {S['t0']}, {S['b1']}")
    for c in range(7):
        P(f"s_add_u32 {S['t2']}, {S['t0'] if c <= 2 else S['t1']}, {c}")
        P(f"v_xor_b32 {t[2]}, {S['t2']}, {t[0]}\nv_lshl_add_u32 {wr_[c]}, {t[2]}, 5, {t[1]}")
    P(f"v_mov_b32 {t[0]}, {ONES}")
    for i in range(4): P(f"v_accvgpr_write_b32 {ones[i]}, {t[0]}")
    b2 = B2(C)
    RSB = b2.xchunk * 8192; CSB = RSB + 1024
    xw = RSB & 0x10000; RSB -= xw; CSB -= xw
    a_rs, a_rs2, a_cs, a_cs2 = va(), va(), va(), va()
    st = [va(), va()]
    P(f"s_lshl_b32 {S['t0']}, {wr}, 8\ns_lshl_b32 {S['t1']}, {wc}, 7\ns_add_u32 {S['t0']}, {S['t0']}, {S['t1']}\ns_add_u32 {S['t0']}, {S['t0']}, {xw}")
    P(f"v_lshlrev_b32 {a_rs}, 2, {n_}\nv_add_u32 {a_rs}, {S['t0']}, {a_rs}\nv_xor_b32 {a_rs2}, 128, {a_rs}")
    P(f"s_lshl_b32 {S['t0']}, {wc}, 3\ns_add_u32 {S['t1']}, {S['t0']}, {S['b2']}\ns_add_u32 {S['t0']}, {S['t0']}, {S['b1']}")
    P(f"s_lshl_b32 {S['t0']}, {S['t0']}, 6\ns_add_u32 {S['t1']}, {S['t1']}, 4\ns_lshl_b32 {S['t1']}, {S['t1']}, 6")
    P(f"v_lshlrev_b32 {a_cs}, 4, {g_}\nv_add_u32 {a_cs}, {xw}, {a_cs}\nv_add_u32 {a_cs2}, {S['t1']}, {a_cs}\nv_add_u32 {a_cs}, {S['t0']}, {a_cs}")
    P(f"s_lshl_b32 {S['t0']}, {wc}, 10\nv_lshlrev_b32 {st[0]}, 4, {lane}\nv_add_u32 {st[0]}, {S['t0']}, {st[0]}\nv_xor_b32 {st[1]}, 1024, {st[0]}")
    P(f"s_lshl_b32 {S['t0']}, {S['e']}, 3\ns_add_u32 {S['t0']}, {S['t0']}, {S['rbl']}\ns_lshl_b32 {S['t0']}, {S['t0']}, 1\ns_add_u32 {S['t0']}, {S['t0']}, {wr}")
    P(f"s_mul_i32 {S['t0']}, {S['t0']}, {A2_KS}\ns_mul_i32 {S['t1']}, {S['cb']}, 14\ns_add_u32 {S['t0']}, {S['t0']}, {S['t1']}\ns_mul_i32 {S['t1']}, {wc}, 7\ns_add_u32 {S['t0']}, {S['t0']}, {S['t1']}\ns_add_u32 {S['t0']}, {S['t0']}, 32")
    P(f"s_add_u32 {S['b1']}, {S['b1']}, {S['t0']}\ns_add_u32 {S['b2']}, {S['b2']}, {S['t0']}\ns_lshl_b32 {S['b1']}, {S['b1']}, 11\ns_lshl_b32 {S['b2']}, {S['b2']}, 11")
    p2_setup(C)
    slab_tables(C, 64*3584//128); C.m0 = None
    for i in Rl.sched[-1][OPT["first"]:]: emit(C, Rl.emit_item(i))
    def reads(s):
        b = fb[s & 1]
        xs = ((s >> 1) % NX) * 16384; ws = WB + (s % NW) * 16384
        X = [f"ds_read_b128 {b['x'][i]}, {xr[i>>1][s&1]} offset:{xs + (i&1)*2048}" for i in range(4)]
        W = []
        for c in range(7):
            W.append(f"ds_read_b64_tr_b16 {b['w'][c][0:2]}, {wr_[c]} offset:{ws}")
            W.append(f"ds_read_b64_tr_b16 {b['w'][c][2:4]}, {wr_[c]} offset:{ws + 2048}")
        return X + W
    def mfmas(s):
        b = fb[s & 1]; o = []
        def mm(d, a, bb): o.append(f"v_mfma_f32_16x16x32_bf16 {d}, {a}, {bb}, {d if s else 0}")
        for i in range(2): mm(rs[i], ones, b['x'][i])
        for c in range(4): mm(cs[c], b['w'][c], ones)
        for c in range(7):
            for i in range(4): mm(acc[c][i], b['w'][c], b['x'][i])
        if s == 13:
            wrs = [f"ds_write_b32 {a_rs}, {rs[i][0]} offset:{RSB + i*64}" for i in range(2)] + [f"ds_write_b128 {a_cs}, {cs[c]} offset:{CSB + c*64}" for c in range(4)]
            for k_, x in enumerate(wrs): o[14 + k_] += "\n" + x
        return o
    run_loop(C, Rl.emit_item, Rl.sched, reads, mfmas, b2, OPT["fearly"], OPT["fstart"])
    P("s_waitcnt lgkmcnt(0)\ns_barrier"); b2.lgkm()
    nm = [va(2), va(2)]
    P(f"ds_read_b32 {nm[1][0]}, {a_rs2} offset:{RSB}\nds_read_b32 {nm[1][1]}, {a_rs2} offset:{RSB+64}")
    for c in range(4, 7): P(f"ds_read_b128 {cs[c]}, {a_cs2} offset:{CSB + (c-4)*64}")
    NEG = f2h(-1.0/448)
    emit(C, b2.moves(C.hist[12]))
    P(f"v_mul_f32 {nm[0][0]}, {NEG}, {rs[0][0]}\nv_mul_f32 {nm[0][1]}, {NEG}, {rs[1][0]}")
    Z = [va(4, 4) for _ in range(4)]
    units = [(c, 0) for c in range(4)] + [(c, 1) for c in range(4)] + [(c, pr) for c in range(4, 7) for pr in range(2)]
    pend = None
    old = b2.loaded
    for ui, (c, pr) in enumerate(units):
        if ui == 4:
            P("s_waitcnt lgkmcnt(0)"); b2.lgkm()
            P(f"v_mul_f32 {nm[1][0]}, {NEG}, {nm[1][0]}\nv_mul_f32 {nm[1][1]}, {NEG}, {nm[1][1]}")
        z = Z[ui % 4]
        for ii in range(2):
            a = acc[c][2*pr+ii]
            sel = "op_sel_hi:[1,0,1]" if ii == 0 else "op_sel:[0,1,0] op_sel_hi:[1,1,1]"
            P(f"v_pk_fma_f32 {a[0:2]}, {cs[c][0:2]}, {nm[pr]}, {a[0:2]} {sel}")
            P(f"v_pk_fma_f32 {a[2:4]}, {cs[c][2:4]}, {nm[pr]}, {a[2:4]} {sel}")
        if pend: P(pend); vm.issue(("st", 0))
        for ii in range(2):
            a = acc[c][2*pr+ii]
            P(f"v_cvt_pk_bf16_f32 {z[2*ii]}, {a[0]}, {a[1]}\nv_cvt_pk_bf16_f32 {z[2*ii+1]}, {a[2]}, {a[3]}")
        for q in range(4): P(f"v_pk_max_i16 {z[q]}, {z[q]}, 0")
        if OPT["fepi"] and ui % OPT["fepi"] == 0: emit(C, b2.loads(1, C.big_early))
        pend = (f"s_add_u32 {S['t0']}, {S['b1'] if c <= 2 else S['b2']}, {c*2048}\n"
                f"v_permlane16_swap_b32 {z[0]}, {z[2]}\nv_permlane16_swap_b32 {z[1]}, {z[3]}\n"
                f"buffer_store_dwordx4 {z}, {st[pr]}, {sWS}, {S['t0']} offen sc1")
    P(pend); vm.issue(("st", 0))
    stamp(C, "epiend")
    emit(C, b2.moves(old))
    b2.drain(OPT["post"], C.big_early)
    get_tag(C)
    stamp(C, "tag")
    P(vm.wait(lambda q: q[0] == "st")); stamp(C, "ack"); P("s_barrier")
    flag_store(C)
    stamp(C, "flag")
    b2.drain(99, C.big_early)
    stamp(C, "b2iss")
    poll_check(C, "PF_F", 3, first=False)
    vm.q = []
    stamp(C, "polled")
    for tt in range(OPT["LA"]): emit(C, aload(C, tt))
    return max(va.hi, phase2(C, b2, None))

XS = 18432
def qkv_head(C):
    P, S, lane, t = C.P, C.S, C.lane, C.t
    Rl = Role(); Rl.vm = C.vm = Cnt("vmcnt", 63); C.vm.issue(("pf", 0)); C.m0 = None
    va = Rl.va = Alloc("v", C.vbase, 256)
    NW, NX = 4, 3; XB, WB = 0, 3 * XS
    xd = C.xd; xh = va(); wd = [va() for _ in range(6)]
    w = S['w']; hp = S['cb']; mW, mH = C.mW, C.mH
    P(f"s_mul_i32 {S['t1']}, {w}, {32*1792}\ns_add_u32 {S['t1']}, {S['t1']}, {8*1792}\ns_cmp_eq_u32 {S['rbl']}, 0\ns_cselect_b32 {S['t1']}, {BIG}, {S['t1']}")
    P(f"v_subrev_u32 {xh}, {S['t1']}, {t[3]}")
    P(f"s_lshl_b32 {S['t1']}, {w}, 4\ns_mov_b64 {mH}, 0xffff\ns_lshl_b64 {mH}, {mH}, {S['t1']}")
    P(f"v_and_b32 {t[0]}, 2, {t[4]}\nv_add_u32 {t[0]}, {S['b1']}, {t[0]}\nv_sub_u32 {t[0]}, {t[5]}, {t[0]}\nv_and_b32 {t[0]}, 7, {t[0]}")
    P(f"v_cmp_ne_u32 {mW}, 7, {t[0]}\nv_mov_b32 {t[2]}, {BIG}")
    P(f"s_mul_i32 {S['t0']}, {hp}, 112\ns_mul_i32 {S['t1']}, {w}, {8*2688}\ns_add_u32 {S['t0']}, {S['t0']}, {S['t1']}")
    P(f"v_mul_u32_u24 {t[1]}, 2688, {t[4]}\nv_lshl_add_u32 {t[1]}, {t[0]}, 4, {t[1]}\nv_add_u32 {t[1]}, {S['t0']}, {t[1]}\nv_cndmask_b32 {wd[2]}, {t[2]}, {t[1]}, {mW}")
    P(f"v_add_u32 {wd[1]}, 128, {wd[2]}\nv_add_u32 {wd[0]}, 256, {wd[2]}")
    P(f"s_mul_i32 {S['kw']}, {S['kx']}, {64*2688//128}\ns_mul_i32 {S['wm0']}, {w}, 3072")
    karg(C)
    P(f"s_sub_u32 {C.sW[0]}, {C.ptr[2]}, 256\ns_subb_u32 {C.sW[1]}, {C.ptr[3]}, 0\ns_mov_b32 {C.sW[2]}, {448*2688 + 256}\ns_mov_b32 {C.sW[3]}, 0x20000")
    items = []
    for d in range(7):
        fr = (2*(d-NX)+1 if d >= NX else -1)
        for j in (0, 1, 2, 3, -1): items.append(dict(k="x", d=d, j=j, need=2*d, free=fr))
        for s in (2*d, 2*d+1):
            for p in range(3): items.append(dict(k="w", s=s, j=p, need=s, free=(s-NW if s >= NW else -1)))
    def emit_item(i):
        it = items[i]; j = it["j"]
        if it["k"] == "x":
            sb = XB + (it['d'] % NX) * XS
            if j < 0: return dma_item(C, it["need"], f"s_mov_b32 m0, {sb + 1024}", f"buffer_load_dwordx4 {xh}, {C.sX}, {C.kxs[it['d']]} offen{NTX} lds", mH)
            return dma_item(C, it["need"], f"s_add_u32 m0, {S['xm0']}, {sb + 2048}", f"buffer_load_dwordx4 {xd[j]}, {C.sX}, {C.kxs[it['d']]} offen offset:{j*1024}{NTX} lds")
        return dma_item(C, it["need"], f"s_add_u32 m0, {S['wm0']}, {WB + (it['s'] % NW)*12288}",
                        f"buffer_load_dwordx4 {wd[j + 3*(it['s']&1)]}, {C.sW}, {C.kws[it['s']>>1]} offen offset:{j*1024}{NTW} lds", mW if j == 1 else None)
    Rl.sched = schedule(items, OPT["pro"] * 11 // 12, OPT["rate"] - 1, 14); Rl.emit_item = emit_item
    for i in Rl.sched[-1][:8]: emit(C, emit_item(i))
    for j in range(3): P(f"v_add_u32 {wd[3+j]}, {32*2688}, {wd[j]}")
    for i in Rl.sched[-1][8:min(OPT["first"], 11)]: emit(C, emit_item(i))
    return Rl

def qkv_body(C, Rl):
    P, S, lane, t = C.P, C.S, C.lane, C.t
    C.role = "Q"; vm = C.vm = Rl.vm; C.big_early = min(max(NBIG - OPT["late"], 0), 9)
    va = Rl.va; aa = Alloc("a", 0, C.abase)
    NW, NX = 4, 3; XB, WB = 0, 3 * XS
    sWS, mT = C.sWS, C.mT
    w = S['w']; hp = S['cb']; hh, half = S['hh'], S['half']
    stamp(C, "iss")
    xr = [va() for _ in range(2)]; xr0 = [va() for _ in range(2)]
    wr_ = [va() for _ in range(2)]
    acc = [[[va(4, 4) for _ in range(5)] for _ in range(2)] for _ in range(3)]
    dg = [va(4, 4) for _ in range(5)]
    cprev, ccur, cfirst = va(4, 4), va(4, 4), va(4, 4)
    mprev, mcur = va(2), va(2)
    fb = [dict(x=[aa(4) for _ in range(5)], w=[[aa(4) for _ in range(2)] for _ in range(3)]) for _ in range(2)]
    srd(P, sWS, C.wsp[0], C.wsp[1], WS_REC)
    n_, g_ = va(), va()
    P(f"v_and_b32 {n_}, 15, {lane}\nv_lshrrev_b32 {g_}, 4, {lane}")
    tmpcs = [va(4, 4) for _ in range(4)]
    c1, c0 = tmpcs[0], tmpcs[1]
    for i in range(4): P(f"v_mov_b32 {c1[i]}, {ONES}\nv_mov_b32 {c0[i]}, 0")
    P(f"v_and_b32 {t[0]}, 7, {lane}\nv_and_b32 {t[1]}, 2, {lane}\nv_bfe_u32 {t[2]}, {lane}, 3, 1\nv_lshl_add_u32 {t[1]}, {t[2]}, 2, {t[1]}")
    P(f"v_add_u32 {t[1]}, 7, {t[1]}\nv_and_b32 {t[1]}, 7, {t[1]}\nv_lshlrev_b32 {t[1]}, 4, {t[1]}\nv_lshl_add_u32 {t[0]}, {t[0]}, 7, {t[1]}")
    P(f"v_lshrrev_b32 {t[1]}, 3, {lane}\nv_mul_u32_u24 {t[1]}, 3072, {t[1]}\ns_mul_i32 {S['t0']}, {hh}, {2*12288}\ns_add_u32 {S['t0']}, {S['t0']}, {WB}")
    P(f"v_add3_u32 {t[0]}, {t[0]}, {t[1]}, {S['t0']}")
    P(f"ds_write_b128 {t[0]}, {c1} offset:1024")
    P(f"s_min_u32 {S['t0']}, {w}, 2\ns_mul_i32 {S['t0']}, {S['t0']}, {XS}\nv_lshlrev_b32 {t[1]}, 4, {lane}\nv_add_u32 {t[1]}, {S['t0']}, {t[1]}\nds_write_b128 {t[1]}, {c1} offset:{XB}")
    P(f"v_lshrrev_b32 {t[0]}, 1, {n_}\nv_xor_b32 {t[0]}, {g_}, {t[0]}\nv_lshlrev_b32 {t[0]}, 4, {t[0]}\nv_lshl_add_u32 {t[0]}, {n_}, 7, {t[0]}")
    P(f"s_lshl_b32 {S['t0']}, {half}, 13\nv_add_u32 {t[1]}, {S['t0']}, {t[0]}\nv_add_u32 {xr[0]}, {XB + 2048}, {t[1]}\nv_xor_b32 {xr[1]}, 64, {xr[0]}")
    P(f"v_cmp_gt_u32 vcc, 8, {n_}\nv_cndmask_b32 {xr0[0]}, {t[1]}, {t[0]}, vcc\nv_xor_b32 {xr0[1]}, 64, {xr0[0]}")
    P(f"v_bfe_u32 {t[0]}, {lane}, 2, 2\nv_mul_u32_u24 {t[1]}, 3072, {g_}\nv_lshl_add_u32 {t[0]}, {t[0]}, 7, {t[1]}\nv_add_u32 {t[0]}, {WB}, {t[0]}")
    P(f"v_bfe_u32 {t[1]}, {lane}, 3, 2\nv_lshlrev_b32 {t[1]}, 5, {t[1]}\nv_and_b32 {t[2]}, 3, {lane}")
    P(f"s_mul_i32 {S['t0']}, {hh}, 56\nv_lshl_add_u32 {t[3]}, {t[2]}, 3, {S['t0']}")
    P(f"v_add_u32 {t[4]}, {t[3]}, {t[1]}\nv_and_b32 {t[4]}, 127, {t[4]}\nv_add_u32 {wr_[0]}, {t[0]}, {t[4]}")
    P(f"s_lshl_b32 {S['t0']}, {hh}, 3\ns_sub_u32 {S['t0']}, 120, {S['t0']}\nv_mov_b32 {t[4]}, {S['t0']}\nv_add_u32 {t[3]}, 32, {t[3]}")
    P(f"v_cmp_eq_u32 vcc, 3, {t[2]}\nv_cndmask_b32 {t[3]}, {t[3]}, {t[4]}, vcc")
    P(f"v_add_u32 {t[4]}, {t[3]}, {t[1]}\nv_and_b32 {t[4]}, 127, {t[4]}\nv_add_u32 {wr_[1]}, {t[0]}, {t[4]}")
    P(f"v_lshlrev_b32 {t[0]}, 2, {g_}\nv_sub_u32 {t[0]}, {n_}, {t[0]}\nv_mov_b32 {t[1]}, {NINF}")
    P(f"s_or_b32 {S['t0']}, {S['rbl']}, {half}\ns_cmp_eq_u32 {S['t0']}, 0\ns_cselect_b32 {S['t0']}, {NINF}, 0")
    for r in range(4):
        P(f"v_subrev_u32 {t[2]}, {r}, {t[0]}")
        P(f"v_cmp_gt_i32 vcc, -8, {t[2]}\nv_cndmask_b32 {cprev[r]}, {t[1]}, {c0[0]}, vcc")
        P(f"v_cmp_gt_u32 vcc, 8, {t[2]}\nv_cndmask_b32 {ccur[r]}, {t[1]}, {c0[0]}, vcc")
        P(f"v_or_b32 {cfirst[r]}, {S['t0']}, {cprev[r]}")
    for (m, c) in ((mprev, cprev), (mcur, ccur)):
        for q in range(2):
            P(f"v_ashrrev_i32 {t[2]}, 31, {c[2*q]}\nv_ashrrev_i32 {t[3]}, 31, {c[2*q+1]}\nv_and_b32 {t[2]}, 0xffff, {t[2]}\nv_and_b32 {t[3]}, 0xffff0000, {t[3]}")
            P(f"v_or_b32 {t[2]}, {t[2]}, {t[3]}\nv_not_b32 {m[q]}, {t[2]}")
    a1, a2, av_w, av_r, sr, so = va(), va(), va(), va(), va(), va()
    VCH = [0, 1, 2, 8, 9]
    av_w2, av_r2 = va(), va()
    P(f"v_lshlrev_b32 {a1}, 2, {n_}\nv_bfe_u32 {a2}, {lane}, 2, 2\nv_lshl_add_u32 {a2}, {a2}, 6, {a1}\nv_add_u32 {a1}, 192, {a1}")
    P(f"v_and_b32 {t[2]}, 1, {lane}\nv_cmp_eq_u32 {mT}, 1, {t[2]}\nv_and_b32 {t[2]}, 2, {lane}\nv_cmp_eq_u32 {C.mU}, 2, {t[2]}")
    P(f"s_lshl_b32 {S['t1']}, {w}, 11\nv_mul_u32_u24 {av_w}, 80, {n_}\nv_lshl_add_u32 {av_w}, {g_}, 4, {av_w}\nv_add_u32 {av_w}, {S['t1']}, {av_w}")
    P(f"v_lshrrev_b32 {av_r}, 2, {lane}\nv_mul_u32_u24 {av_r}, 80, {av_r}\nv_and_b32 {t[4]}, 3, {lane}\nv_lshl_add_u32 {av_r}, {t[4]}, 4, {av_r}\nv_add_u32 {av_r}, {S['t1']}, {av_r}\nv_add_u32 {av_w2}, 65536, {av_w}\nv_add_u32 {av_r2}, 65536, {av_r}")
    P(f"v_lshlrev_b32 {so}, 4, {lane}")
    P(f"s_lshl_b32 {S['t1']}, {S['e']}, 3\ns_add_u32 {S['t1']}, {S['t1']}, {S['rbl']}\ns_lshl_b32 {S['t1']}, {S['t1']}, 1\ns_add_u32 {S['t1']}, {S['t1']}, {half}")
    P(f"s_lshl_b32 {S['t0']}, {hp}, 1\ns_add_u32 {S['t0']}, {S['t0']}, {hh}\ns_lshl_b32 {S['t0']}, {S['t0']}, 12\ns_mul_i32 {S['b1']}, {S['t1']}, {A2_KS*2048}\ns_add_u32 {S['b1']}, {S['b1']}, {S['t0']}")
    P(f"s_lshl_b32 {S['t1']}, {S['t1']}, 8\ns_lshl_b32 {S['t0']}, {hp}, 13\ns_add_u32 {S['t1']}, {S['t1']}, {S['t0']}\ns_add_u32 {S['t1']}, {S['t1']}, {RSTD_OFF}\ns_cmp_eq_u32 {hh}, 0\ns_cselect_b32 {S['t1']}, {S['t1']}, {BIG}")
    P(f"v_lshl_add_u32 {sr}, {lane}, 2, {S['t1']}")
    p2_setup(C)
    slab_tables(C, 64*2688//128); C.m0 = None
    for i in Rl.sched[-1][min(OPT["first"], 11):]: emit(C, Rl.emit_item(i))
    def reads(s):
        b = fb[s & 1]
        xs = ((s >> 1) % NX) * XS; ws = (s % NW) * 12288
        X = [f"ds_read_b128 {b['x'][0]}, {xr0[s&1]} offset:{xs}"] + [f"ds_read_b128 {b['x'][j]}, {xr[s&1]} offset:{xs + (j-1)*2048}" for j in range(1, 5)]
        W = []
        for p in (1, 2, 0):
            for tt in range(2):
                W.append(f"ds_read_b64_tr_b16 {b['w'][p][tt][0:2]}, {wr_[tt]} offset:{ws + p*1024}")
                W.append(f"ds_read_b64_tr_b16 {b['w'][p][tt][2:4]}, {wr_[tt]} offset:{ws + p*1024 + 512}")
        return X + W
    Q, K, V = acc
    ST = [va(2) for _ in range(5)]
    sq = [t[0], t[1], t[2], t[3], t[4]]
    csK = tmpcs[0:2]; csV = tmpcs[2:4]; csQ = [Q[0][0], Q[1][0]]
    def bc(d_, s_): return [f"v_mov_b32_dpp {d_[tt][r]}, {s_[tt][0][r]} row_newbcast:0 row_mask:0xf bank_mask:0xf" for tt in (1, 0) for r in range(4)]
    def mfmas(s):
        b = fb[s & 1]; o = []
        def mm(d, a, bb): o.append(f"v_mfma_f32_16x16x32_bf16 {d}, {a}, {bb}, {d if s else 0}")
        for j in range(5): mm(dg[j], b['x'][j], b['x'][j])
        for p in (1, 2, 0):
            for tt in (1, 0):
                for j in range(5): mm(acc[p][tt][j], b['w'][p][tt], b['x'][j])
        if s == 13:
            ex = []
            for j in range(5):
                ex += [f"v_cndmask_b32 {dg[j][0]}, {dg[j][0]}, {dg[j][1]}, {mT}", f"v_cndmask_b32 {dg[j][2]}, {dg[j][2]}, {dg[j][3]}, {mT}",
                       f"v_cndmask_b32 {dg[j][0]}, {dg[j][0]}, {dg[j][2]}, {C.mU}\nds_bpermute_b32 {sq[j]}, {a2}, {dg[j][0]}\nds_bpermute_b32 {ST[j][0]}, {a1}, {K[1][j][0]}"]
            ex += bc(csK, K)
            for k_, x in enumerate(ex): o[12 + k_] += "\n" + x
        return o
    b2 = B2(C)
    run_loop(C, Rl.emit_item, Rl.sched, reads, mfmas, b2, OPT["qearly"], OPT["qstart"])
    P.ext(bc(csV, V))
    assert b2.order[9:] == VCH
    emit(C, b2.moves(C.hist.get(12, 0)))
    P("s_waitcnt lgkmcnt(0)"); b2.lgkm()
    P(f"s_mov_b32 {S['t0']}, {f2h(1.0/448)}")
    for j in range(5): P(f"v_mul_f32 {ST[j][0]}, {f2h(-1.0/448)}, {ST[j][0]}")
    for j in range(5): P(f"v_mul_f32 {ST[j][1]}, {ST[j][0]}, {ST[j][0]}")
    for j in range(5): P(f"v_fma_f32 {ST[j][1]}, {sq[j]}, {S['t0']}, -{ST[j][1]}")
    for j in range(5): P(f"v_max_f32 {ST[j][1]}, 0, {ST[j][1]}")
    for j in range(5): P(f"v_add_f32 {ST[j][1]}, {f2h(1e-5)}, {ST[j][1]}")
    for j in range(5): P(f"v_rsq_f32 {ST[j][1]}, {ST[j][1]}")
    P.ext(bc(csQ, Q))
    LO = "op_sel_hi:[1,0,1]"; HI = "op_sel:[0,1] op_sel_hi:[1,1]"
    def correct(A_, cs_, j, scale, dst):
        o = []
        for tt in range(2):
            a = A_[tt][j]
            o.append(f"v_pk_fma_f32 {a[0:2]}, {cs_[tt][0:2]}, {ST[j]}, {a[0:2]} {LO}")
            o.append(f"v_pk_fma_f32 {a[2:4]}, {cs_[tt][2:4]}, {ST[j]}, {a[2:4]} {LO}")
        if scale:
            for tt in range(2):
                a = A_[tt][j]
                o.append(f"v_pk_mul_f32 {a[0:2]}, {a[0:2]}, {ST[j]} {HI}")
                o.append(f"v_pk_mul_f32 {a[2:4]}, {a[2:4]}, {ST[j]} {HI}")
        for tt in range(2):
            a = A_[tt][j]
            o.append(f"v_cvt_pk_bf16_f32 {dst[2*tt]}, {a[0]}, {a[1]}")
            o.append(f"v_cvt_pk_bf16_f32 {dst[2*tt+1]}, {a[2]}, {a[3]}")
        return o
    def more(n): return b2.loads(n, C.big_early)
    seq = []
    for j in range(5): seq.extend(correct(V, csV, j, True, V[0][j]))
    emit(C, merge(seq, (more(3), 0, len(seq))))
    for j in range(5): P(f"ds_write_b128 {av_w2 if VCH[j] >= 8 else av_w}, {V[0][j]} offset:{(VCH[j]*8192) & 0xffff}")
    seq = []
    l0 = b2.loaded
    for j in range(5): seq.extend(correct(K, csK, j, True, K[0][j]))
    emit(C, merge(seq, (more(3), 0, len(seq))))
    emit(C, b2.moves(l0))
    Vt = [R("a", C.abase - 20, 10), R("a", C.abase - 10, 10)]
    P("s_waitcnt lgkmcnt(0)"); b2.lgkm()
    for tt in range(2):
        for j in range(5): P(f"ds_read_b64_tr_b16 {Vt[tt][2*j:2*j+2]}, {av_r2 if VCH[j] >= 8 else av_r} offset:{((VCH[j]*8192) & 0xffff) + 8*tt}")
    seq = []
    for j in range(1, 5): seq.extend(correct(Q, csQ, j, False, Q[0][j]))
    emit(C, merge(seq, (more(2), 0, len(seq))))
    S0 = {j: K[1][j] for j in range(1, 5)}; S1 = {j: V[1][j] for j in range(1, 5)}
    rg = [f"v_cmp_eq_u32 vcc, 1, {g_}", f"v_cndmask_b32 {t[5]}, {ST[1][1]}, {ST[2][1]}, vcc", f"v_cmp_eq_u32 vcc, 2, {g_}", f"v_cndmask_b32 {t[5]}, {t[5]}, {ST[3][1]}, vcc",
          f"v_cmp_eq_u32 vcc, 3, {g_}", f"v_cndmask_b32 {t[5]}, {t[5]}, {ST[4][1]}, vcc", f"v_cmp_lt_u32 vcc, 31, {lane}"]
    seq = []
    for j in range(1, 5):
        seq.append(f"v_mfma_f32_16x16x32_bf16 {S0[j]}, {K[0][j-1]}, {Q[0][j]}, {cfirst if j == 1 else cprev}")
        seq.append(f"v_mfma_f32_16x16x32_bf16 {S1[j]}, {K[0][j]}, {Q[0][j]}, {ccur}")
    P.ext(merge(seq, (rg, 0, 8)))
    get_tag(C)
    cq = f2h(28 ** -0.5 * math.log2(math.e))
    def softmax(a, b, tm):
        o = []
        X, Y = S0[a], S0[b]
        c, m1, m2 = tm[0], tm[1], tm[2]
        o.append(f"v_cndmask_b32 {c}, {ST[a][1]}, {ST[b][1]}, vcc")
        for r in range(4): o.append(f"v_max_f32 {X[r]}, {X[r]}, {S1[a][r]}")
        for r in range(4): o.append(f"v_max_f32 {Y[r]}, {Y[r]}, {S1[b][r]}")
        o.append(f"v_mul_f32 {c}, {cq}, {c}")
        for r in range(4): o.append(f"v_permlane32_swap_b32 {X[r]}, {Y[r]}")
        for r in range(4): o.append(f"v_max_f32 {X[r]}, {X[r]}, {Y[r]}")
        o.append(f"v_max3_f32 {m1}, {X[0]}, {X[1]}, {X[2]}")
        o.append(f"v_max_f32 {m1}, {m1}, {X[3]}")
        o.append(f"v_mov_b32 {m2}, {m1}")
        o.append(f"v_permlane16_swap_b32 {m1}, {m2}")
        o.append(f"v_max_f32 {m1}, {m1}, {m2}")
        o.append(f"v_mul_f32 {m1}, {m1}, {c}")
        for r in range(4): o.append(f"v_fma_f32 {X[r]}, {X[r]}, {c}, -{m1}")
        for r in range(4): o.append(f"v_exp_f32 {X[r]}, {X[r]}")
        o.append(f"v_add_f32 {m1}, {X[0]}, {X[1]}")
        o.append(f"v_add_f32 {m2}, {X[2]}, {X[3]}")
        o.append(f"v_add_f32 {m1}, {m1}, {m2}")
        o.append(f"v_mov_b32 {m2}, {m1}")
        o.append(f"v_permlane16_swap_b32 {m1}, {m2}")
        o.append(f"v_add_f32 {m1}, {m1}, {m2}")
        o.append(f"v_rcp_f32 {m1}, {m1}")
        for r in range(4): o.append(f"v_mul_f32 {X[r]}, {X[r]}, {m1}")
        o.append(f"v_cvt_pk_bf16_f32 {X[0]}, {X[0]}, {X[1]}")
        o.append(f"v_cvt_pk_bf16_f32 {X[1]}, {X[2]}, {X[3]}")
        o.append(f"v_mov_b32 {Y[0]}, {X[0]}")
        o.append(f"v_mov_b32 {Y[1]}, {X[1]}")
        o.append(f"v_permlane32_swap_b32 {X[0]}, {Y[0]}")
        o.append(f"v_permlane32_swap_b32 {X[1]}, {Y[1]}")
        for Zr in (X, Y):
            o.append(f"v_and_b32 {Zr[2]}, {Zr[0]}, {mcur[0]}")
            o.append(f"v_and_b32 {Zr[3]}, {Zr[1]}, {mcur[1]}")
            o.append(f"v_and_b32 {Zr[0]}, {Zr[0]}, {mprev[0]}")
            o.append(f"v_and_b32 {Zr[1]}, {Zr[1]}, {mprev[1]}")
        return o
    seq = []
    for x_, y_ in zip(softmax(1, 2, dg[1]), softmax(3, 4, dg[2])): seq += [x_, y_]
    l0 = b2.loaded
    emit(C, merge(seq, (more(OPT["qsm"]) + [poll_req(C)], 0, len(seq) * 2 // 3)))
    emit(C, b2.moves(l0))
    P("s_waitcnt lgkmcnt(0)"); b2.lgkm()
    O = [{j: Q[1][j] for j in range(1, 5)}, {j: V[1][j] for j in range(1, 5)}]
    for j in range(1, 5):
        for tt in range(2):
            P(f"v_mfma_f32_16x16x32_bf16 {O[tt][j]}, {Vt[tt][2*(j-1):2*(j-1)+4]}, {S0[j]}, 0")
    Z = {(tt, pr): K[0][2*tt+pr] for tt in range(2) for pr in range(2)}
    for pr in range(2):
        for tt in range(2):
            z = Z[tt, pr]
            for ii in range(2):
                o_ = O[tt][1 + 2*pr + ii]
                P(f"v_cvt_pk_bf16_f32 {z[2*ii]}, {o_[0]}, {o_[1]}\nv_cvt_pk_bf16_f32 {z[2*ii+1]}, {o_[2]}, {o_[3]}")
    for pr in range(2):
        for tt in range(2):
            z = Z[tt, pr]
            P(f"v_permlane16_swap_b32 {z[0]}, {z[2]}\nv_permlane16_swap_b32 {z[1]}, {z[3]}")
    def stores():
        for pr in range(2):
            for tt in range(2):
                P(f"buffer_store_dwordx4 {Z[tt, pr]}, {so}, {sWS}, {S['b1']} offen offset:{tt*2048 + pr*1024} sc1"); vm.issue(("st", 0))
        P(f"buffer_store_dword {t[5]}, {sr}, {sWS}, 0 offen sc1"); vm.issue(("st", 0))
    stamp(C, "epiend")
    C.big_early = max(NBIG - OPT["late"], 0)
    stores()
    P("s_cmp_ge_u32 s2, 224\ns_cbranch_scc1 Q_FIN")
    q0 = list(vm.q); l0_ = len(P.l)
    P("Q_FIN:\ns_waitcnt vmcnt(0)\ns_barrier"); flag_store(C); P("s_endpgm")
    C.slow.append("\n".join(P.l[l0_:])); del P.l[l0_:]
    vm.q = q0
    b2.drain(99, C.big_early)
    poll_check(C, "PF_Q", 3)
    stamp(C, "polled")
    for tt in range(OPT["LA"]): emit(C, aload(C, tt))
    return max(va.hi, phase2(C, b2, 0))

def main():
    C = Ctx(); P = C.P = Prog()
    sa = Alloc("s", 3, 98); S = C.S = {}
    S['w'] = sa()
    C.ptr = sa(16, 4); C.wsp = sa(2); pc = sa(2)
    C.sX, C.sW, C.sWS, C.sB2, C.sBo, C.sD, C.sP = [sa(4) for _ in range(7)]
    C.mW, C.mH, C.mT, C.mU = sa(2), sa(2), sa(2), sa(2)
    C.tm = pc
    for n in "e rbl cb t0 t1 t2 kx kw wm0 xm0 b1 b2 hh half T cb2 bo bo_b bo_s bbeg bend ao ao_s abeg aend rm0 bm0 tag".split(): S[n] = sa()
    ns = 100
    assert sa.hi <= 90, sa.hi
    C.names = []; C.allnames = {}; C.slow = []
    S['sbeg'], S['send'], S['asb'] = R("s", 94), R("s", 95), R("s", 96)
    dead = [C.ptr[i] for i in (2, 3, 4, 5, 6, 7, 8, 9, 10, 11, 14, 15)]
    C.kxs = [S['kx']] + dead[:6]; C.kws = [S['kw']] + dead[6:]
    C.lane = lane = R("v", 0)
    va = Alloc("v", 3, 256)
    t = C.t = [va() for _ in range(7)]
    C.vA = [va(), va()]; C.vB = [va(), va()]; C.rBr = [va(), va()]; C.rBb = [[va(), va()], [va(), va()]]
    C.vF, C.vZ, C.vN, C.vPF, C.vST, C.vFL = [va() for _ in range(6)]
    C.xd = xd = [va() for _ in range(4)]
    C.vbase = va.p
    C.abase = 96
    C.breg = [[R("a", C.abase + 8*i, 4), R("a", C.abase + 8*i + 4, 4)] for i in range(NREG)]
    C.NA = OPT["LA"] + 1
    aa = Alloc("a", 0, C.abase - 20)
    C.aring = [[aa(4) for _ in range(2)] for _ in range(C.NA)]
    C.bf = [[aa(4) for _ in range(2)] for _ in range(2)]
    na = C.abase + 8 * NREG
    w = S['w']
    P(f"{NAME}_kernel:")
    stamp(C, "start")
    if OPT["spin"]: P("s_memrealtime s[98:99]")
    P("s_cmp_ge_u32 s2, 256\ns_cbranch_scc1 K_END")
    P(f"s_load_dwordx16 {C.ptr}, s[0:1], 0\ns_load_dwordx2 {C.wsp}, s[0:1], 64")
    P(f"s_getpc_b64 {pc}\ns_lshr_b32 {S['t0']}, s2, 3\ns_lshl_b32 {S['t0']}, {S['t0']}, 11\nv_lshl_add_u32 v1, v0, 3, {S['t0']}\nglobal_load_dword v2, v1, {pc}")
    P(f"v_lshrrev_b32 v1, 6, v0\nv_and_b32 v0, 63, v0\nv_readfirstlane_b32 {w}, v1")
    P(f"s_bfe_u32 {S['e']}, s2, 0x10002\ns_bfe_u32 {S['rbl']}, s2, 0x30003")
    P(f"s_and_b32 {S['t0']}, s2, 3\ns_lshl_b32 {S['t0']}, {S['t0']}, 1\ns_bfe_u32 {S['t1']}, s2, 0x10006\ns_add_u32 {S['cb']}, {S['t0']}, {S['t1']}")
    if OPT["rot"] and not OPT["com"]:
        P(f"s_bfe_u32 {S['t0']}, s2, 0x20006\ns_lshl_b32 {S['t0']}, {S['t0']}, 1\ns_add_u32 {S['t0']}, {S['t0']}, {S['rbl']}")
        if OPT["rotm"] == 7:
            P(f"s_sub_u32 {S['t1']}, {S['t0']}, 7\ns_cmp_ge_u32 {S['t0']}, 7\ns_cselect_b32 {S['t0']}, {S['t1']}, {S['t0']}")
        else:
            P(f"s_bfe_u32 {S['t0']}, s2, 0x20006\ns_add_u32 {S['t0']}, {S['t0']}, {S['rbl']}\ns_and_b32 {S['t0']}, {S['t0']}, {OPT['rotm']-1}\ns_mul_i32 {S['t0']}, {S['t0']}, {OPT['rotk']}")
    else:
        P(f"s_mov_b32 {S['t0']}, 0")
    P(f"s_lshl_b32 {S['kx']}, {S['t0']}, 7\ns_mul_i32 {S['t2']}, {S['e']}, 896")
    P(f"s_lshl_b32 {S['t0']}, {S['rbl']}, 7\ns_lshl_b32 {S['t1']}, {w}, 5\ns_add_u32 {S['t0']}, {S['t0']}, {S['t1']}")
    P(f"v_lshrrev_b32 {t[4]}, 3, {lane}\nv_add_u32 {t[0]}, {S['t0']}, {t[4]}\nv_mul_u32_u24 {t[0]}, 1792, {t[0]}")
    P(f"v_lshrrev_b32 {t[1]}, 4, {lane}\nv_and_b32 {t[5]}, 7, {lane}\nv_xor_b32 {t[2]}, {t[1]}, {t[5]}")
    P(f"v_lshl_add_u32 {xd[0]}, {t[2]}, 4, {t[0]}")
    P(f"v_xor_b32 {t[3]}, 64, {xd[0]}\nv_add_u32 {xd[1]}, {8*1792 - 1024}, {t[3]}\nv_add_u32 {xd[2]}, {16*1792 - 2048}, {xd[0]}\nv_add_u32 {xd[3]}, {24*1792 - 3072}, {t[3]}")
    P(f"s_and_b32 {S['hh']}, {w}, 1\ns_lshr_b32 {S['half']}, {w}, 1\ns_lshl_b32 {S['b1']}, {S['hh']}, 2\ns_lshl_b32 {S['xm0']}, {w}, 12")
    P("s_cmp_lt_u32 s2, 128\ns_cbranch_scc1 H_FFN")
    rq = qkv_head(C)
    P("s_branch R_QKV\nH_FFN:")
    rf = ffn_head(C)
    nv1 = ffn_body(C, rf)
    P("R_QKV:"); C.names = C.names[:1]
    nv2 = qkv_body(C, rq)
    for x in C.slow: P(x)
    P("K_END:\ns_endpgm")
    l, npad = pad_hazards(P.l)
    out = [f"; generated by gen5.py {OPT} (hazard pads {npad})",
           f"; stamps {C.allnames}",
           "; @launch grid=(256,1,1) block=(256,1,1) lds=163840",
           '.amdgcn_target "amdgcn-amd-amdhsa--gfx950"\n.text',
           f".globl {NAME}_kernel\n.p2align 8\n.type {NAME}_kernel,@function"]
    out.extend(l)
    out.append(".fill 7168, 4, 0xbf800000")
    out.append(kernel_desc(f"{NAME}_kernel", max(nv1, nv2), na, ns))
    print("\n".join(out))
main()
```

```python
import sys, math, struct
from asmlib import *

NAME = "recurrent_scan__sliding_local_dilated__dense_activation_relu__prompt"
OPT = dict(rot=1, pro=20, rate=8, LA=6, stamps=0, b2start=9, b2rate=8, ringmax=2, TB=30, fe_per=22, pfm=2, rot2=2, post=4, spin=0, enc='', encwg=0,
           fearly=1, fstart=3, qearly=1, qstart=5, nreg=17, late=0, fepi=0, qsm=5, ntx=0, ntw=0, first=8, com=0, pfs=0, slp=0, rots=1, cap=2, stfirst=1, rotm=7, rotk=1)
for a in sys.argv[1:]:
    k, v = a.split("="); assert k in OPT, k; OPT[k] = int(v) if k != "enc" else v

f2h = lambda x: hex(struct.unpack("<I", struct.pack("<f", x))[0])
NT2 = 36
A2_KS = 144
RSTD_OFF = 2048 * A2_KS * 32
FLAG_OFF = RSTD_OFF + 8 * 8192
WS_USED = FLAG_OFF + 256 * 128
STAMP_OFF = 16 << 20
WS_REC = (STAMP_OFF + (1 << 20)) if (OPT["stamps"] or OPT["spin"]) else WS_USED
XBYTES = 2048 * 896
NTX = " nt" if OPT["ntx"] else ""; NTW = " nt" if OPT["ntw"] else ""
ONES = "0x3f803f80"; NINF = "0xff800000"; BIG = "0x80000000"
NREG, NRING = OPT["nreg"], 6
NBIG = NT2 - NREG - NRING
assert NBIG <= 13
RING0 = 114688; RINGW = NRING * 2048
REL = {"F": [12, 12, 13, 13, 10, 10, 11, 11, 13, 13, 9, 9, 11, 11],
       "Q": [13, 13, 13, 9, 11, 11, 12, 12, 13, 13, 10, 11, 11, -1]}
SPIN_MAX = 1 << 16

def srd(P, d, lo, hi, n):
    P(f"s_mov_b32 {d[0]}, {lo}\ns_mov_b32 {d[1]}, {hi}\ns_mov_b32 {d[2]}, {n}\ns_mov_b32 {d[3]}, 0x20000")

class Cnt:
    def __init__(self, name, mx): self.q = []; self.name = name; self.mx = mx
    def issue(self, tag): self.q.append(tag)
    def cnt(self, pred):
        last = -1
        for i, t in enumerate(self.q):
            if pred(t): last = i
        return min(len(self.q) - 1 - last, self.mx)
    def wait(self, pred): return f"s_waitcnt {self.name}({self.cnt(pred)})"

class Ctx: pass
class Lazy:
    def __init__(self, fn, n=1): self.fn = fn; self.n = n
def emit(C, seq):
    for x in seq: C.P(x.fn() if isinstance(x, Lazy) else x)
def vop(C, tag, text):
    def f():
        C.vm.issue(tag); return text
    return Lazy(f, text.count("\n") + 1)
def lop(C, tag, text):
    def f():
        C.lg.issue(tag); return text
    return Lazy(f)

def stamp(C, name):
    if OPT["enc"] == name: C.P("s_memrealtime s[100:101]")
    if not OPT["stamps"]: return
    i = len(C.names); C.names.append(name)
    if i: C.P(f"v_writelane_b32 {C.vST}, s{90 + 2*((i-1)&1)}, {i-1}")
    C.P(f"{'s_memrealtime' if OPT['stamps'] == 1 else 's_memtime'} s[{90 + 2*(i&1)}:{91 + 2*(i&1)}]")

def stamp_flush(C):
    if not OPT["stamps"]: return
    P, S = C.P, C.S
    i = len(C.names)
    P(f"s_waitcnt lgkmcnt(0)\nv_writelane_b32 {C.vST}, s{90 + 2*((i-1)&1)}, {i-1}")
    P(f"s_lshl_b32 {S['t0']}, s2, 2\ns_add_u32 {S['t0']}, {S['t0']}, {S['w']}\ns_lshl_b32 {S['t0']}, {S['t0']}, 8\ns_add_u32 {S['t0']}, {S['t0']}, {STAMP_OFF}")
    P(f"v_lshl_add_u32 v1, v0, 2, {S['t0']}\nbuffer_store_dword {C.vST}, v1, {C.sWS}, 0 offen")
    C.allnames[C.role] = list(C.names)

def spread(main, *streams):
    ev = []
    n = len(main)
    for si, (items, a, b) in enumerate(streams):
        k = len(items)
        for i, it in enumerate(items): ev.append((a * n + (i + 0.5) * (b - a) * n / max(k, 1), si, i, it))
    ev.sort(key=lambda e: (e[0], e[1], e[2]))
    wt = lambda it: (it.n if isinstance(it, Lazy) else it.count("\n") + 1)
    total = sum(wt(e[3]) for e in ev)
    out = []; j = 0; done = 0
    for g, m in enumerate(main):
        out.append(m)
        load = m.count("\n")
        while j < len(ev) and (g == n - 1 or (ev[j][0] <= g + 1.0 and (load == 0 or load + wt(ev[j][3]) <= OPT["cap"]))):
            out.append(ev[j][3]); load += wt(ev[j][3]); j += 1
    return out

def adv(reg, step, wrap, start=0):
    return f"s_add_u32 {reg}, {reg}, {step}\ns_cmp_eq_u32 {reg}, {wrap}\ns_cselect_b32 {reg}, {start}, {reg}"

def schedule(items, pro, rate, nsteps):
    sched = {s: [] for s in range(-1, nsteps)}
    i = 0
    for s in range(-1, nsteps):
        cap = pro if s == -1 else rate
        n = 0
        while i < len(items) and items[i]["free"] <= s and (n < cap or items[i]["need"] - 2 <= s):
            sched[s].append(i); i += 1; n += 1
    assert i == len(items)
    return sched

class B2:
    def __init__(self, C):
        self.C = C; self.loaded = 0; self.moved = 0; self.big = 0; self.safe = 0
        rel = REL[C.role]
        self.order = sorted(range(14), key=lambda i: (rel[i], i))
        self.rel = [rel[i] for i in self.order]
        self.xchunk = self.order[13]
    def avail(self, step): return min(sum(1 for r in self.rel[:13] if r <= step), NBIG)
    def chunk(self, i):
        b = self.order[i] * 8192
        return (b >> 16, b & 0xffff)
    def dma(self, t):
        C = self.C; S = C.S
        ring = t < NREG + NRING
        m0 = f"s_add_u32 m0, {S['rm0']}, {(t % NRING) * 2048}" if ring else f"s_add_u32 m0, {S['bm0']}, {self.order[t - NREG - NRING] * 8192}"
        if t < 28:
            sB = C.sB2; so = S['bo'] if ring else S['bo_b']; post = adv(so, 14336, S['bend'], S['bbeg'])
        else:
            sB = C.sBo; so = S['bo_s']; post = f"s_add_u32 {so}, {so}, {16 * 896}" if (t & 1) == 0 else adv(so, 12 * 896, S['send'], S['sbeg'])
        out = [m0]
        for j in range(2):
            out.append(vop(C, ("b2", t), f"buffer_load_dwordx4 {C.vB[j]}, {sB}, {so} offen offset:{j*1024} lds"))
        pl = post.split("\n")
        out.append(pl[0])
        if len(pl) > 1: out.append("\n".join(pl[1:]))
        return out
    def tr(self, t, dst):
        C = self.C
        if t < NREG + NRING: rb, off = C.rBr, (t % NRING) * 2048
        else:
            win, off = self.chunk(t - NREG - NRING); rb = C.rBb[win]
        o = []
        for f in range(2):
            o.append(f"ds_read_b64_tr_b16 {dst[f][0:2]}, {rb[f]} offset:{off}")
            o.append(f"ds_read_b64_tr_b16 {dst[f][2:4]}, {rb[f]} offset:{off + 512}")
        return o
    def lgkm(self): self.safe = self.moved
    def next_load(self, big_ok, ring_ok=True):
        if ring_ok and self.loaded < min(self.safe + NRING, NREG + NRING):
            self.loaded += 1; return self.dma(self.loaded - 1)
        if self.big < big_ok:
            self.big += 1; return self.dma(NREG + NRING + self.big - 1)
        return None
    def loads(self, n, big_ok, ringmax=99):
        o = []; l0 = self.loaded
        for _ in range(n):
            x = self.next_load(big_ok, self.loaded - l0 < ringmax)
            if x is None: break
            o.extend(x)
        return o
    def moves(self, upto, n=99):
        o = []
        while self.moved < min(upto, NREG) and n > 0:
            t = self.moved
            o.append(Lazy(lambda t=t: self.C.vm.wait(lambda q: q == ("b2", t))))
            o.extend(self.tr(t, self.C.breg[t])); self.moved += 1; n -= 1
        return o
    def drain(self, n, big_ok):
        C = self.C
        while n > 0 and not (self.moved == NREG and self.loaded == NREG + NRING and self.big >= big_ok):
            x = self.next_load(big_ok)
            if x is not None:
                emit(C, x); n -= 1
            else:
                emit(C, self.moves(self.loaded)); C.P("s_waitcnt lgkmcnt(0)"); self.lgkm()

def p2_setup(C):
    P, S, t, lane, w = C.P, C.S, C.t, C.lane, C.S['w']
    P(f"s_and_b32 {S['t0']}, s2, 7\ns_lshl_b32 {S['t0']}, {S['t0']}, 2\ns_bfe_u32 {S['t1']}, s2, 0x20003\ns_add_u32 {S['T']}, {S['t0']}, {S['t1']}\ns_lshr_b32 {S['cb2']}, s2, 5")
    if OPT["rot2"]:
        G = OPT["rot2"]
        tab = sum((((c % G) * 28 // G) // 2) << (4 * c) for c in range(8))
        P(f"s_lshl_b32 {S['t0']}, {S['cb2']}, 2\ns_lshr_b32 {S['t0']}, {tab}, {S['t0']}\ns_and_b32 {S['t0']}, {S['t0']}, 15\ns_lshl_b32 {S['t0']}, {S['t0']}, 1")
        P(f"s_mul_i32 {S['t1']}, {S['t1']}, 7\ns_add_u32 {S['t0']}, {S['t0']}, {S['t1']}")
        P(f"s_sub_u32 {S['t1']}, {S['t0']}, 28\ns_cmp_ge_u32 {S['t0']}, 28\ns_cselect_b32 {S['t0']}, {S['t1']}, {S['t0']}")
    else:
        P(f"s_mov_b32 {S['t0']}, 0")
    P(f"s_mul_i32 {S['bbeg']}, {w}, {28*14336}\ns_add_u32 {S['bend']}, {S['bbeg']}, {28*14336}\ns_mul_i32 {S['t1']}, {S['t0']}, 14336\ns_add_u32 {S['bo']}, {S['bbeg']}, {S['t1']}")
    P(f"s_add_u32 {S['bo_b']}, {S['bo']}, {(NREG+NRING)*14336}\ns_sub_u32 {S['t1']}, {S['bo_b']}, {28*14336}\ns_cmp_ge_u32 {S['bo_b']}, {S['bend']}\ns_cselect_b32 {S['bo_b']}, {S['t1']}, {S['bo_b']}")
    P(f"s_mul_i32 {S['sbeg']}, {w}, {112*896}\ns_add_u32 {S['send']}, {S['sbeg']}, {112*896}\ns_and_b32 {S['t1']}, {S['T']}, {3 if OPT['rots'] else 0}\ns_mul_i32 {S['t2']}, {S['t1']}, {28*896}\ns_add_u32 {S['bo_s']}, {S['sbeg']}, {S['t2']}\ns_lshl_b32 {S['asb']}, {S['t1']}, 12")
    P(f"s_mul_i32 {S['t1']}, {S['T']}, {A2_KS}\ns_lshl_b32 {S['t2']}, {w}, 3\ns_add_u32 {S['t2']}, {S['t1']}, {S['t2']}\ns_lshl_b32 {S['t2']}, {S['t2']}, 11\ns_add_u32 {S['ao_s']}, {S['t2']}, {S['asb']}\ns_mov_b32 {S['asb']}, {S['t2']}")
    P(f"s_mul_i32 {S['t2']}, {w}, 28\ns_add_u32 {S['t1']}, {S['t1']}, {S['t2']}\ns_add_u32 {S['t1']}, {S['t1']}, 32\ns_lshl_b32 {S['abeg']}, {S['t1']}, 11\ns_add_u32 {S['aend']}, {S['abeg']}, {28*2048}")
    P(f"s_lshl_b32 {S['t0']}, {S['t0']}, 11\ns_add_u32 {S['ao']}, {S['abeg']}, {S['t0']}")
    P(f"s_and_b32 {S['t1']}, {w}, 1\ns_lshl_b32 {S['t1']}, {S['t1']}, 10\nv_lshl_add_u32 {C.vA[0]}, {lane}, 4, {S['t1']}\nv_xor_b32 {C.vA[1]}, 1024, {C.vA[0]}")
    P(f"v_lshrrev_b32 {t[0]}, 3, {lane}\nv_mul_u32_u24 {t[0]}, 896, {t[0]}\nv_bfe_u32 {t[1]}, {lane}, 4, 1\nv_lshlrev_b32 {t[1]}, 2, {t[1]}\nv_and_b32 {t[2]}, 7, {lane}\nv_xor_b32 {t[1]}, {t[1]}, {t[2]}")
    P(f"s_lshl_b32 {S['t1']}, {S['cb2']}, 7\nv_lshl_add_u32 {t[0]}, {t[1]}, 4, {t[0]}\nv_add_u32 {C.vB[0]}, {S['t1']}, {t[0]}\nv_add_u32 {C.vB[1]}, {7168 - 1024}, {C.vB[0]}")
    P(f"s_mul_i32 {S['rm0']}, {w}, {RINGW}\ns_add_u32 {S['rm0']}, {S['rm0']}, {RING0}\ns_lshl_b32 {S['bm0']}, {w}, 11")
    P(f"s_cmp_lt_u32 s2, 224\ns_cselect_b32 {S['t0']}, {1792*896}, 0\ns_cselect_b32 {S['t1']}, {448*896}, 0")
    srd(P, C.sB2, C.ptr[10], C.ptr[11], S['t0'])
    srd(P, C.sBo, C.ptr[4], C.ptr[5], S['t1'])
    P(f"s_lshr_b32 {S['t1']}, {w}, 1\ns_lshl_b32 {S['t1']}, {S['t1']}, 6")
    P(f"v_bfe_u32 {t[0]}, {lane}, 2, 2\nv_lshrrev_b32 {t[1]}, 5, {lane}\nv_lshl_add_u32 {t[0]}, {t[1]}, 3, {t[0]}\nv_lshlrev_b32 {t[0]}, 7, {t[0]}")
    P(f"v_bfe_u32 {t[1]}, {lane}, 3, 1\nv_lshl_add_u32 {t[0]}, {t[1]}, 6, {t[0]}\nv_bfe_u32 {t[1]}, {lane}, 4, 1\nv_lshl_add_u32 {t[0]}, {t[1]}, 5, {t[0]}")
    P(f"v_and_b32 {t[1]}, 3, {lane}\nv_lshl_add_u32 {t[0]}, {t[1]}, 3, {t[0]}\nv_xor_b32 {t[0]}, {S['t1']}, {t[0]}")
    P(f"v_add_u32 {C.rBr[0]}, {S['rm0']}, {t[0]}\nv_xor_b32 {C.rBr[1]}, 64, {C.rBr[0]}\nv_add_u32 {C.rBb[0][0]}, {S['bm0']}, {t[0]}\nv_xor_b32 {C.rBb[0][1]}, 64, {C.rBb[0][0]}\nv_add_u32 {C.rBb[1][0]}, 65536, {C.rBb[0][0]}\nv_add_u32 {C.rBb[1][1]}, 65536, {C.rBb[0][1]}")
    P(f"s_lshr_b32 {S['t0']}, {S['T']}, 4\ns_lshl_b32 {S['t0']}, {S['t0']}, 2\ns_add_u32 {S['t0']}, {S['t0']}, {w}\ns_bfe_u32 {S['t1']}, {S['T']}, 0x30001\ns_lshl_b32 {S['t1']}, {S['t1']}, 3\ns_add_u32 {S['t0']}, {S['t0']}, {S['t1']}")
    P(f"s_lshl_b32 {S['t0']}, {S['t0']}, 7\ns_add_u32 {S['t0']}, {S['t0']}, {FLAG_OFF}\nv_and_b32 {t[0]}, 3, {lane}\nv_lshl_add_u32 {C.vF}, {t[0]}, 13, {S['t0']}")
    P(f"v_mov_b32 {t[0]}, {BIG}\nv_cmp_lt_u32 vcc, 3, {lane}\nv_cndmask_b32 {C.vF}, {C.vF}, {t[0]}, vcc")
    srd(P, C.sD, C.ptr[14], C.ptr[15], 256)
    P(f"v_mov_b32 {C.vZ}, 0")
    if C.role == "F":
        P(f"s_or_b32 {S['t0']}, s2, {w}\ns_cmp_eq_u32 {S['t0']}, 0\ns_cbranch_scc1 NON_S\nNON_F:")
        C.slow.append(f"NON_S:\ns_memrealtime {C.tm}\ns_waitcnt lgkmcnt(0)\ns_or_b32 {S['t0']}, {C.tm[0]}, 1\nv_mov_b32 {t[0]}, {S['t0']}\nbuffer_store_dword {t[0]}, {C.vZ}, {C.sD}, 0 offen sc1\ns_branch NON_F")
    if OPT["pfm"] == 2:
        if C.role == "Q":
            P(f"s_sub_u32 {S['t0']}, s2, 224\ns_lshl_b32 {S['t0']}, {S['t0']}, 2\ns_add_u32 {S['t0']}, {S['t0']}, {w}\ns_sub_u32 {S['t1']}, {S['t0']}, 98\ns_cmp_lt_u32 {S['t0']}, 98\ns_cselect_b32 {S['t0']}, {S['t0']}, {S['t1']}")
            P(f"s_cselect_b32 {C.sP[0]}, {C.ptr[10]}, {C.ptr[4]}\ns_cselect_b32 {C.sP[1]}, {C.ptr[11]}, {C.ptr[5]}\ns_mov_b32 {C.sP[2]}, {448*896}\ns_cselect_b32 {C.sP[2]}, {1792*896}, {C.sP[2]}\ns_mov_b32 {C.sP[3]}, 0x20000")
            P(f"s_cmp_lt_u32 s2, 224\ns_cselect_b32 {C.sP[2]}, 0, {C.sP[2]}\ns_cselect_b32 {S['t0']}, 0, {S['t0']}")
            P(f"s_lshl_b32 {S['t0']}, {S['t0']}, 14\nv_lshl_add_u32 {C.vPF}, {lane}, 8, {S['t0']}")
    elif OPT["pfm"]:
        P(f"s_lshl_b32 {S['t0']}, s2, 2\ns_add_u32 {S['t0']}, {S['t0']}, {w}\ns_sub_u32 {S['t1']}, {S['t0']}, 784\ns_cmp_lt_u32 {S['t0']}, 784\ns_cselect_b32 {S['t0']}, {S['t0']}, {S['t1']}")
        P(f"s_cselect_b32 {C.sP[0]}, {C.ptr[10]}, {C.ptr[4]}\ns_cselect_b32 {C.sP[1]}, {C.ptr[11]}, {C.ptr[5]}\ns_mov_b32 {C.sP[2]}, {448*896}\ns_cselect_b32 {C.sP[2]}, {1792*896}, {C.sP[2]}\ns_mov_b32 {C.sP[3]}, 0x20000")
        P(f"s_lshl_b32 {S['t0']}, {S['t0']}, 11\nv_lshl_add_u32 {C.vPF}, {lane}, 5, {S['t0']}")

def run_loop(C, emit_item, sched, reads, mfmas, b2, early, estart, nsteps=14):
    P, S, vm = C.P, C.S, C.vm
    if OPT["pfm"] == 1:
        vm.issue(("pf", 0)); P(f"buffer_load_dword v2, {C.vPF}, {C.sP}, 0 offen")
    if OPT["pfm"] == 2 and C.role == "Q" and OPT["pfs"] < 0:
        for j in range(2): vm.issue(("pf", 0)); P(f"buffer_load_dword v2, {C.vPF}, {C.sP}, 0 offen offset:{128*j}")
    P(vm.wait(lambda q: q[0] == "d" and q[1] <= 0) + " lgkmcnt(0)")
    P("s_barrier")
    stamp(C, "d0")
    P.ext(reads(0))
    hist = {}
    for s in range(nsteps):
        if s + 1 < nsteps: P(vm.wait(lambda q: q[0] == "d" and q[1] <= s + 1) + " lgkmcnt(0)")
        else: P("s_waitcnt lgkmcnt(0)")
        P("s_barrier")
        if s in (1, 2, 4, 7, 10, 13): stamp(C, f"s{s}")
        m = mfmas(s)
        rd = reads(s + 1) if s + 1 < nsteps else []
        dm = []; C.m0 = None
        for i in sched[s]: dm.extend(emit_item(i))
        if OPT["pfm"] == 2 and C.role == "Q" and s == OPT["pfs"]:
            dm = [vop(C, ("pf", 0), f"buffer_load_dword v2, {C.vPF}, {C.sP}, 0 offen offset:{128*j}") for j in range(2)] + dm
        if s == 6: dm.append(vop(C, ("nonce", 0), f"buffer_load_dword {C.vN}, {C.vZ}, {C.sD}, 0 offen sc1"))
        mv = []
        b2.lgkm()
        if s >= estart:
            n = sum(1 for x in dm if isinstance(x, Lazy))
            k = max((OPT["b2rate"] + 1 - n) // 2, early) if s >= OPT["b2start"] else early
            dm.extend(b2.loads(k, min(b2.avail(s), C.big_early), OPT["ringmax"]))
            mv = b2.moves(hist.get(s - 2, 0), 3)
            hist[s] = b2.loaded
        emit(C, spread(m, (rd, 0, 0.8), (dm, 0, 0.95), (mv, 0.3, 0.9)))
    C.hist = hist
    stamp(C, "loopend")

def get_tag(C):
    P, S, role = C.P, C.S, C.role
    P(C.vm.wait(lambda q: q[0] == "nonce"))
    P(f"v_readfirstlane_b32 {S['tag']}, {C.vN}\ns_cmp_eq_u32 {S['tag']}, 0\ns_cbranch_scc1 TAGSL_{role}\nTAGOK_{role}:")
    C.slow.append(f"TAGSL_{role}:\ns_mov_b32 {S['t2']}, 0\nTAGLP_{role}:\nbuffer_load_dword {C.vN}, {C.vZ}, {C.sD}, 0 offen sc1\ns_waitcnt vmcnt(0)\nv_readfirstlane_b32 {S['tag']}, {C.vN}\ns_add_u32 {S['t2']}, {S['t2']}, 1\n"
                  f"s_cmp_ge_u32 {S['t2']}, {SPIN_MAX}\ns_cbranch_scc1 TAGOK_{role}\ns_cmp_eq_u32 {S['tag']}, 0\ns_cbranch_scc1 TAGLP_{role}\ns_branch TAGOK_{role}")

def flag_store(C):
    P, S, t = C.P, C.S, C.t
    P(f"s_lshl_b32 {S['t0']}, s2, 7\ns_add_u32 {S['t0']}, {S['t0']}, {FLAG_OFF}\ns_cmp_eq_u32 {S['w']}, 0\ns_cselect_b32 {S['t0']}, {S['t0']}, {BIG}")
    P(f"v_mov_b32 {t[5]}, {S['t0']}\nv_mov_b32 {t[6]}, {S['tag']}\ns_mov_b64 exec, 1\nbuffer_store_dword {t[6]}, {t[5]}, {C.sWS}, 0 offen sc1\ns_mov_b64 exec, -1")
    C.vm.issue(("flag", 0))

def poll_req(C): return vop(C, ("pl", 0), f"buffer_load_dword {C.vFL}, {C.vF}, {C.sWS}, 0 offen sc1")
def poll_check(C, label, mask, first=True):
    P, S = C.P, C.S
    loop = (f"s_mov_b32 {S['t2']}, 0\n{label}:\nbuffer_load_dword {C.vFL}, {C.vF}, {C.sWS}, 0 offen sc1\ns_waitcnt vmcnt(0)\nv_cmp_eq_u32 vcc, {S['tag']}, {C.vFL}\ns_add_u32 {S['t2']}, {S['t2']}, 1\n"
            f"s_cmp_ge_u32 {S['t2']}, {SPIN_MAX}\ns_cbranch_scc1 {label}_X\ns_and_b32 {S['t0']}, vcc_lo, {mask}\ns_cmp_lg_u32 {S['t0']}, {mask}\ns_cbranch_scc1 {label}")
    if OPT["slp"]: loop = loop.replace(f"{label}:\nbuffer_load", f"s_branch {label}_F\n{label}:\ns_sleep {OPT['slp']}\n{label}_F:\nbuffer_load") if not first else loop.replace(f"{label}:\nbuffer_load", f"{label}:\ns_sleep {OPT['slp']}\nbuffer_load")
    if first:
        P(C.vm.wait(lambda q: q[0] == "pl"))
        P(f"v_cmp_eq_u32 vcc, {S['tag']}, {C.vFL}\ns_and_b32 {S['t0']}, vcc_lo, {mask}\ns_cmp_lg_u32 {S['t0']}, {mask}\ns_cbranch_scc1 {label}_S\n{label}_X:")
        C.slow.append(f"{label}_S:\n{loop}\ns_branch {label}_X")
    else:
        P(loop + f"\n{label}_X:")

def aload(C, tt):
    S = C.S
    so = S['ao'] if tt < 28 else S['ao_s']
    post = adv(so, 2048, S['aend'], S['abeg'])
    if tt == 27: post = f"s_mov_b32 {S['abeg']}, {S['asb']}\ns_add_u32 {S['aend']}, {S['asb']}, {8*2048}"
    return [vop(C, ("a", tt), f"buffer_load_dwordx4 {C.aring[tt % C.NA][j]}, {C.vA[j]}, {C.sWS}, {so} offen sc1" + ("\n" + post if j else "")) for j in range(2)]

def phase2(C, b2, flag_at):
    P, S, vm, t, lane, w = C.P, C.S, C.vm, C.t, C.lane, C.S['w']
    role = C.role; LA = OPT["LA"]; NA = C.NA; aring = C.aring; bf = C.bf
    lg = C.lg = Cnt("lgkmcnt", 15)
    va = Alloc("v", C.vbase, 256)
    accf = [[va(16, 4) for _ in range(2)] for _ in range(2)]
    accs = [[va(16, 4) for _ in range(2)] for _ in range(2)]
    xv = [va(2) for _ in range(4)]; rstd = va(); vO = va(); vL = va(); k1 = va(); Rr = va(8, 4)
    vXd = va(); vXr = va(); wa = va(); wb = va(); vR = va()
    ra = [va() for _ in range(3)]; rb = [va() for _ in range(3)]
    sO = C.sW
    n_, hf = t[3], t[4]
    su = []
    def U(s): su.extend(s.split("\n"))
    U(f"s_mov_b32 {C.sX[0]}, {C.ptr[0]}\ns_mov_b32 {C.sX[1]}, {C.ptr[1]}\ns_mov_b32 {C.sX[2]}, {XBYTES}")
    U(f"s_mov_b32 {sO[0]}, {C.ptr[12]}\ns_mov_b32 {sO[1]}, {C.ptr[13]}\ns_mov_b32 {sO[2]}, {XBYTES}")
    U(f"v_and_b32 {n_}, 31, {lane}\nv_lshrrev_b32 {hf}, 5, {lane}\nv_lshlrev_b32 {vL}, 4, {lane}")
    U(f"s_and_b32 {S['b1']}, {S['T']}, 15\ns_mul_i32 {S['b1']}, {S['b1']}, {64*1792}\ns_lshr_b32 {S['b2']}, {S['T']}, 4\ns_mul_i32 {S['b2']}, {S['b2']}, 896\ns_add_u32 {S['b1']}, {S['b1']}, {S['b2']}")
    U(f"s_lshl_b32 {S['b2']}, {S['cb2']}, 7\ns_add_u32 {S['b1']}, {S['b1']}, {S['b2']}")
    U(f"v_lshrrev_b32 {t[0]}, 3, {lane}\nv_and_b32 {t[1]}, 7, {lane}\nv_xor_b32 {t[1]}, {t[0]}, {t[1]}\nv_mul_u32_u24 {t[0]}, 1792, {t[0]}\nv_lshl_add_u32 {vXd}, {t[1]}, 4, {t[0]}")
    U(f"s_mul_i32 {S['kx']}, {w}, {16*1792}\ns_add_u32 {S['kx']}, {S['kx']}, {S['b1']}\ns_add_u32 {S['kw']}, {S['kx']}, {8*1792}")
    U(f"s_and_b32 {S['hh']}, {w}, 1\ns_lshr_b32 {S['half']}, {w}, 1\ns_lshl_b32 {S['b2']}, {S['hh']}, 12\ns_add_u32 {S['b2']}, {S['b2']}, {b2.xchunk*8192}")
    U(f"v_lshlrev_b32 {t[0]}, 7, {n_}\nv_lshl_add_u32 {t[0]}, {hf}, 3, {t[0]}")
    U(f"s_lshl_b32 {S['wm0']}, {S['half']}, 2\nv_and_b32 {t[1]}, 7, {lane}\nv_xor_b32 {t[1]}, {S['wm0']}, {t[1]}\nv_lshl_add_u32 {t[0]}, {t[1]}, 4, {t[0]}\nv_add_u32 {vXr}, {S['b2']}, {t[0]}")
    U(f"s_mul_i32 {S['b2']}, {S['hh']}, {32*1792}\ns_add_u32 {S['b2']}, {S['b2']}, {S['b1']}\ns_lshl_b32 {S['wm0']}, {S['half']}, 6\ns_add_u32 {S['b2']}, {S['b2']}, {S['wm0']}")
    U(f"v_mul_u32_u24 {t[0]}, 1792, {n_}\nv_add_u32 {t[0]}, {S['b2']}, {t[0]}\nv_lshl_add_u32 {vO}, {hf}, 4, {t[0]}")
    U(f"s_lshl_b32 {S['b2']}, {S['T']}, 1\ns_add_u32 {S['b2']}, {S['b2']}, {S['hh']}\ns_lshl_b32 {S['b2']}, {S['b2']}, 7\ns_lshl_b32 {S['wm0']}, {w}, 14\ns_add_u32 {S['b2']}, {S['b2']}, {S['wm0']}\ns_add_u32 {S['b2']}, {S['b2']}, {RSTD_OFF}")
    U(f"v_lshl_add_u32 {vR}, {n_}, 2, {S['b2']}")
    U(f"v_add_u32 {wa}, {S['rm0']}, {vL}\nv_add_u32 {wb}, {S['bm0']}, {vL}")
    for q in range(1, 4):
        U(f"s_xor_b32 {S['b2']}, {w}, {q}\ns_mul_i32 {S['wm0']}, {S['b2']}, {RINGW}\ns_add_u32 {S['wm0']}, {S['wm0']}, {RING0 + (q-1)*4096}\ns_lshl_b32 {S['b2']}, {S['b2']}, 11")
        U(f"v_add_u32 {ra[q-1]}, {S['wm0']}, {vL}\nv_add_u32 {rb[q-1]}, {S['b2']}, {vL}")
    NSU = 8
    pf_ = [accf[0][1], accf[1][0], accf[1][1]]; ps_ = [accs[0][1], accs[1][0], accs[1][1]]
    F = accf[0][0]; Sv = accs[0][0]
    fe = []
    for a in range(4):
        fe.append(Lazy(lambda a=a: lg.wait(lambda q: q == ("fr", a))))
        for r in range(4*a, 4*a+4): fe.append(f"v_add_f32 {F[r]}, {F[r]}, {pf_[0][r]}")
        for r in range(4*a, 4*a+4): fe.append(f"v_add_f32 {pf_[1][r]}, {pf_[1][r]}, {pf_[2][r]}")
        for r in range(4*a, 4*a+4): fe.append(f"v_add_f32 {F[r]}, {F[r]}, {pf_[1][r]}")
        for r in range(4*a, 4*a+4): fe.append(f"v_mul_f32 {pf_[0][r]}, {F[r]}, {k1}")
        for r in range(4*a, 4*a+4): fe.append(f"v_exp_f32 {pf_[0][r]}, {pf_[0][r]}")
        for r in range(4*a, 4*a+4): fe.append(f"v_mul_f32 {F[r]}, {F[r]}, {rstd}")
        for r in range(4*a, 4*a+4): fe.append(f"v_add_f32 {pf_[0][r]}, 1.0, {pf_[0][r]}")
        for r in range(4*a, 4*a+4): fe.append(f"v_rcp_f32 {pf_[0][r]}, {pf_[0][r]}")
        for h in range(2): fe.append(f"v_lshlrev_b32 {pf_[1][4*a+2*h]}, 16, {xv[a][h]}"); fe.append(f"v_and_b32 {pf_[1][4*a+2*h+1]}, 0xffff0000, {xv[a][h]}")
        for r in range(4*a, 4*a+4): fe.append(f"v_mul_f32 {F[r]}, {F[r]}, {pf_[0][r]}")
    fw = [lop(C, ("fw", 0), f"ds_write_b128 {wa}, {accf[q>>1][q&1][4*a:4*a+4]} offset:{(q-1)*4096 + a*1024}") for q in (3, 2, 1) for a in range(4)]
    TPOLL = 28 - LA - 4
    TB = OPT["TB"]; fe_per = OPT["fe_per"]
    sch = [c for c in range(8) if c != b2.xchunk][:6]; early_sw = True
    soff = lambda q, a: sch[(q-1)*2 + (a >> 1)] * 8192 + (a & 1) * 1024
    sw = {q: [lop(C, ("sw", 0), f"ds_write_b128 {wb}, {accs[q>>1][q&1][4*a:4*a+4]} offset:{soff(q, a)}") for a in range(4)] for q in (1, 2, 3)}
    P("s_waitcnt lgkmcnt(0)")
    for tt in range(NT2):
        need_b = (lambda q: q[0] == "b2" and q[1] <= tt + 1 + (tt == NT2 - 3)) if (tt + 1 >= NREG and tt + 1 < NT2) else (lambda q: False)
        assert tt + 1 >= NT2 or tt + 1 < NREG + NRING + b2.big
        P(vm.wait(lambda q: q == ("a", tt) or need_b(q) or (tt == flag_at and q[0] == "st") or (tt == TB and q[0] == "e")))
        if tt in (0, 7, 14, 21, 28): stamp(C, f"a{tt}")
        if tt == flag_at:
            P("s_barrier"); flag_store(C); stamp(C, "flag")
        if tt == TB:
            P(lg.wait(lambda q: q[0] == "fw")); P("s_barrier")
            P(f"v_mul_f32 {k1}, {f2h(-math.log2(math.e))}, {rstd}")
        if tt + 1 >= NREG and tt + 1 < NT2 - 1:
            emit(C, [lop(C, ("tr", tt + 1), x) for x in b2.tr(tt + 1, bf[(tt + 1) & 1])])
        if tt == NT2 - 3:
            emit(C, [lop(C, ("tr", NT2 - 1), x) for x in b2.tr(NT2 - 1, C.breg[0])])
        if tt >= NREG: P(lg.wait(lambda q: q == ("tr", tt)))
        ld = []; va_ = []
        if tt < NSU:
            k = len(su); va_ = su[tt * k // NSU:(tt + 1) * k // NSU]
        if tt == TPOLL: ld.append(poll_req(C))
        if tt + LA == 28:
            poll_check(C, f"PS_{role}", 12)
            ld.append(vop(C, ("e", 0), f"buffer_load_dword {rstd}, {vR}, {C.sWS}, 0 offen sc1"))
        if tt + LA < NT2: ld.extend(aload(C, tt + LA))
        if tt >= 1 and tt % 2 == 1: ld.extend(b2.loads(1, NBIG))
        if tt == NSU + 1:
            for j in range(2):
                ld.append(f"s_add_u32 m0, {S['bm0']}, {b2.xchunk*8192 + j*1024}")
                ld.append(vop(C, ("e", 0), f"buffer_load_dwordx4 {vXd}, {C.sX}, {S['kw'] if j else S['kx']} offen lds"))
        if 28 <= tt < TB: va_ = fw[(tt - 28) * 12 // (TB - 28):(tt - 27) * 12 // (TB - 28)]
        if tt == TB:
            rd = []
            for a in range(4):
                for i in range(3): rd.append(lop(C, ("fr", a), f"ds_read_b128 {pf_[i][4*a:4*a+4]}, {ra[i]} offset:{a*1024}"))
                rd.append(f"v_xor_b32 {t[0]}, {16*a}, {vXr}")
                rd.append(lop(C, ("fr", a), f"ds_read_b64 {xv[a]}, {t[0]}"))
            va_ = rd
        if tt > TB:
            va_ = fe[:fe_per]; fe = fe[fe_per:]
        acc = accf if tt < 28 else accs
        B = C.breg[tt] if tt < NREG else (bf[tt & 1] if tt < NT2 - 1 else C.breg[0])
        first = tt in (0, 28)
        m = [f"v_mfma_f32_32x32x16_bf16 {acc[f][p]}, {B[f]}, {aring[tt % NA][p]}, {0 if first else acc[f][p]}" for f, p in ((1, 1), (1, 0), (0, 1), (0, 0))]
        st_ = 1 if tt == 28 else 0
        if tt == NT2 - 2:
            held = (m, va_); continue
        if tt == NT2 - 1:
            m0_, v0_ = held
            m = [x for pair in zip(m0_, m) for x in pair]
            va_ = v0_ + va_
            wr = (sw[3] + sw[2]) if early_sw else []
            emit(C, merge(m, (va_, 0, 8), (wr[:4], 4, 6), (wr[4:], 6, 8)))
            continue
        emit(C, merge(m, (ld, 0, 4), (va_, st_, 4)))
    assert b2.big == NBIG
    stamp(C, "p2end")
    rest = sw[1] if early_sw else sw[3] + sw[2] + sw[1]
    h = min(len(fe), 2 * len(rest) + 6)
    emit(C, merge(fe[:h], (rest, 3, h)) if h > 3 else rest)
    P(lg.wait(lambda q: q[0] == "sw")); P("s_barrier")
    for a in range(4):
        for i in range(3): emit(C, [lop(C, ("sr", a), f"ds_read_b128 {ps_[i][4*a:4*a+4]}, {rb[i]} offset:{soff(i + 1, a)}")])
    emit(C, fe[h:])
    for a in range(4):
        P(lg.wait(lambda q: q == ("sr", a)))
        s4 = Sv[4*a:4*a+4]
        for hh in range(2):
            sl = slice(4*a+2*hh, 4*a+2*hh+2)
            P(f"v_pk_add_f32 {Sv[sl]}, {Sv[sl]}, {ps_[0][sl]}\nv_pk_add_f32 {ps_[1][sl]}, {ps_[1][sl]}, {ps_[2][sl]}")
        for hh in range(2):
            sl = slice(4*a+2*hh, 4*a+2*hh+2)
            P(f"v_pk_add_f32 {Sv[sl]}, {Sv[sl]}, {ps_[1][sl]}")
        for hh in range(2):
            sl = slice(4*a+2*hh, 4*a+2*hh+2)
            P(f"v_pk_fma_f32 {Sv[sl]}, {Sv[sl]}, {F[sl]}, {pf_[1][sl]}")
        P(f"v_cvt_pk_bf16_f32 {Rr[2*a]}, {s4[0]}, {s4[1]}\nv_cvt_pk_bf16_f32 {Rr[2*a+1]}, {s4[2]}, {s4[3]}")
        if a & 1:
            p = a >> 1
            P(f"v_permlane32_swap_b32 {Rr[4*p]}, {Rr[4*p+2]}\nv_permlane32_swap_b32 {Rr[4*p+1]}, {Rr[4*p+3]}")
            P(f"buffer_store_dwordx4 {Rr[4*p:4*p+4]}, {vO}, {sO}, 0 offen offset:{32*p}")
    if OPT["stamps"]:
        stamp(C, "stored"); P("s_waitcnt vmcnt(0)"); stamp(C, "end")
    if OPT["enc"] == "end": P("s_waitcnt vmcnt(0)\ns_memrealtime s[100:101]")
    if OPT["spin"] and role == ("F" if OPT["encwg"] < 128 else "Q"):
        P(f"s_cmp_lg_u32 s2, {OPT['encwg']}\ns_cbranch_scc1 SPN2\ns_waitcnt lgkmcnt(0)\ns_mov_b32 {S['t1']}, {OPT['spin']}")
        if OPT["enc"]: P(f"s_sub_u32 {S['t0']}, s100, s98\ns_lshl_b32 {S['t0']}, {S['t0']}, 2\ns_add_u32 {S['t1']}, {S['t1']}, {S['t0']}\ns_min_u32 {S['t1']}, {S['t1']}, 20000")
        P(f"SPN1:\ns_memrealtime {C.tm}\ns_waitcnt lgkmcnt(0)\ns_sub_u32 {S['t0']}, {C.tm[0]}, s98\ns_cmp_lt_u32 {S['t0']}, {S['t1']}\ns_cbranch_scc1 SPN1\nSPN2:")
    stamp_flush(C)
    P("s_endpgm")
    del C.lg
    return va.hi

def dma_item(C, need, m0expr, load, execmask=None):
    s = load
    if execmask: s = f"s_mov_b64 exec, {execmask}\n{s}\ns_mov_b64 exec, -1"
    o = []
    if C.m0 != m0expr: o.append(m0expr)
    C.m0 = m0expr
    return o + [vop(C, ("d", need), s)]

def slab_tables(C, wmul):
    P, S = C.P, C.S
    if OPT["com"]:
        P(f"s_bfe_u32 {S['t0']}, s2, 0x20006\ns_mul_i32 {S['t0']}, {S['t0']}, 3\ns_lshr_b32 {S['t0']}, {S['t0']}, 1\ns_add_u32 {S['t0']}, {S['t0']}, {S['rbl']}")
        P(f"s_sub_u32 {S['t1']}, {S['t0']}, 6\ns_cmp_ge_u32 {S['t0']}, 6\ns_cselect_b32 {S['t0']}, {S['t1']}, {S['t0']}\ns_lshl_b32 {S['t0']}, {S['t0']}, 7")
        for d in range(1, 7):
            P(f"s_add_u32 {C.kxs[d]}, {C.kxs[d-1] if d > 1 else S['t0']}, 128\ns_cmp_eq_u32 {C.kxs[d]}, 896\ns_cselect_b32 {C.kxs[d]}, 128, {C.kxs[d]}\ns_mul_i32 {C.kws[d]}, {C.kxs[d]}, {wmul}")
        return
    for d in range(1, 7):
        P(f"s_add_u32 {C.kxs[d]}, {C.kxs[d-1]}, 128\ns_cmp_eq_u32 {C.kxs[d]}, 896\ns_cselect_b32 {C.kxs[d]}, 0, {C.kxs[d]}\ns_mul_i32 {C.kws[d]}, {C.kxs[d]}, {wmul}")

class Role: pass

def ffn_head(C):
    P, S, lane, t = C.P, C.S, C.lane, C.t
    Rl = Role(); Rl.vm = C.vm = Cnt("vmcnt", 63); C.vm.issue(("pf", 0)); C.m0 = None
    va = Rl.va = Alloc("v", C.vbase, 256)
    NW, NX = 4, 3; WB, XB = 0, 65536
    xd = C.xd; wd = Rl.wd = [va() for _ in range(8)]
    w = S['w']
    P(f"s_mul_i32 {S['t0']}, {S['cb']}, 448\ns_and_b32 {S['t0']}, {S['t0']}, 0xffffff80\ns_mul_i32 {S['t1']}, {w}, {8*3584}\ns_add_u32 {S['t0']}, {S['t0']}, {S['t1']}")
    P(f"v_lshrrev_b32 {t[0]}, 5, {lane}\nv_bfe_u32 {t[1]}, {lane}, 1, 4\nv_xor_b32 {t[1]}, {t[0]}, {t[1]}\nv_xor_b32 {t[1]}, {S['b1']}, {t[1]}")
    P(f"v_mul_u32_u24 {t[0]}, 3584, {t[0]}\nv_lshl_add_u32 {t[0]}, {t[1]}, 5, {t[0]}\nv_and_b32 {t[1]}, 1, {lane}\nv_lshl_add_u32 {t[0]}, {t[1]}, 4, {t[0]}")
    P(f"v_add_u32 {wd[0]}, {S['t0']}, {t[0]}\nv_xor_b32 {t[3]}, 64, {wd[0]}")
    P(f"v_add_u32 {wd[1]}, {2*3584 - 1024}, {t[3]}\nv_add_u32 {wd[2]}, {4*3584 - 2048}, {wd[0]}\nv_add_u32 {wd[3]}, {6*3584 - 3072}, {t[3]}")
    P(f"s_mul_i32 {S['kw']}, {S['kx']}, {64*3584//128}")
    karg(C)
    srd(P, C.sW, C.ptr[8], C.ptr[9], 448 * 3584)
    items = []
    for d in range(7):
        for j in range(4): items.append(dict(k="x", d=d, j=j, need=2*d, free=(2*(d-NX)+1 if d >= NX else -1)))
        for s in (2*d, 2*d+1):
            for j in range(4): items.append(dict(k="w", s=s, j=j, need=s, free=(s-NW if s >= NW else -1)))
    def emit_item(i):
        it = items[i]; j = it["j"]
        if it["k"] == "x":
            return dma_item(C, it["need"], f"s_add_u32 m0, {S['xm0']}, {XB + (it['d'] % NX)*16384}",
                            f"buffer_load_dwordx4 {xd[j]}, {C.sX}, {C.kxs[it['d']]} offen offset:{j*1024}{NTX} lds")
        return dma_item(C, it["need"], f"s_add_u32 m0, {S['xm0']}, {WB + (it['s'] % NW)*16384}",
                        f"buffer_load_dwordx4 {wd[j + 4*(it['s']&1)]}, {C.sW}, {C.kws[it['s']>>1]} offen offset:{j*1024}{NTW} lds")
    Rl.sched = schedule(items, OPT["pro"], OPT["rate"], 14); Rl.emit_item = emit_item
    for i in Rl.sched[-1][:8]: emit(C, emit_item(i))
    for j in range(4): P(f"v_add_u32 {wd[4+j]}, {32*3584}, {wd[j]}")
    for i in Rl.sched[-1][8:OPT["first"]]: emit(C, emit_item(i))
    return Rl

def karg(C):
    P, S = C.P, C.S
    P("s_waitcnt lgkmcnt(0)")
    P(f"s_add_u32 {C.sX[0]}, {C.ptr[0]}, {S['t2']}\ns_addc_u32 {C.sX[1]}, {C.ptr[1]}, 0\ns_sub_u32 {C.sX[2]}, {XBYTES}, {S['t2']}\ns_mov_b32 {C.sX[3]}, 0x20000")

def ffn_body(C, Rl):
    P, S, lane, t = C.P, C.S, C.lane, C.t
    C.role = "F"; vm = C.vm = Rl.vm; C.big_early = max(NBIG - OPT["late"], 0)
    va = Rl.va; aa = Alloc("a", 0, C.abase)
    NW, NX = 4, 3; WB, XB = 0, 65536
    sWS = C.sWS; w = S['w']
    stamp(C, "iss")
    xr = [[va() for _ in range(2)] for _ in range(2)]
    wr_ = [va() for _ in range(7)]
    acc = [[va(4, 4) for _ in range(4)] for _ in range(7)]
    cs = [va(4, 4) for _ in range(7)]
    rs = [va(4, 4) for _ in range(2)]
    ones = aa(4)
    fb = [dict(x=[aa(4) for _ in range(4)], w=[aa(4) for _ in range(7)]) for _ in range(2)]
    srd(P, sWS, C.wsp[0], C.wsp[1], WS_REC)
    wr, wc = S['half'], S['hh']
    n_, g_ = va(), va()
    P(f"v_and_b32 {n_}, 15, {lane}\nv_lshrrev_b32 {g_}, 4, {lane}")
    P(f"s_lshl_b32 {S['t0']}, {wr}, 13\ns_lshl_b32 {S['t1']}, {wc}, 12\ns_add_u32 {S['t0']}, {S['t0']}, {S['t1']}\ns_add_u32 {S['t0']}, {S['t0']}, {XB}")
    P(f"v_lshrrev_b32 {t[0]}, 1, {n_}\nv_xor_b32 {t[0]}, {g_}, {t[0]}\nv_lshlrev_b32 {t[0]}, 4, {t[0]}\nv_lshl_add_u32 {t[0]}, {n_}, 7, {t[0]}")
    P(f"v_add_u32 {xr[0][0]}, {S['t0']}, {t[0]}\nv_xor_b32 {xr[0][1]}, 64, {xr[0][0]}\nv_xor_b32 {xr[1][0]}, 4096, {xr[0][0]}\nv_xor_b32 {xr[1][1]}, 4096, {xr[0][1]}")
    P(f"v_bfe_u32 {t[0]}, {lane}, 2, 2\nv_lshl_add_u32 {t[1]}, {g_}, 3, {t[0]}\nv_lshlrev_b32 {t[1]}, 9, {t[1]}\nv_and_b32 {t[2]}, 3, {lane}\nv_lshl_add_u32 {t[1]}, {t[2]}, 3, {t[1]}")
    P(f"v_bfe_u32 {t[0]}, {lane}, 2, 3")
    P(f"s_lshl_b32 {S['b1']}, {wr}, 2\ns_mul_i32 {S['b2']}, {wr}, -3")
    P(f"s_and_b32 {S['t0']}, {S['cb']}, 1\ns_lshl_b32 {S['t0']}, {S['t0']}, 1\ns_mul_i32 {S['t1']}, {wc}, 7\ns_add_u32 {S['t0']}, {S['t0']}, {S['t1']}")
    P(f"s_add_u32 {S['t1']}, {S['t0']}, {S['b2']}\ns_add_u32 {S['t0']}, {S['t0']}, {S['b1']}")
    for c in range(7):
        P(f"s_add_u32 {S['t2']}, {S['t0'] if c <= 2 else S['t1']}, {c}")
        P(f"v_xor_b32 {t[2]}, {S['t2']}, {t[0]}\nv_lshl_add_u32 {wr_[c]}, {t[2]}, 5, {t[1]}")
    P(f"v_mov_b32 {t[0]}, {ONES}")
    for i in range(4): P(f"v_accvgpr_write_b32 {ones[i]}, {t[0]}")
    b2 = B2(C)
    RSB = b2.xchunk * 8192; CSB = RSB + 1024
    xw = RSB & 0x10000; RSB -= xw; CSB -= xw
    a_rs, a_rs2, a_cs, a_cs2 = va(), va(), va(), va()
    st = [va(), va()]
    P(f"s_lshl_b32 {S['t0']}, {wr}, 8\ns_lshl_b32 {S['t1']}, {wc}, 7\ns_add_u32 {S['t0']}, {S['t0']}, {S['t1']}\ns_add_u32 {S['t0']}, {S['t0']}, {xw}")
    P(f"v_lshlrev_b32 {a_rs}, 2, {n_}\nv_add_u32 {a_rs}, {S['t0']}, {a_rs}\nv_xor_b32 {a_rs2}, 128, {a_rs}")
    P(f"s_lshl_b32 {S['t0']}, {wc}, 3\ns_add_u32 {S['t1']}, {S['t0']}, {S['b2']}\ns_add_u32 {S['t0']}, {S['t0']}, {S['b1']}")
    P(f"s_lshl_b32 {S['t0']}, {S['t0']}, 6\ns_add_u32 {S['t1']}, {S['t1']}, 4\ns_lshl_b32 {S['t1']}, {S['t1']}, 6")
    P(f"v_lshlrev_b32 {a_cs}, 4, {g_}\nv_add_u32 {a_cs}, {xw}, {a_cs}\nv_add_u32 {a_cs2}, {S['t1']}, {a_cs}\nv_add_u32 {a_cs}, {S['t0']}, {a_cs}")
    P(f"s_lshl_b32 {S['t0']}, {wc}, 10\nv_lshlrev_b32 {st[0]}, 4, {lane}\nv_add_u32 {st[0]}, {S['t0']}, {st[0]}\nv_xor_b32 {st[1]}, 1024, {st[0]}")
    P(f"s_lshl_b32 {S['t0']}, {S['e']}, 3\ns_add_u32 {S['t0']}, {S['t0']}, {S['rbl']}\ns_lshl_b32 {S['t0']}, {S['t0']}, 1\ns_add_u32 {S['t0']}, {S['t0']}, {wr}")
    P(f"s_mul_i32 {S['t0']}, {S['t0']}, {A2_KS}\ns_mul_i32 {S['t1']}, {S['cb']}, 14\ns_add_u32 {S['t0']}, {S['t0']}, {S['t1']}\ns_mul_i32 {S['t1']}, {wc}, 7\ns_add_u32 {S['t0']}, {S['t0']}, {S['t1']}\ns_add_u32 {S['t0']}, {S['t0']}, 32")
    P(f"s_add_u32 {S['b1']}, {S['b1']}, {S['t0']}\ns_add_u32 {S['b2']}, {S['b2']}, {S['t0']}\ns_lshl_b32 {S['b1']}, {S['b1']}, 11\ns_lshl_b32 {S['b2']}, {S['b2']}, 11")
    p2_setup(C)
    slab_tables(C, 64*3584//128); C.m0 = None
    for i in Rl.sched[-1][OPT["first"]:]: emit(C, Rl.emit_item(i))
    def reads(s):
        b = fb[s & 1]
        xs = ((s >> 1) % NX) * 16384; ws = WB + (s % NW) * 16384
        X = [f"ds_read_b128 {b['x'][i]}, {xr[i>>1][s&1]} offset:{xs + (i&1)*2048}" for i in range(4)]
        W = []
        for c in range(7):
            W.append(f"ds_read_b64_tr_b16 {b['w'][c][0:2]}, {wr_[c]} offset:{ws}")
            W.append(f"ds_read_b64_tr_b16 {b['w'][c][2:4]}, {wr_[c]} offset:{ws + 2048}")
        return X + W
    def mfmas(s):
        b = fb[s & 1]; o = []
        def mm(d, a, bb): o.append(f"v_mfma_f32_16x16x32_bf16 {d}, {a}, {bb}, {d if s else 0}")
        for i in range(2): mm(rs[i], ones, b['x'][i])
        for c in range(4): mm(cs[c], b['w'][c], ones)
        for c in range(7):
            for i in range(4): mm(acc[c][i], b['w'][c], b['x'][i])
        if s == 13:
            wrs = [f"ds_write_b32 {a_rs}, {rs[i][0]} offset:{RSB + i*64}" for i in range(2)] + [f"ds_write_b128 {a_cs}, {cs[c]} offset:{CSB + c*64}" for c in range(4)]
            for k_, x in enumerate(wrs): o[14 + k_] += "\n" + x
        return o
    run_loop(C, Rl.emit_item, Rl.sched, reads, mfmas, b2, OPT["fearly"], OPT["fstart"])
    P("s_waitcnt lgkmcnt(0)\ns_barrier"); b2.lgkm()
    nm = [va(2), va(2)]
    P(f"ds_read_b32 {nm[1][0]}, {a_rs2} offset:{RSB}\nds_read_b32 {nm[1][1]}, {a_rs2} offset:{RSB+64}")
    for c in range(4, 7): P(f"ds_read_b128 {cs[c]}, {a_cs2} offset:{CSB + (c-4)*64}")
    NEG = f2h(-1.0/448)
    emit(C, b2.moves(C.hist[12]))
    P(f"v_mul_f32 {nm[0][0]}, {NEG}, {rs[0][0]}\nv_mul_f32 {nm[0][1]}, {NEG}, {rs[1][0]}")
    Z = [va(4, 4) for _ in range(4)]
    units = [(c, 0) for c in range(4)] + [(c, 1) for c in range(4)] + [(c, pr) for c in range(4, 7) for pr in range(2)]
    pend = None
    old = b2.loaded
    for ui, (c, pr) in enumerate(units):
        if ui == 4:
            P("s_waitcnt lgkmcnt(0)"); b2.lgkm()
            P(f"v_mul_f32 {nm[1][0]}, {NEG}, {nm[1][0]}\nv_mul_f32 {nm[1][1]}, {NEG}, {nm[1][1]}")
        z = Z[ui % 4]
        for ii in range(2):
            a = acc[c][2*pr+ii]
            sel = "op_sel_hi:[1,0,1]" if ii == 0 else "op_sel:[0,1,0] op_sel_hi:[1,1,1]"
            P(f"v_pk_fma_f32 {a[0:2]}, {cs[c][0:2]}, {nm[pr]}, {a[0:2]} {sel}")
            P(f"v_pk_fma_f32 {a[2:4]}, {cs[c][2:4]}, {nm[pr]}, {a[2:4]} {sel}")
        if pend: P(pend); vm.issue(("st", 0))
        for ii in range(2):
            a = acc[c][2*pr+ii]
            P(f"v_cvt_pk_bf16_f32 {z[2*ii]}, {a[0]}, {a[1]}\nv_cvt_pk_bf16_f32 {z[2*ii+1]}, {a[2]}, {a[3]}")
        for q in range(4): P(f"v_pk_max_i16 {z[q]}, {z[q]}, 0")
        if OPT["fepi"] and ui % OPT["fepi"] == 0: emit(C, b2.loads(1, C.big_early))
        pend = (f"s_add_u32 {S['t0']}, {S['b1'] if c <= 2 else S['b2']}, {c*2048}\n"
                f"v_permlane16_swap_b32 {z[0]}, {z[2]}\nv_permlane16_swap_b32 {z[1]}, {z[3]}\n"
                f"buffer_store_dwordx4 {z}, {st[pr]}, {sWS}, {S['t0']} offen sc1")
    P(pend); vm.issue(("st", 0))
    stamp(C, "epiend")
    emit(C, b2.moves(old))
    b2.drain(OPT["post"], C.big_early)
    get_tag(C)
    stamp(C, "tag")
    P(vm.wait(lambda q: q[0] == "st")); stamp(C, "ack"); P("s_barrier")
    flag_store(C)
    stamp(C, "flag")
    b2.drain(99, C.big_early)
    stamp(C, "b2iss")
    poll_check(C, "PF_F", 3, first=False)
    vm.q = []
    stamp(C, "polled")
    for tt in range(OPT["LA"]): emit(C, aload(C, tt))
    return max(va.hi, phase2(C, b2, None))

XS = 18432
def qkv_head(C):
    P, S, lane, t = C.P, C.S, C.lane, C.t
    Rl = Role(); Rl.vm = C.vm = Cnt("vmcnt", 63); C.vm.issue(("pf", 0)); C.m0 = None
    va = Rl.va = Alloc("v", C.vbase, 256)
    NW, NX = 4, 3; XB, WB = 0, 3 * XS
    xd = C.xd; xh = va(); wd = [va() for _ in range(6)]
    w = S['w']; hp = S['cb']; mW, mH = C.mW, C.mH
    P(f"s_mul_i32 {S['t1']}, {w}, {32*1792}\ns_add_u32 {S['t1']}, {S['t1']}, {8*1792}\ns_cmp_eq_u32 {S['rbl']}, 0\ns_cselect_b32 {S['t1']}, {BIG}, {S['t1']}")
    P(f"v_subrev_u32 {xh}, {S['t1']}, {t[3]}")
    P(f"s_lshl_b32 {S['t1']}, {w}, 4\ns_mov_b64 {mH}, 0xffff\ns_lshl_b64 {mH}, {mH}, {S['t1']}")
    P(f"v_and_b32 {t[0]}, 2, {t[4]}\nv_add_u32 {t[0]}, {S['b1']}, {t[0]}\nv_sub_u32 {t[0]}, {t[5]}, {t[0]}\nv_and_b32 {t[0]}, 7, {t[0]}")
    P(f"v_cmp_ne_u32 {mW}, 7, {t[0]}\nv_mov_b32 {t[2]}, {BIG}")
    P(f"s_mul_i32 {S['t0']}, {hp}, 112\ns_mul_i32 {S['t1']}, {w}, {8*2688}\ns_add_u32 {S['t0']}, {S['t0']}, {S['t1']}")
    P(f"v_mul_u32_u24 {t[1]}, 2688, {t[4]}\nv_lshl_add_u32 {t[1]}, {t[0]}, 4, {t[1]}\nv_add_u32 {t[1]}, {S['t0']}, {t[1]}\nv_cndmask_b32 {wd[2]}, {t[2]}, {t[1]}, {mW}")
    P(f"v_add_u32 {wd[1]}, 128, {wd[2]}\nv_add_u32 {wd[0]}, 256, {wd[2]}")
    P(f"s_mul_i32 {S['kw']}, {S['kx']}, {64*2688//128}\ns_mul_i32 {S['wm0']}, {w}, 3072")
    karg(C)
    P(f"s_sub_u32 {C.sW[0]}, {C.ptr[2]}, 256\ns_subb_u32 {C.sW[1]}, {C.ptr[3]}, 0\ns_mov_b32 {C.sW[2]}, {448*2688 + 256}\ns_mov_b32 {C.sW[3]}, 0x20000")
    items = []
    for d in range(7):
        fr = (2*(d-NX)+1 if d >= NX else -1)
        for j in (0, 1, 2, 3, -1): items.append(dict(k="x", d=d, j=j, need=2*d, free=fr))
        for s in (2*d, 2*d+1):
            for p in range(3): items.append(dict(k="w", s=s, j=p, need=s, free=(s-NW if s >= NW else -1)))
    def emit_item(i):
        it = items[i]; j = it["j"]
        if it["k"] == "x":
            sb = XB + (it['d'] % NX) * XS
            if j < 0: return dma_item(C, it["need"], f"s_mov_b32 m0, {sb + 1024}", f"buffer_load_dwordx4 {xh}, {C.sX}, {C.kxs[it['d']]} offen{NTX} lds", mH)
            return dma_item(C, it["need"], f"s_add_u32 m0, {S['xm0']}, {sb + 2048}", f"buffer_load_dwordx4 {xd[j]}, {C.sX}, {C.kxs[it['d']]} offen offset:{j*1024}{NTX} lds")
        return dma_item(C, it["need"], f"s_add_u32 m0, {S['wm0']}, {WB + (it['s'] % NW)*12288}",
                        f"buffer_load_dwordx4 {wd[j + 3*(it['s']&1)]}, {C.sW}, {C.kws[it['s']>>1]} offen offset:{j*1024}{NTW} lds", mW if j == 1 else None)
    Rl.sched = schedule(items, OPT["pro"] * 11 // 12, OPT["rate"] - 1, 14); Rl.emit_item = emit_item
    for i in Rl.sched[-1][:8]: emit(C, emit_item(i))
    for j in range(3): P(f"v_add_u32 {wd[3+j]}, {32*2688}, {wd[j]}")
    for i in Rl.sched[-1][8:min(OPT["first"], 11)]: emit(C, emit_item(i))
    return Rl

def qkv_body(C, Rl):
    P, S, lane, t = C.P, C.S, C.lane, C.t
    C.role = "Q"; vm = C.vm = Rl.vm; C.big_early = min(max(NBIG - OPT["late"], 0), 9)
    va = Rl.va; aa = Alloc("a", 0, C.abase)
    NW, NX = 4, 3; XB, WB = 0, 3 * XS
    sWS, mT = C.sWS, C.mT
    w = S['w']; hp = S['cb']; hh, half = S['hh'], S['half']
    stamp(C, "iss")
    xr = [va() for _ in range(2)]; xr0 = [va() for _ in range(2)]
    wr_ = [va() for _ in range(2)]
    acc = [[[va(4, 4) for _ in range(5)] for _ in range(2)] for _ in range(3)]
    dg = [va(4, 4) for _ in range(5)]
    cprev, ccur, cfirst = va(4, 4), va(4, 4), va(4, 4)
    mprev, mcur = va(2), va(2)
    fb = [dict(x=[aa(4) for _ in range(5)], w=[[aa(4) for _ in range(2)] for _ in range(3)]) for _ in range(2)]
    srd(P, sWS, C.wsp[0], C.wsp[1], WS_REC)
    n_, g_ = va(), va()
    P(f"v_and_b32 {n_}, 15, {lane}\nv_lshrrev_b32 {g_}, 4, {lane}")
    tmpcs = [va(4, 4) for _ in range(4)]
    c1, c0 = tmpcs[0], tmpcs[1]
    for i in range(4): P(f"v_mov_b32 {c1[i]}, {ONES}\nv_mov_b32 {c0[i]}, 0")
    P(f"v_and_b32 {t[0]}, 7, {lane}\nv_and_b32 {t[1]}, 2, {lane}\nv_bfe_u32 {t[2]}, {lane}, 3, 1\nv_lshl_add_u32 {t[1]}, {t[2]}, 2, {t[1]}")
    P(f"v_add_u32 {t[1]}, 7, {t[1]}\nv_and_b32 {t[1]}, 7, {t[1]}\nv_lshlrev_b32 {t[1]}, 4, {t[1]}\nv_lshl_add_u32 {t[0]}, {t[0]}, 7, {t[1]}")
    P(f"v_lshrrev_b32 {t[1]}, 3, {lane}\nv_mul_u32_u24 {t[1]}, 3072, {t[1]}\ns_mul_i32 {S['t0']}, {hh}, {2*12288}\ns_add_u32 {S['t0']}, {S['t0']}, {WB}")
    P(f"v_add3_u32 {t[0]}, {t[0]}, {t[1]}, {S['t0']}")
    P(f"ds_write_b128 {t[0]}, {c1} offset:1024")
    P(f"s_min_u32 {S['t0']}, {w}, 2\ns_mul_i32 {S['t0']}, {S['t0']}, {XS}\nv_lshlrev_b32 {t[1]}, 4, {lane}\nv_add_u32 {t[1]}, {S['t0']}, {t[1]}\nds_write_b128 {t[1]}, {c1} offset:{XB}")
    P(f"v_lshrrev_b32 {t[0]}, 1, {n_}\nv_xor_b32 {t[0]}, {g_}, {t[0]}\nv_lshlrev_b32 {t[0]}, 4, {t[0]}\nv_lshl_add_u32 {t[0]}, {n_}, 7, {t[0]}")
    P(f"s_lshl_b32 {S['t0']}, {half}, 13\nv_add_u32 {t[1]}, {S['t0']}, {t[0]}\nv_add_u32 {xr[0]}, {XB + 2048}, {t[1]}\nv_xor_b32 {xr[1]}, 64, {xr[0]}")
    P(f"v_cmp_gt_u32 vcc, 8, {n_}\nv_cndmask_b32 {xr0[0]}, {t[1]}, {t[0]}, vcc\nv_xor_b32 {xr0[1]}, 64, {xr0[0]}")
    P(f"v_bfe_u32 {t[0]}, {lane}, 2, 2\nv_mul_u32_u24 {t[1]}, 3072, {g_}\nv_lshl_add_u32 {t[0]}, {t[0]}, 7, {t[1]}\nv_add_u32 {t[0]}, {WB}, {t[0]}")
    P(f"v_bfe_u32 {t[1]}, {lane}, 3, 2\nv_lshlrev_b32 {t[1]}, 5, {t[1]}\nv_and_b32 {t[2]}, 3, {lane}")
    P(f"s_mul_i32 {S['t0']}, {hh}, 56\nv_lshl_add_u32 {t[3]}, {t[2]}, 3, {S['t0']}")
    P(f"v_add_u32 {t[4]}, {t[3]}, {t[1]}\nv_and_b32 {t[4]}, 127, {t[4]}\nv_add_u32 {wr_[0]}, {t[0]}, {t[4]}")
    P(f"s_lshl_b32 {S['t0']}, {hh}, 3\ns_sub_u32 {S['t0']}, 120, {S['t0']}\nv_mov_b32 {t[4]}, {S['t0']}\nv_add_u32 {t[3]}, 32, {t[3]}")
    P(f"v_cmp_eq_u32 vcc, 3, {t[2]}\nv_cndmask_b32 {t[3]}, {t[3]}, {t[4]}, vcc")
    P(f"v_add_u32 {t[4]}, {t[3]}, {t[1]}\nv_and_b32 {t[4]}, 127, {t[4]}\nv_add_u32 {wr_[1]}, {t[0]}, {t[4]}")
    P(f"v_lshlrev_b32 {t[0]}, 2, {g_}\nv_sub_u32 {t[0]}, {n_}, {t[0]}\nv_mov_b32 {t[1]}, {NINF}")
    P(f"s_or_b32 {S['t0']}, {S['rbl']}, {half}\ns_cmp_eq_u32 {S['t0']}, 0\ns_cselect_b32 {S['t0']}, {NINF}, 0")
    for r in range(4):
        P(f"v_subrev_u32 {t[2]}, {r}, {t[0]}")
        P(f"v_cmp_gt_i32 vcc, -8, {t[2]}\nv_cndmask_b32 {cprev[r]}, {t[1]}, {c0[0]}, vcc")
        P(f"v_cmp_gt_u32 vcc, 8, {t[2]}\nv_cndmask_b32 {ccur[r]}, {t[1]}, {c0[0]}, vcc")
        P(f"v_or_b32 {cfirst[r]}, {S['t0']}, {cprev[r]}")
    for (m, c) in ((mprev, cprev), (mcur, ccur)):
        for q in range(2):
            P(f"v_ashrrev_i32 {t[2]}, 31, {c[2*q]}\nv_ashrrev_i32 {t[3]}, 31, {c[2*q+1]}\nv_and_b32 {t[2]}, 0xffff, {t[2]}\nv_and_b32 {t[3]}, 0xffff0000, {t[3]}")
            P(f"v_or_b32 {t[2]}, {t[2]}, {t[3]}\nv_not_b32 {m[q]}, {t[2]}")
    a1, a2, av_w, av_r, sr, so = va(), va(), va(), va(), va(), va()
    VCH = [0, 1, 2, 8, 9]
    av_w2, av_r2 = va(), va()
    P(f"v_lshlrev_b32 {a1}, 2, {n_}\nv_bfe_u32 {a2}, {lane}, 2, 2\nv_lshl_add_u32 {a2}, {a2}, 6, {a1}\nv_add_u32 {a1}, 192, {a1}")
    P(f"v_and_b32 {t[2]}, 1, {lane}\nv_cmp_eq_u32 {mT}, 1, {t[2]}\nv_and_b32 {t[2]}, 2, {lane}\nv_cmp_eq_u32 {C.mU}, 2, {t[2]}")
    P(f"s_lshl_b32 {S['t1']}, {w}, 11\nv_mul_u32_u24 {av_w}, 80, {n_}\nv_lshl_add_u32 {av_w}, {g_}, 4, {av_w}\nv_add_u32 {av_w}, {S['t1']}, {av_w}")
    P(f"v_lshrrev_b32 {av_r}, 2, {lane}\nv_mul_u32_u24 {av_r}, 80, {av_r}\nv_and_b32 {t[4]}, 3, {lane}\nv_lshl_add_u32 {av_r}, {t[4]}, 4, {av_r}\nv_add_u32 {av_r}, {S['t1']}, {av_r}\nv_add_u32 {av_w2}, 65536, {av_w}\nv_add_u32 {av_r2}, 65536, {av_r}")
    P(f"v_lshlrev_b32 {so}, 4, {lane}")
    P(f"s_lshl_b32 {S['t1']}, {S['e']}, 3\ns_add_u32 {S['t1']}, {S['t1']}, {S['rbl']}\ns_lshl_b32 {S['t1']}, {S['t1']}, 1\ns_add_u32 {S['t1']}, {S['t1']}, {half}")
    P(f"s_lshl_b32 {S['t0']}, {hp}, 1\ns_add_u32 {S['t0']}, {S['t0']}, {hh}\ns_lshl_b32 {S['t0']}, {S['t0']}, 12\ns_mul_i32 {S['b1']}, {S['t1']}, {A2_KS*2048}\ns_add_u32 {S['b1']}, {S['b1']}, {S['t0']}")
    P(f"s_lshl_b32 {S['t1']}, {S['t1']}, 8\ns_lshl_b32 {S['t0']}, {hp}, 13\ns_add_u32 {S['t1']}, {S['t1']}, {S['t0']}\ns_add_u32 {S['t1']}, {S['t1']}, {RSTD_OFF}\ns_cmp_eq_u32 {hh}, 0\ns_cselect_b32 {S['t1']}, {S['t1']}, {BIG}")
    P(f"v_lshl_add_u32 {sr}, {lane}, 2, {S['t1']}")
    p2_setup(C)
    slab_tables(C, 64*2688//128); C.m0 = None
    for i in Rl.sched[-1][min(OPT["first"], 11):]: emit(C, Rl.emit_item(i))
    def reads(s):
        b = fb[s & 1]
        xs = ((s >> 1) % NX) * XS; ws = (s % NW) * 12288
        X = [f"ds_read_b128 {b['x'][0]}, {xr0[s&1]} offset:{xs}"] + [f"ds_read_b128 {b['x'][j]}, {xr[s&1]} offset:{xs + (j-1)*2048}" for j in range(1, 5)]
        W = []
        for p in (1, 2, 0):
            for tt in range(2):
                W.append(f"ds_read_b64_tr_b16 {b['w'][p][tt][0:2]}, {wr_[tt]} offset:{ws + p*1024}")
                W.append(f"ds_read_b64_tr_b16 {b['w'][p][tt][2:4]}, {wr_[tt]} offset:{ws + p*1024 + 512}")
        return X + W
    Q, K, V = acc
    ST = [va(2) for _ in range(5)]
    sq = [t[0], t[1], t[2], t[3], t[4]]
    csK = tmpcs[0:2]; csV = tmpcs[2:4]; csQ = [Q[0][0], Q[1][0]]
    def bc(d_, s_): return [f"v_mov_b32_dpp {d_[tt][r]}, {s_[tt][0][r]} row_newbcast:0 row_mask:0xf bank_mask:0xf" for tt in (1, 0) for r in range(4)]
    def mfmas(s):
        b = fb[s & 1]; o = []
        def mm(d, a, bb): o.append(f"v_mfma_f32_16x16x32_bf16 {d}, {a}, {bb}, {d if s else 0}")
        for j in range(5): mm(dg[j], b['x'][j], b['x'][j])
        for p in (1, 2, 0):
            for tt in (1, 0):
                for j in range(5): mm(acc[p][tt][j], b['w'][p][tt], b['x'][j])
        if s == 13:
            ex = []
            for j in range(5):
                ex += [f"v_cndmask_b32 {dg[j][0]}, {dg[j][0]}, {dg[j][1]}, {mT}", f"v_cndmask_b32 {dg[j][2]}, {dg[j][2]}, {dg[j][3]}, {mT}",
                       f"v_cndmask_b32 {dg[j][0]}, {dg[j][0]}, {dg[j][2]}, {C.mU}\nds_bpermute_b32 {sq[j]}, {a2}, {dg[j][0]}\nds_bpermute_b32 {ST[j][0]}, {a1}, {K[1][j][0]}"]
            ex += bc(csK, K)
            for k_, x in enumerate(ex): o[12 + k_] += "\n" + x
        return o
    b2 = B2(C)
    run_loop(C, Rl.emit_item, Rl.sched, reads, mfmas, b2, OPT["qearly"], OPT["qstart"])
    P.ext(bc(csV, V))
    assert b2.order[9:] == VCH
    emit(C, b2.moves(C.hist.get(12, 0)))
    P("s_waitcnt lgkmcnt(0)"); b2.lgkm()
    P(f"s_mov_b32 {S['t0']}, {f2h(1.0/448)}")
    for j in range(5): P(f"v_mul_f32 {ST[j][0]}, {f2h(-1.0/448)}, {ST[j][0]}")
    for j in range(5): P(f"v_mul_f32 {ST[j][1]}, {ST[j][0]}, {ST[j][0]}")
    for j in range(5): P(f"v_fma_f32 {ST[j][1]}, {sq[j]}, {S['t0']}, -{ST[j][1]}")
    for j in range(5): P(f"v_max_f32 {ST[j][1]}, 0, {ST[j][1]}")
    for j in range(5): P(f"v_add_f32 {ST[j][1]}, {f2h(1e-5)}, {ST[j][1]}")
    for j in range(5): P(f"v_rsq_f32 {ST[j][1]}, {ST[j][1]}")
    P.ext(bc(csQ, Q))
    LO = "op_sel_hi:[1,0,1]"; HI = "op_sel:[0,1] op_sel_hi:[1,1]"
    def correct(A_, cs_, j, scale, dst):
        o = []
        for tt in range(2):
            a = A_[tt][j]
            o.append(f"v_pk_fma_f32 {a[0:2]}, {cs_[tt][0:2]}, {ST[j]}, {a[0:2]} {LO}")
            o.append(f"v_pk_fma_f32 {a[2:4]}, {cs_[tt][2:4]}, {ST[j]}, {a[2:4]} {LO}")
        if scale:
            for tt in range(2):
                a = A_[tt][j]
                o.append(f"v_pk_mul_f32 {a[0:2]}, {a[0:2]}, {ST[j]} {HI}")
                o.append(f"v_pk_mul_f32 {a[2:4]}, {a[2:4]}, {ST[j]} {HI}")
        for tt in range(2):
            a = A_[tt][j]
            o.append(f"v_cvt_pk_bf16_f32 {dst[2*tt]}, {a[0]}, {a[1]}")
            o.append(f"v_cvt_pk_bf16_f32 {dst[2*tt+1]}, {a[2]}, {a[3]}")
        return o
    def more(n): return b2.loads(n, C.big_early)
    seq = []
    for j in range(5): seq.extend(correct(V, csV, j, True, V[0][j]))
    emit(C, merge(seq, (more(3), 0, len(seq))))
    for j in range(5): P(f"ds_write_b128 {av_w2 if VCH[j] >= 8 else av_w}, {V[0][j]} offset:{(VCH[j]*8192) & 0xffff}")
    seq = []
    l0 = b2.loaded
    for j in range(5): seq.extend(correct(K, csK, j, True, K[0][j]))
    emit(C, merge(seq, (more(3), 0, len(seq))))
    emit(C, b2.moves(l0))
    Vt = [R("a", C.abase - 20, 10), R("a", C.abase - 10, 10)]
    P("s_waitcnt lgkmcnt(0)"); b2.lgkm()
    for tt in range(2):
        for j in range(5): P(f"ds_read_b64_tr_b16 {Vt[tt][2*j:2*j+2]}, {av_r2 if VCH[j] >= 8 else av_r} offset:{((VCH[j]*8192) & 0xffff) + 8*tt}")
    seq = []
    for j in range(1, 5): seq.extend(correct(Q, csQ, j, False, Q[0][j]))
    emit(C, merge(seq, (more(2), 0, len(seq))))
    S0 = {j: K[1][j] for j in range(1, 5)}; S1 = {j: V[1][j] for j in range(1, 5)}
    rg = [f"v_cmp_eq_u32 vcc, 1, {g_}", f"v_cndmask_b32 {t[5]}, {ST[1][1]}, {ST[2][1]}, vcc", f"v_cmp_eq_u32 vcc, 2, {g_}", f"v_cndmask_b32 {t[5]}, {t[5]}, {ST[3][1]}, vcc",
          f"v_cmp_eq_u32 vcc, 3, {g_}", f"v_cndmask_b32 {t[5]}, {t[5]}, {ST[4][1]}, vcc", f"v_cmp_lt_u32 vcc, 31, {lane}"]
    seq = []
    for j in range(1, 5):
        seq.append(f"v_mfma_f32_16x16x32_bf16 {S0[j]}, {K[0][j-1]}, {Q[0][j]}, {cfirst if j == 1 else cprev}")
        seq.append(f"v_mfma_f32_16x16x32_bf16 {S1[j]}, {K[0][j]}, {Q[0][j]}, {ccur}")
    P.ext(merge(seq, (rg, 0, 8)))
    get_tag(C)
    cq = f2h(28 ** -0.5 * math.log2(math.e))
    def softmax(a, b, tm):
        o = []
        X, Y = S0[a], S0[b]
        c, m1, m2 = tm[0], tm[1], tm[2]
        o.append(f"v_cndmask_b32 {c}, {ST[a][1]}, {ST[b][1]}, vcc")
        for r in range(4): o.append(f"v_max_f32 {X[r]}, {X[r]}, {S1[a][r]}")
        for r in range(4): o.append(f"v_max_f32 {Y[r]}, {Y[r]}, {S1[b][r]}")
        o.append(f"v_mul_f32 {c}, {cq}, {c}")
        for r in range(4): o.append(f"v_permlane32_swap_b32 {X[r]}, {Y[r]}")
        for r in range(4): o.append(f"v_max_f32 {X[r]}, {X[r]}, {Y[r]}")
        o.append(f"v_max3_f32 {m1}, {X[0]}, {X[1]}, {X[2]}")
        o.append(f"v_max_f32 {m1}, {m1}, {X[3]}")
        o.append(f"v_mov_b32 {m2}, {m1}")
        o.append(f"v_permlane16_swap_b32 {m1}, {m2}")
        o.append(f"v_max_f32 {m1}, {m1}, {m2}")
        o.append(f"v_mul_f32 {m1}, {m1}, {c}")
        for r in range(4): o.append(f"v_fma_f32 {X[r]}, {X[r]}, {c}, -{m1}")
        for r in range(4): o.append(f"v_exp_f32 {X[r]}, {X[r]}")
        o.append(f"v_add_f32 {m1}, {X[0]}, {X[1]}")
        o.append(f"v_add_f32 {m2}, {X[2]}, {X[3]}")
        o.append(f"v_add_f32 {m1}, {m1}, {m2}")
        o.append(f"v_mov_b32 {m2}, {m1}")
        o.append(f"v_permlane16_swap_b32 {m1}, {m2}")
        o.append(f"v_add_f32 {m1}, {m1}, {m2}")
        o.append(f"v_rcp_f32 {m1}, {m1}")
        for r in range(4): o.append(f"v_mul_f32 {X[r]}, {X[r]}, {m1}")
        o.append(f"v_cvt_pk_bf16_f32 {X[0]}, {X[0]}, {X[1]}")
        o.append(f"v_cvt_pk_bf16_f32 {X[1]}, {X[2]}, {X[3]}")
        o.append(f"v_mov_b32 {Y[0]}, {X[0]}")
        o.append(f"v_mov_b32 {Y[1]}, {X[1]}")
        o.append(f"v_permlane32_swap_b32 {X[0]}, {Y[0]}")
        o.append(f"v_permlane32_swap_b32 {X[1]}, {Y[1]}")
        for Zr in (X, Y):
            o.append(f"v_and_b32 {Zr[2]}, {Zr[0]}, {mcur[0]}")
            o.append(f"v_and_b32 {Zr[3]}, {Zr[1]}, {mcur[1]}")
            o.append(f"v_and_b32 {Zr[0]}, {Zr[0]}, {mprev[0]}")
            o.append(f"v_and_b32 {Zr[1]}, {Zr[1]}, {mprev[1]}")
        return o
    seq = []
    for x_, y_ in zip(softmax(1, 2, dg[1]), softmax(3, 4, dg[2])): seq += [x_, y_]
    l0 = b2.loaded
    emit(C, merge(seq, (more(OPT["qsm"]) + [poll_req(C)], 0, len(seq) * 2 // 3)))
    emit(C, b2.moves(l0))
    P("s_waitcnt lgkmcnt(0)"); b2.lgkm()
    O = [{j: Q[1][j] for j in range(1, 5)}, {j: V[1][j] for j in range(1, 5)}]
    for j in range(1, 5):
        for tt in range(2):
            P(f"v_mfma_f32_16x16x32_bf16 {O[tt][j]}, {Vt[tt][2*(j-1):2*(j-1)+4]}, {S0[j]}, 0")
    Z = {(tt, pr): K[0][2*tt+pr] for tt in range(2) for pr in range(2)}
    for pr in range(2):
        for tt in range(2):
            z = Z[tt, pr]
            for ii in range(2):
                o_ = O[tt][1 + 2*pr + ii]
                P(f"v_cvt_pk_bf16_f32 {z[2*ii]}, {o_[0]}, {o_[1]}\nv_cvt_pk_bf16_f32 {z[2*ii+1]}, {o_[2]}, {o_[3]}")
    for pr in range(2):
        for tt in range(2):
            z = Z[tt, pr]
            P(f"v_permlane16_swap_b32 {z[0]}, {z[2]}\nv_permlane16_swap_b32 {z[1]}, {z[3]}")
    def stores():
        for pr in range(2):
            for tt in range(2):
                P(f"buffer_store_dwordx4 {Z[tt, pr]}, {so}, {sWS}, {S['b1']} offen offset:{tt*2048 + pr*1024} sc1"); vm.issue(("st", 0))
        P(f"buffer_store_dword {t[5]}, {sr}, {sWS}, 0 offen sc1"); vm.issue(("st", 0))
    stamp(C, "epiend")
    C.big_early = max(NBIG - OPT["late"], 0)
    stores()
    P("s_cmp_ge_u32 s2, 224\ns_cbranch_scc1 Q_FIN")
    q0 = list(vm.q); l0_ = len(P.l)
    P("Q_FIN:\ns_waitcnt vmcnt(0)\ns_barrier"); flag_store(C); P("s_endpgm")
    C.slow.append("\n".join(P.l[l0_:])); del P.l[l0_:]
    vm.q = q0
    b2.drain(99, C.big_early)
    poll_check(C, "PF_Q", 3)
    stamp(C, "polled")
    for tt in range(OPT["LA"]): emit(C, aload(C, tt))
    return max(va.hi, phase2(C, b2, 0))

def main():
    C = Ctx(); P = C.P = Prog()
    sa = Alloc("s", 3, 98); S = C.S = {}
    S['w'] = sa()
    C.ptr = sa(16, 4); C.wsp = sa(2); pc = sa(2)
    C.sX, C.sW, C.sWS, C.sB2, C.sBo, C.sD, C.sP = [sa(4) for _ in range(7)]
    C.mW, C.mH, C.mT, C.mU = sa(2), sa(2), sa(2), sa(2)
    C.tm = pc
    for n in "e rbl cb t0 t1 t2 kx kw wm0 xm0 b1 b2 hh half T cb2 bo bo_b bo_s bbeg bend ao ao_s abeg aend rm0 bm0 tag".split(): S[n] = sa()
    ns = 102
    assert sa.hi <= 90, sa.hi
    C.names = []; C.allnames = {}; C.slow = []
    S['sbeg'], S['send'], S['asb'] = R("s", 94), R("s", 95), R("s", 96)
    dead = [C.ptr[i] for i in (2, 3, 4, 5, 6, 7, 8, 9, 10, 11, 14, 15)]
    C.kxs = [S['kx']] + dead[:6]; C.kws = [S['kw']] + dead[6:]
    C.lane = lane = R("v", 0)
    va = Alloc("v", 3, 256)
    t = C.t = [va() for _ in range(7)]
    C.vA = [va(), va()]; C.vB = [va(), va()]; C.rBr = [va(), va()]; C.rBb = [[va(), va()], [va(), va()]]
    C.vF, C.vZ, C.vN, C.vPF, C.vST, C.vFL = [va() for _ in range(6)]
    C.xd = xd = [va() for _ in range(4)]
    C.vbase = va.p
    C.abase = 96
    C.breg = [[R("a", C.abase + 8*i, 4), R("a", C.abase + 8*i + 4, 4)] for i in range(NREG)]
    C.NA = OPT["LA"] + 1
    aa = Alloc("a", 0, C.abase - 20)
    C.aring = [[aa(4) for _ in range(2)] for _ in range(C.NA)]
    C.bf = [[aa(4) for _ in range(2)] for _ in range(2)]
    na = C.abase + 8 * NREG
    w = S['w']
    P(f"{NAME}_kernel:")
    stamp(C, "start")
    if OPT["spin"]: P("s_memrealtime s[98:99]")
    P("s_cmp_ge_u32 s2, 256\ns_cbranch_scc1 K_END")
    P(f"s_load_dwordx16 {C.ptr}, s[0:1], 0\ns_load_dwordx2 {C.wsp}, s[0:1], 64")
    P(f"s_getpc_b64 {pc}\ns_lshr_b32 {S['t0']}, s2, 3\ns_lshl_b32 {S['t0']}, {S['t0']}, 11\nv_lshl_add_u32 v1, v0, 3, {S['t0']}\nglobal_load_dword v2, v1, {pc}")
    P(f"v_lshrrev_b32 v1, 6, v0\nv_and_b32 v0, 63, v0\nv_readfirstlane_b32 {w}, v1")
    P(f"s_bfe_u32 {S['e']}, s2, 0x10002\ns_bfe_u32 {S['rbl']}, s2, 0x30003")
    P(f"s_and_b32 {S['t0']}, s2, 3\ns_lshl_b32 {S['t0']}, {S['t0']}, 1\ns_bfe_u32 {S['t1']}, s2, 0x10006\ns_add_u32 {S['cb']}, {S['t0']}, {S['t1']}")
    if OPT["rot"] and not OPT["com"]:
        P(f"s_bfe_u32 {S['t0']}, s2, 0x20006\ns_lshl_b32 {S['t0']}, {S['t0']}, 1\ns_add_u32 {S['t0']}, {S['t0']}, {S['rbl']}")
        if OPT["rotm"] == 7:
            P(f"s_sub_u32 {S['t1']}, {S['t0']}, 7\ns_cmp_ge_u32 {S['t0']}, 7\ns_cselect_b32 {S['t0']}, {S['t1']}, {S['t0']}")
        else:
            P(f"s_bfe_u32 {S['t0']}, s2, 0x20006\ns_add_u32 {S['t0']}, {S['t0']}, {S['rbl']}\ns_and_b32 {S['t0']}, {S['t0']}, {OPT['rotm']-1}\ns_mul_i32 {S['t0']}, {S['t0']}, {OPT['rotk']}")
    else:
        P(f"s_mov_b32 {S['t0']}, 0")
    P(f"s_lshl_b32 {S['kx']}, {S['t0']}, 7\ns_mul_i32 {S['t2']}, {S['e']}, 896")
    P(f"s_lshl_b32 {S['t0']}, {S['rbl']}, 7\ns_lshl_b32 {S['t1']}, {w}, 5\ns_add_u32 {S['t0']}, {S['t0']}, {S['t1']}")
    P(f"v_lshrrev_b32 {t[4]}, 3, {lane}\nv_add_u32 {t[0]}, {S['t0']}, {t[4]}\nv_mul_u32_u24 {t[0]}, 1792, {t[0]}")
    P(f"v_lshrrev_b32 {t[1]}, 4, {lane}\nv_and_b32 {t[5]}, 7, {lane}\nv_xor_b32 {t[2]}, {t[1]}, {t[5]}")
    P(f"v_lshl_add_u32 {xd[0]}, {t[2]}, 4, {t[0]}")
    P(f"v_xor_b32 {t[3]}, 64, {xd[0]}\nv_add_u32 {xd[1]}, {8*1792 - 1024}, {t[3]}\nv_add_u32 {xd[2]}, {16*1792 - 2048}, {xd[0]}\nv_add_u32 {xd[3]}, {24*1792 - 3072}, {t[3]}")
    P(f"s_and_b32 {S['hh']}, {w}, 1\ns_lshr_b32 {S['half']}, {w}, 1\ns_lshl_b32 {S['b1']}, {S['hh']}, 2\ns_lshl_b32 {S['xm0']}, {w}, 12")
    P("s_cmp_lt_u32 s2, 128\ns_cbranch_scc1 H_FFN")
    rq = qkv_head(C)
    P("s_branch R_QKV\nH_FFN:")
    rf = ffn_head(C)
    nv1 = ffn_body(C, rf)
    P("R_QKV:"); C.names = C.names[:1]
    nv2 = qkv_body(C, rq)
    for x in C.slow: P(x)
    P("K_END:\ns_endpgm")
    l, npad = pad_hazards(P.l)
    out = [f"; generated by gen5.py {OPT} (hazard pads {npad})",
           f"; stamps {C.allnames}",
           "; @launch grid=(256,1,1) block=(256,1,1) lds=163840",
           '.amdgcn_target "amdgcn-amd-amdhsa--gfx950"\n.text',
           f".globl {NAME}_kernel\n.p2align 8\n.type {NAME}_kernel,@function"]
    out.extend(l)
    out.append(".fill 7168, 4, 0xbf800000")
    out.append(kernel_desc(f"{NAME}_kernel", max(nv1, nv2), na, ns))
    print("\n".join(out))
main()
```

```python
import sys, math, struct
from asmlib import *

NAME = "recurrent_scan__sliding_local_dilated__dense_activation_relu__prompt"
OPT = dict(rot=1, pro=20, rate=8, LA=6, stamps=0, b2start=9, b2rate=4, qrate=8, mlag=3, TB=30, fe_per=22, pfm=2, rot2=2, post=4, spin=0, qe=3, pr=5, gsp=1, xst=1, gat=9, npl=1, fine=0, enc='', encwg=0,
           fearly=1, fstart=9, qearly=1, qstart=5, nreg=17, late=0, fepi=0, qsm=5, ntx=0, ntw=0, first=8, com=0, pfs=0, slp=0, rots=1, cap=2, stfirst=1, rotm=7, rotk=1)
for a in sys.argv[1:]:
    k, v = a.split("="); assert k in OPT, k; OPT[k] = int(v) if k != "enc" else v

f2h = lambda x: hex(struct.unpack("<I", struct.pack("<f", x))[0])
NT2 = 36
A2_KS = 144
RSTD_OFF = 2048 * A2_KS * 32
FLAG_OFF = RSTD_OFF + 8 * 8192
SCOL_OFF = FLAG_OFF + 256 * 128
SROW_OFF = SCOL_OFF + 16 * 16384
WS_USED = SROW_OFF + 16 * 8192
STAMP_OFF = 16 << 20
WS_REC = (STAMP_OFF + (1 << 20)) if (OPT["stamps"] or OPT["spin"]) else WS_USED
XBYTES = 2048 * 896
NTX = " nt" if OPT["ntx"] else ""; NTW = " nt" if OPT["ntw"] else ""
ONES = "0x3f803f80"; NINF = "0xff800000"; BIG = "0x80000000"
NREG = OPT["nreg"]
assert NT2 - NREG <= 19
REL = {"F": [12, 12, 13, 13, 10, 10, 11, 11, 13, 13, 9, 9, 11, 11] + [-1] * 6,
       "Q": [20, 20, 20, 9, 11, 11, 12, 12, 20, 20, 10, 11, 11, -1] + [-1] * 6}
XCH = 19
SPIN_MAX = 1 << 16

def srd(P, d, lo, hi, n):
    P(f"s_mov_b32 {d[0]}, {lo}\ns_mov_b32 {d[1]}, {hi}\ns_mov_b32 {d[2]}, {n}\ns_mov_b32 {d[3]}, 0x20000")

class Cnt:
    def __init__(self, name, mx): self.q = []; self.name = name; self.mx = mx
    def issue(self, tag): self.q.append(tag)
    def cnt(self, pred):
        last = -1
        for i, t in enumerate(self.q):
            if pred(t): last = i
        return min(len(self.q) - 1 - last, self.mx)
    def wait(self, pred): return f"s_waitcnt {self.name}({self.cnt(pred)})"

class Ctx: pass
class Lazy:
    def __init__(self, fn, n=1): self.fn = fn; self.n = n
def emit(C, seq):
    for x in seq: C.P(x.fn() if isinstance(x, Lazy) else x)
def vop(C, tag, text):
    def f():
        C.vm.issue(tag); return text
    return Lazy(f, text.count("\n") + 1)
def lop(C, tag, text):
    def f():
        C.lg.issue(tag); return text
    return Lazy(f)

def stamp(C, name):
    if OPT["enc"] == name: C.P("s_memrealtime s[100:101]")
    if not OPT["stamps"]: return
    i = len(C.names); C.names.append(name)
    if i and OPT["fine"] and name in ("tb",): C.P("s_nop 15\ns_nop 15")
    if i: C.P(f"v_writelane_b32 {C.vST}, s{90 + 2*((i-1)&1)}, {i-1}")
    C.P(f"{'s_memrealtime' if OPT['stamps'] == 1 else 's_memtime'} s[{90 + 2*(i&1)}:{91 + 2*(i&1)}]")

def stamp_flush(C):
    if not OPT["stamps"]: return
    P, S = C.P, C.S
    i = len(C.names)
    P(f"s_waitcnt lgkmcnt(0)\nv_writelane_b32 {C.vST}, s{90 + 2*((i-1)&1)}, {i-1}")
    P(f"s_lshl_b32 {S['t0']}, s2, 2\ns_add_u32 {S['t0']}, {S['t0']}, {S['w']}\ns_lshl_b32 {S['t0']}, {S['t0']}, 8\ns_add_u32 {S['t0']}, {S['t0']}, {STAMP_OFF}")
    P(f"v_lshl_add_u32 v1, v0, 2, {S['t0']}\nbuffer_store_dword {C.vST}, v1, {C.sWS}, 0 offen")
    C.allnames[C.role] = list(C.names)

def spread(main, *streams):
    ev = []
    n = len(main)
    for si, (items, a, b) in enumerate(streams):
        k = len(items)
        for i, it in enumerate(items): ev.append((a * n + (i + 0.5) * (b - a) * n / max(k, 1), si, i, it))
    ev.sort(key=lambda e: (e[0], e[1], e[2]))
    wt = lambda it: (it.n if isinstance(it, Lazy) else it.count("\n") + 1)
    total = sum(wt(e[3]) for e in ev)
    out = []; j = 0; done = 0
    for g, m in enumerate(main):
        out.append(m)
        load = m.count("\n")
        while j < len(ev) and (g == n - 1 or (ev[j][0] <= g + 1.0 and (load == 0 or load + wt(ev[j][3]) <= OPT["cap"]))):
            out.append(ev[j][3]); load += wt(ev[j][3]); j += 1
    return out

def adv(reg, step, wrap, start=0):
    return f"s_add_u32 {reg}, {reg}, {step}\ns_cmp_eq_u32 {reg}, {wrap}\ns_cselect_b32 {reg}, {start}, {reg}"

def schedule(items, pro, rate, nsteps):
    sched = {s: [] for s in range(-1, nsteps)}
    i = 0
    for s in range(-1, nsteps):
        cap = pro if s == -1 else rate
        n = 0
        while i < len(items) and items[i]["free"] <= s and (n < cap or items[i]["need"] - 2 <= s):
            sched[s].append(i); i += 1; n += 1
    assert i == len(items)
    return sched

class B2:
    def __init__(self, C):
        self.C = C; self.loaded = 0; self.moved = 0; self.safe = 0
        rel = REL[C.role]
        self.pend = sorted((rel[i], i) for i in range(20) if i != XCH)
        self.free = []; self.ch = {}
        self.xchunk = XCH
    def release(self, step):
        while self.pend and self.pend[0][0] <= step: self.free.append(self.pend.pop(0)[1])
    def lgkm(self):
        for t in range(self.safe, self.moved): self.free.append(self.ch[t])
        self.safe = self.moved
    def win(self, t):
        b = self.ch[t] * 8192
        return (b >> 16, b & 0xffff)
    def dma(self, t):
        C = self.C; S = C.S
        if t < 28: sB = C.sB2; so = S['bo']; post = adv(so, 14336, S['bend'], S['bbeg'])
        else: sB = C.sBo; so = S['bo_s']; post = f"s_add_u32 {so}, {so}, {16 * 896}" if (t & 1) == 0 else adv(so, 12 * 896, S['send'], S['sbeg'])
        out = [f"s_add_u32 m0, {S['bm0']}, {self.ch[t] * 8192}"]
        for j in range(2):
            out.append(vop(C, ("b2", t), f"buffer_load_dwordx4 {C.vB[j]}, {sB}, {so} offen offset:{j*1024} lds"))
        pl = post.split("\n")
        out.append(pl[0])
        if len(pl) > 1: out.append("\n".join(pl[1:]))
        return out
    def tr(self, t, dst, regs=None):
        win, off = self.win(t); rb = (regs or self.C.rB)[win]
        o = []
        for f in range(2):
            o.append(f"ds_read_b64_tr_b16 {dst[f][0:2]}, {rb[f]} offset:{off}")
            o.append(f"ds_read_b64_tr_b16 {dst[f][2:4]}, {rb[f]} offset:{off + 512}")
        return o
    def next_load(self, lim=NT2):
        if self.loaded < lim and self.free:
            self.ch[self.loaded] = self.free.pop(0); self.loaded += 1
            return self.dma(self.loaded - 1)
        return None
    def loads(self, n, lim=NT2):
        o = []
        for _ in range(n):
            x = self.next_load(lim)
            if x is None: break
            o.extend(x)
        return o
    def moves(self, upto, n=99):
        o = []
        k = min(upto, NREG, self.moved + n)
        if k > self.moved:
            o.append(Lazy(lambda k=k: self.C.vm.wait(lambda q: q == ("b2", k - 1))))
        while self.moved < k:
            o.extend(self.tr(self.moved, self.C.breg[self.moved])); self.moved += 1
        return o
    def drain(self, n, lim, lag=5):
        C = self.C
        while n > 0 and not (self.moved >= min(NREG, lim) and self.loaded >= lim):
            if self.moved < min(NREG, self.loaded - lag): emit(C, self.moves(self.loaded - lag, 2))
            x = self.next_load(lim)
            if x is not None:
                emit(C, x); n -= 1
            else:
                if self.safe == self.moved: emit(C, self.moves(self.loaded, 3))
                C.P("s_waitcnt lgkmcnt(0)"); self.lgkm()

def p2_setup(C):
    P, S, t, lane, w = C.P, C.S, C.t, C.lane, C.S['w']
    P(f"s_and_b32 {S['t0']}, s2, 7\ns_lshl_b32 {S['t0']}, {S['t0']}, 2\ns_bfe_u32 {S['t1']}, s2, 0x20003\ns_add_u32 {S['T']}, {S['t0']}, {S['t1']}\ns_lshr_b32 {S['cb2']}, s2, 5")
    if OPT["rot2"]:
        G = OPT["rot2"]
        tab = sum((((c % G) * 28 // G) // 2) << (4 * c) for c in range(8))
        P(f"s_lshl_b32 {S['t0']}, {S['cb2']}, 2\ns_lshr_b32 {S['t0']}, {tab}, {S['t0']}\ns_and_b32 {S['t0']}, {S['t0']}, 15\ns_lshl_b32 {S['t0']}, {S['t0']}, 1")
        P(f"s_mul_i32 {S['t1']}, {S['t1']}, 7\ns_add_u32 {S['t0']}, {S['t0']}, {S['t1']}")
        P(f"s_sub_u32 {S['t1']}, {S['t0']}, 28\ns_cmp_ge_u32 {S['t0']}, 28\ns_cselect_b32 {S['t0']}, {S['t1']}, {S['t0']}")
    else:
        P(f"s_mov_b32 {S['t0']}, 0")
    P(f"s_mul_i32 {S['bbeg']}, {w}, {28*14336}\ns_add_u32 {S['bend']}, {S['bbeg']}, {28*14336}\ns_mul_i32 {S['t1']}, {S['t0']}, 14336\ns_add_u32 {S['bo']}, {S['bbeg']}, {S['t1']}")
    P(f"s_mul_i32 {S['sbeg']}, {w}, {112*896}\ns_add_u32 {S['send']}, {S['sbeg']}, {112*896}\ns_and_b32 {S['t1']}, {S['T']}, {3 if OPT['rots'] else 0}\ns_mul_i32 {S['t2']}, {S['t1']}, {28*896}\ns_add_u32 {S['bo_s']}, {S['sbeg']}, {S['t2']}\ns_lshl_b32 {S['asb']}, {S['t1']}, 12")
    P(f"s_mul_i32 {S['t1']}, {S['T']}, {A2_KS}\ns_lshl_b32 {S['t2']}, {w}, 3\ns_add_u32 {S['t2']}, {S['t1']}, {S['t2']}\ns_lshl_b32 {S['t2']}, {S['t2']}, 11\ns_add_u32 {S['ao_s']}, {S['t2']}, {S['asb']}\ns_mov_b32 {S['asb']}, {S['t2']}")
    P(f"s_mul_i32 {S['t2']}, {w}, 28\ns_add_u32 {S['t1']}, {S['t1']}, {S['t2']}\ns_add_u32 {S['t1']}, {S['t1']}, 32\ns_lshl_b32 {S['abeg']}, {S['t1']}, 11\ns_add_u32 {S['aend']}, {S['abeg']}, {28*2048}")
    P(f"s_lshl_b32 {S['t0']}, {S['t0']}, 11\ns_add_u32 {S['ao']}, {S['abeg']}, {S['t0']}")
    P(f"s_and_b32 {S['t1']}, {w}, 1\ns_lshl_b32 {S['t1']}, {S['t1']}, 10\nv_lshl_add_u32 {C.vA[0]}, {lane}, 4, {S['t1']}\nv_xor_b32 {C.vA[1]}, 1024, {C.vA[0]}")
    P(f"v_lshrrev_b32 {t[0]}, 3, {lane}\nv_mul_u32_u24 {t[0]}, 896, {t[0]}\nv_bfe_u32 {t[1]}, {lane}, 4, 1\nv_lshlrev_b32 {t[1]}, 2, {t[1]}\nv_and_b32 {t[2]}, 7, {lane}\nv_xor_b32 {t[1]}, {t[1]}, {t[2]}")
    P(f"s_lshl_b32 {S['t1']}, {S['cb2']}, 7\nv_lshl_add_u32 {t[0]}, {t[1]}, 4, {t[0]}\nv_add_u32 {C.vB[0]}, {S['t1']}, {t[0]}\nv_add_u32 {C.vB[1]}, {7168 - 1024}, {C.vB[0]}")
    P(f"s_lshl_b32 {S['bm0']}, {w}, 11")
    P(f"s_cmp_lt_u32 s2, 224\ns_cselect_b32 {S['t0']}, {1792*896}, 0\ns_cselect_b32 {S['t1']}, {448*896}, 0")
    srd(P, C.sB2, C.ptr[10], C.ptr[11], S['t0'])
    srd(P, C.sBo, C.ptr[4], C.ptr[5], S['t1'])
    P(f"s_lshr_b32 {S['t1']}, {w}, 1\ns_lshl_b32 {S['t1']}, {S['t1']}, 6")
    P(f"v_bfe_u32 {t[0]}, {lane}, 2, 2\nv_lshrrev_b32 {t[1]}, 5, {lane}\nv_lshl_add_u32 {t[0]}, {t[1]}, 3, {t[0]}\nv_lshlrev_b32 {t[0]}, 7, {t[0]}")
    P(f"v_bfe_u32 {t[1]}, {lane}, 3, 1\nv_lshl_add_u32 {t[0]}, {t[1]}, 6, {t[0]}\nv_bfe_u32 {t[1]}, {lane}, 4, 1\nv_lshl_add_u32 {t[0]}, {t[1]}, 5, {t[0]}")
    P(f"v_and_b32 {t[1]}, 3, {lane}\nv_lshl_add_u32 {t[0]}, {t[1]}, 3, {t[0]}\nv_xor_b32 {t[0]}, {S['t1']}, {t[0]}")
    P(f"v_add_u32 {C.rB[0][0]}, {S['bm0']}, {t[0]}\nv_xor_b32 {C.rB[0][1]}, 64, {C.rB[0][0]}")
    for i in (1, 2): P(f"v_add_u32 {C.rB[i][0]}, {65536*i}, {C.rB[0][0]}\nv_add_u32 {C.rB[i][1]}, {65536*i}, {C.rB[0][1]}")
    P(f"s_lshr_b32 {S['t0']}, {S['T']}, 4\ns_lshl_b32 {S['t0']}, {S['t0']}, 2\ns_add_u32 {S['t0']}, {S['t0']}, {w}\ns_bfe_u32 {S['t1']}, {S['T']}, 0x30001\ns_lshl_b32 {S['t1']}, {S['t1']}, 3\ns_add_u32 {S['t0']}, {S['t0']}, {S['t1']}")
    P(f"s_lshl_b32 {S['t0']}, {S['t0']}, 7\ns_add_u32 {S['t0']}, {S['t0']}, {FLAG_OFF}\nv_and_b32 {t[0]}, 3, {lane}\nv_lshl_add_u32 {C.vF}, {t[0]}, 13, {S['t0']}")
    assert FLAG_OFF % 32768 == 0
    P(f"v_xor_b32 {t[0]}, {128 + 16384}, {C.vF}\nv_cmp_lt_u32 vcc, 3, {lane}\nv_cndmask_b32 {C.vF}, {C.vF}, {t[0]}, vcc")
    P(f"v_mov_b32 {t[0]}, {BIG}\nv_cmp_lt_u32 vcc, 5, {lane}\nv_cndmask_b32 {C.vF}, {C.vF}, {t[0]}, vcc")
    srd(P, C.sD, C.ptr[14], C.ptr[15], 256)
    P(f"v_mov_b32 {C.vZ}, 0")
    if OPT["pfm"] == 2:
        if C.role == "Q":
            P(f"s_sub_u32 {S['t0']}, s2, 224\ns_lshl_b32 {S['t0']}, {S['t0']}, 2\ns_add_u32 {S['t0']}, {S['t0']}, {w}\ns_sub_u32 {S['t1']}, {S['t0']}, 98\ns_cmp_lt_u32 {S['t0']}, 98\ns_cselect_b32 {S['t0']}, {S['t0']}, {S['t1']}")
            P(f"s_cselect_b32 {C.sP[0]}, {C.ptr[10]}, {C.ptr[4]}\ns_cselect_b32 {C.sP[1]}, {C.ptr[11]}, {C.ptr[5]}\ns_mov_b32 {C.sP[2]}, {448*896}\ns_cselect_b32 {C.sP[2]}, {1792*896}, {C.sP[2]}\ns_mov_b32 {C.sP[3]}, 0x20000")
            P(f"s_cmp_lt_u32 s2, 224\ns_cselect_b32 {C.sP[2]}, 0, {C.sP[2]}\ns_cselect_b32 {S['t0']}, 0, {S['t0']}")
            P(f"s_lshl_b32 {S['t0']}, {S['t0']}, 14\nv_lshl_add_u32 {C.vPF}, {lane}, 8, {S['t0']}")
    elif OPT["pfm"]:
        P(f"s_lshl_b32 {S['t0']}, s2, 2\ns_add_u32 {S['t0']}, {S['t0']}, {w}\ns_sub_u32 {S['t1']}, {S['t0']}, 784\ns_cmp_lt_u32 {S['t0']}, 784\ns_cselect_b32 {S['t0']}, {S['t0']}, {S['t1']}")
        P(f"s_cselect_b32 {C.sP[0]}, {C.ptr[10]}, {C.ptr[4]}\ns_cselect_b32 {C.sP[1]}, {C.ptr[11]}, {C.ptr[5]}\ns_mov_b32 {C.sP[2]}, {448*896}\ns_cselect_b32 {C.sP[2]}, {1792*896}, {C.sP[2]}\ns_mov_b32 {C.sP[3]}, 0x20000")
        P(f"s_lshl_b32 {S['t0']}, {S['t0']}, 11\nv_lshl_add_u32 {C.vPF}, {lane}, 5, {S['t0']}")

def run_loop(C, emit_item, sched, reads, mfmas, b2, early, estart, nsteps=14, hook=None, nonce_at=6, rate2=8):
    P, S, vm = C.P, C.S, C.vm
    if OPT["pfm"] == 1:
        vm.issue(("pf", 0)); P(f"buffer_load_dword v2, {C.vPF}, {C.sP}, 0 offen")
    if OPT["pfm"] == 2 and C.role == "Q" and OPT["pfs"] < 0:
        for j in range(2): vm.issue(("pf", 0)); P(f"buffer_load_dword v2, {C.vPF}, {C.sP}, 0 offen offset:{128*j}")
    P(vm.wait(lambda q: q[0] == "d" and q[1] <= 0) + " lgkmcnt(0)")
    P("s_barrier")
    stamp(C, "d0")
    P.ext(reads(0))
    hist = {}
    for s in range(nsteps):
        if s + 1 < nsteps: P(vm.wait(lambda q: q[0] == "d" and q[1] <= s + 1) + " lgkmcnt(0)")
        else: P("s_waitcnt lgkmcnt(0)")
        P("s_barrier")
        if s in (1, 2, 4, 7, 10, 13): stamp(C, f"s{s}")
        m = mfmas(s)
        rd = reads(s + 1) if s + 1 < nsteps else []
        dm = []; C.m0 = None
        for i in sched[s]: dm.extend(emit_item(i))
        if OPT["pfm"] == 2 and C.role == "Q" and s == OPT["pfs"]:
            dm = [vop(C, ("pf", 0), f"buffer_load_dword v2, {C.vPF}, {C.sP}, 0 offen offset:{128*j}") for j in range(2)] + dm
        if s == nonce_at: dm.insert(0, vop(C, ("nonce", 0), f"buffer_load_dword {C.vN}, {C.vZ}, {C.sD}, 0 offen sc1"))
        mv = []
        b2.lgkm(); b2.release(s)
        if s >= estart:
            n = sum(1 for x in dm if isinstance(x, Lazy))
            k = max((rate2 + 1 - n) // 2, early) if s >= OPT["b2start"] else early
            dm.extend(b2.loads(k, C.lim))
            mv = b2.moves(hist.get(s - OPT["mlag"], 0), 3)
        hist[s] = b2.loaded
        ex = hook(s) if hook else []
        emit(C, spread(m, (rd, 0, 0.8), (dm, 0, 0.95), (mv, 0.3, 0.9), (ex, 0.05, 0.95)))
    C.hist = hist
    stamp(C, "loopend")

def get_tag(C):
    P, S, role = C.P, C.S, C.role
    P(C.vm.wait(lambda q: q[0] == "nonce"))
    P(f"v_readfirstlane_b32 {S['tag']}, {C.vN}\ns_cmp_eq_u32 {S['tag']}, 0\ns_cbranch_scc1 TAGSL_{role}\nTAGOK_{role}:")
    C.slow.append(f"TAGSL_{role}:\ns_mov_b32 {S['t2']}, 0\nTAGLP_{role}:\nbuffer_load_dword {C.vN}, {C.vZ}, {C.sD}, 0 offen sc1\ns_waitcnt vmcnt(0)\nv_readfirstlane_b32 {S['tag']}, {C.vN}\ns_add_u32 {S['t2']}, {S['t2']}, 1\n"
                  f"s_cmp_ge_u32 {S['t2']}, {SPIN_MAX}\ns_cbranch_scc1 TAGOK_{role}\ns_cmp_eq_u32 {S['tag']}, 0\ns_cbranch_scc1 TAGLP_{role}\ns_branch TAGOK_{role}")

def flag_store(C):
    P, S, t = C.P, C.S, C.t
    P(f"s_lshl_b32 {S['t0']}, s2, 7\ns_add_u32 {S['t0']}, {S['t0']}, {FLAG_OFF}\ns_cmp_eq_u32 {S['w']}, 0\ns_cselect_b32 {S['t0']}, {S['t0']}, {BIG}")
    P(f"v_mov_b32 {t[5]}, {S['t0']}\nv_mov_b32 {t[6]}, {S['tag']}\ns_mov_b64 exec, 1\nbuffer_store_dword {t[6]}, {t[5]}, {C.sWS}, 0 offen sc1\ns_mov_b64 exec, -1")
    C.vm.issue(("flag", 0))

def poll_req(C): return vop(C, ("pl", 0), f"buffer_load_dword {C.vFL}, {C.vF}, {C.sWS}, 0 offen sc1")
def poll_check(C, label, mask, first=True):
    P, S = C.P, C.S
    loop = (f"s_mov_b32 {S['t2']}, 0\n{label}:\nbuffer_load_dword {C.vFL}, {C.vF}, {C.sWS}, 0 offen sc1\ns_waitcnt vmcnt(0)\nv_cmp_eq_u32 vcc, {S['tag']}, {C.vFL}\ns_add_u32 {S['t2']}, {S['t2']}, 1\n"
            f"s_cmp_ge_u32 {S['t2']}, {SPIN_MAX}\ns_cbranch_scc1 {label}_X\ns_and_b32 {S['t0']}, vcc_lo, {mask}\ns_cmp_lg_u32 {S['t0']}, {mask}\ns_cbranch_scc1 {label}")
    if OPT["slp"]: loop = loop.replace(f"{label}:\nbuffer_load", f"s_branch {label}_F\n{label}:\ns_sleep {OPT['slp']}\n{label}_F:\nbuffer_load") if not first else loop.replace(f"{label}:\nbuffer_load", f"{label}:\ns_sleep {OPT['slp']}\nbuffer_load")
    if first:
        P(C.vm.wait(lambda q: q[0] == "pl"))
        P(f"v_cmp_eq_u32 vcc, {S['tag']}, {C.vFL}\ns_and_b32 {S['t0']}, vcc_lo, {mask}\ns_cmp_lg_u32 {S['t0']}, {mask}\ns_cbranch_scc1 {label}_S\n{label}_X:")
        C.slow.append(f"{label}_S:\n{loop}\ns_branch {label}_X")
    else:
        P(loop + f"\n{label}_X:")

def aload(C, tt):
    S = C.S
    if tt < 28:
        so = S['ao']; post = adv(so, 2048, S['aend'], S['abeg'])
        if tt == 27: post = f"s_mov_b32 {S['abeg']}, {S['asb']}\ns_add_u32 {S['aend']}, {S['asb']}, {8*2048}"
        return [vop(C, ("a", tt), f"buffer_load_dwordx4 {C.aring[tt % C.NA][j]}, {C.vA[j]}, {C.sWS}, {so} offen sc1" + ("\n" + post if j else "")) for j in range(2)]
    so = S['ao_s']; post = adv(so, 4096, S['aend'], S['abeg'])
    va = C.vA[0]
    if tt == 31: post += "".join(f"\ns_add_u32 {S[r]}, {S[r]}, {S['xm0']}" for r in ("ao_s", "abeg", "aend"))
    return [vop(C, ("a", tt), f"buffer_load_dwordx4 {C.aring[tt % C.NA][j]}, {va}, {C.sWS}, {so} offen offset:{2048*j} sc1" + ("\n" + post if j else "")) for j in range(2)]

def phase2(C, b2, flag_at):
    P, S, vm, t, lane, w = C.P, C.S, C.vm, C.t, C.lane, C.S['w']
    role = C.role; LA = OPT["LA"]; NA = C.NA; aring = C.aring; bf = C.bf
    P("s_waitcnt lgkmcnt(0)"); b2.lgkm()
    lg = C.lg = Cnt("lgkmcnt", 15)
    va = Alloc("v", C.vbase, 256)
    accf = [[va(16, 4) for _ in range(2)] for _ in range(2)]
    accs = [va(16, 4) for _ in range(2)]
    xv = [va(2) for _ in range(4)]; kk = va(2); vO = va(); vL = va(); Rr = va(8, 4)
    rstd, k1 = kk[0], kk[1]
    vXd = va(); vXr = va(); vR = va()
    rP = [[va(), va()] for _ in range(3)]
    sO = C.sW
    n_, hf = t[3], t[4]
    su = []
    def U(s): su.extend(s.split("\n"))
    U(f"s_mov_b32 {C.sX[0]}, {C.ptr[0]}\ns_mov_b32 {C.sX[1]}, {C.ptr[1]}\ns_mov_b32 {C.sX[2]}, {XBYTES}")
    U(f"s_mov_b32 {sO[0]}, {C.ptr[12]}\ns_mov_b32 {sO[1]}, {C.ptr[13]}\ns_mov_b32 {sO[2]}, {XBYTES}")
    U(f"v_and_b32 {n_}, 31, {lane}\nv_lshrrev_b32 {hf}, 5, {lane}\nv_lshlrev_b32 {vL}, 4, {lane}")
    U(f"s_and_b32 {S['b1']}, {S['T']}, 15\ns_mul_i32 {S['b1']}, {S['b1']}, {64*1792}\ns_lshr_b32 {S['b2']}, {S['T']}, 4\ns_mul_i32 {S['b2']}, {S['b2']}, 896\ns_add_u32 {S['b1']}, {S['b1']}, {S['b2']}")
    U(f"s_lshl_b32 {S['b2']}, {S['cb2']}, 7\ns_add_u32 {S['b1']}, {S['b1']}, {S['b2']}")
    U(f"v_lshrrev_b32 {t[0]}, 3, {lane}\nv_and_b32 {t[1]}, 7, {lane}\nv_xor_b32 {t[1]}, {t[0]}, {t[1]}\nv_mul_u32_u24 {t[0]}, 1792, {t[0]}\nv_lshl_add_u32 {vXd}, {t[1]}, 4, {t[0]}")
    U(f"s_mul_i32 {S['kx']}, {w}, {16*1792}\ns_add_u32 {S['kx']}, {S['kx']}, {S['b1']}\ns_add_u32 {S['kw']}, {S['kx']}, {8*1792}")
    U(f"s_lshl_b32 {S['b2']}, {S['hh']}, 12\ns_add_u32 {S['b2']}, {S['b2']}, {b2.xchunk*8192}")
    U(f"v_lshlrev_b32 {t[0]}, 7, {n_}\nv_lshl_add_u32 {t[0]}, {hf}, 3, {t[0]}")
    U(f"s_lshl_b32 {S['wm0']}, {S['half']}, 2\nv_and_b32 {t[1]}, 7, {lane}\nv_xor_b32 {t[1]}, {S['wm0']}, {t[1]}\nv_lshl_add_u32 {t[0]}, {t[1]}, 4, {t[0]}\nv_add_u32 {vXr}, {S['b2']}, {t[0]}")
    U(f"s_mul_i32 {S['b2']}, {S['hh']}, {32*1792}\ns_add_u32 {S['b2']}, {S['b2']}, {S['b1']}\ns_lshl_b32 {S['wm0']}, {S['half']}, 6\ns_add_u32 {S['b2']}, {S['b2']}, {S['wm0']}")
    U(f"v_mul_u32_u24 {t[0]}, 1792, {n_}\nv_add_u32 {t[0]}, {S['b2']}, {t[0]}\nv_lshl_add_u32 {vO}, {hf}, 4, {t[0]}")
    U(f"s_lshl_b32 {S['b2']}, {S['T']}, 1\ns_add_u32 {S['b2']}, {S['b2']}, {S['hh']}\ns_lshl_b32 {S['b2']}, {S['b2']}, 7\ns_lshl_b32 {S['wm0']}, {w}, 14\ns_add_u32 {S['b2']}, {S['b2']}, {S['wm0']}\ns_add_u32 {S['b2']}, {S['b2']}, {RSTD_OFF}")
    U(f"v_lshl_add_u32 {vR}, {n_}, 2, {S['b2']}")
    for i in range(3):
        for j in range(2): U(f"v_xor_b32 {rP[i][j]}, 2048, {C.rB[i][j]}")
    U(f"s_lshl_b32 {S['xm0']}, {S['hh']}, 15\ns_sub_u32 {S['xm0']}, 16384, {S['xm0']}")
    NSU = 8
    pf_ = [accf[0][1], accf[1][0], accf[1][1]]
    F = accf[0][0]; Sv = accs[0]; Sp = accs[1]
    def fe_plain(a):
        o = [Lazy(lambda a=a: lg.wait(lambda q: q == ("fr", a)))]
        R_ = range(4*a, 4*a+4)
        o += [f"v_add_f32 {F[r]}, {F[r]}, {pf_[0][r]}" for r in R_] + [f"v_add_f32 {pf_[1][r]}, {pf_[1][r]}, {pf_[2][r]}" for r in R_]
        o += [f"v_add_f32 {F[r]}, {F[r]}, {pf_[1][r]}" for r in R_] + [f"v_mul_f32 {pf_[0][r]}, {F[r]}, {k1}" for r in R_]
        o += [f"v_exp_f32 {pf_[0][r]}, {pf_[0][r]}" for r in R_] + [f"v_mul_f32 {F[r]}, {F[r]}, {rstd}" for r in R_]
        o += [f"v_add_f32 {pf_[0][r]}, 1.0, {pf_[0][r]}" for r in R_] + [f"v_rcp_f32 {pf_[0][r]}, {pf_[0][r]}" for r in R_]
        for h in range(2): o += [f"v_lshlrev_b32 {pf_[1][4*a+2*h]}, 16, {xv[a][h]}", f"v_and_b32 {pf_[1][4*a+2*h+1]}, 0xffff0000, {xv[a][h]}"]
        o += [f"v_mul_f32 {F[r]}, {F[r]}, {pf_[0][r]}" for r in R_]
        return o
    def fe_pk(a):
        o = [Lazy(lambda a=a: lg.wait(lambda q: q == ("fr", a)))]
        R_ = range(4*a, 4*a+4); H = [slice(4*a, 4*a+2), slice(4*a+2, 4*a+4)]
        o += [f"v_pk_add_f32 {F[h]}, {F[h]}, {pf_[0][h]}" for h in H] + [f"v_pk_add_f32 {pf_[1][h]}, {pf_[1][h]}, {pf_[2][h]}" for h in H]
        o += [f"v_pk_add_f32 {F[h]}, {F[h]}, {pf_[1][h]}" for h in H] + [f"v_pk_mul_f32 {pf_[0][h]}, {F[h]}, {kk} op_sel:[0,1] op_sel_hi:[1,1]" for h in H]
        o += [f"v_exp_f32 {pf_[0][r]}, {pf_[0][r]}" for r in R_] + [f"v_pk_mul_f32 {F[h]}, {F[h]}, {kk} op_sel_hi:[1,0]" for h in H]
        o += [f"v_pk_add_f32 {pf_[0][h]}, {pf_[0][h]}, 1.0 op_sel_hi:[1,0]" for h in H] + [f"v_rcp_f32 {pf_[0][r]}, {pf_[0][r]}" for r in R_]
        for h in range(2): o += [f"v_lshlrev_b32 {pf_[1][4*a+2*h]}, 16, {xv[a][h]}", f"v_and_b32 {pf_[1][4*a+2*h+1]}, 0xffff0000, {xv[a][h]}"]
        o += [f"v_pk_mul_f32 {F[h]}, {F[h]}, {pf_[0][h]}" for h in H]
        return o
    NPL = OPT["npl"]
    fe1 = [x for a in range(NPL) for x in fe_plain(a)]
    fe2 = [x for a in range(NPL, 4) for x in fe_pk(a)]
    import copy
    sim = copy.copy(b2); sim.free = list(b2.free); sim.ch = dict(b2.ch)
    while sim.loaded < NT2: sim.ch[sim.loaded] = sim.free.pop(0); sim.loaded += 1
    busy = set(sim.ch[t_] for t_ in range(28, NT2)) | {XCH}
    pch = [c for c in range(20) if c not in busy][:8]
    wins = sorted(set(c >> 3 for c in pch))
    wad = {}; rad = {}
    for wn in wins:
        wad[wn] = va(); U(f"s_add_u32 {S['b2']}, {S['bm0']}, {65536*wn}\nv_add_u32 {wad[wn]}, {S['b2']}, {vL}")
    def slot(i, a):
        c = pch[2*i + (a >> 1)]
        return c >> 3, ((c * 8192) & 0xffff) + (a & 1) * 1024
    def raddr(q, wn):
        if (q, wn) not in rad:
            rad[q, wn] = va(); U(f"v_xor_b32 {rad[q, wn]}, {2048*q}, {wad[wn]}")
        return rad[q, wn]
    fw = [lop(C, ("fw", 0), f"ds_write_b128 {wad[slot(q-1, a)[0]]}, {accf[q>>1][q&1][4*a:4*a+4]} offset:{slot(q-1, a)[1]}") for q in (3, 2, 1) for a in range(4)]
    fr = []
    for a in range(4):
        for i in range(3): fr.append(lop(C, ("fr", a), f"ds_read_b128 {pf_[i][4*a:4*a+4]}, {raddr(i+1, slot(i, a)[0])} offset:{slot(i, a)[1]}"))
        fr.append(f"v_xor_b32 {t[0]}, {16*a}, {vXr}")
        fr.append(lop(C, ("fr", a), f"ds_read_b64 {xv[a]}, {t[0]}"))
    TPOLL = 28 - LA - 4
    TB = 31
    sw = [lop(C, ("sw", 0), f"ds_write_b128 {wad[slot(3, a)[0]]}, {Sp[4*a:4*a+4]} offset:{slot(3, a)[1]}") for a in range(4)]
    sr = [lop(C, ("sr", a), f"ds_read_b128 {Sp[4*a:4*a+4]}, {raddr(2, slot(3, a)[0])} offset:{slot(3, a)[1]}") for a in range(4)]
    sb = [[C.breg[0], C.breg[1]], [C.breg[2], C.breg[3]]]
    def s_tr(tt):
        o = []
        for j in range(2):
            tb = 28 + 2 * ((tt - 28) & 3) + j
            o += b2.tr(tb, sb[tt & 1][j], rP if tt >= 32 else None)
        return [lop(C, ("tr", tt), y) for y in o]
    for tt in range(NT2):
        nb = tt + 1 if tt + 1 < 28 else 35
        assert nb < b2.loaded
        P(vm.wait(lambda q: q == ("a", tt) or (q[0] == "b2" and q[1] <= nb) or (tt == flag_at and q[0] == "st") or (tt == TB and q[0] == "e")))
        if tt in ((0, 7, 14, 21, 28) if not OPT["fine"] else (0, 21, 22, 23, 26, 28, 29, 30, 31, 32, 33, 34, 35)): stamp(C, f"a{tt}")
        if tt == flag_at:
            P("s_barrier"); flag_store(C); stamp(C, "flag")
        if tt == TB:
            P(lg.wait(lambda q: q[0] == "fw")); P("s_barrier")
            if OPT["fine"]: stamp(C, "tb")
        if tt >= NREG: P(lg.wait(lambda q: q == ("tr", tt)))
        trs = []
        if NREG <= tt + 1 < 28: trs = [lop(C, ("tr", tt + 1), x) for x in b2.tr(tt + 1, bf[(tt + 1) & 1])]
        elif 28 <= tt + 1 < NT2: trs = s_tr(tt + 1)
        ld = []; va_ = []
        if tt < NSU:
            k = len(su); va_ = su[tt * k // NSU:(tt + 1) * k // NSU]
        if tt == TPOLL: ld.append(poll_req(C))
        if tt + LA == 28:
            def chk():
                l0 = len(P.l); poll_check(C, f"PS_{role}", 60); x = "\n".join(P.l[l0:]); del P.l[l0:]; return x
            ld.append(Lazy(chk))
            ld.append(vop(C, ("e", 0), f"buffer_load_dword {rstd}, {vR}, {C.sWS}, 0 offen sc1"))
        if tt + LA < NT2: ld.extend(aload(C, tt + LA))
        if tt >= 1 and tt % 2 == 1: ld.extend(b2.loads(1))
        if tt == NSU + 1:
            for j in range(2):
                ld.append(f"s_add_u32 m0, {S['bm0']}, {b2.xchunk*8192 + j*1024}")
                ld.append(vop(C, ("e", 0), f"buffer_load_dwordx4 {vXd}, {C.sX}, {S['kw'] if j else S['kx']} offen lds"))
        if 28 <= tt < TB: va_ = fw[(tt - 28) * 4:(tt - 27) * 4]
        if tt == TB: va_ = [f"v_mul_f32 {k1}, {f2h(-math.log2(math.e))}, {rstd}"] + fr[:10]
        if tt == TB + 1: va_ = fr[10:]
        if tt > TB + 1:
            k = len(fe1); i = tt - TB - 2; va_ = fe1[i * k // 3:(i + 1) * k // 3]
        if tt < 28:
            B = C.breg[tt] if tt < NREG else bf[tt & 1]
            m = [f"v_mfma_f32_32x32x16_bf16 {accf[f][p]}, {B[f]}, {aring[tt % NA][p]}, {accf[f][p] if tt else 0}" for f, p in ((1, 1), (1, 0), (0, 1), (0, 0))]
        else:
            order = ((1, 0), (0, 0), (1, 1), (0, 1)) if tt < NT2 - 1 else ((1, 0), (1, 1), (0, 0), (0, 1))
            m = [f"v_mfma_f32_32x32x16_bf16 {accs[f]}, {sb[tt & 1][j][f]}, {aring[tt % NA][j]}, {0 if (tt == 28 and j == 0) else accs[f]}" for f, j in order]
        emit(C, merge(m, (trs, 0, 2 if len(trs) <= 4 else 3), (ld, 0, 4), (va_, 0, 4)))
    assert b2.loaded == NT2 and all(b2.ch[t_] == sim.ch[t_] for t_ in range(NT2))
    stamp(C, "p2end")
    h = min(len(fe2), 14)
    emit(C, merge(fe2[:h], (sw, 0, h)) if h else sw)
    P(lg.wait(lambda q: q[0] == "sw")); P("s_barrier")
    if OPT["fine"]: stamp(C, "sb")
    emit(C, sr)
    emit(C, fe2[h:])
    if OPT["fine"]: stamp(C, "fedone")
    for a in range(4):
        P(lg.wait(lambda q: q == ("sr", a)))
        H = [slice(4*a, 4*a+2), slice(4*a+2, 4*a+4)]
        for h_ in H: P(f"v_pk_add_f32 {Sv[h_]}, {Sv[h_]}, {Sp[h_]}")
        for h_ in H: P(f"v_pk_fma_f32 {Sv[h_]}, {Sv[h_]}, {F[h_]}, {pf_[1][h_]}")
        P(f"v_cvt_pk_bf16_f32 {Rr[2*a]}, {Sv[4*a]}, {Sv[4*a+1]}\nv_cvt_pk_bf16_f32 {Rr[2*a+1]}, {Sv[4*a+2]}, {Sv[4*a+3]}")
        if a & 1:
            p = a >> 1
            P(f"v_permlane32_swap_b32 {Rr[4*p]}, {Rr[4*p+2]}\nv_permlane32_swap_b32 {Rr[4*p+1]}, {Rr[4*p+3]}")
            P(f"buffer_store_dwordx4 {Rr[4*p:4*p+4]}, {vO}, {sO}, 0 offen offset:{32*p}")
    if OPT["stamps"]:
        stamp(C, "stored"); P("s_waitcnt vmcnt(0)"); stamp(C, "end")
    if OPT["enc"] == "end": P("s_waitcnt vmcnt(0)\ns_memrealtime s[100:101]")
    if OPT["spin"] and role == ("F" if OPT["encwg"] < 128 else "Q"):
        P(f"s_cmp_lg_u32 s2, {OPT['encwg']}\ns_cbranch_scc1 SPN2\ns_waitcnt lgkmcnt(0)\ns_mov_b32 {S['t1']}, {OPT['spin']}")
        if OPT["enc"]: P(f"s_sub_u32 {S['t0']}, s100, s98\ns_lshl_b32 {S['t0']}, {S['t0']}, 2\ns_add_u32 {S['t1']}, {S['t1']}, {S['t0']}\ns_min_u32 {S['t1']}, {S['t1']}, 20000")
        P(f"SPN1:\ns_memrealtime {C.tm}\ns_waitcnt lgkmcnt(0)\ns_sub_u32 {S['t0']}, {C.tm[0]}, s98\ns_cmp_lt_u32 {S['t0']}, {S['t1']}\ns_cbranch_scc1 SPN1\nSPN2:")
    stamp_flush(C)
    P("s_endpgm")
    del C.lg
    return va.hi

def dma_item(C, need, m0expr, load, execmask=None):
    s = load
    if execmask: s = f"s_mov_b64 exec, {execmask}\n{s}\ns_mov_b64 exec, -1"
    o = []
    if C.m0 != m0expr: o.append(m0expr)
    C.m0 = m0expr
    return o + [vop(C, ("d", need), s)]

def slab_tables(C, wmul):
    P, S = C.P, C.S
    if OPT["com"]:
        P(f"s_bfe_u32 {S['t0']}, s2, 0x20006\ns_mul_i32 {S['t0']}, {S['t0']}, 3\ns_lshr_b32 {S['t0']}, {S['t0']}, 1\ns_add_u32 {S['t0']}, {S['t0']}, {S['rbl']}")
        P(f"s_sub_u32 {S['t1']}, {S['t0']}, 6\ns_cmp_ge_u32 {S['t0']}, 6\ns_cselect_b32 {S['t0']}, {S['t1']}, {S['t0']}\ns_lshl_b32 {S['t0']}, {S['t0']}, 7")
        for d in range(1, 7):
            P(f"s_add_u32 {C.kxs[d]}, {C.kxs[d-1] if d > 1 else S['t0']}, 128\ns_cmp_eq_u32 {C.kxs[d]}, 896\ns_cselect_b32 {C.kxs[d]}, 128, {C.kxs[d]}\ns_mul_i32 {C.kws[d]}, {C.kxs[d]}, {wmul}")
        return
    for d in range(1, 7):
        P(f"s_add_u32 {C.kxs[d]}, {C.kxs[d-1]}, 128\ns_cmp_eq_u32 {C.kxs[d]}, 896\ns_cselect_b32 {C.kxs[d]}, 0, {C.kxs[d]}\ns_mul_i32 {C.kws[d]}, {C.kxs[d]}, {wmul}")

class Role: pass

def ffn_head(C):
    P, S, lane, t = C.P, C.S, C.lane, C.t
    Rl = Role(); Rl.vm = C.vm = Cnt("vmcnt", 63); C.vm.issue(("pf", 0)); C.m0 = None
    va = Rl.va = Alloc("v", C.vbase, 256)
    NW, NX = 4, 3; WB, XB = 0, 65536
    xd = C.xd; wd = Rl.wd = [va() for _ in range(8)]
    w = S['w']
    P(f"s_mul_i32 {S['t0']}, {S['cb']}, 448\ns_and_b32 {S['t0']}, {S['t0']}, 0xffffff80\ns_mul_i32 {S['t1']}, {w}, {8*3584}\ns_add_u32 {S['t0']}, {S['t0']}, {S['t1']}")
    P(f"v_lshrrev_b32 {t[0]}, 5, {lane}\nv_bfe_u32 {t[1]}, {lane}, 1, 4\nv_xor_b32 {t[1]}, {t[0]}, {t[1]}\nv_xor_b32 {t[1]}, {S['b1']}, {t[1]}")
    P(f"v_mul_u32_u24 {t[0]}, 3584, {t[0]}\nv_lshl_add_u32 {t[0]}, {t[1]}, 5, {t[0]}\nv_and_b32 {t[1]}, 1, {lane}\nv_lshl_add_u32 {t[0]}, {t[1]}, 4, {t[0]}")
    P(f"v_add_u32 {wd[0]}, {S['t0']}, {t[0]}\nv_xor_b32 {t[3]}, 64, {wd[0]}")
    P(f"v_add_u32 {wd[1]}, {2*3584 - 1024}, {t[3]}\nv_add_u32 {wd[2]}, {4*3584 - 2048}, {wd[0]}\nv_add_u32 {wd[3]}, {6*3584 - 3072}, {t[3]}")
    P(f"s_mul_i32 {S['kw']}, {S['kx']}, {64*3584//128}")
    P(f"s_memrealtime {C.mT}\ns_or_b32 {S['t0']}, s2, {w}\ns_cmp_eq_u32 {S['t0']}, 0\ns_cselect_b32 {C.sD[2]}, 256, 0\ns_mov_b32 {C.sD[3]}, 0x20000\nv_mov_b32 {t[0]}, 0")
    karg(C)
    P(f"s_or_b32 {S['t0']}, {C.mT[0]}, 1\nv_mov_b32 {t[1]}, {S['t0']}\ns_mov_b32 {C.sD[0]}, {C.ptr[14]}\ns_mov_b32 {C.sD[1]}, {C.ptr[15]}\nbuffer_store_dword {t[1]}, {t[0]}, {C.sD}, 0 offen sc1")
    C.vm.issue(("non", 0))
    srd(P, C.sW, C.ptr[8], C.ptr[9], 448 * 3584)
    items = []
    for d in range(7):
        for j in range(4): items.append(dict(k="x", d=d, j=j, need=2*d, free=(2*(d-NX)+1 if d >= NX else -1)))
        for s in (2*d, 2*d+1):
            for j in range(4): items.append(dict(k="w", s=s, j=j, need=s, free=(s-NW if s >= NW else -1)))
    def emit_item(i):
        it = items[i]; j = it["j"]
        if it["k"] == "x":
            return dma_item(C, it["need"], f"s_add_u32 m0, {S['xm0']}, {XB + (it['d'] % NX)*16384}",
                            f"buffer_load_dwordx4 {xd[j]}, {C.sX}, {C.kxs[it['d']]} offen offset:{j*1024}{NTX} lds")
        return dma_item(C, it["need"], f"s_add_u32 m0, {S['xm0']}, {WB + (it['s'] % NW)*16384}",
                        f"buffer_load_dwordx4 {wd[j + 4*(it['s']&1)]}, {C.sW}, {C.kws[it['s']>>1]} offen offset:{j*1024}{NTW} lds")
    Rl.sched = schedule(items, OPT["pro"], OPT["rate"], 14); Rl.emit_item = emit_item
    for i in Rl.sched[-1][:8]: emit(C, emit_item(i))
    for j in range(4): P(f"v_add_u32 {wd[4+j]}, {32*3584}, {wd[j]}")
    for i in Rl.sched[-1][8:OPT["first"]]: emit(C, emit_item(i))
    return Rl

def karg(C):
    P, S = C.P, C.S
    P("s_waitcnt lgkmcnt(0)")
    P(f"s_add_u32 {C.sX[0]}, {C.ptr[0]}, {S['t2']}\ns_addc_u32 {C.sX[1]}, {C.ptr[1]}, 0\ns_sub_u32 {C.sX[2]}, {XBYTES}, {S['t2']}\ns_mov_b32 {C.sX[3]}, 0x20000")

def ffn_body(C, Rl):
    P, S, lane, t = C.P, C.S, C.lane, C.t
    C.role = "F"; vm = C.vm = Rl.vm; C.lim = NT2 - OPT["late"]
    va = Rl.va; aa = Alloc("a", 0, C.abase)
    NW, NX = 4, 3; WB, XB = 0, 65536
    sWS = C.sWS; w = S['w']
    stamp(C, "iss")
    xr = [[va() for _ in range(2)] for _ in range(2)]
    wr_ = [va() for _ in range(7)]
    acc = [[va(4, 4) for _ in range(4)] for _ in range(7)]
    cs = [va(4, 4) for _ in range(7)]
    rs = [va(4, 4) for _ in range(2)]
    ones = aa(4)
    fb = [dict(x=[aa(4) for _ in range(4)], w=[aa(4) for _ in range(7)]) for _ in range(2)]
    srd(P, sWS, C.wsp[0], C.wsp[1], WS_REC)
    wr, wc = S['half'], S['hh']
    n_, g_ = va(), va()
    P(f"v_and_b32 {n_}, 15, {lane}\nv_lshrrev_b32 {g_}, 4, {lane}")
    P(f"s_lshl_b32 {S['t0']}, {wr}, 13\ns_lshl_b32 {S['t1']}, {wc}, 12\ns_add_u32 {S['t0']}, {S['t0']}, {S['t1']}\ns_add_u32 {S['t0']}, {S['t0']}, {XB}")
    P(f"v_lshrrev_b32 {t[0]}, 1, {n_}\nv_xor_b32 {t[0]}, {g_}, {t[0]}\nv_lshlrev_b32 {t[0]}, 4, {t[0]}\nv_lshl_add_u32 {t[0]}, {n_}, 7, {t[0]}")
    P(f"v_add_u32 {xr[0][0]}, {S['t0']}, {t[0]}\nv_xor_b32 {xr[0][1]}, 64, {xr[0][0]}\nv_xor_b32 {xr[1][0]}, 4096, {xr[0][0]}\nv_xor_b32 {xr[1][1]}, 4096, {xr[0][1]}")
    P(f"v_bfe_u32 {t[0]}, {lane}, 2, 2\nv_lshl_add_u32 {t[1]}, {g_}, 3, {t[0]}\nv_lshlrev_b32 {t[1]}, 9, {t[1]}\nv_and_b32 {t[2]}, 3, {lane}\nv_lshl_add_u32 {t[1]}, {t[2]}, 3, {t[1]}")
    P(f"v_bfe_u32 {t[0]}, {lane}, 2, 3")
    P(f"s_lshl_b32 {S['b1']}, {wr}, 2\ns_mul_i32 {S['b2']}, {wr}, -3")
    P(f"s_and_b32 {S['t0']}, {S['cb']}, 1\ns_lshl_b32 {S['t0']}, {S['t0']}, 1\ns_mul_i32 {S['t1']}, {wc}, 7\ns_add_u32 {S['t0']}, {S['t0']}, {S['t1']}")
    P(f"s_add_u32 {S['t1']}, {S['t0']}, {S['b2']}\ns_add_u32 {S['t0']}, {S['t0']}, {S['b1']}")
    for c in range(7):
        P(f"s_add_u32 {S['t2']}, {S['t0'] if c <= 2 else S['t1']}, {c}")
        P(f"v_xor_b32 {t[2]}, {S['t2']}, {t[0]}\nv_lshl_add_u32 {wr_[c]}, {t[2]}, 5, {t[1]}")
    P(f"v_mov_b32 {t[0]}, {ONES}")
    for i in range(4): P(f"v_accvgpr_write_b32 {ones[i]}, {t[0]}")
    b2 = B2(C)
    RSB = b2.xchunk * 8192; CSB = RSB + 1024
    xw = RSB & 0x30000; RSB -= xw; CSB -= xw
    a_rs, a_rs2, a_cs, a_cs2 = va(), va(), va(), va()
    st = [va(), va()]
    P(f"s_lshl_b32 {S['t0']}, {wr}, 8\ns_lshl_b32 {S['t1']}, {wc}, 7\ns_add_u32 {S['t0']}, {S['t0']}, {S['t1']}\ns_add_u32 {S['t0']}, {S['t0']}, {xw}")
    P(f"v_lshlrev_b32 {a_rs}, 2, {n_}\nv_add_u32 {a_rs}, {S['t0']}, {a_rs}\nv_xor_b32 {a_rs2}, 128, {a_rs}")
    P(f"s_lshl_b32 {S['t0']}, {wc}, 3\ns_add_u32 {S['t1']}, {S['t0']}, {S['b2']}\ns_add_u32 {S['t0']}, {S['t0']}, {S['b1']}")
    P(f"s_lshl_b32 {S['t0']}, {S['t0']}, 6\ns_add_u32 {S['t1']}, {S['t1']}, 4\ns_lshl_b32 {S['t1']}, {S['t1']}, 6")
    P(f"v_lshlrev_b32 {a_cs}, 4, {g_}\nv_add_u32 {a_cs}, {xw}, {a_cs}\nv_add_u32 {a_cs2}, {S['t1']}, {a_cs}\nv_add_u32 {a_cs}, {S['t0']}, {a_cs}")
    P(f"s_lshl_b32 {S['t0']}, {wc}, 10\nv_lshlrev_b32 {st[0]}, 4, {lane}\nv_add_u32 {st[0]}, {S['t0']}, {st[0]}\nv_xor_b32 {st[1]}, 1024, {st[0]}")
    P(f"s_lshl_b32 {S['t0']}, {S['e']}, 3\ns_add_u32 {S['t0']}, {S['t0']}, {S['rbl']}\ns_lshl_b32 {S['t0']}, {S['t0']}, 1\ns_add_u32 {S['t0']}, {S['t0']}, {wr}")
    P(f"s_mul_i32 {S['t0']}, {S['t0']}, {A2_KS}\ns_mul_i32 {S['t1']}, {S['cb']}, 14\ns_add_u32 {S['t0']}, {S['t0']}, {S['t1']}\ns_mul_i32 {S['t1']}, {wc}, 7\ns_add_u32 {S['t0']}, {S['t0']}, {S['t1']}\ns_add_u32 {S['t0']}, {S['t0']}, 32")
    P(f"s_add_u32 {S['b1']}, {S['b1']}, {S['t0']}\ns_add_u32 {S['b2']}, {S['b2']}, {S['t0']}\ns_lshl_b32 {S['b1']}, {S['b1']}, 11\ns_lshl_b32 {S['b2']}, {S['b2']}, 11")
    if OPT["xst"]:
        pca, pra, gca, gra, lca, lra = [va() for _ in range(6)]
        for m_, bit in ((C.mT, 1), (C.mU, 2), (C.mW, 4), (C.mH, 8)):
            P(f"v_and_b32 {t[0]}, {bit}, {lane}\nv_cmp_ne_u32 {m_}, 0, {t[0]}")
        P(f"s_lshl_b32 {S['t2']}, {S['e']}, 3\ns_add_u32 {S['t0']}, {S['t2']}, {S['cb']}\ns_lshl_b32 {S['t0']}, {S['t0']}, 14\ns_add_u32 {S['t0']}, {S['t0']}, {SCOL_OFF}")
        P(f"s_lshl_b32 {S['t1']}, {w}, 12\ns_add_u32 {S['t1']}, {S['t1']}, {S['t0']}\nv_lshl_add_u32 {gca}, {lane}, 3, {S['t1']}")
        P(f"s_lshl_b32 {S['t1']}, {wc}, 1\ns_add_u32 {S['t1']}, {S['t1']}, {wr}\ns_lshl_b32 {S['t1']}, {S['t1']}, 3\ns_add_u32 {S['t1']}, {S['t1']}, {S['rbl']}\ns_lshl_b32 {S['t1']}, {S['t1']}, 9\ns_add_u32 {S['t0']}, {S['t0']}, {S['t1']}")
        P(f"v_bfe_u32 {t[0]}, {lane}, 2, 2\nv_lshlrev_b32 {t[0]}, 4, {t[0]}\nv_lshl_add_u32 {t[0]}, {g_}, 2, {t[0]}\nv_and_b32 {t[1]}, 3, {lane}\nv_add_u32 {t[0]}, {t[0]}, {t[1]}\nv_lshl_add_u32 {pca}, {t[0]}, 3, {S['t0']}")
        P(f"s_add_u32 {S['t0']}, {S['t2']}, {S['rbl']}\ns_lshl_b32 {S['t0']}, {S['t0']}, 2\ns_add_u32 {S['t0']}, {S['t0']}, {w}\ns_lshl_b32 {S['t0']}, {S['t0']}, 11\ns_add_u32 {S['t0']}, {S['t0']}, {SROW_OFF}")
        P(f"v_and_b32 {t[0]}, 31, {lane}\nv_lshl_add_u32 {gra}, {t[0]}, 3, {S['t0']}\ns_lshl_b32 {S['t1']}, {S['cb']}, 8\nv_add_u32 {pra}, {S['t1']}, {gra}")
        P(f"v_mov_b32 {t[1]}, {BIG}\nv_cmp_lt_u32 vcc, 31, {lane}\nv_cndmask_b32 {pra}, {pra}, {t[1]}, vcc")
        P(f"s_lshl_b32 {S['t0']}, {w}, 8\ns_add_u32 {S['t0']}, {S['t0']}, {xw}\nv_lshl_add_u32 {lca}, {lane}, 2, {S['t0']}")
        P(f"s_lshl_b32 {S['t0']}, {w}, 7\ns_add_u32 {S['t0']}, {S['t0']}, {xw}\nv_lshl_add_u32 {lra}, {t[0]}, 2, {S['t0']}")
    p2_setup(C)
    slab_tables(C, 64*3584//128); C.m0 = None
    for i in Rl.sched[-1][OPT["first"]:]: emit(C, Rl.emit_item(i))
    def reads(s):
        b = fb[s & 1]
        xs = ((s >> 1) % NX) * 16384; ws = WB + (s % NW) * 16384
        X = [f"ds_read_b128 {b['x'][i]}, {xr[i>>1][s&1]} offset:{xs + (i&1)*2048}" for i in range(4)]
        W = []
        for c in range(7):
            W.append(f"ds_read_b64_tr_b16 {b['w'][c][0:2]}, {wr_[c]} offset:{ws}")
            W.append(f"ds_read_b64_tr_b16 {b['w'][c][2:4]}, {wr_[c]} offset:{ws + 2048}")
        return X + W
    def mfmas(s):
        b = fb[s & 1]; o = []
        def mm(d, a, bb): o.append(f"v_mfma_f32_16x16x32_bf16 {d}, {a}, {bb}, {d if s else 0}")
        if s < 2 or not OPT["xst"]:
            for i in range(2): mm(rs[i], ones, b['x'][i])
            for c in range(4): mm(cs[c], b['w'][c], ones)
        for c in range(7):
            for i in range(4): mm(acc[c][i], b['w'][c], b['x'][i])
        if s == 13 and not OPT["xst"]:
            wrs = [f"ds_write_b32 {a_rs}, {rs[i][0]} offset:{RSB + i*64}" for i in range(2)] + [f"ds_write_b128 {a_cs}, {cs[c]} offset:{CSB + c*64}" for c in range(4)]
            for k_, x in enumerate(wrs): o[14 + k_] += "\n" + x
        return o
    nm = [va(2), va(2)]
    NEG = f2h(-1.0/448)
    hook = None
    if OPT["xst"]:
        G = OPT["gat"]
        allcs = R("v", cs[0].i, 28); assert cs[6].i == cs[0].i + 24
        gc = [allcs[2*p:2*p+2] for p in range(7)]; gr = [allcs[14+2*p:16+2*p] for p in range(7)]
        gl = [f"buffer_load_dwordx2 {gc[p]}, {gca}, {sWS}, 0 offen offset:{512*p} sc1" for p in range(7)] + [f"buffer_load_dwordx2 {gr[p]}, {gra}, {sWS}, 0 offen offset:{256*p} sc1" for p in range(7)]
        bad = rs[0][0]
        chk = [f"v_xor_b32 {g[1]}, {S['tag']}, {g[1]}" for g in gc + gr]
        al = [g[1] for g in gc + gr]
        chk += [f"v_or_b32 {bad}, {al[0]}, {al[1]}"] + [f"v_or3_b32 {bad}, {bad}, {al[k]}, {al[k+1]}" for k in range(2, 14, 2)]
        def hook(s_):
            o = []
            if s_ == 2:
                def tg():
                    l0 = len(P.l); get_tag(C); x = "\n".join(P.l[l0:]); del P.l[l0:]; return x
                o.append(Lazy(tg, 4))
                for c in range(4):
                    o += [f"v_cndmask_b32 {cs[c][0]}, {cs[c][0]}, {cs[c][1]}, {C.mT}", f"v_cndmask_b32 {cs[c][2]}, {cs[c][2]}, {cs[c][3]}, {C.mT}", f"v_cndmask_b32 {cs[c][0]}, {cs[c][0]}, {cs[c][2]}, {C.mU}"]
            if s_ == 3:
                o += [f"v_cndmask_b32 {cs[0][0]}, {cs[0][0]}, {cs[1][0]}, {C.mW}", f"v_cndmask_b32 {cs[2][0]}, {cs[2][0]}, {cs[3][0]}, {C.mW}", f"v_cndmask_b32 {cs[0][0]}, {cs[0][0]}, {cs[2][0]}, {C.mH}",
                      f"v_mov_b32 {cs[0][1]}, {S['tag']}", vop(C, ("st1", 0), f"buffer_store_dwordx2 {cs[0][0:2]}, {pca}, {sWS}, 0 offen sc1"),
                      f"v_cmp_eq_u32 vcc, 1, {g_}", f"v_mov_b32 {rs[0][1]}, {S['tag']}", f"v_cndmask_b32 {rs[0][0]}, {rs[0][0]}, {rs[1][0]}, vcc",
                      vop(C, ("st1", 0), f"buffer_store_dwordx2 {rs[0][0:2]}, {pra}, {sWS}, 0 offen sc1")]
            k_ = OPT["gsp"]
            if G - k_ < s_ <= G:
                i_ = s_ - (G - k_ + 1); o += [vop(C, ("ga", 0), x) for x in gl[i_ * 14 // k_:(i_ + 1) * 14 // k_]]
            if s_ == G + 2:
                o.append(Lazy(lambda: vm.wait(lambda q: q[0] == "ga")))
                o += chk + [f"v_cmp_ne_u32 vcc, 0, {bad}", "s_cmp_lg_u64 vcc, 0\ns_cbranch_scc1 GA_S\nGA_X:"]
                C.slow.append(f"GA_S:\ns_mov_b32 {S['t2']}, 0\nGA_L:\n" + "\n".join(gl) + "\ns_waitcnt vmcnt(0)\n" + "\n".join(chk) +
                              f"\nv_cmp_ne_u32 vcc, 0, {bad}\ns_add_u32 {S['t2']}, {S['t2']}, 1\ns_cmp_ge_u32 {S['t2']}, {SPIN_MAX}\ns_cbranch_scc1 GA_X\ns_cmp_lg_u64 vcc, 0\ns_cbranch_scc1 GA_L\ns_branch GA_X")
            if s_ == G + 3:
                for g in (gc, gr):
                    o += [f"v_add_f32 {g[0][0]}, {g[0][0]}, {g[1][0]}", f"v_add_f32 {g[2][0]}, {g[2][0]}, {g[3][0]}", f"v_add_f32 {g[4][0]}, {g[4][0]}, {g[5][0]}",
                          f"v_add_f32 {g[0][0]}, {g[0][0]}, {g[2][0]}", f"v_add_f32 {g[4][0]}, {g[4][0]}, {g[6][0]}", f"v_add_f32 {g[0][0]}, {g[0][0]}, {g[4][0]}"]
                o += [f"v_mul_f32 {gr[0][0]}, {NEG}, {gr[0][0]}", f"ds_write_b32 {lca}, {gc[0][0]} offset:{CSB}", f"ds_write_b32 {lra}, {gr[0][0]} offset:{RSB}"]
            if s_ == G + 4:
                o += [f"ds_read_b32 {nm[0][i]}, {a_rs} offset:{RSB + 64*i}" for i in range(2)] + [f"ds_read_b32 {nm[1][i]}, {a_rs2} offset:{RSB + 64*i}" for i in range(2)]
                o += [f"ds_read_b128 {cs[c]}, {a_cs} offset:{CSB + c*64}" for c in range(4)] + [f"ds_read_b128 {cs[c]}, {a_cs2} offset:{CSB + (c-4)*64}" for c in range(4, 7)]
            return o
    run_loop(C, Rl.emit_item, Rl.sched, reads, mfmas, b2, OPT["fearly"], OPT["fstart"], hook=hook, nonce_at=0 if OPT["xst"] else 6, rate2=OPT["b2rate"])
    if not OPT["xst"]:
        P("s_waitcnt lgkmcnt(0)\ns_barrier"); b2.lgkm()
        P(f"ds_read_b32 {nm[1][0]}, {a_rs2} offset:{RSB}\nds_read_b32 {nm[1][1]}, {a_rs2} offset:{RSB+64}")
        for c in range(4, 7): P(f"ds_read_b128 {cs[c]}, {a_cs2} offset:{CSB + (c-4)*64}")
    if OPT["xst"] and OPT["gat"] + 4 == 13: P("s_waitcnt lgkmcnt(0)"); b2.lgkm()
    emit(C, b2.moves(C.hist[11]))
    if not OPT["xst"]: P(f"v_mul_f32 {nm[0][0]}, {NEG}, {rs[0][0]}\nv_mul_f32 {nm[0][1]}, {NEG}, {rs[1][0]}")
    Z = [va(4, 4) for _ in range(4)]
    units = [(c, 0) for c in range(4)] + [(c, 1) for c in range(4)] + [(c, pr) for c in range(4, 7) for pr in range(2)]
    if OPT["xst"]: units = [(c, pr) for c in range(7) for pr in range(2)]
    pend = None
    old = b2.loaded
    for ui, (c, pr) in enumerate(units):
        if ui == 4:
            P("s_waitcnt lgkmcnt(0)"); b2.lgkm()
            if not OPT["xst"]: P(f"v_mul_f32 {nm[1][0]}, {NEG}, {nm[1][0]}\nv_mul_f32 {nm[1][1]}, {NEG}, {nm[1][1]}")
        z = Z[ui % 4]
        for ii in range(2):
            a = acc[c][2*pr+ii]
            sel = "op_sel_hi:[1,0,1]" if ii == 0 else "op_sel:[0,1,0] op_sel_hi:[1,1,1]"
            P(f"v_pk_fma_f32 {a[0:2]}, {cs[c][0:2]}, {nm[pr]}, {a[0:2]} {sel}")
            P(f"v_pk_fma_f32 {a[2:4]}, {cs[c][2:4]}, {nm[pr]}, {a[2:4]} {sel}")
        if pend: P(pend); vm.issue(("st", 0))
        for ii in range(2):
            a = acc[c][2*pr+ii]
            P(f"v_cvt_pk_bf16_f32 {z[2*ii]}, {a[0]}, {a[1]}\nv_cvt_pk_bf16_f32 {z[2*ii+1]}, {a[2]}, {a[3]}")
        for q in range(4): P(f"v_pk_max_i16 {z[q]}, {z[q]}, 0")
        if OPT["fepi"] and ui % OPT["fepi"] == 0: emit(C, b2.loads(1, C.lim))
        pend = (f"s_add_u32 {S['t0']}, {S['b1'] if c <= 2 else S['b2']}, {c*2048}\n"
                f"v_permlane16_swap_b32 {z[0]}, {z[2]}\nv_permlane16_swap_b32 {z[1]}, {z[3]}\n"
                f"buffer_store_dwordx4 {z}, {st[pr]}, {sWS}, {S['t0']} offen sc1")
    P(pend); vm.issue(("st", 0))
    stamp(C, "epiend")
    emit(C, b2.moves(old))
    b2.drain(OPT["post"], C.lim)
    if not OPT["xst"]: get_tag(C)
    stamp(C, "tag")
    P(vm.wait(lambda q: q[0] == "st")); stamp(C, "ack"); P("s_barrier")
    flag_store(C)
    stamp(C, "flag")
    b2.drain(max(C.lim - b2.loaded - OPT["pr"], 0), C.lim)
    emit(C, [poll_req(C)])
    b2.drain(99, C.lim)
    stamp(C, "b2iss")
    poll_check(C, "PF_F", 3)
    stamp(C, "polled")
    for tt in range(OPT["LA"]): emit(C, aload(C, tt))
    return max(va.hi, phase2(C, b2, None))

XS = 18432
def qkv_head(C):
    P, S, lane, t = C.P, C.S, C.lane, C.t
    Rl = Role(); Rl.vm = C.vm = Cnt("vmcnt", 63); C.vm.issue(("pf", 0)); C.m0 = None
    va = Rl.va = Alloc("v", C.vbase, 256)
    NW, NX = 4, 3; XB, WB = 0, 3 * XS
    xd = C.xd; xh = va(); wd = [va() for _ in range(6)]
    w = S['w']; hp = S['cb']; mW, mH = C.mW, C.mH
    P(f"s_mul_i32 {S['t1']}, {w}, {32*1792}\ns_add_u32 {S['t1']}, {S['t1']}, {8*1792}\ns_cmp_eq_u32 {S['rbl']}, 0\ns_cselect_b32 {S['t1']}, {BIG}, {S['t1']}")
    P(f"v_subrev_u32 {xh}, {S['t1']}, {t[3]}")
    P(f"s_lshl_b32 {S['t1']}, {w}, 4\ns_mov_b64 {mH}, 0xffff\ns_lshl_b64 {mH}, {mH}, {S['t1']}")
    P(f"v_and_b32 {t[0]}, 2, {t[4]}\nv_add_u32 {t[0]}, {S['b1']}, {t[0]}\nv_sub_u32 {t[0]}, {t[5]}, {t[0]}\nv_and_b32 {t[0]}, 7, {t[0]}")
    P(f"v_cmp_ne_u32 {mW}, 7, {t[0]}\nv_mov_b32 {t[2]}, {BIG}")
    P(f"s_mul_i32 {S['t0']}, {hp}, 112\ns_mul_i32 {S['t1']}, {w}, {8*2688}\ns_add_u32 {S['t0']}, {S['t0']}, {S['t1']}")
    P(f"v_mul_u32_u24 {t[1]}, 2688, {t[4]}\nv_lshl_add_u32 {t[1]}, {t[0]}, 4, {t[1]}\nv_add_u32 {t[1]}, {S['t0']}, {t[1]}\nv_cndmask_b32 {wd[2]}, {t[2]}, {t[1]}, {mW}")
    P(f"v_add_u32 {wd[1]}, 128, {wd[2]}\nv_add_u32 {wd[0]}, 256, {wd[2]}")
    P(f"s_mul_i32 {S['kw']}, {S['kx']}, {64*2688//128}\ns_mul_i32 {S['wm0']}, {w}, 3072")
    karg(C)
    P(f"s_sub_u32 {C.sW[0]}, {C.ptr[2]}, 256\ns_subb_u32 {C.sW[1]}, {C.ptr[3]}, 0\ns_mov_b32 {C.sW[2]}, {448*2688 + 256}\ns_mov_b32 {C.sW[3]}, 0x20000")
    items = []
    for d in range(7):
        fr = (2*(d-NX)+1 if d >= NX else -1)
        for j in (0, 1, 2, 3, -1): items.append(dict(k="x", d=d, j=j, need=2*d, free=fr))
        for s in (2*d, 2*d+1):
            for p in range(3): items.append(dict(k="w", s=s, j=p, need=s, free=(s-NW if s >= NW else -1)))
    def emit_item(i):
        it = items[i]; j = it["j"]
        if it["k"] == "x":
            sb = XB + (it['d'] % NX) * XS
            if j < 0: return dma_item(C, it["need"], f"s_mov_b32 m0, {sb + 1024}", f"buffer_load_dwordx4 {xh}, {C.sX}, {C.kxs[it['d']]} offen{NTX} lds", mH)
            return dma_item(C, it["need"], f"s_add_u32 m0, {S['xm0']}, {sb + 2048}", f"buffer_load_dwordx4 {xd[j]}, {C.sX}, {C.kxs[it['d']]} offen offset:{j*1024}{NTX} lds")
        return dma_item(C, it["need"], f"s_add_u32 m0, {S['wm0']}, {WB + (it['s'] % NW)*12288}",
                        f"buffer_load_dwordx4 {wd[j + 3*(it['s']&1)]}, {C.sW}, {C.kws[it['s']>>1]} offen offset:{j*1024}{NTW} lds", mW if j == 1 else None)
    Rl.sched = schedule(items, OPT["pro"] * 11 // 12, OPT["rate"] - 1, 14); Rl.emit_item = emit_item
    for i in Rl.sched[-1][:8]: emit(C, emit_item(i))
    for j in range(3): P(f"v_add_u32 {wd[3+j]}, {32*2688}, {wd[j]}")
    for i in Rl.sched[-1][8:min(OPT["first"], 11)]: emit(C, emit_item(i))
    return Rl

def qkv_body(C, Rl):
    P, S, lane, t = C.P, C.S, C.lane, C.t
    C.role = "Q"; vm = C.vm = Rl.vm; C.lim = NT2 - OPT["late"]
    va = Rl.va; aa = Alloc("a", 0, C.abase)
    NW, NX = 4, 3; XB, WB = 0, 3 * XS
    sWS, mT = C.sWS, C.mT
    w = S['w']; hp = S['cb']; hh, half = S['hh'], S['half']
    stamp(C, "iss")
    xr = [va() for _ in range(2)]; xr0 = [va() for _ in range(2)]
    wr_ = [va() for _ in range(2)]
    acc = [[[va(4, 4) for _ in range(5)] for _ in range(2)] for _ in range(3)]
    dg = [va(4, 4) for _ in range(5)]
    cprev, ccur, cfirst = va(4, 4), va(4, 4), va(4, 4)
    mprev, mcur = va(2), va(2)
    fb = [dict(x=[aa(4) for _ in range(5)], w=[[aa(4) for _ in range(2)] for _ in range(3)]) for _ in range(2)]
    srd(P, sWS, C.wsp[0], C.wsp[1], WS_REC)
    n_, g_ = va(), va()
    P(f"v_and_b32 {n_}, 15, {lane}\nv_lshrrev_b32 {g_}, 4, {lane}")
    tmpcs = [va(4, 4) for _ in range(4)]
    c1, c0 = tmpcs[0], tmpcs[1]
    for i in range(4): P(f"v_mov_b32 {c1[i]}, {ONES}\nv_mov_b32 {c0[i]}, 0")
    P(f"v_and_b32 {t[0]}, 7, {lane}\nv_and_b32 {t[1]}, 2, {lane}\nv_bfe_u32 {t[2]}, {lane}, 3, 1\nv_lshl_add_u32 {t[1]}, {t[2]}, 2, {t[1]}")
    P(f"v_add_u32 {t[1]}, 7, {t[1]}\nv_and_b32 {t[1]}, 7, {t[1]}\nv_lshlrev_b32 {t[1]}, 4, {t[1]}\nv_lshl_add_u32 {t[0]}, {t[0]}, 7, {t[1]}")
    P(f"v_lshrrev_b32 {t[1]}, 3, {lane}\nv_mul_u32_u24 {t[1]}, 3072, {t[1]}\ns_mul_i32 {S['t0']}, {hh}, {2*12288}\ns_add_u32 {S['t0']}, {S['t0']}, {WB}")
    P(f"v_add3_u32 {t[0]}, {t[0]}, {t[1]}, {S['t0']}")
    P(f"ds_write_b128 {t[0]}, {c1} offset:1024")
    P(f"s_min_u32 {S['t0']}, {w}, 2\ns_mul_i32 {S['t0']}, {S['t0']}, {XS}\nv_lshlrev_b32 {t[1]}, 4, {lane}\nv_add_u32 {t[1]}, {S['t0']}, {t[1]}\nds_write_b128 {t[1]}, {c1} offset:{XB}")
    P(f"v_lshrrev_b32 {t[0]}, 1, {n_}\nv_xor_b32 {t[0]}, {g_}, {t[0]}\nv_lshlrev_b32 {t[0]}, 4, {t[0]}\nv_lshl_add_u32 {t[0]}, {n_}, 7, {t[0]}")
    P(f"s_lshl_b32 {S['t0']}, {half}, 13\nv_add_u32 {t[1]}, {S['t0']}, {t[0]}\nv_add_u32 {xr[0]}, {XB + 2048}, {t[1]}\nv_xor_b32 {xr[1]}, 64, {xr[0]}")
    P(f"v_cmp_gt_u32 vcc, 8, {n_}\nv_cndmask_b32 {xr0[0]}, {t[1]}, {t[0]}, vcc\nv_xor_b32 {xr0[1]}, 64, {xr0[0]}")
    P(f"v_bfe_u32 {t[0]}, {lane}, 2, 2\nv_mul_u32_u24 {t[1]}, 3072, {g_}\nv_lshl_add_u32 {t[0]}, {t[0]}, 7, {t[1]}\nv_add_u32 {t[0]}, {WB}, {t[0]}")
    P(f"v_bfe_u32 {t[1]}, {lane}, 3, 2\nv_lshlrev_b32 {t[1]}, 5, {t[1]}\nv_and_b32 {t[2]}, 3, {lane}")
    P(f"s_mul_i32 {S['t0']}, {hh}, 56\nv_lshl_add_u32 {t[3]}, {t[2]}, 3, {S['t0']}")
    P(f"v_add_u32 {t[4]}, {t[3]}, {t[1]}\nv_and_b32 {t[4]}, 127, {t[4]}\nv_add_u32 {wr_[0]}, {t[0]}, {t[4]}")
    P(f"s_lshl_b32 {S['t0']}, {hh}, 3\ns_sub_u32 {S['t0']}, 120, {S['t0']}\nv_mov_b32 {t[4]}, {S['t0']}\nv_add_u32 {t[3]}, 32, {t[3]}")
    P(f"v_cmp_eq_u32 vcc, 3, {t[2]}\nv_cndmask_b32 {t[3]}, {t[3]}, {t[4]}, vcc")
    P(f"v_add_u32 {t[4]}, {t[3]}, {t[1]}\nv_and_b32 {t[4]}, 127, {t[4]}\nv_add_u32 {wr_[1]}, {t[0]}, {t[4]}")
    P(f"v_lshlrev_b32 {t[0]}, 2, {g_}\nv_sub_u32 {t[0]}, {n_}, {t[0]}\nv_mov_b32 {t[1]}, {NINF}")
    P(f"s_or_b32 {S['t0']}, {S['rbl']}, {half}\ns_cmp_eq_u32 {S['t0']}, 0\ns_cselect_b32 {S['t0']}, {NINF}, 0")
    for r in range(4):
        P(f"v_subrev_u32 {t[2]}, {r}, {t[0]}")
        P(f"v_cmp_gt_i32 vcc, -8, {t[2]}\nv_cndmask_b32 {cprev[r]}, {t[1]}, {c0[0]}, vcc")
        P(f"v_cmp_gt_u32 vcc, 8, {t[2]}\nv_cndmask_b32 {ccur[r]}, {t[1]}, {c0[0]}, vcc")
        P(f"v_or_b32 {cfirst[r]}, {S['t0']}, {cprev[r]}")
    for (m, c) in ((mprev, cprev), (mcur, ccur)):
        for q in range(2):
            P(f"v_ashrrev_i32 {t[2]}, 31, {c[2*q]}\nv_ashrrev_i32 {t[3]}, 31, {c[2*q+1]}\nv_and_b32 {t[2]}, 0xffff, {t[2]}\nv_and_b32 {t[3]}, 0xffff0000, {t[3]}")
            P(f"v_or_b32 {t[2]}, {t[2]}, {t[3]}\nv_not_b32 {m[q]}, {t[2]}")
    a1, a2, av_w, av_r, sr, so = va(), va(), va(), va(), va(), va()
    VCH = [0, 1, 2, 8, 9]
    av_w2, av_r2 = va(), va()
    P(f"v_lshlrev_b32 {a1}, 2, {n_}\nv_bfe_u32 {a2}, {lane}, 2, 2\nv_lshl_add_u32 {a2}, {a2}, 6, {a1}\nv_add_u32 {a1}, 192, {a1}")
    P(f"v_and_b32 {t[2]}, 1, {lane}\nv_cmp_eq_u32 {mT}, 1, {t[2]}\nv_and_b32 {t[2]}, 2, {lane}\nv_cmp_eq_u32 {C.mU}, 2, {t[2]}")
    P(f"s_lshl_b32 {S['t1']}, {w}, 11\nv_mul_u32_u24 {av_w}, 80, {n_}\nv_lshl_add_u32 {av_w}, {g_}, 4, {av_w}\nv_add_u32 {av_w}, {S['t1']}, {av_w}")
    P(f"v_lshrrev_b32 {av_r}, 2, {lane}\nv_mul_u32_u24 {av_r}, 80, {av_r}\nv_and_b32 {t[4]}, 3, {lane}\nv_lshl_add_u32 {av_r}, {t[4]}, 4, {av_r}\nv_add_u32 {av_r}, {S['t1']}, {av_r}\nv_add_u32 {av_w2}, 65536, {av_w}\nv_add_u32 {av_r2}, 65536, {av_r}")
    P(f"v_lshlrev_b32 {so}, 4, {lane}")
    P(f"s_lshl_b32 {S['t1']}, {S['e']}, 3\ns_add_u32 {S['t1']}, {S['t1']}, {S['rbl']}\ns_lshl_b32 {S['t1']}, {S['t1']}, 1\ns_add_u32 {S['t1']}, {S['t1']}, {half}")
    P(f"s_lshl_b32 {S['t0']}, {hp}, 1\ns_add_u32 {S['t0']}, {S['t0']}, {hh}\ns_lshl_b32 {S['t0']}, {S['t0']}, 12\ns_mul_i32 {S['b1']}, {S['t1']}, {A2_KS*2048}\ns_add_u32 {S['b1']}, {S['b1']}, {S['t0']}")
    P(f"s_lshl_b32 {S['t1']}, {S['t1']}, 8\ns_lshl_b32 {S['t0']}, {hp}, 13\ns_add_u32 {S['t1']}, {S['t1']}, {S['t0']}\ns_add_u32 {S['t1']}, {S['t1']}, {RSTD_OFF}\ns_cmp_eq_u32 {hh}, 0\ns_cselect_b32 {S['t1']}, {S['t1']}, {BIG}")
    P(f"v_lshl_add_u32 {sr}, {lane}, 2, {S['t1']}")
    p2_setup(C)
    slab_tables(C, 64*2688//128); C.m0 = None
    for i in Rl.sched[-1][min(OPT["first"], 11):]: emit(C, Rl.emit_item(i))
    def reads(s):
        b = fb[s & 1]
        xs = ((s >> 1) % NX) * XS; ws = (s % NW) * 12288
        X = [f"ds_read_b128 {b['x'][0]}, {xr0[s&1]} offset:{xs}"] + [f"ds_read_b128 {b['x'][j]}, {xr[s&1]} offset:{xs + (j-1)*2048}" for j in range(1, 5)]
        W = []
        for p in (1, 2, 0):
            for tt in range(2):
                W.append(f"ds_read_b64_tr_b16 {b['w'][p][tt][0:2]}, {wr_[tt]} offset:{ws + p*1024}")
                W.append(f"ds_read_b64_tr_b16 {b['w'][p][tt][2:4]}, {wr_[tt]} offset:{ws + p*1024 + 512}")
        return X + W
    Q, K, V = acc
    ST = [va(2) for _ in range(5)]
    sq = [t[0], t[1], t[2], t[3], t[4]]
    csK = tmpcs[0:2]; csV = tmpcs[2:4]; csQ = [Q[0][0], Q[1][0]]
    def bc(d_, s_): return [f"v_mov_b32_dpp {d_[tt][r]}, {s_[tt][0][r]} row_newbcast:0 row_mask:0xf bank_mask:0xf" for tt in (1, 0) for r in range(4)]
    def mfmas(s):
        b = fb[s & 1]; o = []
        def mm(d, a, bb): o.append(f"v_mfma_f32_16x16x32_bf16 {d}, {a}, {bb}, {d if s else 0}")
        for j in range(5): mm(dg[j], b['x'][j], b['x'][j])
        for p in (1, 2, 0):
            for tt in (1, 0):
                for j in range(5): mm(acc[p][tt][j], b['w'][p][tt], b['x'][j])
        if s == 13:
            ex = []
            for j in range(5):
                ex += [f"v_cndmask_b32 {dg[j][0]}, {dg[j][0]}, {dg[j][1]}, {mT}", f"v_cndmask_b32 {dg[j][2]}, {dg[j][2]}, {dg[j][3]}, {mT}",
                       f"v_cndmask_b32 {dg[j][0]}, {dg[j][0]}, {dg[j][2]}, {C.mU}\nds_bpermute_b32 {sq[j]}, {a2}, {dg[j][0]}\nds_bpermute_b32 {ST[j][0]}, {a1}, {K[1][j][0]}"]
            ex += bc(csK, K)
            for k_, x in enumerate(ex): o[12 + k_] += "\n" + x
        return o
    b2 = B2(C)
    run_loop(C, Rl.emit_item, Rl.sched, reads, mfmas, b2, OPT["qearly"], OPT["qstart"], rate2=OPT["qrate"])
    P.ext(bc(csV, V))
    emit(C, b2.moves(C.hist[11]))
    P("s_waitcnt lgkmcnt(0)"); b2.lgkm()
    P(f"s_mov_b32 {S['t0']}, {f2h(1.0/448)}")
    for j in range(5): P(f"v_mul_f32 {ST[j][0]}, {f2h(-1.0/448)}, {ST[j][0]}")
    for j in range(5): P(f"v_mul_f32 {ST[j][1]}, {ST[j][0]}, {ST[j][0]}")
    for j in range(5): P(f"v_fma_f32 {ST[j][1]}, {sq[j]}, {S['t0']}, -{ST[j][1]}")
    for j in range(5): P(f"v_max_f32 {ST[j][1]}, 0, {ST[j][1]}")
    for j in range(5): P(f"v_add_f32 {ST[j][1]}, {f2h(1e-5)}, {ST[j][1]}")
    for j in range(5): P(f"v_rsq_f32 {ST[j][1]}, {ST[j][1]}")
    P.ext(bc(csQ, Q))
    LO = "op_sel_hi:[1,0,1]"; HI = "op_sel:[0,1] op_sel_hi:[1,1]"
    def correct(A_, cs_, j, scale, dst):
        o = []
        for tt in range(2):
            a = A_[tt][j]
            o.append(f"v_pk_fma_f32 {a[0:2]}, {cs_[tt][0:2]}, {ST[j]}, {a[0:2]} {LO}")
            o.append(f"v_pk_fma_f32 {a[2:4]}, {cs_[tt][2:4]}, {ST[j]}, {a[2:4]} {LO}")
        if scale:
            for tt in range(2):
                a = A_[tt][j]
                o.append(f"v_pk_mul_f32 {a[0:2]}, {a[0:2]}, {ST[j]} {HI}")
                o.append(f"v_pk_mul_f32 {a[2:4]}, {a[2:4]}, {ST[j]} {HI}")
        for tt in range(2):
            a = A_[tt][j]
            o.append(f"v_cvt_pk_bf16_f32 {dst[2*tt]}, {a[0]}, {a[1]}")
            o.append(f"v_cvt_pk_bf16_f32 {dst[2*tt+1]}, {a[2]}, {a[3]}")
        return o
    def more(n): return b2.loads(n, C.lim)
    seq = []
    for j in range(5): seq.extend(correct(V, csV, j, True, V[0][j]))
    emit(C, merge(seq, (more(OPT["qe"]), 0, len(seq))))
    for j in range(5): P(f"ds_write_b128 {av_w2 if VCH[j] >= 8 else av_w}, {V[0][j]} offset:{(VCH[j]*8192) & 0xffff}")
    seq = []
    l0 = b2.loaded
    for j in range(5): seq.extend(correct(K, csK, j, True, K[0][j]))
    emit(C, merge(seq, (more(OPT["qe"]), 0, len(seq))))
    emit(C, b2.moves(l0))
    Vt = [R("a", C.abase - 20, 10), R("a", C.abase - 10, 10)]
    P("s_waitcnt lgkmcnt(0)"); b2.lgkm()
    for tt in range(2):
        for j in range(5): P(f"ds_read_b64_tr_b16 {Vt[tt][2*j:2*j+2]}, {av_r2 if VCH[j] >= 8 else av_r} offset:{((VCH[j]*8192) & 0xffff) + 8*tt}")
    seq = []
    for j in range(1, 5): seq.extend(correct(Q, csQ, j, False, Q[0][j]))
    emit(C, merge(seq, (more(OPT["qe"] - 1), 0, len(seq))))
    S0 = {j: K[1][j] for j in range(1, 5)}; S1 = {j: V[1][j] for j in range(1, 5)}
    rg = [f"v_cmp_eq_u32 vcc, 1, {g_}", f"v_cndmask_b32 {t[5]}, {ST[1][1]}, {ST[2][1]}, vcc", f"v_cmp_eq_u32 vcc, 2, {g_}", f"v_cndmask_b32 {t[5]}, {t[5]}, {ST[3][1]}, vcc",
          f"v_cmp_eq_u32 vcc, 3, {g_}", f"v_cndmask_b32 {t[5]}, {t[5]}, {ST[4][1]}, vcc", f"v_cmp_lt_u32 vcc, 31, {lane}"]
    seq = []
    for j in range(1, 5):
        seq.append(f"v_mfma_f32_16x16x32_bf16 {S0[j]}, {K[0][j-1]}, {Q[0][j]}, {cfirst if j == 1 else cprev}")
        seq.append(f"v_mfma_f32_16x16x32_bf16 {S1[j]}, {K[0][j]}, {Q[0][j]}, {ccur}")
    P.ext(merge(seq, (rg, 0, 8)))
    get_tag(C)
    P("s_waitcnt lgkmcnt(0)"); b2.lgkm(); b2.release(20)
    cq = f2h(28 ** -0.5 * math.log2(math.e))
    def softmax(a, b, tm):
        o = []
        X, Y = S0[a], S0[b]
        c, m1, m2 = tm[0], tm[1], tm[2]
        o.append(f"v_cndmask_b32 {c}, {ST[a][1]}, {ST[b][1]}, vcc")
        for r in range(4): o.append(f"v_max_f32 {X[r]}, {X[r]}, {S1[a][r]}")
        for r in range(4): o.append(f"v_max_f32 {Y[r]}, {Y[r]}, {S1[b][r]}")
        o.append(f"v_mul_f32 {c}, {cq}, {c}")
        for r in range(4): o.append(f"v_permlane32_swap_b32 {X[r]}, {Y[r]}")
        for r in range(4): o.append(f"v_max_f32 {X[r]}, {X[r]}, {Y[r]}")
        o.append(f"v_max3_f32 {m1}, {X[0]}, {X[1]}, {X[2]}")
        o.append(f"v_max_f32 {m1}, {m1}, {X[3]}")
        o.append(f"v_mov_b32 {m2}, {m1}")
        o.append(f"v_permlane16_swap_b32 {m1}, {m2}")
        o.append(f"v_max_f32 {m1}, {m1}, {m2}")
        o.append(f"v_mul_f32 {m1}, {m1}, {c}")
        for r in range(4): o.append(f"v_fma_f32 {X[r]}, {X[r]}, {c}, -{m1}")
        for r in range(4): o.append(f"v_exp_f32 {X[r]}, {X[r]}")
        o.append(f"v_add_f32 {m1}, {X[0]}, {X[1]}")
        o.append(f"v_add_f32 {m2}, {X[2]}, {X[3]}")
        o.append(f"v_add_f32 {m1}, {m1}, {m2}")
        o.append(f"v_mov_b32 {m2}, {m1}")
        o.append(f"v_permlane16_swap_b32 {m1}, {m2}")
        o.append(f"v_add_f32 {m1}, {m1}, {m2}")
        o.append(f"v_rcp_f32 {m1}, {m1}")
        for r in range(4): o.append(f"v_mul_f32 {X[r]}, {X[r]}, {m1}")
        o.append(f"v_cvt_pk_bf16_f32 {X[0]}, {X[0]}, {X[1]}")
        o.append(f"v_cvt_pk_bf16_f32 {X[1]}, {X[2]}, {X[3]}")
        o.append(f"v_mov_b32 {Y[0]}, {X[0]}")
        o.append(f"v_mov_b32 {Y[1]}, {X[1]}")
        o.append(f"v_permlane32_swap_b32 {X[0]}, {Y[0]}")
        o.append(f"v_permlane32_swap_b32 {X[1]}, {Y[1]}")
        for Zr in (X, Y):
            o.append(f"v_and_b32 {Zr[2]}, {Zr[0]}, {mcur[0]}")
            o.append(f"v_and_b32 {Zr[3]}, {Zr[1]}, {mcur[1]}")
            o.append(f"v_and_b32 {Zr[0]}, {Zr[0]}, {mprev[0]}")
            o.append(f"v_and_b32 {Zr[1]}, {Zr[1]}, {mprev[1]}")
        return o
    seq = []
    for x_, y_ in zip(softmax(1, 2, dg[1]), softmax(3, 4, dg[2])): seq += [x_, y_]
    l0 = b2.loaded
    emit(C, merge(seq, (more(OPT["qsm"]) + [poll_req(C)], 0, len(seq) * 2 // 3)))
    emit(C, b2.moves(l0))
    P("s_waitcnt lgkmcnt(0)"); b2.lgkm()
    O = [{j: Q[1][j] for j in range(1, 5)}, {j: V[1][j] for j in range(1, 5)}]
    for j in range(1, 5):
        for tt in range(2):
            P(f"v_mfma_f32_16x16x32_bf16 {O[tt][j]}, {Vt[tt][2*(j-1):2*(j-1)+4]}, {S0[j]}, 0")
    Z = {(tt, pr): K[0][2*tt+pr] for tt in range(2) for pr in range(2)}
    for pr in range(2):
        for tt in range(2):
            z = Z[tt, pr]
            for ii in range(2):
                o_ = O[tt][1 + 2*pr + ii]
                P(f"v_cvt_pk_bf16_f32 {z[2*ii]}, {o_[0]}, {o_[1]}\nv_cvt_pk_bf16_f32 {z[2*ii+1]}, {o_[2]}, {o_[3]}")
    for pr in range(2):
        for tt in range(2):
            z = Z[tt, pr]
            P(f"v_permlane16_swap_b32 {z[0]}, {z[2]}\nv_permlane16_swap_b32 {z[1]}, {z[3]}")
    def stores():
        for pr in range(2):
            for tt in range(2):
                P(f"buffer_store_dwordx4 {Z[tt, pr]}, {so}, {sWS}, {S['b1']} offen offset:{tt*2048 + pr*1024} sc1"); vm.issue(("st", 0))
        P(f"buffer_store_dword {t[5]}, {sr}, {sWS}, 0 offen sc1"); vm.issue(("st", 0))
    stamp(C, "epiend")
    stores()
    P("s_cmp_ge_u32 s2, 224\ns_cbranch_scc1 Q_FIN")
    q0 = list(vm.q); l0_ = len(P.l)
    P("Q_FIN:\ns_waitcnt vmcnt(0)\ns_barrier"); flag_store(C); P("s_endpgm")
    C.slow.append("\n".join(P.l[l0_:])); del P.l[l0_:]
    vm.q = q0
    b2.drain(99, C.lim)
    poll_check(C, "PF_Q", 3)
    stamp(C, "polled")
    for tt in range(OPT["LA"]): emit(C, aload(C, tt))
    return max(va.hi, phase2(C, b2, 0))

def main():
    C = Ctx(); P = C.P = Prog()
    sa = Alloc("s", 3, 98); S = C.S = {}
    S['w'] = sa()
    C.ptr = sa(16, 4); C.wsp = sa(2); pc = sa(2)
    C.sX, C.sW, C.sWS, C.sB2, C.sBo, C.sD, C.sP = [sa(4) for _ in range(7)]
    C.mW, C.mH, C.mT, C.mU = sa(2), sa(2), sa(2), sa(2)
    C.tm = pc
    for n in "e rbl cb t0 t1 t2 kx kw wm0 xm0 b1 b2 hh half T cb2 bo bo_s bbeg bend ao ao_s abeg aend bm0 tag".split(): S[n] = sa()
    ns = 102
    assert sa.hi <= 90, sa.hi
    C.names = []; C.allnames = {}; C.slow = []
    S['sbeg'], S['send'], S['asb'] = R("s", 94), R("s", 95), R("s", 96)
    dead = [C.ptr[i] for i in (2, 3, 4, 5, 6, 7, 8, 9, 10, 11, 14, 15)]
    C.kxs = [S['kx']] + dead[:6]; C.kws = [S['kw']] + dead[6:]
    C.lane = lane = R("v", 0)
    va = Alloc("v", 3, 256)
    t = C.t = [va() for _ in range(7)]
    C.vA = [va(), va()]; C.vB = [va(), va()]; C.rB = [[va(), va()] for _ in range(3)]
    C.vF, C.vZ, C.vN, C.vPF, C.vST, C.vFL = [va() for _ in range(6)]
    C.xd = xd = [va() for _ in range(4)]
    C.vbase = va.p
    C.abase = 96
    C.breg = [[R("a", C.abase + 8*i, 4), R("a", C.abase + 8*i + 4, 4)] for i in range(NREG)]
    C.NA = OPT["LA"] + 1
    aa = Alloc("a", 0, C.abase - 20)
    C.aring = [[aa(4) for _ in range(2)] for _ in range(C.NA)]
    C.bf = [[aa(4) for _ in range(2)] for _ in range(2)]
    na = C.abase + 8 * NREG
    w = S['w']
    P(f"{NAME}_kernel:")
    stamp(C, "start")
    if OPT["spin"]: P("s_memrealtime s[98:99]")
    P("s_cmp_ge_u32 s2, 256\ns_cbranch_scc1 K_END")
    P(f"s_load_dwordx16 {C.ptr}, s[0:1], 0\ns_load_dwordx2 {C.wsp}, s[0:1], 64")
    P(f"s_getpc_b64 {pc}\ns_lshr_b32 {S['t0']}, s2, 3\ns_lshl_b32 {S['t0']}, {S['t0']}, 11\nv_lshl_add_u32 v1, v0, 3, {S['t0']}\nglobal_load_dword v2, v1, {pc}")
    P(f"v_lshrrev_b32 v1, 6, v0\nv_and_b32 v0, 63, v0\nv_readfirstlane_b32 {w}, v1")
    P(f"s_bfe_u32 {S['e']}, s2, 0x10002\ns_bfe_u32 {S['rbl']}, s2, 0x30003")
    P(f"s_and_b32 {S['t0']}, s2, 3\ns_lshl_b32 {S['t0']}, {S['t0']}, 1\ns_bfe_u32 {S['t1']}, s2, 0x10006\ns_add_u32 {S['cb']}, {S['t0']}, {S['t1']}")
    if OPT["rot"] and not OPT["com"]:
        P(f"s_lshr_b32 {S['t0']}, s2, 7\ns_lshl_b32 {S['t0']}, {S['t0']}, 1\ns_add_u32 {S['t0']}, {S['t0']}, {S['rbl']}\ns_add_u32 {S['t0']}, {S['t0']}, {S['cb']}")
        P(f"s_mul_i32 {S['t1']}, {S['t0']}, 37\ns_lshr_b32 {S['t1']}, {S['t1']}, 8\ns_mul_i32 {S['t1']}, {S['t1']}, 7\ns_sub_u32 {S['t0']}, {S['t0']}, {S['t1']}")
    else:
        P(f"s_mov_b32 {S['t0']}, 0")
    P(f"s_lshl_b32 {S['kx']}, {S['t0']}, 7\ns_mul_i32 {S['t2']}, {S['e']}, 896")
    P(f"s_lshl_b32 {S['t0']}, {S['rbl']}, 7\ns_lshl_b32 {S['t1']}, {w}, 5\ns_add_u32 {S['t0']}, {S['t0']}, {S['t1']}")
    P(f"v_lshrrev_b32 {t[4]}, 3, {lane}\nv_add_u32 {t[0]}, {S['t0']}, {t[4]}\nv_mul_u32_u24 {t[0]}, 1792, {t[0]}")
    P(f"v_lshrrev_b32 {t[1]}, 4, {lane}\nv_and_b32 {t[5]}, 7, {lane}\nv_xor_b32 {t[2]}, {t[1]}, {t[5]}")
    P(f"v_lshl_add_u32 {xd[0]}, {t[2]}, 4, {t[0]}")
    P(f"v_xor_b32 {t[3]}, 64, {xd[0]}\nv_add_u32 {xd[1]}, {8*1792 - 1024}, {t[3]}\nv_add_u32 {xd[2]}, {16*1792 - 2048}, {xd[0]}\nv_add_u32 {xd[3]}, {24*1792 - 3072}, {t[3]}")
    P(f"s_and_b32 {S['hh']}, {w}, 1\ns_lshr_b32 {S['half']}, {w}, 1\ns_lshl_b32 {S['b1']}, {S['hh']}, 2\ns_lshl_b32 {S['xm0']}, {w}, 12")
    P("s_cmp_lt_u32 s2, 128\ns_cbranch_scc1 H_FFN")
    rq = qkv_head(C)
    P("s_branch R_QKV\nH_FFN:")
    rf = ffn_head(C)
    nv1 = ffn_body(C, rf)
    P("R_QKV:"); C.names = C.names[:1]
    nv2 = qkv_body(C, rq)
    for x in C.slow: P(x)
    P("K_END:\ns_endpgm")
    l, npad = pad_hazards(P.l)
    out = [f"; generated by gen8.py {OPT} (hazard pads {npad})",
           f"; stamps {C.allnames}",
           "; @launch grid=(256,1,1) block=(256,1,1) lds=163840",
           '.amdgcn_target "amdgcn-amd-amdhsa--gfx950"\n.text',
           f".globl {NAME}_kernel\n.p2align 8\n.type {NAME}_kernel,@function"]
    out.extend(l)
    out.append(".fill 7168, 4, 0xbf800000")
    out.append(kernel_desc(f"{NAME}_kernel", max(nv1, nv2), na, ns))
    print("\n".join(out))
main()
```

```python
import sys, math, struct
from asmlib import *

NAME = "recurrent_scan__sliding_local_dilated__dense_activation_relu__prompt"
OPT = dict(rot=1, pro=20, rate=8, LA=4, RX=27, CK=32, R1=16, stamps=0, b2start=9, b2rate=4, qrate=8, mlag=3, TB=30, fe_per=22, pfm=2, rot2=2, post=4, spin=0, qe=3, pr=5, gsp=2, xst=1, gat=9, npl=1, fine=0, enc='', encwg=0,
           fearly=1, fstart=7, qearly=1, qstart=7, nreg=17, late=0, npre=4, pmv=12, pads=1, gck=2, fepi=0, qsm=5, ntx=0, ntw=0, first=8, com=0, pfs=0, slp=0, rots=1, ahead=2, slack=3, sp2=1, stfirst=1, rotm=7, rotk=1)
for a in sys.argv[1:]:
    k, v = a.split("="); assert k in OPT, k; OPT[k] = int(v) if k != "enc" else v

f2h = lambda x: hex(struct.unpack("<I", struct.pack("<f", x))[0])
NT2 = 36
A2_KS = 144
RSTD_OFF = 2048 * A2_KS * 32
FLAG_OFF = RSTD_OFF + 8 * 8192
SCOL_OFF = FLAG_OFF + 256 * 128
SROW_OFF = SCOL_OFF + 16 * 16384
XF_OFF = SROW_OFF + 16 * 16384
WS_USED = XF_OFF + 224 * 4 * 3072
STAMP_OFF = 16 << 20
WS_REC = (STAMP_OFF + (1 << 20)) if (OPT["stamps"] or OPT["spin"]) else WS_USED
XBYTES = 2048 * 896
NTX = " nt" if OPT["ntx"] else ""; NTW = " nt" if OPT["ntw"] else ""
ONES = "0x3f803f80"; NINF = "0xff800000"; BIG = "0x80000000"
NB = 22
NPRE = OPT["npre"]
assert OPT["late"] + NPRE >= 3 and NPRE % 2 == 0
REL = {"F": [12, 12, 13, 13, 10, 10, 11, 11, 13, 13, 9, 9, 11, 11] + [-1] * 6,
       "Q": [20, 20, 20, 9, 11, 11, 12, 12, 20, 20, 10, 11, 11, -1] + [-1] * 6}
XCH = 19
SPIN_MAX = 1 << 16

def srd(P, d, lo, hi, n):
    P(f"s_mov_b32 {d[0]}, {lo}\ns_mov_b32 {d[1]}, {hi}\ns_mov_b32 {d[2]}, {n}\ns_mov_b32 {d[3]}, 0x20000")

class Cnt:
    def __init__(self, name, mx): self.q = []; self.name = name; self.mx = mx
    def issue(self, tag): self.q.append(tag)
    def cnt(self, pred):
        last = -1
        for i, t in enumerate(self.q):
            if pred(t): last = i
        return min(len(self.q) - 1 - last, self.mx)
    def wait(self, pred): return f"s_waitcnt {self.name}({self.cnt(pred)})"

class Ctx: pass
class Lazy:
    def __init__(self, fn, ty="s"): self.fn = fn; self.ty = ty
def emit(C, seq):
    for x in seq: C.P(x.fn() if isinstance(x, Lazy) else x)
def vop(C, tag, text):
    def f():
        C.vm.issue(tag); return text
    return Lazy(f, types_of(text))
def lop(C, tag, text):
    def f():
        C.lg.issue(tag); return text
    return Lazy(f, types_of(text))

def stamp(C, name):
    if OPT["enc"] == name: C.P("s_memrealtime s[100:101]")
    if not OPT["stamps"]: return
    i = len(C.names); C.names.append(name)
    if i and OPT["fine"] == 1 and name in ("tb",): C.P("s_nop 15\ns_nop 15")
    if i: C.P(f"v_writelane_b32 {C.vST}, s{90 + 2*((i-1)&1)}, {i-1}")
    C.P(f"{'s_memrealtime' if OPT['stamps'] == 1 else 's_memtime'} s[{90 + 2*(i&1)}:{91 + 2*(i&1)}]")

def stamp_flush(C):
    if not OPT["stamps"]: return
    P, S = C.P, C.S
    i = len(C.names)
    P(f"s_waitcnt lgkmcnt(0)\nv_writelane_b32 {C.vST}, s{90 + 2*((i-1)&1)}, {i-1}")
    P(f"s_lshl_b32 {S['t0']}, s2, 2\ns_add_u32 {S['t0']}, {S['t0']}, {S['w']}\ns_lshl_b32 {S['t0']}, {S['t0']}, 8\ns_add_u32 {S['t0']}, {S['t0']}, {STAMP_OFF}")
    P(f"v_lshl_add_u32 v1, v0, 2, {S['t0']}\nbuffer_store_dword {C.vST}, v1, {C.sWS}, 0 offen")
    C.allnames[C.role] = list(C.names)

def itype(line):
    op = line.split()[0]
    if op.endswith(":"): return ""
    if op.startswith("ds_write"): return "W"
    if op.startswith("ds_"): return "t"
    if op.startswith(("buffer_", "global_")): return "m"
    if op.startswith(("v_exp", "v_rcp", "v_rsq", "v_permlane")): return "T"
    if op.startswith("v_"): return "v"
    return "s"
def types_of(it):
    if isinstance(it, Lazy): return it.ty
    return "".join(itype(x) for x in it.split("\n"))
def gap_end(ty):
    t = 4; prev = ""; pstart = 0
    for c in ty:
        if c == "s": t += 4
        elif c in "vT": t = max(t, 8) + (4 if c == "v" else 8)
        else:
            st = t
            if prev in ("v", "T"): st = t + 4
            elif prev in ("t", "m", "W") and (prev == "m") != (c == "m"): st = pstart + 4
            pstart = st; t = st + (8 if c != "W" else 24)
        prev = c
    return t
def spread(main, *streams, clk=16):
    n = len(main)
    qs = []
    for items, a, b in streams:
        k = len(items)
        qs.append([(a * n + (i + 0.5) * (b - a) * n / max(k, 1), it, types_of(it)) for i, it in enumerate(items)])
    out = []
    for g, m in enumerate(main):
        out.append(m)
        ty = "".join(itype(x) for x in m.split("\n")[1:])
        while True:
            cand = [q for q in qs if q and (q[0][0] <= g + OPT["ahead"] or g == n - 1)]
            last_m0 = isinstance(out[-1], str) and " m0," in out[-1].split("\n")[-1]
            fit = [q for q in cand if gap_end(ty + ("s" if last_m0 and q[0][2][:1] == "m" else "") + q[0][2]) <= clk]
            if not fit:
                fit = [q for q in cand if g == n - 1 or (ty == "" and q[0][0] <= g + 1) or q[0][0] <= g - OPT["slack"]]
                if not fit: break
            pr = lambda q: ({"t": 0, "m": 0, "W": 0, "s": 1}.get(q[0][2][:1], 2) if q[0][0] <= g + 1 else 3, q[0][0])
            q = min(fit, key=pr)
            out.append(q[0][1]); ty += q[0][2]; q.pop(0)
    return out

def adv(reg, step, wrap, start=0):
    return f"s_add_u32 {reg}, {reg}, {step}\ns_cmp_eq_u32 {reg}, {wrap}\ns_cselect_b32 {reg}, {start}, {reg}"

def schedule(items, pro, rate, nsteps):
    sched = {s: [] for s in range(-1, nsteps)}
    i = 0
    for s in range(-1, nsteps):
        cap = pro if s == -1 else rate
        n = 0
        while i < len(items) and items[i]["free"] <= s and (n < cap or items[i]["need"] - 2 <= s):
            sched[s].append(i); i += 1; n += 1
    assert i == len(items)
    return sched

class B2:
    def __init__(self, C):
        self.C = C; self.loaded = 0
        rel = REL[C.role]
        self.pend = sorted((rel[i], i) for i in range(20) if i != XCH)
        self.free = []; self.ch = {}
        self.xchunk = XCH
    def release(self, step):
        while self.pend and self.pend[0][0] <= step: self.free.append(self.pend.pop(0)[1])
    def lgkm(self): pass
    def moves(self, *a): return []
    def win(self, t):
        b = self.ch[t] * 8192
        return (b >> 16, b & 0xffff)
    def dma(self, t):
        C = self.C; S = C.S
        if t < 14: sB = C.sB2; so = S['bo']; post = f"s_add_u32 {so}, {so}, 14336" if (t & 1) == 0 else adv(so, 14336, S['bend'], S['bbeg'])
        else: sB = C.sBo; so = S['bo_s']; post = f"s_add_u32 {so}, {so}, {16 * 896}" if (t & 1) == 0 else adv(so, 12 * 896, S['send'], S['sbeg'])
        out = [f"s_add_u32 m0, {S['bm0']}, {self.ch[t] * 8192}"]
        for j in range(2):
            out.append(vop(C, ("b2", t), f"buffer_load_dwordx4 {C.vB[j]}, {sB}, {so} offen offset:{j*1024} lds"))
        pl = post.split("\n")
        out.append(pl[0])
        if len(pl) > 1: out.append("\n".join(pl[1:]))
        return out
    def tr(self, t, dst, regs):
        win, off = self.win(t); rb = regs[win]
        o = []
        for f in range(2):
            o.append(f"ds_read_b64_tr_b16 {dst[f][0:2]}, {rb[f]} offset:{off}")
            o.append(f"ds_read_b64_tr_b16 {dst[f][2:4]}, {rb[f]} offset:{off + 512}")
        return o
    def next_load(self, lim=NB):
        if self.loaded < lim and self.free:
            self.ch[self.loaded] = self.free.pop(0); self.loaded += 1
            return self.dma(self.loaded - 1)
        return None
    def loads(self, n, lim=NB):
        o = []
        for _ in range(n):
            x = self.next_load(lim)
            if x is None: break
            o.extend(x)
        return o
    def drain(self, n, lim):
        emit(self.C, self.loads(n, lim))

def p2_setup(C):
    P, S, t, lane, w = C.P, C.S, C.t, C.lane, C.S['w']
    P(f"s_bfe_u32 {S['t0']}, s2, 0x20001\ns_lshl_b32 {S['t0']}, {S['t0']}, 2\ns_bfe_u32 {S['ri']}, s2, 0x20003\ns_add_u32 {S['t0']}, {S['t0']}, {S['ri']}\ns_lshl_b32 {S['t0']}, {S['t0']}, 1")
    P(f"s_and_b32 {S['t2']}, s2, 1\ns_add_u32 {S['T']}, {S['t0']}, {S['t2']}\ns_lshr_b32 {S['cb2']}, s2, 5")
    G = max(OPT["rot2"], 1)
    tab = sum(((c % G) * 7 // G) << (4 * c) for c in range(8))
    P(f"s_lshl_b32 {S['t0']}, {S['cb2']}, 2\ns_lshr_b32 {S['t0']}, {tab}, {S['t0']}\ns_and_b32 {S['t0']}, {S['t0']}, 15\ns_lshl_b32 {S['t1']}, {S['ri']}, 1\ns_add_u32 {S['t0']}, {S['t0']}, {S['t1']}")
    P(f"s_sub_u32 {S['t1']}, {S['t0']}, 7\ns_cmp_ge_u32 {S['t0']}, 7\ns_cselect_b32 {S['rr']}, {S['t1']}, {S['t0']}")
    P(f"s_lshl_b32 {S['t2']}, {S['t2']}, 2\ns_add_u32 {S['t2']}, {S['t2']}, {w}")
    P(f"s_mul_i32 {S['bbeg']}, {S['t2']}, {14*14336}\ns_add_u32 {S['bend']}, {S['bbeg']}, {14*14336}\ns_mul_i32 {S['t1']}, {S['rr']}, {2*14336}\ns_add_u32 {S['bo']}, {S['bbeg']}, {S['t1']}")
    P(f"s_mul_i32 {S['sbeg']}, {w}, {112*896}\ns_add_u32 {S['send']}, {S['sbeg']}, {112*896}\ns_mul_i32 {S['t1']}, {S['ri']}, {28*896}\ns_add_u32 {S['bo_s']}, {S['sbeg']}, {S['t1']}")
    P(f"s_xor_b32 {S['t0']}, {S['T']}, 1\ns_mul_i32 {S['t0']}, {S['t0']}, {A2_KS}\ns_add_u32 {S['t0']}, {S['t0']}, 32\ns_lshl_b32 {S['t0']}, {S['t0']}, 1\ns_add_u32 {S['t0']}, {S['t0']}, {S['hh']}\ns_lshl_b32 {S['t0']}, {S['t0']}, 10")
    P(f"v_lshl_add_u32 {t[0]}, {lane}, 4, {S['t0']}\ns_mul_i32 {S['t1']}, {S['t2']}, {14*2048}\nv_add_u32 {C.vA[0]}, {S['t1']}, {t[0]}\ns_xor_b32 {S['t1']}, {S['t2']}, 1\ns_mul_i32 {S['t1']}, {S['t1']}, {14*2048}\nv_add_u32 {C.vA[1]}, {S['t1']}, {t[0]}")
    P(f"v_lshrrev_b32 {t[0]}, 3, {lane}\nv_mul_u32_u24 {t[0]}, 896, {t[0]}\nv_bfe_u32 {t[1]}, {lane}, 4, 1\nv_lshlrev_b32 {t[1]}, 2, {t[1]}\nv_and_b32 {t[2]}, 7, {lane}\nv_xor_b32 {t[1]}, {t[1]}, {t[2]}")
    P(f"s_lshl_b32 {S['t1']}, {S['cb2']}, 7\nv_lshl_add_u32 {t[0]}, {t[1]}, 4, {t[0]}\nv_add_u32 {C.vB[0]}, {S['t1']}, {t[0]}\nv_add_u32 {C.vB[1]}, {7168 - 1024}, {C.vB[0]}")
    P(f"s_lshl_b32 {S['bm0']}, {w}, 11")
    P(f"s_cmp_lt_u32 s2, 224\ns_cselect_b32 {S['t0']}, {1792*896}, 0\ns_cselect_b32 {S['t1']}, {448*896}, 0")
    srd(P, C.sB2, C.ptr[10], C.ptr[11], S['t0'])
    srd(P, C.sBo, C.ptr[4], C.ptr[5], S['t1'])
    P(f"s_lshl_b32 {S['t1']}, {S['half']}, 6")
    P(f"v_bfe_u32 {t[0]}, {lane}, 2, 2\nv_lshrrev_b32 {t[1]}, 5, {lane}\nv_lshl_add_u32 {t[0]}, {t[1]}, 3, {t[0]}\nv_lshlrev_b32 {t[0]}, 7, {t[0]}")
    P(f"v_bfe_u32 {t[1]}, {lane}, 3, 1\nv_lshl_add_u32 {t[0]}, {t[1]}, 6, {t[0]}\nv_bfe_u32 {t[1]}, {lane}, 4, 1\nv_lshl_add_u32 {t[0]}, {t[1]}, 5, {t[0]}")
    P(f"v_and_b32 {t[1]}, 3, {lane}\nv_lshl_add_u32 {t[0]}, {t[1]}, 3, {t[0]}\nv_xor_b32 {t[0]}, {S['t1']}, {t[0]}")
    P(f"v_add_u32 {C.rB[0][0]}, {S['bm0']}, {t[0]}\nv_xor_b32 {C.rB[0][1]}, 64, {C.rB[0][0]}")
    for i in (1, 2): P(f"v_add_u32 {C.rB[i][0]}, {65536*i}, {C.rB[0][0]}\nv_add_u32 {C.rB[i][1]}, {65536*i}, {C.rB[0][1]}")
    for i in range(3):
        for j in range(2): P(f"v_xor_b32 {C.rP[i][j]}, 2048, {C.rB[i][j]}")
    P(f"s_and_b32 {S['t0']}, {S['T']}, 15\ns_mul_i32 {S['t0']}, {S['t0']}, {64*1792}\ns_lshr_b32 {S['t1']}, {S['T']}, 4\ns_mul_i32 {S['t1']}, {S['t1']}, 896\ns_add_u32 {S['t0']}, {S['t0']}, {S['t1']}")
    P(f"s_lshl_b32 {S['t1']}, {S['cb2']}, 7\ns_add_u32 {S['tb']}, {S['t0']}, {S['t1']}\ns_mul_i32 {S['t0']}, {w}, {16*1792}\ns_add_u32 {S['t0']}, {S['t0']}, {S['tb']}")
    P(f"v_lshrrev_b32 {t[0]}, 3, {lane}\nv_and_b32 {t[1]}, 7, {lane}\nv_xor_b32 {t[1]}, {t[0]}, {t[1]}\nv_mul_u32_u24 {t[0]}, 1792, {t[0]}\nv_lshl_add_u32 {t[0]}, {t[1]}, 4, {t[0]}\nv_add_u32 {C.vXd}, {S['t0']}, {t[0]}")
    P(f"s_lshr_b32 {S['t0']}, {S['T']}, 4\ns_lshl_b32 {S['t0']}, {S['t0']}, 2\ns_bfe_u32 {S['t1']}, {S['T']}, 0x30001\ns_lshl_b32 {S['t1']}, {S['t1']}, 3\ns_add_u32 {S['t0']}, {S['t0']}, {S['t1']}")
    P(f"s_lshl_b32 {S['t0']}, {S['t0']}, 7\ns_add_u32 {S['t0']}, {S['t0']}, {FLAG_OFF}\nv_and_b32 {t[0]}, 1, {lane}\nv_lshl_add_u32 {C.vF}, {t[0]}, 13, {S['t0']}")
    P(f"s_lshr_b32 {S['t2']}, {S['t2']}, 1\ns_lshl_b32 {S['t2']}, {S['t2']}, 7\ns_lshl_b32 {S['t1']}, {w}, 7\ns_add_u32 {S['t1']}, {S['t1']}, 16384")
    P(f"v_mov_b32 {t[0]}, {S['t2']}\nv_mov_b32 {t[1]}, {S['t1']}\nv_cmp_lt_u32 vcc, 1, {lane}\nv_cndmask_b32 {t[0]}, {t[0]}, {t[1]}, vcc")
    P(f"v_xor_b32 {t[1]}, 128, {t[1]}\nv_cmp_lt_u32 vcc, 3, {lane}\nv_cndmask_b32 {t[0]}, {t[0]}, {t[1]}, vcc\nv_add_u32 {C.vF}, {C.vF}, {t[0]}")
    P(f"v_mov_b32 {t[0]}, {BIG}\nv_cmp_lt_u32 vcc, 5, {lane}\nv_cndmask_b32 {C.vF}, {C.vF}, {t[0]}, vcc")
    srd(P, C.sD, C.ptr[14], C.ptr[15], 256)
    P(f"v_mov_b32 {C.vZ}, 0")
    if OPT["pfm"] == 2 and C.role == "Q":
        P(f"s_sub_u32 {S['t0']}, s2, 224\ns_lshl_b32 {S['t0']}, {S['t0']}, 2\ns_add_u32 {S['t0']}, {S['t0']}, {w}\ns_sub_u32 {S['t1']}, {S['t0']}, 98\ns_cmp_lt_u32 {S['t0']}, 98\ns_cselect_b32 {S['t0']}, {S['t0']}, {S['t1']}")
        P(f"s_cselect_b32 {C.sP[0]}, {C.ptr[10]}, {C.ptr[4]}\ns_cselect_b32 {C.sP[1]}, {C.ptr[11]}, {C.ptr[5]}\ns_mov_b32 {C.sP[2]}, {448*896}\ns_cselect_b32 {C.sP[2]}, {1792*896}, {C.sP[2]}\ns_mov_b32 {C.sP[3]}, 0x20000")
        P(f"s_cmp_lt_u32 s2, 224\ns_cselect_b32 {C.sP[2]}, 0, {C.sP[2]}\ns_cselect_b32 {S['t0']}, 0, {S['t0']}")
        P(f"s_lshl_b32 {S['t0']}, {S['t0']}, 14\nv_lshl_add_u32 {C.vPF}, {lane}, 8, {S['t0']}")

def a_tables(C):
    S = C.S; o = [f"s_lshl_b32 {C.kxs[0]}, {S['rr']}, 12"]
    for d in range(1, 7): o += [f"s_add_u32 {C.kxs[d]}, {C.kxs[d-1]}, 4096", f"s_cmp_eq_u32 {C.kxs[d]}, {7*4096}\ns_cselect_b32 {C.kxs[d]}, 0, {C.kxs[d]}"]
    o.append(f"s_lshl_b32 {C.kws[1]}, {S['ri']}, 12")
    for d in range(1, 4): o += [f"s_add_u32 {C.kws[1+d]}, {C.kws[d]}, 4096", f"s_and_b32 {C.kws[1+d]}, {C.kws[1+d]}, 0x3fff"]
    return o

def run_loop(C, emit_item, sched, reads, mfmas, b2, early, estart, nsteps=14, hook=None, nonce_at=6, rate2=8):
    P, S, vm = C.P, C.S, C.vm
    if OPT["pfm"] == 2 and C.role == "Q" and OPT["pfs"] < 0:
        for j in range(2): vm.issue(("pf", 0)); P(f"buffer_load_dword v2, {C.vPF}, {C.sP}, 0 offen offset:{128*j}")
    P(vm.wait(lambda q: q[0] == "d" and q[1] <= 0) + " lgkmcnt(0)")
    P("s_barrier")
    stamp(C, "d0")
    P.ext(reads(0))
    hist = {}
    for s in range(nsteps):
        pm = NPRE and s == OPT["pmv"]
        if pm: assert b2.loaded >= NPRE
        if s + 1 < nsteps: P(vm.wait(lambda q: (q[0] == "d" and q[1] <= s + 1) or (pm and q[0] == "b2" and q[1] < NPRE)) + " lgkmcnt(0)")
        else: P("s_waitcnt lgkmcnt(0)")
        P("s_barrier")
        if s in (1, 2, 4, 7, 10, 13) or (OPT["fine"] == 2 and s >= 1): stamp(C, f"s{s}")
        m = mfmas(s)
        rd = reads(s + 1) if s + 1 < nsteps else []
        dm = []; C.m0 = None
        for i in sched[s]: dm.extend(emit_item(i))
        if OPT["pfm"] == 2 and C.role == "Q" and s == OPT["pfs"]:
            dm = [vop(C, ("pf", 0), f"buffer_load_dword v2, {C.vPF}, {C.sP}, 0 offen offset:{128*j}") for j in range(2)] + dm
        if s == nonce_at: dm.insert(0, vop(C, ("nonce", 0), f"buffer_load_dword {C.vN}, {C.vZ}, {C.sD}, 0 offen sc1"))
        mv = []
        b2.release(s)
        if NPRE and s == OPT["pmv"] + 1: b2.free += [b2.ch[t_] for t_ in range(NPRE)]
        if NPRE and s == OPT["pmv"] - 1:
            assert b2.loaded >= NPRE
            mv = [Lazy(lambda: vm.wait(lambda q: q[0] == "b2" and q[1] < NPRE))] + [x for t_ in range(NPRE) for x in b2.tr(t_, C.breg[t_], C.rB)]
        if pm: mv = [x for t_ in range(NPRE) for x in b2.tr(t_, C.breg[14 + t_], C.rP)]
        if s >= estart:
            n = sum(1 for x in dm if isinstance(x, Lazy))
            k = max((rate2 + 1 - n) // 2, early) if s >= OPT["b2start"] else early
            dm.extend(b2.loads(k, C.lim))
        hist[s] = b2.loaded
        ex = hook(s) if hook else []
        if s == nsteps - 1: ex = ex + a_tables(C)
        emit(C, spread(m, (rd, 0, 0.8), (dm, 0, 0.95), (mv, 0.3, 0.9), (ex, 0.05, 0.95)))
    C.hist = hist
    stamp(C, "loopend")

def get_tag(C):
    P, S, role = C.P, C.S, C.role
    P(C.vm.wait(lambda q: q[0] == "nonce"))
    P(f"v_readfirstlane_b32 {S['tag']}, {C.vN}\ns_cmp_eq_u32 {S['tag']}, 0\ns_cbranch_scc1 TAGSL_{role}\nTAGOK_{role}:")
    C.slow.append(f"TAGSL_{role}:\ns_mov_b32 {S['t2']}, 0\nTAGLP_{role}:\nbuffer_load_dword {C.vN}, {C.vZ}, {C.sD}, 0 offen sc1\ns_waitcnt vmcnt(0)\nv_readfirstlane_b32 {S['tag']}, {C.vN}\ns_add_u32 {S['t2']}, {S['t2']}, 1\n"
                  f"s_cmp_ge_u32 {S['t2']}, {SPIN_MAX}\ns_cbranch_scc1 TAGOK_{role}\ns_cmp_eq_u32 {S['tag']}, 0\ns_cbranch_scc1 TAGLP_{role}\ns_branch TAGOK_{role}")

def flag_store(C):
    P, S, t = C.P, C.S, C.t
    P(f"s_lshl_b32 {S['t0']}, s2, 7\ns_add_u32 {S['t0']}, {S['t0']}, {FLAG_OFF}\ns_cmp_eq_u32 {S['w']}, 0\ns_cselect_b32 {S['t0']}, {S['t0']}, {BIG}")
    P(f"v_mov_b32 {t[5]}, {S['t0']}\nv_mov_b32 {t[6]}, {S['tag']}\ns_mov_b64 exec, 1\nbuffer_store_dword {t[6]}, {t[5]}, {C.sWS}, 0 offen sc1\ns_mov_b64 exec, -1")
    C.vm.issue(("flag", 0))

def poll_req(C): return vop(C, ("pl", 0), f"buffer_load_dword {C.vFL}, {C.vF}, {C.sWS}, 0 offen sc1")
def poll_check(C, label, mask, first=True):
    P, S = C.P, C.S
    loop = (f"s_mov_b32 {S['t2']}, 0\n{label}:\nbuffer_load_dword {C.vFL}, {C.vF}, {C.sWS}, 0 offen sc1\ns_waitcnt vmcnt(0)\nv_cmp_eq_u32 vcc, {S['tag']}, {C.vFL}\ns_add_u32 {S['t2']}, {S['t2']}, 1\n"
            f"s_cmp_ge_u32 {S['t2']}, {SPIN_MAX}\ns_cbranch_scc1 {label}_X\ns_and_b32 {S['t0']}, vcc_lo, {mask}\ns_cmp_lg_u32 {S['t0']}, {mask}\ns_cbranch_scc1 {label}")
    if OPT["slp"]: loop = loop.replace(f"{label}:\nbuffer_load", f"s_branch {label}_F\n{label}:\ns_sleep {OPT['slp']}\n{label}_F:\nbuffer_load") if not first else loop.replace(f"{label}:\nbuffer_load", f"{label}:\ns_sleep {OPT['slp']}\nbuffer_load")
    if first:
        P(C.vm.wait(lambda q: q[0] == "pl"))
        P(f"v_cmp_eq_u32 vcc, {S['tag']}, {C.vFL}\ns_and_b32 {S['t0']}, vcc_lo, {mask}\ns_cmp_lg_u32 {S['t0']}, {mask}\ns_cbranch_scc1 {label}_S\n{label}_X:")
        C.slow.append(f"{label}_S:\n{loop}\ns_branch {label}_X")
    else:
        P(loop + f"\n{label}_X:")

def xtile(C):
    S = C.S
    o = [f"s_mov_b32 {C.sX[0]}, {C.ptr[0]}\ns_mov_b32 {C.sX[1]}, {C.ptr[1]}\ns_mov_b32 {C.sX[2]}, {XBYTES}\ns_mov_b32 {S['t1']}, {8*1792 - 1024}\ns_add_u32 m0, {S['bm0']}, {XCH*8192}"]
    return o + [vop(C, ("e", 0), f"buffer_load_dwordx4 {C.vXd}, {C.sX}, {S['t1'] if j else 0} offen offset:{1024*j} lds") for j in range(2)]

def aload(C, tt):
    if tt < 28: seg = tt // 7; so = C.kxs[tt % 7]
    else: seg = 4 + (tt - 28) // 4; so = C.kws[1 + (tt - 28) % 4]
    return [vop(C, ("a", tt), f"buffer_load_dwordx4 {C.aring[tt % C.NA][j]}, {C.vA[seg]}, {C.sWS}, {so} offen offset:{2048*j} sc1") for j in range(2)]

def phase2(C, b2, flag_at):
    P, S, vm, t, lane, w = C.P, C.S, C.vm, C.t, C.lane, C.S['w']
    role = C.role; LA = OPT["LA"]; NA = C.NA; aring = C.aring
    lg = C.lg = Cnt("lgkmcnt", 15)
    va = Alloc("v", C.vbase, C.vring)
    acc = [[va(16, 4) for _ in range(2)] for _ in range(3)]
    G = va(12, 4)
    xv = [va(2) for _ in range(4)]; kk = va(2); vO = va(); vL = va(); Rr = va(8, 4)
    rstd, k1 = kk[0], kk[1]
    vXr = va(); vR = va(); vGs = va(); vGr = va(); wad = va(); rad = va()
    rP = C.rP
    C.vA = C.vA[:2] + [va() for _ in range(4)]
    breg = C.breg
    sb = [[[R("a", 224 + 16*p + 8*j + 4*f, 4) for f in range(2)] for j in range(2)] for p in range(2)]
    sO = C.sW
    n_, hf = t[3], t[4]
    su = []
    def U(s): su.extend(s.split("\n"))
    U(f"v_and_b32 {n_}, 31, {lane}\nv_lshrrev_b32 {hf}, 5, {lane}\nv_lshlrev_b32 {vL}, 4, {lane}")
    U(f"s_and_b32 {S['b1']}, {S['T']}, 1\ns_mul_i32 {S['b1']}, {S['b1']}, {2*A2_KS*2048}\ns_sub_u32 {S['b1']}, {S['b1']}, {A2_KS*2048}\nv_add_u32 {C.vA[2]}, {S['b1']}, {C.vA[0]}\nv_add_u32 {C.vA[3]}, {S['b1']}, {C.vA[1]}")
    U(f"s_mul_i32 {S['b1']}, {S['T']}, {2*A2_KS}\ns_add_u32 {S['b1']}, {S['b1']}, {S['hh']}\ns_lshl_b32 {S['b1']}, {S['b1']}, 10\nv_add_u32 {t[0]}, {S['b1']}, {vL}")
    U(f"s_lshl_b32 {S['b1']}, {w}, 14\nv_add_u32 {C.vA[4]}, {S['b1']}, {t[0]}\ns_xor_b32 {S['b1']}, {S['b1']}, 16384\nv_add_u32 {C.vA[5]}, {S['b1']}, {t[0]}")
    U(f"s_lshl_b32 {S['b1']}, s2, 2\ns_add_u32 {S['b1']}, {S['b1']}, {w}\ns_mul_i32 {S['b2']}, {S['b1']}, 3072\ns_add_u32 {S['b2']}, {S['b2']}, {XF_OFF}\nv_add_u32 {vGr}, {S['b2']}, {vL}")
    U(f"s_xor_b32 {S['b2']}, {S['b1']}, 4\ns_mul_i32 {S['b2']}, {S['b2']}, 3072\ns_add_u32 {S['b2']}, {S['b2']}, {XF_OFF}\nv_add_u32 {vGs}, {S['b2']}, {vL}")
    for g in range(3): U(f"v_mov_b32 {G[4*g+3]}, {S['tag']}")
    U(f"s_mov_b32 {sO[0]}, {C.ptr[12]}\ns_mov_b32 {sO[1]}, {C.ptr[13]}\ns_mov_b32 {sO[2]}, {XBYTES}")
    U(f"s_lshl_b32 {S['b2']}, {S['hh']}, 12\ns_add_u32 {S['b2']}, {S['b2']}, {XCH*8192}")
    U(f"v_lshlrev_b32 {t[0]}, 7, {n_}\nv_lshl_add_u32 {t[0]}, {hf}, 3, {t[0]}")
    U(f"s_lshl_b32 {S['wm0']}, {S['half']}, 2\nv_and_b32 {t[1]}, 7, {lane}\nv_xor_b32 {t[1]}, {S['wm0']}, {t[1]}\nv_lshl_add_u32 {t[0]}, {t[1]}, 4, {t[0]}\nv_add_u32 {vXr}, {S['b2']}, {t[0]}")
    U(f"s_mul_i32 {S['b2']}, {S['hh']}, {32*1792}\ns_add_u32 {S['b2']}, {S['b2']}, {S['tb']}\ns_lshl_b32 {S['wm0']}, {S['half']}, 6\ns_add_u32 {S['b2']}, {S['b2']}, {S['wm0']}")
    U(f"v_mul_u32_u24 {t[0]}, 1792, {n_}\nv_add_u32 {t[0]}, {S['b2']}, {t[0]}\nv_lshl_add_u32 {vO}, {hf}, 4, {t[0]}")
    U(f"s_lshl_b32 {S['b2']}, {S['T']}, 1\ns_add_u32 {S['b2']}, {S['b2']}, {S['hh']}\ns_lshl_b32 {S['b2']}, {S['b2']}, 7\ns_lshl_b32 {S['wm0']}, {w}, 14\ns_add_u32 {S['b2']}, {S['b2']}, {S['wm0']}\ns_add_u32 {S['b2']}, {S['b2']}, {RSTD_OFF}")
    U(f"v_lshl_add_u32 {vR}, {n_}, 2, {S['b2']}")
    assert b2.loaded >= 14
    w2ch = [b2.ch[t_] for t_ in range(NPRE, 14)]
    wn = max(range(3), key=lambda k: sum(1 for c in w2ch if c >> 3 == k))
    pch = [c for c in w2ch if c >> 3 == wn][:4]; assert len(pch) == 4
    U(f"s_add_u32 {S['b2']}, {S['bm0']}, {65536*wn}\nv_add_u32 {wad}, {S['b2']}, {vL}\nv_xor_b32 {rad}, 4096, {wad}")
    slot = lambda i, a: ((pch[2*i + (a >> 1)] * 8192) & 0xffff) + (a & 1) * 1024
    NSU = 13
    F, Fp = acc[1]; Sv, Sp = acc[2]; E, X = acc[0]
    gd = lambda k: G[4*(k // 3) + k % 3]
    gw = [lop(C, ("gw", 0), f"ds_write_b128 {wad}, {X[4*a:4*a+4]} offset:{slot(1, a)}") for a in range(4)]
    gr = [lop(C, ("gr", 0), f"ds_read_b128 {X[4*a:4*a+4]}, {rad} offset:{slot(1, a)}") for a in range(4)]
    gs = [Lazy(lambda: lg.wait(lambda q: q[0] == "gr"))]
    for k in range(8):
        gs += [f"v_add_f32 {E[r]}, {E[r]}, {X[r]}" for r in (2*k, 2*k+1)] + [f"v_cvt_pk_bf16_f32 {gd(k)}, {E[2*k]}, {E[2*k+1]}"]
        if k in (2, 5, 7): gs.append(vop(C, ("xs", 0), f"buffer_store_dwordx4 {G[4*(k//3):4*(k//3) + 4]}, {vGs}, {C.sWS}, 0 offen offset:{1024*(k//3)} sc1"))
    gl = [f"buffer_load_dwordx4 {G[4*g:4*g+4]}, {vGr}, {C.sWS}, 0 offen offset:{1024*g} sc1" for g in range(3)]
    U(f"s_mov_b32 {S['b1']}, 0x3f80\ns_mov_b32 {S['b2']}, 0x3f800000")
    ck = [f"v_xor_b32 {G[4*g+3]}, {S['tag']}, {G[4*g+3]}" for g in range(3)] + [f"v_or3_b32 {G[3]}, {G[3]}, {G[7]}, {G[11]}", f"v_cmp_ne_u32 vcc, 0, {G[3]}"]
    C.slow.append(f"XG_S{role}:\ns_mov_b32 {S['t2']}, 0\nXG_L{role}:\n" + "\n".join(gl) + "\ns_waitcnt vmcnt(0)\n" + "\n".join(ck) +
                  f"\ns_add_u32 {S['t2']}, {S['t2']}, 1\ns_cmp_ge_u32 {S['t2']}, {SPIN_MAX}\ns_cbranch_scc1 XG_X{role}\ns_cmp_lg_u64 vcc, 0\ns_cbranch_scc1 XG_L{role}\ns_branch XG_X{role}")
    ck = [Lazy(lambda: vm.wait(lambda q: q[0] == "xl"))] + ck + [f"s_cmp_lg_u64 vcc, 0\ns_cbranch_scc1 XG_S{role}\nXG_X{role}:"]
    def fe_plain(a):
        o = [Lazy(lambda a=a: lg.wait(lambda q: q == ("fr", a)))]
        R_ = range(4*a, 4*a+4)
        o += [f"v_add_f32 {F[r]}, {F[r]}, {Fp[r]}" for r in R_]
        o += [(f"v_lshlrev_b32 {E[r]}, 16, {gd(r//2)}" if r % 2 == 0 else f"v_and_b32 {E[r]}, 0xffff0000, {gd(r//2)}") for r in R_]
        o += [f"v_add_f32 {F[r]}, {F[r]}, {E[r]}" for r in R_]
        o += [f"v_mul_f32 {E[r]}, {F[r]}, {k1}" for r in R_] + [f"v_exp_f32 {E[r]}, {E[r]}" for r in R_] + [f"v_mul_f32 {F[r]}, {F[r]}, {rstd}" for r in R_]
        o += [f"v_add_f32 {E[r]}, 1.0, {E[r]}" for r in R_] + [f"v_rcp_f32 {E[r]}, {E[r]}" for r in R_]
        o += [f"v_mul_f32 {F[r]}, {F[r]}, {E[r]}" for r in R_]
        return o
    def fe_pk(a):
        o = [Lazy(lambda a=a: lg.wait(lambda q: q == ("fr", a)))]
        R_ = range(4*a, 4*a+4); H = [slice(4*a, 4*a+2), slice(4*a+2, 4*a+4)]
        o += [f"v_pk_add_f32 {F[h]}, {F[h]}, {Fp[h]}" for h in H]
        o += [f"v_pk_mul_f32 {E[h]}, {F[h]}, {kk} op_sel:[0,1] op_sel_hi:[1,1]" for h in H]
        o += [f"v_exp_f32 {E[r]}, {E[r]}" for r in R_] + [f"v_pk_mul_f32 {F[h]}, {F[h]}, {kk} op_sel_hi:[1,0]" for h in H]
        o += [f"v_pk_add_f32 {E[h]}, {E[h]}, 1.0 op_sel_hi:[1,0]" for h in H] + [f"v_rcp_f32 {E[r]}, {E[r]}" for r in R_]
        o += [f"v_pk_mul_f32 {F[h]}, {F[h]}, {E[h]}" for h in H]
        return o
    NPL = OPT["npl"]
    fe1 = [x for a in range(NPL) for x in fe_plain(a)]
    fe2 = [f"v_dot2c_f32_bf16 {F[r]}, {S['b1'] if r % 2 == 0 else S['b2']}, {gd(r//2)}" for r in range(4*NPL, 16)] + [x for a in range(NPL, 4) for x in fe_pk(a)]
    fw = [lop(C, ("fw", 0), f"ds_write_b128 {wad}, {Fp[4*a:4*a+4]} offset:{slot(0, a)}") for a in range(4)]
    fr = [lop(C, ("fr", a), f"ds_read_b128 {Fp[4*a:4*a+4]}, {rad} offset:{slot(0, a)}") for a in range(4)]
    sw = [lop(C, ("sw", 0), f"ds_write_b128 {wad}, {Sp[4*a:4*a+4]} offset:{slot(1, a)}") for a in range(4)]
    sr = [lop(C, ("sr", a), f"ds_read_b128 {Sp[4*a:4*a+4]}, {rad} offset:{slot(1, a)}") for a in range(4)]
    xr = []
    for a in range(4): xr += [f"v_xor_b32 {t[0]}, {16*a}, {vXr}", lop(C, ("xr", 0), f"ds_read_b64 {xv[a]}, {t[0]}")]
    xu = [Lazy(lambda: lg.wait(lambda q: q[0] == "xr"))]
    for a in range(4):
        for h in range(2): xu += [f"v_lshlrev_b32 {X[4*a+2*h]}, 16, {xv[a][h]}", f"v_and_b32 {X[4*a+2*h+1]}, 0xffff0000, {xv[a][h]}"]
    TPOLL = 28 - LA - 4
    BV, BF, TB = 6 + NPRE // 2, 14, 30
    R1 = OPT['R1']
    RX, CK = OPT["RX"], OPT["CK"]
    def trs_for(tt):
        o = []
        for j in range(2):
            if tt < 14 and 2 * (tt % 7) < NPRE: continue
            if tt < 14: o += b2.tr(2 * (tt % 7) + j, breg[2*tt + j], C.rB if tt < 7 else rP)
            else: o += b2.tr(14 + 2 * ((tt - 28) & 3) + j, sb[tt & 1][j], C.rB if tt < 32 else rP)
        return [lop(C, ("tr", tt), y) for y in o]
    P(vm.wait(lambda q: q[0] == "b2" and q[1] <= 1) + " lgkmcnt(0)")
    emit(C, trs_for(0))
    for tt in range(NT2):
        nb = min(2 * tt + 3, 13) if tt < 27 else NB - 1
        assert nb < b2.loaded
        P(vm.wait(lambda q: q == ("a", tt) or (q[0] == "b2" and q[1] <= nb) or (tt == flag_at and q[0] == "st") or (tt == TB and q[0] == "e")))
        if tt in ((0, 7, 14, 21, 28) if OPT["fine"] != 1 else (0, 7, 14, 16, 21, 24, 26, 28, 29, 30, 31, 32, 33, 34, 35)): stamp(C, f"a{tt}")
        if tt == flag_at:
            P("s_barrier"); flag_store(C); stamp(C, "flag")
        if any(q == ("tr", tt) for q in lg.q): P(lg.wait(lambda q: q == ("tr", tt) or (tt == TB and q[0] == "fw")))
        if tt == R1: P(lg.wait(lambda q: q[0] == "gw"))
        if tt in (BV, BF, R1, TB): P("s_barrier")
        if tt == BF: b2.free += [c for c in w2ch if c not in pch]
        trs = trs_for(tt + 1) if (tt + 1 < 14 or 28 <= tt + 1 < NT2) else []
        ld = []; va_ = []
        if tt < NSU:
            k = len(su); va_ = su[tt * k // NSU:(tt + 1) * k // NSU]
        if tt == TPOLL: ld.append(poll_req(C))
        if tt + LA == 28:
            def chk():
                l0 = len(P.l); poll_check(C, f"PS_{role}", 60); x = "\n".join(P.l[l0:]); del P.l[l0:]; return x
            ld.append(Lazy(chk, "svsss"))
            ld.append(vop(C, ("e", 0), f"buffer_load_dword {rstd}, {vR}, {C.sWS}, 0 offen sc1"))
        if tt + LA < NT2: ld.extend(aload(C, tt + LA))
        if tt >= 17 or (tt < 14 and tt % 2 == 1): ld.extend(b2.loads(1))
        if 14 <= tt < R1: va_ = gw[(tt - 14) * 4 // (R1 - 14):(tt - 13) * 4 // (R1 - 14)]
        if tt == R1: va_ = gr
        if R1 < tt <= R1 + 3: va_ = gs[(tt - R1 - 1) * len(gs) // 3:(tt - R1) * len(gs) // 3]
        if tt == RX: ld += [vop(C, ("xl", 0), x) for x in gl]
        if tt in (28, 29): va_ = fw[(tt - 28) * 2:(tt - 27) * 2]
        if tt == TB: va_ = [f"v_mul_f32 {k1}, {f2h(-math.log2(math.e))}, {rstd}"] + fr + xr
        if tt == TB + 1: va_ = va_ + xu
        if tt == CK: va_ = va_ + ck
        if tt > CK:
            k = len(fe1); i = tt - CK - 1; nn = NT2 - 1 - CK; va_ = va_ + fe1[i * k // nn:(i + 1) * k // nn]
        ps = 0 if tt < 14 else (1 if tt < 28 else 2)
        last = tt in (13, 27, 35)
        order = ((1, 0), (0, 0), (1, 1), (0, 1)) if not last else ((1, 0), (1, 1), (0, 0), (0, 1))
        Bf = (lambda j, f: breg[2*(tt % 14) + j][f]) if tt < 28 else (lambda j, f: sb[tt & 1][j][f])
        m = [f"v_mfma_f32_32x32x16_bf16 {acc[ps][f]}, {Bf(j, f)}, {aring[tt % NA][j]}, {0 if (tt in (0, 14, 28) and j == 0) else acc[ps][f]}" for f, j in order]
        if OPT['sp2']: emit(C, spread(m, (trs, 0, 0.6), (ld, 0, 0.9), (va_, 0.3 if tt in (14, 28) else 0, 0.95), clk=32))
        else: emit(C, merge(m, (trs, 0, 3), (ld, 0, 4), (va_, 1 if tt in (14, 28) else 0, 4)))
    assert b2.loaded == NB and CK > TB and (CK < NT2 - 1 or NPL == 0)
    stamp(C, "p2end")
    h = min(len(fe2), 14)
    emit(C, merge(fe2[:h], (sw, 0, h)) if h else sw)
    P(lg.wait(lambda q: q[0] == "sw")); P("s_barrier")
    if OPT["fine"] == 1: stamp(C, "sb")
    emit(C, sr)
    emit(C, fe2[h:])
    if OPT["fine"] == 1: stamp(C, "fedone")
    for a in range(4):
        P(lg.wait(lambda q: q == ("sr", a)))
        H = [slice(4*a, 4*a+2), slice(4*a+2, 4*a+4)]
        for h_ in H: P(f"v_pk_add_f32 {Sv[h_]}, {Sv[h_]}, {Sp[h_]}")
        for h_ in H: P(f"v_pk_fma_f32 {Sv[h_]}, {Sv[h_]}, {F[h_]}, {X[h_]}")
        P(f"v_cvt_pk_bf16_f32 {Rr[2*a]}, {Sv[4*a]}, {Sv[4*a+1]}\nv_cvt_pk_bf16_f32 {Rr[2*a+1]}, {Sv[4*a+2]}, {Sv[4*a+3]}")
        if a & 1:
            p = a >> 1
            P(f"v_permlane32_swap_b32 {Rr[4*p]}, {Rr[4*p+2]}\nv_permlane32_swap_b32 {Rr[4*p+1]}, {Rr[4*p+3]}")
            P(f"buffer_store_dwordx4 {Rr[4*p:4*p+4]}, {vO}, {sO}, 0 offen offset:{32*p}")
    if OPT["stamps"]:
        stamp(C, "stored"); P("s_waitcnt vmcnt(0)"); stamp(C, "end")
    if OPT["enc"] == "end": P("s_waitcnt vmcnt(0)\ns_memrealtime s[100:101]")
    if OPT["spin"] and role == ("F" if OPT["encwg"] < 128 else "Q"):
        P(f"s_cmp_lg_u32 s2, {OPT['encwg']}\ns_cbranch_scc1 SPN2\ns_waitcnt lgkmcnt(0)\ns_mov_b32 {S['t1']}, {OPT['spin']}")
        if OPT["enc"]: P(f"s_sub_u32 {S['t0']}, s100, s98\ns_lshl_b32 {S['t0']}, {S['t0']}, 2\ns_add_u32 {S['t1']}, {S['t1']}, {S['t0']}\ns_min_u32 {S['t1']}, {S['t1']}, 20000")
        P(f"SPN1:\ns_memrealtime {C.tm}\ns_waitcnt lgkmcnt(0)\ns_sub_u32 {S['t0']}, {C.tm[0]}, s98\ns_cmp_lt_u32 {S['t0']}, {S['t1']}\ns_cbranch_scc1 SPN1\nSPN2:")
    stamp_flush(C)
    P("s_endpgm")
    del C.lg
    C.vA = C.vA[:2]
    return 256

def dma_item(C, need, m0expr, load, execmask=None):
    s = load
    if execmask: s = f"s_mov_b64 exec, {execmask}\n{s}\ns_mov_b64 exec, -1"
    o = []
    if C.m0 != m0expr: o.append(m0expr)
    C.m0 = m0expr
    return o + [vop(C, ("d", need), s)]

def slab_tables(C, wmul):
    P, S = C.P, C.S
    if OPT["com"]:
        P(f"s_bfe_u32 {S['t0']}, s2, 0x20006\ns_mul_i32 {S['t0']}, {S['t0']}, 3\ns_lshr_b32 {S['t0']}, {S['t0']}, 1\ns_add_u32 {S['t0']}, {S['t0']}, {S['rbl']}")
        P(f"s_sub_u32 {S['t1']}, {S['t0']}, 6\ns_cmp_ge_u32 {S['t0']}, 6\ns_cselect_b32 {S['t0']}, {S['t1']}, {S['t0']}\ns_lshl_b32 {S['t0']}, {S['t0']}, 7")
        for d in range(1, 7):
            P(f"s_add_u32 {C.kxs[d]}, {C.kxs[d-1] if d > 1 else S['t0']}, 128\ns_cmp_eq_u32 {C.kxs[d]}, 896\ns_cselect_b32 {C.kxs[d]}, 128, {C.kxs[d]}\ns_mul_i32 {C.kws[d]}, {C.kxs[d]}, {wmul}")
        return
    for d in range(1, 7):
        P(f"s_add_u32 {C.kxs[d]}, {C.kxs[d-1]}, 128\ns_cmp_eq_u32 {C.kxs[d]}, 896\ns_cselect_b32 {C.kxs[d]}, 0, {C.kxs[d]}\ns_mul_i32 {C.kws[d]}, {C.kxs[d]}, {wmul}")

class Role: pass

def ffn_head(C):
    P, S, lane, t = C.P, C.S, C.lane, C.t
    Rl = Role(); Rl.vm = C.vm = Cnt("vmcnt", 63); C.vm.issue(("pf", 0)); C.m0 = None
    va = Rl.va = Alloc("v", C.vbase, 256)
    NW, NX = 4, 3; WB, XB = 0, 65536
    xd = C.xd; wd = Rl.wd = [va() for _ in range(8)]
    w = S['w']
    P(f"s_mul_i32 {S['t0']}, {S['cb']}, 448\ns_and_b32 {S['t0']}, {S['t0']}, 0xffffff80\ns_mul_i32 {S['t1']}, {w}, {8*3584}\ns_add_u32 {S['t0']}, {S['t0']}, {S['t1']}")
    P(f"v_lshrrev_b32 {t[0]}, 5, {lane}\nv_bfe_u32 {t[1]}, {lane}, 1, 4\nv_xor_b32 {t[1]}, {t[0]}, {t[1]}\nv_xor_b32 {t[1]}, {S['b1']}, {t[1]}")
    P(f"v_mul_u32_u24 {t[0]}, 3584, {t[0]}\nv_lshl_add_u32 {t[0]}, {t[1]}, 5, {t[0]}\nv_and_b32 {t[1]}, 1, {lane}\nv_lshl_add_u32 {t[0]}, {t[1]}, 4, {t[0]}")
    P(f"v_add_u32 {wd[0]}, {S['t0']}, {t[0]}\nv_xor_b32 {t[3]}, 64, {wd[0]}")
    P(f"v_add_u32 {wd[1]}, {2*3584 - 1024}, {t[3]}\nv_add_u32 {wd[2]}, {4*3584 - 2048}, {wd[0]}\nv_add_u32 {wd[3]}, {6*3584 - 3072}, {t[3]}")
    P(f"s_mul_i32 {S['kw']}, {S['kx']}, {64*3584//128}")
    P(f"s_memrealtime {C.mT}\ns_or_b32 {S['t0']}, s2, {w}\ns_cmp_eq_u32 {S['t0']}, 0\ns_cselect_b32 {C.sD[2]}, 256, 0\ns_mov_b32 {C.sD[3]}, 0x20000\nv_mov_b32 {t[0]}, 0")
    karg(C)
    P(f"s_or_b32 {S['t0']}, {C.mT[0]}, 1\nv_mov_b32 {t[1]}, {S['t0']}\ns_mov_b32 {C.sD[0]}, {C.ptr[14]}\ns_mov_b32 {C.sD[1]}, {C.ptr[15]}\nbuffer_store_dword {t[1]}, {t[0]}, {C.sD}, 0 offen sc1")
    C.vm.issue(("non", 0))
    srd(P, C.sW, C.ptr[8], C.ptr[9], 448 * 3584)
    items = []
    for d in range(7):
        for j in range(4): items.append(dict(k="x", d=d, j=j, need=2*d, free=(2*(d-NX)+1 if d >= NX else -1)))
        for s in (2*d, 2*d+1):
            for j in range(4): items.append(dict(k="w", s=s, j=j, need=s, free=(s-NW if s >= NW else -1)))
    def emit_item(i):
        it = items[i]; j = it["j"]
        if it["k"] == "x":
            return dma_item(C, it["need"], f"s_add_u32 m0, {S['xm0']}, {XB + (it['d'] % NX)*16384}",
                            f"buffer_load_dwordx4 {xd[j]}, {C.sX}, {C.kxs[it['d']]} offen offset:{j*1024}{NTX} lds")
        return dma_item(C, it["need"], f"s_add_u32 m0, {S['xm0']}, {WB + (it['s'] % NW)*16384}",
                        f"buffer_load_dwordx4 {wd[j + 4*(it['s']&1)]}, {C.sW}, {C.kws[it['s']>>1]} offen offset:{j*1024}{NTW} lds")
    Rl.sched = schedule(items, OPT["pro"], OPT["rate"], 14); Rl.emit_item = emit_item
    for i in Rl.sched[-1][:8]: emit(C, emit_item(i))
    for j in range(4): P(f"v_add_u32 {wd[4+j]}, {32*3584}, {wd[j]}")
    for i in Rl.sched[-1][8:OPT["first"]]: emit(C, emit_item(i))
    return Rl

def karg(C):
    P, S = C.P, C.S
    P("s_waitcnt lgkmcnt(0)")
    P(f"s_add_u32 {C.sX[0]}, {C.ptr[0]}, {S['t2']}\ns_addc_u32 {C.sX[1]}, {C.ptr[1]}, 0\ns_sub_u32 {C.sX[2]}, {XBYTES}, {S['t2']}\ns_mov_b32 {C.sX[3]}, 0x20000")

def ffn_body(C, Rl):
    P, S, lane, t = C.P, C.S, C.lane, C.t
    C.role = "F"; vm = C.vm = Rl.vm; C.lim = NB - OPT["late"]
    va = Rl.va; aa = Alloc("a", 0, C.abase)
    NW, NX = 4, 3; WB, XB = 0, 65536
    sWS = C.sWS; w = S['w']
    stamp(C, "iss")
    xr = [[va() for _ in range(2)] for _ in range(2)]
    wr_ = [va() for _ in range(7)]
    acc = [[va(4, 4) for _ in range(4)] for _ in range(7)]
    cs = [va(4, 4) for _ in range(7)]
    rs = [va(4, 4) for _ in range(2)]
    ones = aa(4)
    fb = [dict(x=[aa(4) for _ in range(4)], w=[aa(4) for _ in range(7)]) for _ in range(2)]
    srd(P, sWS, C.wsp[0], C.wsp[1], WS_REC)
    wr, wc = S['half'], S['hh']
    n_, g_ = va(), va()
    P(f"v_and_b32 {n_}, 15, {lane}\nv_lshrrev_b32 {g_}, 4, {lane}")
    P(f"s_lshl_b32 {S['t0']}, {wr}, 13\ns_lshl_b32 {S['t1']}, {wc}, 12\ns_add_u32 {S['t0']}, {S['t0']}, {S['t1']}\ns_add_u32 {S['t0']}, {S['t0']}, {XB}")
    P(f"v_lshrrev_b32 {t[0]}, 1, {n_}\nv_xor_b32 {t[0]}, {g_}, {t[0]}\nv_lshlrev_b32 {t[0]}, 4, {t[0]}\nv_lshl_add_u32 {t[0]}, {n_}, 7, {t[0]}")
    P(f"v_add_u32 {xr[0][0]}, {S['t0']}, {t[0]}\nv_xor_b32 {xr[0][1]}, 64, {xr[0][0]}\nv_xor_b32 {xr[1][0]}, 4096, {xr[0][0]}\nv_xor_b32 {xr[1][1]}, 4096, {xr[0][1]}")
    P(f"v_bfe_u32 {t[0]}, {lane}, 2, 2\nv_lshl_add_u32 {t[1]}, {g_}, 3, {t[0]}\nv_lshlrev_b32 {t[1]}, 9, {t[1]}\nv_and_b32 {t[2]}, 3, {lane}\nv_lshl_add_u32 {t[1]}, {t[2]}, 3, {t[1]}")
    P(f"v_bfe_u32 {t[0]}, {lane}, 2, 3")
    P(f"s_lshl_b32 {S['b1']}, {wr}, 2\ns_mul_i32 {S['b2']}, {wr}, -3")
    P(f"s_and_b32 {S['t0']}, {S['cb']}, 1\ns_lshl_b32 {S['t0']}, {S['t0']}, 1\ns_mul_i32 {S['t1']}, {wc}, 7\ns_add_u32 {S['t0']}, {S['t0']}, {S['t1']}")
    P(f"s_add_u32 {S['t1']}, {S['t0']}, {S['b2']}\ns_add_u32 {S['t0']}, {S['t0']}, {S['b1']}")
    for c in range(7):
        P(f"s_add_u32 {S['t2']}, {S['t0'] if c <= 2 else S['t1']}, {c}")
        P(f"v_xor_b32 {t[2]}, {S['t2']}, {t[0]}\nv_lshl_add_u32 {wr_[c]}, {t[2]}, 5, {t[1]}")
    P(f"v_mov_b32 {t[0]}, {ONES}")
    for i in range(4): P(f"v_accvgpr_write_b32 {ones[i]}, {t[0]}")
    b2 = B2(C)
    RSB = b2.xchunk * 8192; CSB = RSB + 1024
    xw = RSB & 0x30000; RSB -= xw; CSB -= xw
    a_rs, a_rs2, a_cs, a_cs2 = va(), va(), va(), va()
    st = [va(), va()]
    P(f"s_lshl_b32 {S['t0']}, {wr}, 8\ns_lshl_b32 {S['t1']}, {wc}, 7\ns_add_u32 {S['t0']}, {S['t0']}, {S['t1']}\ns_add_u32 {S['t0']}, {S['t0']}, {xw}")
    P(f"v_lshlrev_b32 {a_rs}, 2, {n_}\nv_add_u32 {a_rs}, {S['t0']}, {a_rs}\nv_xor_b32 {a_rs2}, 128, {a_rs}")
    P(f"s_lshl_b32 {S['t0']}, {wc}, 3\ns_add_u32 {S['t1']}, {S['t0']}, {S['b2']}\ns_add_u32 {S['t0']}, {S['t0']}, {S['b1']}")
    P(f"s_lshl_b32 {S['t0']}, {S['t0']}, 6\ns_add_u32 {S['t1']}, {S['t1']}, 4\ns_lshl_b32 {S['t1']}, {S['t1']}, 6")
    P(f"v_lshlrev_b32 {a_cs}, 4, {g_}\nv_add_u32 {a_cs}, {xw}, {a_cs}\nv_add_u32 {a_cs2}, {S['t1']}, {a_cs}\nv_add_u32 {a_cs}, {S['t0']}, {a_cs}")
    P(f"s_lshl_b32 {S['t0']}, {wc}, 10\nv_lshlrev_b32 {st[0]}, 4, {lane}\nv_add_u32 {st[0]}, {S['t0']}, {st[0]}\nv_xor_b32 {st[1]}, 1024, {st[0]}")
    P(f"s_lshl_b32 {S['t0']}, {S['e']}, 3\ns_add_u32 {S['t0']}, {S['t0']}, {S['rbl']}\ns_lshl_b32 {S['t0']}, {S['t0']}, 1\ns_add_u32 {S['t0']}, {S['t0']}, {wr}")
    P(f"s_mul_i32 {S['t0']}, {S['t0']}, {A2_KS}\ns_mul_i32 {S['t1']}, {S['cb']}, 14\ns_add_u32 {S['t0']}, {S['t0']}, {S['t1']}\ns_mul_i32 {S['t1']}, {wc}, 7\ns_add_u32 {S['t0']}, {S['t0']}, {S['t1']}\ns_add_u32 {S['t0']}, {S['t0']}, 32")
    P(f"s_add_u32 {S['b1']}, {S['b1']}, {S['t0']}\ns_add_u32 {S['b2']}, {S['b2']}, {S['t0']}\ns_lshl_b32 {S['b1']}, {S['b1']}, 11\ns_lshl_b32 {S['b2']}, {S['b2']}, 11")
    if OPT["xst"]:
        pca, pra, gca, gsc, lca = [va() for _ in range(5)]
        for m_, bit in ((C.mT, 1), (C.mU, 2), (C.mW, 4), (C.mH, 8)):
            P(f"v_and_b32 {t[0]}, {bit}, {lane}\nv_cmp_ne_u32 {m_}, 0, {t[0]}")
        P(f"s_lshl_b32 {S['t2']}, {S['e']}, 3\ns_add_u32 {S['t0']}, {S['t2']}, {S['cb']}\ns_lshl_b32 {S['t0']}, {S['t0']}, 14\ns_add_u32 {S['t0']}, {S['t0']}, {SCOL_OFF}")
        P(f"s_lshl_b32 {S['t1']}, {w}, 12\ns_add_u32 {S['t1']}, {S['t1']}, {S['t0']}\nv_lshl_add_u32 {gca}, {lane}, 4, {S['t1']}")
        P(f"s_lshl_b32 {S['t1']}, {wc}, 1\ns_add_u32 {S['t1']}, {S['t1']}, {wr}\ns_lshl_b32 {S['t1']}, {S['t1']}, 3\ns_add_u32 {S['t1']}, {S['t1']}, {S['rbl']}\ns_lshl_b32 {S['t1']}, {S['t1']}, 9\ns_add_u32 {S['t0']}, {S['t0']}, {S['t1']}")
        P(f"v_bfe_u32 {t[0]}, {lane}, 2, 2\nv_lshlrev_b32 {t[0]}, 4, {t[0]}\nv_lshl_add_u32 {t[0]}, {g_}, 2, {t[0]}\nv_and_b32 {t[1]}, 3, {lane}\nv_add_u32 {t[0]}, {t[0]}, {t[1]}\nv_lshl_add_u32 {pca}, {t[0]}, 3, {S['t0']}")
        P(f"s_add_u32 {S['t0']}, {S['t2']}, {S['rbl']}\ns_lshl_b32 {S['t0']}, {S['t0']}, 2\ns_add_u32 {S['t0']}, {S['t0']}, {w}\ns_lshl_b32 {S['t0']}, {S['t0']}, 12\ns_add_u32 {S['t0']}, {S['t0']}, {SROW_OFF}")
        P(f"v_lshl_add_u32 {t[0]}, {n_}, 4, {S['t0']}\nv_cmp_lt_u32 vcc, 31, {lane}\nv_cndmask_b32 {gca}, {gca}, {t[0]}, vcc")
        P(f"s_lshl_b32 {S['t1']}, {S['cb']}, 9\ns_add_u32 {S['t0']}, {S['t0']}, {S['t1']}\nv_lshl_add_u32 {pra}, {lane}, 3, {S['t0']}\nv_mov_b32 {t[1]}, {BIG}\nv_cndmask_b32 {pra}, {pra}, {t[1]}, vcc")
        P(f"v_mov_b32 {gsc}, 1.0\nv_mov_b32 {t[1]}, {f2h(-1.0/448)}\nv_cndmask_b32 {gsc}, {gsc}, {t[1]}, vcc")
        P(f"s_lshl_b32 {S['t0']}, {w}, 8\ns_add_u32 {S['t0']}, {S['t0']}, {xw + 1024}\nv_lshl_add_u32 {lca}, {lane}, 3, {S['t0']}")
        P(f"s_lshl_b32 {S['t0']}, {w}, 7\ns_add_u32 {S['t0']}, {S['t0']}, {xw}\nv_lshl_add_u32 {t[0]}, {n_}, 3, {S['t0']}\nv_cndmask_b32 {lca}, {lca}, {t[0]}, vcc")
    p2_setup(C)
    slab_tables(C, 64*3584//128); C.m0 = None
    P("WARM_F:")
    for i in Rl.sched[-1][OPT["first"]:]: emit(C, Rl.emit_item(i))
    def reads(s):
        b = fb[s & 1]
        xs = ((s >> 1) % NX) * 16384; ws = WB + (s % NW) * 16384
        X = [f"ds_read_b128 {b['x'][i]}, {xr[i>>1][s&1]} offset:{xs + (i&1)*2048}" for i in range(4)]
        W = []
        for c in range(7):
            W.append(f"ds_read_b64_tr_b16 {b['w'][c][0:2]}, {wr_[c]} offset:{ws}")
            W.append(f"ds_read_b64_tr_b16 {b['w'][c][2:4]}, {wr_[c]} offset:{ws + 2048}")
        return X + W
    def mfmas(s):
        b = fb[s & 1]; o = []
        def mm(d, a, bb): o.append(f"v_mfma_f32_16x16x32_bf16 {d}, {a}, {bb}, {d if s else 0}")
        if s < 2 or not OPT["xst"]:
            for i in range(2): mm(rs[i], ones, b['x'][i])
            for c in range(4): mm(cs[c], b['w'][c], ones)
        for c in range(7):
            for i in range(4): mm(acc[c][i], b['w'][c], b['x'][i])
        if s == 13 and not OPT["xst"]:
            wrs = [f"ds_write_b32 {a_rs}, {rs[i][0]} offset:{RSB + i*64}" for i in range(2)] + [f"ds_write_b128 {a_cs}, {cs[c]} offset:{CSB + c*64}" for c in range(4)]
            for k_, x in enumerate(wrs): o[14 + k_] += "\n" + x
        return o
    nm = [va(2), va(2)]
    NEG = f2h(-1.0/448)
    hook = None
    if OPT["xst"]:
        G = OPT["gat"]
        allcs = R("v", cs[0].i, 28); assert cs[6].i == cs[0].i + 24
        gq = [allcs[4*p:4*p+4] for p in range(7)]
        gl = [f"buffer_load_dwordx4 {gq[p]}, {gca}, {sWS}, 0 offen offset:{512*p} sc1" for p in range(7)]
        bad = rs[0][0]
        al = [g[k] for g in gq for k in (1, 3)]
        chk = [f"v_xor_b32 {bad}, {S['tag']}, {al[0]}"] + [f"v_bitop3_b32 {bad}, {x}, {S['tag']}, {bad} bitop3:0xbe" for x in al[1:]]
        def hook(s_):
            o = []
            if s_ == 2:
                def tg():
                    l0 = len(P.l); get_tag(C); x = "\n".join(P.l[l0:]); del P.l[l0:]; return x
                o.append(Lazy(tg, "svsss"))
                for c in range(4):
                    o += [f"v_cndmask_b32 {cs[c][0]}, {cs[c][0]}, {cs[c][1]}, {C.mT}", f"v_cndmask_b32 {cs[c][2]}, {cs[c][2]}, {cs[c][3]}, {C.mT}", f"v_cndmask_b32 {cs[c][0]}, {cs[c][0]}, {cs[c][2]}, {C.mU}"]
            if s_ == 3:
                o += [f"v_cndmask_b32 {cs[0][0]}, {cs[0][0]}, {cs[1][0]}, {C.mW}", f"v_cndmask_b32 {cs[2][0]}, {cs[2][0]}, {cs[3][0]}, {C.mW}", f"v_cndmask_b32 {cs[0][0]}, {cs[0][0]}, {cs[2][0]}, {C.mH}",
                      f"v_mov_b32 {cs[0][1]}, {S['tag']}", vop(C, ("st1", 0), f"buffer_store_dwordx2 {cs[0][0:2]}, {pca}, {sWS}, 0 offen sc1"),
                      f"v_cmp_eq_u32 vcc, 1, {g_}", f"v_mov_b32 {rs[0][1]}, {S['tag']}", f"v_cndmask_b32 {rs[0][0]}, {rs[0][0]}, {rs[1][0]}, vcc",
                      vop(C, ("st1", 0), f"buffer_store_dwordx2 {rs[0][0:2]}, {pra}, {sWS}, 0 offen sc1")]
            k_ = OPT["gsp"]
            if G - k_ < s_ <= G:
                i_ = s_ - (G - k_ + 1); o += [vop(C, ("ga", 0), x) for x in gl[i_ * 7 // k_:(i_ + 1) * 7 // k_]]
            if s_ == G + OPT['gck']:
                o.append(Lazy(lambda: vm.wait(lambda q: q[0] == "ga")))
                o += chk + [f"v_cmp_ne_u32 vcc, 0, {bad}", "s_cmp_lg_u64 vcc, 0\ns_cbranch_scc1 GA_S\nGA_X:"]
                C.slow.append(f"GA_S:\ns_mov_b32 {S['t2']}, 0\nGA_L:\n" + "\n".join(gl) + "\ns_waitcnt vmcnt(0)\n" + "\n".join(chk) +
                              f"\nv_cmp_ne_u32 vcc, 0, {bad}\ns_add_u32 {S['t2']}, {S['t2']}, 1\ns_cmp_ge_u32 {S['t2']}, {SPIN_MAX}\ns_cbranch_scc1 GA_X\ns_cmp_lg_u64 vcc, 0\ns_cbranch_scc1 GA_L\ns_branch GA_X")
            if s_ == G + OPT['gck'] + 1:
                for k in (0, 2):
                    g = [x[k] for x in gq]
                    o += [f"v_add_f32 {g[0]}, {g[0]}, {g[1]}", f"v_add_f32 {g[2]}, {g[2]}, {g[3]}", f"v_add_f32 {g[4]}, {g[4]}, {g[5]}",
                          f"v_add_f32 {g[0]}, {g[0]}, {g[2]}", f"v_add_f32 {g[4]}, {g[4]}, {g[6]}", f"v_add_f32 {g[0]}, {g[0]}, {g[4]}"]
                o += [f"v_mul_f32 {gq[0][0]}, {gsc}, {gq[0][0]}", f"v_mul_f32 {gq[0][1]}, {gsc}, {gq[0][2]}", f"ds_write_b64 {lca}, {gq[0][0:2]} offset:{RSB}"]
            if s_ == G + OPT['gck'] + 2:
                o += [f"ds_read_b32 {nm[0][i]}, {a_rs} offset:{RSB + 64*i}" for i in range(2)] + [f"ds_read_b32 {nm[1][i]}, {a_rs2} offset:{RSB + 64*i}" for i in range(2)]
                o += [f"ds_read_b128 {cs[c]}, {a_cs} offset:{CSB + c*64}" for c in range(4)] + [f"ds_read_b128 {cs[c]}, {a_cs2} offset:{CSB + (c-4)*64}" for c in range(4, 7)]
            return o
    run_loop(C, Rl.emit_item, Rl.sched, reads, mfmas, b2, OPT["fearly"], OPT["fstart"], hook=hook, nonce_at=0 if OPT["xst"] else 6, rate2=OPT["b2rate"])
    if not OPT["xst"]:
        P("s_waitcnt lgkmcnt(0)\ns_barrier"); b2.lgkm()
        P(f"ds_read_b32 {nm[1][0]}, {a_rs2} offset:{RSB}\nds_read_b32 {nm[1][1]}, {a_rs2} offset:{RSB+64}")
        for c in range(4, 7): P(f"ds_read_b128 {cs[c]}, {a_cs2} offset:{CSB + (c-4)*64}")
    if OPT["xst"] and OPT["gat"] + OPT["gck"] + 2 == 13: P("s_waitcnt lgkmcnt(0)"); b2.lgkm()
    emit(C, b2.moves(C.hist[11]))
    if not OPT["xst"]: P(f"v_mul_f32 {nm[0][0]}, {NEG}, {rs[0][0]}\nv_mul_f32 {nm[0][1]}, {NEG}, {rs[1][0]}")
    Z = [va(4, 4) for _ in range(4)]
    units = [(c, 0) for c in range(4)] + [(c, 1) for c in range(4)] + [(c, pr) for c in range(4, 7) for pr in range(2)]
    if OPT["xst"]: units = [(c, pr) for c in range(7) for pr in range(2)]
    pend = None
    old = b2.loaded
    for ui, (c, pr) in enumerate(units):
        if ui == 4:
            P("s_waitcnt lgkmcnt(0)"); b2.lgkm()
            if not OPT["xst"]: P(f"v_mul_f32 {nm[1][0]}, {NEG}, {nm[1][0]}\nv_mul_f32 {nm[1][1]}, {NEG}, {nm[1][1]}")
        z = Z[ui % 4]
        for ii in range(2):
            a = acc[c][2*pr+ii]
            sel = "op_sel_hi:[1,0,1]" if ii == 0 else "op_sel:[0,1,0] op_sel_hi:[1,1,1]"
            P(f"v_pk_fma_f32 {a[0:2]}, {cs[c][0:2]}, {nm[pr]}, {a[0:2]} {sel}")
            P(f"v_pk_fma_f32 {a[2:4]}, {cs[c][2:4]}, {nm[pr]}, {a[2:4]} {sel}")
        if pend: P(pend); vm.issue(("st", 0))
        for ii in range(2):
            a = acc[c][2*pr+ii]
            P(f"v_cvt_pk_bf16_f32 {z[2*ii]}, {a[0]}, {a[1]}\nv_cvt_pk_bf16_f32 {z[2*ii+1]}, {a[2]}, {a[3]}")
        for q in range(4): P(f"v_pk_max_i16 {z[q]}, {z[q]}, 0")
        if OPT["fepi"] and ui % OPT["fepi"] == 0: emit(C, b2.loads(1, C.lim))
        pend = (f"s_add_u32 {S['t0']}, {S['b1'] if c <= 2 else S['b2']}, {c*2048}\n"
                f"v_permlane16_swap_b32 {z[0]}, {z[2]}\nv_permlane16_swap_b32 {z[1]}, {z[3]}\n"
                f"buffer_store_dwordx4 {z}, {st[pr]}, {sWS}, {S['t0']} offen sc1")
    P(pend); vm.issue(("st", 0))
    stamp(C, "epiend")
    emit(C, b2.moves(old))
    b2.drain(OPT["post"], C.lim)
    if not OPT["xst"]: get_tag(C)
    stamp(C, "tag")
    P(vm.wait(lambda q: q[0] == "st")); stamp(C, "ack"); P("s_barrier")
    flag_store(C)
    stamp(C, "flag")
    emit(C, xtile(C))
    b2.drain(max(C.lim - b2.loaded - OPT["pr"], 0), C.lim)
    emit(C, [poll_req(C)])
    b2.drain(99, C.lim)
    stamp(C, "b2iss")
    poll_check(C, "PF_F", 3)
    stamp(C, "polled")
    for tt in range(OPT["LA"]): emit(C, aload(C, tt))
    return max(va.hi, phase2(C, b2, None))

XS = 18432
def qkv_head(C):
    P, S, lane, t = C.P, C.S, C.lane, C.t
    Rl = Role(); Rl.vm = C.vm = Cnt("vmcnt", 63); C.vm.issue(("pf", 0)); C.m0 = None
    va = Rl.va = Alloc("v", C.vbase, 256)
    NW, NX = 4, 3; XB, WB = 0, 3 * XS
    xd = C.xd; xh = va(); wd = [va() for _ in range(6)]
    w = S['w']; hp = S['cb']; mW, mH = C.mW, C.mH
    P(f"s_mul_i32 {S['t1']}, {w}, {32*1792}\ns_add_u32 {S['t1']}, {S['t1']}, {8*1792}\ns_cmp_eq_u32 {S['rbl']}, 0\ns_cselect_b32 {S['t1']}, {BIG}, {S['t1']}")
    P(f"v_subrev_u32 {xh}, {S['t1']}, {t[3]}")
    P(f"s_lshl_b32 {S['t1']}, {w}, 4\ns_mov_b64 {mH}, 0xffff\ns_lshl_b64 {mH}, {mH}, {S['t1']}")
    P(f"v_and_b32 {t[0]}, 2, {t[4]}\nv_add_u32 {t[0]}, {S['b1']}, {t[0]}\nv_sub_u32 {t[0]}, {t[5]}, {t[0]}\nv_and_b32 {t[0]}, 7, {t[0]}")
    P(f"v_cmp_ne_u32 {mW}, 7, {t[0]}\nv_mov_b32 {t[2]}, {BIG}")
    P(f"s_mul_i32 {S['t0']}, {hp}, 112\ns_mul_i32 {S['t1']}, {w}, {8*2688}\ns_add_u32 {S['t0']}, {S['t0']}, {S['t1']}")
    P(f"v_mul_u32_u24 {t[1]}, 2688, {t[4]}\nv_lshl_add_u32 {t[1]}, {t[0]}, 4, {t[1]}\nv_add_u32 {t[1]}, {S['t0']}, {t[1]}\nv_cndmask_b32 {wd[2]}, {t[2]}, {t[1]}, {mW}")
    P(f"v_add_u32 {wd[1]}, 128, {wd[2]}\nv_add_u32 {wd[0]}, 256, {wd[2]}")
    P(f"s_mul_i32 {S['kw']}, {S['kx']}, {64*2688//128}\ns_mul_i32 {S['wm0']}, {w}, 3072")
    karg(C)
    P(f"s_sub_u32 {C.sW[0]}, {C.ptr[2]}, 256\ns_subb_u32 {C.sW[1]}, {C.ptr[3]}, 0\ns_mov_b32 {C.sW[2]}, {448*2688 + 256}\ns_mov_b32 {C.sW[3]}, 0x20000")
    items = []
    for d in range(7):
        fr = (2*(d-NX)+1 if d >= NX else -1)
        for j in (0, 1, 2, 3, -1): items.append(dict(k="x", d=d, j=j, need=2*d, free=fr))
        for s in (2*d, 2*d+1):
            for p in range(3): items.append(dict(k="w", s=s, j=p, need=s, free=(s-NW if s >= NW else -1)))
    def emit_item(i):
        it = items[i]; j = it["j"]
        if it["k"] == "x":
            sb = XB + (it['d'] % NX) * XS
            if j < 0: return dma_item(C, it["need"], f"s_mov_b32 m0, {sb + 1024}", f"buffer_load_dwordx4 {xh}, {C.sX}, {C.kxs[it['d']]} offen{NTX} lds", mH)
            return dma_item(C, it["need"], f"s_add_u32 m0, {S['xm0']}, {sb + 2048}", f"buffer_load_dwordx4 {xd[j]}, {C.sX}, {C.kxs[it['d']]} offen offset:{j*1024}{NTX} lds")
        return dma_item(C, it["need"], f"s_add_u32 m0, {S['wm0']}, {WB + (it['s'] % NW)*12288}",
                        f"buffer_load_dwordx4 {wd[j + 3*(it['s']&1)]}, {C.sW}, {C.kws[it['s']>>1]} offen offset:{j*1024}{NTW} lds", mW if j == 1 else None)
    Rl.sched = schedule(items, OPT["pro"] * 11 // 12, OPT["rate"] - 1, 14); Rl.emit_item = emit_item
    for i in Rl.sched[-1][:8]: emit(C, emit_item(i))
    for j in range(3): P(f"v_add_u32 {wd[3+j]}, {32*2688}, {wd[j]}")
    for i in Rl.sched[-1][8:min(OPT["first"], 11)]: emit(C, emit_item(i))
    return Rl

def qkv_body(C, Rl):
    P, S, lane, t = C.P, C.S, C.lane, C.t
    C.role = "Q"; vm = C.vm = Rl.vm; C.lim = NB - OPT["late"]
    va = Rl.va; aa = Alloc("a", 0, C.abase)
    NW, NX = 4, 3; XB, WB = 0, 3 * XS
    sWS, mT = C.sWS, C.mT
    w = S['w']; hp = S['cb']; hh, half = S['hh'], S['half']
    stamp(C, "iss")
    xr = [va() for _ in range(2)]; xr0 = [va() for _ in range(2)]
    wr_ = [va() for _ in range(2)]
    acc = [[[va(4, 4) for _ in range(5)] for _ in range(2)] for _ in range(3)]
    dg = [va(4, 4) for _ in range(5)]
    cprev, ccur, cfirst = va(4, 4), va(4, 4), va(4, 4)
    mprev, mcur = va(2), va(2)
    fb = [dict(x=[aa(4) for _ in range(5)], w=[[aa(4) for _ in range(2)] for _ in range(3)]) for _ in range(2)]
    srd(P, sWS, C.wsp[0], C.wsp[1], WS_REC)
    n_, g_ = va(), va()
    P(f"v_and_b32 {n_}, 15, {lane}\nv_lshrrev_b32 {g_}, 4, {lane}")
    tmpcs = [va(4, 4) for _ in range(4)]
    c1, c0 = tmpcs[0], tmpcs[1]
    for i in range(4): P(f"v_mov_b32 {c1[i]}, {ONES}\nv_mov_b32 {c0[i]}, 0")
    P(f"v_and_b32 {t[0]}, 7, {lane}\nv_and_b32 {t[1]}, 2, {lane}\nv_bfe_u32 {t[2]}, {lane}, 3, 1\nv_lshl_add_u32 {t[1]}, {t[2]}, 2, {t[1]}")
    P(f"v_add_u32 {t[1]}, 7, {t[1]}\nv_and_b32 {t[1]}, 7, {t[1]}\nv_lshlrev_b32 {t[1]}, 4, {t[1]}\nv_lshl_add_u32 {t[0]}, {t[0]}, 7, {t[1]}")
    P(f"v_lshrrev_b32 {t[1]}, 3, {lane}\nv_mul_u32_u24 {t[1]}, 3072, {t[1]}\ns_mul_i32 {S['t0']}, {hh}, {2*12288}\ns_add_u32 {S['t0']}, {S['t0']}, {WB}")
    P(f"v_add3_u32 {t[0]}, {t[0]}, {t[1]}, {S['t0']}")
    P(f"ds_write_b128 {t[0]}, {c1} offset:1024")
    P(f"s_min_u32 {S['t0']}, {w}, 2\ns_mul_i32 {S['t0']}, {S['t0']}, {XS}\nv_lshlrev_b32 {t[1]}, 4, {lane}\nv_add_u32 {t[1]}, {S['t0']}, {t[1]}\nds_write_b128 {t[1]}, {c1} offset:{XB}")
    P(f"v_lshrrev_b32 {t[0]}, 1, {n_}\nv_xor_b32 {t[0]}, {g_}, {t[0]}\nv_lshlrev_b32 {t[0]}, 4, {t[0]}\nv_lshl_add_u32 {t[0]}, {n_}, 7, {t[0]}")
    P(f"s_lshl_b32 {S['t0']}, {half}, 13\nv_add_u32 {t[1]}, {S['t0']}, {t[0]}\nv_add_u32 {xr[0]}, {XB + 2048}, {t[1]}\nv_xor_b32 {xr[1]}, 64, {xr[0]}")
    P(f"v_cmp_gt_u32 vcc, 8, {n_}\nv_cndmask_b32 {xr0[0]}, {t[1]}, {t[0]}, vcc\nv_xor_b32 {xr0[1]}, 64, {xr0[0]}")
    P(f"v_bfe_u32 {t[0]}, {lane}, 2, 2\nv_mul_u32_u24 {t[1]}, 3072, {g_}\nv_lshl_add_u32 {t[0]}, {t[0]}, 7, {t[1]}\nv_add_u32 {t[0]}, {WB}, {t[0]}")
    P(f"v_bfe_u32 {t[1]}, {lane}, 3, 2\nv_lshlrev_b32 {t[1]}, 5, {t[1]}\nv_and_b32 {t[2]}, 3, {lane}")
    P(f"s_mul_i32 {S['t0']}, {hh}, 56\nv_lshl_add_u32 {t[3]}, {t[2]}, 3, {S['t0']}")
    P(f"v_add_u32 {t[4]}, {t[3]}, {t[1]}\nv_and_b32 {t[4]}, 127, {t[4]}\nv_add_u32 {wr_[0]}, {t[0]}, {t[4]}")
    P(f"s_lshl_b32 {S['t0']}, {hh}, 3\ns_sub_u32 {S['t0']}, 120, {S['t0']}\nv_mov_b32 {t[4]}, {S['t0']}\nv_add_u32 {t[3]}, 32, {t[3]}")
    P(f"v_cmp_eq_u32 vcc, 3, {t[2]}\nv_cndmask_b32 {t[3]}, {t[3]}, {t[4]}, vcc")
    P(f"v_add_u32 {t[4]}, {t[3]}, {t[1]}\nv_and_b32 {t[4]}, 127, {t[4]}\nv_add_u32 {wr_[1]}, {t[0]}, {t[4]}")
    P(f"v_lshlrev_b32 {t[0]}, 2, {g_}\nv_sub_u32 {t[0]}, {n_}, {t[0]}\nv_mov_b32 {t[1]}, {NINF}")
    P(f"s_or_b32 {S['t0']}, {S['rbl']}, {half}\ns_cmp_eq_u32 {S['t0']}, 0\ns_cselect_b32 {S['t0']}, {NINF}, 0")
    for r in range(4):
        P(f"v_subrev_u32 {t[2]}, {r}, {t[0]}")
        P(f"v_cmp_gt_i32 vcc, -8, {t[2]}\nv_cndmask_b32 {cprev[r]}, {t[1]}, {c0[0]}, vcc")
        P(f"v_cmp_gt_u32 vcc, 8, {t[2]}\nv_cndmask_b32 {ccur[r]}, {t[1]}, {c0[0]}, vcc")
        P(f"v_or_b32 {cfirst[r]}, {S['t0']}, {cprev[r]}")
    for (m, c) in ((mprev, cprev), (mcur, ccur)):
        for q in range(2):
            P(f"v_ashrrev_i32 {t[2]}, 31, {c[2*q]}\nv_ashrrev_i32 {t[3]}, 31, {c[2*q+1]}\nv_and_b32 {t[2]}, 0xffff, {t[2]}\nv_and_b32 {t[3]}, 0xffff0000, {t[3]}")
            P(f"v_or_b32 {t[2]}, {t[2]}, {t[3]}\nv_not_b32 {m[q]}, {t[2]}")
    a1, a2, av_w, av_r, sr, so = va(), va(), va(), va(), va(), va()
    VCH = [0, 1, 2, 8, 9]
    av_w2, av_r2 = va(), va()
    P(f"v_lshlrev_b32 {a1}, 2, {n_}\nv_bfe_u32 {a2}, {lane}, 2, 2\nv_lshl_add_u32 {a2}, {a2}, 6, {a1}\nv_add_u32 {a1}, 192, {a1}")
    P(f"v_and_b32 {t[2]}, 1, {lane}\nv_cmp_eq_u32 {mT}, 1, {t[2]}\nv_and_b32 {t[2]}, 2, {lane}\nv_cmp_eq_u32 {C.mU}, 2, {t[2]}")
    P(f"s_lshl_b32 {S['t1']}, {w}, 11\nv_mul_u32_u24 {av_w}, 80, {n_}\nv_lshl_add_u32 {av_w}, {g_}, 4, {av_w}\nv_add_u32 {av_w}, {S['t1']}, {av_w}")
    P(f"v_lshrrev_b32 {av_r}, 2, {lane}\nv_mul_u32_u24 {av_r}, 80, {av_r}\nv_and_b32 {t[4]}, 3, {lane}\nv_lshl_add_u32 {av_r}, {t[4]}, 4, {av_r}\nv_add_u32 {av_r}, {S['t1']}, {av_r}\nv_add_u32 {av_w2}, 65536, {av_w}\nv_add_u32 {av_r2}, 65536, {av_r}")
    P(f"v_lshlrev_b32 {so}, 4, {lane}")
    P(f"s_lshl_b32 {S['t1']}, {S['e']}, 3\ns_add_u32 {S['t1']}, {S['t1']}, {S['rbl']}\ns_lshl_b32 {S['t1']}, {S['t1']}, 1\ns_add_u32 {S['t1']}, {S['t1']}, {half}")
    P(f"s_lshl_b32 {S['t0']}, {hp}, 1\ns_add_u32 {S['t0']}, {S['t0']}, {hh}\ns_lshl_b32 {S['t0']}, {S['t0']}, 12\ns_mul_i32 {S['b1']}, {S['t1']}, {A2_KS*2048}\ns_add_u32 {S['b1']}, {S['b1']}, {S['t0']}")
    P(f"s_lshl_b32 {S['t1']}, {S['t1']}, 8\ns_lshl_b32 {S['t0']}, {hp}, 13\ns_add_u32 {S['t1']}, {S['t1']}, {S['t0']}\ns_add_u32 {S['t1']}, {S['t1']}, {RSTD_OFF}\ns_cmp_eq_u32 {hh}, 0\ns_cselect_b32 {S['t1']}, {S['t1']}, {BIG}")
    P(f"v_lshl_add_u32 {sr}, {lane}, 2, {S['t1']}")
    p2_setup(C)
    slab_tables(C, 64*2688//128); C.m0 = None
    P("WARM_Q:")
    for i in Rl.sched[-1][min(OPT["first"], 11):]: emit(C, Rl.emit_item(i))
    def reads(s):
        b = fb[s & 1]
        xs = ((s >> 1) % NX) * XS; ws = (s % NW) * 12288
        X = [f"ds_read_b128 {b['x'][0]}, {xr0[s&1]} offset:{xs}"] + [f"ds_read_b128 {b['x'][j]}, {xr[s&1]} offset:{xs + (j-1)*2048}" for j in range(1, 5)]
        W = []
        for p in (1, 2, 0):
            for tt in range(2):
                W.append(f"ds_read_b64_tr_b16 {b['w'][p][tt][0:2]}, {wr_[tt]} offset:{ws + p*1024}")
                W.append(f"ds_read_b64_tr_b16 {b['w'][p][tt][2:4]}, {wr_[tt]} offset:{ws + p*1024 + 512}")
        return X + W
    Q, K, V = acc
    ST = [va(2) for _ in range(5)]
    sq = [t[0], t[1], t[2], t[3], t[4]]
    csK = tmpcs[0:2]; csV = tmpcs[2:4]; csQ = [Q[0][0], Q[1][0]]
    def bc(d_, s_): return [f"v_mov_b32_dpp {d_[tt][r]}, {s_[tt][0][r]} row_newbcast:0 row_mask:0xf bank_mask:0xf" for tt in (1, 0) for r in range(4)]
    def mfmas(s):
        b = fb[s & 1]; o = []
        def mm(d, a, bb): o.append(f"v_mfma_f32_16x16x32_bf16 {d}, {a}, {bb}, {d if s else 0}")
        for j in range(5): mm(dg[j], b['x'][j], b['x'][j])
        for p in (1, 2, 0):
            for tt in (1, 0):
                for j in range(5): mm(acc[p][tt][j], b['w'][p][tt], b['x'][j])
        if s == 13:
            ex = []
            for j in range(5):
                ex += [f"v_cndmask_b32 {dg[j][0]}, {dg[j][0]}, {dg[j][1]}, {mT}", f"v_cndmask_b32 {dg[j][2]}, {dg[j][2]}, {dg[j][3]}, {mT}",
                       f"v_cndmask_b32 {dg[j][0]}, {dg[j][0]}, {dg[j][2]}, {C.mU}\nds_bpermute_b32 {sq[j]}, {a2}, {dg[j][0]}\nds_bpermute_b32 {ST[j][0]}, {a1}, {K[1][j][0]}"]
            ex += bc(csK, K)
            for k_, x in enumerate(ex): o[12 + k_] += "\n" + x
        return o
    b2 = B2(C)
    run_loop(C, Rl.emit_item, Rl.sched, reads, mfmas, b2, OPT["qearly"], OPT["qstart"], rate2=OPT["qrate"])
    P.ext(bc(csV, V))
    emit(C, b2.moves(C.hist[11]))
    P("s_waitcnt lgkmcnt(0)"); b2.lgkm()
    P(f"s_mov_b32 {S['t0']}, {f2h(1.0/448)}")
    for j in range(5): P(f"v_mul_f32 {ST[j][0]}, {f2h(-1.0/448)}, {ST[j][0]}")
    for j in range(5): P(f"v_mul_f32 {ST[j][1]}, {ST[j][0]}, {ST[j][0]}")
    for j in range(5): P(f"v_fma_f32 {ST[j][1]}, {sq[j]}, {S['t0']}, -{ST[j][1]}")
    for j in range(5): P(f"v_max_f32 {ST[j][1]}, 0, {ST[j][1]}")
    for j in range(5): P(f"v_add_f32 {ST[j][1]}, {f2h(1e-5)}, {ST[j][1]}")
    for j in range(5): P(f"v_rsq_f32 {ST[j][1]}, {ST[j][1]}")
    P.ext(bc(csQ, Q))
    LO = "op_sel_hi:[1,0,1]"; HI = "op_sel:[0,1] op_sel_hi:[1,1]"
    def correct(A_, cs_, j, scale, dst):
        o = []
        for tt in range(2):
            a = A_[tt][j]
            o.append(f"v_pk_fma_f32 {a[0:2]}, {cs_[tt][0:2]}, {ST[j]}, {a[0:2]} {LO}")
            o.append(f"v_pk_fma_f32 {a[2:4]}, {cs_[tt][2:4]}, {ST[j]}, {a[2:4]} {LO}")
        if scale:
            for tt in range(2):
                a = A_[tt][j]
                o.append(f"v_pk_mul_f32 {a[0:2]}, {a[0:2]}, {ST[j]} {HI}")
                o.append(f"v_pk_mul_f32 {a[2:4]}, {a[2:4]}, {ST[j]} {HI}")
        for tt in range(2):
            a = A_[tt][j]
            o.append(f"v_cvt_pk_bf16_f32 {dst[2*tt]}, {a[0]}, {a[1]}")
            o.append(f"v_cvt_pk_bf16_f32 {dst[2*tt+1]}, {a[2]}, {a[3]}")
        return o
    def more(n): return b2.loads(n, C.lim)
    seq = []
    for j in range(5): seq.extend(correct(V, csV, j, True, V[0][j]))
    emit(C, merge(seq, (more(OPT["qe"]), 0, len(seq))))
    for j in range(5): P(f"ds_write_b128 {av_w2 if VCH[j] >= 8 else av_w}, {V[0][j]} offset:{(VCH[j]*8192) & 0xffff}")
    seq = []
    l0 = b2.loaded
    for j in range(5): seq.extend(correct(K, csK, j, True, K[0][j]))
    emit(C, merge(seq, (more(OPT["qe"]), 0, len(seq))))
    emit(C, b2.moves(l0))
    Vt = [R("a", C.abase - 20, 10), R("a", C.abase - 10, 10)]
    P("s_waitcnt lgkmcnt(0)"); b2.lgkm()
    for tt in range(2):
        for j in range(5): P(f"ds_read_b64_tr_b16 {Vt[tt][2*j:2*j+2]}, {av_r2 if VCH[j] >= 8 else av_r} offset:{((VCH[j]*8192) & 0xffff) + 8*tt}")
    seq = []
    for j in range(1, 5): seq.extend(correct(Q, csQ, j, False, Q[0][j]))
    emit(C, merge(seq, (more(OPT["qe"] - 1), 0, len(seq))))
    S0 = {j: K[1][j] for j in range(1, 5)}; S1 = {j: V[1][j] for j in range(1, 5)}
    rg = [f"v_cmp_eq_u32 vcc, 1, {g_}", f"v_cndmask_b32 {t[5]}, {ST[1][1]}, {ST[2][1]}, vcc", f"v_cmp_eq_u32 vcc, 2, {g_}", f"v_cndmask_b32 {t[5]}, {t[5]}, {ST[3][1]}, vcc",
          f"v_cmp_eq_u32 vcc, 3, {g_}", f"v_cndmask_b32 {t[5]}, {t[5]}, {ST[4][1]}, vcc", f"v_cmp_lt_u32 vcc, 31, {lane}"]
    seq = []
    for j in range(1, 5):
        seq.append(f"v_mfma_f32_16x16x32_bf16 {S0[j]}, {K[0][j-1]}, {Q[0][j]}, {cfirst if j == 1 else cprev}")
        seq.append(f"v_mfma_f32_16x16x32_bf16 {S1[j]}, {K[0][j]}, {Q[0][j]}, {ccur}")
    P.ext(merge(seq, (rg, 0, 8)))
    get_tag(C)
    P("s_waitcnt lgkmcnt(0)"); b2.release(20)
    emit(C, xtile(C))
    cq = f2h(28 ** -0.5 * math.log2(math.e))
    def softmax(a, b, tm):
        o = []
        X, Y = S0[a], S0[b]
        c, m1, m2 = tm[0], tm[1], tm[2]
        o.append(f"v_cndmask_b32 {c}, {ST[a][1]}, {ST[b][1]}, vcc")
        for r in range(4): o.append(f"v_max_f32 {X[r]}, {X[r]}, {S1[a][r]}")
        for r in range(4): o.append(f"v_max_f32 {Y[r]}, {Y[r]}, {S1[b][r]}")
        o.append(f"v_mul_f32 {c}, {cq}, {c}")
        for r in range(4): o.append(f"v_permlane32_swap_b32 {X[r]}, {Y[r]}")
        for r in range(4): o.append(f"v_max_f32 {X[r]}, {X[r]}, {Y[r]}")
        o.append(f"v_max3_f32 {m1}, {X[0]}, {X[1]}, {X[2]}")
        o.append(f"v_max_f32 {m1}, {m1}, {X[3]}")
        o.append(f"v_mov_b32 {m2}, {m1}")
        o.append(f"v_permlane16_swap_b32 {m1}, {m2}")
        o.append(f"v_max_f32 {m1}, {m1}, {m2}")
        o.append(f"v_mul_f32 {m1}, {m1}, {c}")
        for r in range(4): o.append(f"v_fma_f32 {X[r]}, {X[r]}, {c}, -{m1}")
        for r in range(4): o.append(f"v_exp_f32 {X[r]}, {X[r]}")
        o.append(f"v_add_f32 {m1}, {X[0]}, {X[1]}")
        o.append(f"v_add_f32 {m2}, {X[2]}, {X[3]}")
        o.append(f"v_add_f32 {m1}, {m1}, {m2}")
        o.append(f"v_mov_b32 {m2}, {m1}")
        o.append(f"v_permlane16_swap_b32 {m1}, {m2}")
        o.append(f"v_add_f32 {m1}, {m1}, {m2}")
        o.append(f"v_rcp_f32 {m1}, {m1}")
        for r in range(4): o.append(f"v_mul_f32 {X[r]}, {X[r]}, {m1}")
        o.append(f"v_cvt_pk_bf16_f32 {X[0]}, {X[0]}, {X[1]}")
        o.append(f"v_cvt_pk_bf16_f32 {X[1]}, {X[2]}, {X[3]}")
        o.append(f"v_mov_b32 {Y[0]}, {X[0]}")
        o.append(f"v_mov_b32 {Y[1]}, {X[1]}")
        o.append(f"v_permlane32_swap_b32 {X[0]}, {Y[0]}")
        o.append(f"v_permlane32_swap_b32 {X[1]}, {Y[1]}")
        for Zr in (X, Y):
            o.append(f"v_and_b32 {Zr[2]}, {Zr[0]}, {mcur[0]}")
            o.append(f"v_and_b32 {Zr[3]}, {Zr[1]}, {mcur[1]}")
            o.append(f"v_and_b32 {Zr[0]}, {Zr[0]}, {mprev[0]}")
            o.append(f"v_and_b32 {Zr[1]}, {Zr[1]}, {mprev[1]}")
        return o
    seq = []
    for x_, y_ in zip(softmax(1, 2, dg[1]), softmax(3, 4, dg[2])): seq += [x_, y_]
    l0 = b2.loaded
    emit(C, merge(seq, (more(OPT["qsm"]) + [poll_req(C)], 0, len(seq) * 2 // 3)))
    emit(C, b2.moves(l0))
    P("s_waitcnt lgkmcnt(0)"); b2.lgkm()
    O = [{j: Q[1][j] for j in range(1, 5)}, {j: V[1][j] for j in range(1, 5)}]
    for j in range(1, 5):
        for tt in range(2):
            P(f"v_mfma_f32_16x16x32_bf16 {O[tt][j]}, {Vt[tt][2*(j-1):2*(j-1)+4]}, {S0[j]}, 0")
    Z = {(tt, pr): K[0][2*tt+pr] for tt in range(2) for pr in range(2)}
    for pr in range(2):
        for tt in range(2):
            z = Z[tt, pr]
            for ii in range(2):
                o_ = O[tt][1 + 2*pr + ii]
                P(f"v_cvt_pk_bf16_f32 {z[2*ii]}, {o_[0]}, {o_[1]}\nv_cvt_pk_bf16_f32 {z[2*ii+1]}, {o_[2]}, {o_[3]}")
    for pr in range(2):
        for tt in range(2):
            z = Z[tt, pr]
            P(f"v_permlane16_swap_b32 {z[0]}, {z[2]}\nv_permlane16_swap_b32 {z[1]}, {z[3]}")
    def stores():
        for pr in range(2):
            for tt in range(2):
                P(f"buffer_store_dwordx4 {Z[tt, pr]}, {so}, {sWS}, {S['b1']} offen offset:{tt*2048 + pr*1024} sc1"); vm.issue(("st", 0))
        P(f"buffer_store_dword {t[5]}, {sr}, {sWS}, 0 offen sc1"); vm.issue(("st", 0))
    stamp(C, "epiend")
    stores()
    P("s_cmp_ge_u32 s2, 224\ns_cbranch_scc1 Q_FIN")
    q0 = list(vm.q); l0_ = len(P.l)
    P("Q_FIN:\ns_waitcnt vmcnt(0)\ns_barrier"); flag_store(C); P("s_endpgm")
    C.slow.append("\n".join(P.l[l0_:])); del P.l[l0_:]
    vm.q = q0
    b2.drain(99, C.lim)
    poll_check(C, "PF_Q", 3)
    stamp(C, "polled")
    for tt in range(OPT["LA"]): emit(C, aload(C, tt))
    return max(va.hi, phase2(C, b2, 0))

def page_pads(l, w):
    import subprocess, re, os
    def sizes(lines):
        src = '.amdgcn_target "amdgcn-amd-amdhsa--gfx950"\n.text\n' + "\n".join(f"LN{i}:\n{x}" for i, x in enumerate(lines)) + f"\nLN{len(lines)}:\n"
        open("_pp.s", "w").write(src)
        subprocess.run(["clang", "-x", "assembler", "-target", "amdgcn-amd-amdhsa", "-mcpu=gfx950", "-c", "_pp.s", "-o", "_pp.o"], check=True)
        out = subprocess.run(["llvm-objdump", "-t", "_pp.o"], capture_output=True, text=True).stdout
        ad = {}
        for x in out.split("\n"):
            m = re.match(r"([0-9a-f]+) .* LN(\d+)$", x)
            if m: ad[int(m.group(2))] = int(m.group(1), 16)
        return ad
    for role, start in (("F", "R_FFN:"), ("Q", "R_QKV:")):
        i = l.index(f"WARM_{role}:")
        l[i+1:i+1] = ["s_mov_b64 exec, 0", f"s_cmp_eq_u32 {w}, 0", f"s_cbranch_scc1 PAD{role}1", f"s_cmp_eq_u32 {w}, 1", f"s_cbranch_scc1 PAD{role}2",
                      f"s_cmp_eq_u32 {w}, 2", f"s_cbranch_scc1 PAD{role}3", f"s_branch PAD{role}4", f"BACK_{role}:", "s_mov_b64 exec, -1"]
    tmp = l + [f"PAD{r}{k}:" for r in "FQ" for k in range(1, 5)]
    ad = sizes(tmp)
    ins = []
    for role, start in (("F", "R_FFN:"), ("Q", "R_QKV:")):
        a = l.index(start); b = l.index(f"END_{role}:")
        base = ad[a + 1]; k = 1; masked = False; pos = []
        for i in range(a + 1, b):
            if not masked and ad[i] - base + 4 * len(pos) >= 4096 * k: pos.append(i); k += 1
            if l[i].startswith("s_mov_b64 exec,"): masked = not l[i].endswith("-1")
        n = len(pos)
        for k, i in enumerate(pos, 1): ins.append((i, [f"PAD{role}{k}:", f"s_cbranch_execz {f'PAD{role}{k+4}' if k + 4 <= n else f'BACK_{role}'}"]))
        for k in range(n + 1, 5): ins.append((l.index(f"BACK_{role}:"), [f"PAD{role}{k}:"]))
    for i, x in sorted(ins, key=lambda z: -z[0]): l[i:i] = x
    return l

def main():
    C = Ctx(); P = C.P = Prog()
    sa = Alloc("s", 3, 98); S = C.S = {}
    S['w'] = sa()
    C.ptr = sa(16, 4); C.wsp = sa(2); pc = sa(2)
    C.sX, C.sW, C.sWS, C.sB2, C.sBo, C.sD, C.sP = [sa(4) for _ in range(7)]
    C.mW, C.mH, C.mT, C.mU = sa(2), sa(2), sa(2), sa(2)
    C.tm = pc
    for n in "e rbl cb t0 t1 t2 kx kw wm0 xm0 b1 b2 hh half T cb2 bo bo_s bbeg bend sbeg send ri rr tb bm0 tag".split(): S[n] = sa()
    ns = 102
    assert sa.hi <= 90, sa.hi
    C.names = []; C.allnames = {}; C.slow = []
    dead = [C.ptr[i] for i in (2, 3, 4, 5, 6, 7, 8, 9, 10, 11, 14, 15)]
    C.kxs = [S['kx']] + dead[:6]; C.kws = [S['kw']] + dead[6:]
    C.lane = lane = R("v", 0)
    va = Alloc("v", 3, 256)
    t = C.t = [va() for _ in range(7)]
    C.vA = [va(), va()]; C.vB = [va(), va()]; C.rB = [[va(), va()] for _ in range(3)]; C.rP = [[va(), va()] for _ in range(3)]; C.vXd = va()
    C.vF, C.vZ, C.vN, C.vPF, C.vST, C.vFL = [va() for _ in range(6)]
    C.xd = xd = [va() for _ in range(4)]
    C.vbase = va.p
    C.abase = 96
    C.NA = OPT["LA"] + 1
    C.vring = 256 - 8 * C.NA
    C.aring = [[R("v", C.vring + 8*i + 4*j, 4) for j in range(2)] for i in range(C.NA)]
    na = 256
    pre = list(range(NPRE)) + list(range(14, 14 + NPRE))
    order = [i for i in range(28) if i not in pre] + pre
    C.breg = [[R("a", 8*order.index(i), 4), R("a", 8*order.index(i) + 4, 4)] for i in range(28)]
    w = S['w']
    P(f"{NAME}_kernel:")
    stamp(C, "start")
    if OPT["spin"]: P("s_memrealtime s[98:99]")
    P("s_cmp_ge_u32 s2, 256\ns_cbranch_scc1 K_END")
    P(f"s_load_dwordx16 {C.ptr}, s[0:1], 0\ns_load_dwordx2 {C.wsp}, s[0:1], 64")
    P(f"s_getpc_b64 {pc}\ns_lshr_b32 {S['t0']}, s2, 3\ns_lshl_b32 {S['t0']}, {S['t0']}, 11\nv_lshl_add_u32 v1, v0, 3, {S['t0']}\nglobal_load_dword v2, v1, {pc}")
    P(f"v_lshrrev_b32 v1, 6, v0\nv_and_b32 v0, 63, v0\nv_readfirstlane_b32 {w}, v1")
    P(f"s_bfe_u32 {S['e']}, s2, 0x10002\ns_bfe_u32 {S['rbl']}, s2, 0x30003")
    P(f"s_and_b32 {S['t0']}, s2, 3\ns_lshl_b32 {S['t0']}, {S['t0']}, 1\ns_bfe_u32 {S['t1']}, s2, 0x10006\ns_add_u32 {S['cb']}, {S['t0']}, {S['t1']}")
    if OPT["rot"] and not OPT["com"]:
        P(f"s_lshr_b32 {S['t0']}, s2, 7\ns_lshl_b32 {S['t0']}, {S['t0']}, 1\ns_add_u32 {S['t0']}, {S['t0']}, {S['rbl']}\ns_add_u32 {S['t0']}, {S['t0']}, {S['cb']}")
        P(f"s_mul_i32 {S['t1']}, {S['t0']}, 37\ns_lshr_b32 {S['t1']}, {S['t1']}, 8\ns_mul_i32 {S['t1']}, {S['t1']}, 7\ns_sub_u32 {S['t0']}, {S['t0']}, {S['t1']}")
    else:
        P(f"s_mov_b32 {S['t0']}, 0")
    P(f"s_lshl_b32 {S['kx']}, {S['t0']}, 7\ns_mul_i32 {S['t2']}, {S['e']}, 896")
    P(f"s_lshl_b32 {S['t0']}, {S['rbl']}, 7\ns_lshl_b32 {S['t1']}, {w}, 5\ns_add_u32 {S['t0']}, {S['t0']}, {S['t1']}")
    P(f"v_lshrrev_b32 {t[4]}, 3, {lane}\nv_add_u32 {t[0]}, {S['t0']}, {t[4]}\nv_mul_u32_u24 {t[0]}, 1792, {t[0]}")
    P(f"v_lshrrev_b32 {t[1]}, 4, {lane}\nv_and_b32 {t[5]}, 7, {lane}\nv_xor_b32 {t[2]}, {t[1]}, {t[5]}")
    P(f"v_lshl_add_u32 {xd[0]}, {t[2]}, 4, {t[0]}")
    P(f"v_xor_b32 {t[3]}, 64, {xd[0]}\nv_add_u32 {xd[1]}, {8*1792 - 1024}, {t[3]}\nv_add_u32 {xd[2]}, {16*1792 - 2048}, {xd[0]}\nv_add_u32 {xd[3]}, {24*1792 - 3072}, {t[3]}")
    P(f"s_and_b32 {S['hh']}, {w}, 1\ns_lshr_b32 {S['half']}, {w}, 1\ns_lshl_b32 {S['b1']}, {S['hh']}, 2\ns_lshl_b32 {S['xm0']}, {w}, 12")
    P("s_cmp_lt_u32 s2, 128\ns_cbranch_scc1 H_FFN")
    rq = qkv_head(C)
    P("s_branch R_QKV\nH_FFN:")
    rf = ffn_head(C)
    if OPT["pads"]: P("s_branch R_FFN\n.p2align 12")
    P("R_FFN:")
    nv1 = ffn_body(C, rf)
    P("END_F:")
    if OPT["pads"]: P(".p2align 12")
    P("R_QKV:"); C.names = C.names[:1]
    nv2 = qkv_body(C, rq)
    P("END_Q:")
    for x in C.slow: P(x)
    P("K_END:\ns_endpgm")
    l, npad = pad_hazards(P.l)
    if OPT["pads"]: l = page_pads(l, w)
    out = [f"; generated by gen10.py {OPT} (hazard pads {npad})",
           f"; stamps {C.allnames}",
           "; @launch grid=(256,1,1) block=(256,1,1) lds=163840",
           '.amdgcn_target "amdgcn-amd-amdhsa--gfx950"\n.text',
           f".globl {NAME}_kernel\n.p2align 8\n.type {NAME}_kernel,@function"]
    out.extend(l)
    out.append(".fill 8192, 4, 0xbf800000")
    out.append(kernel_desc(f"{NAME}_kernel", max(nv1, nv2), na, ns))
    print("\n".join(out))
main()
```

```python
import sys, math, struct
from asmlib import *

NAME = "recurrent_scan__sliding_local_dilated__dense_activation_relu__prompt"
OPT = dict(rot=1, pro=20, rate=8, LA=6, RX=27, CK=32, R1=16, stamps=0, b2start=9, b2rate=4, qrate=8, mlag=3, TB=30, fe_per=22, pfm=2, rot2=2, post=4, spin=0, qe=3, pr=5, gsp=2, xst=1, gat=9, npl=1, fine=0, enc='', encwg=0,
           fearly=1, fstart=7, qearly=1, qstart=7, nreg=17, late=0, npre=4, pmv=12, pads=1, wpos=4, gck=2, fepi=0, qsm=5, ntx=0, ntw=0, first=8, com=0, pfs=0, slp=0, rots=1, ahead=2, slack=3, sp2=1, stfirst=1, rotm=7, rotk=1)
for a in sys.argv[1:]:
    k, v = a.split("="); assert k in OPT, k; OPT[k] = int(v) if k != "enc" else v

f2h = lambda x: hex(struct.unpack("<I", struct.pack("<f", x))[0])
NT2 = 36
A2_KS = 144
RSTD_OFF = 2048 * A2_KS * 32
FLAG_OFF = RSTD_OFF + 8 * 8192
SCOL_OFF = FLAG_OFF + 256 * 128
SROW_OFF = SCOL_OFF + 16 * 16384
XF_OFF = SROW_OFF + 16 * 16384
WS_USED = XF_OFF + 224 * 4 * 3072
STAMP_OFF = 16 << 20
WS_REC = (STAMP_OFF + (1 << 20)) if (OPT["stamps"] or OPT["spin"]) else WS_USED
XBYTES = 2048 * 896
NTX = " nt" if OPT["ntx"] else ""; NTW = " nt" if OPT["ntw"] else ""
ONES = "0x3f803f80"; NINF = "0xff800000"; BIG = "0x80000000"
NB = 22
NPRE = OPT["npre"]
assert OPT["late"] + NPRE >= 3 and NPRE % 2 == 0
REL = {"F": [12, 12, 13, 13, 10, 10, 11, 11, 13, 13, 9, 9, 11, 11] + [-1] * 6,
       "Q": [20, 20, 20, 9, 11, 11, 12, 12, 20, 20, 10, 11, 11, -1] + [-1] * 6}
XCH = 19
SPIN_MAX = 1 << 16

def srd(P, d, lo, hi, n):
    P(f"s_mov_b32 {d[0]}, {lo}\ns_mov_b32 {d[1]}, {hi}\ns_mov_b32 {d[2]}, {n}\ns_mov_b32 {d[3]}, 0x20000")

class Cnt:
    def __init__(self, name, mx): self.q = []; self.name = name; self.mx = mx
    def issue(self, tag): self.q.append(tag)
    def cnt(self, pred):
        last = -1
        for i, t in enumerate(self.q):
            if pred(t): last = i
        return min(len(self.q) - 1 - last, self.mx)
    def wait(self, pred): return f"s_waitcnt {self.name}({self.cnt(pred)})"

class Ctx: pass
class Lazy:
    def __init__(self, fn, ty="s"): self.fn = fn; self.ty = ty
def emit(C, seq):
    for x in seq: C.P(x.fn() if isinstance(x, Lazy) else x)
def vop(C, tag, text):
    def f():
        C.vm.issue(tag); return text
    return Lazy(f, types_of(text))
def lop(C, tag, text):
    def f():
        C.lg.issue(tag); return text
    return Lazy(f, types_of(text))

def stamp(C, name):
    if OPT["enc"] == name: C.P("s_memrealtime s[100:101]")
    if not OPT["stamps"]: return
    i = len(C.names); C.names.append(name)
    if i and OPT["fine"] == 1 and name in ("tb",): C.P("s_nop 15\ns_nop 15")
    if i: C.P(f"v_writelane_b32 {C.vST}, s{90 + 2*((i-1)&1)}, {i-1}")
    C.P(f"{'s_memrealtime' if OPT['stamps'] == 1 else 's_memtime'} s[{90 + 2*(i&1)}:{91 + 2*(i&1)}]")

def stamp_flush(C):
    if not OPT["stamps"]: return
    P, S = C.P, C.S
    i = len(C.names)
    P(f"s_waitcnt lgkmcnt(0)\nv_writelane_b32 {C.vST}, s{90 + 2*((i-1)&1)}, {i-1}")
    P(f"s_lshl_b32 {S['t0']}, s2, 2\ns_add_u32 {S['t0']}, {S['t0']}, {S['w']}\ns_lshl_b32 {S['t0']}, {S['t0']}, 8\ns_add_u32 {S['t0']}, {S['t0']}, {STAMP_OFF}")
    P(f"v_lshl_add_u32 v1, v0, 2, {S['t0']}\nbuffer_store_dword {C.vST}, v1, {C.sWS}, 0 offen")
    C.allnames[C.role] = list(C.names)

def itype(line):
    op = line.split()[0]
    if op.endswith(":"): return ""
    if op.startswith("ds_write"): return "W"
    if op.startswith("ds_"): return "t"
    if op.startswith(("buffer_", "global_")): return "m"
    if op.startswith(("v_exp", "v_rcp", "v_rsq", "v_permlane")): return "T"
    if op.startswith("v_"): return "v"
    return "s"
def types_of(it):
    if isinstance(it, Lazy): return it.ty
    return "".join(itype(x) for x in it.split("\n"))
def gap_end(ty):
    t = 4; prev = ""; pstart = 0
    for c in ty:
        if c == "s": t += 4
        elif c in "vT": t = max(t, 8) + (4 if c == "v" else 8)
        else:
            st = t
            if prev in ("v", "T"): st = t + 4
            elif prev in ("t", "m", "W") and (prev == "m") != (c == "m"): st = pstart + 4
            pstart = st; t = st + (8 if c != "W" else 24)
        prev = c
    return t
def spread(main, *streams, clk=16):
    n = len(main)
    qs = []
    for items, a, b in streams:
        k = len(items)
        qs.append([(a * n + (i + 0.5) * (b - a) * n / max(k, 1), it, types_of(it)) for i, it in enumerate(items)])
    out = []
    for g, m in enumerate(main):
        out.append(m)
        ty = "".join(itype(x) for x in m.split("\n")[1:])
        while True:
            cand = [q for q in qs if q and (q[0][0] <= g + OPT["ahead"] or g == n - 1)]
            last_m0 = isinstance(out[-1], str) and " m0," in out[-1].split("\n")[-1]
            fit = [q for q in cand if gap_end(ty + ("s" if last_m0 and q[0][2][:1] == "m" else "") + q[0][2]) <= clk]
            if not fit:
                fit = [q for q in cand if g == n - 1 or (ty == "" and q[0][0] <= g + 1) or q[0][0] <= g - OPT["slack"]]
                if not fit: break
            pr = lambda q: ({"t": 0, "m": 0, "W": 0, "s": 1}.get(q[0][2][:1], 2) if q[0][0] <= g + 1 else 3, q[0][0])
            q = min(fit, key=pr)
            out.append(q[0][1]); ty += q[0][2]; q.pop(0)
    return out

def adv(reg, step, wrap, start=0):
    return f"s_add_u32 {reg}, {reg}, {step}\ns_cmp_eq_u32 {reg}, {wrap}\ns_cselect_b32 {reg}, {start}, {reg}"

def schedule(items, pro, rate, nsteps):
    sched = {s: [] for s in range(-1, nsteps)}
    i = 0
    for s in range(-1, nsteps):
        cap = pro if s == -1 else rate
        n = 0
        while i < len(items) and items[i]["free"] <= s and (n < cap or items[i]["need"] - 2 <= s):
            sched[s].append(i); i += 1; n += 1
    assert i == len(items)
    return sched

class B2:
    def __init__(self, C):
        self.C = C; self.loaded = 0
        rel = REL[C.role]
        self.pend = sorted((rel[i], i) for i in range(20) if i != XCH)
        self.free = []; self.ch = {}
        self.xchunk = XCH
    def release(self, step):
        while self.pend and self.pend[0][0] <= step: self.free.append(self.pend.pop(0)[1])
    def lgkm(self): pass
    def moves(self, *a): return []
    def win(self, t):
        b = self.ch[t] * 8192
        return (b >> 16, b & 0xffff)
    def dma(self, t):
        C = self.C; S = C.S
        if t < 14: sB = C.sB2; so = S['bo']; post = f"s_add_u32 {so}, {so}, 14336" if (t & 1) == 0 else adv(so, 14336, S['bend'], S['bbeg'])
        else: sB = C.sBo; so = S['bo_s']; post = f"s_add_u32 {so}, {so}, {16 * 896}" if (t & 1) == 0 else adv(so, 12 * 896, S['send'], S['sbeg'])
        out = [f"s_add_u32 m0, {S['bm0']}, {self.ch[t] * 8192}"]
        for j in range(2):
            out.append(vop(C, ("b2", t), f"buffer_load_dwordx4 {C.vB[j]}, {sB}, {so} offen offset:{j*1024} lds"))
        pl = post.split("\n")
        out.append(pl[0])
        if len(pl) > 1: out.append("\n".join(pl[1:]))
        return out
    def tr(self, t, dst, regs):
        win, off = self.win(t); rb = regs[win]
        o = []
        for f in range(2):
            o.append(f"ds_read_b64_tr_b16 {dst[f][0:2]}, {rb[f]} offset:{off}")
            o.append(f"ds_read_b64_tr_b16 {dst[f][2:4]}, {rb[f]} offset:{off + 512}")
        return o
    def next_load(self, lim=NB):
        if self.loaded < lim and self.free:
            self.ch[self.loaded] = self.free.pop(0); self.loaded += 1
            return self.dma(self.loaded - 1)
        return None
    def loads(self, n, lim=NB):
        o = []
        for _ in range(n):
            x = self.next_load(lim)
            if x is None: break
            o.extend(x)
        return o
    def drain(self, n, lim):
        emit(self.C, self.loads(n, lim))

def p2_setup(C):
    P, S, t, lane, w = C.P, C.S, C.t, C.lane, C.S['w']
    P(f"s_bfe_u32 {S['t0']}, s2, 0x20001\ns_lshl_b32 {S['t0']}, {S['t0']}, 2\ns_bfe_u32 {S['ri']}, s2, 0x20003\ns_add_u32 {S['t0']}, {S['t0']}, {S['ri']}\ns_lshl_b32 {S['t0']}, {S['t0']}, 1")
    P(f"s_and_b32 {S['t2']}, s2, 1\ns_add_u32 {S['T']}, {S['t0']}, {S['t2']}\ns_lshr_b32 {S['cb2']}, s2, 5")
    G = max(OPT["rot2"], 1)
    tab = sum(((c % G) * 7 // G) << (4 * c) for c in range(8))
    P(f"s_lshl_b32 {S['t0']}, {S['cb2']}, 2\ns_lshr_b32 {S['t0']}, {tab}, {S['t0']}\ns_and_b32 {S['t0']}, {S['t0']}, 15\ns_lshl_b32 {S['t1']}, {S['ri']}, 1\ns_add_u32 {S['t0']}, {S['t0']}, {S['t1']}")
    P(f"s_sub_u32 {S['t1']}, {S['t0']}, 7\ns_cmp_ge_u32 {S['t0']}, 7\ns_cselect_b32 {S['rr']}, {S['t1']}, {S['t0']}")
    P(f"s_lshl_b32 {S['t2']}, {S['t2']}, 2\ns_add_u32 {S['t2']}, {S['t2']}, {w}")
    P(f"s_mul_i32 {S['bbeg']}, {S['t2']}, {14*14336}\ns_add_u32 {S['bend']}, {S['bbeg']}, {14*14336}\ns_mul_i32 {S['t1']}, {S['rr']}, {2*14336}\ns_add_u32 {S['bo']}, {S['bbeg']}, {S['t1']}")
    P(f"s_mul_i32 {S['sbeg']}, {w}, {112*896}\ns_add_u32 {S['send']}, {S['sbeg']}, {112*896}\ns_mul_i32 {S['t1']}, {S['ri']}, {28*896}\ns_add_u32 {S['bo_s']}, {S['sbeg']}, {S['t1']}")
    P(f"s_xor_b32 {S['t0']}, {S['T']}, 1\ns_mul_i32 {S['t0']}, {S['t0']}, {A2_KS}\ns_add_u32 {S['t0']}, {S['t0']}, 32\ns_lshl_b32 {S['t0']}, {S['t0']}, 1\ns_add_u32 {S['t0']}, {S['t0']}, {S['hh']}\ns_lshl_b32 {S['t0']}, {S['t0']}, 10")
    P(f"v_lshl_add_u32 {t[0]}, {lane}, 4, {S['t0']}\ns_mul_i32 {S['t1']}, {S['t2']}, {14*2048}\nv_add_u32 {C.vA[0]}, {S['t1']}, {t[0]}\ns_xor_b32 {S['t1']}, {S['t2']}, 1\ns_mul_i32 {S['t1']}, {S['t1']}, {14*2048}\nv_add_u32 {C.vA[1]}, {S['t1']}, {t[0]}")
    P(f"v_lshrrev_b32 {t[0]}, 3, {lane}\nv_mul_u32_u24 {t[0]}, 896, {t[0]}\nv_bfe_u32 {t[1]}, {lane}, 4, 1\nv_lshlrev_b32 {t[1]}, 2, {t[1]}\nv_and_b32 {t[2]}, 7, {lane}\nv_xor_b32 {t[1]}, {t[1]}, {t[2]}")
    P(f"s_lshl_b32 {S['t1']}, {S['cb2']}, 7\nv_lshl_add_u32 {t[0]}, {t[1]}, 4, {t[0]}\nv_add_u32 {C.vB[0]}, {S['t1']}, {t[0]}\nv_add_u32 {C.vB[1]}, {7168 - 1024}, {C.vB[0]}")
    P(f"s_lshl_b32 {S['bm0']}, {w}, 11")
    P(f"s_cmp_lt_u32 s2, 224\ns_cselect_b32 {S['t0']}, {1792*896}, 0\ns_cselect_b32 {S['t1']}, {448*896}, 0")
    srd(P, C.sB2, C.ptr[10], C.ptr[11], S['t0'])
    srd(P, C.sBo, C.ptr[4], C.ptr[5], S['t1'])
    P(f"s_lshl_b32 {S['t1']}, {S['half']}, 6")
    P(f"v_bfe_u32 {t[0]}, {lane}, 2, 2\nv_lshrrev_b32 {t[1]}, 5, {lane}\nv_lshl_add_u32 {t[0]}, {t[1]}, 3, {t[0]}\nv_lshlrev_b32 {t[0]}, 7, {t[0]}")
    P(f"v_bfe_u32 {t[1]}, {lane}, 3, 1\nv_lshl_add_u32 {t[0]}, {t[1]}, 6, {t[0]}\nv_bfe_u32 {t[1]}, {lane}, 4, 1\nv_lshl_add_u32 {t[0]}, {t[1]}, 5, {t[0]}")
    P(f"v_and_b32 {t[1]}, 3, {lane}\nv_lshl_add_u32 {t[0]}, {t[1]}, 3, {t[0]}\nv_xor_b32 {t[0]}, {S['t1']}, {t[0]}")
    P(f"v_add_u32 {C.rB[0][0]}, {S['bm0']}, {t[0]}\nv_xor_b32 {C.rB[0][1]}, 64, {C.rB[0][0]}")
    for i in (1, 2): P(f"v_add_u32 {C.rB[i][0]}, {65536*i}, {C.rB[0][0]}\nv_add_u32 {C.rB[i][1]}, {65536*i}, {C.rB[0][1]}")
    for i in range(3):
        for j in range(2): P(f"v_xor_b32 {C.rP[i][j]}, 2048, {C.rB[i][j]}")
    P(f"s_and_b32 {S['t0']}, {S['T']}, 15\ns_mul_i32 {S['t0']}, {S['t0']}, {64*1792}\ns_lshr_b32 {S['t1']}, {S['T']}, 4\ns_mul_i32 {S['t1']}, {S['t1']}, 896\ns_add_u32 {S['t0']}, {S['t0']}, {S['t1']}")
    P(f"s_lshl_b32 {S['t1']}, {S['cb2']}, 7\ns_add_u32 {S['tb']}, {S['t0']}, {S['t1']}\ns_mul_i32 {S['t0']}, {w}, {16*1792}\ns_add_u32 {S['t0']}, {S['t0']}, {S['tb']}")
    P(f"v_lshrrev_b32 {t[0]}, 3, {lane}\nv_and_b32 {t[1]}, 7, {lane}\nv_xor_b32 {t[1]}, {t[0]}, {t[1]}\nv_mul_u32_u24 {t[0]}, 1792, {t[0]}\nv_lshl_add_u32 {t[0]}, {t[1]}, 4, {t[0]}\nv_add_u32 {C.vXd}, {S['t0']}, {t[0]}")
    P(f"s_lshr_b32 {S['t0']}, {S['T']}, 4\ns_lshl_b32 {S['t0']}, {S['t0']}, 2\ns_bfe_u32 {S['t1']}, {S['T']}, 0x30001\ns_lshl_b32 {S['t1']}, {S['t1']}, 3\ns_add_u32 {S['t0']}, {S['t0']}, {S['t1']}")
    P(f"s_lshl_b32 {S['t0']}, {S['t0']}, 7\ns_add_u32 {S['t0']}, {S['t0']}, {FLAG_OFF}\nv_and_b32 {t[0]}, 1, {lane}\nv_lshl_add_u32 {C.vF}, {t[0]}, 13, {S['t0']}")
    P(f"s_lshr_b32 {S['t2']}, {S['t2']}, 1\ns_lshl_b32 {S['t2']}, {S['t2']}, 7\ns_lshl_b32 {S['t1']}, {w}, 7\ns_add_u32 {S['t1']}, {S['t1']}, 16384")
    P(f"v_mov_b32 {t[0]}, {S['t2']}\nv_mov_b32 {t[1]}, {S['t1']}\nv_cmp_lt_u32 vcc, 1, {lane}\nv_cndmask_b32 {t[0]}, {t[0]}, {t[1]}, vcc")
    P(f"v_xor_b32 {t[1]}, 128, {t[1]}\nv_cmp_lt_u32 vcc, 3, {lane}\nv_cndmask_b32 {t[0]}, {t[0]}, {t[1]}, vcc\nv_add_u32 {C.vF}, {C.vF}, {t[0]}")
    P(f"v_mov_b32 {t[0]}, {BIG}\nv_cmp_lt_u32 vcc, 5, {lane}\nv_cndmask_b32 {C.vF}, {C.vF}, {t[0]}, vcc")
    srd(P, C.sD, C.ptr[14], C.ptr[15], 256)
    P(f"v_mov_b32 {C.vZ}, 0")
    if OPT["pfm"] == 2 and C.role == "Q":
        P(f"s_sub_u32 {S['t0']}, s2, 224\ns_lshl_b32 {S['t0']}, {S['t0']}, 2\ns_add_u32 {S['t0']}, {S['t0']}, {w}\ns_sub_u32 {S['t1']}, {S['t0']}, 98\ns_cmp_lt_u32 {S['t0']}, 98\ns_cselect_b32 {S['t0']}, {S['t0']}, {S['t1']}")
        P(f"s_cselect_b32 {C.sP[0]}, {C.ptr[10]}, {C.ptr[4]}\ns_cselect_b32 {C.sP[1]}, {C.ptr[11]}, {C.ptr[5]}\ns_mov_b32 {C.sP[2]}, {448*896}\ns_cselect_b32 {C.sP[2]}, {1792*896}, {C.sP[2]}\ns_mov_b32 {C.sP[3]}, 0x20000")
        P(f"s_cmp_lt_u32 s2, 224\ns_cselect_b32 {C.sP[2]}, 0, {C.sP[2]}\ns_cselect_b32 {S['t0']}, 0, {S['t0']}")
        P(f"s_lshl_b32 {S['t0']}, {S['t0']}, 14\nv_lshl_add_u32 {C.vPF}, {lane}, 8, {S['t0']}")

def a_tables(C):
    S = C.S; o = [f"s_lshl_b32 {C.kxs[0]}, {S['rr']}, 12"]
    for d in range(1, 7): o += [f"s_add_u32 {C.kxs[d]}, {C.kxs[d-1]}, 4096", f"s_cmp_eq_u32 {C.kxs[d]}, {7*4096}\ns_cselect_b32 {C.kxs[d]}, 0, {C.kxs[d]}"]
    o.append(f"s_lshl_b32 {C.kws[1]}, {S['ri']}, 12")
    for d in range(1, 4): o += [f"s_add_u32 {C.kws[1+d]}, {C.kws[d]}, 4096", f"s_and_b32 {C.kws[1+d]}, {C.kws[1+d]}, 0x3fff"]
    return o

def run_loop(C, emit_item, sched, reads, mfmas, b2, early, estart, nsteps=14, hook=None, nonce_at=6, rate2=8):
    P, S, vm = C.P, C.S, C.vm
    if OPT["pfm"] == 2 and C.role == "Q" and OPT["pfs"] < 0:
        for j in range(2): vm.issue(("pf", 0)); P(f"buffer_load_dword v2, {C.vPF}, {C.sP}, 0 offen offset:{128*j}")
    P(vm.wait(lambda q: q[0] == "d" and q[1] <= 0) + " lgkmcnt(0)")
    P("s_barrier")
    stamp(C, "d0")
    P.ext(reads(0))
    hist = {}
    for s in range(nsteps):
        pm = NPRE and s == OPT["pmv"]
        if pm: assert b2.loaded >= NPRE
        if s + 1 < nsteps: P(vm.wait(lambda q: (q[0] == "d" and q[1] <= s + 1) or (pm and q[0] == "b2" and q[1] < NPRE)) + " lgkmcnt(0)")
        else: P("s_waitcnt lgkmcnt(0)")
        P("s_barrier")
        if s in (1, 2, 4, 7, 10, 13) or (OPT["fine"] == 2 and s >= 1): stamp(C, f"s{s}")
        m = mfmas(s)
        rd = reads(s + 1) if s + 1 < nsteps else []
        dm = []; C.m0 = None
        for i in sched[s]: dm.extend(emit_item(i))
        if OPT["pfm"] == 2 and C.role == "Q" and s == OPT["pfs"]:
            dm = [vop(C, ("pf", 0), f"buffer_load_dword v2, {C.vPF}, {C.sP}, 0 offen offset:{128*j}") for j in range(2)] + dm
        if s == nonce_at: dm.insert(0, vop(C, ("nonce", 0), f"buffer_load_dword {C.vN}, {C.vZ}, {C.sD}, 0 offen sc1"))
        mv = []
        b2.release(s)
        if NPRE and s == OPT["pmv"] + 1: b2.free += [b2.ch[t_] for t_ in range(NPRE)]
        if NPRE and s == OPT["pmv"] - 1:
            assert b2.loaded >= NPRE
            mv = [Lazy(lambda: vm.wait(lambda q: q[0] == "b2" and q[1] < NPRE))] + [x for t_ in range(NPRE) for x in b2.tr(t_, C.breg[t_], C.rB)]
        if pm: mv = [x for t_ in range(NPRE) for x in b2.tr(t_, C.breg[14 + t_], C.rP)]
        if s >= estart:
            n = sum(1 for x in dm if isinstance(x, Lazy))
            k = max((rate2 + 1 - n) // 2, early) if s >= OPT["b2start"] else early
            dm.extend(b2.loads(k, C.lim))
        hist[s] = b2.loaded
        ex = hook(s) if hook else []
        if s == nsteps - 1: ex = ex + a_tables(C)
        emit(C, spread(m, (rd, 0, 0.8), (dm, 0, 0.95), (mv, 0.3, 0.9), (ex, 0.05, 0.95)))
    C.hist = hist
    stamp(C, "loopend")

def get_tag(C):
    P, S, role = C.P, C.S, C.role
    P(C.vm.wait(lambda q: q[0] == "nonce"))
    P(f"v_readfirstlane_b32 {S['tag']}, {C.vN}\ns_cmp_eq_u32 {S['tag']}, 0\ns_cbranch_scc1 TAGSL_{role}\nTAGOK_{role}:")
    C.slow.append(f"TAGSL_{role}:\ns_mov_b32 {S['t2']}, 0\nTAGLP_{role}:\nbuffer_load_dword {C.vN}, {C.vZ}, {C.sD}, 0 offen sc1\ns_waitcnt vmcnt(0)\nv_readfirstlane_b32 {S['tag']}, {C.vN}\ns_add_u32 {S['t2']}, {S['t2']}, 1\n"
                  f"s_cmp_ge_u32 {S['t2']}, {SPIN_MAX}\ns_cbranch_scc1 TAGOK_{role}\ns_cmp_eq_u32 {S['tag']}, 0\ns_cbranch_scc1 TAGLP_{role}\ns_branch TAGOK_{role}")

def flag_store(C):
    P, S, t = C.P, C.S, C.t
    P(f"s_lshl_b32 {S['t0']}, s2, 7\ns_add_u32 {S['t0']}, {S['t0']}, {FLAG_OFF}\ns_cmp_eq_u32 {S['w']}, 0\ns_cselect_b32 {S['t0']}, {S['t0']}, {BIG}")
    P(f"v_mov_b32 {t[5]}, {S['t0']}\nv_mov_b32 {t[6]}, {S['tag']}\ns_mov_b64 exec, 1\nbuffer_store_dword {t[6]}, {t[5]}, {C.sWS}, 0 offen sc1\ns_mov_b64 exec, -1")
    C.vm.issue(("flag", 0))

def poll_req(C): return vop(C, ("pl", 0), f"buffer_load_dword {C.vFL}, {C.vF}, {C.sWS}, 0 offen sc1")
def poll_check(C, label, mask, first=True):
    P, S = C.P, C.S
    loop = (f"s_mov_b32 {S['t2']}, 0\n{label}:\nbuffer_load_dword {C.vFL}, {C.vF}, {C.sWS}, 0 offen sc1\ns_waitcnt vmcnt(0)\nv_cmp_eq_u32 vcc, {S['tag']}, {C.vFL}\ns_add_u32 {S['t2']}, {S['t2']}, 1\n"
            f"s_cmp_ge_u32 {S['t2']}, {SPIN_MAX}\ns_cbranch_scc1 {label}_X\ns_and_b32 {S['t0']}, vcc_lo, {mask}\ns_cmp_lg_u32 {S['t0']}, {mask}\ns_cbranch_scc1 {label}")
    if OPT["slp"]: loop = loop.replace(f"{label}:\nbuffer_load", f"s_branch {label}_F\n{label}:\ns_sleep {OPT['slp']}\n{label}_F:\nbuffer_load") if not first else loop.replace(f"{label}:\nbuffer_load", f"{label}:\ns_sleep {OPT['slp']}\nbuffer_load")
    if first:
        P(C.vm.wait(lambda q: q[0] == "pl"))
        P(f"v_cmp_eq_u32 vcc, {S['tag']}, {C.vFL}\ns_and_b32 {S['t0']}, vcc_lo, {mask}\ns_cmp_lg_u32 {S['t0']}, {mask}\ns_cbranch_scc1 {label}_S\n{label}_X:")
        C.slow.append(f"{label}_S:\n{loop}\ns_branch {label}_X")
    else:
        P(loop + f"\n{label}_X:")

def xtile(C):
    S = C.S
    o = [f"s_mov_b32 {C.sX[0]}, {C.ptr[0]}\ns_mov_b32 {C.sX[1]}, {C.ptr[1]}\ns_mov_b32 {C.sX[2]}, {XBYTES}\ns_mov_b32 {S['t1']}, {8*1792 - 1024}\ns_add_u32 m0, {S['bm0']}, {XCH*8192}"]
    return o + [vop(C, ("e", 0), f"buffer_load_dwordx4 {C.vXd}, {C.sX}, {S['t1'] if j else 0} offen offset:{1024*j} lds") for j in range(2)]

def aload(C, tt):
    if tt < 28: seg = tt // 7; so = C.kxs[tt % 7]
    else: seg = 4 + (tt - 28) // 4; so = C.kws[1 + (tt - 28) % 4]
    return [vop(C, ("a", tt), f"buffer_load_dwordx4 {C.aring[tt % C.NA][j]}, {C.vA[seg]}, {C.sWS}, {so} offen offset:{2048*j} sc1") for j in range(2)]

def phase2(C, b2, flag_at):
    P, S, vm, t, lane, w = C.P, C.S, C.vm, C.t, C.lane, C.S['w']
    role = C.role; LA = OPT["LA"]; NA = C.NA; aring = C.aring
    lg = C.lg = Cnt("lgkmcnt", 15)
    va = Alloc("v", C.vbase, C.vring)
    acc = [[va(16, 4) for _ in range(2)] for _ in range(3)]
    G = va(12, 4)
    xv = [va(2) for _ in range(4)]; kk = va(2); vO = va(); vL = va(); Rr = va(8, 4)
    rstd, k1 = kk[0], kk[1]
    vXr = va(); vR = va(); vGs = va(); vGr = va(); wad = va(); rad = va()
    rP = C.rP
    C.vA = C.vA[:2] + [va() for _ in range(4)]
    breg = C.breg
    sb = [[[R("a", 224 + 16*p + 8*j + 4*f, 4) for f in range(2)] for j in range(2)] for p in range(2)]
    sO = C.sW
    n_, hf = t[3], t[4]
    su = []
    def U(s): su.extend(s.split("\n"))
    U(f"v_and_b32 {n_}, 31, {lane}\nv_lshrrev_b32 {hf}, 5, {lane}\nv_lshlrev_b32 {vL}, 4, {lane}")
    U(f"s_and_b32 {S['b1']}, {S['T']}, 1\ns_mul_i32 {S['b1']}, {S['b1']}, {2*A2_KS*2048}\ns_sub_u32 {S['b1']}, {S['b1']}, {A2_KS*2048}\nv_add_u32 {C.vA[2]}, {S['b1']}, {C.vA[0]}\nv_add_u32 {C.vA[3]}, {S['b1']}, {C.vA[1]}")
    U(f"s_mul_i32 {S['b1']}, {S['T']}, {2*A2_KS}\ns_add_u32 {S['b1']}, {S['b1']}, {S['hh']}\ns_lshl_b32 {S['b1']}, {S['b1']}, 10\nv_add_u32 {t[0]}, {S['b1']}, {vL}")
    U(f"s_lshl_b32 {S['b1']}, {w}, 14\nv_add_u32 {C.vA[4]}, {S['b1']}, {t[0]}\ns_xor_b32 {S['b1']}, {S['b1']}, 16384\nv_add_u32 {C.vA[5]}, {S['b1']}, {t[0]}")
    U(f"s_lshl_b32 {S['b1']}, s2, 2\ns_add_u32 {S['b1']}, {S['b1']}, {w}\ns_mul_i32 {S['b2']}, {S['b1']}, 3072\ns_add_u32 {S['b2']}, {S['b2']}, {XF_OFF}\nv_add_u32 {vGr}, {S['b2']}, {vL}")
    U(f"s_xor_b32 {S['b2']}, {S['b1']}, 4\ns_mul_i32 {S['b2']}, {S['b2']}, 3072\ns_add_u32 {S['b2']}, {S['b2']}, {XF_OFF}\nv_add_u32 {vGs}, {S['b2']}, {vL}")
    for g in range(3): U(f"v_mov_b32 {G[4*g+3]}, {S['tag']}")
    U(f"s_mov_b32 {sO[0]}, {C.ptr[12]}\ns_mov_b32 {sO[1]}, {C.ptr[13]}\ns_mov_b32 {sO[2]}, {XBYTES}")
    U(f"s_lshl_b32 {S['b2']}, {S['hh']}, 12\ns_add_u32 {S['b2']}, {S['b2']}, {XCH*8192}")
    U(f"v_lshlrev_b32 {t[0]}, 7, {n_}\nv_lshl_add_u32 {t[0]}, {hf}, 3, {t[0]}")
    U(f"s_lshl_b32 {S['wm0']}, {S['half']}, 2\nv_and_b32 {t[1]}, 7, {lane}\nv_xor_b32 {t[1]}, {S['wm0']}, {t[1]}\nv_lshl_add_u32 {t[0]}, {t[1]}, 4, {t[0]}\nv_add_u32 {vXr}, {S['b2']}, {t[0]}")
    U(f"s_mul_i32 {S['b2']}, {S['hh']}, {32*1792}\ns_add_u32 {S['b2']}, {S['b2']}, {S['tb']}\ns_lshl_b32 {S['wm0']}, {S['half']}, 6\ns_add_u32 {S['b2']}, {S['b2']}, {S['wm0']}")
    U(f"v_mul_u32_u24 {t[0]}, 1792, {n_}\nv_add_u32 {t[0]}, {S['b2']}, {t[0]}\nv_lshl_add_u32 {vO}, {hf}, 4, {t[0]}")
    U(f"s_lshl_b32 {S['b2']}, {S['T']}, 1\ns_add_u32 {S['b2']}, {S['b2']}, {S['hh']}\ns_lshl_b32 {S['b2']}, {S['b2']}, 7\ns_lshl_b32 {S['wm0']}, {w}, 14\ns_add_u32 {S['b2']}, {S['b2']}, {S['wm0']}\ns_add_u32 {S['b2']}, {S['b2']}, {RSTD_OFF}")
    U(f"v_lshl_add_u32 {vR}, {n_}, 2, {S['b2']}")
    assert b2.loaded >= 14
    w2ch = [b2.ch[t_] for t_ in range(NPRE, 14)]
    wn = max(range(3), key=lambda k: sum(1 for c in w2ch if c >> 3 == k))
    pch = [c for c in w2ch if c >> 3 == wn][:4]; assert len(pch) == 4
    U(f"s_add_u32 {S['b2']}, {S['bm0']}, {65536*wn}\nv_add_u32 {wad}, {S['b2']}, {vL}\nv_xor_b32 {rad}, 4096, {wad}")
    slot = lambda i, a: ((pch[2*i + (a >> 1)] * 8192) & 0xffff) + (a & 1) * 1024
    NSU = 13
    F, Fp = acc[1]; Sv, Sp = acc[2]; E, X = acc[0]
    gd = lambda k: G[4*(k // 3) + k % 3]
    gw = [lop(C, ("gw", 0), f"ds_write_b128 {wad}, {X[4*a:4*a+4]} offset:{slot(1, a)}") for a in range(4)]
    gr = [lop(C, ("gr", 0), f"ds_read_b128 {X[4*a:4*a+4]}, {rad} offset:{slot(1, a)}") for a in range(4)]
    gs = [Lazy(lambda: lg.wait(lambda q: q[0] == "gr"))]
    for k in range(8):
        gs += [f"v_add_f32 {E[r]}, {E[r]}, {X[r]}" for r in (2*k, 2*k+1)] + [f"v_cvt_pk_bf16_f32 {gd(k)}, {E[2*k]}, {E[2*k+1]}"]
        if k in (2, 5, 7): gs.append(vop(C, ("xs", 0), f"buffer_store_dwordx4 {G[4*(k//3):4*(k//3) + 4]}, {vGs}, {C.sWS}, 0 offen offset:{1024*(k//3)} sc1"))
    gl = [f"buffer_load_dwordx4 {G[4*g:4*g+4]}, {vGr}, {C.sWS}, 0 offen offset:{1024*g} sc1" for g in range(3)]
    U(f"s_mov_b32 {S['b1']}, 0x3f80\ns_mov_b32 {S['b2']}, 0x3f800000")
    ck = [f"v_xor_b32 {G[4*g+3]}, {S['tag']}, {G[4*g+3]}" for g in range(3)] + [f"v_or3_b32 {G[3]}, {G[3]}, {G[7]}, {G[11]}", f"v_cmp_ne_u32 vcc, 0, {G[3]}"]
    C.slow.append(f"XG_S{role}:\ns_mov_b32 {S['t2']}, 0\nXG_L{role}:\n" + "\n".join(gl) + "\ns_waitcnt vmcnt(0)\n" + "\n".join(ck) +
                  f"\ns_add_u32 {S['t2']}, {S['t2']}, 1\ns_cmp_ge_u32 {S['t2']}, {SPIN_MAX}\ns_cbranch_scc1 XG_X{role}\ns_cmp_lg_u64 vcc, 0\ns_cbranch_scc1 XG_L{role}\ns_branch XG_X{role}")
    ck = [Lazy(lambda: vm.wait(lambda q: q[0] == "xl"))] + ck + [f"s_cmp_lg_u64 vcc, 0\ns_cbranch_scc1 XG_S{role}\nXG_X{role}:"]
    def fe_plain(a):
        o = [Lazy(lambda a=a: lg.wait(lambda q: q == ("fr", a)))]
        R_ = range(4*a, 4*a+4)
        o += [f"v_add_f32 {F[r]}, {F[r]}, {Fp[r]}" for r in R_]
        o += [(f"v_lshlrev_b32 {E[r]}, 16, {gd(r//2)}" if r % 2 == 0 else f"v_and_b32 {E[r]}, 0xffff0000, {gd(r//2)}") for r in R_]
        o += [f"v_add_f32 {F[r]}, {F[r]}, {E[r]}" for r in R_]
        o += [f"v_mul_f32 {E[r]}, {F[r]}, {k1}" for r in R_] + [f"v_exp_f32 {E[r]}, {E[r]}" for r in R_] + [f"v_mul_f32 {F[r]}, {F[r]}, {rstd}" for r in R_]
        o += [f"v_add_f32 {E[r]}, 1.0, {E[r]}" for r in R_] + [f"v_rcp_f32 {E[r]}, {E[r]}" for r in R_]
        o += [f"v_mul_f32 {F[r]}, {F[r]}, {E[r]}" for r in R_]
        return o
    def fe_pk(a):
        o = [Lazy(lambda a=a: lg.wait(lambda q: q == ("fr", a)))]
        R_ = range(4*a, 4*a+4); H = [slice(4*a, 4*a+2), slice(4*a+2, 4*a+4)]
        o += [f"v_pk_add_f32 {F[h]}, {F[h]}, {Fp[h]}" for h in H]
        o += [f"v_pk_mul_f32 {E[h]}, {F[h]}, {kk} op_sel:[0,1] op_sel_hi:[1,1]" for h in H]
        o += [f"v_exp_f32 {E[r]}, {E[r]}" for r in R_] + [f"v_pk_mul_f32 {F[h]}, {F[h]}, {kk} op_sel_hi:[1,0]" for h in H]
        o += [f"v_pk_add_f32 {E[h]}, {E[h]}, 1.0 op_sel_hi:[1,0]" for h in H] + [f"v_rcp_f32 {E[r]}, {E[r]}" for r in R_]
        o += [f"v_pk_mul_f32 {F[h]}, {F[h]}, {E[h]}" for h in H]
        return o
    NPL = OPT["npl"]
    fe1 = [x for a in range(NPL) for x in fe_plain(a)]
    fe2 = [f"v_dot2c_f32_bf16 {F[r]}, {S['b1'] if r % 2 == 0 else S['b2']}, {gd(r//2)}" for r in range(4*NPL, 16)] + [x for a in range(NPL, 4) for x in fe_pk(a)]
    fw = [lop(C, ("fw", 0), f"ds_write_b128 {wad}, {Fp[4*a:4*a+4]} offset:{slot(0, a)}") for a in range(4)]
    fr = [lop(C, ("fr", a), f"ds_read_b128 {Fp[4*a:4*a+4]}, {rad} offset:{slot(0, a)}") for a in range(4)]
    sw = [lop(C, ("sw", 0), f"ds_write_b128 {wad}, {Sp[4*a:4*a+4]} offset:{slot(1, a)}") for a in range(4)]
    sr = [lop(C, ("sr", a), f"ds_read_b128 {Sp[4*a:4*a+4]}, {rad} offset:{slot(1, a)}") for a in range(4)]
    xr = []
    for a in range(4): xr += [f"v_xor_b32 {t[0]}, {16*a}, {vXr}", lop(C, ("xr", 0), f"ds_read_b64 {xv[a]}, {t[0]}")]
    xu = [Lazy(lambda: lg.wait(lambda q: q[0] == "xr"))]
    for a in range(4):
        for h in range(2): xu += [f"v_lshlrev_b32 {X[4*a+2*h]}, 16, {xv[a][h]}", f"v_and_b32 {X[4*a+2*h+1]}, 0xffff0000, {xv[a][h]}"]
    TPOLL = 28 - LA - 4
    BV, BF, TB = 6 + NPRE // 2, 14, 30
    R1 = OPT['R1']
    RX, CK = OPT["RX"], OPT["CK"]
    def trs_for(tt):
        o = []
        for j in range(2):
            if tt < 14 and 2 * (tt % 7) < NPRE: continue
            if tt < 14: o += b2.tr(2 * (tt % 7) + j, breg[2*tt + j], C.rB if tt < 7 else rP)
            else: o += b2.tr(14 + 2 * ((tt - 28) & 3) + j, sb[tt & 1][j], C.rB if tt < 32 else rP)
        return [lop(C, ("tr", tt), y) for y in o]
    P(vm.wait(lambda q: q[0] == "b2" and q[1] <= 1) + " lgkmcnt(0)")
    emit(C, trs_for(0))
    for tt in range(NT2):
        nb = min(2 * tt + 3, 13) if tt < 27 else NB - 1
        assert nb < b2.loaded
        P(vm.wait(lambda q: q == ("a", tt) or (q[0] == "b2" and q[1] <= nb) or (tt == flag_at and q[0] == "st") or (tt == TB and q[0] == "e")))
        if tt in ((0, 7, 14, 21, 28) if OPT["fine"] != 1 else (0, 7, 14, 16, 21, 24, 26, 28, 29, 30, 31, 32, 33, 34, 35)): stamp(C, f"a{tt}")
        if tt == flag_at:
            P("s_barrier"); flag_store(C); stamp(C, "flag")
        if any(q == ("tr", tt) for q in lg.q): P(lg.wait(lambda q: q == ("tr", tt) or (tt == TB and q[0] == "fw")))
        if tt == R1: P(lg.wait(lambda q: q[0] == "gw"))
        if tt in (BV, BF, R1, TB): P("s_barrier")
        if tt == BF: b2.free += [c for c in w2ch if c not in pch]
        trs = trs_for(tt + 1) if (tt + 1 < 14 or 28 <= tt + 1 < NT2) else []
        ld = []; va_ = []
        if tt < NSU:
            k = len(su); va_ = su[tt * k // NSU:(tt + 1) * k // NSU]
        if tt == TPOLL: ld.append(poll_req(C))
        if tt + LA == 28:
            def chk():
                l0 = len(P.l); poll_check(C, f"PS_{role}", 60); x = "\n".join(P.l[l0:]); del P.l[l0:]; return x
            ld.append(Lazy(chk, "svsss"))
            ld.append(vop(C, ("e", 0), f"buffer_load_dword {rstd}, {vR}, {C.sWS}, 0 offen sc1"))
        if tt + LA < NT2: ld.extend(aload(C, tt + LA))
        if tt >= 17 or (tt < 14 and tt % 2 == 1): ld.extend(b2.loads(1))
        if 14 <= tt < R1: va_ = gw[(tt - 14) * 4 // (R1 - 14):(tt - 13) * 4 // (R1 - 14)]
        if tt == R1: va_ = gr
        if R1 < tt <= R1 + 3: va_ = gs[(tt - R1 - 1) * len(gs) // 3:(tt - R1) * len(gs) // 3]
        if tt == RX: ld += [vop(C, ("xl", 0), x) for x in gl]
        if tt in (28, 29): va_ = fw[(tt - 28) * 2:(tt - 27) * 2]
        if tt == TB: va_ = [f"v_mul_f32 {k1}, {f2h(-math.log2(math.e))}, {rstd}"] + fr + xr
        if tt == TB + 1: va_ = va_ + xu
        if tt == CK: va_ = va_ + ck
        if tt > CK:
            k = len(fe1); i = tt - CK - 1; nn = NT2 - 1 - CK; va_ = va_ + fe1[i * k // nn:(i + 1) * k // nn]
        ps = 0 if tt < 14 else (1 if tt < 28 else 2)
        last = tt in (13, 27, 35)
        order = ((1, 0), (0, 0), (1, 1), (0, 1)) if not last else ((1, 0), (1, 1), (0, 0), (0, 1))
        Bf = (lambda j, f: breg[2*(tt % 14) + j][f]) if tt < 28 else (lambda j, f: sb[tt & 1][j][f])
        m = [f"v_mfma_f32_32x32x16_bf16 {acc[ps][f]}, {Bf(j, f)}, {aring[tt % NA][j]}, {0 if (tt in (0, 14, 28) and j == 0) else acc[ps][f]}" for f, j in order]
        if OPT['sp2']: emit(C, spread(m, (trs, 0, 0.6), (ld, 0, 0.9), (va_, 0.3 if tt in (14, 28) else 0, 0.95), clk=32))
        else: emit(C, merge(m, (trs, 0, 3), (ld, 0, 4), (va_, 1 if tt in (14, 28) else 0, 4)))
    assert b2.loaded == NB and CK > TB and (CK < NT2 - 1 or NPL == 0)
    stamp(C, "p2end")
    h = min(len(fe2), 14)
    emit(C, merge(fe2[:h], (sw, 0, h)) if h else sw)
    P(lg.wait(lambda q: q[0] == "sw")); P("s_barrier")
    if OPT["fine"] == 1: stamp(C, "sb")
    emit(C, sr)
    emit(C, fe2[h:])
    if OPT["fine"] == 1: stamp(C, "fedone")
    for a in range(4):
        P(lg.wait(lambda q: q == ("sr", a)))
        H = [slice(4*a, 4*a+2), slice(4*a+2, 4*a+4)]
        for h_ in H: P(f"v_pk_add_f32 {Sv[h_]}, {Sv[h_]}, {Sp[h_]}")
        for h_ in H: P(f"v_pk_fma_f32 {Sv[h_]}, {Sv[h_]}, {F[h_]}, {X[h_]}")
        P(f"v_cvt_pk_bf16_f32 {Rr[2*a]}, {Sv[4*a]}, {Sv[4*a+1]}\nv_cvt_pk_bf16_f32 {Rr[2*a+1]}, {Sv[4*a+2]}, {Sv[4*a+3]}")
        if a & 1:
            p = a >> 1
            P(f"v_permlane32_swap_b32 {Rr[4*p]}, {Rr[4*p+2]}\nv_permlane32_swap_b32 {Rr[4*p+1]}, {Rr[4*p+3]}")
            P(f"buffer_store_dwordx4 {Rr[4*p:4*p+4]}, {vO}, {sO}, 0 offen offset:{32*p}")
    if OPT["stamps"]:
        stamp(C, "stored"); P("s_waitcnt vmcnt(0)"); stamp(C, "end")
    if OPT["enc"] == "end": P("s_waitcnt vmcnt(0)\ns_memrealtime s[100:101]")
    if OPT["spin"] and role == ("F" if OPT["encwg"] < 128 else "Q"):
        P(f"s_cmp_lg_u32 s2, {OPT['encwg']}\ns_cbranch_scc1 SPN2\ns_waitcnt lgkmcnt(0)\ns_mov_b32 {S['t1']}, {OPT['spin']}")
        if OPT["enc"]: P(f"s_sub_u32 {S['t0']}, s100, s98\ns_lshl_b32 {S['t0']}, {S['t0']}, 2\ns_add_u32 {S['t1']}, {S['t1']}, {S['t0']}\ns_min_u32 {S['t1']}, {S['t1']}, 20000")
        P(f"SPN1:\ns_memrealtime {C.tm}\ns_waitcnt lgkmcnt(0)\ns_sub_u32 {S['t0']}, {C.tm[0]}, s98\ns_cmp_lt_u32 {S['t0']}, {S['t1']}\ns_cbranch_scc1 SPN1\nSPN2:")
    stamp_flush(C)
    P("s_endpgm")
    del C.lg
    C.vA = C.vA[:2]
    return 256

def dma_item(C, need, m0expr, load, execmask=None):
    s = load
    if execmask: s = f"s_mov_b64 exec, {execmask}\n{s}\ns_mov_b64 exec, -1"
    o = []
    if C.m0 != m0expr: o.append(m0expr)
    C.m0 = m0expr
    return o + [vop(C, ("d", need), s)]

def slab_tables(C, wmul):
    P, S = C.P, C.S
    if OPT["com"]:
        P(f"s_bfe_u32 {S['t0']}, s2, 0x20006\ns_mul_i32 {S['t0']}, {S['t0']}, 3\ns_lshr_b32 {S['t0']}, {S['t0']}, 1\ns_add_u32 {S['t0']}, {S['t0']}, {S['rbl']}")
        P(f"s_sub_u32 {S['t1']}, {S['t0']}, 6\ns_cmp_ge_u32 {S['t0']}, 6\ns_cselect_b32 {S['t0']}, {S['t1']}, {S['t0']}\ns_lshl_b32 {S['t0']}, {S['t0']}, 7")
        for d in range(1, 7):
            P(f"s_add_u32 {C.kxs[d]}, {C.kxs[d-1] if d > 1 else S['t0']}, 128\ns_cmp_eq_u32 {C.kxs[d]}, 896\ns_cselect_b32 {C.kxs[d]}, 128, {C.kxs[d]}\ns_mul_i32 {C.kws[d]}, {C.kxs[d]}, {wmul}")
        return
    for d in range(1, 7):
        P(f"s_add_u32 {C.kxs[d]}, {C.kxs[d-1]}, 128\ns_cmp_eq_u32 {C.kxs[d]}, 896\ns_cselect_b32 {C.kxs[d]}, 0, {C.kxs[d]}\ns_mul_i32 {C.kws[d]}, {C.kxs[d]}, {wmul}")

class Role: pass

def ffn_head(C):
    P, S, lane, t = C.P, C.S, C.lane, C.t
    Rl = Role(); Rl.vm = C.vm = Cnt("vmcnt", 63); C.vm.issue(("pf", 0)); C.m0 = None
    va = Rl.va = Alloc("v", C.vbase, 256)
    NW, NX = 4, 3; WB, XB = 0, 65536
    xd = C.xd; wd = Rl.wd = [va() for _ in range(8)]
    w = S['w']
    P(f"s_mul_i32 {S['t0']}, {S['cb']}, 448\ns_and_b32 {S['t0']}, {S['t0']}, 0xffffff80\ns_mul_i32 {S['t1']}, {w}, {8*3584}\ns_add_u32 {S['t0']}, {S['t0']}, {S['t1']}")
    P(f"v_lshrrev_b32 {t[0]}, 5, {lane}\nv_bfe_u32 {t[1]}, {lane}, 1, 4\nv_xor_b32 {t[1]}, {t[0]}, {t[1]}\nv_xor_b32 {t[1]}, {S['b1']}, {t[1]}")
    P(f"v_mul_u32_u24 {t[0]}, 3584, {t[0]}\nv_lshl_add_u32 {t[0]}, {t[1]}, 5, {t[0]}\nv_and_b32 {t[1]}, 1, {lane}\nv_lshl_add_u32 {t[0]}, {t[1]}, 4, {t[0]}")
    P(f"v_add_u32 {wd[0]}, {S['t0']}, {t[0]}\nv_xor_b32 {t[3]}, 64, {wd[0]}")
    P(f"v_add_u32 {wd[1]}, {2*3584 - 1024}, {t[3]}\nv_add_u32 {wd[2]}, {4*3584 - 2048}, {wd[0]}\nv_add_u32 {wd[3]}, {6*3584 - 3072}, {t[3]}")
    P(f"s_mul_i32 {S['kw']}, {S['kx']}, {64*3584//128}")
    P(f"s_memrealtime {C.mT}\ns_or_b32 {S['t0']}, s2, {w}\ns_cmp_eq_u32 {S['t0']}, 0\ns_cselect_b32 {C.sD[2]}, 256, 0\ns_mov_b32 {C.sD[3]}, 0x20000\nv_mov_b32 {t[0]}, 0")
    karg(C)
    P(f"s_or_b32 {S['t0']}, {C.mT[0]}, 1\nv_mov_b32 {t[1]}, {S['t0']}\ns_mov_b32 {C.sD[0]}, {C.ptr[14]}\ns_mov_b32 {C.sD[1]}, {C.ptr[15]}\nbuffer_store_dword {t[1]}, {t[0]}, {C.sD}, 0 offen sc1")
    C.vm.issue(("non", 0))
    srd(P, C.sW, C.ptr[8], C.ptr[9], 448 * 3584)
    items = []
    for d in range(7):
        for j in range(4): items.append(dict(k="x", d=d, j=j, need=2*d, free=(2*(d-NX)+1 if d >= NX else -1)))
        for s in (2*d, 2*d+1):
            for j in range(4): items.append(dict(k="w", s=s, j=j, need=s, free=(s-NW if s >= NW else -1)))
    def emit_item(i):
        it = items[i]; j = it["j"]
        if it["k"] == "x":
            return dma_item(C, it["need"], f"s_add_u32 m0, {S['xm0']}, {XB + (it['d'] % NX)*16384}",
                            f"buffer_load_dwordx4 {xd[j]}, {C.sX}, {C.kxs[it['d']]} offen offset:{j*1024}{NTX} lds")
        return dma_item(C, it["need"], f"s_add_u32 m0, {S['xm0']}, {WB + (it['s'] % NW)*16384}",
                        f"buffer_load_dwordx4 {wd[j + 4*(it['s']&1)]}, {C.sW}, {C.kws[it['s']>>1]} offen offset:{j*1024}{NTW} lds")
    Rl.sched = schedule(items, OPT["pro"], OPT["rate"], 14); Rl.emit_item = emit_item
    for i in Rl.sched[-1][:8]: emit(C, emit_item(i))
    for j in range(4): P(f"v_add_u32 {wd[4+j]}, {32*3584}, {wd[j]}")
    for i in Rl.sched[-1][8:OPT["first"]]: emit(C, emit_item(i))
    return Rl

def karg(C):
    P, S = C.P, C.S
    P("s_waitcnt lgkmcnt(0)")
    P(f"s_add_u32 {C.sX[0]}, {C.ptr[0]}, {S['t2']}\ns_addc_u32 {C.sX[1]}, {C.ptr[1]}, 0\ns_sub_u32 {C.sX[2]}, {XBYTES}, {S['t2']}\ns_mov_b32 {C.sX[3]}, 0x20000")

def ffn_body(C, Rl):
    P, S, lane, t = C.P, C.S, C.lane, C.t
    C.role = "F"; vm = C.vm = Rl.vm; C.lim = NB - OPT["late"]
    va = Rl.va; aa = Alloc("a", 0, C.abase)
    NW, NX = 4, 3; WB, XB = 0, 65536
    sWS = C.sWS; w = S['w']
    stamp(C, "iss")
    xr = [[va() for _ in range(2)] for _ in range(2)]
    wr_ = [va() for _ in range(7)]
    acc = [[va(4, 4) for _ in range(4)] for _ in range(7)]
    cs = [va(4, 4) for _ in range(7)]
    rs = [va(4, 4) for _ in range(2)]
    ones = aa(4)
    fb = [dict(x=[aa(4) for _ in range(4)], w=[aa(4) for _ in range(7)]) for _ in range(2)]
    srd(P, sWS, C.wsp[0], C.wsp[1], WS_REC)
    wr, wc = S['half'], S['hh']
    n_, g_ = va(), va()
    P(f"v_and_b32 {n_}, 15, {lane}\nv_lshrrev_b32 {g_}, 4, {lane}")
    P(f"s_lshl_b32 {S['t0']}, {wr}, 13\ns_lshl_b32 {S['t1']}, {wc}, 12\ns_add_u32 {S['t0']}, {S['t0']}, {S['t1']}\ns_add_u32 {S['t0']}, {S['t0']}, {XB}")
    P(f"v_lshrrev_b32 {t[0]}, 1, {n_}\nv_xor_b32 {t[0]}, {g_}, {t[0]}\nv_lshlrev_b32 {t[0]}, 4, {t[0]}\nv_lshl_add_u32 {t[0]}, {n_}, 7, {t[0]}")
    P(f"v_add_u32 {xr[0][0]}, {S['t0']}, {t[0]}\nv_xor_b32 {xr[0][1]}, 64, {xr[0][0]}\nv_xor_b32 {xr[1][0]}, 4096, {xr[0][0]}\nv_xor_b32 {xr[1][1]}, 4096, {xr[0][1]}")
    P(f"v_bfe_u32 {t[0]}, {lane}, 2, 2\nv_lshl_add_u32 {t[1]}, {g_}, 3, {t[0]}\nv_lshlrev_b32 {t[1]}, 9, {t[1]}\nv_and_b32 {t[2]}, 3, {lane}\nv_lshl_add_u32 {t[1]}, {t[2]}, 3, {t[1]}")
    P(f"v_bfe_u32 {t[0]}, {lane}, 2, 3")
    P(f"s_lshl_b32 {S['b1']}, {wr}, 2\ns_mul_i32 {S['b2']}, {wr}, -3")
    P(f"s_and_b32 {S['t0']}, {S['cb']}, 1\ns_lshl_b32 {S['t0']}, {S['t0']}, 1\ns_mul_i32 {S['t1']}, {wc}, 7\ns_add_u32 {S['t0']}, {S['t0']}, {S['t1']}")
    P(f"s_add_u32 {S['t1']}, {S['t0']}, {S['b2']}\ns_add_u32 {S['t0']}, {S['t0']}, {S['b1']}")
    for c in range(7):
        P(f"s_add_u32 {S['t2']}, {S['t0'] if c <= 2 else S['t1']}, {c}")
        P(f"v_xor_b32 {t[2]}, {S['t2']}, {t[0]}\nv_lshl_add_u32 {wr_[c]}, {t[2]}, 5, {t[1]}")
    P(f"v_mov_b32 {t[0]}, {ONES}")
    for i in range(4): P(f"v_accvgpr_write_b32 {ones[i]}, {t[0]}")
    b2 = B2(C)
    RSB = b2.xchunk * 8192; CSB = RSB + 1024
    xw = RSB & 0x30000; RSB -= xw; CSB -= xw
    a_rs, a_rs2, a_cs, a_cs2 = va(), va(), va(), va()
    st = [va(), va()]
    P(f"s_lshl_b32 {S['t0']}, {wr}, 8\ns_lshl_b32 {S['t1']}, {wc}, 7\ns_add_u32 {S['t0']}, {S['t0']}, {S['t1']}\ns_add_u32 {S['t0']}, {S['t0']}, {xw}")
    P(f"v_lshlrev_b32 {a_rs}, 2, {n_}\nv_add_u32 {a_rs}, {S['t0']}, {a_rs}\nv_xor_b32 {a_rs2}, 128, {a_rs}")
    P(f"s_lshl_b32 {S['t0']}, {wc}, 3\ns_add_u32 {S['t1']}, {S['t0']}, {S['b2']}\ns_add_u32 {S['t0']}, {S['t0']}, {S['b1']}")
    P(f"s_lshl_b32 {S['t0']}, {S['t0']}, 6\ns_add_u32 {S['t1']}, {S['t1']}, 4\ns_lshl_b32 {S['t1']}, {S['t1']}, 6")
    P(f"v_lshlrev_b32 {a_cs}, 4, {g_}\nv_add_u32 {a_cs}, {xw}, {a_cs}\nv_add_u32 {a_cs2}, {S['t1']}, {a_cs}\nv_add_u32 {a_cs}, {S['t0']}, {a_cs}")
    P(f"s_lshl_b32 {S['t0']}, {wc}, 10\nv_lshlrev_b32 {st[0]}, 4, {lane}\nv_add_u32 {st[0]}, {S['t0']}, {st[0]}\nv_xor_b32 {st[1]}, 1024, {st[0]}")
    P(f"s_lshl_b32 {S['t0']}, {S['e']}, 3\ns_add_u32 {S['t0']}, {S['t0']}, {S['rbl']}\ns_lshl_b32 {S['t0']}, {S['t0']}, 1\ns_add_u32 {S['t0']}, {S['t0']}, {wr}")
    P(f"s_mul_i32 {S['t0']}, {S['t0']}, {A2_KS}\ns_mul_i32 {S['t1']}, {S['cb']}, 14\ns_add_u32 {S['t0']}, {S['t0']}, {S['t1']}\ns_mul_i32 {S['t1']}, {wc}, 7\ns_add_u32 {S['t0']}, {S['t0']}, {S['t1']}\ns_add_u32 {S['t0']}, {S['t0']}, 32")
    P(f"s_add_u32 {S['b1']}, {S['b1']}, {S['t0']}\ns_add_u32 {S['b2']}, {S['b2']}, {S['t0']}\ns_lshl_b32 {S['b1']}, {S['b1']}, 11\ns_lshl_b32 {S['b2']}, {S['b2']}, 11")
    if OPT["xst"]:
        pca, pra, gca, gsc, lca = [va() for _ in range(5)]
        for m_, bit in ((C.mT, 1), (C.mU, 2), (C.mW, 4), (C.mH, 8)):
            P(f"v_and_b32 {t[0]}, {bit}, {lane}\nv_cmp_ne_u32 {m_}, 0, {t[0]}")
        P(f"s_lshl_b32 {S['t2']}, {S['e']}, 3\ns_add_u32 {S['t0']}, {S['t2']}, {S['cb']}\ns_lshl_b32 {S['t0']}, {S['t0']}, 14\ns_add_u32 {S['t0']}, {S['t0']}, {SCOL_OFF}")
        P(f"s_lshl_b32 {S['t1']}, {w}, 12\ns_add_u32 {S['t1']}, {S['t1']}, {S['t0']}\nv_lshl_add_u32 {gca}, {lane}, 4, {S['t1']}")
        P(f"s_lshl_b32 {S['t1']}, {wc}, 1\ns_add_u32 {S['t1']}, {S['t1']}, {wr}\ns_lshl_b32 {S['t1']}, {S['t1']}, 3\ns_add_u32 {S['t1']}, {S['t1']}, {S['rbl']}\ns_lshl_b32 {S['t1']}, {S['t1']}, 9\ns_add_u32 {S['t0']}, {S['t0']}, {S['t1']}")
        P(f"v_bfe_u32 {t[0]}, {lane}, 2, 2\nv_lshlrev_b32 {t[0]}, 4, {t[0]}\nv_lshl_add_u32 {t[0]}, {g_}, 2, {t[0]}\nv_and_b32 {t[1]}, 3, {lane}\nv_add_u32 {t[0]}, {t[0]}, {t[1]}\nv_lshl_add_u32 {pca}, {t[0]}, 3, {S['t0']}")
        P(f"s_add_u32 {S['t0']}, {S['t2']}, {S['rbl']}\ns_lshl_b32 {S['t0']}, {S['t0']}, 2\ns_add_u32 {S['t0']}, {S['t0']}, {w}\ns_lshl_b32 {S['t0']}, {S['t0']}, 12\ns_add_u32 {S['t0']}, {S['t0']}, {SROW_OFF}")
        P(f"v_lshl_add_u32 {t[0]}, {n_}, 4, {S['t0']}\nv_cmp_lt_u32 vcc, 31, {lane}\nv_cndmask_b32 {gca}, {gca}, {t[0]}, vcc")
        P(f"s_lshl_b32 {S['t1']}, {S['cb']}, 9\ns_add_u32 {S['t0']}, {S['t0']}, {S['t1']}\nv_lshl_add_u32 {pra}, {lane}, 3, {S['t0']}\nv_mov_b32 {t[1]}, {BIG}\nv_cndmask_b32 {pra}, {pra}, {t[1]}, vcc")
        P(f"v_mov_b32 {gsc}, 1.0\nv_mov_b32 {t[1]}, {f2h(-1.0/448)}\nv_cndmask_b32 {gsc}, {gsc}, {t[1]}, vcc")
        P(f"s_lshl_b32 {S['t0']}, {w}, 8\ns_add_u32 {S['t0']}, {S['t0']}, {xw + 1024}\nv_lshl_add_u32 {lca}, {lane}, 3, {S['t0']}")
        P(f"s_lshl_b32 {S['t0']}, {w}, 7\ns_add_u32 {S['t0']}, {S['t0']}, {xw}\nv_lshl_add_u32 {t[0]}, {n_}, 3, {S['t0']}\nv_cndmask_b32 {lca}, {lca}, {t[0]}, vcc")
    p2_setup(C)
    slab_tables(C, 64*3584//128); C.m0 = None
    rest = Rl.sched[-1][OPT["first"]:]
    for i in rest[:OPT["wpos"]]: emit(C, Rl.emit_item(i))
    P("WARM_F:")
    for i in rest[OPT["wpos"]:]: emit(C, Rl.emit_item(i))
    def reads(s):
        b = fb[s & 1]
        xs = ((s >> 1) % NX) * 16384; ws = WB + (s % NW) * 16384
        X = [f"ds_read_b128 {b['x'][i]}, {xr[i>>1][s&1]} offset:{xs + (i&1)*2048}" for i in range(4)]
        W = []
        for c in range(7):
            W.append(f"ds_read_b64_tr_b16 {b['w'][c][0:2]}, {wr_[c]} offset:{ws}")
            W.append(f"ds_read_b64_tr_b16 {b['w'][c][2:4]}, {wr_[c]} offset:{ws + 2048}")
        return X + W
    def mfmas(s):
        b = fb[s & 1]; o = []
        def mm(d, a, bb): o.append(f"v_mfma_f32_16x16x32_bf16 {d}, {a}, {bb}, {d if s else 0}")
        if s < 2 or not OPT["xst"]:
            for i in range(2): mm(rs[i], ones, b['x'][i])
            for c in range(4): mm(cs[c], b['w'][c], ones)
        for c in range(7):
            for i in range(4): mm(acc[c][i], b['w'][c], b['x'][i])
        if s == 13 and not OPT["xst"]:
            wrs = [f"ds_write_b32 {a_rs}, {rs[i][0]} offset:{RSB + i*64}" for i in range(2)] + [f"ds_write_b128 {a_cs}, {cs[c]} offset:{CSB + c*64}" for c in range(4)]
            for k_, x in enumerate(wrs): o[14 + k_] += "\n" + x
        return o
    nm = [va(2), va(2)]
    NEG = f2h(-1.0/448)
    hook = None
    if OPT["xst"]:
        G = OPT["gat"]
        allcs = R("v", cs[0].i, 28); assert cs[6].i == cs[0].i + 24
        gq = [allcs[4*p:4*p+4] for p in range(7)]
        gl = [f"buffer_load_dwordx4 {gq[p]}, {gca}, {sWS}, 0 offen offset:{512*p} sc1" for p in range(7)]
        bad = rs[0][0]
        al = [g[k] for g in gq for k in (1, 3)]
        chk = [f"v_xor_b32 {bad}, {S['tag']}, {al[0]}"] + [f"v_bitop3_b32 {bad}, {x}, {S['tag']}, {bad} bitop3:0xbe" for x in al[1:]]
        def hook(s_):
            o = []
            if s_ == 2:
                def tg():
                    l0 = len(P.l); get_tag(C); x = "\n".join(P.l[l0:]); del P.l[l0:]; return x
                o.append(Lazy(tg, "svsss"))
                for c in range(4):
                    o += [f"v_cndmask_b32 {cs[c][0]}, {cs[c][0]}, {cs[c][1]}, {C.mT}", f"v_cndmask_b32 {cs[c][2]}, {cs[c][2]}, {cs[c][3]}, {C.mT}", f"v_cndmask_b32 {cs[c][0]}, {cs[c][0]}, {cs[c][2]}, {C.mU}"]
            if s_ == 3:
                o += [f"v_cndmask_b32 {cs[0][0]}, {cs[0][0]}, {cs[1][0]}, {C.mW}", f"v_cndmask_b32 {cs[2][0]}, {cs[2][0]}, {cs[3][0]}, {C.mW}", f"v_cndmask_b32 {cs[0][0]}, {cs[0][0]}, {cs[2][0]}, {C.mH}",
                      f"v_mov_b32 {cs[0][1]}, {S['tag']}", vop(C, ("st1", 0), f"buffer_store_dwordx2 {cs[0][0:2]}, {pca}, {sWS}, 0 offen sc1"),
                      f"v_cmp_eq_u32 vcc, 1, {g_}", f"v_mov_b32 {rs[0][1]}, {S['tag']}", f"v_cndmask_b32 {rs[0][0]}, {rs[0][0]}, {rs[1][0]}, vcc",
                      vop(C, ("st1", 0), f"buffer_store_dwordx2 {rs[0][0:2]}, {pra}, {sWS}, 0 offen sc1")]
            k_ = OPT["gsp"]
            if G - k_ < s_ <= G:
                i_ = s_ - (G - k_ + 1); o += [vop(C, ("ga", 0), x) for x in gl[i_ * 7 // k_:(i_ + 1) * 7 // k_]]
            if s_ == G + OPT['gck']:
                o.append(Lazy(lambda: vm.wait(lambda q: q[0] == "ga")))
                o += chk + [f"v_cmp_ne_u32 vcc, 0, {bad}", "s_cmp_lg_u64 vcc, 0\ns_cbranch_scc1 GA_S\nGA_X:"]
                C.slow.append(f"GA_S:\ns_mov_b32 {S['t2']}, 0\nGA_L:\n" + "\n".join(gl) + "\ns_waitcnt vmcnt(0)\n" + "\n".join(chk) +
                              f"\nv_cmp_ne_u32 vcc, 0, {bad}\ns_add_u32 {S['t2']}, {S['t2']}, 1\ns_cmp_ge_u32 {S['t2']}, {SPIN_MAX}\ns_cbranch_scc1 GA_X\ns_cmp_lg_u64 vcc, 0\ns_cbranch_scc1 GA_L\ns_branch GA_X")
            if s_ == G + OPT['gck'] + 1:
                for k in (0, 2):
                    g = [x[k] for x in gq]
                    o += [f"v_add_f32 {g[0]}, {g[0]}, {g[1]}", f"v_add_f32 {g[2]}, {g[2]}, {g[3]}", f"v_add_f32 {g[4]}, {g[4]}, {g[5]}",
                          f"v_add_f32 {g[0]}, {g[0]}, {g[2]}", f"v_add_f32 {g[4]}, {g[4]}, {g[6]}", f"v_add_f32 {g[0]}, {g[0]}, {g[4]}"]
                o += [f"v_mul_f32 {gq[0][0]}, {gsc}, {gq[0][0]}", f"v_mul_f32 {gq[0][1]}, {gsc}, {gq[0][2]}", f"ds_write_b64 {lca}, {gq[0][0:2]} offset:{RSB}"]
            if s_ == G + OPT['gck'] + 2:
                o += [f"ds_read_b32 {nm[0][i]}, {a_rs} offset:{RSB + 64*i}" for i in range(2)] + [f"ds_read_b32 {nm[1][i]}, {a_rs2} offset:{RSB + 64*i}" for i in range(2)]
                o += [f"ds_read_b128 {cs[c]}, {a_cs} offset:{CSB + c*64}" for c in range(4)] + [f"ds_read_b128 {cs[c]}, {a_cs2} offset:{CSB + (c-4)*64}" for c in range(4, 7)]
            return o
    run_loop(C, Rl.emit_item, Rl.sched, reads, mfmas, b2, OPT["fearly"], OPT["fstart"], hook=hook, nonce_at=0 if OPT["xst"] else 6, rate2=OPT["b2rate"])
    if not OPT["xst"]:
        P("s_waitcnt lgkmcnt(0)\ns_barrier"); b2.lgkm()
        P(f"ds_read_b32 {nm[1][0]}, {a_rs2} offset:{RSB}\nds_read_b32 {nm[1][1]}, {a_rs2} offset:{RSB+64}")
        for c in range(4, 7): P(f"ds_read_b128 {cs[c]}, {a_cs2} offset:{CSB + (c-4)*64}")
    if OPT["xst"] and OPT["gat"] + OPT["gck"] + 2 == 13: P("s_waitcnt lgkmcnt(0)"); b2.lgkm()
    emit(C, b2.moves(C.hist[11]))
    if not OPT["xst"]: P(f"v_mul_f32 {nm[0][0]}, {NEG}, {rs[0][0]}\nv_mul_f32 {nm[0][1]}, {NEG}, {rs[1][0]}")
    Z = [va(4, 4) for _ in range(4)]
    units = [(c, 0) for c in range(4)] + [(c, 1) for c in range(4)] + [(c, pr) for c in range(4, 7) for pr in range(2)]
    if OPT["xst"]: units = [(c, pr) for c in range(7) for pr in range(2)]
    pend = None
    old = b2.loaded
    for ui, (c, pr) in enumerate(units):
        if ui == 4:
            P("s_waitcnt lgkmcnt(0)"); b2.lgkm()
            if not OPT["xst"]: P(f"v_mul_f32 {nm[1][0]}, {NEG}, {nm[1][0]}\nv_mul_f32 {nm[1][1]}, {NEG}, {nm[1][1]}")
        z = Z[ui % 4]
        for ii in range(2):
            a = acc[c][2*pr+ii]
            sel = "op_sel_hi:[1,0,1]" if ii == 0 else "op_sel:[0,1,0] op_sel_hi:[1,1,1]"
            P(f"v_pk_fma_f32 {a[0:2]}, {cs[c][0:2]}, {nm[pr]}, {a[0:2]} {sel}")
            P(f"v_pk_fma_f32 {a[2:4]}, {cs[c][2:4]}, {nm[pr]}, {a[2:4]} {sel}")
        if pend: P(pend); vm.issue(("st", 0))
        for ii in range(2):
            a = acc[c][2*pr+ii]
            P(f"v_cvt_pk_bf16_f32 {z[2*ii]}, {a[0]}, {a[1]}\nv_cvt_pk_bf16_f32 {z[2*ii+1]}, {a[2]}, {a[3]}")
        for q in range(4): P(f"v_pk_max_i16 {z[q]}, {z[q]}, 0")
        if OPT["fepi"] and ui % OPT["fepi"] == 0: emit(C, b2.loads(1, C.lim))
        pend = (f"s_add_u32 {S['t0']}, {S['b1'] if c <= 2 else S['b2']}, {c*2048}\n"
                f"v_permlane16_swap_b32 {z[0]}, {z[2]}\nv_permlane16_swap_b32 {z[1]}, {z[3]}\n"
                f"buffer_store_dwordx4 {z}, {st[pr]}, {sWS}, {S['t0']} offen sc1")
    P(pend); vm.issue(("st", 0))
    stamp(C, "epiend")
    emit(C, b2.moves(old))
    b2.drain(OPT["post"], C.lim)
    if not OPT["xst"]: get_tag(C)
    stamp(C, "tag")
    P(vm.wait(lambda q: q[0] == "st")); stamp(C, "ack"); P("s_barrier")
    flag_store(C)
    stamp(C, "flag")
    emit(C, xtile(C))
    b2.drain(max(C.lim - b2.loaded - OPT["pr"], 0), C.lim)
    emit(C, [poll_req(C)])
    b2.drain(99, C.lim)
    stamp(C, "b2iss")
    poll_check(C, "PF_F", 3)
    stamp(C, "polled")
    for tt in range(OPT["LA"]): emit(C, aload(C, tt))
    return max(va.hi, phase2(C, b2, None))

XS = 18432
def qkv_head(C):
    P, S, lane, t = C.P, C.S, C.lane, C.t
    Rl = Role(); Rl.vm = C.vm = Cnt("vmcnt", 63); C.vm.issue(("pf", 0)); C.m0 = None
    va = Rl.va = Alloc("v", C.vbase, 256)
    NW, NX = 4, 3; XB, WB = 0, 3 * XS
    xd = C.xd; xh = va(); wd = [va() for _ in range(6)]
    w = S['w']; hp = S['cb']; mW, mH = C.mW, C.mH
    P(f"s_mul_i32 {S['t1']}, {w}, {32*1792}\ns_add_u32 {S['t1']}, {S['t1']}, {8*1792}\ns_cmp_eq_u32 {S['rbl']}, 0\ns_cselect_b32 {S['t1']}, {BIG}, {S['t1']}")
    P(f"v_subrev_u32 {xh}, {S['t1']}, {t[3]}")
    P(f"s_lshl_b32 {S['t1']}, {w}, 4\ns_mov_b64 {mH}, 0xffff\ns_lshl_b64 {mH}, {mH}, {S['t1']}")
    P(f"v_and_b32 {t[0]}, 2, {t[4]}\nv_add_u32 {t[0]}, {S['b1']}, {t[0]}\nv_sub_u32 {t[0]}, {t[5]}, {t[0]}\nv_and_b32 {t[0]}, 7, {t[0]}")
    P(f"v_cmp_ne_u32 {mW}, 7, {t[0]}\nv_mov_b32 {t[2]}, {BIG}")
    P(f"s_mul_i32 {S['t0']}, {hp}, 112\ns_mul_i32 {S['t1']}, {w}, {8*2688}\ns_add_u32 {S['t0']}, {S['t0']}, {S['t1']}")
    P(f"v_mul_u32_u24 {t[1]}, 2688, {t[4]}\nv_lshl_add_u32 {t[1]}, {t[0]}, 4, {t[1]}\nv_add_u32 {t[1]}, {S['t0']}, {t[1]}\nv_cndmask_b32 {wd[2]}, {t[2]}, {t[1]}, {mW}")
    P(f"v_add_u32 {wd[1]}, 128, {wd[2]}\nv_add_u32 {wd[0]}, 256, {wd[2]}")
    P(f"s_mul_i32 {S['kw']}, {S['kx']}, {64*2688//128}\ns_mul_i32 {S['wm0']}, {w}, 3072")
    karg(C)
    P(f"s_sub_u32 {C.sW[0]}, {C.ptr[2]}, 256\ns_subb_u32 {C.sW[1]}, {C.ptr[3]}, 0\ns_mov_b32 {C.sW[2]}, {448*2688 + 256}\ns_mov_b32 {C.sW[3]}, 0x20000")
    items = []
    for d in range(7):
        fr = (2*(d-NX)+1 if d >= NX else -1)
        for j in (0, 1, 2, 3, -1): items.append(dict(k="x", d=d, j=j, need=2*d, free=fr))
        for s in (2*d, 2*d+1):
            for p in range(3): items.append(dict(k="w", s=s, j=p, need=s, free=(s-NW if s >= NW else -1)))
    def emit_item(i):
        it = items[i]; j = it["j"]
        if it["k"] == "x":
            sb = XB + (it['d'] % NX) * XS
            if j < 0: return dma_item(C, it["need"], f"s_mov_b32 m0, {sb + 1024}", f"buffer_load_dwordx4 {xh}, {C.sX}, {C.kxs[it['d']]} offen{NTX} lds", mH)
            return dma_item(C, it["need"], f"s_add_u32 m0, {S['xm0']}, {sb + 2048}", f"buffer_load_dwordx4 {xd[j]}, {C.sX}, {C.kxs[it['d']]} offen offset:{j*1024}{NTX} lds")
        return dma_item(C, it["need"], f"s_add_u32 m0, {S['wm0']}, {WB + (it['s'] % NW)*12288}",
                        f"buffer_load_dwordx4 {wd[j + 3*(it['s']&1)]}, {C.sW}, {C.kws[it['s']>>1]} offen offset:{j*1024}{NTW} lds", mW if j == 1 else None)
    Rl.sched = schedule(items, OPT["pro"] * 11 // 12, OPT["rate"] - 1, 14); Rl.emit_item = emit_item
    for i in Rl.sched[-1][:8]: emit(C, emit_item(i))
    for j in range(3): P(f"v_add_u32 {wd[3+j]}, {32*2688}, {wd[j]}")
    for i in Rl.sched[-1][8:min(OPT["first"], 11)]: emit(C, emit_item(i))
    return Rl

def qkv_body(C, Rl):
    P, S, lane, t = C.P, C.S, C.lane, C.t
    C.role = "Q"; vm = C.vm = Rl.vm; C.lim = NB - OPT["late"]
    va = Rl.va; aa = Alloc("a", 0, C.abase)
    NW, NX = 4, 3; XB, WB = 0, 3 * XS
    sWS, mT = C.sWS, C.mT
    w = S['w']; hp = S['cb']; hh, half = S['hh'], S['half']
    stamp(C, "iss")
    xr = [va() for _ in range(2)]; xr0 = [va() for _ in range(2)]
    wr_ = [va() for _ in range(2)]
    acc = [[[va(4, 4) for _ in range(5)] for _ in range(2)] for _ in range(3)]
    dg = [va(4, 4) for _ in range(5)]
    cprev, ccur, cfirst = va(4, 4), va(4, 4), va(4, 4)
    mprev, mcur = va(2), va(2)
    fb = [dict(x=[aa(4) for _ in range(5)], w=[[aa(4) for _ in range(2)] for _ in range(3)]) for _ in range(2)]
    srd(P, sWS, C.wsp[0], C.wsp[1], WS_REC)
    n_, g_ = va(), va()
    P(f"v_and_b32 {n_}, 15, {lane}\nv_lshrrev_b32 {g_}, 4, {lane}")
    tmpcs = [va(4, 4) for _ in range(4)]
    c1, c0 = tmpcs[0], tmpcs[1]
    for i in range(4): P(f"v_mov_b32 {c1[i]}, {ONES}\nv_mov_b32 {c0[i]}, 0")
    P(f"v_and_b32 {t[0]}, 7, {lane}\nv_and_b32 {t[1]}, 2, {lane}\nv_bfe_u32 {t[2]}, {lane}, 3, 1\nv_lshl_add_u32 {t[1]}, {t[2]}, 2, {t[1]}")
    P(f"v_add_u32 {t[1]}, 7, {t[1]}\nv_and_b32 {t[1]}, 7, {t[1]}\nv_lshlrev_b32 {t[1]}, 4, {t[1]}\nv_lshl_add_u32 {t[0]}, {t[0]}, 7, {t[1]}")
    P(f"v_lshrrev_b32 {t[1]}, 3, {lane}\nv_mul_u32_u24 {t[1]}, 3072, {t[1]}\ns_mul_i32 {S['t0']}, {hh}, {2*12288}\ns_add_u32 {S['t0']}, {S['t0']}, {WB}")
    P(f"v_add3_u32 {t[0]}, {t[0]}, {t[1]}, {S['t0']}")
    P(f"ds_write_b128 {t[0]}, {c1} offset:1024")
    P(f"s_min_u32 {S['t0']}, {w}, 2\ns_mul_i32 {S['t0']}, {S['t0']}, {XS}\nv_lshlrev_b32 {t[1]}, 4, {lane}\nv_add_u32 {t[1]}, {S['t0']}, {t[1]}\nds_write_b128 {t[1]}, {c1} offset:{XB}")
    P(f"v_lshrrev_b32 {t[0]}, 1, {n_}\nv_xor_b32 {t[0]}, {g_}, {t[0]}\nv_lshlrev_b32 {t[0]}, 4, {t[0]}\nv_lshl_add_u32 {t[0]}, {n_}, 7, {t[0]}")
    P(f"s_lshl_b32 {S['t0']}, {half}, 13\nv_add_u32 {t[1]}, {S['t0']}, {t[0]}\nv_add_u32 {xr[0]}, {XB + 2048}, {t[1]}\nv_xor_b32 {xr[1]}, 64, {xr[0]}")
    P(f"v_cmp_gt_u32 vcc, 8, {n_}\nv_cndmask_b32 {xr0[0]}, {t[1]}, {t[0]}, vcc\nv_xor_b32 {xr0[1]}, 64, {xr0[0]}")
    P(f"v_bfe_u32 {t[0]}, {lane}, 2, 2\nv_mul_u32_u24 {t[1]}, 3072, {g_}\nv_lshl_add_u32 {t[0]}, {t[0]}, 7, {t[1]}\nv_add_u32 {t[0]}, {WB}, {t[0]}")
    P(f"v_bfe_u32 {t[1]}, {lane}, 3, 2\nv_lshlrev_b32 {t[1]}, 5, {t[1]}\nv_and_b32 {t[2]}, 3, {lane}")
    P(f"s_mul_i32 {S['t0']}, {hh}, 56\nv_lshl_add_u32 {t[3]}, {t[2]}, 3, {S['t0']}")
    P(f"v_add_u32 {t[4]}, {t[3]}, {t[1]}\nv_and_b32 {t[4]}, 127, {t[4]}\nv_add_u32 {wr_[0]}, {t[0]}, {t[4]}")
    P(f"s_lshl_b32 {S['t0']}, {hh}, 3\ns_sub_u32 {S['t0']}, 120, {S['t0']}\nv_mov_b32 {t[4]}, {S['t0']}\nv_add_u32 {t[3]}, 32, {t[3]}")
    P(f"v_cmp_eq_u32 vcc, 3, {t[2]}\nv_cndmask_b32 {t[3]}, {t[3]}, {t[4]}, vcc")
    P(f"v_add_u32 {t[4]}, {t[3]}, {t[1]}\nv_and_b32 {t[4]}, 127, {t[4]}\nv_add_u32 {wr_[1]}, {t[0]}, {t[4]}")
    P(f"v_lshlrev_b32 {t[0]}, 2, {g_}\nv_sub_u32 {t[0]}, {n_}, {t[0]}\nv_mov_b32 {t[1]}, {NINF}")
    P(f"s_or_b32 {S['t0']}, {S['rbl']}, {half}\ns_cmp_eq_u32 {S['t0']}, 0\ns_cselect_b32 {S['t0']}, {NINF}, 0")
    for r in range(4):
        P(f"v_subrev_u32 {t[2]}, {r}, {t[0]}")
        P(f"v_cmp_gt_i32 vcc, -8, {t[2]}\nv_cndmask_b32 {cprev[r]}, {t[1]}, {c0[0]}, vcc")
        P(f"v_cmp_gt_u32 vcc, 8, {t[2]}\nv_cndmask_b32 {ccur[r]}, {t[1]}, {c0[0]}, vcc")
        P(f"v_or_b32 {cfirst[r]}, {S['t0']}, {cprev[r]}")
    for (m, c) in ((mprev, cprev), (mcur, ccur)):
        for q in range(2):
            P(f"v_ashrrev_i32 {t[2]}, 31, {c[2*q]}\nv_ashrrev_i32 {t[3]}, 31, {c[2*q+1]}\nv_and_b32 {t[2]}, 0xffff, {t[2]}\nv_and_b32 {t[3]}, 0xffff0000, {t[3]}")
            P(f"v_or_b32 {t[2]}, {t[2]}, {t[3]}\nv_not_b32 {m[q]}, {t[2]}")
    a1, a2, av_w, av_r, sr, so = va(), va(), va(), va(), va(), va()
    VCH = [0, 1, 2, 8, 9]
    av_w2, av_r2 = va(), va()
    P(f"v_lshlrev_b32 {a1}, 2, {n_}\nv_bfe_u32 {a2}, {lane}, 2, 2\nv_lshl_add_u32 {a2}, {a2}, 6, {a1}\nv_add_u32 {a1}, 192, {a1}")
    P(f"v_and_b32 {t[2]}, 1, {lane}\nv_cmp_eq_u32 {mT}, 1, {t[2]}\nv_and_b32 {t[2]}, 2, {lane}\nv_cmp_eq_u32 {C.mU}, 2, {t[2]}")
    P(f"s_lshl_b32 {S['t1']}, {w}, 11\nv_mul_u32_u24 {av_w}, 80, {n_}\nv_lshl_add_u32 {av_w}, {g_}, 4, {av_w}\nv_add_u32 {av_w}, {S['t1']}, {av_w}")
    P(f"v_lshrrev_b32 {av_r}, 2, {lane}\nv_mul_u32_u24 {av_r}, 80, {av_r}\nv_and_b32 {t[4]}, 3, {lane}\nv_lshl_add_u32 {av_r}, {t[4]}, 4, {av_r}\nv_add_u32 {av_r}, {S['t1']}, {av_r}\nv_add_u32 {av_w2}, 65536, {av_w}\nv_add_u32 {av_r2}, 65536, {av_r}")
    P(f"v_lshlrev_b32 {so}, 4, {lane}")
    P(f"s_lshl_b32 {S['t1']}, {S['e']}, 3\ns_add_u32 {S['t1']}, {S['t1']}, {S['rbl']}\ns_lshl_b32 {S['t1']}, {S['t1']}, 1\ns_add_u32 {S['t1']}, {S['t1']}, {half}")
    P(f"s_lshl_b32 {S['t0']}, {hp}, 1\ns_add_u32 {S['t0']}, {S['t0']}, {hh}\ns_lshl_b32 {S['t0']}, {S['t0']}, 12\ns_mul_i32 {S['b1']}, {S['t1']}, {A2_KS*2048}\ns_add_u32 {S['b1']}, {S['b1']}, {S['t0']}")
    P(f"s_lshl_b32 {S['t1']}, {S['t1']}, 8\ns_lshl_b32 {S['t0']}, {hp}, 13\ns_add_u32 {S['t1']}, {S['t1']}, {S['t0']}\ns_add_u32 {S['t1']}, {S['t1']}, {RSTD_OFF}\ns_cmp_eq_u32 {hh}, 0\ns_cselect_b32 {S['t1']}, {S['t1']}, {BIG}")
    P(f"v_lshl_add_u32 {sr}, {lane}, 2, {S['t1']}")
    p2_setup(C)
    slab_tables(C, 64*2688//128); C.m0 = None
    rest = Rl.sched[-1][min(OPT["first"], 11):]
    for i in rest[:max(OPT["wpos"] - 1, 0)]: emit(C, Rl.emit_item(i))
    P("WARM_Q:")
    for i in rest[max(OPT["wpos"] - 1, 0):]: emit(C, Rl.emit_item(i))
    def reads(s):
        b = fb[s & 1]
        xs = ((s >> 1) % NX) * XS; ws = (s % NW) * 12288
        X = [f"ds_read_b128 {b['x'][0]}, {xr0[s&1]} offset:{xs}"] + [f"ds_read_b128 {b['x'][j]}, {xr[s&1]} offset:{xs + (j-1)*2048}" for j in range(1, 5)]
        W = []
        for p in (1, 2, 0):
            for tt in range(2):
                W.append(f"ds_read_b64_tr_b16 {b['w'][p][tt][0:2]}, {wr_[tt]} offset:{ws + p*1024}")
                W.append(f"ds_read_b64_tr_b16 {b['w'][p][tt][2:4]}, {wr_[tt]} offset:{ws + p*1024 + 512}")
        return X + W
    Q, K, V = acc
    ST = [va(2) for _ in range(5)]
    sq = [t[0], t[1], t[2], t[3], t[4]]
    csK = tmpcs[0:2]; csV = tmpcs[2:4]; csQ = [Q[0][0], Q[1][0]]
    def bc(d_, s_): return [f"v_mov_b32_dpp {d_[tt][r]}, {s_[tt][0][r]} row_newbcast:0 row_mask:0xf bank_mask:0xf" for tt in (1, 0) for r in range(4)]
    def mfmas(s):
        b = fb[s & 1]; o = []
        def mm(d, a, bb): o.append(f"v_mfma_f32_16x16x32_bf16 {d}, {a}, {bb}, {d if s else 0}")
        for j in range(5): mm(dg[j], b['x'][j], b['x'][j])
        for p in (1, 2, 0):
            for tt in (1, 0):
                for j in range(5): mm(acc[p][tt][j], b['w'][p][tt], b['x'][j])
        if s == 13:
            ex = []
            for j in range(5):
                ex += [f"v_cndmask_b32 {dg[j][0]}, {dg[j][0]}, {dg[j][1]}, {mT}", f"v_cndmask_b32 {dg[j][2]}, {dg[j][2]}, {dg[j][3]}, {mT}",
                       f"v_cndmask_b32 {dg[j][0]}, {dg[j][0]}, {dg[j][2]}, {C.mU}\nds_bpermute_b32 {sq[j]}, {a2}, {dg[j][0]}\nds_bpermute_b32 {ST[j][0]}, {a1}, {K[1][j][0]}"]
            ex += bc(csK, K)
            for k_, x in enumerate(ex): o[12 + k_] += "\n" + x
        return o
    b2 = B2(C)
    run_loop(C, Rl.emit_item, Rl.sched, reads, mfmas, b2, OPT["qearly"], OPT["qstart"], rate2=OPT["qrate"])
    P.ext(bc(csV, V))
    emit(C, b2.moves(C.hist[11]))
    P("s_waitcnt lgkmcnt(0)"); b2.lgkm()
    P(f"s_mov_b32 {S['t0']}, {f2h(1.0/448)}")
    for j in range(5): P(f"v_mul_f32 {ST[j][0]}, {f2h(-1.0/448)}, {ST[j][0]}")
    for j in range(5): P(f"v_mul_f32 {ST[j][1]}, {ST[j][0]}, {ST[j][0]}")
    for j in range(5): P(f"v_fma_f32 {ST[j][1]}, {sq[j]}, {S['t0']}, -{ST[j][1]}")
    for j in range(5): P(f"v_max_f32 {ST[j][1]}, 0, {ST[j][1]}")
    for j in range(5): P(f"v_add_f32 {ST[j][1]}, {f2h(1e-5)}, {ST[j][1]}")
    for j in range(5): P(f"v_rsq_f32 {ST[j][1]}, {ST[j][1]}")
    P.ext(bc(csQ, Q))
    LO = "op_sel_hi:[1,0,1]"; HI = "op_sel:[0,1] op_sel_hi:[1,1]"
    def correct(A_, cs_, j, scale, dst):
        o = []
        for tt in range(2):
            a = A_[tt][j]
            o.append(f"v_pk_fma_f32 {a[0:2]}, {cs_[tt][0:2]}, {ST[j]}, {a[0:2]} {LO}")
            o.append(f"v_pk_fma_f32 {a[2:4]}, {cs_[tt][2:4]}, {ST[j]}, {a[2:4]} {LO}")
        if scale:
            for tt in range(2):
                a = A_[tt][j]
                o.append(f"v_pk_mul_f32 {a[0:2]}, {a[0:2]}, {ST[j]} {HI}")
                o.append(f"v_pk_mul_f32 {a[2:4]}, {a[2:4]}, {ST[j]} {HI}")
        for tt in range(2):
            a = A_[tt][j]
            o.append(f"v_cvt_pk_bf16_f32 {dst[2*tt]}, {a[0]}, {a[1]}")
            o.append(f"v_cvt_pk_bf16_f32 {dst[2*tt+1]}, {a[2]}, {a[3]}")
        return o
    def more(n): return b2.loads(n, C.lim)
    seq = []
    for j in range(5): seq.extend(correct(V, csV, j, True, V[0][j]))
    emit(C, merge(seq, (more(OPT["qe"]), 0, len(seq))))
    for j in range(5): P(f"ds_write_b128 {av_w2 if VCH[j] >= 8 else av_w}, {V[0][j]} offset:{(VCH[j]*8192) & 0xffff}")
    seq = []
    l0 = b2.loaded
    for j in range(5): seq.extend(correct(K, csK, j, True, K[0][j]))
    emit(C, merge(seq, (more(OPT["qe"]), 0, len(seq))))
    emit(C, b2.moves(l0))
    Vt = [R("a", C.abase - 20, 10), R("a", C.abase - 10, 10)]
    P("s_waitcnt lgkmcnt(0)"); b2.lgkm()
    for tt in range(2):
        for j in range(5): P(f"ds_read_b64_tr_b16 {Vt[tt][2*j:2*j+2]}, {av_r2 if VCH[j] >= 8 else av_r} offset:{((VCH[j]*8192) & 0xffff) + 8*tt}")
    seq = []
    for j in range(1, 5): seq.extend(correct(Q, csQ, j, False, Q[0][j]))
    emit(C, merge(seq, (more(OPT["qe"] - 1), 0, len(seq))))
    S0 = {j: K[1][j] for j in range(1, 5)}; S1 = {j: V[1][j] for j in range(1, 5)}
    rg = [f"v_cmp_eq_u32 vcc, 1, {g_}", f"v_cndmask_b32 {t[5]}, {ST[1][1]}, {ST[2][1]}, vcc", f"v_cmp_eq_u32 vcc, 2, {g_}", f"v_cndmask_b32 {t[5]}, {t[5]}, {ST[3][1]}, vcc",
          f"v_cmp_eq_u32 vcc, 3, {g_}", f"v_cndmask_b32 {t[5]}, {t[5]}, {ST[4][1]}, vcc", f"v_cmp_lt_u32 vcc, 31, {lane}"]
    seq = []
    for j in range(1, 5):
        seq.append(f"v_mfma_f32_16x16x32_bf16 {S0[j]}, {K[0][j-1]}, {Q[0][j]}, {cfirst if j == 1 else cprev}")
        seq.append(f"v_mfma_f32_16x16x32_bf16 {S1[j]}, {K[0][j]}, {Q[0][j]}, {ccur}")
    P.ext(merge(seq, (rg, 0, 8)))
    get_tag(C)
    P("s_waitcnt lgkmcnt(0)"); b2.release(20)
    emit(C, xtile(C))
    cq = f2h(28 ** -0.5 * math.log2(math.e))
    def softmax(a, b, tm):
        o = []
        X, Y = S0[a], S0[b]
        c, m1, m2 = tm[0], tm[1], tm[2]
        o.append(f"v_cndmask_b32 {c}, {ST[a][1]}, {ST[b][1]}, vcc")
        for r in range(4): o.append(f"v_max_f32 {X[r]}, {X[r]}, {S1[a][r]}")
        for r in range(4): o.append(f"v_max_f32 {Y[r]}, {Y[r]}, {S1[b][r]}")
        o.append(f"v_mul_f32 {c}, {cq}, {c}")
        for r in range(4): o.append(f"v_permlane32_swap_b32 {X[r]}, {Y[r]}")
        for r in range(4): o.append(f"v_max_f32 {X[r]}, {X[r]}, {Y[r]}")
        o.append(f"v_max3_f32 {m1}, {X[0]}, {X[1]}, {X[2]}")
        o.append(f"v_max_f32 {m1}, {m1}, {X[3]}")
        o.append(f"v_mov_b32 {m2}, {m1}")
        o.append(f"v_permlane16_swap_b32 {m1}, {m2}")
        o.append(f"v_max_f32 {m1}, {m1}, {m2}")
        o.append(f"v_mul_f32 {m1}, {m1}, {c}")
        for r in range(4): o.append(f"v_fma_f32 {X[r]}, {X[r]}, {c}, -{m1}")
        for r in range(4): o.append(f"v_exp_f32 {X[r]}, {X[r]}")
        o.append(f"v_add_f32 {m1}, {X[0]}, {X[1]}")
        o.append(f"v_add_f32 {m2}, {X[2]}, {X[3]}")
        o.append(f"v_add_f32 {m1}, {m1}, {m2}")
        o.append(f"v_mov_b32 {m2}, {m1}")
        o.append(f"v_permlane16_swap_b32 {m1}, {m2}")
        o.append(f"v_add_f32 {m1}, {m1}, {m2}")
        o.append(f"v_rcp_f32 {m1}, {m1}")
        for r in range(4): o.append(f"v_mul_f32 {X[r]}, {X[r]}, {m1}")
        o.append(f"v_cvt_pk_bf16_f32 {X[0]}, {X[0]}, {X[1]}")
        o.append(f"v_cvt_pk_bf16_f32 {X[1]}, {X[2]}, {X[3]}")
        o.append(f"v_mov_b32 {Y[0]}, {X[0]}")
        o.append(f"v_mov_b32 {Y[1]}, {X[1]}")
        o.append(f"v_permlane32_swap_b32 {X[0]}, {Y[0]}")
        o.append(f"v_permlane32_swap_b32 {X[1]}, {Y[1]}")
        for Zr in (X, Y):
            o.append(f"v_and_b32 {Zr[2]}, {Zr[0]}, {mcur[0]}")
            o.append(f"v_and_b32 {Zr[3]}, {Zr[1]}, {mcur[1]}")
            o.append(f"v_and_b32 {Zr[0]}, {Zr[0]}, {mprev[0]}")
            o.append(f"v_and_b32 {Zr[1]}, {Zr[1]}, {mprev[1]}")
        return o
    seq = []
    for x_, y_ in zip(softmax(1, 2, dg[1]), softmax(3, 4, dg[2])): seq += [x_, y_]
    l0 = b2.loaded
    emit(C, merge(seq, (more(OPT["qsm"]) + [poll_req(C)], 0, len(seq) * 2 // 3)))
    emit(C, b2.moves(l0))
    P("s_waitcnt lgkmcnt(0)"); b2.lgkm()
    O = [{j: Q[1][j] for j in range(1, 5)}, {j: V[1][j] for j in range(1, 5)}]
    for j in range(1, 5):
        for tt in range(2):
            P(f"v_mfma_f32_16x16x32_bf16 {O[tt][j]}, {Vt[tt][2*(j-1):2*(j-1)+4]}, {S0[j]}, 0")
    Z = {(tt, pr): K[0][2*tt+pr] for tt in range(2) for pr in range(2)}
    for pr in range(2):
        for tt in range(2):
            z = Z[tt, pr]
            for ii in range(2):
                o_ = O[tt][1 + 2*pr + ii]
                P(f"v_cvt_pk_bf16_f32 {z[2*ii]}, {o_[0]}, {o_[1]}\nv_cvt_pk_bf16_f32 {z[2*ii+1]}, {o_[2]}, {o_[3]}")
    for pr in range(2):
        for tt in range(2):
            z = Z[tt, pr]
            P(f"v_permlane16_swap_b32 {z[0]}, {z[2]}\nv_permlane16_swap_b32 {z[1]}, {z[3]}")
    def stores():
        for pr in range(2):
            for tt in range(2):
                P(f"buffer_store_dwordx4 {Z[tt, pr]}, {so}, {sWS}, {S['b1']} offen offset:{tt*2048 + pr*1024} sc1"); vm.issue(("st", 0))
        P(f"buffer_store_dword {t[5]}, {sr}, {sWS}, 0 offen sc1"); vm.issue(("st", 0))
    stamp(C, "epiend")
    stores()
    P("s_cmp_ge_u32 s2, 224\ns_cbranch_scc1 Q_FIN")
    q0 = list(vm.q); l0_ = len(P.l)
    P("Q_FIN:\ns_waitcnt vmcnt(0)\ns_barrier"); flag_store(C); P("s_endpgm")
    C.slow.append("\n".join(P.l[l0_:])); del P.l[l0_:]
    vm.q = q0
    b2.drain(99, C.lim)
    poll_check(C, "PF_Q", 3)
    stamp(C, "polled")
    for tt in range(OPT["LA"]): emit(C, aload(C, tt))
    return max(va.hi, phase2(C, b2, 0))

def page_pads(l, w):
    import subprocess, re, os
    def sizes(lines):
        src = '.amdgcn_target "amdgcn-amd-amdhsa--gfx950"\n.text\n' + "\n".join(f"LN{i}:\n{x}" for i, x in enumerate(lines)) + f"\nLN{len(lines)}:\n"
        open("_pp.s", "w").write(src)
        subprocess.run(["clang", "-x", "assembler", "-target", "amdgcn-amd-amdhsa", "-mcpu=gfx950", "-c", "_pp.s", "-o", "_pp.o"], check=True)
        out = subprocess.run(["llvm-objdump", "-t", "_pp.o"], capture_output=True, text=True).stdout
        ad = {}
        for x in out.split("\n"):
            m = re.match(r"([0-9a-f]+) .* LN(\d+)$", x)
            if m: ad[int(m.group(2))] = int(m.group(1), 16)
        return ad
    for role, start in (("F", "R_FFN:"), ("Q", "R_QKV:")):
        i = l.index(f"WARM_{role}:")
        l[i+1:i+1] = ["s_mov_b64 exec, 0", f"s_cmp_eq_u32 {w}, 0", f"s_cbranch_scc1 PAD{role}1", f"s_cmp_eq_u32 {w}, 1", f"s_cbranch_scc1 PAD{role}2",
                      f"s_cmp_eq_u32 {w}, 2", f"s_cbranch_scc1 PAD{role}3", f"s_branch PAD{role}4", f"BACK_{role}:", "s_mov_b64 exec, -1"]
    tmp = l + [f"PAD{r}{k}:" for r in "FQ" for k in range(1, 5)]
    ad = sizes(tmp)
    ins = []
    for role, start in (("F", "R_FFN:"), ("Q", "R_QKV:")):
        a = l.index(start); b = l.index(f"END_{role}:")
        base = ad[a + 1]; k = 1; masked = False; pos = []
        for i in range(a + 1, b):
            if not masked and ad[i] - base + 4 * len(pos) >= 4096 * k: pos.append(i); k += 1
            if l[i].startswith("s_mov_b64 exec,"): masked = not l[i].endswith("-1")
        n = len(pos)
        for k, i in enumerate(pos, 1): ins.append((i, [f"PAD{role}{k}:", f"s_cbranch_execz {f'PAD{role}{k+4}' if k + 4 <= n else f'BACK_{role}'}"]))
        for k in range(n + 1, 5): ins.append((l.index(f"BACK_{role}:"), [f"PAD{role}{k}:"]))
    for i, x in sorted(ins, key=lambda z: -z[0]): l[i:i] = x
    return l

def main():
    C = Ctx(); P = C.P = Prog()
    sa = Alloc("s", 3, 98); S = C.S = {}
    S['w'] = sa()
    C.ptr = sa(16, 4); C.wsp = sa(2); pc = sa(2)
    C.sX, C.sW, C.sWS, C.sB2, C.sBo, C.sD, C.sP = [sa(4) for _ in range(7)]
    C.mW, C.mH, C.mT, C.mU = sa(2), sa(2), sa(2), sa(2)
    C.tm = pc
    for n in "e rbl cb t0 t1 t2 kx kw wm0 xm0 b1 b2 hh half T cb2 bo bo_s bbeg bend sbeg send ri rr tb bm0 tag".split(): S[n] = sa()
    ns = 102
    assert sa.hi <= 90, sa.hi
    C.names = []; C.allnames = {}; C.slow = []
    dead = [C.ptr[i] for i in (2, 3, 4, 5, 6, 7, 8, 9, 10, 11, 14, 15)]
    C.kxs = [S['kx']] + dead[:6]; C.kws = [S['kw']] + dead[6:]
    C.lane = lane = R("v", 0)
    va = Alloc("v", 3, 256)
    t = C.t = [va() for _ in range(7)]
    C.vA = [va(), va()]; C.vB = [va(), va()]; C.rB = [[va(), va()] for _ in range(3)]; C.rP = [[va(), va()] for _ in range(3)]; C.vXd = va()
    C.vF, C.vZ, C.vN, C.vPF, C.vST, C.vFL = [va() for _ in range(6)]
    C.xd = xd = [va() for _ in range(4)]
    C.vbase = va.p
    C.abase = 96
    C.NA = OPT["LA"] + 1
    C.vring = 256 - 8 * C.NA
    C.aring = [[R("v", C.vring + 8*i + 4*j, 4) for j in range(2)] for i in range(C.NA)]
    na = 256
    pre = list(range(NPRE)) + list(range(14, 14 + NPRE))
    order = [i for i in range(28) if i not in pre] + pre
    C.breg = [[R("a", 8*order.index(i), 4), R("a", 8*order.index(i) + 4, 4)] for i in range(28)]
    w = S['w']
    P(f"{NAME}_kernel:")
    stamp(C, "start")
    if OPT["spin"]: P("s_memrealtime s[98:99]")
    P("s_cmp_ge_u32 s2, 256\ns_cbranch_scc1 K_END")
    P(f"s_load_dwordx16 {C.ptr}, s[0:1], 0\ns_load_dwordx2 {C.wsp}, s[0:1], 64")
    P(f"s_getpc_b64 {pc}\ns_lshr_b32 {S['t0']}, s2, 3\ns_lshl_b32 {S['t0']}, {S['t0']}, 11\nv_lshl_add_u32 v1, v0, 3, {S['t0']}\nglobal_load_dword v2, v1, {pc}")
    P(f"v_lshrrev_b32 v1, 6, v0\nv_and_b32 v0, 63, v0\nv_readfirstlane_b32 {w}, v1")
    P(f"s_bfe_u32 {S['e']}, s2, 0x10002\ns_bfe_u32 {S['rbl']}, s2, 0x30003")
    P(f"s_and_b32 {S['t0']}, s2, 3\ns_lshl_b32 {S['t0']}, {S['t0']}, 1\ns_bfe_u32 {S['t1']}, s2, 0x10006\ns_add_u32 {S['cb']}, {S['t0']}, {S['t1']}")
    if OPT["rot"] and not OPT["com"]:
        P(f"s_lshr_b32 {S['t0']}, s2, 7\ns_lshl_b32 {S['t0']}, {S['t0']}, 1\ns_add_u32 {S['t0']}, {S['t0']}, {S['rbl']}\ns_add_u32 {S['t0']}, {S['t0']}, {S['cb']}")
        P(f"s_mul_i32 {S['t1']}, {S['t0']}, 37\ns_lshr_b32 {S['t1']}, {S['t1']}, 8\ns_mul_i32 {S['t1']}, {S['t1']}, 7\ns_sub_u32 {S['t0']}, {S['t0']}, {S['t1']}")
    else:
        P(f"s_mov_b32 {S['t0']}, 0")
    P(f"s_lshl_b32 {S['kx']}, {S['t0']}, 7\ns_mul_i32 {S['t2']}, {S['e']}, 896")
    P(f"s_lshl_b32 {S['t0']}, {S['rbl']}, 7\ns_lshl_b32 {S['t1']}, {w}, 5\ns_add_u32 {S['t0']}, {S['t0']}, {S['t1']}")
    P(f"v_lshrrev_b32 {t[4]}, 3, {lane}\nv_add_u32 {t[0]}, {S['t0']}, {t[4]}\nv_mul_u32_u24 {t[0]}, 1792, {t[0]}")
    P(f"v_lshrrev_b32 {t[1]}, 4, {lane}\nv_and_b32 {t[5]}, 7, {lane}\nv_xor_b32 {t[2]}, {t[1]}, {t[5]}")
    P(f"v_lshl_add_u32 {xd[0]}, {t[2]}, 4, {t[0]}")
    P(f"v_xor_b32 {t[3]}, 64, {xd[0]}\nv_add_u32 {xd[1]}, {8*1792 - 1024}, {t[3]}\nv_add_u32 {xd[2]}, {16*1792 - 2048}, {xd[0]}\nv_add_u32 {xd[3]}, {24*1792 - 3072}, {t[3]}")
    P(f"s_and_b32 {S['hh']}, {w}, 1\ns_lshr_b32 {S['half']}, {w}, 1\ns_lshl_b32 {S['b1']}, {S['hh']}, 2\ns_lshl_b32 {S['xm0']}, {w}, 12")
    P("s_cmp_lt_u32 s2, 128\ns_cbranch_scc1 H_FFN")
    rq = qkv_head(C)
    P("s_branch R_QKV\nH_FFN:")
    rf = ffn_head(C)
    if OPT["pads"]: P("s_branch R_FFN\n.p2align 12")
    P("R_FFN:")
    nv1 = ffn_body(C, rf)
    P("END_F:")
    if OPT["pads"]: P(".p2align 12")
    P("R_QKV:"); C.names = C.names[:1]
    nv2 = qkv_body(C, rq)
    P("END_Q:")
    for x in C.slow: P(x)
    P("K_END:\ns_endpgm")
    l, npad = pad_hazards(P.l)
    if OPT["pads"] == 1: l = page_pads(l, w)
    out = [f"; generated by gen10.py {OPT} (hazard pads {npad})",
           f"; stamps {C.allnames}",
           "; @launch grid=(256,1,1) block=(256,1,1) lds=163840",
           '.amdgcn_target "amdgcn-amd-amdhsa--gfx950"\n.text',
           f".globl {NAME}_kernel\n.p2align 8\n.type {NAME}_kernel,@function"]
    out.extend(l)
    out.append(".fill 8192, 4, 0xbf800000")
    out.append(kernel_desc(f"{NAME}_kernel", max(nv1, nv2), na, ns))
    print("\n".join(out))
main()
```

```python
import sys, math, struct
from asmlib import *

NAME = "recurrent_scan__sliding_local_dilated__dense_activation_relu__prompt"
OPT = dict(rot=1, pro=20, rate=8, LA=6, RX=27, CK=32, R1=16, stamps=0, b2start=9, b2rate=4, qrate=8, mlag=3, TB=30, fe_per=22, pfm=2, rot2=2, post=4, spin=0, qe=3, pr=5, gsp=2, xst=1, gat=9, npl=1, fine=0, enc='', encwg=0,
           fearly=1, fstart=7, qearly=1, qstart=7, nreg=17, late=0, npre=4, pmv=12, pads=1, wpos=4, gck=2, fepi=0, qsm=5, ntx=0, ntw=0, first=8, com=0, pfs=0, slp=0, rots=1, ahead=2, slack=3, sp2=1, stfirst=1, rotm=7, rotk=1)
for a in sys.argv[1:]:
    k, v = a.split("="); assert k in OPT, k; OPT[k] = int(v) if k != "enc" else v

f2h = lambda x: hex(struct.unpack("<I", struct.pack("<f", x))[0])
NT2 = 36
A2_KS = 144
RSTD_OFF = 2048 * A2_KS * 32
FLAG_OFF = RSTD_OFF + 8 * 8192
SCOL_OFF = FLAG_OFF + 256 * 128
SROW_OFF = SCOL_OFF + 16 * 16384
XF_OFF = SROW_OFF + 16 * 16384
WS_USED = XF_OFF + 224 * 4 * 3072
STAMP_OFF = 16 << 20
WS_REC = (STAMP_OFF + (1 << 20)) if (OPT["stamps"] or OPT["spin"]) else WS_USED
XBYTES = 2048 * 896
NTX = " nt" if OPT["ntx"] else ""; NTW = " nt" if OPT["ntw"] else ""
ONES = "0x3f803f80"; NINF = "0xff800000"; BIG = "0x80000000"
NB = 22
NPRE = OPT["npre"]
assert OPT["late"] + NPRE >= 3 and NPRE % 2 == 0
REL = {"F": [12, 12, 13, 13, 10, 10, 11, 11, 13, 13, 9, 9, 11, 11] + [-1] * 6,
       "Q": [20, 20, 20, 9, 11, 11, 12, 12, 20, 20, 10, 11, 11, -1] + [-1] * 6}
XCH = 19
SPIN_MAX = 1 << 16

def srd(P, d, lo, hi, n):
    P(f"s_mov_b32 {d[0]}, {lo}\ns_mov_b32 {d[1]}, {hi}\ns_mov_b32 {d[2]}, {n}\ns_mov_b32 {d[3]}, 0x20000")

class Cnt:
    def __init__(self, name, mx): self.q = []; self.name = name; self.mx = mx
    def issue(self, tag): self.q.append(tag)
    def cnt(self, pred):
        last = -1
        for i, t in enumerate(self.q):
            if pred(t): last = i
        return min(len(self.q) - 1 - last, self.mx)
    def wait(self, pred): return f"s_waitcnt {self.name}({self.cnt(pred)})"

class Ctx: pass
class Lazy:
    def __init__(self, fn, ty="s"): self.fn = fn; self.ty = ty
def emit(C, seq):
    for x in seq: C.P(x.fn() if isinstance(x, Lazy) else x)
def vop(C, tag, text):
    def f():
        C.vm.issue(tag); return text
    return Lazy(f, types_of(text))
def lop(C, tag, text):
    def f():
        C.lg.issue(tag); return text
    return Lazy(f, types_of(text))

def stamp(C, name):
    if OPT["enc"] == name: C.P("s_memrealtime s[100:101]")
    if not OPT["stamps"]: return
    i = len(C.names); C.names.append(name)
    if i and OPT["fine"] == 1 and name in ("tb",): C.P("s_nop 15\ns_nop 15")
    if i: C.P(f"v_writelane_b32 {C.vST}, s{90 + 2*((i-1)&1)}, {i-1}")
    C.P(f"{'s_memrealtime' if OPT['stamps'] == 1 else 's_memtime'} s[{90 + 2*(i&1)}:{91 + 2*(i&1)}]")

def stamp_flush(C):
    if not OPT["stamps"]: return
    P, S = C.P, C.S
    i = len(C.names)
    P(f"s_waitcnt lgkmcnt(0)\nv_writelane_b32 {C.vST}, s{90 + 2*((i-1)&1)}, {i-1}")
    P(f"s_lshl_b32 {S['t0']}, s2, 2\ns_add_u32 {S['t0']}, {S['t0']}, {S['w']}\ns_lshl_b32 {S['t0']}, {S['t0']}, 8\ns_add_u32 {S['t0']}, {S['t0']}, {STAMP_OFF}")
    P(f"v_lshl_add_u32 v1, v0, 2, {S['t0']}\nbuffer_store_dword {C.vST}, v1, {C.sWS}, 0 offen")
    C.allnames[C.role] = list(C.names)

def itype(line):
    op = line.split()[0]
    if op.endswith(":"): return ""
    if op.startswith("ds_write"): return "W"
    if op.startswith("ds_"): return "t"
    if op.startswith(("buffer_", "global_")): return "m"
    if op.startswith(("v_exp", "v_rcp", "v_rsq", "v_permlane")): return "T"
    if op.startswith("v_"): return "v"
    return "s"
def types_of(it):
    if isinstance(it, Lazy): return it.ty
    return "".join(itype(x) for x in it.split("\n"))
def gap_end(ty):
    t = 4; prev = ""; pstart = 0
    for c in ty:
        if c == "s": t += 4
        elif c in "vT": t = max(t, 8) + (4 if c == "v" else 8)
        else:
            st = t
            if prev in ("v", "T"): st = t + 4
            elif prev in ("t", "m", "W") and (prev == "m") != (c == "m"): st = pstart + 4
            pstart = st; t = st + (8 if c != "W" else 24)
        prev = c
    return t
def spread(main, *streams, clk=16):
    n = len(main)
    qs = []
    for items, a, b in streams:
        k = len(items)
        qs.append([(a * n + (i + 0.5) * (b - a) * n / max(k, 1), it, types_of(it)) for i, it in enumerate(items)])
    out = []
    for g, m in enumerate(main):
        out.append(m)
        ty = "".join(itype(x) for x in m.split("\n")[1:])
        while True:
            cand = [q for q in qs if q and (q[0][0] <= g + OPT["ahead"] or g == n - 1)]
            last_m0 = isinstance(out[-1], str) and " m0," in out[-1].split("\n")[-1]
            fit = [q for q in cand if gap_end(ty + ("s" if last_m0 and q[0][2][:1] == "m" else "") + q[0][2]) <= clk]
            if not fit:
                fit = [q for q in cand if g == n - 1 or (ty == "" and q[0][0] <= g + 1) or q[0][0] <= g - OPT["slack"]]
                if not fit: break
            pr = lambda q: ({"t": 0, "m": 0, "W": 0, "s": 1}.get(q[0][2][:1], 2) if q[0][0] <= g + 1 else 3, q[0][0])
            q = min(fit, key=pr)
            out.append(q[0][1]); ty += q[0][2]; q.pop(0)
    return out

def adv(reg, step, wrap, start=0):
    return f"s_add_u32 {reg}, {reg}, {step}\ns_cmp_eq_u32 {reg}, {wrap}\ns_cselect_b32 {reg}, {start}, {reg}"

def schedule(items, pro, rate, nsteps):
    sched = {s: [] for s in range(-1, nsteps)}
    i = 0
    for s in range(-1, nsteps):
        cap = pro if s == -1 else rate
        n = 0
        while i < len(items) and items[i]["free"] <= s and (n < cap or items[i]["need"] - 2 <= s):
            sched[s].append(i); i += 1; n += 1
    assert i == len(items)
    return sched

class B2:
    def __init__(self, C):
        self.C = C; self.loaded = 0
        rel = REL[C.role]
        self.pend = sorted((rel[i], i) for i in range(20) if i != XCH)
        self.free = []; self.ch = {}
        self.xchunk = XCH
    def release(self, step):
        while self.pend and self.pend[0][0] <= step: self.free.append(self.pend.pop(0)[1])
    def lgkm(self): pass
    def moves(self, *a): return []
    def win(self, t):
        b = self.ch[t] * 8192
        return (b >> 16, b & 0xffff)
    def dma(self, t):
        C = self.C; S = C.S
        if t < 14: sB = C.sB2; so = S['bo']; post = f"s_add_u32 {so}, {so}, 14336" if (t & 1) == 0 else adv(so, 14336, S['bend'], S['bbeg'])
        else: sB = C.sBo; so = S['bo_s']; post = f"s_add_u32 {so}, {so}, {16 * 896}" if (t & 1) == 0 else adv(so, 12 * 896, S['send'], S['sbeg'])
        out = [f"s_add_u32 m0, {S['bm0']}, {self.ch[t] * 8192}"]
        for j in range(2):
            out.append(vop(C, ("b2", t), f"buffer_load_dwordx4 {C.vB[j]}, {sB}, {so} offen offset:{j*1024} lds"))
        pl = post.split("\n")
        out.append(pl[0])
        if len(pl) > 1: out.append("\n".join(pl[1:]))
        return out
    def tr(self, t, dst, regs):
        win, off = self.win(t); rb = regs[win]
        o = []
        for f in range(2):
            o.append(f"ds_read_b64_tr_b16 {dst[f][0:2]}, {rb[f]} offset:{off}")
            o.append(f"ds_read_b64_tr_b16 {dst[f][2:4]}, {rb[f]} offset:{off + 512}")
        return o
    def next_load(self, lim=NB):
        if self.loaded < lim and self.free:
            self.ch[self.loaded] = self.free.pop(0); self.loaded += 1
            return self.dma(self.loaded - 1)
        return None
    def loads(self, n, lim=NB):
        o = []
        for _ in range(n):
            x = self.next_load(lim)
            if x is None: break
            o.extend(x)
        return o
    def drain(self, n, lim):
        emit(self.C, self.loads(n, lim))

def p2_setup(C):
    P, S, t, lane, w = C.P, C.S, C.t, C.lane, C.S['w']
    P(f"s_bfe_u32 {S['t0']}, s2, 0x20001\ns_lshl_b32 {S['t0']}, {S['t0']}, 2\ns_bfe_u32 {S['ri']}, s2, 0x20003\ns_add_u32 {S['t0']}, {S['t0']}, {S['ri']}\ns_lshl_b32 {S['t0']}, {S['t0']}, 1")
    P(f"s_and_b32 {S['t2']}, s2, 1\ns_add_u32 {S['T']}, {S['t0']}, {S['t2']}\ns_lshr_b32 {S['cb2']}, s2, 5")
    G = max(OPT["rot2"], 1)
    tab = sum(((c % G) * 7 // G) << (4 * c) for c in range(8))
    P(f"s_lshl_b32 {S['t0']}, {S['cb2']}, 2\ns_lshr_b32 {S['t0']}, {tab}, {S['t0']}\ns_and_b32 {S['t0']}, {S['t0']}, 15\ns_lshl_b32 {S['t1']}, {S['ri']}, 1\ns_add_u32 {S['t0']}, {S['t0']}, {S['t1']}")
    P(f"s_sub_u32 {S['t1']}, {S['t0']}, 7\ns_cmp_ge_u32 {S['t0']}, 7\ns_cselect_b32 {S['rr']}, {S['t1']}, {S['t0']}")
    P(f"s_lshl_b32 {S['t2']}, {S['t2']}, 2\ns_add_u32 {S['t2']}, {S['t2']}, {w}")
    P(f"s_mul_i32 {S['bbeg']}, {S['t2']}, {14*14336}\ns_add_u32 {S['bend']}, {S['bbeg']}, {14*14336}\ns_mul_i32 {S['t1']}, {S['rr']}, {2*14336}\ns_add_u32 {S['bo']}, {S['bbeg']}, {S['t1']}")
    P(f"s_mul_i32 {S['sbeg']}, {w}, {112*896}\ns_add_u32 {S['send']}, {S['sbeg']}, {112*896}\ns_mul_i32 {S['t1']}, {S['ri']}, {28*896}\ns_add_u32 {S['bo_s']}, {S['sbeg']}, {S['t1']}")
    P(f"s_xor_b32 {S['t0']}, {S['T']}, 1\ns_mul_i32 {S['t0']}, {S['t0']}, {A2_KS}\ns_add_u32 {S['t0']}, {S['t0']}, 32\ns_lshl_b32 {S['t0']}, {S['t0']}, 1\ns_add_u32 {S['t0']}, {S['t0']}, {S['hh']}\ns_lshl_b32 {S['t0']}, {S['t0']}, 10")
    P(f"v_lshl_add_u32 {t[0]}, {lane}, 4, {S['t0']}\ns_mul_i32 {S['t1']}, {S['t2']}, {14*2048}\nv_add_u32 {C.vA[0]}, {S['t1']}, {t[0]}\ns_xor_b32 {S['t1']}, {S['t2']}, 1\ns_mul_i32 {S['t1']}, {S['t1']}, {14*2048}\nv_add_u32 {C.vA[1]}, {S['t1']}, {t[0]}")
    P(f"v_lshrrev_b32 {t[0]}, 3, {lane}\nv_mul_u32_u24 {t[0]}, 896, {t[0]}\nv_bfe_u32 {t[1]}, {lane}, 4, 1\nv_lshlrev_b32 {t[1]}, 2, {t[1]}\nv_and_b32 {t[2]}, 7, {lane}\nv_xor_b32 {t[1]}, {t[1]}, {t[2]}")
    P(f"s_lshl_b32 {S['t1']}, {S['cb2']}, 7\nv_lshl_add_u32 {t[0]}, {t[1]}, 4, {t[0]}\nv_add_u32 {C.vB[0]}, {S['t1']}, {t[0]}\nv_add_u32 {C.vB[1]}, {7168 - 1024}, {C.vB[0]}")
    P(f"s_lshl_b32 {S['bm0']}, {w}, 11")
    P(f"s_cmp_lt_u32 s2, 224\ns_cselect_b32 {S['t0']}, {1792*896}, 0\ns_cselect_b32 {S['t1']}, {448*896}, 0")
    srd(P, C.sB2, C.ptr[10], C.ptr[11], S['t0'])
    srd(P, C.sBo, C.ptr[4], C.ptr[5], S['t1'])
    P(f"s_lshl_b32 {S['t1']}, {S['half']}, 6")
    P(f"v_bfe_u32 {t[0]}, {lane}, 2, 2\nv_lshrrev_b32 {t[1]}, 5, {lane}\nv_lshl_add_u32 {t[0]}, {t[1]}, 3, {t[0]}\nv_lshlrev_b32 {t[0]}, 7, {t[0]}")
    P(f"v_bfe_u32 {t[1]}, {lane}, 3, 1\nv_lshl_add_u32 {t[0]}, {t[1]}, 6, {t[0]}\nv_bfe_u32 {t[1]}, {lane}, 4, 1\nv_lshl_add_u32 {t[0]}, {t[1]}, 5, {t[0]}")
    P(f"v_and_b32 {t[1]}, 3, {lane}\nv_lshl_add_u32 {t[0]}, {t[1]}, 3, {t[0]}\nv_xor_b32 {t[0]}, {S['t1']}, {t[0]}")
    P(f"v_add_u32 {C.rB[0][0]}, {S['bm0']}, {t[0]}\nv_xor_b32 {C.rB[0][1]}, 64, {C.rB[0][0]}")
    for i in (1, 2): P(f"v_add_u32 {C.rB[i][0]}, {65536*i}, {C.rB[0][0]}\nv_add_u32 {C.rB[i][1]}, {65536*i}, {C.rB[0][1]}")
    for i in range(3):
        for j in range(2): P(f"v_xor_b32 {C.rP[i][j]}, 2048, {C.rB[i][j]}")
    P(f"s_and_b32 {S['t0']}, {S['T']}, 15\ns_mul_i32 {S['t0']}, {S['t0']}, {64*1792}\ns_lshr_b32 {S['t1']}, {S['T']}, 4\ns_mul_i32 {S['t1']}, {S['t1']}, 896\ns_add_u32 {S['t0']}, {S['t0']}, {S['t1']}")
    P(f"s_lshl_b32 {S['t1']}, {S['cb2']}, 7\ns_add_u32 {S['tb']}, {S['t0']}, {S['t1']}\ns_mul_i32 {S['t0']}, {w}, {16*1792}\ns_add_u32 {S['t0']}, {S['t0']}, {S['tb']}")
    P(f"v_lshrrev_b32 {t[0]}, 3, {lane}\nv_and_b32 {t[1]}, 7, {lane}\nv_xor_b32 {t[1]}, {t[0]}, {t[1]}\nv_mul_u32_u24 {t[0]}, 1792, {t[0]}\nv_lshl_add_u32 {t[0]}, {t[1]}, 4, {t[0]}\nv_add_u32 {C.vXd}, {S['t0']}, {t[0]}")
    P(f"s_lshr_b32 {S['t0']}, {S['T']}, 4\ns_lshl_b32 {S['t0']}, {S['t0']}, 2\ns_bfe_u32 {S['t1']}, {S['T']}, 0x30001\ns_lshl_b32 {S['t1']}, {S['t1']}, 3\ns_add_u32 {S['t0']}, {S['t0']}, {S['t1']}")
    P(f"s_lshl_b32 {S['t0']}, {S['t0']}, 7\ns_add_u32 {S['t0']}, {S['t0']}, {FLAG_OFF}\nv_and_b32 {t[0]}, 1, {lane}\nv_lshl_add_u32 {C.vF}, {t[0]}, 13, {S['t0']}")
    P(f"s_lshr_b32 {S['t2']}, {S['t2']}, 1\ns_lshl_b32 {S['t2']}, {S['t2']}, 7\ns_lshl_b32 {S['t1']}, {w}, 7\ns_add_u32 {S['t1']}, {S['t1']}, 16384")
    P(f"v_mov_b32 {t[0]}, {S['t2']}\nv_mov_b32 {t[1]}, {S['t1']}\nv_cmp_lt_u32 vcc, 1, {lane}\nv_cndmask_b32 {t[0]}, {t[0]}, {t[1]}, vcc")
    P(f"v_xor_b32 {t[1]}, 128, {t[1]}\nv_cmp_lt_u32 vcc, 3, {lane}\nv_cndmask_b32 {t[0]}, {t[0]}, {t[1]}, vcc\nv_add_u32 {C.vF}, {C.vF}, {t[0]}")
    P(f"v_mov_b32 {t[0]}, {BIG}\nv_cmp_lt_u32 vcc, 5, {lane}\nv_cndmask_b32 {C.vF}, {C.vF}, {t[0]}, vcc")
    srd(P, C.sD, C.ptr[14], C.ptr[15], 256)
    P(f"v_mov_b32 {C.vZ}, 0")
    if OPT["pfm"] == 2 and C.role == "Q":
        P(f"s_sub_u32 {S['t0']}, s2, 224\ns_lshl_b32 {S['t0']}, {S['t0']}, 2\ns_add_u32 {S['t0']}, {S['t0']}, {w}\ns_sub_u32 {S['t1']}, {S['t0']}, 98\ns_cmp_lt_u32 {S['t0']}, 98\ns_cselect_b32 {S['t0']}, {S['t0']}, {S['t1']}")
        P(f"s_cselect_b32 {C.sP[0]}, {C.ptr[10]}, {C.ptr[4]}\ns_cselect_b32 {C.sP[1]}, {C.ptr[11]}, {C.ptr[5]}\ns_mov_b32 {C.sP[2]}, {448*896}\ns_cselect_b32 {C.sP[2]}, {1792*896}, {C.sP[2]}\ns_mov_b32 {C.sP[3]}, 0x20000")
        P(f"s_cmp_lt_u32 s2, 224\ns_cselect_b32 {C.sP[2]}, 0, {C.sP[2]}\ns_cselect_b32 {S['t0']}, 0, {S['t0']}")
        P(f"s_lshl_b32 {S['t0']}, {S['t0']}, 14\nv_lshl_add_u32 {C.vPF}, {lane}, 8, {S['t0']}")

def a_tables(C):
    S = C.S; o = [f"s_lshl_b32 {C.kxs[0]}, {S['rr']}, 12"]
    for d in range(1, 7): o += [f"s_add_u32 {C.kxs[d]}, {C.kxs[d-1]}, 4096", f"s_cmp_eq_u32 {C.kxs[d]}, {7*4096}\ns_cselect_b32 {C.kxs[d]}, 0, {C.kxs[d]}"]
    o.append(f"s_lshl_b32 {C.kws[1]}, {S['ri']}, 12")
    for d in range(1, 4): o += [f"s_add_u32 {C.kws[1+d]}, {C.kws[d]}, 4096", f"s_and_b32 {C.kws[1+d]}, {C.kws[1+d]}, 0x3fff"]
    return o

def run_loop(C, emit_item, sched, reads, mfmas, b2, early, estart, nsteps=14, hook=None, nonce_at=6, rate2=8):
    P, S, vm = C.P, C.S, C.vm
    if OPT["pfm"] == 2 and C.role == "Q" and OPT["pfs"] < 0:
        for j in range(2): vm.issue(("pf", 0)); P(f"buffer_load_dword v2, {C.vPF}, {C.sP}, 0 offen offset:{128*j}")
    P(vm.wait(lambda q: q[0] == "d" and q[1] <= 0) + " lgkmcnt(0)")
    P("s_barrier")
    stamp(C, "d0")
    P.ext(reads(0))
    hist = {}
    for s in range(nsteps):
        pm = NPRE and s == OPT["pmv"]
        if pm: assert b2.loaded >= NPRE
        if s + 1 < nsteps: P(vm.wait(lambda q: (q[0] == "d" and q[1] <= s + 1) or (pm and q[0] == "b2" and q[1] < NPRE)) + " lgkmcnt(0)")
        else: P("s_waitcnt lgkmcnt(0)")
        P("s_barrier")
        if s in (1, 2, 4, 7, 10, 13) or (OPT["fine"] == 2 and s >= 1): stamp(C, f"s{s}")
        m = mfmas(s)
        rd = reads(s + 1) if s + 1 < nsteps else []
        dm = []; C.m0 = None
        for i in sched[s]: dm.extend(emit_item(i))
        if OPT["pfm"] == 2 and C.role == "Q" and s == OPT["pfs"]:
            dm = [vop(C, ("pf", 0), f"buffer_load_dword v2, {C.vPF}, {C.sP}, 0 offen offset:{128*j}") for j in range(2)] + dm
        if s == nonce_at: dm.insert(0, vop(C, ("nonce", 0), f"buffer_load_dword {C.vN}, {C.vZ}, {C.sD}, 0 offen sc1"))
        mv = []
        b2.release(s)
        if NPRE and s == OPT["pmv"] + 1: b2.free += [b2.ch[t_] for t_ in range(NPRE)]
        if NPRE and s == OPT["pmv"] - 1:
            assert b2.loaded >= NPRE
            mv = [Lazy(lambda: vm.wait(lambda q: q[0] == "b2" and q[1] < NPRE))] + [x for t_ in range(NPRE) for x in b2.tr(t_, C.breg[t_], C.rB)]
        if pm: mv = [x for t_ in range(NPRE) for x in b2.tr(t_, C.breg[14 + t_], C.rP)]
        if s >= estart:
            n = sum(1 for x in dm if isinstance(x, Lazy))
            k = max((rate2 + 1 - n) // 2, early) if s >= OPT["b2start"] else early
            dm.extend(b2.loads(k, C.lim))
        hist[s] = b2.loaded
        ex = hook(s) if hook else []
        if s == nsteps - 1: ex = ex + a_tables(C)
        emit(C, spread(m, (rd, 0, 0.8), (dm, 0, 0.95), (mv, 0.3, 0.9), (ex, 0.05, 0.95)))
    C.hist = hist
    stamp(C, "loopend")

def get_tag(C):
    P, S, role = C.P, C.S, C.role
    P(C.vm.wait(lambda q: q[0] == "nonce"))
    P(f"v_readfirstlane_b32 {S['tag']}, {C.vN}\ns_cmp_eq_u32 {S['tag']}, 0\ns_cbranch_scc1 TAGSL_{role}\nTAGOK_{role}:")
    C.slow.append(f"TAGSL_{role}:\ns_mov_b32 {S['t2']}, 0\nTAGLP_{role}:\nbuffer_load_dword {C.vN}, {C.vZ}, {C.sD}, 0 offen sc1\ns_waitcnt vmcnt(0)\nv_readfirstlane_b32 {S['tag']}, {C.vN}\ns_add_u32 {S['t2']}, {S['t2']}, 1\n"
                  f"s_cmp_ge_u32 {S['t2']}, {SPIN_MAX}\ns_cbranch_scc1 TAGOK_{role}\ns_cmp_eq_u32 {S['tag']}, 0\ns_cbranch_scc1 TAGLP_{role}\ns_branch TAGOK_{role}")

def flag_store(C):
    P, S, t = C.P, C.S, C.t
    P(f"s_lshl_b32 {S['t0']}, s2, 7\ns_add_u32 {S['t0']}, {S['t0']}, {FLAG_OFF}\ns_cmp_eq_u32 {S['w']}, 0\ns_cselect_b32 {S['t0']}, {S['t0']}, {BIG}")
    P(f"v_mov_b32 {t[5]}, {S['t0']}\nv_mov_b32 {t[6]}, {S['tag']}\ns_mov_b64 exec, 1\nbuffer_store_dword {t[6]}, {t[5]}, {C.sWS}, 0 offen sc1\ns_mov_b64 exec, -1")
    C.vm.issue(("flag", 0))

def poll_req(C): return vop(C, ("pl", 0), f"buffer_load_dword {C.vFL}, {C.vF}, {C.sWS}, 0 offen sc1")
def poll_check(C, label, mask, first=True):
    P, S = C.P, C.S
    loop = (f"s_mov_b32 {S['t2']}, 0\n{label}:\nbuffer_load_dword {C.vFL}, {C.vF}, {C.sWS}, 0 offen sc1\ns_waitcnt vmcnt(0)\nv_cmp_eq_u32 vcc, {S['tag']}, {C.vFL}\ns_add_u32 {S['t2']}, {S['t2']}, 1\n"
            f"s_cmp_ge_u32 {S['t2']}, {SPIN_MAX}\ns_cbranch_scc1 {label}_X\ns_and_b32 {S['t0']}, vcc_lo, {mask}\ns_cmp_lg_u32 {S['t0']}, {mask}\ns_cbranch_scc1 {label}")
    if OPT["slp"]: loop = loop.replace(f"{label}:\nbuffer_load", f"s_branch {label}_F\n{label}:\ns_sleep {OPT['slp']}\n{label}_F:\nbuffer_load") if not first else loop.replace(f"{label}:\nbuffer_load", f"{label}:\ns_sleep {OPT['slp']}\nbuffer_load")
    if first:
        P(C.vm.wait(lambda q: q[0] == "pl"))
        P(f"v_cmp_eq_u32 vcc, {S['tag']}, {C.vFL}\ns_and_b32 {S['t0']}, vcc_lo, {mask}\ns_cmp_lg_u32 {S['t0']}, {mask}\ns_cbranch_scc1 {label}_S\n{label}_X:")
        C.slow.append(f"{label}_S:\n{loop}\ns_branch {label}_X")
    else:
        P(loop + f"\n{label}_X:")

def xtile(C):
    S = C.S
    o = [f"s_mov_b32 {C.sX[0]}, {C.ptr[0]}\ns_mov_b32 {C.sX[1]}, {C.ptr[1]}\ns_mov_b32 {C.sX[2]}, {XBYTES}\ns_mov_b32 {S['t1']}, {8*1792 - 1024}\ns_add_u32 m0, {S['bm0']}, {XCH*8192}"]
    return o + [vop(C, ("e", 0), f"buffer_load_dwordx4 {C.vXd}, {C.sX}, {S['t1'] if j else 0} offen offset:{1024*j} lds") for j in range(2)]

def aload(C, tt):
    if tt < 28: seg = tt // 7; so = C.kxs[tt % 7]
    else: seg = 4 + (tt - 28) // 4; so = C.kws[1 + (tt - 28) % 4]
    return [vop(C, ("a", tt), f"buffer_load_dwordx4 {C.aring[tt % C.NA][j]}, {C.vA[seg]}, {C.sWS}, {so} offen offset:{2048*j} sc1") for j in range(2)]

def phase2(C, b2, flag_at):
    P, S, vm, t, lane, w = C.P, C.S, C.vm, C.t, C.lane, C.S['w']
    role = C.role; LA = OPT["LA"]; NA = C.NA; aring = C.aring
    lg = C.lg = Cnt("lgkmcnt", 15)
    va = Alloc("v", C.vbase, C.vring)
    acc = [[va(16, 4) for _ in range(2)] for _ in range(3)]
    G = va(12, 4)
    xv = [va(2) for _ in range(4)]; kk = va(2); vO = va(); vL = va(); Rr = va(8, 4)
    rstd, k1 = kk[0], kk[1]
    vXr = va(); vR = va(); vGs = va(); vGr = va(); wad = va(); rad = va()
    rP = C.rP
    C.vA = C.vA[:2] + [va() for _ in range(4)]
    breg = C.breg
    sb = [[[R("a", 224 + 16*p + 8*j + 4*f, 4) for f in range(2)] for j in range(2)] for p in range(2)]
    sO = C.sW
    n_, hf = t[3], t[4]
    su = []
    def U(s): su.extend(s.split("\n"))
    U(f"v_and_b32 {n_}, 31, {lane}\nv_lshrrev_b32 {hf}, 5, {lane}\nv_lshlrev_b32 {vL}, 4, {lane}")
    U(f"s_and_b32 {S['b1']}, {S['T']}, 1\ns_mul_i32 {S['b1']}, {S['b1']}, {2*A2_KS*2048}\ns_sub_u32 {S['b1']}, {S['b1']}, {A2_KS*2048}\nv_add_u32 {C.vA[2]}, {S['b1']}, {C.vA[0]}\nv_add_u32 {C.vA[3]}, {S['b1']}, {C.vA[1]}")
    U(f"s_mul_i32 {S['b1']}, {S['T']}, {2*A2_KS}\ns_add_u32 {S['b1']}, {S['b1']}, {S['hh']}\ns_lshl_b32 {S['b1']}, {S['b1']}, 10\nv_add_u32 {t[0]}, {S['b1']}, {vL}")
    U(f"s_lshl_b32 {S['b1']}, {w}, 14\nv_add_u32 {C.vA[4]}, {S['b1']}, {t[0]}\ns_xor_b32 {S['b1']}, {S['b1']}, 16384\nv_add_u32 {C.vA[5]}, {S['b1']}, {t[0]}")
    U(f"s_lshl_b32 {S['b1']}, s2, 2\ns_add_u32 {S['b1']}, {S['b1']}, {w}\ns_mul_i32 {S['b2']}, {S['b1']}, 3072\ns_add_u32 {S['b2']}, {S['b2']}, {XF_OFF}\nv_add_u32 {vGr}, {S['b2']}, {vL}")
    U(f"s_xor_b32 {S['b2']}, {S['b1']}, 4\ns_mul_i32 {S['b2']}, {S['b2']}, 3072\ns_add_u32 {S['b2']}, {S['b2']}, {XF_OFF}\nv_add_u32 {vGs}, {S['b2']}, {vL}")
    for g in range(3): U(f"v_mov_b32 {G[4*g+3]}, {S['tag']}")
    U(f"s_mov_b32 {sO[0]}, {C.ptr[12]}\ns_mov_b32 {sO[1]}, {C.ptr[13]}\ns_mov_b32 {sO[2]}, {XBYTES}")
    U(f"s_lshl_b32 {S['b2']}, {S['hh']}, 12\ns_add_u32 {S['b2']}, {S['b2']}, {XCH*8192}")
    U(f"v_lshlrev_b32 {t[0]}, 7, {n_}\nv_lshl_add_u32 {t[0]}, {hf}, 3, {t[0]}")
    U(f"s_lshl_b32 {S['wm0']}, {S['half']}, 2\nv_and_b32 {t[1]}, 7, {lane}\nv_xor_b32 {t[1]}, {S['wm0']}, {t[1]}\nv_lshl_add_u32 {t[0]}, {t[1]}, 4, {t[0]}\nv_add_u32 {vXr}, {S['b2']}, {t[0]}")
    U(f"s_mul_i32 {S['b2']}, {S['hh']}, {32*1792}\ns_add_u32 {S['b2']}, {S['b2']}, {S['tb']}\ns_lshl_b32 {S['wm0']}, {S['half']}, 6\ns_add_u32 {S['b2']}, {S['b2']}, {S['wm0']}")
    U(f"v_mul_u32_u24 {t[0]}, 1792, {n_}\nv_add_u32 {t[0]}, {S['b2']}, {t[0]}\nv_lshl_add_u32 {vO}, {hf}, 4, {t[0]}")
    U(f"s_lshl_b32 {S['b2']}, {S['T']}, 1\ns_add_u32 {S['b2']}, {S['b2']}, {S['hh']}\ns_lshl_b32 {S['b2']}, {S['b2']}, 7\ns_lshl_b32 {S['wm0']}, {w}, 14\ns_add_u32 {S['b2']}, {S['b2']}, {S['wm0']}\ns_add_u32 {S['b2']}, {S['b2']}, {RSTD_OFF}")
    U(f"v_lshl_add_u32 {vR}, {n_}, 2, {S['b2']}")
    assert b2.loaded >= 14
    w2ch = [b2.ch[t_] for t_ in range(NPRE, 14)]
    wn = max(range(3), key=lambda k: sum(1 for c in w2ch if c >> 3 == k))
    pch = [c for c in w2ch if c >> 3 == wn][:4]; assert len(pch) == 4
    U(f"s_add_u32 {S['b2']}, {S['bm0']}, {65536*wn}\nv_add_u32 {wad}, {S['b2']}, {vL}\nv_xor_b32 {rad}, 4096, {wad}")
    slot = lambda i, a: ((pch[2*i + (a >> 1)] * 8192) & 0xffff) + (a & 1) * 1024
    NSU = 13
    F, Fp = acc[1]; Sv, Sp = acc[2]; E, X = acc[0]
    gd = lambda k: G[4*(k // 3) + k % 3]
    gw = [lop(C, ("gw", 0), f"ds_write_b128 {wad}, {X[4*a:4*a+4]} offset:{slot(1, a)}") for a in range(4)]
    gr = [lop(C, ("gr", 0), f"ds_read_b128 {X[4*a:4*a+4]}, {rad} offset:{slot(1, a)}") for a in range(4)]
    gs = [Lazy(lambda: lg.wait(lambda q: q[0] == "gr"))]
    for k in range(8):
        gs += [f"v_add_f32 {E[r]}, {E[r]}, {X[r]}" for r in (2*k, 2*k+1)] + [f"v_cvt_pk_bf16_f32 {gd(k)}, {E[2*k]}, {E[2*k+1]}"]
        if k in (2, 5, 7): gs.append(vop(C, ("xs", 0), f"buffer_store_dwordx4 {G[4*(k//3):4*(k//3) + 4]}, {vGs}, {C.sWS}, 0 offen offset:{1024*(k//3)} sc1"))
    gl = [f"buffer_load_dwordx4 {G[4*g:4*g+4]}, {vGr}, {C.sWS}, 0 offen offset:{1024*g} sc1" for g in range(3)]
    U(f"s_mov_b32 {S['b1']}, 0x3f80\ns_mov_b32 {S['b2']}, 0x3f800000")
    ck = [f"v_xor_b32 {G[4*g+3]}, {S['tag']}, {G[4*g+3]}" for g in range(3)] + [f"v_or3_b32 {G[3]}, {G[3]}, {G[7]}, {G[11]}", f"v_cmp_ne_u32 vcc, 0, {G[3]}"]
    C.slow.append(f"XG_S{role}:\ns_mov_b32 {S['t2']}, 0\nXG_L{role}:\n" + "\n".join(gl) + "\ns_waitcnt vmcnt(0)\n" + "\n".join(ck) +
                  f"\ns_add_u32 {S['t2']}, {S['t2']}, 1\ns_cmp_ge_u32 {S['t2']}, {SPIN_MAX}\ns_cbranch_scc1 XG_X{role}\ns_cmp_lg_u64 vcc, 0\ns_cbranch_scc1 XG_L{role}\ns_branch XG_X{role}")
    ck = [Lazy(lambda: vm.wait(lambda q: q[0] == "xl"))] + ck + [f"s_cmp_lg_u64 vcc, 0\ns_cbranch_scc1 XG_S{role}\nXG_X{role}:"]
    def fe_plain(a):
        o = [Lazy(lambda a=a: lg.wait(lambda q: q == ("fr", a)))]
        R_ = range(4*a, 4*a+4)
        o += [f"v_add_f32 {F[r]}, {F[r]}, {Fp[r]}" for r in R_]
        o += [(f"v_lshlrev_b32 {E[r]}, 16, {gd(r//2)}" if r % 2 == 0 else f"v_and_b32 {E[r]}, 0xffff0000, {gd(r//2)}") for r in R_]
        o += [f"v_add_f32 {F[r]}, {F[r]}, {E[r]}" for r in R_]
        o += [f"v_mul_f32 {E[r]}, {F[r]}, {k1}" for r in R_] + [f"v_exp_f32 {E[r]}, {E[r]}" for r in R_] + [f"v_mul_f32 {F[r]}, {F[r]}, {rstd}" for r in R_]
        o += [f"v_add_f32 {E[r]}, 1.0, {E[r]}" for r in R_] + [f"v_rcp_f32 {E[r]}, {E[r]}" for r in R_]
        o += [f"v_mul_f32 {F[r]}, {F[r]}, {E[r]}" for r in R_]
        return o
    def fe_pk(a):
        o = [Lazy(lambda a=a: lg.wait(lambda q: q == ("fr", a)))]
        R_ = range(4*a, 4*a+4); H = [slice(4*a, 4*a+2), slice(4*a+2, 4*a+4)]
        o += [f"v_pk_add_f32 {F[h]}, {F[h]}, {Fp[h]}" for h in H]
        o += [f"v_pk_mul_f32 {E[h]}, {F[h]}, {kk} op_sel:[0,1] op_sel_hi:[1,1]" for h in H]
        o += [f"v_exp_f32 {E[r]}, {E[r]}" for r in R_] + [f"v_pk_mul_f32 {F[h]}, {F[h]}, {kk} op_sel_hi:[1,0]" for h in H]
        o += [f"v_pk_add_f32 {E[h]}, {E[h]}, 1.0 op_sel_hi:[1,0]" for h in H] + [f"v_rcp_f32 {E[r]}, {E[r]}" for r in R_]
        o += [f"v_pk_mul_f32 {F[h]}, {F[h]}, {E[h]}" for h in H]
        return o
    NPL = OPT["npl"]
    fe1 = [x for a in range(NPL) for x in fe_plain(a)]
    fe2 = [f"v_dot2c_f32_bf16 {F[r]}, {S['b1'] if r % 2 == 0 else S['b2']}, {gd(r//2)}" for r in range(4*NPL, 16)] + [x for a in range(NPL, 4) for x in fe_pk(a)]
    fw = [lop(C, ("fw", 0), f"ds_write_b128 {wad}, {Fp[4*a:4*a+4]} offset:{slot(0, a)}") for a in range(4)]
    fr = [lop(C, ("fr", a), f"ds_read_b128 {Fp[4*a:4*a+4]}, {rad} offset:{slot(0, a)}") for a in range(4)]
    sw = [lop(C, ("sw", 0), f"ds_write_b128 {wad}, {Sp[4*a:4*a+4]} offset:{slot(1, a)}") for a in range(4)]
    sr = [lop(C, ("sr", a), f"ds_read_b128 {Sp[4*a:4*a+4]}, {rad} offset:{slot(1, a)}") for a in range(4)]
    xr = []
    for a in range(4): xr += [f"v_xor_b32 {t[0]}, {16*a}, {vXr}", lop(C, ("xr", 0), f"ds_read_b64 {xv[a]}, {t[0]}")]
    xu = [Lazy(lambda: lg.wait(lambda q: q[0] == "xr"))]
    for a in range(4):
        for h in range(2): xu += [f"v_lshlrev_b32 {X[4*a+2*h]}, 16, {xv[a][h]}", f"v_and_b32 {X[4*a+2*h+1]}, 0xffff0000, {xv[a][h]}"]
    TPOLL = 28 - LA - 4
    BV, BF, TB = 6 + NPRE // 2, 14, 30
    R1 = OPT['R1']
    RX, CK = OPT["RX"], OPT["CK"]
    def trs_for(tt):
        o = []
        for j in range(2):
            if tt < 14 and 2 * (tt % 7) < NPRE: continue
            if tt < 14: o += b2.tr(2 * (tt % 7) + j, breg[2*tt + j], C.rB if tt < 7 else rP)
            else: o += b2.tr(14 + 2 * ((tt - 28) & 3) + j, sb[tt & 1][j], C.rB if tt < 32 else rP)
        return [lop(C, ("tr", tt), y) for y in o]
    P(vm.wait(lambda q: q[0] == "b2" and q[1] <= 1) + " lgkmcnt(0)")
    emit(C, trs_for(0))
    for tt in range(NT2):
        nb = min(2 * tt + 3, 13) if tt < 27 else NB - 1
        assert nb < b2.loaded
        P(vm.wait(lambda q: q == ("a", tt) or (q[0] == "b2" and q[1] <= nb) or (tt == flag_at and q[0] == "st") or (tt == TB and q[0] == "e")))
        if tt in ((0, 7, 14, 21, 28) if OPT["fine"] != 1 else (0, 7, 14, 16, 21, 24, 26, 28, 29, 30, 31, 32, 33, 34, 35)): stamp(C, f"a{tt}")
        if tt == flag_at:
            P("s_barrier"); flag_store(C); stamp(C, "flag")
        if any(q == ("tr", tt) for q in lg.q): P(lg.wait(lambda q: q == ("tr", tt) or (tt == TB and q[0] == "fw")))
        if tt == R1: P(lg.wait(lambda q: q[0] == "gw"))
        if tt in (BV, BF, R1, TB): P("s_barrier")
        if tt == BF: b2.free += [c for c in w2ch if c not in pch]
        trs = trs_for(tt + 1) if (tt + 1 < 14 or 28 <= tt + 1 < NT2) else []
        ld = []; va_ = []
        if tt < NSU:
            k = len(su); va_ = su[tt * k // NSU:(tt + 1) * k // NSU]
        if tt == TPOLL: ld.append(poll_req(C))
        if tt + LA == 28:
            def chk():
                l0 = len(P.l); poll_check(C, f"PS_{role}", 60); x = "\n".join(P.l[l0:]); del P.l[l0:]; return x
            ld.append(Lazy(chk, "svsss"))
            ld.append(vop(C, ("e", 0), f"buffer_load_dword {rstd}, {vR}, {C.sWS}, 0 offen sc1"))
        if tt + LA < NT2: ld.extend(aload(C, tt + LA))
        if tt >= 17 or (tt < 14 and tt % 2 == 1): ld.extend(b2.loads(1))
        if 14 <= tt < R1: va_ = gw[(tt - 14) * 4 // (R1 - 14):(tt - 13) * 4 // (R1 - 14)]
        if tt == R1: va_ = gr
        if R1 < tt <= R1 + 3: va_ = gs[(tt - R1 - 1) * len(gs) // 3:(tt - R1) * len(gs) // 3]
        if tt == RX: ld += [vop(C, ("xl", 0), x) for x in gl]
        if tt in (28, 29): va_ = fw[(tt - 28) * 2:(tt - 27) * 2]
        if tt == TB: va_ = [f"v_mul_f32 {k1}, {f2h(-math.log2(math.e))}, {rstd}"] + fr + xr
        if tt == TB + 1: va_ = va_ + xu
        if tt == CK: va_ = va_ + ck
        if tt > CK:
            k = len(fe1); i = tt - CK - 1; nn = NT2 - 1 - CK; va_ = va_ + fe1[i * k // nn:(i + 1) * k // nn]
        ps = 0 if tt < 14 else (1 if tt < 28 else 2)
        last = tt in (13, 27, 35)
        order = ((1, 0), (0, 0), (1, 1), (0, 1)) if not last else ((1, 0), (1, 1), (0, 0), (0, 1))
        Bf = (lambda j, f: breg[2*(tt % 14) + j][f]) if tt < 28 else (lambda j, f: sb[tt & 1][j][f])
        m = [f"v_mfma_f32_32x32x16_bf16 {acc[ps][f]}, {Bf(j, f)}, {aring[tt % NA][j]}, {0 if (tt in (0, 14, 28) and j == 0) else acc[ps][f]}" for f, j in order]
        if OPT['sp2']: emit(C, spread(m, (trs, 0, 0.6), (ld, 0, 0.9), (va_, 0.3 if tt in (14, 28) else 0, 0.95), clk=32))
        else: emit(C, merge(m, (trs, 0, 3), (ld, 0, 4), (va_, 1 if tt in (14, 28) else 0, 4)))
    assert b2.loaded == NB and CK > TB and (CK < NT2 - 1 or NPL == 0)
    stamp(C, "p2end")
    h = min(len(fe2), 14)
    emit(C, merge(fe2[:h], (sw, 0, h)) if h else sw)
    P(lg.wait(lambda q: q[0] == "sw")); P("s_barrier")
    if OPT["fine"] == 1: stamp(C, "sb")
    emit(C, sr)
    emit(C, fe2[h:])
    if OPT["fine"] == 1: stamp(C, "fedone")
    for a in range(4):
        P(lg.wait(lambda q: q == ("sr", a)))
        H = [slice(4*a, 4*a+2), slice(4*a+2, 4*a+4)]
        for h_ in H: P(f"v_pk_add_f32 {Sv[h_]}, {Sv[h_]}, {Sp[h_]}")
        for h_ in H: P(f"v_pk_fma_f32 {Sv[h_]}, {Sv[h_]}, {F[h_]}, {X[h_]}")
        P(f"v_cvt_pk_bf16_f32 {Rr[2*a]}, {Sv[4*a]}, {Sv[4*a+1]}\nv_cvt_pk_bf16_f32 {Rr[2*a+1]}, {Sv[4*a+2]}, {Sv[4*a+3]}")
        if a & 1:
            p = a >> 1
            P(f"v_permlane32_swap_b32 {Rr[4*p]}, {Rr[4*p+2]}\nv_permlane32_swap_b32 {Rr[4*p+1]}, {Rr[4*p+3]}")
            P(f"buffer_store_dwordx4 {Rr[4*p:4*p+4]}, {vO}, {sO}, 0 offen offset:{32*p}")
    if OPT["stamps"]:
        stamp(C, "stored"); P("s_waitcnt vmcnt(0)"); stamp(C, "end")
    if OPT["enc"] == "end": P("s_waitcnt vmcnt(0)\ns_memrealtime s[100:101]")
    if OPT["spin"] and (OPT["encwg"] == -1 or (OPT["encwg"] == -2 and role == "F") or (OPT["encwg"] == -3 and role == "Q") or (OPT["encwg"] >= 0 and role == ("F" if OPT["encwg"] < 128 else "Q"))):
        if OPT["encwg"] >= 0: P(f"s_cmp_lg_u32 s2, {OPT['encwg']}\ns_cbranch_scc1 SPN2{role}")
        P(f"s_waitcnt lgkmcnt(0)\ns_mov_b32 {S['t1']}, {OPT['spin']}")
        if OPT["enc"]: P(f"s_sub_u32 {S['t0']}, s100, s98\ns_lshl_b32 {S['t0']}, {S['t0']}, 2\ns_add_u32 {S['t1']}, {S['t1']}, {S['t0']}\ns_min_u32 {S['t1']}, {S['t1']}, 20000")
        P(f"SPN1{role}:\ns_sleep 2\ns_memrealtime {C.tm}\ns_waitcnt lgkmcnt(0)\ns_sub_u32 {S['t0']}, {C.tm[0]}, s98\ns_cmp_lt_u32 {S['t0']}, {S['t1']}\ns_cbranch_scc1 SPN1{role}\nSPN2{role}:")
    stamp_flush(C)
    P("s_endpgm")
    del C.lg
    C.vA = C.vA[:2]
    return 256

def dma_item(C, need, m0expr, load, execmask=None):
    s = load
    if execmask: s = f"s_mov_b64 exec, {execmask}\n{s}\ns_mov_b64 exec, -1"
    o = []
    if C.m0 != m0expr: o.append(m0expr)
    C.m0 = m0expr
    return o + [vop(C, ("d", need), s)]

def slab_tables(C, wmul):
    P, S = C.P, C.S
    if OPT["com"]:
        P(f"s_bfe_u32 {S['t0']}, s2, 0x20006\ns_mul_i32 {S['t0']}, {S['t0']}, 3\ns_lshr_b32 {S['t0']}, {S['t0']}, 1\ns_add_u32 {S['t0']}, {S['t0']}, {S['rbl']}")
        P(f"s_sub_u32 {S['t1']}, {S['t0']}, 6\ns_cmp_ge_u32 {S['t0']}, 6\ns_cselect_b32 {S['t0']}, {S['t1']}, {S['t0']}\ns_lshl_b32 {S['t0']}, {S['t0']}, 7")
        for d in range(1, 7):
            P(f"s_add_u32 {C.kxs[d]}, {C.kxs[d-1] if d > 1 else S['t0']}, 128\ns_cmp_eq_u32 {C.kxs[d]}, 896\ns_cselect_b32 {C.kxs[d]}, 128, {C.kxs[d]}\ns_mul_i32 {C.kws[d]}, {C.kxs[d]}, {wmul}")
        return
    for d in range(1, 7):
        P(f"s_add_u32 {C.kxs[d]}, {C.kxs[d-1]}, 128\ns_cmp_eq_u32 {C.kxs[d]}, 896\ns_cselect_b32 {C.kxs[d]}, 0, {C.kxs[d]}\ns_mul_i32 {C.kws[d]}, {C.kxs[d]}, {wmul}")

class Role: pass

def ffn_head(C):
    P, S, lane, t = C.P, C.S, C.lane, C.t
    Rl = Role(); Rl.vm = C.vm = Cnt("vmcnt", 63); C.vm.issue(("pf", 0)); C.m0 = None
    va = Rl.va = Alloc("v", C.vbase, 256)
    NW, NX = 4, 3; WB, XB = 0, 65536
    xd = C.xd; wd = Rl.wd = [va() for _ in range(8)]
    w = S['w']
    P(f"s_mul_i32 {S['t0']}, {S['cb']}, 448\ns_and_b32 {S['t0']}, {S['t0']}, 0xffffff80\ns_mul_i32 {S['t1']}, {w}, {8*3584}\ns_add_u32 {S['t0']}, {S['t0']}, {S['t1']}")
    P(f"v_lshrrev_b32 {t[0]}, 5, {lane}\nv_bfe_u32 {t[1]}, {lane}, 1, 4\nv_xor_b32 {t[1]}, {t[0]}, {t[1]}\nv_xor_b32 {t[1]}, {S['b1']}, {t[1]}")
    P(f"v_mul_u32_u24 {t[0]}, 3584, {t[0]}\nv_lshl_add_u32 {t[0]}, {t[1]}, 5, {t[0]}\nv_and_b32 {t[1]}, 1, {lane}\nv_lshl_add_u32 {t[0]}, {t[1]}, 4, {t[0]}")
    P(f"v_add_u32 {wd[0]}, {S['t0']}, {t[0]}\nv_xor_b32 {t[3]}, 64, {wd[0]}")
    P(f"v_add_u32 {wd[1]}, {2*3584 - 1024}, {t[3]}\nv_add_u32 {wd[2]}, {4*3584 - 2048}, {wd[0]}\nv_add_u32 {wd[3]}, {6*3584 - 3072}, {t[3]}")
    P(f"s_mul_i32 {S['kw']}, {S['kx']}, {64*3584//128}")
    P(f"s_memrealtime {C.mT}\ns_or_b32 {S['t0']}, s2, {w}\ns_cmp_eq_u32 {S['t0']}, 0\ns_cselect_b32 {C.sD[2]}, 256, 0\ns_mov_b32 {C.sD[3]}, 0x20000\nv_mov_b32 {t[0]}, 0")
    karg(C)
    P(f"s_or_b32 {S['t0']}, {C.mT[0]}, 1\nv_mov_b32 {t[1]}, {S['t0']}\ns_mov_b32 {C.sD[0]}, {C.ptr[14]}\ns_mov_b32 {C.sD[1]}, {C.ptr[15]}\nbuffer_store_dword {t[1]}, {t[0]}, {C.sD}, 0 offen sc1")
    C.vm.issue(("non", 0))
    srd(P, C.sW, C.ptr[8], C.ptr[9], 448 * 3584)
    items = []
    for d in range(7):
        for j in range(4): items.append(dict(k="x", d=d, j=j, need=2*d, free=(2*(d-NX)+1 if d >= NX else -1)))
        for s in (2*d, 2*d+1):
            for j in range(4): items.append(dict(k="w", s=s, j=j, need=s, free=(s-NW if s >= NW else -1)))
    def emit_item(i):
        it = items[i]; j = it["j"]
        if it["k"] == "x":
            return dma_item(C, it["need"], f"s_add_u32 m0, {S['xm0']}, {XB + (it['d'] % NX)*16384}",
                            f"buffer_load_dwordx4 {xd[j]}, {C.sX}, {C.kxs[it['d']]} offen offset:{j*1024}{NTX} lds")
        return dma_item(C, it["need"], f"s_add_u32 m0, {S['xm0']}, {WB + (it['s'] % NW)*16384}",
                        f"buffer_load_dwordx4 {wd[j + 4*(it['s']&1)]}, {C.sW}, {C.kws[it['s']>>1]} offen offset:{j*1024}{NTW} lds")
    Rl.sched = schedule(items, OPT["pro"], OPT["rate"], 14); Rl.emit_item = emit_item
    for i in Rl.sched[-1][:8]: emit(C, emit_item(i))
    for j in range(4): P(f"v_add_u32 {wd[4+j]}, {32*3584}, {wd[j]}")
    for i in Rl.sched[-1][8:OPT["first"]]: emit(C, emit_item(i))
    return Rl

def karg(C):
    P, S = C.P, C.S
    P("s_waitcnt lgkmcnt(0)")
    P(f"s_add_u32 {C.sX[0]}, {C.ptr[0]}, {S['t2']}\ns_addc_u32 {C.sX[1]}, {C.ptr[1]}, 0\ns_sub_u32 {C.sX[2]}, {XBYTES}, {S['t2']}\ns_mov_b32 {C.sX[3]}, 0x20000")

def ffn_body(C, Rl):
    P, S, lane, t = C.P, C.S, C.lane, C.t
    C.role = "F"; vm = C.vm = Rl.vm; C.lim = NB - OPT["late"]
    va = Rl.va; aa = Alloc("a", 0, C.abase)
    NW, NX = 4, 3; WB, XB = 0, 65536
    sWS = C.sWS; w = S['w']
    stamp(C, "iss")
    xr = [[va() for _ in range(2)] for _ in range(2)]
    wr_ = [va() for _ in range(7)]
    acc = [[va(4, 4) for _ in range(4)] for _ in range(7)]
    cs = [va(4, 4) for _ in range(7)]
    rs = [va(4, 4) for _ in range(2)]
    ones = aa(4)
    fb = [dict(x=[aa(4) for _ in range(4)], w=[aa(4) for _ in range(7)]) for _ in range(2)]
    srd(P, sWS, C.wsp[0], C.wsp[1], WS_REC)
    wr, wc = S['half'], S['hh']
    n_, g_ = va(), va()
    P(f"v_and_b32 {n_}, 15, {lane}\nv_lshrrev_b32 {g_}, 4, {lane}")
    P(f"s_lshl_b32 {S['t0']}, {wr}, 13\ns_lshl_b32 {S['t1']}, {wc}, 12\ns_add_u32 {S['t0']}, {S['t0']}, {S['t1']}\ns_add_u32 {S['t0']}, {S['t0']}, {XB}")
    P(f"v_lshrrev_b32 {t[0]}, 1, {n_}\nv_xor_b32 {t[0]}, {g_}, {t[0]}\nv_lshlrev_b32 {t[0]}, 4, {t[0]}\nv_lshl_add_u32 {t[0]}, {n_}, 7, {t[0]}")
    P(f"v_add_u32 {xr[0][0]}, {S['t0']}, {t[0]}\nv_xor_b32 {xr[0][1]}, 64, {xr[0][0]}\nv_xor_b32 {xr[1][0]}, 4096, {xr[0][0]}\nv_xor_b32 {xr[1][1]}, 4096, {xr[0][1]}")
    P(f"v_bfe_u32 {t[0]}, {lane}, 2, 2\nv_lshl_add_u32 {t[1]}, {g_}, 3, {t[0]}\nv_lshlrev_b32 {t[1]}, 9, {t[1]}\nv_and_b32 {t[2]}, 3, {lane}\nv_lshl_add_u32 {t[1]}, {t[2]}, 3, {t[1]}")
    P(f"v_bfe_u32 {t[0]}, {lane}, 2, 3")
    P(f"s_lshl_b32 {S['b1']}, {wr}, 2\ns_mul_i32 {S['b2']}, {wr}, -3")
    P(f"s_and_b32 {S['t0']}, {S['cb']}, 1\ns_lshl_b32 {S['t0']}, {S['t0']}, 1\ns_mul_i32 {S['t1']}, {wc}, 7\ns_add_u32 {S['t0']}, {S['t0']}, {S['t1']}")
    P(f"s_add_u32 {S['t1']}, {S['t0']}, {S['b2']}\ns_add_u32 {S['t0']}, {S['t0']}, {S['b1']}")
    for c in range(7):
        P(f"s_add_u32 {S['t2']}, {S['t0'] if c <= 2 else S['t1']}, {c}")
        P(f"v_xor_b32 {t[2]}, {S['t2']}, {t[0]}\nv_lshl_add_u32 {wr_[c]}, {t[2]}, 5, {t[1]}")
    P(f"v_mov_b32 {t[0]}, {ONES}")
    for i in range(4): P(f"v_accvgpr_write_b32 {ones[i]}, {t[0]}")
    b2 = B2(C)
    RSB = b2.xchunk * 8192; CSB = RSB + 1024
    xw = RSB & 0x30000; RSB -= xw; CSB -= xw
    a_rs, a_rs2, a_cs, a_cs2 = va(), va(), va(), va()
    st = [va(), va()]
    P(f"s_lshl_b32 {S['t0']}, {wr}, 8\ns_lshl_b32 {S['t1']}, {wc}, 7\ns_add_u32 {S['t0']}, {S['t0']}, {S['t1']}\ns_add_u32 {S['t0']}, {S['t0']}, {xw}")
    P(f"v_lshlrev_b32 {a_rs}, 2, {n_}\nv_add_u32 {a_rs}, {S['t0']}, {a_rs}\nv_xor_b32 {a_rs2}, 128, {a_rs}")
    P(f"s_lshl_b32 {S['t0']}, {wc}, 3\ns_add_u32 {S['t1']}, {S['t0']}, {S['b2']}\ns_add_u32 {S['t0']}, {S['t0']}, {S['b1']}")
    P(f"s_lshl_b32 {S['t0']}, {S['t0']}, 6\ns_add_u32 {S['t1']}, {S['t1']}, 4\ns_lshl_b32 {S['t1']}, {S['t1']}, 6")
    P(f"v_lshlrev_b32 {a_cs}, 4, {g_}\nv_add_u32 {a_cs}, {xw}, {a_cs}\nv_add_u32 {a_cs2}, {S['t1']}, {a_cs}\nv_add_u32 {a_cs}, {S['t0']}, {a_cs}")
    P(f"s_lshl_b32 {S['t0']}, {wc}, 10\nv_lshlrev_b32 {st[0]}, 4, {lane}\nv_add_u32 {st[0]}, {S['t0']}, {st[0]}\nv_xor_b32 {st[1]}, 1024, {st[0]}")
    P(f"s_lshl_b32 {S['t0']}, {S['e']}, 3\ns_add_u32 {S['t0']}, {S['t0']}, {S['rbl']}\ns_lshl_b32 {S['t0']}, {S['t0']}, 1\ns_add_u32 {S['t0']}, {S['t0']}, {wr}")
    P(f"s_mul_i32 {S['t0']}, {S['t0']}, {A2_KS}\ns_mul_i32 {S['t1']}, {S['cb']}, 14\ns_add_u32 {S['t0']}, {S['t0']}, {S['t1']}\ns_mul_i32 {S['t1']}, {wc}, 7\ns_add_u32 {S['t0']}, {S['t0']}, {S['t1']}\ns_add_u32 {S['t0']}, {S['t0']}, 32")
    P(f"s_add_u32 {S['b1']}, {S['b1']}, {S['t0']}\ns_add_u32 {S['b2']}, {S['b2']}, {S['t0']}\ns_lshl_b32 {S['b1']}, {S['b1']}, 11\ns_lshl_b32 {S['b2']}, {S['b2']}, 11")
    if OPT["xst"]:
        pca, pra, gca, gsc, lca = [va() for _ in range(5)]
        for m_, bit in ((C.mT, 1), (C.mU, 2), (C.mW, 4), (C.mH, 8)):
            P(f"v_and_b32 {t[0]}, {bit}, {lane}\nv_cmp_ne_u32 {m_}, 0, {t[0]}")
        P(f"s_lshl_b32 {S['t2']}, {S['e']}, 3\ns_add_u32 {S['t0']}, {S['t2']}, {S['cb']}\ns_lshl_b32 {S['t0']}, {S['t0']}, 14\ns_add_u32 {S['t0']}, {S['t0']}, {SCOL_OFF}")
        P(f"s_lshl_b32 {S['t1']}, {w}, 12\ns_add_u32 {S['t1']}, {S['t1']}, {S['t0']}\nv_lshl_add_u32 {gca}, {lane}, 4, {S['t1']}")
        P(f"s_lshl_b32 {S['t1']}, {wc}, 1\ns_add_u32 {S['t1']}, {S['t1']}, {wr}\ns_lshl_b32 {S['t1']}, {S['t1']}, 3\ns_add_u32 {S['t1']}, {S['t1']}, {S['rbl']}\ns_lshl_b32 {S['t1']}, {S['t1']}, 9\ns_add_u32 {S['t0']}, {S['t0']}, {S['t1']}")
        P(f"v_bfe_u32 {t[0]}, {lane}, 2, 2\nv_lshlrev_b32 {t[0]}, 4, {t[0]}\nv_lshl_add_u32 {t[0]}, {g_}, 2, {t[0]}\nv_and_b32 {t[1]}, 3, {lane}\nv_add_u32 {t[0]}, {t[0]}, {t[1]}\nv_lshl_add_u32 {pca}, {t[0]}, 3, {S['t0']}")
        P(f"s_add_u32 {S['t0']}, {S['t2']}, {S['rbl']}\ns_lshl_b32 {S['t0']}, {S['t0']}, 2\ns_add_u32 {S['t0']}, {S['t0']}, {w}\ns_lshl_b32 {S['t0']}, {S['t0']}, 12\ns_add_u32 {S['t0']}, {S['t0']}, {SROW_OFF}")
        P(f"v_lshl_add_u32 {t[0]}, {n_}, 4, {S['t0']}\nv_cmp_lt_u32 vcc, 31, {lane}\nv_cndmask_b32 {gca}, {gca}, {t[0]}, vcc")
        P(f"s_lshl_b32 {S['t1']}, {S['cb']}, 9\ns_add_u32 {S['t0']}, {S['t0']}, {S['t1']}\nv_lshl_add_u32 {pra}, {lane}, 3, {S['t0']}\nv_mov_b32 {t[1]}, {BIG}\nv_cndmask_b32 {pra}, {pra}, {t[1]}, vcc")
        P(f"v_mov_b32 {gsc}, 1.0\nv_mov_b32 {t[1]}, {f2h(-1.0/448)}\nv_cndmask_b32 {gsc}, {gsc}, {t[1]}, vcc")
        P(f"s_lshl_b32 {S['t0']}, {w}, 8\ns_add_u32 {S['t0']}, {S['t0']}, {xw + 1024}\nv_lshl_add_u32 {lca}, {lane}, 3, {S['t0']}")
        P(f"s_lshl_b32 {S['t0']}, {w}, 7\ns_add_u32 {S['t0']}, {S['t0']}, {xw}\nv_lshl_add_u32 {t[0]}, {n_}, 3, {S['t0']}\nv_cndmask_b32 {lca}, {lca}, {t[0]}, vcc")
    p2_setup(C)
    slab_tables(C, 64*3584//128); C.m0 = None
    rest = Rl.sched[-1][OPT["first"]:]
    for i in rest[:OPT["wpos"]]: emit(C, Rl.emit_item(i))
    P("WARM_F:")
    for i in rest[OPT["wpos"]:]: emit(C, Rl.emit_item(i))
    def reads(s):
        b = fb[s & 1]
        xs = ((s >> 1) % NX) * 16384; ws = WB + (s % NW) * 16384
        X = [f"ds_read_b128 {b['x'][i]}, {xr[i>>1][s&1]} offset:{xs + (i&1)*2048}" for i in range(4)]
        W = []
        for c in range(7):
            W.append(f"ds_read_b64_tr_b16 {b['w'][c][0:2]}, {wr_[c]} offset:{ws}")
            W.append(f"ds_read_b64_tr_b16 {b['w'][c][2:4]}, {wr_[c]} offset:{ws + 2048}")
        return X + W
    def mfmas(s):
        b = fb[s & 1]; o = []
        def mm(d, a, bb): o.append(f"v_mfma_f32_16x16x32_bf16 {d}, {a}, {bb}, {d if s else 0}")
        if s < 2 or not OPT["xst"]:
            for i in range(2): mm(rs[i], ones, b['x'][i])
            for c in range(4): mm(cs[c], b['w'][c], ones)
        for c in range(7):
            for i in range(4): mm(acc[c][i], b['w'][c], b['x'][i])
        if s == 13 and not OPT["xst"]:
            wrs = [f"ds_write_b32 {a_rs}, {rs[i][0]} offset:{RSB + i*64}" for i in range(2)] + [f"ds_write_b128 {a_cs}, {cs[c]} offset:{CSB + c*64}" for c in range(4)]
            for k_, x in enumerate(wrs): o[14 + k_] += "\n" + x
        return o
    nm = [va(2), va(2)]
    NEG = f2h(-1.0/448)
    hook = None
    if OPT["xst"]:
        G = OPT["gat"]
        allcs = R("v", cs[0].i, 28); assert cs[6].i == cs[0].i + 24
        gq = [allcs[4*p:4*p+4] for p in range(7)]
        gl = [f"buffer_load_dwordx4 {gq[p]}, {gca}, {sWS}, 0 offen offset:{512*p} sc1" for p in range(7)]
        bad = rs[0][0]
        al = [g[k] for g in gq for k in (1, 3)]
        chk = [f"v_xor_b32 {bad}, {S['tag']}, {al[0]}"] + [f"v_bitop3_b32 {bad}, {x}, {S['tag']}, {bad} bitop3:0xbe" for x in al[1:]]
        def hook(s_):
            o = []
            if s_ == 2:
                def tg():
                    l0 = len(P.l); get_tag(C); x = "\n".join(P.l[l0:]); del P.l[l0:]; return x
                o.append(Lazy(tg, "svsss"))
                for c in range(4):
                    o += [f"v_cndmask_b32 {cs[c][0]}, {cs[c][0]}, {cs[c][1]}, {C.mT}", f"v_cndmask_b32 {cs[c][2]}, {cs[c][2]}, {cs[c][3]}, {C.mT}", f"v_cndmask_b32 {cs[c][0]}, {cs[c][0]}, {cs[c][2]}, {C.mU}"]
            if s_ == 3:
                o += [f"v_cndmask_b32 {cs[0][0]}, {cs[0][0]}, {cs[1][0]}, {C.mW}", f"v_cndmask_b32 {cs[2][0]}, {cs[2][0]}, {cs[3][0]}, {C.mW}", f"v_cndmask_b32 {cs[0][0]}, {cs[0][0]}, {cs[2][0]}, {C.mH}",
                      f"v_mov_b32 {cs[0][1]}, {S['tag']}", vop(C, ("st1", 0), f"buffer_store_dwordx2 {cs[0][0:2]}, {pca}, {sWS}, 0 offen sc1"),
                      f"v_cmp_eq_u32 vcc, 1, {g_}", f"v_mov_b32 {rs[0][1]}, {S['tag']}", f"v_cndmask_b32 {rs[0][0]}, {rs[0][0]}, {rs[1][0]}, vcc",
                      vop(C, ("st1", 0), f"buffer_store_dwordx2 {rs[0][0:2]}, {pra}, {sWS}, 0 offen sc1")]
            k_ = OPT["gsp"]
            if G - k_ < s_ <= G:
                i_ = s_ - (G - k_ + 1); o += [vop(C, ("ga", 0), x) for x in gl[i_ * 7 // k_:(i_ + 1) * 7 // k_]]
            if s_ == G + OPT['gck']:
                o.append(Lazy(lambda: vm.wait(lambda q: q[0] == "ga")))
                o += chk + [f"v_cmp_ne_u32 vcc, 0, {bad}", "s_cmp_lg_u64 vcc, 0\ns_cbranch_scc1 GA_S\nGA_X:"]
                C.slow.append(f"GA_S:\ns_mov_b32 {S['t2']}, 0\nGA_L:\n" + "\n".join(gl) + "\ns_waitcnt vmcnt(0)\n" + "\n".join(chk) +
                              f"\nv_cmp_ne_u32 vcc, 0, {bad}\ns_add_u32 {S['t2']}, {S['t2']}, 1\ns_cmp_ge_u32 {S['t2']}, {SPIN_MAX}\ns_cbranch_scc1 GA_X\ns_cmp_lg_u64 vcc, 0\ns_cbranch_scc1 GA_L\ns_branch GA_X")
            if s_ == G + OPT['gck'] + 1:
                for k in (0, 2):
                    g = [x[k] for x in gq]
                    o += [f"v_add_f32 {g[0]}, {g[0]}, {g[1]}", f"v_add_f32 {g[2]}, {g[2]}, {g[3]}", f"v_add_f32 {g[4]}, {g[4]}, {g[5]}",
                          f"v_add_f32 {g[0]}, {g[0]}, {g[2]}", f"v_add_f32 {g[4]}, {g[4]}, {g[6]}", f"v_add_f32 {g[0]}, {g[0]}, {g[4]}"]
                o += [f"v_mul_f32 {gq[0][0]}, {gsc}, {gq[0][0]}", f"v_mul_f32 {gq[0][1]}, {gsc}, {gq[0][2]}", f"ds_write_b64 {lca}, {gq[0][0:2]} offset:{RSB}"]
            if s_ == G + OPT['gck'] + 2:
                o += [f"ds_read_b32 {nm[0][i]}, {a_rs} offset:{RSB + 64*i}" for i in range(2)] + [f"ds_read_b32 {nm[1][i]}, {a_rs2} offset:{RSB + 64*i}" for i in range(2)]
                o += [f"ds_read_b128 {cs[c]}, {a_cs} offset:{CSB + c*64}" for c in range(4)] + [f"ds_read_b128 {cs[c]}, {a_cs2} offset:{CSB + (c-4)*64}" for c in range(4, 7)]
            return o
    run_loop(C, Rl.emit_item, Rl.sched, reads, mfmas, b2, OPT["fearly"], OPT["fstart"], hook=hook, nonce_at=0 if OPT["xst"] else 6, rate2=OPT["b2rate"])
    if not OPT["xst"]:
        P("s_waitcnt lgkmcnt(0)\ns_barrier"); b2.lgkm()
        P(f"ds_read_b32 {nm[1][0]}, {a_rs2} offset:{RSB}\nds_read_b32 {nm[1][1]}, {a_rs2} offset:{RSB+64}")
        for c in range(4, 7): P(f"ds_read_b128 {cs[c]}, {a_cs2} offset:{CSB + (c-4)*64}")
    if OPT["xst"] and OPT["gat"] + OPT["gck"] + 2 == 13: P("s_waitcnt lgkmcnt(0)"); b2.lgkm()
    emit(C, b2.moves(C.hist[11]))
    if not OPT["xst"]: P(f"v_mul_f32 {nm[0][0]}, {NEG}, {rs[0][0]}\nv_mul_f32 {nm[0][1]}, {NEG}, {rs[1][0]}")
    Z = [va(4, 4) for _ in range(4)]
    units = [(c, 0) for c in range(4)] + [(c, 1) for c in range(4)] + [(c, pr) for c in range(4, 7) for pr in range(2)]
    if OPT["xst"]: units = [(c, pr) for c in range(7) for pr in range(2)]
    pend = None
    old = b2.loaded
    for ui, (c, pr) in enumerate(units):
        if ui == 4:
            P("s_waitcnt lgkmcnt(0)"); b2.lgkm()
            if not OPT["xst"]: P(f"v_mul_f32 {nm[1][0]}, {NEG}, {nm[1][0]}\nv_mul_f32 {nm[1][1]}, {NEG}, {nm[1][1]}")
        z = Z[ui % 4]
        for ii in range(2):
            a = acc[c][2*pr+ii]
            sel = "op_sel_hi:[1,0,1]" if ii == 0 else "op_sel:[0,1,0] op_sel_hi:[1,1,1]"
            P(f"v_pk_fma_f32 {a[0:2]}, {cs[c][0:2]}, {nm[pr]}, {a[0:2]} {sel}")
            P(f"v_pk_fma_f32 {a[2:4]}, {cs[c][2:4]}, {nm[pr]}, {a[2:4]} {sel}")
        if pend: P(pend); vm.issue(("st", 0))
        for ii in range(2):
            a = acc[c][2*pr+ii]
            P(f"v_cvt_pk_bf16_f32 {z[2*ii]}, {a[0]}, {a[1]}\nv_cvt_pk_bf16_f32 {z[2*ii+1]}, {a[2]}, {a[3]}")
        for q in range(4): P(f"v_pk_max_i16 {z[q]}, {z[q]}, 0")
        if OPT["fepi"] and ui % OPT["fepi"] == 0: emit(C, b2.loads(1, C.lim))
        pend = (f"s_add_u32 {S['t0']}, {S['b1'] if c <= 2 else S['b2']}, {c*2048}\n"
                f"v_permlane16_swap_b32 {z[0]}, {z[2]}\nv_permlane16_swap_b32 {z[1]}, {z[3]}\n"
                f"buffer_store_dwordx4 {z}, {st[pr]}, {sWS}, {S['t0']} offen sc1")
    P(pend); vm.issue(("st", 0))
    stamp(C, "epiend")
    emit(C, b2.moves(old))
    b2.drain(OPT["post"], C.lim)
    if not OPT["xst"]: get_tag(C)
    stamp(C, "tag")
    P(vm.wait(lambda q: q[0] == "st")); stamp(C, "ack"); P("s_barrier")
    flag_store(C)
    stamp(C, "flag")
    emit(C, xtile(C))
    b2.drain(max(C.lim - b2.loaded - OPT["pr"], 0), C.lim)
    emit(C, [poll_req(C)])
    b2.drain(99, C.lim)
    stamp(C, "b2iss")
    poll_check(C, "PF_F", 3)
    stamp(C, "polled")
    for tt in range(OPT["LA"]): emit(C, aload(C, tt))
    return max(va.hi, phase2(C, b2, None))

XS = 18432
def qkv_head(C):
    P, S, lane, t = C.P, C.S, C.lane, C.t
    Rl = Role(); Rl.vm = C.vm = Cnt("vmcnt", 63); C.vm.issue(("pf", 0)); C.m0 = None
    va = Rl.va = Alloc("v", C.vbase, 256)
    NW, NX = 4, 3; XB, WB = 0, 3 * XS
    xd = C.xd; xh = va(); wd = [va() for _ in range(6)]
    w = S['w']; hp = S['cb']; mW, mH = C.mW, C.mH
    P(f"s_mul_i32 {S['t1']}, {w}, {32*1792}\ns_add_u32 {S['t1']}, {S['t1']}, {8*1792}\ns_cmp_eq_u32 {S['rbl']}, 0\ns_cselect_b32 {S['t1']}, {BIG}, {S['t1']}")
    P(f"v_subrev_u32 {xh}, {S['t1']}, {t[3]}")
    P(f"s_lshl_b32 {S['t1']}, {w}, 4\ns_mov_b64 {mH}, 0xffff\ns_lshl_b64 {mH}, {mH}, {S['t1']}")
    P(f"v_and_b32 {t[0]}, 2, {t[4]}\nv_add_u32 {t[0]}, {S['b1']}, {t[0]}\nv_sub_u32 {t[0]}, {t[5]}, {t[0]}\nv_and_b32 {t[0]}, 7, {t[0]}")
    P(f"v_cmp_ne_u32 {mW}, 7, {t[0]}\nv_mov_b32 {t[2]}, {BIG}")
    P(f"s_mul_i32 {S['t0']}, {hp}, 112\ns_mul_i32 {S['t1']}, {w}, {8*2688}\ns_add_u32 {S['t0']}, {S['t0']}, {S['t1']}")
    P(f"v_mul_u32_u24 {t[1]}, 2688, {t[4]}\nv_lshl_add_u32 {t[1]}, {t[0]}, 4, {t[1]}\nv_add_u32 {t[1]}, {S['t0']}, {t[1]}\nv_cndmask_b32 {wd[2]}, {t[2]}, {t[1]}, {mW}")
    P(f"v_add_u32 {wd[1]}, 128, {wd[2]}\nv_add_u32 {wd[0]}, 256, {wd[2]}")
    P(f"s_mul_i32 {S['kw']}, {S['kx']}, {64*2688//128}\ns_mul_i32 {S['wm0']}, {w}, 3072")
    karg(C)
    P(f"s_sub_u32 {C.sW[0]}, {C.ptr[2]}, 256\ns_subb_u32 {C.sW[1]}, {C.ptr[3]}, 0\ns_mov_b32 {C.sW[2]}, {448*2688 + 256}\ns_mov_b32 {C.sW[3]}, 0x20000")
    items = []
    for d in range(7):
        fr = (2*(d-NX)+1 if d >= NX else -1)
        for j in (0, 1, 2, 3, -1): items.append(dict(k="x", d=d, j=j, need=2*d, free=fr))
        for s in (2*d, 2*d+1):
            for p in range(3): items.append(dict(k="w", s=s, j=p, need=s, free=(s-NW if s >= NW else -1)))
    def emit_item(i):
        it = items[i]; j = it["j"]
        if it["k"] == "x":
            sb = XB + (it['d'] % NX) * XS
            if j < 0: return dma_item(C, it["need"], f"s_mov_b32 m0, {sb + 1024}", f"buffer_load_dwordx4 {xh}, {C.sX}, {C.kxs[it['d']]} offen{NTX} lds", mH)
            return dma_item(C, it["need"], f"s_add_u32 m0, {S['xm0']}, {sb + 2048}", f"buffer_load_dwordx4 {xd[j]}, {C.sX}, {C.kxs[it['d']]} offen offset:{j*1024}{NTX} lds")
        return dma_item(C, it["need"], f"s_add_u32 m0, {S['wm0']}, {WB + (it['s'] % NW)*12288}",
                        f"buffer_load_dwordx4 {wd[j + 3*(it['s']&1)]}, {C.sW}, {C.kws[it['s']>>1]} offen offset:{j*1024}{NTW} lds", mW if j == 1 else None)
    Rl.sched = schedule(items, OPT["pro"] * 11 // 12, OPT["rate"] - 1, 14); Rl.emit_item = emit_item
    for i in Rl.sched[-1][:8]: emit(C, emit_item(i))
    for j in range(3): P(f"v_add_u32 {wd[3+j]}, {32*2688}, {wd[j]}")
    for i in Rl.sched[-1][8:min(OPT["first"], 11)]: emit(C, emit_item(i))
    return Rl

def qkv_body(C, Rl):
    P, S, lane, t = C.P, C.S, C.lane, C.t
    C.role = "Q"; vm = C.vm = Rl.vm; C.lim = NB - OPT["late"]
    va = Rl.va; aa = Alloc("a", 0, C.abase)
    NW, NX = 4, 3; XB, WB = 0, 3 * XS
    sWS, mT = C.sWS, C.mT
    w = S['w']; hp = S['cb']; hh, half = S['hh'], S['half']
    stamp(C, "iss")
    xr = [va() for _ in range(2)]; xr0 = [va() for _ in range(2)]
    wr_ = [va() for _ in range(2)]
    acc = [[[va(4, 4) for _ in range(5)] for _ in range(2)] for _ in range(3)]
    dg = [va(4, 4) for _ in range(5)]
    cprev, ccur, cfirst = va(4, 4), va(4, 4), va(4, 4)
    mprev, mcur = va(2), va(2)
    fb = [dict(x=[aa(4) for _ in range(5)], w=[[aa(4) for _ in range(2)] for _ in range(3)]) for _ in range(2)]
    srd(P, sWS, C.wsp[0], C.wsp[1], WS_REC)
    n_, g_ = va(), va()
    P(f"v_and_b32 {n_}, 15, {lane}\nv_lshrrev_b32 {g_}, 4, {lane}")
    tmpcs = [va(4, 4) for _ in range(4)]
    c1, c0 = tmpcs[0], tmpcs[1]
    for i in range(4): P(f"v_mov_b32 {c1[i]}, {ONES}\nv_mov_b32 {c0[i]}, 0")
    P(f"v_and_b32 {t[0]}, 7, {lane}\nv_and_b32 {t[1]}, 2, {lane}\nv_bfe_u32 {t[2]}, {lane}, 3, 1\nv_lshl_add_u32 {t[1]}, {t[2]}, 2, {t[1]}")
    P(f"v_add_u32 {t[1]}, 7, {t[1]}\nv_and_b32 {t[1]}, 7, {t[1]}\nv_lshlrev_b32 {t[1]}, 4, {t[1]}\nv_lshl_add_u32 {t[0]}, {t[0]}, 7, {t[1]}")
    P(f"v_lshrrev_b32 {t[1]}, 3, {lane}\nv_mul_u32_u24 {t[1]}, 3072, {t[1]}\ns_mul_i32 {S['t0']}, {hh}, {2*12288}\ns_add_u32 {S['t0']}, {S['t0']}, {WB}")
    P(f"v_add3_u32 {t[0]}, {t[0]}, {t[1]}, {S['t0']}")
    P(f"ds_write_b128 {t[0]}, {c1} offset:1024")
    P(f"s_min_u32 {S['t0']}, {w}, 2\ns_mul_i32 {S['t0']}, {S['t0']}, {XS}\nv_lshlrev_b32 {t[1]}, 4, {lane}\nv_add_u32 {t[1]}, {S['t0']}, {t[1]}\nds_write_b128 {t[1]}, {c1} offset:{XB}")
    P(f"v_lshrrev_b32 {t[0]}, 1, {n_}\nv_xor_b32 {t[0]}, {g_}, {t[0]}\nv_lshlrev_b32 {t[0]}, 4, {t[0]}\nv_lshl_add_u32 {t[0]}, {n_}, 7, {t[0]}")
    P(f"s_lshl_b32 {S['t0']}, {half}, 13\nv_add_u32 {t[1]}, {S['t0']}, {t[0]}\nv_add_u32 {xr[0]}, {XB + 2048}, {t[1]}\nv_xor_b32 {xr[1]}, 64, {xr[0]}")
    P(f"v_cmp_gt_u32 vcc, 8, {n_}\nv_cndmask_b32 {xr0[0]}, {t[1]}, {t[0]}, vcc\nv_xor_b32 {xr0[1]}, 64, {xr0[0]}")
    P(f"v_bfe_u32 {t[0]}, {lane}, 2, 2\nv_mul_u32_u24 {t[1]}, 3072, {g_}\nv_lshl_add_u32 {t[0]}, {t[0]}, 7, {t[1]}\nv_add_u32 {t[0]}, {WB}, {t[0]}")
    P(f"v_bfe_u32 {t[1]}, {lane}, 3, 2\nv_lshlrev_b32 {t[1]}, 5, {t[1]}\nv_and_b32 {t[2]}, 3, {lane}")
    P(f"s_mul_i32 {S['t0']}, {hh}, 56\nv_lshl_add_u32 {t[3]}, {t[2]}, 3, {S['t0']}")
    P(f"v_add_u32 {t[4]}, {t[3]}, {t[1]}\nv_and_b32 {t[4]}, 127, {t[4]}\nv_add_u32 {wr_[0]}, {t[0]}, {t[4]}")
    P(f"s_lshl_b32 {S['t0']}, {hh}, 3\ns_sub_u32 {S['t0']}, 120, {S['t0']}\nv_mov_b32 {t[4]}, {S['t0']}\nv_add_u32 {t[3]}, 32, {t[3]}")
    P(f"v_cmp_eq_u32 vcc, 3, {t[2]}\nv_cndmask_b32 {t[3]}, {t[3]}, {t[4]}, vcc")
    P(f"v_add_u32 {t[4]}, {t[3]}, {t[1]}\nv_and_b32 {t[4]}, 127, {t[4]}\nv_add_u32 {wr_[1]}, {t[0]}, {t[4]}")
    P(f"v_lshlrev_b32 {t[0]}, 2, {g_}\nv_sub_u32 {t[0]}, {n_}, {t[0]}\nv_mov_b32 {t[1]}, {NINF}")
    P(f"s_or_b32 {S['t0']}, {S['rbl']}, {half}\ns_cmp_eq_u32 {S['t0']}, 0\ns_cselect_b32 {S['t0']}, {NINF}, 0")
    for r in range(4):
        P(f"v_subrev_u32 {t[2]}, {r}, {t[0]}")
        P(f"v_cmp_gt_i32 vcc, -8, {t[2]}\nv_cndmask_b32 {cprev[r]}, {t[1]}, {c0[0]}, vcc")
        P(f"v_cmp_gt_u32 vcc, 8, {t[2]}\nv_cndmask_b32 {ccur[r]}, {t[1]}, {c0[0]}, vcc")
        P(f"v_or_b32 {cfirst[r]}, {S['t0']}, {cprev[r]}")
    for (m, c) in ((mprev, cprev), (mcur, ccur)):
        for q in range(2):
            P(f"v_ashrrev_i32 {t[2]}, 31, {c[2*q]}\nv_ashrrev_i32 {t[3]}, 31, {c[2*q+1]}\nv_and_b32 {t[2]}, 0xffff, {t[2]}\nv_and_b32 {t[3]}, 0xffff0000, {t[3]}")
            P(f"v_or_b32 {t[2]}, {t[2]}, {t[3]}\nv_not_b32 {m[q]}, {t[2]}")
    a1, a2, av_w, av_r, sr, so = va(), va(), va(), va(), va(), va()
    VCH = [0, 1, 2, 8, 9]
    av_w2, av_r2 = va(), va()
    P(f"v_lshlrev_b32 {a1}, 2, {n_}\nv_bfe_u32 {a2}, {lane}, 2, 2\nv_lshl_add_u32 {a2}, {a2}, 6, {a1}\nv_add_u32 {a1}, 192, {a1}")
    P(f"v_and_b32 {t[2]}, 1, {lane}\nv_cmp_eq_u32 {mT}, 1, {t[2]}\nv_and_b32 {t[2]}, 2, {lane}\nv_cmp_eq_u32 {C.mU}, 2, {t[2]}")
    P(f"s_lshl_b32 {S['t1']}, {w}, 11\nv_mul_u32_u24 {av_w}, 80, {n_}\nv_lshl_add_u32 {av_w}, {g_}, 4, {av_w}\nv_add_u32 {av_w}, {S['t1']}, {av_w}")
    P(f"v_lshrrev_b32 {av_r}, 2, {lane}\nv_mul_u32_u24 {av_r}, 80, {av_r}\nv_and_b32 {t[4]}, 3, {lane}\nv_lshl_add_u32 {av_r}, {t[4]}, 4, {av_r}\nv_add_u32 {av_r}, {S['t1']}, {av_r}\nv_add_u32 {av_w2}, 65536, {av_w}\nv_add_u32 {av_r2}, 65536, {av_r}")
    P(f"v_lshlrev_b32 {so}, 4, {lane}")
    P(f"s_lshl_b32 {S['t1']}, {S['e']}, 3\ns_add_u32 {S['t1']}, {S['t1']}, {S['rbl']}\ns_lshl_b32 {S['t1']}, {S['t1']}, 1\ns_add_u32 {S['t1']}, {S['t1']}, {half}")
    P(f"s_lshl_b32 {S['t0']}, {hp}, 1\ns_add_u32 {S['t0']}, {S['t0']}, {hh}\ns_lshl_b32 {S['t0']}, {S['t0']}, 12\ns_mul_i32 {S['b1']}, {S['t1']}, {A2_KS*2048}\ns_add_u32 {S['b1']}, {S['b1']}, {S['t0']}")
    P(f"s_lshl_b32 {S['t1']}, {S['t1']}, 8\ns_lshl_b32 {S['t0']}, {hp}, 13\ns_add_u32 {S['t1']}, {S['t1']}, {S['t0']}\ns_add_u32 {S['t1']}, {S['t1']}, {RSTD_OFF}\ns_cmp_eq_u32 {hh}, 0\ns_cselect_b32 {S['t1']}, {S['t1']}, {BIG}")
    P(f"v_lshl_add_u32 {sr}, {lane}, 2, {S['t1']}")
    p2_setup(C)
    slab_tables(C, 64*2688//128); C.m0 = None
    rest = Rl.sched[-1][min(OPT["first"], 11):]
    for i in rest[:max(OPT["wpos"] - 1, 0)]: emit(C, Rl.emit_item(i))
    P("WARM_Q:")
    for i in rest[max(OPT["wpos"] - 1, 0):]: emit(C, Rl.emit_item(i))
    def reads(s):
        b = fb[s & 1]
        xs = ((s >> 1) % NX) * XS; ws = (s % NW) * 12288
        X = [f"ds_read_b128 {b['x'][0]}, {xr0[s&1]} offset:{xs}"] + [f"ds_read_b128 {b['x'][j]}, {xr[s&1]} offset:{xs + (j-1)*2048}" for j in range(1, 5)]
        W = []
        for p in (1, 2, 0):
            for tt in range(2):
                W.append(f"ds_read_b64_tr_b16 {b['w'][p][tt][0:2]}, {wr_[tt]} offset:{ws + p*1024}")
                W.append(f"ds_read_b64_tr_b16 {b['w'][p][tt][2:4]}, {wr_[tt]} offset:{ws + p*1024 + 512}")
        return X + W
    Q, K, V = acc
    ST = [va(2) for _ in range(5)]
    sq = [t[0], t[1], t[2], t[3], t[4]]
    csK = tmpcs[0:2]; csV = tmpcs[2:4]; csQ = [Q[0][0], Q[1][0]]
    def bc(d_, s_): return [f"v_mov_b32_dpp {d_[tt][r]}, {s_[tt][0][r]} row_newbcast:0 row_mask:0xf bank_mask:0xf" for tt in (1, 0) for r in range(4)]
    def mfmas(s):
        b = fb[s & 1]; o = []
        def mm(d, a, bb): o.append(f"v_mfma_f32_16x16x32_bf16 {d}, {a}, {bb}, {d if s else 0}")
        for j in range(5): mm(dg[j], b['x'][j], b['x'][j])
        for p in (1, 2, 0):
            for tt in (1, 0):
                for j in range(5): mm(acc[p][tt][j], b['w'][p][tt], b['x'][j])
        if s == 13:
            ex = []
            for j in range(5):
                ex += [f"v_cndmask_b32 {dg[j][0]}, {dg[j][0]}, {dg[j][1]}, {mT}", f"v_cndmask_b32 {dg[j][2]}, {dg[j][2]}, {dg[j][3]}, {mT}",
                       f"v_cndmask_b32 {dg[j][0]}, {dg[j][0]}, {dg[j][2]}, {C.mU}\nds_bpermute_b32 {sq[j]}, {a2}, {dg[j][0]}\nds_bpermute_b32 {ST[j][0]}, {a1}, {K[1][j][0]}"]
            ex += bc(csK, K)
            for k_, x in enumerate(ex): o[12 + k_] += "\n" + x
        return o
    b2 = B2(C)
    run_loop(C, Rl.emit_item, Rl.sched, reads, mfmas, b2, OPT["qearly"], OPT["qstart"], rate2=OPT["qrate"])
    P.ext(bc(csV, V))
    emit(C, b2.moves(C.hist[11]))
    P("s_waitcnt lgkmcnt(0)"); b2.lgkm()
    P(f"s_mov_b32 {S['t0']}, {f2h(1.0/448)}")
    for j in range(5): P(f"v_mul_f32 {ST[j][0]}, {f2h(-1.0/448)}, {ST[j][0]}")
    for j in range(5): P(f"v_mul_f32 {ST[j][1]}, {ST[j][0]}, {ST[j][0]}")
    for j in range(5): P(f"v_fma_f32 {ST[j][1]}, {sq[j]}, {S['t0']}, -{ST[j][1]}")
    for j in range(5): P(f"v_max_f32 {ST[j][1]}, 0, {ST[j][1]}")
    for j in range(5): P(f"v_add_f32 {ST[j][1]}, {f2h(1e-5)}, {ST[j][1]}")
    for j in range(5): P(f"v_rsq_f32 {ST[j][1]}, {ST[j][1]}")
    P.ext(bc(csQ, Q))
    LO = "op_sel_hi:[1,0,1]"; HI = "op_sel:[0,1] op_sel_hi:[1,1]"
    def correct(A_, cs_, j, scale, dst):
        o = []
        for tt in range(2):
            a = A_[tt][j]
            o.append(f"v_pk_fma_f32 {a[0:2]}, {cs_[tt][0:2]}, {ST[j]}, {a[0:2]} {LO}")
            o.append(f"v_pk_fma_f32 {a[2:4]}, {cs_[tt][2:4]}, {ST[j]}, {a[2:4]} {LO}")
        if scale:
            for tt in range(2):
                a = A_[tt][j]
                o.append(f"v_pk_mul_f32 {a[0:2]}, {a[0:2]}, {ST[j]} {HI}")
                o.append(f"v_pk_mul_f32 {a[2:4]}, {a[2:4]}, {ST[j]} {HI}")
        for tt in range(2):
            a = A_[tt][j]
            o.append(f"v_cvt_pk_bf16_f32 {dst[2*tt]}, {a[0]}, {a[1]}")
            o.append(f"v_cvt_pk_bf16_f32 {dst[2*tt+1]}, {a[2]}, {a[3]}")
        return o
    def more(n): return b2.loads(n, C.lim)
    seq = []
    for j in range(5): seq.extend(correct(V, csV, j, True, V[0][j]))
    emit(C, merge(seq, (more(OPT["qe"]), 0, len(seq))))
    for j in range(5): P(f"ds_write_b128 {av_w2 if VCH[j] >= 8 else av_w}, {V[0][j]} offset:{(VCH[j]*8192) & 0xffff}")
    seq = []
    l0 = b2.loaded
    for j in range(5): seq.extend(correct(K, csK, j, True, K[0][j]))
    emit(C, merge(seq, (more(OPT["qe"]), 0, len(seq))))
    emit(C, b2.moves(l0))
    Vt = [R("a", C.abase - 20, 10), R("a", C.abase - 10, 10)]
    P("s_waitcnt lgkmcnt(0)"); b2.lgkm()
    for tt in range(2):
        for j in range(5): P(f"ds_read_b64_tr_b16 {Vt[tt][2*j:2*j+2]}, {av_r2 if VCH[j] >= 8 else av_r} offset:{((VCH[j]*8192) & 0xffff) + 8*tt}")
    seq = []
    for j in range(1, 5): seq.extend(correct(Q, csQ, j, False, Q[0][j]))
    emit(C, merge(seq, (more(OPT["qe"] - 1), 0, len(seq))))
    S0 = {j: K[1][j] for j in range(1, 5)}; S1 = {j: V[1][j] for j in range(1, 5)}
    rg = [f"v_cmp_eq_u32 vcc, 1, {g_}", f"v_cndmask_b32 {t[5]}, {ST[1][1]}, {ST[2][1]}, vcc", f"v_cmp_eq_u32 vcc, 2, {g_}", f"v_cndmask_b32 {t[5]}, {t[5]}, {ST[3][1]}, vcc",
          f"v_cmp_eq_u32 vcc, 3, {g_}", f"v_cndmask_b32 {t[5]}, {t[5]}, {ST[4][1]}, vcc", f"v_cmp_lt_u32 vcc, 31, {lane}"]
    seq = []
    for j in range(1, 5):
        seq.append(f"v_mfma_f32_16x16x32_bf16 {S0[j]}, {K[0][j-1]}, {Q[0][j]}, {cfirst if j == 1 else cprev}")
        seq.append(f"v_mfma_f32_16x16x32_bf16 {S1[j]}, {K[0][j]}, {Q[0][j]}, {ccur}")
    P.ext(merge(seq, (rg, 0, 8)))
    get_tag(C)
    P("s_waitcnt lgkmcnt(0)"); b2.release(20)
    emit(C, xtile(C))
    cq = f2h(28 ** -0.5 * math.log2(math.e))
    def softmax(a, b, tm):
        o = []
        X, Y = S0[a], S0[b]
        c, m1, m2 = tm[0], tm[1], tm[2]
        o.append(f"v_cndmask_b32 {c}, {ST[a][1]}, {ST[b][1]}, vcc")
        for r in range(4): o.append(f"v_max_f32 {X[r]}, {X[r]}, {S1[a][r]}")
        for r in range(4): o.append(f"v_max_f32 {Y[r]}, {Y[r]}, {S1[b][r]}")
        o.append(f"v_mul_f32 {c}, {cq}, {c}")
        for r in range(4): o.append(f"v_permlane32_swap_b32 {X[r]}, {Y[r]}")
        for r in range(4): o.append(f"v_max_f32 {X[r]}, {X[r]}, {Y[r]}")
        o.append(f"v_max3_f32 {m1}, {X[0]}, {X[1]}, {X[2]}")
        o.append(f"v_max_f32 {m1}, {m1}, {X[3]}")
        o.append(f"v_mov_b32 {m2}, {m1}")
        o.append(f"v_permlane16_swap_b32 {m1}, {m2}")
        o.append(f"v_max_f32 {m1}, {m1}, {m2}")
        o.append(f"v_mul_f32 {m1}, {m1}, {c}")
        for r in range(4): o.append(f"v_fma_f32 {X[r]}, {X[r]}, {c}, -{m1}")
        for r in range(4): o.append(f"v_exp_f32 {X[r]}, {X[r]}")
        o.append(f"v_add_f32 {m1}, {X[0]}, {X[1]}")
        o.append(f"v_add_f32 {m2}, {X[2]}, {X[3]}")
        o.append(f"v_add_f32 {m1}, {m1}, {m2}")
        o.append(f"v_mov_b32 {m2}, {m1}")
        o.append(f"v_permlane16_swap_b32 {m1}, {m2}")
        o.append(f"v_add_f32 {m1}, {m1}, {m2}")
        o.append(f"v_rcp_f32 {m1}, {m1}")
        for r in range(4): o.append(f"v_mul_f32 {X[r]}, {X[r]}, {m1}")
        o.append(f"v_cvt_pk_bf16_f32 {X[0]}, {X[0]}, {X[1]}")
        o.append(f"v_cvt_pk_bf16_f32 {X[1]}, {X[2]}, {X[3]}")
        o.append(f"v_mov_b32 {Y[0]}, {X[0]}")
        o.append(f"v_mov_b32 {Y[1]}, {X[1]}")
        o.append(f"v_permlane32_swap_b32 {X[0]}, {Y[0]}")
        o.append(f"v_permlane32_swap_b32 {X[1]}, {Y[1]}")
        for Zr in (X, Y):
            o.append(f"v_and_b32 {Zr[2]}, {Zr[0]}, {mcur[0]}")
            o.append(f"v_and_b32 {Zr[3]}, {Zr[1]}, {mcur[1]}")
            o.append(f"v_and_b32 {Zr[0]}, {Zr[0]}, {mprev[0]}")
            o.append(f"v_and_b32 {Zr[1]}, {Zr[1]}, {mprev[1]}")
        return o
    seq = []
    for x_, y_ in zip(softmax(1, 2, dg[1]), softmax(3, 4, dg[2])): seq += [x_, y_]
    l0 = b2.loaded
    emit(C, merge(seq, (more(OPT["qsm"]) + [poll_req(C)], 0, len(seq) * 2 // 3)))
    emit(C, b2.moves(l0))
    P("s_waitcnt lgkmcnt(0)"); b2.lgkm()
    O = [{j: Q[1][j] for j in range(1, 5)}, {j: V[1][j] for j in range(1, 5)}]
    for j in range(1, 5):
        for tt in range(2):
            P(f"v_mfma_f32_16x16x32_bf16 {O[tt][j]}, {Vt[tt][2*(j-1):2*(j-1)+4]}, {S0[j]}, 0")
    Z = {(tt, pr): K[0][2*tt+pr] for tt in range(2) for pr in range(2)}
    for pr in range(2):
        for tt in range(2):
            z = Z[tt, pr]
            for ii in range(2):
                o_ = O[tt][1 + 2*pr + ii]
                P(f"v_cvt_pk_bf16_f32 {z[2*ii]}, {o_[0]}, {o_[1]}\nv_cvt_pk_bf16_f32 {z[2*ii+1]}, {o_[2]}, {o_[3]}")
    for pr in range(2):
        for tt in range(2):
            z = Z[tt, pr]
            P(f"v_permlane16_swap_b32 {z[0]}, {z[2]}\nv_permlane16_swap_b32 {z[1]}, {z[3]}")
    def stores():
        for pr in range(2):
            for tt in range(2):
                P(f"buffer_store_dwordx4 {Z[tt, pr]}, {so}, {sWS}, {S['b1']} offen offset:{tt*2048 + pr*1024} sc1"); vm.issue(("st", 0))
        P(f"buffer_store_dword {t[5]}, {sr}, {sWS}, 0 offen sc1"); vm.issue(("st", 0))
    stamp(C, "epiend")
    stores()
    P("s_cmp_ge_u32 s2, 224\ns_cbranch_scc1 Q_FIN")
    q0 = list(vm.q); l0_ = len(P.l)
    P("Q_FIN:\ns_waitcnt vmcnt(0)\ns_barrier"); flag_store(C); P("s_endpgm")
    C.slow.append("\n".join(P.l[l0_:])); del P.l[l0_:]
    vm.q = q0
    b2.drain(99, C.lim)
    poll_check(C, "PF_Q", 3)
    stamp(C, "polled")
    for tt in range(OPT["LA"]): emit(C, aload(C, tt))
    return max(va.hi, phase2(C, b2, 0))

def page_pads(l, w):
    import subprocess, re, os
    def sizes(lines):
        src = '.amdgcn_target "amdgcn-amd-amdhsa--gfx950"\n.text\n' + "\n".join(f"LN{i}:\n{x}" for i, x in enumerate(lines)) + f"\nLN{len(lines)}:\n"
        open("_pp.s", "w").write(src)
        subprocess.run(["clang", "-x", "assembler", "-target", "amdgcn-amd-amdhsa", "-mcpu=gfx950", "-c", "_pp.s", "-o", "_pp.o"], check=True)
        out = subprocess.run(["llvm-objdump", "-t", "_pp.o"], capture_output=True, text=True).stdout
        ad = {}
        for x in out.split("\n"):
            m = re.match(r"([0-9a-f]+) .* LN(\d+)$", x)
            if m: ad[int(m.group(2))] = int(m.group(1), 16)
        return ad
    for role, start in (("F", "R_FFN:"), ("Q", "R_QKV:")):
        i = l.index(f"WARM_{role}:")
        l[i+1:i+1] = ["s_mov_b64 exec, 0", f"s_cmp_eq_u32 {w}, 0", f"s_cbranch_scc1 PAD{role}1", f"s_cmp_eq_u32 {w}, 1", f"s_cbranch_scc1 PAD{role}2",
                      f"s_cmp_eq_u32 {w}, 2", f"s_cbranch_scc1 PAD{role}3", f"s_branch PAD{role}4", f"BACK_{role}:", "s_mov_b64 exec, -1"]
    tmp = l + [f"PAD{r}{k}:" for r in "FQ" for k in range(1, 5)]
    ad = sizes(tmp)
    ins = []
    for role, start in (("F", "R_FFN:"), ("Q", "R_QKV:")):
        a = l.index(start); b = l.index(f"END_{role}:")
        base = ad[a + 1]; k = 1; masked = False; pos = []
        for i in range(a + 1, b):
            if not masked and ad[i] - base + 4 * len(pos) >= 4096 * k: pos.append(i); k += 1
            if l[i].startswith("s_mov_b64 exec,"): masked = not l[i].endswith("-1")
        n = len(pos)
        for k, i in enumerate(pos, 1): ins.append((i, [f"PAD{role}{k}:", f"s_cbranch_execz {f'PAD{role}{k+4}' if k + 4 <= n else f'BACK_{role}'}"]))
        for k in range(n + 1, 5): ins.append((l.index(f"BACK_{role}:"), [f"PAD{role}{k}:"]))
    for i, x in sorted(ins, key=lambda z: -z[0]): l[i:i] = x
    return l

def main():
    C = Ctx(); P = C.P = Prog()
    sa = Alloc("s", 3, 98); S = C.S = {}
    S['w'] = sa()
    C.ptr = sa(16, 4); C.wsp = sa(2); pc = sa(2)
    C.sX, C.sW, C.sWS, C.sB2, C.sBo, C.sD, C.sP = [sa(4) for _ in range(7)]
    C.mW, C.mH, C.mT, C.mU = sa(2), sa(2), sa(2), sa(2)
    C.tm = pc
    for n in "e rbl cb t0 t1 t2 kx kw wm0 xm0 b1 b2 hh half T cb2 bo bo_s bbeg bend sbeg send ri rr tb bm0 tag".split(): S[n] = sa()
    ns = 102
    assert sa.hi <= 90, sa.hi
    C.names = []; C.allnames = {}; C.slow = []
    dead = [C.ptr[i] for i in (2, 3, 4, 5, 6, 7, 8, 9, 10, 11, 14, 15)]
    C.kxs = [S['kx']] + dead[:6]; C.kws = [S['kw']] + dead[6:]
    C.lane = lane = R("v", 0)
    va = Alloc("v", 3, 256)
    t = C.t = [va() for _ in range(7)]
    C.vA = [va(), va()]; C.vB = [va(), va()]; C.rB = [[va(), va()] for _ in range(3)]; C.rP = [[va(), va()] for _ in range(3)]; C.vXd = va()
    C.vF, C.vZ, C.vN, C.vPF, C.vST, C.vFL = [va() for _ in range(6)]
    C.xd = xd = [va() for _ in range(4)]
    C.vbase = va.p
    C.abase = 96
    C.NA = OPT["LA"] + 1
    C.vring = 256 - 8 * C.NA
    C.aring = [[R("v", C.vring + 8*i + 4*j, 4) for j in range(2)] for i in range(C.NA)]
    na = 256
    pre = list(range(NPRE)) + list(range(14, 14 + NPRE))
    order = [i for i in range(28) if i not in pre] + pre
    C.breg = [[R("a", 8*order.index(i), 4), R("a", 8*order.index(i) + 4, 4)] for i in range(28)]
    w = S['w']
    P(f"{NAME}_kernel:")
    stamp(C, "start")
    if OPT["spin"]: P("s_memrealtime s[98:99]")
    P("s_cmp_ge_u32 s2, 256\ns_cbranch_scc1 K_END")
    P(f"s_load_dwordx16 {C.ptr}, s[0:1], 0\ns_load_dwordx2 {C.wsp}, s[0:1], 64")
    P(f"s_getpc_b64 {pc}\ns_lshr_b32 {S['t0']}, s2, 3\ns_lshl_b32 {S['t0']}, {S['t0']}, 11\nv_lshl_add_u32 v1, v0, 3, {S['t0']}\nglobal_load_dword v2, v1, {pc}")
    P(f"v_lshrrev_b32 v1, 6, v0\nv_and_b32 v0, 63, v0\nv_readfirstlane_b32 {w}, v1")
    P(f"s_bfe_u32 {S['e']}, s2, 0x10002\ns_bfe_u32 {S['rbl']}, s2, 0x30003")
    P(f"s_and_b32 {S['t0']}, s2, 3\ns_lshl_b32 {S['t0']}, {S['t0']}, 1\ns_bfe_u32 {S['t1']}, s2, 0x10006\ns_add_u32 {S['cb']}, {S['t0']}, {S['t1']}")
    if OPT["rot"] and not OPT["com"]:
        P(f"s_lshr_b32 {S['t0']}, s2, 7\ns_lshl_b32 {S['t0']}, {S['t0']}, 1\ns_add_u32 {S['t0']}, {S['t0']}, {S['rbl']}\ns_add_u32 {S['t0']}, {S['t0']}, {S['cb']}")
        P(f"s_mul_i32 {S['t1']}, {S['t0']}, 37\ns_lshr_b32 {S['t1']}, {S['t1']}, 8\ns_mul_i32 {S['t1']}, {S['t1']}, 7\ns_sub_u32 {S['t0']}, {S['t0']}, {S['t1']}")
    else:
        P(f"s_mov_b32 {S['t0']}, 0")
    P(f"s_lshl_b32 {S['kx']}, {S['t0']}, 7\ns_mul_i32 {S['t2']}, {S['e']}, 896")
    P(f"s_lshl_b32 {S['t0']}, {S['rbl']}, 7\ns_lshl_b32 {S['t1']}, {w}, 5\ns_add_u32 {S['t0']}, {S['t0']}, {S['t1']}")
    P(f"v_lshrrev_b32 {t[4]}, 3, {lane}\nv_add_u32 {t[0]}, {S['t0']}, {t[4]}\nv_mul_u32_u24 {t[0]}, 1792, {t[0]}")
    P(f"v_lshrrev_b32 {t[1]}, 4, {lane}\nv_and_b32 {t[5]}, 7, {lane}\nv_xor_b32 {t[2]}, {t[1]}, {t[5]}")
    P(f"v_lshl_add_u32 {xd[0]}, {t[2]}, 4, {t[0]}")
    P(f"v_xor_b32 {t[3]}, 64, {xd[0]}\nv_add_u32 {xd[1]}, {8*1792 - 1024}, {t[3]}\nv_add_u32 {xd[2]}, {16*1792 - 2048}, {xd[0]}\nv_add_u32 {xd[3]}, {24*1792 - 3072}, {t[3]}")
    P(f"s_and_b32 {S['hh']}, {w}, 1\ns_lshr_b32 {S['half']}, {w}, 1\ns_lshl_b32 {S['b1']}, {S['hh']}, 2\ns_lshl_b32 {S['xm0']}, {w}, 12")
    P("s_cmp_lt_u32 s2, 128\ns_cbranch_scc1 H_FFN")
    rq = qkv_head(C)
    P("s_branch R_QKV\nH_FFN:")
    rf = ffn_head(C)
    if OPT["pads"]: P("s_branch R_FFN\n.p2align 12")
    P("R_FFN:")
    nv1 = ffn_body(C, rf)
    P("END_F:")
    if OPT["pads"]: P(".p2align 12")
    P("R_QKV:"); C.names = C.names[:1]
    nv2 = qkv_body(C, rq)
    P("END_Q:")
    for x in C.slow: P(x)
    P("K_END:\ns_endpgm")
    l, npad = pad_hazards(P.l)
    if OPT["pads"] == 1: l = page_pads(l, w)
    out = [f"; generated by gen10.py {OPT} (hazard pads {npad})",
           f"; stamps {C.allnames}",
           "; @launch grid=(256,1,1) block=(256,1,1) lds=163840",
           '.amdgcn_target "amdgcn-amd-amdhsa--gfx950"\n.text',
           f".globl {NAME}_kernel\n.p2align 8\n.type {NAME}_kernel,@function"]
    out.extend(l)
    out.append(".fill 8192, 4, 0xbf800000")
    out.append(kernel_desc(f"{NAME}_kernel", max(nv1, nv2), na, ns))
    print("\n".join(out))
main()
```

```python
import sys, math, struct
from asmlib import *

NAME = "recurrent_scan__sliding_local_dilated__dense_activation_relu__prompt"
OPT = dict(rot=1, pro=20, rate=8, LA=5, RX=27, CK=32, R1=16, stamps=0, b2start=9, b2rate=4, qrate=8, mlag=3, TB=30, fe_per=22, pfm=2, rot2=2, post=4, spin=0, wsoff=0, tlb=0, qe=3, pr=5, gsp=2, xst=1, gat=9, npl=1, fine=0, enc='', encwg=0,
           fearly=1, fstart=7, qearly=1, qstart=7, nreg=17, late=0, npre=4, pmv=12, pads=1, wpos=4, gck=2, fepi=0, qsm=5, ntx=0, ntw=0, first=8, com=0, pfs=0, pfd=0, slp=0, rots=1, ahead=2, slack=3, sp2=1, stfirst=1, rotm=7, rotk=1)
for a in sys.argv[1:]:
    k, v = a.split("="); assert k in OPT, k; OPT[k] = int(v) if k != "enc" else v

f2h = lambda x: hex(struct.unpack("<I", struct.pack("<f", x))[0])
NT2 = 36
A2_KS = 144
RSTD_OFF = 2048 * A2_KS * 32
FLAG_OFF = RSTD_OFF + 8 * 8192
SCOL_OFF = FLAG_OFF + 256 * 128
SROW_OFF = SCOL_OFF + 16 * 16384
XF_OFF = SROW_OFF + 16 * 16384
WS_USED = XF_OFF + 224 * 4 * 3072
STAMP_OFF = 16 << 20
WS_REC = (STAMP_OFF + (1 << 20)) if OPT["stamps"] else WS_USED
assert (OPT["wsoff"] << 20) + WS_REC <= 256 << 20
XBYTES = 2048 * 896
NTX = " nt" if OPT["ntx"] else ""; NTW = " nt" if OPT["ntw"] else ""
ONES = "0x3f803f80"; NINF = "0xff800000"; BIG = "0x80000000"
NB = 22
NPRE = OPT["npre"]
assert OPT["late"] + NPRE >= 3 and NPRE % 2 == 0
REL = {"F": [12, 12, 13, 13, 10, 10, 11, 11, 13, 13, 9, 9, 11, 11] + [-1] * 6,
       "Q": [20, 20, 20, 9, 11, 11, 12, 12, 20, 20, 10, 11, 11, -1] + [-1] * 6}
XCH = 19
SPIN_MAX = 1 << 16

def srd(P, d, lo, hi, n):
    P(f"s_mov_b32 {d[0]}, {lo}\ns_mov_b32 {d[1]}, {hi}\ns_mov_b32 {d[2]}, {n}\ns_mov_b32 {d[3]}, 0x20000")

class Cnt:
    def __init__(self, name, mx): self.q = []; self.name = name; self.mx = mx
    def issue(self, tag): self.q.append(tag)
    def cnt(self, pred):
        last = -1
        for i, t in enumerate(self.q):
            if pred(t): last = i
        return min(len(self.q) - 1 - last, self.mx)
    def wait(self, pred): return f"s_waitcnt {self.name}({self.cnt(pred)})"

class Ctx: pass
class Lazy:
    def __init__(self, fn, ty="s"): self.fn = fn; self.ty = ty
def emit(C, seq):
    for x in seq: C.P(x.fn() if isinstance(x, Lazy) else x)
def vop(C, tag, text):
    def f():
        C.vm.issue(tag); return text
    return Lazy(f, types_of(text))
def lop(C, tag, text):
    def f():
        C.lg.issue(tag); return text
    return Lazy(f, types_of(text))

def stamp(C, name):
    if OPT["enc"] == name: C.P("s_memrealtime s[100:101]")
    if not OPT["stamps"] or (OPT["stamps"] == 3 and name not in ("start", "end")): return
    i = len(C.names); C.names.append(name)
    if i and OPT["fine"] == 1 and name in ("tb",): C.P("s_nop 15\ns_nop 15")
    if i: C.P(f"v_writelane_b32 {C.vST}, s{90 + 2*((i-1)&1)}, {i-1}")
    C.P(f"{'s_memrealtime' if OPT['stamps'] != 2 else 's_memtime'} s[{90 + 2*(i&1)}:{91 + 2*(i&1)}]")

def stamp_flush(C):
    if not OPT["stamps"]: return
    P, S = C.P, C.S
    i = len(C.names)
    P(f"s_waitcnt lgkmcnt(0)\nv_writelane_b32 {C.vST}, s{90 + 2*((i-1)&1)}, {i-1}")
    P(f"s_lshl_b32 {S['t0']}, s2, 2\ns_add_u32 {S['t0']}, {S['t0']}, {S['w']}\ns_lshl_b32 {S['t0']}, {S['t0']}, 8\ns_add_u32 {S['t0']}, {S['t0']}, {STAMP_OFF}")
    P(f"v_lshl_add_u32 v1, v0, 2, {S['t0']}\nbuffer_store_dword {C.vST}, v1, {C.sWS}, 0 offen")
    C.allnames[C.role] = list(C.names)

def itype(line):
    op = line.split()[0]
    if op.endswith(":"): return ""
    if op.startswith("ds_write"): return "W"
    if op.startswith("ds_"): return "t"
    if op.startswith(("buffer_", "global_")): return "m"
    if op.startswith(("v_exp", "v_rcp", "v_rsq", "v_permlane")): return "T"
    if op.startswith("v_"): return "v"
    return "s"
def types_of(it):
    if isinstance(it, Lazy): return it.ty
    return "".join(itype(x) for x in it.split("\n"))
def gap_end(ty):
    t = 4; prev = ""; pstart = 0
    for c in ty:
        if c == "s": t += 4
        elif c in "vT": t = max(t, 8) + (4 if c == "v" else 8)
        else:
            st = t
            if prev in ("v", "T"): st = t + 4
            elif prev in ("t", "m", "W") and (prev == "m") != (c == "m"): st = pstart + 4
            pstart = st; t = st + (8 if c != "W" else 24)
        prev = c
    return t
def spread(main, *streams, clk=16):
    n = len(main)
    qs = []
    for items, a, b in streams:
        k = len(items)
        qs.append([(a * n + (i + 0.5) * (b - a) * n / max(k, 1), it, types_of(it)) for i, it in enumerate(items)])
    out = []
    for g, m in enumerate(main):
        out.append(m)
        ty = "".join(itype(x) for x in m.split("\n")[1:])
        while True:
            cand = [q for q in qs if q and (q[0][0] <= g + OPT["ahead"] or g == n - 1)]
            last_m0 = isinstance(out[-1], str) and " m0," in out[-1].split("\n")[-1]
            fit = [q for q in cand if gap_end(ty + ("s" if last_m0 and q[0][2][:1] == "m" else "") + q[0][2]) <= clk]
            if not fit:
                fit = [q for q in cand if g == n - 1 or (ty == "" and q[0][0] <= g + 1) or q[0][0] <= g - OPT["slack"]]
                if not fit: break
            pr = lambda q: ({"t": 0, "m": 0, "W": 0, "s": 1}.get(q[0][2][:1], 2) if q[0][0] <= g + 1 else 3, q[0][0])
            q = min(fit, key=pr)
            out.append(q[0][1]); ty += q[0][2]; q.pop(0)
    return out

def adv(reg, step, wrap, start=0):
    return f"s_add_u32 {reg}, {reg}, {step}\ns_cmp_eq_u32 {reg}, {wrap}\ns_cselect_b32 {reg}, {start}, {reg}"

def schedule(items, pro, rate, nsteps):
    sched = {s: [] for s in range(-1, nsteps)}
    i = 0
    for s in range(-1, nsteps):
        cap = pro if s == -1 else rate
        n = 0
        while i < len(items) and items[i]["free"] <= s and (n < cap or items[i]["need"] - 2 <= s):
            sched[s].append(i); i += 1; n += 1
    assert i == len(items)
    return sched

class B2:
    def __init__(self, C):
        self.C = C; self.loaded = 0
        rel = REL[C.role]
        self.pend = sorted((rel[i], i) for i in range(20) if i != XCH)
        self.free = []; self.ch = {}
        self.xchunk = XCH
    def release(self, step):
        while self.pend and self.pend[0][0] <= step: self.free.append(self.pend.pop(0)[1])
    def lgkm(self): pass
    def moves(self, *a): return []
    def win(self, t):
        b = self.ch[t] * 8192
        return (b >> 16, b & 0xffff)
    def dma(self, t):
        C = self.C; S = C.S
        if t < 14: sB = C.sB2; so = S['bo']; post = f"s_add_u32 {so}, {so}, 14336" if (t & 1) == 0 else adv(so, 14336, S['bend'], S['bbeg'])
        else: sB = C.sBo; so = S['bo_s']; post = f"s_add_u32 {so}, {so}, {16 * 896}" if (t & 1) == 0 else adv(so, 12 * 896, S['send'], S['sbeg'])
        out = [f"s_add_u32 m0, {S['bm0']}, {self.ch[t] * 8192}"]
        for j in range(2):
            out.append(vop(C, ("b2", t), f"buffer_load_dwordx4 {C.vB[j]}, {sB}, {so} offen offset:{j*1024} lds"))
        pl = post.split("\n")
        out.append(pl[0])
        if len(pl) > 1: out.append("\n".join(pl[1:]))
        return out
    def tr(self, t, dst, regs):
        win, off = self.win(t); rb = regs[win]
        o = []
        for f in range(2):
            o.append(f"ds_read_b64_tr_b16 {dst[f][0:2]}, {rb[f]} offset:{off}")
            o.append(f"ds_read_b64_tr_b16 {dst[f][2:4]}, {rb[f]} offset:{off + 512}")
        return o
    def next_load(self, lim=NB):
        if self.loaded < lim and self.free:
            self.ch[self.loaded] = self.free.pop(0); self.loaded += 1
            return self.dma(self.loaded - 1)
        return None
    def loads(self, n, lim=NB):
        o = []
        for _ in range(n):
            x = self.next_load(lim)
            if x is None: break
            o.extend(x)
        return o
    def drain(self, n, lim):
        emit(self.C, self.loads(n, lim))

def p2_setup(C):
    P, S, t, lane, w = C.P, C.S, C.t, C.lane, C.S['w']
    P(f"s_bfe_u32 {S['t0']}, s2, 0x20001\ns_lshl_b32 {S['t0']}, {S['t0']}, 2\ns_bfe_u32 {S['ri']}, s2, 0x20003\ns_add_u32 {S['t0']}, {S['t0']}, {S['ri']}\ns_lshl_b32 {S['t0']}, {S['t0']}, 1")
    P(f"s_and_b32 {S['t2']}, s2, 1\ns_add_u32 {S['T']}, {S['t0']}, {S['t2']}\ns_lshr_b32 {S['cb2']}, s2, 5")
    G = max(OPT["rot2"], 1)
    tab = sum(((c % G) * 7 // G) << (4 * c) for c in range(8))
    P(f"s_lshl_b32 {S['t0']}, {S['cb2']}, 2\ns_lshr_b32 {S['t0']}, {tab}, {S['t0']}\ns_and_b32 {S['t0']}, {S['t0']}, 15\ns_lshl_b32 {S['t1']}, {S['ri']}, 1\ns_add_u32 {S['t0']}, {S['t0']}, {S['t1']}")
    P(f"s_sub_u32 {S['t1']}, {S['t0']}, 7\ns_cmp_ge_u32 {S['t0']}, 7\ns_cselect_b32 {S['rr']}, {S['t1']}, {S['t0']}")
    P(f"s_lshl_b32 {S['t2']}, {S['t2']}, 2\ns_add_u32 {S['t2']}, {S['t2']}, {w}")
    P(f"s_mul_i32 {S['bbeg']}, {S['t2']}, {14*14336}\ns_add_u32 {S['bend']}, {S['bbeg']}, {14*14336}\ns_mul_i32 {S['t1']}, {S['rr']}, {2*14336}\ns_add_u32 {S['bo']}, {S['bbeg']}, {S['t1']}")
    P(f"s_mul_i32 {S['sbeg']}, {w}, {112*896}\ns_add_u32 {S['send']}, {S['sbeg']}, {112*896}\ns_mul_i32 {S['t1']}, {S['ri']}, {28*896}\ns_add_u32 {S['bo_s']}, {S['sbeg']}, {S['t1']}")
    P(f"s_xor_b32 {S['t0']}, {S['T']}, 1\ns_mul_i32 {S['t0']}, {S['t0']}, {A2_KS}\ns_add_u32 {S['t0']}, {S['t0']}, 32\ns_lshl_b32 {S['t0']}, {S['t0']}, 1\ns_add_u32 {S['t0']}, {S['t0']}, {S['hh']}\ns_lshl_b32 {S['t0']}, {S['t0']}, 10")
    P(f"v_lshl_add_u32 {t[0]}, {lane}, 4, {S['t0']}\ns_mul_i32 {S['t1']}, {S['t2']}, {14*2048}\nv_add_u32 {C.vA[0]}, {S['t1']}, {t[0]}\ns_xor_b32 {S['t1']}, {S['t2']}, 1\ns_mul_i32 {S['t1']}, {S['t1']}, {14*2048}\nv_add_u32 {C.vA[1]}, {S['t1']}, {t[0]}")
    P(f"v_lshrrev_b32 {t[0]}, 3, {lane}\nv_mul_u32_u24 {t[0]}, 896, {t[0]}\nv_bfe_u32 {t[1]}, {lane}, 4, 1\nv_lshlrev_b32 {t[1]}, 2, {t[1]}\nv_and_b32 {t[2]}, 7, {lane}\nv_xor_b32 {t[1]}, {t[1]}, {t[2]}")
    P(f"s_lshl_b32 {S['t1']}, {S['cb2']}, 7\nv_lshl_add_u32 {t[0]}, {t[1]}, 4, {t[0]}\nv_add_u32 {C.vB[0]}, {S['t1']}, {t[0]}\nv_add_u32 {C.vB[1]}, {7168 - 1024}, {C.vB[0]}")
    P(f"s_lshl_b32 {S['bm0']}, {w}, 11")
    P(f"s_cmp_lt_u32 s2, 224\ns_cselect_b32 {S['t0']}, {1792*896}, 0\ns_cselect_b32 {S['t1']}, {448*896}, 0")
    srd(P, C.sB2, C.ptr[10], C.ptr[11], S['t0'])
    srd(P, C.sBo, C.ptr[4], C.ptr[5], S['t1'])
    P(f"s_lshl_b32 {S['t1']}, {S['half']}, 6")
    P(f"v_bfe_u32 {t[0]}, {lane}, 2, 2\nv_lshrrev_b32 {t[1]}, 5, {lane}\nv_lshl_add_u32 {t[0]}, {t[1]}, 3, {t[0]}\nv_lshlrev_b32 {t[0]}, 7, {t[0]}")
    P(f"v_bfe_u32 {t[1]}, {lane}, 3, 1\nv_lshl_add_u32 {t[0]}, {t[1]}, 6, {t[0]}\nv_bfe_u32 {t[1]}, {lane}, 4, 1\nv_lshl_add_u32 {t[0]}, {t[1]}, 5, {t[0]}")
    P(f"v_and_b32 {t[1]}, 3, {lane}\nv_lshl_add_u32 {t[0]}, {t[1]}, 3, {t[0]}\nv_xor_b32 {t[0]}, {S['t1']}, {t[0]}")
    P(f"v_add_u32 {C.rB[0][0]}, {S['bm0']}, {t[0]}\nv_xor_b32 {C.rB[0][1]}, 64, {C.rB[0][0]}")
    for i in (1, 2): P(f"v_add_u32 {C.rB[i][0]}, {65536*i}, {C.rB[0][0]}\nv_add_u32 {C.rB[i][1]}, {65536*i}, {C.rB[0][1]}")
    for i in range(3):
        for j in range(2): P(f"v_xor_b32 {C.rP[i][j]}, 2048, {C.rB[i][j]}")
    P(f"s_and_b32 {S['t0']}, {S['T']}, 15\ns_mul_i32 {S['t0']}, {S['t0']}, {64*1792}\ns_lshr_b32 {S['t1']}, {S['T']}, 4\ns_mul_i32 {S['t1']}, {S['t1']}, 896\ns_add_u32 {S['t0']}, {S['t0']}, {S['t1']}")
    P(f"s_lshl_b32 {S['t1']}, {S['cb2']}, 7\ns_add_u32 {S['tb']}, {S['t0']}, {S['t1']}\ns_mul_i32 {S['t0']}, {w}, {16*1792}\ns_add_u32 {S['t0']}, {S['t0']}, {S['tb']}")
    P(f"v_lshrrev_b32 {t[0]}, 3, {lane}\nv_and_b32 {t[1]}, 7, {lane}\nv_xor_b32 {t[1]}, {t[0]}, {t[1]}\nv_mul_u32_u24 {t[0]}, 1792, {t[0]}\nv_lshl_add_u32 {t[0]}, {t[1]}, 4, {t[0]}\nv_add_u32 {C.vXd}, {S['t0']}, {t[0]}")
    P(f"s_lshr_b32 {S['t0']}, {S['T']}, 4\ns_lshl_b32 {S['t0']}, {S['t0']}, 2\ns_bfe_u32 {S['t1']}, {S['T']}, 0x30001\ns_lshl_b32 {S['t1']}, {S['t1']}, 3\ns_add_u32 {S['t0']}, {S['t0']}, {S['t1']}")
    P(f"s_lshl_b32 {S['t0']}, {S['t0']}, 7\ns_add_u32 {S['t0']}, {S['t0']}, {FLAG_OFF}\nv_and_b32 {t[0]}, 1, {lane}\nv_lshl_add_u32 {C.vF}, {t[0]}, 13, {S['t0']}")
    P(f"s_lshr_b32 {S['t2']}, {S['t2']}, 1\ns_lshl_b32 {S['t2']}, {S['t2']}, 7\ns_lshl_b32 {S['t1']}, {w}, 7\ns_add_u32 {S['t1']}, {S['t1']}, 16384")
    P(f"v_mov_b32 {t[0]}, {S['t2']}\nv_mov_b32 {t[1]}, {S['t1']}\nv_cmp_lt_u32 vcc, 1, {lane}\nv_cndmask_b32 {t[0]}, {t[0]}, {t[1]}, vcc")
    P(f"v_xor_b32 {t[1]}, 128, {t[1]}\nv_cmp_lt_u32 vcc, 3, {lane}\nv_cndmask_b32 {t[0]}, {t[0]}, {t[1]}, vcc\nv_add_u32 {C.vF}, {C.vF}, {t[0]}")
    P(f"v_mov_b32 {t[0]}, {BIG}\nv_cmp_lt_u32 vcc, 5, {lane}\nv_cndmask_b32 {C.vF}, {C.vF}, {t[0]}, vcc")
    srd(P, C.sD, C.ptr[14], C.ptr[15], 256)
    P(f"v_mov_b32 {C.vZ}, 0")
    if OPT["pfm"] and C.role == "Q":
        if OPT["pfm"] == 2: base, lpw = 224, 128
        else: base, lpw = 128, 32
        nw2 = 12544 // lpw
        P(f"s_sub_u32 {S['t0']}, s2, {base}\ns_lshl_b32 {S['t0']}, {S['t0']}, 2\ns_add_u32 {S['t0']}, {S['t0']}, {w}\ns_sub_u32 {S['t1']}, {S['t0']}, {nw2}\ns_cmp_lt_u32 {S['t0']}, {nw2}\ns_cselect_b32 {S['t0']}, {S['t0']}, {S['t1']}")
        P(f"s_cselect_b32 {C.sP[0]}, {C.ptr[10]}, {C.ptr[4]}\ns_cselect_b32 {C.sP[1]}, {C.ptr[11]}, {C.ptr[5]}\ns_mov_b32 {C.sP[2]}, {448*896}\ns_cselect_b32 {C.sP[2]}, {1792*896}, {C.sP[2]}\ns_mov_b32 {C.sP[3]}, 0x20000")
        P(f"s_cmp_lt_u32 s2, {base}\ns_cselect_b32 {C.sP[2]}, 0, {C.sP[2]}\ns_cselect_b32 {S['t0']}, 0, {S['t0']}")
        P(f"s_mul_i32 {S['t0']}, {S['t0']}, {lpw*128}\nv_lshl_add_u32 {C.vPF}, {lane}, {8 if lpw == 128 else 6}, {S['t0']}")

def a_tables(C):
    S = C.S; o = [f"s_lshl_b32 {C.kxs[0]}, {S['rr']}, 12"]
    for d in range(1, 7): o += [f"s_add_u32 {C.kxs[d]}, {C.kxs[d-1]}, 4096", f"s_cmp_eq_u32 {C.kxs[d]}, {7*4096}\ns_cselect_b32 {C.kxs[d]}, 0, {C.kxs[d]}"]
    o.append(f"s_lshl_b32 {C.kws[1]}, {S['ri']}, 12")
    for d in range(1, 4): o += [f"s_add_u32 {C.kws[1+d]}, {C.kws[d]}, 4096", f"s_and_b32 {C.kws[1+d]}, {C.kws[1+d]}, 0x3fff"]
    return o

def run_loop(C, emit_item, sched, reads, mfmas, b2, early, estart, nsteps=14, hook=None, nonce_at=6, rate2=8):
    P, S, vm = C.P, C.S, C.vm
    if OPT["pfm"] == 2 and C.role == "Q" and OPT["pfs"] < 0:
        for j in range(2): vm.issue(("pf", 0)); P(f"buffer_load_dword v2, {C.vPF}, {C.sP}, 0 offen offset:{128*j}")
    P(vm.wait(lambda q: q[0] == "d" and q[1] <= 0) + " lgkmcnt(0)")
    P("s_barrier")
    stamp(C, "d0")
    P.ext(reads(0))
    hist = {}
    for s in range(nsteps):
        pm = NPRE and s == OPT["pmv"]
        if pm: assert b2.loaded >= NPRE
        if s + 1 < nsteps: P(vm.wait(lambda q: (q[0] == "d" and q[1] <= s + 1) or (pm and q[0] == "b2" and q[1] < NPRE)) + " lgkmcnt(0)")
        else: P("s_waitcnt lgkmcnt(0)")
        P("s_barrier")
        if s in (1, 2, 4, 7, 10, 13) or (OPT["fine"] == 2 and s >= 1): stamp(C, f"s{s}")
        m = mfmas(s)
        rd = reads(s + 1) if s + 1 < nsteps else []
        dm = []; C.m0 = None
        for i in sched[s]: dm.extend(emit_item(i))
        if OPT["pfm"] == 2 and C.role == "Q":
            for j in range(2):
                if s == OPT["pfs"] + j * OPT["pfd"]: dm = [vop(C, ("pf", 0), f"buffer_load_dword v2, {C.vPF}, {C.sP}, 0 offen offset:{128*j}")] + dm
        if OPT["pfm"] == 4 and C.role == "Q" and s == OPT["pfs"]:
            dm = dm + [vop(C, ("pf", 0), f"buffer_load_dword v2, {C.vPF}, {C.sP}, 0 offen")]
        if s == nonce_at: dm.insert(0, vop(C, ("nonce", 0), f"buffer_load_dword {C.vN}, {C.vZ}, {C.sD}, 0 offen sc1"))
        mv = []
        b2.release(s)
        if NPRE and s == OPT["pmv"] + 1: b2.free += [b2.ch[t_] for t_ in range(NPRE)]
        if NPRE and s == OPT["pmv"] - 1:
            assert b2.loaded >= NPRE
            mv = [Lazy(lambda: vm.wait(lambda q: q[0] == "b2" and q[1] < NPRE))] + [x for t_ in range(NPRE) for x in b2.tr(t_, C.breg[t_], C.rB)]
        if pm: mv = [x for t_ in range(NPRE) for x in b2.tr(t_, C.breg[14 + t_], C.rP)]
        if s >= estart:
            n = sum(1 for x in dm if isinstance(x, Lazy))
            k = max((rate2 + 1 - n) // 2, early) if s >= OPT["b2start"] else early
            dm.extend(b2.loads(k, C.lim))
        hist[s] = b2.loaded
        ex = hook(s) if hook else []
        if s == nsteps - 1: ex = ex + a_tables(C)
        emit(C, spread(m, (rd, 0, 0.8), (dm, 0, 0.95), (mv, 0.3, 0.9), (ex, 0.05, 0.95)))
    C.hist = hist
    stamp(C, "loopend")

def get_tag(C):
    P, S, role = C.P, C.S, C.role
    P(C.vm.wait(lambda q: q[0] == "nonce"))
    P(f"v_readfirstlane_b32 {S['tag']}, {C.vN}\ns_cmp_eq_u32 {S['tag']}, 0\ns_cbranch_scc1 TAGSL_{role}\nTAGOK_{role}:")
    C.slow.append(f"TAGSL_{role}:\ns_mov_b32 {S['t2']}, 0\nTAGLP_{role}:\nbuffer_load_dword {C.vN}, {C.vZ}, {C.sD}, 0 offen sc1\ns_waitcnt vmcnt(0)\nv_readfirstlane_b32 {S['tag']}, {C.vN}\ns_add_u32 {S['t2']}, {S['t2']}, 1\n"
                  f"s_cmp_ge_u32 {S['t2']}, {SPIN_MAX}\ns_cbranch_scc1 TAGOK_{role}\ns_cmp_eq_u32 {S['tag']}, 0\ns_cbranch_scc1 TAGLP_{role}\ns_branch TAGOK_{role}")

def flag_store(C):
    P, S, t = C.P, C.S, C.t
    P(f"s_lshl_b32 {S['t0']}, s2, 7\ns_add_u32 {S['t0']}, {S['t0']}, {FLAG_OFF}\ns_cmp_eq_u32 {S['w']}, 0\ns_cselect_b32 {S['t0']}, {S['t0']}, {BIG}")
    P(f"v_mov_b32 {t[5]}, {S['t0']}\nv_mov_b32 {t[6]}, {S['tag']}\ns_mov_b64 exec, 1\nbuffer_store_dword {t[6]}, {t[5]}, {C.sWS}, 0 offen sc1\ns_mov_b64 exec, -1")
    C.vm.issue(("flag", 0))

def poll_req(C): return vop(C, ("pl", 0), f"buffer_load_dword {C.vFL}, {C.vF}, {C.sWS}, 0 offen sc1")
def poll_check(C, label, mask, first=True):
    P, S = C.P, C.S
    loop = (f"s_mov_b32 {S['t2']}, 0\n{label}:\nbuffer_load_dword {C.vFL}, {C.vF}, {C.sWS}, 0 offen sc1\ns_waitcnt vmcnt(0)\nv_cmp_eq_u32 vcc, {S['tag']}, {C.vFL}\ns_add_u32 {S['t2']}, {S['t2']}, 1\n"
            f"s_cmp_ge_u32 {S['t2']}, {SPIN_MAX}\ns_cbranch_scc1 {label}_X\ns_and_b32 {S['t0']}, vcc_lo, {mask}\ns_cmp_lg_u32 {S['t0']}, {mask}\ns_cbranch_scc1 {label}")
    if OPT["slp"]: loop = loop.replace(f"{label}:\nbuffer_load", f"s_branch {label}_F\n{label}:\ns_sleep {OPT['slp']}\n{label}_F:\nbuffer_load") if not first else loop.replace(f"{label}:\nbuffer_load", f"{label}:\ns_sleep {OPT['slp']}\nbuffer_load")
    if first:
        P(C.vm.wait(lambda q: q[0] == "pl"))
        P(f"v_cmp_eq_u32 vcc, {S['tag']}, {C.vFL}\ns_and_b32 {S['t0']}, vcc_lo, {mask}\ns_cmp_lg_u32 {S['t0']}, {mask}\ns_cbranch_scc1 {label}_S\n{label}_X:")
        C.slow.append(f"{label}_S:\n{loop}\ns_branch {label}_X")
    else:
        P(loop + f"\n{label}_X:")

def xtile(C):
    S = C.S
    o = [f"s_mov_b32 {C.sX[0]}, {C.ptr[0]}\ns_mov_b32 {C.sX[1]}, {C.ptr[1]}\ns_mov_b32 {C.sX[2]}, {XBYTES}\ns_mov_b32 {S['t1']}, {8*1792 - 1024}\ns_add_u32 m0, {S['bm0']}, {XCH*8192}"]
    return o + [vop(C, ("e", 0), f"buffer_load_dwordx4 {C.vXd}, {C.sX}, {S['t1'] if j else 0} offen offset:{1024*j} lds") for j in range(2)]

def aload(C, tt):
    if tt < 28: seg = tt // 7; so = C.kxs[tt % 7]
    else: seg = 4 + (tt - 28) // 4; so = C.kws[1 + (tt - 28) % 4]
    return [vop(C, ("a", tt), f"buffer_load_dwordx4 {C.aring[tt % C.NA][j]}, {C.vA[seg]}, {C.sWS}, {so} offen offset:{2048*j} sc1") for j in range(2)]

def phase2(C, b2, flag_at):
    P, S, vm, t, lane, w = C.P, C.S, C.vm, C.t, C.lane, C.S['w']
    role = C.role; LA = OPT["LA"]; NA = C.NA; aring = C.aring
    lg = C.lg = Cnt("lgkmcnt", 15)
    va = Alloc("v", C.vbase, C.vring)
    acc = [[va(16, 4) for _ in range(2)] for _ in range(3)]
    G = va(12, 4)
    xv = [va(2) for _ in range(4)]; kk = va(2); vO = va(); vL = va(); Rr = va(8, 4)
    rstd, k1 = kk[0], kk[1]
    vXr = va(); vR = va(); vGs = va(); vGr = va(); wad = va(); rad = va()
    rP = C.rP
    C.vA = C.vA[:2] + [va() for _ in range(4)]
    breg = C.breg
    sb = [[[R("a", 224 + 16*p + 8*j + 4*f, 4) for f in range(2)] for j in range(2)] for p in range(2)]
    sO = C.sW
    n_, hf = t[3], t[4]
    su = []
    def U(s): su.extend(s.split("\n"))
    U(f"v_and_b32 {n_}, 31, {lane}\nv_lshrrev_b32 {hf}, 5, {lane}\nv_lshlrev_b32 {vL}, 4, {lane}")
    U(f"s_and_b32 {S['b1']}, {S['T']}, 1\ns_mul_i32 {S['b1']}, {S['b1']}, {2*A2_KS*2048}\ns_sub_u32 {S['b1']}, {S['b1']}, {A2_KS*2048}\nv_add_u32 {C.vA[2]}, {S['b1']}, {C.vA[0]}\nv_add_u32 {C.vA[3]}, {S['b1']}, {C.vA[1]}")
    U(f"s_mul_i32 {S['b1']}, {S['T']}, {2*A2_KS}\ns_add_u32 {S['b1']}, {S['b1']}, {S['hh']}\ns_lshl_b32 {S['b1']}, {S['b1']}, 10\nv_add_u32 {t[0]}, {S['b1']}, {vL}")
    U(f"s_lshl_b32 {S['b1']}, {w}, 14\nv_add_u32 {C.vA[4]}, {S['b1']}, {t[0]}\ns_xor_b32 {S['b1']}, {S['b1']}, 16384\nv_add_u32 {C.vA[5]}, {S['b1']}, {t[0]}")
    U(f"s_lshl_b32 {S['b1']}, s2, 2\ns_add_u32 {S['b1']}, {S['b1']}, {w}\ns_mul_i32 {S['b2']}, {S['b1']}, 3072\ns_add_u32 {S['b2']}, {S['b2']}, {XF_OFF}\nv_add_u32 {vGr}, {S['b2']}, {vL}")
    U(f"s_xor_b32 {S['b2']}, {S['b1']}, 4\ns_mul_i32 {S['b2']}, {S['b2']}, 3072\ns_add_u32 {S['b2']}, {S['b2']}, {XF_OFF}\nv_add_u32 {vGs}, {S['b2']}, {vL}")
    for g in range(3): U(f"v_mov_b32 {G[4*g+3]}, {S['tag']}")
    U(f"s_mov_b32 {sO[0]}, {C.ptr[12]}\ns_mov_b32 {sO[1]}, {C.ptr[13]}\ns_mov_b32 {sO[2]}, {XBYTES}")
    U(f"s_lshl_b32 {S['b2']}, {S['hh']}, 12\ns_add_u32 {S['b2']}, {S['b2']}, {XCH*8192}")
    U(f"v_lshlrev_b32 {t[0]}, 7, {n_}\nv_lshl_add_u32 {t[0]}, {hf}, 3, {t[0]}")
    U(f"s_lshl_b32 {S['wm0']}, {S['half']}, 2\nv_and_b32 {t[1]}, 7, {lane}\nv_xor_b32 {t[1]}, {S['wm0']}, {t[1]}\nv_lshl_add_u32 {t[0]}, {t[1]}, 4, {t[0]}\nv_add_u32 {vXr}, {S['b2']}, {t[0]}")
    U(f"s_mul_i32 {S['b2']}, {S['hh']}, {32*1792}\ns_add_u32 {S['b2']}, {S['b2']}, {S['tb']}\ns_lshl_b32 {S['wm0']}, {S['half']}, 6\ns_add_u32 {S['b2']}, {S['b2']}, {S['wm0']}")
    U(f"v_mul_u32_u24 {t[0]}, 1792, {n_}\nv_add_u32 {t[0]}, {S['b2']}, {t[0]}\nv_lshl_add_u32 {vO}, {hf}, 4, {t[0]}")
    U(f"s_lshl_b32 {S['b2']}, {S['T']}, 1\ns_add_u32 {S['b2']}, {S['b2']}, {S['hh']}\ns_lshl_b32 {S['b2']}, {S['b2']}, 7\ns_lshl_b32 {S['wm0']}, {w}, 14\ns_add_u32 {S['b2']}, {S['b2']}, {S['wm0']}\ns_add_u32 {S['b2']}, {S['b2']}, {RSTD_OFF}")
    U(f"v_lshl_add_u32 {vR}, {n_}, 2, {S['b2']}")
    assert b2.loaded >= 14
    w2ch = [b2.ch[t_] for t_ in range(NPRE, 14)]
    wn = max(range(3), key=lambda k: sum(1 for c in w2ch if c >> 3 == k))
    pch = [c for c in w2ch if c >> 3 == wn][:4]; assert len(pch) == 4
    U(f"s_add_u32 {S['b2']}, {S['bm0']}, {65536*wn}\nv_add_u32 {wad}, {S['b2']}, {vL}\nv_xor_b32 {rad}, 4096, {wad}")
    slot = lambda i, a: ((pch[2*i + (a >> 1)] * 8192) & 0xffff) + (a & 1) * 1024
    NSU = 13
    F, Fp = acc[1]; Sv, Sp = acc[2]; E, X = acc[0]
    gd = lambda k: G[4*(k // 3) + k % 3]
    gw = [lop(C, ("gw", 0), f"ds_write_b128 {wad}, {X[4*a:4*a+4]} offset:{slot(1, a)}") for a in range(4)]
    gr = [lop(C, ("gr", 0), f"ds_read_b128 {X[4*a:4*a+4]}, {rad} offset:{slot(1, a)}") for a in range(4)]
    gs = [Lazy(lambda: lg.wait(lambda q: q[0] == "gr"))]
    for k in range(8):
        gs += [f"v_add_f32 {E[r]}, {E[r]}, {X[r]}" for r in (2*k, 2*k+1)] + [f"v_cvt_pk_bf16_f32 {gd(k)}, {E[2*k]}, {E[2*k+1]}"]
        if k in (2, 5, 7): gs.append(vop(C, ("xs", 0), f"buffer_store_dwordx4 {G[4*(k//3):4*(k//3) + 4]}, {vGs}, {C.sWS}, 0 offen offset:{1024*(k//3)} sc1"))
    gl = [f"buffer_load_dwordx4 {G[4*g:4*g+4]}, {vGr}, {C.sWS}, 0 offen offset:{1024*g} sc1" for g in range(3)]
    U(f"s_mov_b32 {S['b1']}, 0x3f80\ns_mov_b32 {S['b2']}, 0x3f800000")
    ck = [f"v_xor_b32 {G[4*g+3]}, {S['tag']}, {G[4*g+3]}" for g in range(3)] + [f"v_or3_b32 {G[3]}, {G[3]}, {G[7]}, {G[11]}", f"v_cmp_ne_u32 vcc, 0, {G[3]}"]
    C.slow.append(f"XG_S{role}:\ns_mov_b32 {S['t2']}, 0\nXG_L{role}:\n" + "\n".join(gl) + "\ns_waitcnt vmcnt(0)\n" + "\n".join(ck) +
                  f"\ns_add_u32 {S['t2']}, {S['t2']}, 1\ns_cmp_ge_u32 {S['t2']}, {SPIN_MAX}\ns_cbranch_scc1 XG_X{role}\ns_cmp_lg_u64 vcc, 0\ns_cbranch_scc1 XG_L{role}\ns_branch XG_X{role}")
    ck = [Lazy(lambda: vm.wait(lambda q: q[0] == "xl"))] + ck + [f"s_cmp_lg_u64 vcc, 0\ns_cbranch_scc1 XG_S{role}\nXG_X{role}:"]
    def fe_plain(a):
        o = [Lazy(lambda a=a: lg.wait(lambda q: q == ("fr", a)))]
        R_ = range(4*a, 4*a+4)
        o += [f"v_add_f32 {F[r]}, {F[r]}, {Fp[r]}" for r in R_]
        o += [(f"v_lshlrev_b32 {E[r]}, 16, {gd(r//2)}" if r % 2 == 0 else f"v_and_b32 {E[r]}, 0xffff0000, {gd(r//2)}") for r in R_]
        o += [f"v_add_f32 {F[r]}, {F[r]}, {E[r]}" for r in R_]
        o += [f"v_mul_f32 {E[r]}, {F[r]}, {k1}" for r in R_] + [f"v_exp_f32 {E[r]}, {E[r]}" for r in R_] + [f"v_mul_f32 {F[r]}, {F[r]}, {rstd}" for r in R_]
        o += [f"v_add_f32 {E[r]}, 1.0, {E[r]}" for r in R_] + [f"v_rcp_f32 {E[r]}, {E[r]}" for r in R_]
        o += [f"v_mul_f32 {F[r]}, {F[r]}, {E[r]}" for r in R_]
        return o
    def fe_pk(a):
        o = [Lazy(lambda a=a: lg.wait(lambda q: q == ("fr", a)))]
        R_ = range(4*a, 4*a+4); H = [slice(4*a, 4*a+2), slice(4*a+2, 4*a+4)]
        o += [f"v_pk_add_f32 {F[h]}, {F[h]}, {Fp[h]}" for h in H]
        o += [f"v_pk_mul_f32 {E[h]}, {F[h]}, {kk} op_sel:[0,1] op_sel_hi:[1,1]" for h in H]
        o += [f"v_exp_f32 {E[r]}, {E[r]}" for r in R_] + [f"v_pk_mul_f32 {F[h]}, {F[h]}, {kk} op_sel_hi:[1,0]" for h in H]
        o += [f"v_pk_add_f32 {E[h]}, {E[h]}, 1.0 op_sel_hi:[1,0]" for h in H] + [f"v_rcp_f32 {E[r]}, {E[r]}" for r in R_]
        o += [f"v_pk_mul_f32 {F[h]}, {F[h]}, {E[h]}" for h in H]
        return o
    NPL = OPT["npl"]
    fe1 = [x for a in range(NPL) for x in fe_plain(a)]
    fe2 = [f"v_dot2c_f32_bf16 {F[r]}, {S['b1'] if r % 2 == 0 else S['b2']}, {gd(r//2)}" for r in range(4*NPL, 16)] + [x for a in range(NPL, 4) for x in fe_pk(a)]
    fw = [lop(C, ("fw", 0), f"ds_write_b128 {wad}, {Fp[4*a:4*a+4]} offset:{slot(0, a)}") for a in range(4)]
    fr = [lop(C, ("fr", a), f"ds_read_b128 {Fp[4*a:4*a+4]}, {rad} offset:{slot(0, a)}") for a in range(4)]
    sw = [lop(C, ("sw", 0), f"ds_write_b128 {wad}, {Sp[4*a:4*a+4]} offset:{slot(1, a)}") for a in range(4)]
    sr = [lop(C, ("sr", a), f"ds_read_b128 {Sp[4*a:4*a+4]}, {rad} offset:{slot(1, a)}") for a in range(4)]
    xr = []
    for a in range(4): xr += [f"v_xor_b32 {t[0]}, {16*a}, {vXr}", lop(C, ("xr", 0), f"ds_read_b64 {xv[a]}, {t[0]}")]
    xu = [Lazy(lambda: lg.wait(lambda q: q[0] == "xr"))]
    for a in range(4):
        for h in range(2): xu += [f"v_lshlrev_b32 {X[4*a+2*h]}, 16, {xv[a][h]}", f"v_and_b32 {X[4*a+2*h+1]}, 0xffff0000, {xv[a][h]}"]
    TPOLL = 28 - LA - 4
    BV, BF, TB = 6 + NPRE // 2, 14, 30
    R1 = OPT['R1']
    RX, CK = OPT["RX"], OPT["CK"]
    def trs_for(tt):
        o = []
        for j in range(2):
            if tt < 14 and 2 * (tt % 7) < NPRE: continue
            if tt < 14: o += b2.tr(2 * (tt % 7) + j, breg[2*tt + j], C.rB if tt < 7 else rP)
            else: o += b2.tr(14 + 2 * ((tt - 28) & 3) + j, sb[tt & 1][j], C.rB if tt < 32 else rP)
        return [lop(C, ("tr", tt), y) for y in o]
    P(vm.wait(lambda q: q[0] == "b2" and q[1] <= 1) + " lgkmcnt(0)")
    emit(C, trs_for(0))
    for tt in range(NT2):
        nb = min(2 * tt + 3, 13) if tt < 27 else NB - 1
        assert nb < b2.loaded
        P(vm.wait(lambda q: q == ("a", tt) or (q[0] == "b2" and q[1] <= nb) or (tt == flag_at and q[0] == "st") or (tt == TB and q[0] == "e")))
        if tt in ((0, 7, 14, 21, 28) if OPT["fine"] != 1 else (0, 7, 14, 16, 21, 24, 26, 28, 29, 30, 31, 32, 33, 34, 35)): stamp(C, f"a{tt}")
        if tt == flag_at:
            P("s_barrier"); flag_store(C); stamp(C, "flag")
        if any(q == ("tr", tt) for q in lg.q): P(lg.wait(lambda q: q == ("tr", tt) or (tt == TB and q[0] == "fw")))
        if tt == R1: P(lg.wait(lambda q: q[0] == "gw"))
        if tt in (BV, BF, R1, TB): P("s_barrier")
        if tt == BF: b2.free += [c for c in w2ch if c not in pch]
        trs = trs_for(tt + 1) if (tt + 1 < 14 or 28 <= tt + 1 < NT2) else []
        ld = []; va_ = []
        if tt < NSU:
            k = len(su); va_ = su[tt * k // NSU:(tt + 1) * k // NSU]
        if tt == TPOLL: ld.append(poll_req(C))
        if tt + LA == 28:
            def chk():
                l0 = len(P.l); poll_check(C, f"PS_{role}", 60); x = "\n".join(P.l[l0:]); del P.l[l0:]; return x
            ld.append(Lazy(chk, "svsss"))
            ld.append(vop(C, ("e", 0), f"buffer_load_dword {rstd}, {vR}, {C.sWS}, 0 offen sc1"))
        if tt + LA < NT2: ld.extend(aload(C, tt + LA))
        if tt >= 17 or (tt < 14 and tt % 2 == 1): ld.extend(b2.loads(1))
        if 14 <= tt < R1: va_ = gw[(tt - 14) * 4 // (R1 - 14):(tt - 13) * 4 // (R1 - 14)]
        if tt == R1: va_ = gr
        if R1 < tt <= R1 + 3: va_ = gs[(tt - R1 - 1) * len(gs) // 3:(tt - R1) * len(gs) // 3]
        if tt == RX: ld += [vop(C, ("xl", 0), x) for x in gl]
        if tt in (28, 29): va_ = fw[(tt - 28) * 2:(tt - 27) * 2]
        if tt == TB: va_ = [f"v_mul_f32 {k1}, {f2h(-math.log2(math.e))}, {rstd}"] + fr + xr
        if tt == TB + 1: va_ = va_ + xu
        if tt == CK: va_ = va_ + ck
        if tt > CK:
            k = len(fe1); i = tt - CK - 1; nn = NT2 - 1 - CK; va_ = va_ + fe1[i * k // nn:(i + 1) * k // nn]
        ps = 0 if tt < 14 else (1 if tt < 28 else 2)
        last = tt in (13, 27, 35)
        order = ((1, 0), (0, 0), (1, 1), (0, 1)) if not last else ((1, 0), (1, 1), (0, 0), (0, 1))
        Bf = (lambda j, f: breg[2*(tt % 14) + j][f]) if tt < 28 else (lambda j, f: sb[tt & 1][j][f])
        m = [f"v_mfma_f32_32x32x16_bf16 {acc[ps][f]}, {Bf(j, f)}, {aring[tt % NA][j]}, {0 if (tt in (0, 14, 28) and j == 0) else acc[ps][f]}" for f, j in order]
        if OPT['sp2']: emit(C, spread(m, (trs, 0, 0.6), (ld, 0, 0.9), (va_, 0.3 if tt in (14, 28) else 0, 0.95), clk=32))
        else: emit(C, merge(m, (trs, 0, 3), (ld, 0, 4), (va_, 1 if tt in (14, 28) else 0, 4)))
    assert b2.loaded == NB and CK > TB and (CK < NT2 - 1 or NPL == 0)
    stamp(C, "p2end")
    h = min(len(fe2), 14)
    emit(C, merge(fe2[:h], (sw, 0, h)) if h else sw)
    P(lg.wait(lambda q: q[0] == "sw")); P("s_barrier")
    if OPT["fine"] == 1: stamp(C, "sb")
    emit(C, sr)
    emit(C, fe2[h:])
    if OPT["fine"] == 1: stamp(C, "fedone")
    for a in range(4):
        P(lg.wait(lambda q: q == ("sr", a)))
        H = [slice(4*a, 4*a+2), slice(4*a+2, 4*a+4)]
        for h_ in H: P(f"v_pk_add_f32 {Sv[h_]}, {Sv[h_]}, {Sp[h_]}")
        for h_ in H: P(f"v_pk_fma_f32 {Sv[h_]}, {Sv[h_]}, {F[h_]}, {X[h_]}")
        P(f"v_cvt_pk_bf16_f32 {Rr[2*a]}, {Sv[4*a]}, {Sv[4*a+1]}\nv_cvt_pk_bf16_f32 {Rr[2*a+1]}, {Sv[4*a+2]}, {Sv[4*a+3]}")
        if a & 1:
            p = a >> 1
            P(f"v_permlane32_swap_b32 {Rr[4*p]}, {Rr[4*p+2]}\nv_permlane32_swap_b32 {Rr[4*p+1]}, {Rr[4*p+3]}")
            P(f"buffer_store_dwordx4 {Rr[4*p:4*p+4]}, {vO}, {sO}, 0 offen offset:{32*p}")
    if OPT["stamps"]:
        stamp(C, "stored"); P("s_waitcnt vmcnt(0)"); stamp(C, "end")
    if OPT["enc"] == "end": P("s_waitcnt vmcnt(0)\ns_memrealtime s[100:101]")
    if OPT["spin"] and (OPT["encwg"] == -1 or (OPT["encwg"] == -2 and role == "F") or (OPT["encwg"] == -3 and role == "Q") or (OPT["encwg"] >= 0 and role == ("F" if OPT["encwg"] < 128 else "Q"))):
        if OPT["encwg"] >= 0: P(f"s_cmp_lg_u32 s2, {OPT['encwg']}\ns_cbranch_scc1 SPN2{role}")
        P(f"s_waitcnt lgkmcnt(0)\ns_mov_b32 {S['t1']}, {OPT['spin']}")
        if OPT["enc"]: P(f"s_sub_u32 {S['t0']}, s100, s98\ns_lshl_b32 {S['t0']}, {S['t0']}, 2\ns_add_u32 {S['t1']}, {S['t1']}, {S['t0']}\ns_min_u32 {S['t1']}, {S['t1']}, 20000")
        P(f"SPN1{role}:\ns_sleep 2\ns_memrealtime {C.tm}\ns_waitcnt lgkmcnt(0)\ns_sub_u32 {S['t0']}, {C.tm[0]}, s98\ns_cmp_lt_u32 {S['t0']}, {S['t1']}\ns_cbranch_scc1 SPN1{role}\nSPN2{role}:")
    stamp_flush(C)
    P("s_endpgm")
    del C.lg
    C.vA = C.vA[:2]
    return 256

def dma_item(C, need, m0expr, load, execmask=None):
    s = load
    if execmask: s = f"s_mov_b64 exec, {execmask}\n{s}\ns_mov_b64 exec, -1"
    o = []
    if C.m0 != m0expr: o.append(m0expr)
    C.m0 = m0expr
    return o + [vop(C, ("d", need), s)]

def slab_tables(C, wmul):
    P, S = C.P, C.S
    if OPT["com"]:
        P(f"s_bfe_u32 {S['t0']}, s2, 0x20006\ns_mul_i32 {S['t0']}, {S['t0']}, 3\ns_lshr_b32 {S['t0']}, {S['t0']}, 1\ns_add_u32 {S['t0']}, {S['t0']}, {S['rbl']}")
        P(f"s_sub_u32 {S['t1']}, {S['t0']}, 6\ns_cmp_ge_u32 {S['t0']}, 6\ns_cselect_b32 {S['t0']}, {S['t1']}, {S['t0']}\ns_lshl_b32 {S['t0']}, {S['t0']}, 7")
        for d in range(1, 7):
            P(f"s_add_u32 {C.kxs[d]}, {C.kxs[d-1] if d > 1 else S['t0']}, 128\ns_cmp_eq_u32 {C.kxs[d]}, 896\ns_cselect_b32 {C.kxs[d]}, 128, {C.kxs[d]}\ns_mul_i32 {C.kws[d]}, {C.kxs[d]}, {wmul}")
        return
    for d in range(1, 7):
        P(f"s_add_u32 {C.kxs[d]}, {C.kxs[d-1]}, 128\ns_cmp_eq_u32 {C.kxs[d]}, 896\ns_cselect_b32 {C.kxs[d]}, 0, {C.kxs[d]}\ns_mul_i32 {C.kws[d]}, {C.kxs[d]}, {wmul}")

class Role: pass

def ffn_head(C):
    P, S, lane, t = C.P, C.S, C.lane, C.t
    Rl = Role(); Rl.vm = C.vm = Cnt("vmcnt", 63); C.vm.issue(("pf", 0)); C.m0 = None
    va = Rl.va = Alloc("v", C.vbase, 256)
    NW, NX = 4, 3; WB, XB = 0, 65536
    xd = C.xd; wd = Rl.wd = [va() for _ in range(8)]
    w = S['w']
    P(f"s_mul_i32 {S['t0']}, {S['cb']}, 448\ns_and_b32 {S['t0']}, {S['t0']}, 0xffffff80\ns_mul_i32 {S['t1']}, {w}, {8*3584}\ns_add_u32 {S['t0']}, {S['t0']}, {S['t1']}")
    P(f"v_lshrrev_b32 {t[0]}, 5, {lane}\nv_bfe_u32 {t[1]}, {lane}, 1, 4\nv_xor_b32 {t[1]}, {t[0]}, {t[1]}\nv_xor_b32 {t[1]}, {S['b1']}, {t[1]}")
    P(f"v_mul_u32_u24 {t[0]}, 3584, {t[0]}\nv_lshl_add_u32 {t[0]}, {t[1]}, 5, {t[0]}\nv_and_b32 {t[1]}, 1, {lane}\nv_lshl_add_u32 {t[0]}, {t[1]}, 4, {t[0]}")
    P(f"v_add_u32 {wd[0]}, {S['t0']}, {t[0]}\nv_xor_b32 {t[3]}, 64, {wd[0]}")
    P(f"v_add_u32 {wd[1]}, {2*3584 - 1024}, {t[3]}\nv_add_u32 {wd[2]}, {4*3584 - 2048}, {wd[0]}\nv_add_u32 {wd[3]}, {6*3584 - 3072}, {t[3]}")
    P(f"s_mul_i32 {S['kw']}, {S['kx']}, {64*3584//128}")
    P(f"s_memrealtime {C.mT}\ns_or_b32 {S['t0']}, s2, {w}\ns_cmp_eq_u32 {S['t0']}, 0\ns_cselect_b32 {C.sD[2]}, 256, 0\ns_mov_b32 {C.sD[3]}, 0x20000\nv_mov_b32 {t[0]}, 0")
    karg(C)
    P(f"s_or_b32 {S['t0']}, {C.mT[0]}, 1\nv_mov_b32 {t[1]}, {S['t0']}\ns_mov_b32 {C.sD[0]}, {C.ptr[14]}\ns_mov_b32 {C.sD[1]}, {C.ptr[15]}\nbuffer_store_dword {t[1]}, {t[0]}, {C.sD}, 0 offen sc1")
    C.vm.issue(("non", 0))
    srd(P, C.sW, C.ptr[8], C.ptr[9], 448 * 3584)
    items = []
    for d in range(7):
        for j in range(4): items.append(dict(k="x", d=d, j=j, need=2*d, free=(2*(d-NX)+1 if d >= NX else -1)))
        for s in (2*d, 2*d+1):
            for j in range(4): items.append(dict(k="w", s=s, j=j, need=s, free=(s-NW if s >= NW else -1)))
    def emit_item(i):
        it = items[i]; j = it["j"]
        if it["k"] == "x":
            return dma_item(C, it["need"], f"s_add_u32 m0, {S['xm0']}, {XB + (it['d'] % NX)*16384}",
                            f"buffer_load_dwordx4 {xd[j]}, {C.sX}, {C.kxs[it['d']]} offen offset:{j*1024}{NTX} lds")
        return dma_item(C, it["need"], f"s_add_u32 m0, {S['xm0']}, {WB + (it['s'] % NW)*16384}",
                        f"buffer_load_dwordx4 {wd[j + 4*(it['s']&1)]}, {C.sW}, {C.kws[it['s']>>1]} offen offset:{j*1024}{NTW} lds")
    Rl.sched = schedule(items, OPT["pro"], OPT["rate"], 14); Rl.emit_item = emit_item
    for i in Rl.sched[-1][:8]: emit(C, emit_item(i))
    for j in range(4): P(f"v_add_u32 {wd[4+j]}, {32*3584}, {wd[j]}")
    for i in Rl.sched[-1][8:OPT["first"]]: emit(C, emit_item(i))
    return Rl

def tlb_touch(C):
    P, S = C.P, C.S
    if OPT["tlb"] & 1:
        for k in (10, 4, 12, 14): P(f"s_load_dword s97, {C.ptr[k:k+2]}, 0")
        for off in range(0, WS_USED, 1 << 21):
            P(f"s_add_u32 {C.tm[0]}, {C.wsp[0]}, {off}\ns_addc_u32 {C.tm[1]}, {C.wsp[1]}, 0\ns_load_dword s97, {C.tm}, 0")
    if OPT["tlb"] & 2:
        P(f"v_mov_b32 {C.t[6]}, 0")
        for k in (10, 4, 12): P(f"global_load_dword v2, {C.t[6]}, {C.ptr[k:k+2]}"); C.vm.issue(("pf", 0))
        P(f"v_and_b32 {C.t[6]}, 7, {C.lane}\nv_lshlrev_b32 {C.t[6]}, 21, {C.t[6]}\nglobal_load_dword v2, {C.t[6]}, {C.wsp}"); C.vm.issue(("pf", 0))

def karg(C):
    P, S = C.P, C.S
    P("s_waitcnt lgkmcnt(0)")
    P(f"s_add_u32 {C.sX[0]}, {C.ptr[0]}, {S['t2']}\ns_addc_u32 {C.sX[1]}, {C.ptr[1]}, 0\ns_sub_u32 {C.sX[2]}, {XBYTES}, {S['t2']}\ns_mov_b32 {C.sX[3]}, 0x20000")

def ffn_body(C, Rl):
    P, S, lane, t = C.P, C.S, C.lane, C.t
    C.role = "F"; vm = C.vm = Rl.vm; C.lim = NB - OPT["late"]
    va = Rl.va; aa = Alloc("a", 0, C.abase)
    NW, NX = 4, 3; WB, XB = 0, 65536
    sWS = C.sWS; w = S['w']
    stamp(C, "iss")
    tlb_touch(C)
    xr = [[va() for _ in range(2)] for _ in range(2)]
    wr_ = [va() for _ in range(7)]
    acc = [[va(4, 4) for _ in range(4)] for _ in range(7)]
    cs = [va(4, 4) for _ in range(7)]
    rs = [va(4, 4) for _ in range(2)]
    ones = aa(4)
    fb = [dict(x=[aa(4) for _ in range(4)], w=[aa(4) for _ in range(7)]) for _ in range(2)]
    if OPT["wsoff"]: P(f"s_add_u32 {C.wsp[0]}, {C.wsp[0]}, {OPT['wsoff'] << 20}\ns_addc_u32 {C.wsp[1]}, {C.wsp[1]}, 0")
    srd(P, sWS, C.wsp[0], C.wsp[1], WS_REC)
    wr, wc = S['half'], S['hh']
    n_, g_ = va(), va()
    P(f"v_and_b32 {n_}, 15, {lane}\nv_lshrrev_b32 {g_}, 4, {lane}")
    P(f"s_lshl_b32 {S['t0']}, {wr}, 13\ns_lshl_b32 {S['t1']}, {wc}, 12\ns_add_u32 {S['t0']}, {S['t0']}, {S['t1']}\ns_add_u32 {S['t0']}, {S['t0']}, {XB}")
    P(f"v_lshrrev_b32 {t[0]}, 1, {n_}\nv_xor_b32 {t[0]}, {g_}, {t[0]}\nv_lshlrev_b32 {t[0]}, 4, {t[0]}\nv_lshl_add_u32 {t[0]}, {n_}, 7, {t[0]}")
    P(f"v_add_u32 {xr[0][0]}, {S['t0']}, {t[0]}\nv_xor_b32 {xr[0][1]}, 64, {xr[0][0]}\nv_xor_b32 {xr[1][0]}, 4096, {xr[0][0]}\nv_xor_b32 {xr[1][1]}, 4096, {xr[0][1]}")
    P(f"v_bfe_u32 {t[0]}, {lane}, 2, 2\nv_lshl_add_u32 {t[1]}, {g_}, 3, {t[0]}\nv_lshlrev_b32 {t[1]}, 9, {t[1]}\nv_and_b32 {t[2]}, 3, {lane}\nv_lshl_add_u32 {t[1]}, {t[2]}, 3, {t[1]}")
    P(f"v_bfe_u32 {t[0]}, {lane}, 2, 3")
    P(f"s_lshl_b32 {S['b1']}, {wr}, 2\ns_mul_i32 {S['b2']}, {wr}, -3")
    P(f"s_and_b32 {S['t0']}, {S['cb']}, 1\ns_lshl_b32 {S['t0']}, {S['t0']}, 1\ns_mul_i32 {S['t1']}, {wc}, 7\ns_add_u32 {S['t0']}, {S['t0']}, {S['t1']}")
    P(f"s_add_u32 {S['t1']}, {S['t0']}, {S['b2']}\ns_add_u32 {S['t0']}, {S['t0']}, {S['b1']}")
    for c in range(7):
        P(f"s_add_u32 {S['t2']}, {S['t0'] if c <= 2 else S['t1']}, {c}")
        P(f"v_xor_b32 {t[2]}, {S['t2']}, {t[0]}\nv_lshl_add_u32 {wr_[c]}, {t[2]}, 5, {t[1]}")
    P(f"v_mov_b32 {t[0]}, {ONES}")
    for i in range(4): P(f"v_accvgpr_write_b32 {ones[i]}, {t[0]}")
    b2 = B2(C)
    RSB = b2.xchunk * 8192; CSB = RSB + 1024
    xw = RSB & 0x30000; RSB -= xw; CSB -= xw
    a_rs, a_rs2, a_cs, a_cs2 = va(), va(), va(), va()
    st = [va(), va()]
    P(f"s_lshl_b32 {S['t0']}, {wr}, 8\ns_lshl_b32 {S['t1']}, {wc}, 7\ns_add_u32 {S['t0']}, {S['t0']}, {S['t1']}\ns_add_u32 {S['t0']}, {S['t0']}, {xw}")
    P(f"v_lshlrev_b32 {a_rs}, 2, {n_}\nv_add_u32 {a_rs}, {S['t0']}, {a_rs}\nv_xor_b32 {a_rs2}, 128, {a_rs}")
    P(f"s_lshl_b32 {S['t0']}, {wc}, 3\ns_add_u32 {S['t1']}, {S['t0']}, {S['b2']}\ns_add_u32 {S['t0']}, {S['t0']}, {S['b1']}")
    P(f"s_lshl_b32 {S['t0']}, {S['t0']}, 6\ns_add_u32 {S['t1']}, {S['t1']}, 4\ns_lshl_b32 {S['t1']}, {S['t1']}, 6")
    P(f"v_lshlrev_b32 {a_cs}, 4, {g_}\nv_add_u32 {a_cs}, {xw}, {a_cs}\nv_add_u32 {a_cs2}, {S['t1']}, {a_cs}\nv_add_u32 {a_cs}, {S['t0']}, {a_cs}")
    P(f"s_lshl_b32 {S['t0']}, {wc}, 10\nv_lshlrev_b32 {st[0]}, 4, {lane}\nv_add_u32 {st[0]}, {S['t0']}, {st[0]}\nv_xor_b32 {st[1]}, 1024, {st[0]}")
    P(f"s_lshl_b32 {S['t0']}, {S['e']}, 3\ns_add_u32 {S['t0']}, {S['t0']}, {S['rbl']}\ns_lshl_b32 {S['t0']}, {S['t0']}, 1\ns_add_u32 {S['t0']}, {S['t0']}, {wr}")
    P(f"s_mul_i32 {S['t0']}, {S['t0']}, {A2_KS}\ns_mul_i32 {S['t1']}, {S['cb']}, 14\ns_add_u32 {S['t0']}, {S['t0']}, {S['t1']}\ns_mul_i32 {S['t1']}, {wc}, 7\ns_add_u32 {S['t0']}, {S['t0']}, {S['t1']}\ns_add_u32 {S['t0']}, {S['t0']}, 32")
    P(f"s_add_u32 {S['b1']}, {S['b1']}, {S['t0']}\ns_add_u32 {S['b2']}, {S['b2']}, {S['t0']}\ns_lshl_b32 {S['b1']}, {S['b1']}, 11\ns_lshl_b32 {S['b2']}, {S['b2']}, 11")
    if OPT["xst"]:
        pca, pra, gca, gsc, lca = [va() for _ in range(5)]
        for m_, bit in ((C.mT, 1), (C.mU, 2), (C.mW, 4), (C.mH, 8)):
            P(f"v_and_b32 {t[0]}, {bit}, {lane}\nv_cmp_ne_u32 {m_}, 0, {t[0]}")
        P(f"s_lshl_b32 {S['t2']}, {S['e']}, 3\ns_add_u32 {S['t0']}, {S['t2']}, {S['cb']}\ns_lshl_b32 {S['t0']}, {S['t0']}, 14\ns_add_u32 {S['t0']}, {S['t0']}, {SCOL_OFF}")
        P(f"s_lshl_b32 {S['t1']}, {w}, 12\ns_add_u32 {S['t1']}, {S['t1']}, {S['t0']}\nv_lshl_add_u32 {gca}, {lane}, 4, {S['t1']}")
        P(f"s_lshl_b32 {S['t1']}, {wc}, 1\ns_add_u32 {S['t1']}, {S['t1']}, {wr}\ns_lshl_b32 {S['t1']}, {S['t1']}, 3\ns_add_u32 {S['t1']}, {S['t1']}, {S['rbl']}\ns_lshl_b32 {S['t1']}, {S['t1']}, 9\ns_add_u32 {S['t0']}, {S['t0']}, {S['t1']}")
        P(f"v_bfe_u32 {t[0]}, {lane}, 2, 2\nv_lshlrev_b32 {t[0]}, 4, {t[0]}\nv_lshl_add_u32 {t[0]}, {g_}, 2, {t[0]}\nv_and_b32 {t[1]}, 3, {lane}\nv_add_u32 {t[0]}, {t[0]}, {t[1]}\nv_lshl_add_u32 {pca}, {t[0]}, 3, {S['t0']}")
        P(f"s_add_u32 {S['t0']}, {S['t2']}, {S['rbl']}\ns_lshl_b32 {S['t0']}, {S['t0']}, 2\ns_add_u32 {S['t0']}, {S['t0']}, {w}\ns_lshl_b32 {S['t0']}, {S['t0']}, 12\ns_add_u32 {S['t0']}, {S['t0']}, {SROW_OFF}")
        P(f"v_lshl_add_u32 {t[0]}, {n_}, 4, {S['t0']}\nv_cmp_lt_u32 vcc, 31, {lane}\nv_cndmask_b32 {gca}, {gca}, {t[0]}, vcc")
        P(f"s_lshl_b32 {S['t1']}, {S['cb']}, 9\ns_add_u32 {S['t0']}, {S['t0']}, {S['t1']}\nv_lshl_add_u32 {pra}, {lane}, 3, {S['t0']}\nv_mov_b32 {t[1]}, {BIG}\nv_cndmask_b32 {pra}, {pra}, {t[1]}, vcc")
        P(f"v_mov_b32 {gsc}, 1.0\nv_mov_b32 {t[1]}, {f2h(-1.0/448)}\nv_cndmask_b32 {gsc}, {gsc}, {t[1]}, vcc")
        P(f"s_lshl_b32 {S['t0']}, {w}, 8\ns_add_u32 {S['t0']}, {S['t0']}, {xw + 1024}\nv_lshl_add_u32 {lca}, {lane}, 3, {S['t0']}")
        P(f"s_lshl_b32 {S['t0']}, {w}, 7\ns_add_u32 {S['t0']}, {S['t0']}, {xw}\nv_lshl_add_u32 {t[0]}, {n_}, 3, {S['t0']}\nv_cndmask_b32 {lca}, {lca}, {t[0]}, vcc")
    p2_setup(C)
    slab_tables(C, 64*3584//128); C.m0 = None
    rest = Rl.sched[-1][OPT["first"]:]
    for i in rest[:OPT["wpos"]]: emit(C, Rl.emit_item(i))
    P("WARM_F:")
    for i in rest[OPT["wpos"]:]: emit(C, Rl.emit_item(i))
    def reads(s):
        b = fb[s & 1]
        xs = ((s >> 1) % NX) * 16384; ws = WB + (s % NW) * 16384
        X = [f"ds_read_b128 {b['x'][i]}, {xr[i>>1][s&1]} offset:{xs + (i&1)*2048}" for i in range(4)]
        W = []
        for c in range(7):
            W.append(f"ds_read_b64_tr_b16 {b['w'][c][0:2]}, {wr_[c]} offset:{ws}")
            W.append(f"ds_read_b64_tr_b16 {b['w'][c][2:4]}, {wr_[c]} offset:{ws + 2048}")
        return X + W
    def mfmas(s):
        b = fb[s & 1]; o = []
        def mm(d, a, bb): o.append(f"v_mfma_f32_16x16x32_bf16 {d}, {a}, {bb}, {d if s else 0}")
        if s < 2 or not OPT["xst"]:
            for i in range(2): mm(rs[i], ones, b['x'][i])
            for c in range(4): mm(cs[c], b['w'][c], ones)
        for c in range(7):
            for i in range(4): mm(acc[c][i], b['w'][c], b['x'][i])
        if s == 13 and not OPT["xst"]:
            wrs = [f"ds_write_b32 {a_rs}, {rs[i][0]} offset:{RSB + i*64}" for i in range(2)] + [f"ds_write_b128 {a_cs}, {cs[c]} offset:{CSB + c*64}" for c in range(4)]
            for k_, x in enumerate(wrs): o[14 + k_] += "\n" + x
        return o
    nm = [va(2), va(2)]
    NEG = f2h(-1.0/448)
    hook = None
    if OPT["xst"]:
        G = OPT["gat"]
        allcs = R("v", cs[0].i, 28); assert cs[6].i == cs[0].i + 24
        gq = [allcs[4*p:4*p+4] for p in range(7)]
        gl = [f"buffer_load_dwordx4 {gq[p]}, {gca}, {sWS}, 0 offen offset:{512*p} sc1" for p in range(7)]
        bad = rs[0][0]
        al = [g[k] for g in gq for k in (1, 3)]
        chk = [f"v_xor_b32 {bad}, {S['tag']}, {al[0]}"] + [f"v_bitop3_b32 {bad}, {x}, {S['tag']}, {bad} bitop3:0xbe" for x in al[1:]]
        def hook(s_):
            o = []
            if s_ == 2:
                def tg():
                    l0 = len(P.l); get_tag(C); x = "\n".join(P.l[l0:]); del P.l[l0:]; return x
                o.append(Lazy(tg, "svsss"))
                for c in range(4):
                    o += [f"v_cndmask_b32 {cs[c][0]}, {cs[c][0]}, {cs[c][1]}, {C.mT}", f"v_cndmask_b32 {cs[c][2]}, {cs[c][2]}, {cs[c][3]}, {C.mT}", f"v_cndmask_b32 {cs[c][0]}, {cs[c][0]}, {cs[c][2]}, {C.mU}"]
            if s_ == 3:
                o += [f"v_cndmask_b32 {cs[0][0]}, {cs[0][0]}, {cs[1][0]}, {C.mW}", f"v_cndmask_b32 {cs[2][0]}, {cs[2][0]}, {cs[3][0]}, {C.mW}", f"v_cndmask_b32 {cs[0][0]}, {cs[0][0]}, {cs[2][0]}, {C.mH}",
                      f"v_mov_b32 {cs[0][1]}, {S['tag']}", vop(C, ("st1", 0), f"buffer_store_dwordx2 {cs[0][0:2]}, {pca}, {sWS}, 0 offen sc1"),
                      f"v_cmp_eq_u32 vcc, 1, {g_}", f"v_mov_b32 {rs[0][1]}, {S['tag']}", f"v_cndmask_b32 {rs[0][0]}, {rs[0][0]}, {rs[1][0]}, vcc",
                      vop(C, ("st1", 0), f"buffer_store_dwordx2 {rs[0][0:2]}, {pra}, {sWS}, 0 offen sc1")]
            k_ = OPT["gsp"]
            if G - k_ < s_ <= G:
                i_ = s_ - (G - k_ + 1); o += [vop(C, ("ga", 0), x) for x in gl[i_ * 7 // k_:(i_ + 1) * 7 // k_]]
            if s_ == G + OPT['gck']:
                o.append(Lazy(lambda: vm.wait(lambda q: q[0] == "ga")))
                o += chk + [f"v_cmp_ne_u32 vcc, 0, {bad}", "s_cmp_lg_u64 vcc, 0\ns_cbranch_scc1 GA_S\nGA_X:"]
                C.slow.append(f"GA_S:\ns_mov_b32 {S['t2']}, 0\nGA_L:\n" + "\n".join(gl) + "\ns_waitcnt vmcnt(0)\n" + "\n".join(chk) +
                              f"\nv_cmp_ne_u32 vcc, 0, {bad}\ns_add_u32 {S['t2']}, {S['t2']}, 1\ns_cmp_ge_u32 {S['t2']}, {SPIN_MAX}\ns_cbranch_scc1 GA_X\ns_cmp_lg_u64 vcc, 0\ns_cbranch_scc1 GA_L\ns_branch GA_X")
            if s_ == G + OPT['gck'] + 1:
                for k in (0, 2):
                    g = [x[k] for x in gq]
                    o += [f"v_add_f32 {g[0]}, {g[0]}, {g[1]}", f"v_add_f32 {g[2]}, {g[2]}, {g[3]}", f"v_add_f32 {g[4]}, {g[4]}, {g[5]}",
                          f"v_add_f32 {g[0]}, {g[0]}, {g[2]}", f"v_add_f32 {g[4]}, {g[4]}, {g[6]}", f"v_add_f32 {g[0]}, {g[0]}, {g[4]}"]
                o += [f"v_mul_f32 {gq[0][0]}, {gsc}, {gq[0][0]}", f"v_mul_f32 {gq[0][1]}, {gsc}, {gq[0][2]}", f"ds_write_b64 {lca}, {gq[0][0:2]} offset:{RSB}"]
            if s_ == G + OPT['gck'] + 2:
                o += [f"ds_read_b32 {nm[0][i]}, {a_rs} offset:{RSB + 64*i}" for i in range(2)] + [f"ds_read_b32 {nm[1][i]}, {a_rs2} offset:{RSB + 64*i}" for i in range(2)]
                o += [f"ds_read_b128 {cs[c]}, {a_cs} offset:{CSB + c*64}" for c in range(4)] + [f"ds_read_b128 {cs[c]}, {a_cs2} offset:{CSB + (c-4)*64}" for c in range(4, 7)]
            return o
    run_loop(C, Rl.emit_item, Rl.sched, reads, mfmas, b2, OPT["fearly"], OPT["fstart"], hook=hook, nonce_at=0 if OPT["xst"] else 6, rate2=OPT["b2rate"])
    if not OPT["xst"]:
        P("s_waitcnt lgkmcnt(0)\ns_barrier"); b2.lgkm()
        P(f"ds_read_b32 {nm[1][0]}, {a_rs2} offset:{RSB}\nds_read_b32 {nm[1][1]}, {a_rs2} offset:{RSB+64}")
        for c in range(4, 7): P(f"ds_read_b128 {cs[c]}, {a_cs2} offset:{CSB + (c-4)*64}")
    if OPT["xst"] and OPT["gat"] + OPT["gck"] + 2 == 13: P("s_waitcnt lgkmcnt(0)"); b2.lgkm()
    emit(C, b2.moves(C.hist[11]))
    if not OPT["xst"]: P(f"v_mul_f32 {nm[0][0]}, {NEG}, {rs[0][0]}\nv_mul_f32 {nm[0][1]}, {NEG}, {rs[1][0]}")
    Z = [va(4, 4) for _ in range(4)]
    units = [(c, 0) for c in range(4)] + [(c, 1) for c in range(4)] + [(c, pr) for c in range(4, 7) for pr in range(2)]
    if OPT["xst"]: units = [(c, pr) for c in range(7) for pr in range(2)]
    pend = None
    old = b2.loaded
    for ui, (c, pr) in enumerate(units):
        if ui == 4:
            P("s_waitcnt lgkmcnt(0)"); b2.lgkm()
            if not OPT["xst"]: P(f"v_mul_f32 {nm[1][0]}, {NEG}, {nm[1][0]}\nv_mul_f32 {nm[1][1]}, {NEG}, {nm[1][1]}")
        z = Z[ui % 4]
        for ii in range(2):
            a = acc[c][2*pr+ii]
            sel = "op_sel_hi:[1,0,1]" if ii == 0 else "op_sel:[0,1,0] op_sel_hi:[1,1,1]"
            P(f"v_pk_fma_f32 {a[0:2]}, {cs[c][0:2]}, {nm[pr]}, {a[0:2]} {sel}")
            P(f"v_pk_fma_f32 {a[2:4]}, {cs[c][2:4]}, {nm[pr]}, {a[2:4]} {sel}")
        if pend: P(pend); vm.issue(("st", 0))
        for ii in range(2):
            a = acc[c][2*pr+ii]
            P(f"v_cvt_pk_bf16_f32 {z[2*ii]}, {a[0]}, {a[1]}\nv_cvt_pk_bf16_f32 {z[2*ii+1]}, {a[2]}, {a[3]}")
        for q in range(4): P(f"v_pk_max_i16 {z[q]}, {z[q]}, 0")
        if OPT["fepi"] and ui % OPT["fepi"] == 0: emit(C, b2.loads(1, C.lim))
        pend = (f"s_add_u32 {S['t0']}, {S['b1'] if c <= 2 else S['b2']}, {c*2048}\n"
                f"v_permlane16_swap_b32 {z[0]}, {z[2]}\nv_permlane16_swap_b32 {z[1]}, {z[3]}\n"
                f"buffer_store_dwordx4 {z}, {st[pr]}, {sWS}, {S['t0']} offen sc1")
    P(pend); vm.issue(("st", 0))
    stamp(C, "epiend")
    emit(C, b2.moves(old))
    b2.drain(OPT["post"], C.lim)
    if not OPT["xst"]: get_tag(C)
    stamp(C, "tag")
    P(vm.wait(lambda q: q[0] == "st")); stamp(C, "ack"); P("s_barrier")
    flag_store(C)
    stamp(C, "flag")
    emit(C, xtile(C))
    b2.drain(max(C.lim - b2.loaded - OPT["pr"], 0), C.lim)
    emit(C, [poll_req(C)])
    b2.drain(99, C.lim)
    stamp(C, "b2iss")
    poll_check(C, "PF_F", 3)
    stamp(C, "polled")
    for tt in range(OPT["LA"]): emit(C, aload(C, tt))
    return max(va.hi, phase2(C, b2, None))

XS = 18432
def qkv_head(C):
    P, S, lane, t = C.P, C.S, C.lane, C.t
    Rl = Role(); Rl.vm = C.vm = Cnt("vmcnt", 63); C.vm.issue(("pf", 0)); C.m0 = None
    va = Rl.va = Alloc("v", C.vbase, 256)
    NW, NX = 4, 3; XB, WB = 0, 3 * XS
    xd = C.xd; xh = va(); wd = [va() for _ in range(6)]
    w = S['w']; hp = S['cb']; mW, mH = C.mW, C.mH
    P(f"s_mul_i32 {S['t1']}, {w}, {32*1792}\ns_add_u32 {S['t1']}, {S['t1']}, {8*1792}\ns_cmp_eq_u32 {S['rbl']}, 0\ns_cselect_b32 {S['t1']}, {BIG}, {S['t1']}")
    P(f"v_subrev_u32 {xh}, {S['t1']}, {t[3]}")
    P(f"s_lshl_b32 {S['t1']}, {w}, 4\ns_mov_b64 {mH}, 0xffff\ns_lshl_b64 {mH}, {mH}, {S['t1']}")
    P(f"v_and_b32 {t[0]}, 2, {t[4]}\nv_add_u32 {t[0]}, {S['b1']}, {t[0]}\nv_sub_u32 {t[0]}, {t[5]}, {t[0]}\nv_and_b32 {t[0]}, 7, {t[0]}")
    P(f"v_cmp_ne_u32 {mW}, 7, {t[0]}\nv_mov_b32 {t[2]}, {BIG}")
    P(f"s_mul_i32 {S['t0']}, {hp}, 112\ns_mul_i32 {S['t1']}, {w}, {8*2688}\ns_add_u32 {S['t0']}, {S['t0']}, {S['t1']}")
    P(f"v_mul_u32_u24 {t[1]}, 2688, {t[4]}\nv_lshl_add_u32 {t[1]}, {t[0]}, 4, {t[1]}\nv_add_u32 {t[1]}, {S['t0']}, {t[1]}\nv_cndmask_b32 {wd[2]}, {t[2]}, {t[1]}, {mW}")
    P(f"v_add_u32 {wd[1]}, 128, {wd[2]}\nv_add_u32 {wd[0]}, 256, {wd[2]}")
    P(f"s_mul_i32 {S['kw']}, {S['kx']}, {64*2688//128}\ns_mul_i32 {S['wm0']}, {w}, 3072")
    karg(C)
    P(f"s_sub_u32 {C.sW[0]}, {C.ptr[2]}, 256\ns_subb_u32 {C.sW[1]}, {C.ptr[3]}, 0\ns_mov_b32 {C.sW[2]}, {448*2688 + 256}\ns_mov_b32 {C.sW[3]}, 0x20000")
    items = []
    for d in range(7):
        fr = (2*(d-NX)+1 if d >= NX else -1)
        for j in (0, 1, 2, 3, -1): items.append(dict(k="x", d=d, j=j, need=2*d, free=fr))
        for s in (2*d, 2*d+1):
            for p in range(3): items.append(dict(k="w", s=s, j=p, need=s, free=(s-NW if s >= NW else -1)))
    def emit_item(i):
        it = items[i]; j = it["j"]
        if it["k"] == "x":
            sb = XB + (it['d'] % NX) * XS
            if j < 0: return dma_item(C, it["need"], f"s_mov_b32 m0, {sb + 1024}", f"buffer_load_dwordx4 {xh}, {C.sX}, {C.kxs[it['d']]} offen{NTX} lds", mH)
            return dma_item(C, it["need"], f"s_add_u32 m0, {S['xm0']}, {sb + 2048}", f"buffer_load_dwordx4 {xd[j]}, {C.sX}, {C.kxs[it['d']]} offen offset:{j*1024}{NTX} lds")
        return dma_item(C, it["need"], f"s_add_u32 m0, {S['wm0']}, {WB + (it['s'] % NW)*12288}",
                        f"buffer_load_dwordx4 {wd[j + 3*(it['s']&1)]}, {C.sW}, {C.kws[it['s']>>1]} offen offset:{j*1024}{NTW} lds", mW if j == 1 else None)
    Rl.sched = schedule(items, OPT["pro"] * 11 // 12, OPT["rate"] - 1, 14); Rl.emit_item = emit_item
    for i in Rl.sched[-1][:8]: emit(C, emit_item(i))
    for j in range(3): P(f"v_add_u32 {wd[3+j]}, {32*2688}, {wd[j]}")
    for i in Rl.sched[-1][8:min(OPT["first"], 11)]: emit(C, emit_item(i))
    return Rl

def qkv_body(C, Rl):
    P, S, lane, t = C.P, C.S, C.lane, C.t
    C.role = "Q"; vm = C.vm = Rl.vm; C.lim = NB - OPT["late"]
    va = Rl.va; aa = Alloc("a", 0, C.abase)
    NW, NX = 4, 3; XB, WB = 0, 3 * XS
    sWS, mT = C.sWS, C.mT
    w = S['w']; hp = S['cb']; hh, half = S['hh'], S['half']
    stamp(C, "iss")
    tlb_touch(C)
    xr = [va() for _ in range(2)]; xr0 = [va() for _ in range(2)]
    wr_ = [va() for _ in range(2)]
    acc = [[[va(4, 4) for _ in range(5)] for _ in range(2)] for _ in range(3)]
    dg = [va(4, 4) for _ in range(5)]
    cprev, ccur, cfirst = va(4, 4), va(4, 4), va(4, 4)
    mprev, mcur = va(2), va(2)
    fb = [dict(x=[aa(4) for _ in range(5)], w=[[aa(4) for _ in range(2)] for _ in range(3)]) for _ in range(2)]
    if OPT["wsoff"]: P(f"s_add_u32 {C.wsp[0]}, {C.wsp[0]}, {OPT['wsoff'] << 20}\ns_addc_u32 {C.wsp[1]}, {C.wsp[1]}, 0")
    srd(P, sWS, C.wsp[0], C.wsp[1], WS_REC)
    n_, g_ = va(), va()
    P(f"v_and_b32 {n_}, 15, {lane}\nv_lshrrev_b32 {g_}, 4, {lane}")
    tmpcs = [va(4, 4) for _ in range(4)]
    c1, c0 = tmpcs[0], tmpcs[1]
    for i in range(4): P(f"v_mov_b32 {c1[i]}, {ONES}\nv_mov_b32 {c0[i]}, 0")
    P(f"v_and_b32 {t[0]}, 7, {lane}\nv_and_b32 {t[1]}, 2, {lane}\nv_bfe_u32 {t[2]}, {lane}, 3, 1\nv_lshl_add_u32 {t[1]}, {t[2]}, 2, {t[1]}")
    P(f"v_add_u32 {t[1]}, 7, {t[1]}\nv_and_b32 {t[1]}, 7, {t[1]}\nv_lshlrev_b32 {t[1]}, 4, {t[1]}\nv_lshl_add_u32 {t[0]}, {t[0]}, 7, {t[1]}")
    P(f"v_lshrrev_b32 {t[1]}, 3, {lane}\nv_mul_u32_u24 {t[1]}, 3072, {t[1]}\ns_mul_i32 {S['t0']}, {hh}, {2*12288}\ns_add_u32 {S['t0']}, {S['t0']}, {WB}")
    P(f"v_add3_u32 {t[0]}, {t[0]}, {t[1]}, {S['t0']}")
    P(f"ds_write_b128 {t[0]}, {c1} offset:1024")
    P(f"s_min_u32 {S['t0']}, {w}, 2\ns_mul_i32 {S['t0']}, {S['t0']}, {XS}\nv_lshlrev_b32 {t[1]}, 4, {lane}\nv_add_u32 {t[1]}, {S['t0']}, {t[1]}\nds_write_b128 {t[1]}, {c1} offset:{XB}")
    P(f"v_lshrrev_b32 {t[0]}, 1, {n_}\nv_xor_b32 {t[0]}, {g_}, {t[0]}\nv_lshlrev_b32 {t[0]}, 4, {t[0]}\nv_lshl_add_u32 {t[0]}, {n_}, 7, {t[0]}")
    P(f"s_lshl_b32 {S['t0']}, {half}, 13\nv_add_u32 {t[1]}, {S['t0']}, {t[0]}\nv_add_u32 {xr[0]}, {XB + 2048}, {t[1]}\nv_xor_b32 {xr[1]}, 64, {xr[0]}")
    P(f"v_cmp_gt_u32 vcc, 8, {n_}\nv_cndmask_b32 {xr0[0]}, {t[1]}, {t[0]}, vcc\nv_xor_b32 {xr0[1]}, 64, {xr0[0]}")
    P(f"v_bfe_u32 {t[0]}, {lane}, 2, 2\nv_mul_u32_u24 {t[1]}, 3072, {g_}\nv_lshl_add_u32 {t[0]}, {t[0]}, 7, {t[1]}\nv_add_u32 {t[0]}, {WB}, {t[0]}")
    P(f"v_bfe_u32 {t[1]}, {lane}, 3, 2\nv_lshlrev_b32 {t[1]}, 5, {t[1]}\nv_and_b32 {t[2]}, 3, {lane}")
    P(f"s_mul_i32 {S['t0']}, {hh}, 56\nv_lshl_add_u32 {t[3]}, {t[2]}, 3, {S['t0']}")
    P(f"v_add_u32 {t[4]}, {t[3]}, {t[1]}\nv_and_b32 {t[4]}, 127, {t[4]}\nv_add_u32 {wr_[0]}, {t[0]}, {t[4]}")
    P(f"s_lshl_b32 {S['t0']}, {hh}, 3\ns_sub_u32 {S['t0']}, 120, {S['t0']}\nv_mov_b32 {t[4]}, {S['t0']}\nv_add_u32 {t[3]}, 32, {t[3]}")
    P(f"v_cmp_eq_u32 vcc, 3, {t[2]}\nv_cndmask_b32 {t[3]}, {t[3]}, {t[4]}, vcc")
    P(f"v_add_u32 {t[4]}, {t[3]}, {t[1]}\nv_and_b32 {t[4]}, 127, {t[4]}\nv_add_u32 {wr_[1]}, {t[0]}, {t[4]}")
    P(f"v_lshlrev_b32 {t[0]}, 2, {g_}\nv_sub_u32 {t[0]}, {n_}, {t[0]}\nv_mov_b32 {t[1]}, {NINF}")
    P(f"s_or_b32 {S['t0']}, {S['rbl']}, {half}\ns_cmp_eq_u32 {S['t0']}, 0\ns_cselect_b32 {S['t0']}, {NINF}, 0")
    for r in range(4):
        P(f"v_subrev_u32 {t[2]}, {r}, {t[0]}")
        P(f"v_cmp_gt_i32 vcc, -8, {t[2]}\nv_cndmask_b32 {cprev[r]}, {t[1]}, {c0[0]}, vcc")
        P(f"v_cmp_gt_u32 vcc, 8, {t[2]}\nv_cndmask_b32 {ccur[r]}, {t[1]}, {c0[0]}, vcc")
        P(f"v_or_b32 {cfirst[r]}, {S['t0']}, {cprev[r]}")
    for (m, c) in ((mprev, cprev), (mcur, ccur)):
        for q in range(2):
            P(f"v_ashrrev_i32 {t[2]}, 31, {c[2*q]}\nv_ashrrev_i32 {t[3]}, 31, {c[2*q+1]}\nv_and_b32 {t[2]}, 0xffff, {t[2]}\nv_and_b32 {t[3]}, 0xffff0000, {t[3]}")
            P(f"v_or_b32 {t[2]}, {t[2]}, {t[3]}\nv_not_b32 {m[q]}, {t[2]}")
    a1, a2, av_w, av_r, sr, so = va(), va(), va(), va(), va(), va()
    VCH = [0, 1, 2, 8, 9]
    av_w2, av_r2 = va(), va()
    P(f"v_lshlrev_b32 {a1}, 2, {n_}\nv_bfe_u32 {a2}, {lane}, 2, 2\nv_lshl_add_u32 {a2}, {a2}, 6, {a1}\nv_add_u32 {a1}, 192, {a1}")
    P(f"v_and_b32 {t[2]}, 1, {lane}\nv_cmp_eq_u32 {mT}, 1, {t[2]}\nv_and_b32 {t[2]}, 2, {lane}\nv_cmp_eq_u32 {C.mU}, 2, {t[2]}")
    P(f"s_lshl_b32 {S['t1']}, {w}, 11\nv_mul_u32_u24 {av_w}, 80, {n_}\nv_lshl_add_u32 {av_w}, {g_}, 4, {av_w}\nv_add_u32 {av_w}, {S['t1']}, {av_w}")
    P(f"v_lshrrev_b32 {av_r}, 2, {lane}\nv_mul_u32_u24 {av_r}, 80, {av_r}\nv_and_b32 {t[4]}, 3, {lane}\nv_lshl_add_u32 {av_r}, {t[4]}, 4, {av_r}\nv_add_u32 {av_r}, {S['t1']}, {av_r}\nv_add_u32 {av_w2}, 65536, {av_w}\nv_add_u32 {av_r2}, 65536, {av_r}")
    P(f"v_lshlrev_b32 {so}, 4, {lane}")
    P(f"s_lshl_b32 {S['t1']}, {S['e']}, 3\ns_add_u32 {S['t1']}, {S['t1']}, {S['rbl']}\ns_lshl_b32 {S['t1']}, {S['t1']}, 1\ns_add_u32 {S['t1']}, {S['t1']}, {half}")
    P(f"s_lshl_b32 {S['t0']}, {hp}, 1\ns_add_u32 {S['t0']}, {S['t0']}, {hh}\ns_lshl_b32 {S['t0']}, {S['t0']}, 12\ns_mul_i32 {S['b1']}, {S['t1']}, {A2_KS*2048}\ns_add_u32 {S['b1']}, {S['b1']}, {S['t0']}")
    P(f"s_lshl_b32 {S['t1']}, {S['t1']}, 8\ns_lshl_b32 {S['t0']}, {hp}, 13\ns_add_u32 {S['t1']}, {S['t1']}, {S['t0']}\ns_add_u32 {S['t1']}, {S['t1']}, {RSTD_OFF}\ns_cmp_eq_u32 {hh}, 0\ns_cselect_b32 {S['t1']}, {S['t1']}, {BIG}")
    P(f"v_lshl_add_u32 {sr}, {lane}, 2, {S['t1']}")
    p2_setup(C)
    slab_tables(C, 64*2688//128); C.m0 = None
    rest = Rl.sched[-1][min(OPT["first"], 11):]
    for i in rest[:max(OPT["wpos"] - 1, 0)]: emit(C, Rl.emit_item(i))
    P("WARM_Q:")
    for i in rest[max(OPT["wpos"] - 1, 0):]: emit(C, Rl.emit_item(i))
    def reads(s):
        b = fb[s & 1]
        xs = ((s >> 1) % NX) * XS; ws = (s % NW) * 12288
        X = [f"ds_read_b128 {b['x'][0]}, {xr0[s&1]} offset:{xs}"] + [f"ds_read_b128 {b['x'][j]}, {xr[s&1]} offset:{xs + (j-1)*2048}" for j in range(1, 5)]
        W = []
        for p in (1, 2, 0):
            for tt in range(2):
                W.append(f"ds_read_b64_tr_b16 {b['w'][p][tt][0:2]}, {wr_[tt]} offset:{ws + p*1024}")
                W.append(f"ds_read_b64_tr_b16 {b['w'][p][tt][2:4]}, {wr_[tt]} offset:{ws + p*1024 + 512}")
        return X + W
    Q, K, V = acc
    ST = [va(2) for _ in range(5)]
    sq = [t[0], t[1], t[2], t[3], t[4]]
    csK = tmpcs[0:2]; csV = tmpcs[2:4]; csQ = [Q[0][0], Q[1][0]]
    def bc(d_, s_): return [f"v_mov_b32_dpp {d_[tt][r]}, {s_[tt][0][r]} row_newbcast:0 row_mask:0xf bank_mask:0xf" for tt in (1, 0) for r in range(4)]
    def mfmas(s):
        b = fb[s & 1]; o = []
        def mm(d, a, bb): o.append(f"v_mfma_f32_16x16x32_bf16 {d}, {a}, {bb}, {d if s else 0}")
        for j in range(5): mm(dg[j], b['x'][j], b['x'][j])
        for p in (1, 2, 0):
            for tt in (1, 0):
                for j in range(5): mm(acc[p][tt][j], b['w'][p][tt], b['x'][j])
        if s == 13:
            ex = []
            for j in range(5):
                ex += [f"v_cndmask_b32 {dg[j][0]}, {dg[j][0]}, {dg[j][1]}, {mT}", f"v_cndmask_b32 {dg[j][2]}, {dg[j][2]}, {dg[j][3]}, {mT}",
                       f"v_cndmask_b32 {dg[j][0]}, {dg[j][0]}, {dg[j][2]}, {C.mU}\nds_bpermute_b32 {sq[j]}, {a2}, {dg[j][0]}\nds_bpermute_b32 {ST[j][0]}, {a1}, {K[1][j][0]}"]
            ex += bc(csK, K)
            for k_, x in enumerate(ex): o[12 + k_] += "\n" + x
        return o
    b2 = B2(C)
    run_loop(C, Rl.emit_item, Rl.sched, reads, mfmas, b2, OPT["qearly"], OPT["qstart"], rate2=OPT["qrate"])
    P.ext(bc(csV, V))
    emit(C, b2.moves(C.hist[11]))
    P("s_waitcnt lgkmcnt(0)"); b2.lgkm()
    P(f"s_mov_b32 {S['t0']}, {f2h(1.0/448)}")
    for j in range(5): P(f"v_mul_f32 {ST[j][0]}, {f2h(-1.0/448)}, {ST[j][0]}")
    for j in range(5): P(f"v_mul_f32 {ST[j][1]}, {ST[j][0]}, {ST[j][0]}")
    for j in range(5): P(f"v_fma_f32 {ST[j][1]}, {sq[j]}, {S['t0']}, -{ST[j][1]}")
    for j in range(5): P(f"v_max_f32 {ST[j][1]}, 0, {ST[j][1]}")
    for j in range(5): P(f"v_add_f32 {ST[j][1]}, {f2h(1e-5)}, {ST[j][1]}")
    for j in range(5): P(f"v_rsq_f32 {ST[j][1]}, {ST[j][1]}")
    P.ext(bc(csQ, Q))
    LO = "op_sel_hi:[1,0,1]"; HI = "op_sel:[0,1] op_sel_hi:[1,1]"
    def correct(A_, cs_, j, scale, dst):
        o = []
        for tt in range(2):
            a = A_[tt][j]
            o.append(f"v_pk_fma_f32 {a[0:2]}, {cs_[tt][0:2]}, {ST[j]}, {a[0:2]} {LO}")
            o.append(f"v_pk_fma_f32 {a[2:4]}, {cs_[tt][2:4]}, {ST[j]}, {a[2:4]} {LO}")
        if scale:
            for tt in range(2):
                a = A_[tt][j]
                o.append(f"v_pk_mul_f32 {a[0:2]}, {a[0:2]}, {ST[j]} {HI}")
                o.append(f"v_pk_mul_f32 {a[2:4]}, {a[2:4]}, {ST[j]} {HI}")
        for tt in range(2):
            a = A_[tt][j]
            o.append(f"v_cvt_pk_bf16_f32 {dst[2*tt]}, {a[0]}, {a[1]}")
            o.append(f"v_cvt_pk_bf16_f32 {dst[2*tt+1]}, {a[2]}, {a[3]}")
        return o
    def more(n): return b2.loads(n, C.lim)
    seq = []
    for j in range(5): seq.extend(correct(V, csV, j, True, V[0][j]))
    emit(C, merge(seq, (more(OPT["qe"]), 0, len(seq))))
    for j in range(5): P(f"ds_write_b128 {av_w2 if VCH[j] >= 8 else av_w}, {V[0][j]} offset:{(VCH[j]*8192) & 0xffff}")
    seq = []
    l0 = b2.loaded
    for j in range(5): seq.extend(correct(K, csK, j, True, K[0][j]))
    emit(C, merge(seq, (more(OPT["qe"]), 0, len(seq))))
    emit(C, b2.moves(l0))
    Vt = [R("a", C.abase - 20, 10), R("a", C.abase - 10, 10)]
    P("s_waitcnt lgkmcnt(0)"); b2.lgkm()
    for tt in range(2):
        for j in range(5): P(f"ds_read_b64_tr_b16 {Vt[tt][2*j:2*j+2]}, {av_r2 if VCH[j] >= 8 else av_r} offset:{((VCH[j]*8192) & 0xffff) + 8*tt}")
    seq = []
    for j in range(1, 5): seq.extend(correct(Q, csQ, j, False, Q[0][j]))
    emit(C, merge(seq, (more(OPT["qe"] - 1), 0, len(seq))))
    S0 = {j: K[1][j] for j in range(1, 5)}; S1 = {j: V[1][j] for j in range(1, 5)}
    rg = [f"v_cmp_eq_u32 vcc, 1, {g_}", f"v_cndmask_b32 {t[5]}, {ST[1][1]}, {ST[2][1]}, vcc", f"v_cmp_eq_u32 vcc, 2, {g_}", f"v_cndmask_b32 {t[5]}, {t[5]}, {ST[3][1]}, vcc",
          f"v_cmp_eq_u32 vcc, 3, {g_}", f"v_cndmask_b32 {t[5]}, {t[5]}, {ST[4][1]}, vcc", f"v_cmp_lt_u32 vcc, 31, {lane}"]
    seq = []
    for j in range(1, 5):
        seq.append(f"v_mfma_f32_16x16x32_bf16 {S0[j]}, {K[0][j-1]}, {Q[0][j]}, {cfirst if j == 1 else cprev}")
        seq.append(f"v_mfma_f32_16x16x32_bf16 {S1[j]}, {K[0][j]}, {Q[0][j]}, {ccur}")
    P.ext(merge(seq, (rg, 0, 8)))
    get_tag(C)
    P("s_waitcnt lgkmcnt(0)"); b2.release(20)
    emit(C, xtile(C))
    cq = f2h(28 ** -0.5 * math.log2(math.e))
    def softmax(a, b, tm):
        o = []
        X, Y = S0[a], S0[b]
        c, m1, m2 = tm[0], tm[1], tm[2]
        o.append(f"v_cndmask_b32 {c}, {ST[a][1]}, {ST[b][1]}, vcc")
        for r in range(4): o.append(f"v_max_f32 {X[r]}, {X[r]}, {S1[a][r]}")
        for r in range(4): o.append(f"v_max_f32 {Y[r]}, {Y[r]}, {S1[b][r]}")
        o.append(f"v_mul_f32 {c}, {cq}, {c}")
        for r in range(4): o.append(f"v_permlane32_swap_b32 {X[r]}, {Y[r]}")
        for r in range(4): o.append(f"v_max_f32 {X[r]}, {X[r]}, {Y[r]}")
        o.append(f"v_max3_f32 {m1}, {X[0]}, {X[1]}, {X[2]}")
        o.append(f"v_max_f32 {m1}, {m1}, {X[3]}")
        o.append(f"v_mov_b32 {m2}, {m1}")
        o.append(f"v_permlane16_swap_b32 {m1}, {m2}")
        o.append(f"v_max_f32 {m1}, {m1}, {m2}")
        o.append(f"v_mul_f32 {m1}, {m1}, {c}")
        for r in range(4): o.append(f"v_fma_f32 {X[r]}, {X[r]}, {c}, -{m1}")
        for r in range(4): o.append(f"v_exp_f32 {X[r]}, {X[r]}")
        o.append(f"v_add_f32 {m1}, {X[0]}, {X[1]}")
        o.append(f"v_add_f32 {m2}, {X[2]}, {X[3]}")
        o.append(f"v_add_f32 {m1}, {m1}, {m2}")
        o.append(f"v_mov_b32 {m2}, {m1}")
        o.append(f"v_permlane16_swap_b32 {m1}, {m2}")
        o.append(f"v_add_f32 {m1}, {m1}, {m2}")
        o.append(f"v_rcp_f32 {m1}, {m1}")
        for r in range(4): o.append(f"v_mul_f32 {X[r]}, {X[r]}, {m1}")
        o.append(f"v_cvt_pk_bf16_f32 {X[0]}, {X[0]}, {X[1]}")
        o.append(f"v_cvt_pk_bf16_f32 {X[1]}, {X[2]}, {X[3]}")
        o.append(f"v_mov_b32 {Y[0]}, {X[0]}")
        o.append(f"v_mov_b32 {Y[1]}, {X[1]}")
        o.append(f"v_permlane32_swap_b32 {X[0]}, {Y[0]}")
        o.append(f"v_permlane32_swap_b32 {X[1]}, {Y[1]}")
        for Zr in (X, Y):
            o.append(f"v_and_b32 {Zr[2]}, {Zr[0]}, {mcur[0]}")
            o.append(f"v_and_b32 {Zr[3]}, {Zr[1]}, {mcur[1]}")
            o.append(f"v_and_b32 {Zr[0]}, {Zr[0]}, {mprev[0]}")
            o.append(f"v_and_b32 {Zr[1]}, {Zr[1]}, {mprev[1]}")
        return o
    seq = []
    for x_, y_ in zip(softmax(1, 2, dg[1]), softmax(3, 4, dg[2])): seq += [x_, y_]
    l0 = b2.loaded
    emit(C, merge(seq, (more(OPT["qsm"]) + [poll_req(C)], 0, len(seq) * 2 // 3)))
    emit(C, b2.moves(l0))
    P("s_waitcnt lgkmcnt(0)"); b2.lgkm()
    O = [{j: Q[1][j] for j in range(1, 5)}, {j: V[1][j] for j in range(1, 5)}]
    for j in range(1, 5):
        for tt in range(2):
            P(f"v_mfma_f32_16x16x32_bf16 {O[tt][j]}, {Vt[tt][2*(j-1):2*(j-1)+4]}, {S0[j]}, 0")
    Z = {(tt, pr): K[0][2*tt+pr] for tt in range(2) for pr in range(2)}
    for pr in range(2):
        for tt in range(2):
            z = Z[tt, pr]
            for ii in range(2):
                o_ = O[tt][1 + 2*pr + ii]
                P(f"v_cvt_pk_bf16_f32 {z[2*ii]}, {o_[0]}, {o_[1]}\nv_cvt_pk_bf16_f32 {z[2*ii+1]}, {o_[2]}, {o_[3]}")
    for pr in range(2):
        for tt in range(2):
            z = Z[tt, pr]
            P(f"v_permlane16_swap_b32 {z[0]}, {z[2]}\nv_permlane16_swap_b32 {z[1]}, {z[3]}")
    def stores():
        for pr in range(2):
            for tt in range(2):
                P(f"buffer_store_dwordx4 {Z[tt, pr]}, {so}, {sWS}, {S['b1']} offen offset:{tt*2048 + pr*1024} sc1"); vm.issue(("st", 0))
        P(f"buffer_store_dword {t[5]}, {sr}, {sWS}, 0 offen sc1"); vm.issue(("st", 0))
    stamp(C, "epiend")
    stores()
    P("s_cmp_ge_u32 s2, 224\ns_cbranch_scc1 Q_FIN")
    q0 = list(vm.q); l0_ = len(P.l)
    P("Q_FIN:\ns_waitcnt vmcnt(0)\ns_barrier"); flag_store(C)
    if OPT["stamps"] == 1:
        nm0 = list(C.names); stamp(C, "xflag"); C.role = "E"; stamp_flush(C); C.role = "Q"; C.names = nm0
    P("s_endpgm")
    C.slow.append("\n".join(P.l[l0_:])); del P.l[l0_:]
    vm.q = q0
    b2.drain(99, C.lim)
    poll_check(C, "PF_Q", 3)
    stamp(C, "polled")
    for tt in range(OPT["LA"]): emit(C, aload(C, tt))
    return max(va.hi, phase2(C, b2, 0))

def page_pads(l, w):
    import subprocess, re, os
    def sizes(lines):
        src = '.amdgcn_target "amdgcn-amd-amdhsa--gfx950"\n.text\n' + "\n".join(f"LN{i}:\n{x}" for i, x in enumerate(lines)) + f"\nLN{len(lines)}:\n"
        open("_pp.s", "w").write(src)
        subprocess.run(["clang", "-x", "assembler", "-target", "amdgcn-amd-amdhsa", "-mcpu=gfx950", "-c", "_pp.s", "-o", "_pp.o"], check=True)
        out = subprocess.run(["llvm-objdump", "-t", "_pp.o"], capture_output=True, text=True).stdout
        ad = {}
        for x in out.split("\n"):
            m = re.match(r"([0-9a-f]+) .* LN(\d+)$", x)
            if m: ad[int(m.group(2))] = int(m.group(1), 16)
        return ad
    for role, start in (("F", "R_FFN:"), ("Q", "R_QKV:")):
        i = l.index(f"WARM_{role}:")
        l[i+1:i+1] = ["s_mov_b64 exec, 0", f"s_cmp_eq_u32 {w}, 0", f"s_cbranch_scc1 PAD{role}1", f"s_cmp_eq_u32 {w}, 1", f"s_cbranch_scc1 PAD{role}2",
                      f"s_cmp_eq_u32 {w}, 2", f"s_cbranch_scc1 PAD{role}3", f"s_branch PAD{role}4", f"BACK_{role}:", "s_mov_b64 exec, -1"]
    tmp = l + [f"PAD{r}{k}:" for r in "FQ" for k in range(1, 5)]
    ad = sizes(tmp)
    ins = []
    for role, start in (("F", "R_FFN:"), ("Q", "R_QKV:")):
        a = l.index(start); b = l.index(f"END_{role}:")
        base = ad[a + 1]; k = 1; masked = False; pos = []
        for i in range(a + 1, b):
            if not masked and ad[i] - base + 4 * len(pos) >= 4096 * k: pos.append(i); k += 1
            if l[i].startswith("s_mov_b64 exec,"): masked = not l[i].endswith("-1")
        n = len(pos)
        for k, i in enumerate(pos, 1): ins.append((i, [f"PAD{role}{k}:", f"s_cbranch_execz {f'PAD{role}{k+4}' if k + 4 <= n else f'BACK_{role}'}"]))
        for k in range(n + 1, 5): ins.append((l.index(f"BACK_{role}:"), [f"PAD{role}{k}:"]))
    for i, x in sorted(ins, key=lambda z: -z[0]): l[i:i] = x
    return l

def main():
    C = Ctx(); P = C.P = Prog()
    sa = Alloc("s", 3, 98); S = C.S = {}
    S['w'] = sa()
    C.ptr = sa(16, 4); C.wsp = sa(2); pc = sa(2)
    C.sX, C.sW, C.sWS, C.sB2, C.sBo, C.sD, C.sP = [sa(4) for _ in range(7)]
    C.mW, C.mH, C.mT, C.mU = sa(2), sa(2), sa(2), sa(2)
    C.tm = pc
    for n in "e rbl cb t0 t1 t2 kx kw wm0 xm0 b1 b2 hh half T cb2 bo bo_s bbeg bend sbeg send ri rr tb bm0 tag".split(): S[n] = sa()
    ns = 102
    assert sa.hi <= 90, sa.hi
    C.names = []; C.allnames = {}; C.slow = []
    dead = [C.ptr[i] for i in (2, 3, 4, 5, 6, 7, 8, 9, 10, 11, 14, 15)]
    C.kxs = [S['kx']] + dead[:6]; C.kws = [S['kw']] + dead[6:]
    C.lane = lane = R("v", 0)
    va = Alloc("v", 3, 256)
    t = C.t = [va() for _ in range(7)]
    C.vA = [va(), va()]; C.vB = [va(), va()]; C.rB = [[va(), va()] for _ in range(3)]; C.rP = [[va(), va()] for _ in range(3)]; C.vXd = va()
    C.vF, C.vZ, C.vN, C.vPF, C.vST, C.vFL = [va() for _ in range(6)]
    C.xd = xd = [va() for _ in range(4)]
    C.vbase = va.p
    C.abase = 96
    C.NA = OPT["LA"] + 1
    C.vring = 256 - 8 * C.NA
    C.aring = [[R("v", C.vring + 8*i + 4*j, 4) for j in range(2)] for i in range(C.NA)]
    na = 256
    pre = list(range(NPRE)) + list(range(14, 14 + NPRE))
    order = [i for i in range(28) if i not in pre] + pre
    C.breg = [[R("a", 8*order.index(i), 4), R("a", 8*order.index(i) + 4, 4)] for i in range(28)]
    w = S['w']
    P(f"{NAME}_kernel:")
    stamp(C, "start")
    if OPT["spin"]: P("s_memrealtime s[98:99]")
    P("s_cmp_ge_u32 s2, 256\ns_cbranch_scc1 K_END")
    P(f"s_load_dwordx16 {C.ptr}, s[0:1], 0\ns_load_dwordx2 {C.wsp}, s[0:1], 64")
    P(f"s_getpc_b64 {pc}\ns_lshr_b32 {S['t0']}, s2, 3\ns_lshl_b32 {S['t0']}, {S['t0']}, 11\nv_lshl_add_u32 v1, v0, 3, {S['t0']}\nglobal_load_dword v2, v1, {pc}")
    P(f"v_lshrrev_b32 v1, 6, v0\nv_and_b32 v0, 63, v0\nv_readfirstlane_b32 {w}, v1")
    P(f"s_bfe_u32 {S['e']}, s2, 0x10002\ns_bfe_u32 {S['rbl']}, s2, 0x30003")
    P(f"s_and_b32 {S['t0']}, s2, 3\ns_lshl_b32 {S['t0']}, {S['t0']}, 1\ns_bfe_u32 {S['t1']}, s2, 0x10006\ns_add_u32 {S['cb']}, {S['t0']}, {S['t1']}")
    if OPT["rot"] and not OPT["com"]:
        P(f"s_lshr_b32 {S['t0']}, s2, 7\ns_lshl_b32 {S['t0']}, {S['t0']}, 1\ns_add_u32 {S['t0']}, {S['t0']}, {S['rbl']}\ns_add_u32 {S['t0']}, {S['t0']}, {S['cb']}")
        P(f"s_mul_i32 {S['t1']}, {S['t0']}, 37\ns_lshr_b32 {S['t1']}, {S['t1']}, 8\ns_mul_i32 {S['t1']}, {S['t1']}, 7\ns_sub_u32 {S['t0']}, {S['t0']}, {S['t1']}")
    else:
        P(f"s_mov_b32 {S['t0']}, 0")
    P(f"s_lshl_b32 {S['kx']}, {S['t0']}, 7\ns_mul_i32 {S['t2']}, {S['e']}, 896")
    P(f"s_lshl_b32 {S['t0']}, {S['rbl']}, 7\ns_lshl_b32 {S['t1']}, {w}, 5\ns_add_u32 {S['t0']}, {S['t0']}, {S['t1']}")
    P(f"v_lshrrev_b32 {t[4]}, 3, {lane}\nv_add_u32 {t[0]}, {S['t0']}, {t[4]}\nv_mul_u32_u24 {t[0]}, 1792, {t[0]}")
    P(f"v_lshrrev_b32 {t[1]}, 4, {lane}\nv_and_b32 {t[5]}, 7, {lane}\nv_xor_b32 {t[2]}, {t[1]}, {t[5]}")
    P(f"v_lshl_add_u32 {xd[0]}, {t[2]}, 4, {t[0]}")
    P(f"v_xor_b32 {t[3]}, 64, {xd[0]}\nv_add_u32 {xd[1]}, {8*1792 - 1024}, {t[3]}\nv_add_u32 {xd[2]}, {16*1792 - 2048}, {xd[0]}\nv_add_u32 {xd[3]}, {24*1792 - 3072}, {t[3]}")
    P(f"s_and_b32 {S['hh']}, {w}, 1\ns_lshr_b32 {S['half']}, {w}, 1\ns_lshl_b32 {S['b1']}, {S['hh']}, 2\ns_lshl_b32 {S['xm0']}, {w}, 12")
    P("s_cmp_lt_u32 s2, 128\ns_cbranch_scc1 H_FFN")
    rq = qkv_head(C)
    P("s_branch R_QKV\nH_FFN:")
    rf = ffn_head(C)
    if OPT["pads"]: P("s_branch R_FFN\n.p2align 12")
    P("R_FFN:")
    nv1 = ffn_body(C, rf)
    P("END_F:")
    if OPT["pads"]: P(".p2align 12")
    P("R_QKV:"); C.names = C.names[:1]
    nv2 = qkv_body(C, rq)
    P("END_Q:")
    for x in C.slow: P(x)
    P("K_END:\ns_endpgm")
    l, npad = pad_hazards(P.l)
    if OPT["pads"] == 1: l = page_pads(l, w)
    out = [f"; generated by gen10.py {OPT} (hazard pads {npad})",
           f"; stamps {C.allnames}",
           "; @launch grid=(256,1,1) block=(256,1,1) lds=163840",
           '.amdgcn_target "amdgcn-amd-amdhsa--gfx950"\n.text',
           f".globl {NAME}_kernel\n.p2align 8\n.type {NAME}_kernel,@function"]
    out.extend(l)
    out.append(".fill 8192, 4, 0xbf800000")
    out.append(kernel_desc(f"{NAME}_kernel", max(nv1, nv2), na, ns))
    print("\n".join(out))
main()
```

```python
import sys, math, struct
from asmlib import *

NAME = "recurrent_scan__sliding_local_dilated__dense_activation_relu__prompt"
OPT = dict(rot=1, pro=20, rate=8, LA=5, RX=27, CK=32, gsn=2, TB2=30, R1=16, stamps=0, b2start=9, b2rate=6, qrate=6, mlag=3, TB=30, fe_per=22, pfm=2, rot2=2, post=4, spin=0, gentle=1, rdf=80, epf=0, rots2=0, otouch=0, fpost=1, wsoff=0, tlb=0, qe=3, pr=5, gsp=3, xst=1, gat=9, npl=2, fine=0, enc='', encwg=0,
           fearly=1, fstart=10, qearly=1, qstart=9, nreg=17, late=0, npre=4, pmv=12, pads=1, wpos=4, gck=2, fepi=0, qsm=5, ntx=0, ntw=0, first=8, com=0, pfs=0, pfd=0, slp=0, rots=1, ahead=2, slack=3, sp2=1, stfirst=1, rotm=7, rotk=1)
for a in sys.argv[1:]:
    k, v = a.split("="); assert k in OPT, k; OPT[k] = int(v) if k != "enc" else v

f2h = lambda x: hex(struct.unpack("<I", struct.pack("<f", x))[0])
NT2 = 36
A2_KS = 144
RSTD_OFF = 2048 * A2_KS * 32
FLAG_OFF = RSTD_OFF + 8 * 8192
SCOL_OFF = FLAG_OFF + 256 * 128
SROW_OFF = SCOL_OFF + 16 * 16384
XF_OFF = SROW_OFF + 16 * 16384
WS_USED = XF_OFF + 224 * 4 * 3072
STAMP_OFF = 16 << 20
WS_REC = (STAMP_OFF + (1 << 20)) if OPT["stamps"] else WS_USED
assert (OPT["wsoff"] << 20) + WS_REC <= 256 << 20
XBYTES = 2048 * 896
NTX = " nt" if OPT["ntx"] else ""; NTW = " nt" if OPT["ntw"] else ""
ONES = "0x3f803f80"; NINF = "0xff800000"; BIG = "0x80000000"
NB = 22
NPRE = OPT["npre"]
assert OPT["late"] + NPRE >= 3 and NPRE % 2 == 0
REL = {"F": [12, 12, 13, 13, 10, 10, 11, 11, 13, 13, 9, 9, 11, 11] + [-1] * 6,
       "Q": [20, 20, 20, 9, 11, 11, 12, 12, 20, 20, 10, 11, 11, -1] + [-1] * 6}
XCH = 19
SPIN_MAX = 1 << 16

def srd(P, d, lo, hi, n):
    P(f"s_mov_b32 {d[0]}, {lo}\ns_mov_b32 {d[1]}, {hi}\ns_mov_b32 {d[2]}, {n}\ns_mov_b32 {d[3]}, 0x20000")

class Cnt:
    def __init__(self, name, mx): self.q = []; self.name = name; self.mx = mx
    def issue(self, tag): self.q.append(tag)
    def cnt(self, pred):
        last = -1
        for i, t in enumerate(self.q):
            if pred(t): last = i
        return min(len(self.q) - 1 - last, self.mx)
    def wait(self, pred): return f"s_waitcnt {self.name}({self.cnt(pred)})"

class Ctx: pass
class Lazy:
    def __init__(self, fn, ty="s"): self.fn = fn; self.ty = ty
def emit(C, seq):
    for x in seq: C.P(x.fn() if isinstance(x, Lazy) else x)
def vop(C, tag, text):
    def f():
        C.vm.issue(tag); return text
    return Lazy(f, types_of(text))
def lop(C, tag, text):
    def f():
        C.lg.issue(tag); return text
    return Lazy(f, types_of(text))

def stamp(C, name):
    if OPT["enc"] == name: C.P("s_memrealtime s[100:101]")
    if not OPT["stamps"] or (OPT["stamps"] == 3 and name not in ("start", "end")): return
    i = len(C.names); C.names.append(name)
    if i and OPT["fine"] == 1 and name in ("tb",): C.P("s_nop 15\ns_nop 15")
    if i: C.P(f"v_writelane_b32 {C.vST}, s{90 + 2*((i-1)&1)}, {i-1}")
    C.P(f"{'s_memrealtime' if OPT['stamps'] != 2 else 's_memtime'} s[{90 + 2*(i&1)}:{91 + 2*(i&1)}]")

def stamp_flush(C):
    if not OPT["stamps"]: return
    P, S = C.P, C.S
    i = len(C.names)
    P(f"s_waitcnt lgkmcnt(0)\nv_writelane_b32 {C.vST}, s{90 + 2*((i-1)&1)}, {i-1}")
    P(f"s_lshl_b32 {S['t0']}, s2, 2\ns_add_u32 {S['t0']}, {S['t0']}, {S['w']}\ns_lshl_b32 {S['t0']}, {S['t0']}, 8\ns_add_u32 {S['t0']}, {S['t0']}, {STAMP_OFF}")
    P(f"v_lshl_add_u32 v1, v0, 2, {S['t0']}\nbuffer_store_dword {C.vST}, v1, {C.sWS}, 0 offen")
    C.allnames[C.role] = list(C.names)

def itype(line):
    op = line.split()[0]
    if op.endswith(":"): return ""
    if op.startswith("ds_write"): return "W"
    if op.startswith("ds_"): return "t"
    if op.startswith(("buffer_", "global_")): return "m"
    if op.startswith(("v_exp", "v_rcp", "v_rsq", "v_permlane")): return "T"
    if op.startswith("v_"): return "v"
    return "s"
def types_of(it):
    if isinstance(it, Lazy): return it.ty
    return "".join(itype(x) for x in it.split("\n"))
def gap_end(ty):
    t = 4; prev = ""; pstart = 0
    for c in ty:
        if c == "s": t += 4
        elif c in "vT": t = max(t, 8) + (4 if c == "v" else 8)
        else:
            st = t
            if prev in ("v", "T"): st = t + 4
            elif prev in ("t", "m", "W") and (prev == "m") != (c == "m"): st = pstart + 4
            pstart = st; t = st + (8 if c != "W" else 28)
        prev = c
    return t
def spread(main, *streams, clk=16):
    n = len(main)
    qs = []
    for items, a, b in streams:
        k = len(items)
        qs.append([(a * n + (i + 0.5) * (b - a) * n / max(k, 1), it, types_of(it)) for i, it in enumerate(items)])
    out = []
    for g, m in enumerate(main):
        out.append(m)
        prevW = g > 0 and "W" in ty
        ty = "".join(itype(x) for x in m.split("\n")[1:])
        while True:
            cand = [q for q in qs if q and (q[0][0] <= g + OPT["ahead"] or g == n - 1)]
            last_m0 = isinstance(out[-1], str) and " m0," in out[-1].split("\n")[-1]
            fit = [q for q in cand if gap_end(ty + ("s" if last_m0 and q[0][2][:1] == "m" else "") + q[0][2]) <= clk]
            if prevW: fit = [q for q in fit if "W" not in q[0][2]]
            if not fit:
                fit = [q for q in cand if g == n - 1 or (ty == "" and q[0][0] <= g + 1 and not (prevW and "W" in q[0][2])) or q[0][0] <= g - OPT["slack"]]
                if not fit: break
            pr = lambda q: ({"t": 0, "m": 0, "W": 0, "s": 1}.get(q[0][2][:1], 2) if q[0][0] <= g + 1 else 3, q[0][0])
            q = min(fit, key=pr)
            out.append(q[0][1]); ty += q[0][2]; q.pop(0)
    return out

def adv(reg, step, wrap, start=0):
    return f"s_add_u32 {reg}, {reg}, {step}\ns_cmp_eq_u32 {reg}, {wrap}\ns_cselect_b32 {reg}, {start}, {reg}"

def schedule(items, pro, rate, nsteps):
    sched = {s: [] for s in range(-1, nsteps)}
    i = 0
    for s in range(-1, nsteps):
        cap = pro if s == -1 else rate
        n = 0
        while i < len(items) and items[i]["free"] <= s and (n < cap or items[i]["need"] - 2 <= s):
            sched[s].append(i); i += 1; n += 1
    assert i == len(items)
    return sched

class B2:
    def __init__(self, C):
        self.C = C; self.loaded = 0
        rel = REL[C.role]
        self.pend = sorted((rel[i], i) for i in range(20) if i != XCH)
        self.free = []; self.ch = {}
        self.xchunk = XCH
    def release(self, step):
        while self.pend and self.pend[0][0] <= step: self.free.append(self.pend.pop(0)[1])
    def lgkm(self): pass
    def moves(self, *a): return []
    def win(self, t):
        b = self.ch[t] * 8192
        return (b >> 16, b & 0xffff)
    def dma(self, t):
        C = self.C; S = C.S
        if t < 14: sB = C.sB2; so = S['bo']; post = f"s_add_u32 {so}, {so}, 14336" if (t & 1) == 0 else adv(so, 14336, S['bend'], S['bbeg'])
        else: sB = C.sBo; so = S['bo_s']; post = f"s_add_u32 {so}, {so}, {16 * 896}" if (t & 1) == 0 else adv(so, 12 * 896, S['send'], S['sbeg'])
        out = [f"s_add_u32 m0, {S['bm0']}, {self.ch[t] * 8192}"]
        for j in range(2):
            out.append(vop(C, ("b2", t), f"buffer_load_dwordx4 {C.vB[j]}, {sB}, {so} offen offset:{j*1024} lds"))
        pl = post.split("\n")
        out.append(pl[0])
        if len(pl) > 1: out.append("\n".join(pl[1:]))
        return out
    def tr(self, t, dst, regs):
        win, off = self.win(t); rb = regs[win]
        o = []
        for f in range(2):
            o.append(f"ds_read_b64_tr_b16 {dst[f][0:2]}, {rb[f]} offset:{off}")
            o.append(f"ds_read_b64_tr_b16 {dst[f][2:4]}, {rb[f]} offset:{off + 512}")
        return o
    def next_load(self, lim=NB):
        if self.loaded < lim and self.free:
            self.ch[self.loaded] = self.free.pop(0); self.loaded += 1
            return self.dma(self.loaded - 1)
        return None
    def loads(self, n, lim=NB):
        o = []
        for _ in range(n):
            x = self.next_load(lim)
            if x is None: break
            o.extend(x)
        return o
    def drain(self, n, lim):
        emit(self.C, self.loads(n, lim))

def p2_setup(C):
    P, S, t, lane, w = C.P, C.S, C.t, C.lane, C.S['w']
    P(f"s_bfe_u32 {S['t0']}, s2, 0x20001\ns_lshl_b32 {S['t0']}, {S['t0']}, 2\ns_bfe_u32 {S['ri']}, s2, 0x20003\ns_add_u32 {S['t0']}, {S['t0']}, {S['ri']}\ns_lshl_b32 {S['t0']}, {S['t0']}, 1")
    P(f"s_and_b32 {S['t2']}, s2, 1\ns_add_u32 {S['T']}, {S['t0']}, {S['t2']}\ns_lshr_b32 {S['cb2']}, s2, 5")
    G = max(OPT["rot2"], 1)
    tab = sum(((c % G) * 7 // G) << (4 * c) for c in range(8))
    P(f"s_lshl_b32 {S['t0']}, {S['cb2']}, 2\ns_lshr_b32 {S['t0']}, {tab}, {S['t0']}\ns_and_b32 {S['t0']}, {S['t0']}, 15\ns_lshl_b32 {S['t1']}, {S['ri']}, 1\ns_add_u32 {S['t0']}, {S['t0']}, {S['t1']}")
    P(f"s_sub_u32 {S['t1']}, {S['t0']}, 7\ns_cmp_ge_u32 {S['t0']}, 7\ns_cselect_b32 {S['rr']}, {S['t1']}, {S['t0']}")
    if OPT["rots2"]: P(f"s_lshl_b32 {S['t0']}, {S['cb2']}, 1\ns_add_u32 {S['ri']}, {S['ri']}, {S['t0']}\ns_and_b32 {S['ri']}, {S['ri']}, 3")
    P(f"s_lshl_b32 {S['t2']}, {S['t2']}, 2\ns_add_u32 {S['t2']}, {S['t2']}, {w}")
    P(f"s_mul_i32 {S['bbeg']}, {S['t2']}, {14*14336}\ns_add_u32 {S['bend']}, {S['bbeg']}, {14*14336}\ns_mul_i32 {S['t1']}, {S['rr']}, {2*14336}\ns_add_u32 {S['bo']}, {S['bbeg']}, {S['t1']}")
    P(f"s_mul_i32 {S['sbeg']}, {w}, {112*896}\ns_add_u32 {S['send']}, {S['sbeg']}, {112*896}\ns_mul_i32 {S['t1']}, {S['ri']}, {28*896}\ns_add_u32 {S['bo_s']}, {S['sbeg']}, {S['t1']}")
    P(f"s_xor_b32 {S['t0']}, {S['T']}, 1\ns_mul_i32 {S['t0']}, {S['t0']}, {A2_KS}\ns_add_u32 {S['t0']}, {S['t0']}, 32\ns_lshl_b32 {S['t0']}, {S['t0']}, 1\ns_add_u32 {S['t0']}, {S['t0']}, {S['hh']}\ns_lshl_b32 {S['t0']}, {S['t0']}, 10")
    P(f"v_lshl_add_u32 {t[0]}, {lane}, 4, {S['t0']}\ns_mul_i32 {S['t1']}, {S['t2']}, {14*2048}\nv_add_u32 {C.vA[0]}, {S['t1']}, {t[0]}\ns_xor_b32 {S['t1']}, {S['t2']}, 1\ns_mul_i32 {S['t1']}, {S['t1']}, {14*2048}\nv_add_u32 {C.vA[1]}, {S['t1']}, {t[0]}")
    P(f"v_lshrrev_b32 {t[0]}, 3, {lane}\nv_mul_u32_u24 {t[0]}, 896, {t[0]}\nv_bfe_u32 {t[1]}, {lane}, 4, 1\nv_lshlrev_b32 {t[1]}, 2, {t[1]}\nv_and_b32 {t[2]}, 7, {lane}\nv_xor_b32 {t[1]}, {t[1]}, {t[2]}")
    P(f"s_lshl_b32 {S['t1']}, {S['cb2']}, 7\nv_lshl_add_u32 {t[0]}, {t[1]}, 4, {t[0]}\nv_add_u32 {C.vB[0]}, {S['t1']}, {t[0]}\nv_add_u32 {C.vB[1]}, {7168 - 1024}, {C.vB[0]}")
    P(f"s_lshl_b32 {S['bm0']}, {w}, 11")
    P(f"s_cmp_lt_u32 s2, 224\ns_cselect_b32 {S['t0']}, {1792*896}, 0\ns_cselect_b32 {S['t1']}, {448*896}, 0")
    srd(P, C.sB2, C.ptr[10], C.ptr[11], S['t0'])
    srd(P, C.sBo, C.ptr[4], C.ptr[5], S['t1'])
    P(f"s_lshl_b32 {S['t1']}, {S['half']}, 6")
    P(f"v_bfe_u32 {t[0]}, {lane}, 2, 2\nv_lshrrev_b32 {t[1]}, 5, {lane}\nv_lshl_add_u32 {t[0]}, {t[1]}, 3, {t[0]}\nv_lshlrev_b32 {t[0]}, 7, {t[0]}")
    P(f"v_bfe_u32 {t[1]}, {lane}, 3, 1\nv_lshl_add_u32 {t[0]}, {t[1]}, 6, {t[0]}\nv_bfe_u32 {t[1]}, {lane}, 4, 1\nv_lshl_add_u32 {t[0]}, {t[1]}, 5, {t[0]}")
    P(f"v_and_b32 {t[1]}, 3, {lane}\nv_lshl_add_u32 {t[0]}, {t[1]}, 3, {t[0]}\nv_xor_b32 {t[0]}, {S['t1']}, {t[0]}")
    P(f"v_add_u32 {C.rB[0][0]}, {S['bm0']}, {t[0]}\nv_xor_b32 {C.rB[0][1]}, 64, {C.rB[0][0]}")
    for i in (1, 2): P(f"v_add_u32 {C.rB[i][0]}, {65536*i}, {C.rB[0][0]}\nv_add_u32 {C.rB[i][1]}, {65536*i}, {C.rB[0][1]}")
    for i in range(3):
        for j in range(2): P(f"v_xor_b32 {C.rP[i][j]}, 2048, {C.rB[i][j]}")
    P(f"s_and_b32 {S['t0']}, {S['T']}, 15\ns_mul_i32 {S['t0']}, {S['t0']}, {64*1792}\ns_lshr_b32 {S['t1']}, {S['T']}, 4\ns_mul_i32 {S['t1']}, {S['t1']}, 896\ns_add_u32 {S['t0']}, {S['t0']}, {S['t1']}")
    P(f"s_lshl_b32 {S['t1']}, {S['cb2']}, 7\ns_add_u32 {S['tb']}, {S['t0']}, {S['t1']}\ns_mul_i32 {S['t0']}, {w}, {16*1792}\ns_add_u32 {S['t0']}, {S['t0']}, {S['tb']}")
    P(f"v_lshrrev_b32 {t[0]}, 3, {lane}\nv_and_b32 {t[1]}, 7, {lane}\nv_xor_b32 {t[1]}, {t[0]}, {t[1]}\nv_mul_u32_u24 {t[0]}, 1792, {t[0]}\nv_lshl_add_u32 {t[0]}, {t[1]}, 4, {t[0]}\nv_add_u32 {C.vXd}, {S['t0']}, {t[0]}")
    P(f"s_lshr_b32 {S['t0']}, {S['T']}, 4\ns_lshl_b32 {S['t0']}, {S['t0']}, 2\ns_bfe_u32 {S['t1']}, {S['T']}, 0x30001\ns_lshl_b32 {S['t1']}, {S['t1']}, 3\ns_add_u32 {S['t0']}, {S['t0']}, {S['t1']}")
    P(f"s_lshl_b32 {S['t0']}, {S['t0']}, 7\ns_add_u32 {S['t0']}, {S['t0']}, {FLAG_OFF}\nv_and_b32 {t[0]}, 1, {lane}\nv_lshl_add_u32 {C.vF}, {t[0]}, 13, {S['t0']}")
    P(f"s_lshr_b32 {S['t2']}, {S['t2']}, 1\ns_lshl_b32 {S['t2']}, {S['t2']}, 7\ns_lshl_b32 {S['t1']}, {w}, 7\ns_add_u32 {S['t1']}, {S['t1']}, 16384")
    P(f"v_mov_b32 {t[0]}, {S['t2']}\nv_mov_b32 {t[1]}, {S['t1']}\nv_cmp_lt_u32 vcc, 1, {lane}\nv_cndmask_b32 {t[0]}, {t[0]}, {t[1]}, vcc")
    P(f"v_xor_b32 {t[1]}, 128, {t[1]}\nv_cmp_lt_u32 vcc, 3, {lane}\nv_cndmask_b32 {t[0]}, {t[0]}, {t[1]}, vcc\nv_add_u32 {C.vF}, {C.vF}, {t[0]}")
    P(f"v_mov_b32 {t[0]}, {BIG}\nv_cmp_lt_u32 vcc, 5, {lane}\nv_cndmask_b32 {C.vF}, {C.vF}, {t[0]}, vcc")
    srd(P, C.sD, C.ptr[14], C.ptr[15], 256)
    P(f"v_mov_b32 {C.vZ}, 0")
    if OPT["pfm"] and C.role == "Q":
        if OPT["pfm"] == 2: base, lpw = 224, 128
        else: base, lpw = 128, 32
        nw2 = 12544 // lpw
        P(f"s_sub_u32 {S['t0']}, s2, {base}\ns_lshl_b32 {S['t0']}, {S['t0']}, 2\ns_add_u32 {S['t0']}, {S['t0']}, {w}\ns_sub_u32 {S['t1']}, {S['t0']}, {nw2}\ns_cmp_lt_u32 {S['t0']}, {nw2}\ns_cselect_b32 {S['t0']}, {S['t0']}, {S['t1']}")
        P(f"s_cselect_b32 {C.sP[0]}, {C.ptr[10]}, {C.ptr[4]}\ns_cselect_b32 {C.sP[1]}, {C.ptr[11]}, {C.ptr[5]}\ns_mov_b32 {C.sP[2]}, {448*896}\ns_cselect_b32 {C.sP[2]}, {1792*896}, {C.sP[2]}\ns_mov_b32 {C.sP[3]}, 0x20000")
        P(f"s_cmp_lt_u32 s2, {base}\ns_cselect_b32 {C.sP[2]}, 0, {C.sP[2]}\ns_cselect_b32 {S['t0']}, 0, {S['t0']}")
        P(f"s_mul_i32 {S['t0']}, {S['t0']}, {lpw*128}\nv_lshl_add_u32 {C.vPF}, {lane}, {8 if lpw == 128 else 6}, {S['t0']}")

def a_tables(C):
    S = C.S; o = [f"s_lshl_b32 {C.kxs[0]}, {S['rr']}, 12"]
    for d in range(1, 7): o += [f"s_add_u32 {C.kxs[d]}, {C.kxs[d-1]}, 4096", f"s_cmp_eq_u32 {C.kxs[d]}, {7*4096}\ns_cselect_b32 {C.kxs[d]}, 0, {C.kxs[d]}"]
    o.append(f"s_lshl_b32 {C.kws[1]}, {S['ri']}, 12")
    for d in range(1, 4): o += [f"s_add_u32 {C.kws[1+d]}, {C.kws[d]}, 4096", f"s_and_b32 {C.kws[1+d]}, {C.kws[1+d]}, 0x3fff"]
    return o

def run_loop(C, emit_item, sched, reads, mfmas, b2, early, estart, nsteps=14, hook=None, nonce_at=6, rate2=8):
    P, S, vm = C.P, C.S, C.vm
    if OPT["pfm"] == 2 and C.role == "Q" and OPT["pfs"] < 0:
        for j in range(2): vm.issue(("pf", 0)); P(f"buffer_load_dword v2, {C.vPF}, {C.sP}, 0 offen offset:{128*j}")
    P(vm.wait(lambda q: q[0] == "d" and q[1] <= 0) + " lgkmcnt(0)")
    P("s_barrier")
    stamp(C, "d0")
    P.ext(reads(0))
    hist = {}
    for s in range(nsteps):
        post = C.role == "F" and OPT["fpost"]
        pmv = 13 if post else OPT["pmv"]
        pm = NPRE and s == pmv
        if pm: assert b2.loaded >= NPRE
        if s + 1 < nsteps or pm: P(vm.wait(lambda q: (q[0] == "d" and q[1] <= s + 1) or (pm and q[0] == "b2" and q[1] < NPRE)) + " lgkmcnt(0)")
        else: P("s_waitcnt lgkmcnt(0)")
        P("s_barrier")
        if s in (1, 2, 4, 7, 10, 13) or (OPT["fine"] == 2 and s >= 1): stamp(C, f"s{s}")
        m = mfmas(s)
        rd = reads(s + 1) if s + 1 < nsteps else []
        dm = []; C.m0 = None
        for i in sched[s]: dm.extend(emit_item(i))
        if OPT["pfm"] == 2 and C.role == "Q":
            for j in range(2):
                if s == OPT["pfs"] + j * OPT["pfd"]: dm = [vop(C, ("pf", 0), f"buffer_load_dword v2, {C.vPF}, {C.sP}, 0 offen offset:{128*j}")] + dm
        if OPT["pfm"] == 4 and C.role == "Q" and s == OPT["pfs"]:
            dm = dm + [vop(C, ("pf", 0), f"buffer_load_dword v2, {C.vPF}, {C.sP}, 0 offen")]
        if s == nonce_at: dm.insert(0, vop(C, ("nonce", 0), f"buffer_load_dword {C.vN}, {C.vZ}, {C.sD}, 0 offen sc1"))
        mv = []
        b2.release(s)
        if NPRE and s == pmv + 1: b2.free += [b2.ch[t_] for t_ in range(NPRE)]
        if NPRE and s == pmv - 1 and not post:
            assert b2.loaded >= NPRE
            mv = [Lazy(lambda: vm.wait(lambda q: q[0] == "b2" and q[1] < NPRE))] + [x for t_ in range(NPRE) for x in b2.tr(t_, C.breg[t_], C.rB)]
        if pm and not post: mv = [x for t_ in range(NPRE) for x in b2.tr(t_, C.breg[14 + t_], C.rP)]
        if s >= estart:
            n = sum(1 for x in dm if isinstance(x, Lazy))
            k = max((rate2 + 1 - n) // 2, early) if s >= OPT["b2start"] else early
            dm.extend(b2.loads(k, C.lim))
        hist[s] = b2.loaded
        ex = hook(s) if hook else []
        if s == nsteps - 1: ex = ex + a_tables(C)
        emit(C, spread(m, (rd, 0, OPT["rdf"] / 100), (dm, 0, 0.95), (mv, 0.3, 0.9), (ex, 0.05, 0.95)))
    C.hist = hist
    stamp(C, "loopend")

def get_tag(C):
    P, S, role = C.P, C.S, C.role
    P(C.vm.wait(lambda q: q[0] == "nonce"))
    P(f"v_readfirstlane_b32 {S['tag']}, {C.vN}\ns_cmp_eq_u32 {S['tag']}, 0\ns_cbranch_scc1 TAGSL_{role}\nTAGOK_{role}:")
    C.slow.append(f"TAGSL_{role}:\ns_mov_b32 {S['t2']}, 0\nTAGLP_{role}:\nbuffer_load_dword {C.vN}, {C.vZ}, {C.sD}, 0 offen sc1\ns_waitcnt vmcnt(0)\nv_readfirstlane_b32 {S['tag']}, {C.vN}\ns_add_u32 {S['t2']}, {S['t2']}, 1\n"
                  f"s_cmp_ge_u32 {S['t2']}, {SPIN_MAX}\ns_cbranch_scc1 TAGOK_{role}\ns_cmp_eq_u32 {S['tag']}, 0\ns_cbranch_scc1 TAGLP_{role}\ns_branch TAGOK_{role}")

def flag_store(C):
    P, S, t = C.P, C.S, C.t
    P(f"s_lshl_b32 {S['t0']}, s2, 7\ns_add_u32 {S['t0']}, {S['t0']}, {FLAG_OFF}\ns_cmp_eq_u32 {S['w']}, 0\ns_cselect_b32 {S['t0']}, {S['t0']}, {BIG}")
    P(f"v_mov_b32 {t[5]}, {S['t0']}\nv_mov_b32 {t[6]}, {S['tag']}\ns_mov_b64 exec, 1\nbuffer_store_dword {t[6]}, {t[5]}, {C.sWS}, 0 offen sc1\ns_mov_b64 exec, -1")
    C.vm.issue(("flag", 0))

def poll_req(C): return vop(C, ("pl", 0), f"buffer_load_dword {C.vFL}, {C.vF}, {C.sWS}, 0 offen sc1")
def poll_check(C, label, mask, first=True):
    P, S = C.P, C.S
    loop = (f"s_mov_b32 {S['t2']}, 0\n{label}:\nbuffer_load_dword {C.vFL}, {C.vF}, {C.sWS}, 0 offen sc1\ns_waitcnt vmcnt(0)\nv_cmp_eq_u32 vcc, {S['tag']}, {C.vFL}\ns_add_u32 {S['t2']}, {S['t2']}, 1\n"
            f"s_cmp_ge_u32 {S['t2']}, {SPIN_MAX}\ns_cbranch_scc1 {label}_X\ns_and_b32 {S['t0']}, vcc_lo, {mask}\ns_cmp_lg_u32 {S['t0']}, {mask}\ns_cbranch_scc1 {label}")
    if OPT["slp"]: loop = loop.replace(f"{label}:\nbuffer_load", f"s_branch {label}_F\n{label}:\ns_sleep {OPT['slp']}\n{label}_F:\nbuffer_load") if not first else loop.replace(f"{label}:\nbuffer_load", f"{label}:\ns_sleep {OPT['slp']}\nbuffer_load")
    if first:
        P(C.vm.wait(lambda q: q[0] == "pl"))
        P(f"v_cmp_eq_u32 vcc, {S['tag']}, {C.vFL}\ns_and_b32 {S['t0']}, vcc_lo, {mask}\ns_cmp_lg_u32 {S['t0']}, {mask}\ns_cbranch_scc1 {label}_S\n{label}_X:")
        C.slow.append(f"{label}_S:\n{loop}\ns_branch {label}_X")
    else:
        P(loop + f"\n{label}_X:")

def xtile(C):
    S = C.S
    o = [f"s_mov_b32 {C.sX[0]}, {C.ptr[0]}\ns_mov_b32 {C.sX[1]}, {C.ptr[1]}\ns_mov_b32 {C.sX[2]}, {XBYTES}\ns_mov_b32 {S['t1']}, {8*1792 - 1024}\ns_add_u32 m0, {S['bm0']}, {XCH*8192}"]
    return o + [vop(C, ("e", 0), f"buffer_load_dwordx4 {C.vXd}, {C.sX}, {S['t1'] if j else 0} offen offset:{1024*j} lds") for j in range(2)] + \
        ([vop(C, ("pf", 0), f"global_load_dword v2, {C.vZ}, {C.ptr[12:14]}")] if OPT["otouch"] else [])

def aload(C, tt):
    if tt < 28: seg = tt // 7; so = C.kxs[tt % 7]
    else: seg = 4 + (tt - 28) // 4; so = C.kws[1 + (tt - 28) % 4]
    return [vop(C, ("a", tt), f"buffer_load_dwordx4 {C.aring[tt % C.NA][j]}, {C.vA[seg]}, {C.sWS}, {so} offen offset:{2048*j} sc1") for j in range(2)]

def phase2(C, b2, flag_at):
    P, S, vm, t, lane, w = C.P, C.S, C.vm, C.t, C.lane, C.S['w']
    role = C.role; LA = OPT["LA"]; NA = C.NA; aring = C.aring
    lg = C.lg = Cnt("lgkmcnt", 15)
    va = Alloc("v", C.vbase, C.vring)
    acc = [[va(16, 4) for _ in range(2)] for _ in range(3)]
    G = va(12, 4)
    xv = [va(2) for _ in range(4)]; kk = va(2); vO = va(); vL = va(); Rr = va(8, 4)
    rstd, k1 = kk[0], kk[1]
    vXr = va(); vR = va(); vGs = va(); vGr = va(); wad = va(); rad = va()
    rP = C.rP
    C.vA = C.vA[:2] + [va() for _ in range(4)]
    breg = C.breg
    sb = [[[R("a", 224 + 16*p + 8*j + 4*f, 4) for f in range(2)] for j in range(2)] for p in range(2)]
    sO = C.sW
    n_, hf = t[3], t[4]
    su = []
    def U(s): su.extend(s.split("\n"))
    U(f"v_and_b32 {n_}, 31, {lane}\nv_lshrrev_b32 {hf}, 5, {lane}\nv_lshlrev_b32 {vL}, 4, {lane}")
    U(f"s_and_b32 {S['b1']}, {S['T']}, 1\ns_mul_i32 {S['b1']}, {S['b1']}, {2*A2_KS*2048}\ns_sub_u32 {S['b1']}, {S['b1']}, {A2_KS*2048}\nv_add_u32 {C.vA[2]}, {S['b1']}, {C.vA[0]}\nv_add_u32 {C.vA[3]}, {S['b1']}, {C.vA[1]}")
    U(f"s_mul_i32 {S['b1']}, {S['T']}, {2*A2_KS}\ns_add_u32 {S['b1']}, {S['b1']}, {S['hh']}\ns_lshl_b32 {S['b1']}, {S['b1']}, 10\nv_add_u32 {t[0]}, {S['b1']}, {vL}")
    U(f"s_lshl_b32 {S['b1']}, {w}, 14\nv_add_u32 {C.vA[4]}, {S['b1']}, {t[0]}\ns_xor_b32 {S['b1']}, {S['b1']}, 16384\nv_add_u32 {C.vA[5]}, {S['b1']}, {t[0]}")
    U(f"s_lshl_b32 {S['b1']}, s2, 2\ns_add_u32 {S['b1']}, {S['b1']}, {w}\ns_mul_i32 {S['b2']}, {S['b1']}, 3072\ns_add_u32 {S['b2']}, {S['b2']}, {XF_OFF}\nv_add_u32 {vGr}, {S['b2']}, {vL}")
    U(f"s_xor_b32 {S['b2']}, {S['b1']}, 4\ns_mul_i32 {S['b2']}, {S['b2']}, 3072\ns_add_u32 {S['b2']}, {S['b2']}, {XF_OFF}\nv_add_u32 {vGs}, {S['b2']}, {vL}")
    for g in range(3): U(f"v_mov_b32 {G[4*g+3]}, {S['tag']}")
    U(f"s_mov_b32 {sO[0]}, {C.ptr[12]}\ns_mov_b32 {sO[1]}, {C.ptr[13]}\ns_mov_b32 {sO[2]}, {XBYTES}")
    U(f"s_lshl_b32 {S['b2']}, {S['hh']}, 12\ns_add_u32 {S['b2']}, {S['b2']}, {XCH*8192}")
    U(f"v_lshlrev_b32 {t[0]}, 7, {n_}\nv_lshl_add_u32 {t[0]}, {hf}, 3, {t[0]}")
    U(f"s_lshl_b32 {S['wm0']}, {S['half']}, 2\nv_and_b32 {t[1]}, 7, {lane}\nv_xor_b32 {t[1]}, {S['wm0']}, {t[1]}\nv_lshl_add_u32 {t[0]}, {t[1]}, 4, {t[0]}\nv_add_u32 {vXr}, {S['b2']}, {t[0]}")
    U(f"s_mul_i32 {S['b2']}, {S['hh']}, {32*1792}\ns_add_u32 {S['b2']}, {S['b2']}, {S['tb']}\ns_lshl_b32 {S['wm0']}, {S['half']}, 6\ns_add_u32 {S['b2']}, {S['b2']}, {S['wm0']}")
    U(f"v_mul_u32_u24 {t[0]}, 1792, {n_}\nv_add_u32 {t[0]}, {S['b2']}, {t[0]}\nv_lshl_add_u32 {vO}, {hf}, 4, {t[0]}")
    U(f"s_lshl_b32 {S['b2']}, {S['T']}, 1\ns_add_u32 {S['b2']}, {S['b2']}, {S['hh']}\ns_lshl_b32 {S['b2']}, {S['b2']}, 7\ns_lshl_b32 {S['wm0']}, {w}, 14\ns_add_u32 {S['b2']}, {S['b2']}, {S['wm0']}\ns_add_u32 {S['b2']}, {S['b2']}, {RSTD_OFF}")
    U(f"v_lshl_add_u32 {vR}, {n_}, 2, {S['b2']}")
    assert b2.loaded >= 14
    w2ch = [b2.ch[t_] for t_ in range(NPRE, 14)]
    wn = max(range(3), key=lambda k: sum(1 for c in w2ch if c >> 3 == k))
    pch = [c for c in w2ch if c >> 3 == wn][:4]; assert len(pch) == 4
    U(f"s_add_u32 {S['b2']}, {S['bm0']}, {65536*wn}\nv_add_u32 {wad}, {S['b2']}, {vL}\nv_xor_b32 {rad}, 4096, {wad}")
    slot = lambda i, a: ((pch[2*i + (a >> 1)] * 8192) & 0xffff) + (a & 1) * 1024
    NSU = 13
    F, Fp = acc[1]; Sv, Sp = acc[2]; E, X = acc[0]
    gd = lambda k: G[4*(k // 3) + k % 3]
    gw = [lop(C, ("gw", 0), f"ds_write_b128 {wad}, {X[4*a:4*a+4]} offset:{slot(1, a)}") for a in range(4)]
    gr = [lop(C, ("gr", 0), f"ds_read_b128 {X[4*a:4*a+4]}, {rad} offset:{slot(1, a)}") for a in range(4)]
    gs = [Lazy(lambda: lg.wait(lambda q: q[0] == "gr"))]
    for k in range(8):
        gs += [f"v_add_f32 {E[r]}, {E[r]}, {X[r]}" for r in (2*k, 2*k+1)] + [f"v_cvt_pk_bf16_f32 {gd(k)}, {E[2*k]}, {E[2*k+1]}"]
        if k in (2, 5, 7): gs.append(vop(C, ("xs", 0), f"buffer_store_dwordx4 {G[4*(k//3):4*(k//3) + 4]}, {vGs}, {C.sWS}, 0 offen offset:{1024*(k//3)} sc1"))
    gl = [f"buffer_load_dwordx4 {G[4*g:4*g+4]}, {vGr}, {C.sWS}, 0 offen offset:{1024*g} sc1" for g in range(3)]
    U(f"s_mov_b32 {S['b1']}, 0x3f80\ns_mov_b32 {S['b2']}, 0x3f800000")
    ck = [f"v_xor_b32 {G[4*g+3]}, {S['tag']}, {G[4*g+3]}" for g in range(3)] + [f"v_or3_b32 {G[3]}, {G[3]}, {G[7]}, {G[11]}", f"v_cmp_ne_u32 vcc, 0, {G[3]}"]
    one = (f"s_mov_b64 exec, 1\nXG_P{role}:\nbuffer_load_dword {G[11]}, {vGr}, {C.sWS}, 0 offen offset:{2048 + 1008 + 12} sc1\ns_waitcnt vmcnt(0)\nv_readfirstlane_b32 {S['t0']}, {G[11]}\n"
           f"s_add_u32 {S['t2']}, {S['t2']}, 1\ns_cmp_ge_u32 {S['t2']}, {4*SPIN_MAX}\ns_cbranch_scc1 XG_Q{role}\ns_cmp_lg_u32 {S['t0']}, {S['tag']}\ns_cbranch_scc1 XG_P{role}\nXG_Q{role}:\ns_mov_b64 exec, -1\ns_mov_b32 {S['t2']}, 0\n") if OPT["gentle"] else ""
    C.slow.append(f"XG_S{role}:\ns_mov_b32 {S['t2']}, 0\n{one}XG_L{role}:\n" + "\n".join(gl) + "\ns_waitcnt vmcnt(0)\n" + "\n".join(ck) +
                  f"\ns_add_u32 {S['t2']}, {S['t2']}, 1\ns_cmp_ge_u32 {S['t2']}, {SPIN_MAX}\ns_cbranch_scc1 XG_X{role}\ns_cmp_lg_u64 vcc, 0\ns_cbranch_scc1 XG_L{role}\ns_branch XG_X{role}")
    ck = [Lazy(lambda: vm.wait(lambda q: q[0] == "xl"))] + ck + [f"s_cmp_lg_u64 vcc, 0\ns_cbranch_scc1 XG_S{role}\nXG_X{role}:"]
    def fe_plain(a):
        o = [Lazy(lambda a=a: lg.wait(lambda q: q == ("fr", a)))]
        R_ = range(4*a, 4*a+4)
        o += [f"v_add_f32 {F[r]}, {F[r]}, {Fp[r]}" for r in R_]
        o += [(f"v_lshlrev_b32 {E[r]}, 16, {gd(r//2)}" if r % 2 == 0 else f"v_and_b32 {E[r]}, 0xffff0000, {gd(r//2)}") for r in R_]
        o += [f"v_add_f32 {F[r]}, {F[r]}, {E[r]}" for r in R_]
        o += [f"v_mul_f32 {E[r]}, {F[r]}, {k1}" for r in R_] + [f"v_exp_f32 {E[r]}, {E[r]}" for r in R_] + [f"v_mul_f32 {F[r]}, {F[r]}, {rstd}" for r in R_]
        o += [f"v_add_f32 {E[r]}, 1.0, {E[r]}" for r in R_] + [f"v_rcp_f32 {E[r]}, {E[r]}" for r in R_]
        o += [f"v_mul_f32 {F[r]}, {F[r]}, {E[r]}" for r in R_]
        return o
    def fe_pk(a):
        o = [Lazy(lambda a=a: lg.wait(lambda q: q == ("fr", a)))]
        R_ = range(4*a, 4*a+4); H = [slice(4*a, 4*a+2), slice(4*a+2, 4*a+4)]
        o += [f"v_pk_add_f32 {F[h]}, {F[h]}, {Fp[h]}" for h in H]
        o += [f"v_pk_mul_f32 {E[h]}, {F[h]}, {kk} op_sel:[0,1] op_sel_hi:[1,1]" for h in H]
        o += [f"v_exp_f32 {E[r]}, {E[r]}" for r in R_] + [f"v_pk_mul_f32 {F[h]}, {F[h]}, {kk} op_sel_hi:[1,0]" for h in H]
        o += [f"v_pk_add_f32 {E[h]}, {E[h]}, 1.0 op_sel_hi:[1,0]" for h in H] + [f"v_rcp_f32 {E[r]}, {E[r]}" for r in R_]
        o += [f"v_pk_mul_f32 {F[h]}, {F[h]}, {E[h]}" for h in H]
        return o
    NPL = OPT["npl"]
    fe1 = [x for a in range(NPL) for x in fe_plain(a)]
    fe2 = [f"v_dot2c_f32_bf16 {F[r]}, {S['b1'] if r % 2 == 0 else S['b2']}, {gd(r//2)}" for r in range(4*NPL, 16)] + [x for a in range(NPL, 4) for x in fe_pk(a)]
    fw = [lop(C, ("fw", 0), f"ds_write_b128 {wad}, {Fp[4*a:4*a+4]} offset:{slot(0, a)}") for a in range(4)]
    fr = [lop(C, ("fr", a), f"ds_read_b128 {Fp[4*a:4*a+4]}, {rad} offset:{slot(0, a)}") for a in range(4)]
    sw = [lop(C, ("sw", 0), f"ds_write_b128 {wad}, {Sp[4*a:4*a+4]} offset:{slot(1, a)}") for a in range(4)]
    sr = [lop(C, ("sr", a), f"ds_read_b128 {Sp[4*a:4*a+4]}, {rad} offset:{slot(1, a)}") for a in range(4)]
    xr = []
    for a in range(4): xr += [f"v_xor_b32 {t[0]}, {16*a}, {vXr}", lop(C, ("xr", 0), f"ds_read_b64 {xv[a]}, {t[0]}")]
    xu = [Lazy(lambda: lg.wait(lambda q: q[0] == "xr"))]
    for a in range(4):
        for h in range(2): xu += [f"v_lshlrev_b32 {X[4*a+2*h]}, 16, {xv[a][h]}", f"v_and_b32 {X[4*a+2*h+1]}, 0xffff0000, {xv[a][h]}"]
    TPOLL = 28 - LA - 4
    BV, BF, TB = 5 + NPRE // 2, 14, OPT['TB2']
    assert OPT['late'] == 0
    R1 = OPT['R1']
    RX, CK = OPT["RX"], OPT["CK"]
    def trs_for(tt):
        o = []
        for j in range(2):
            if tt < 14 and 2 * (tt % 7) < NPRE: continue
            if tt < 14: o += b2.tr(2 * (tt % 7) + j, breg[2*tt + j], C.rB if tt < 7 else rP)
            else: o += b2.tr(14 + 2 * ((tt - 28) & 3) + j, breg[2 * (tt - 28) + j], C.rB if tt < 32 else rP)
        return [lop(C, ("tr", tt), y) for y in o]
    P(vm.wait(lambda q: q[0] == "b2" and q[1] <= 3) + " lgkmcnt(0)")
    emit(C, trs_for(0) + trs_for(1))
    for tt in range(NT2):
        nb = min(2 * tt + 5, 13) if tt < 14 else NB - 1
        assert nb < b2.loaded
        P(vm.wait(lambda q: q == ("a", tt) or (q[0] == "b2" and q[1] <= nb) or (tt == flag_at and q[0] == "st") or (tt == 14 and q[0] == "e") or (tt == TB and q[0] == "rs")))
        if tt in ((0, 7, 14, 21, 28) if OPT["fine"] != 1 else range(36)): stamp(C, f"a{tt}")
        if tt == flag_at:
            P("s_barrier"); flag_store(C); stamp(C, "flag")
        if tt < 14 and any(q == ("tr", tt) for q in lg.q): P(lg.wait(lambda q: q == ("tr", tt)))
        if tt == 28: P(lg.wait(lambda q: q[0] == "tr"))
        if tt == TB: P(lg.wait(lambda q: q[0] == "fw"))
        if tt == R1: P(lg.wait(lambda q: q[0] == "gw"))
        if tt in (BV, BF, R1, TB): P("s_barrier")
        if tt == BF: b2.free += [c for c in w2ch if c not in pch]
        trs = trs_for(tt + 2) if tt + 2 < 14 else (trs_for(tt + 9) if 19 <= tt < 27 else [])
        ld = []; va_ = []
        if tt < NSU:
            k = len(su); va_ = su[tt * k // NSU:(tt + 1) * k // NSU]
        if tt == TPOLL: ld.append(poll_req(C))
        if tt + LA == 28:
            def chk():
                l0 = len(P.l); poll_check(C, f"PS_{role}", 60); x = "\n".join(P.l[l0:]); del P.l[l0:]; return x
            ld.append(Lazy(chk, "svsss"))
            ld.append(vop(C, ("rs", 0), f"buffer_load_dword {rstd}, {vR}, {C.sWS}, 0 offen sc1"))
        if tt + LA < NT2: ld.extend(aload(C, tt + LA))
        if tt >= 17 or (tt < 14 and tt % 2 == 1): ld.extend(b2.loads(1))
        if 14 <= tt < R1: va_ = gw[(tt - 14) * 4 // (R1 - 14):(tt - 13) * 4 // (R1 - 14)]
        if tt == R1: va_ = gr
        gn = OPT["gsn"]
        if R1 < tt <= R1 + gn: va_ = gs[(tt - R1 - 1) * len(gs) // gn:(tt - R1) * len(gs) // gn]
        if tt == 20: va_ = xr
        if tt in (21, 22): va_ = xu[(tt - 21) * 9:(tt - 20) * 9]
        if tt == RX: ld += [vop(C, ("xl", 0), x) for x in gl]
        if 28 <= tt < TB: va_ = fw[(tt - 28) * 4 // (TB - 28):(tt - 27) * 4 // (TB - 28)]
        if tt == TB: va_ = fr + [f"v_mul_f32 {k1}, {f2h(-math.log2(math.e))}, {rstd}"]
        if tt == CK: va_ = va_ + ck
        if tt > CK:
            k = len(fe1); i = tt - CK - 1; nn = NT2 - 1 - CK; va_ = va_ + fe1[i * k // nn:(i + 1) * k // nn]
        ps = 0 if tt < 14 else (1 if tt < 28 else 2)
        last = tt in (13, 27, 35)
        order = ((1, 0), (0, 0), (1, 1), (0, 1)) if not last else ((1, 0), (1, 1), (0, 0), (0, 1))
        Bf = lambda j, f: breg[2*(tt % 14) + j][f]
        m = [f"v_mfma_f32_32x32x16_bf16 {acc[ps][f]}, {Bf(j, f)}, {aring[tt % NA][j]}, {0 if (tt in (0, 14, 28) and j == 0) else acc[ps][f]}" for f, j in order]
        if OPT['sp2']: emit(C, spread(m, (trs, 0, 0.9), (ld, 0, 0.9), (va_, 0.3 if tt in (14, 28) else 0, 0.95), clk=32))
        else: emit(C, merge(m, (trs, 0, 3), (ld, 0, 4), (va_, 1 if tt in (14, 28) else 0, 4)))
    assert b2.loaded == NB and CK >= TB and (CK < NT2 - 1 or NPL == 0)
    stamp(C, "p2end")
    h = min(len(fe2), 14)
    emit(C, merge(fe2[:h], (sw, 0, h)) if h else sw)
    P(lg.wait(lambda q: q[0] == "sw")); P("s_barrier")
    if OPT["fine"] == 1: stamp(C, "sb")
    emit(C, sr)
    emit(C, fe2[h:])
    if OPT["fine"] == 1: stamp(C, "fedone")
    for a in range(4):
        P(lg.wait(lambda q: q == ("sr", a)))
        H = [slice(4*a, 4*a+2), slice(4*a+2, 4*a+4)]
        for h_ in H: P(f"v_pk_add_f32 {Sv[h_]}, {Sv[h_]}, {Sp[h_]}")
        for h_ in H: P(f"v_pk_fma_f32 {Sv[h_]}, {Sv[h_]}, {F[h_]}, {X[h_]}")
        P(f"v_cvt_pk_bf16_f32 {Rr[2*a]}, {Sv[4*a]}, {Sv[4*a+1]}\nv_cvt_pk_bf16_f32 {Rr[2*a+1]}, {Sv[4*a+2]}, {Sv[4*a+3]}")
        if a & 1:
            p = a >> 1
            P(f"v_permlane32_swap_b32 {Rr[4*p]}, {Rr[4*p+2]}\nv_permlane32_swap_b32 {Rr[4*p+1]}, {Rr[4*p+3]}")
            P(f"buffer_store_dwordx4 {Rr[4*p:4*p+4]}, {vO}, {sO}, 0 offen offset:{32*p}")
    if OPT["stamps"]:
        stamp(C, "stored"); P("s_waitcnt vmcnt(0)"); stamp(C, "end")
    if OPT["enc"] == "end": P("s_waitcnt vmcnt(0)\ns_memrealtime s[100:101]")
    if OPT["spin"] and (OPT["encwg"] == -1 or (OPT["encwg"] == -2 and role == "F") or (OPT["encwg"] == -3 and role == "Q") or (OPT["encwg"] >= 0 and role == ("F" if OPT["encwg"] < 128 else "Q"))):
        if OPT["encwg"] >= 0: P(f"s_cmp_lg_u32 s2, {OPT['encwg']}\ns_cbranch_scc1 SPN2{role}")
        P(f"s_waitcnt lgkmcnt(0)\ns_mov_b32 {S['t1']}, {OPT['spin']}")
        if OPT["enc"]: P(f"s_sub_u32 {S['t0']}, s100, s98\ns_lshl_b32 {S['t0']}, {S['t0']}, 2\ns_add_u32 {S['t1']}, {S['t1']}, {S['t0']}\ns_min_u32 {S['t1']}, {S['t1']}, 20000")
        P(f"SPN1{role}:\ns_sleep 2\ns_memrealtime {C.tm}\ns_waitcnt lgkmcnt(0)\ns_sub_u32 {S['t0']}, {C.tm[0]}, s98\ns_cmp_lt_u32 {S['t0']}, {S['t1']}\ns_cbranch_scc1 SPN1{role}\nSPN2{role}:")
    stamp_flush(C)
    P("s_endpgm")
    del C.lg
    C.vA = C.vA[:2]
    return 256

def dma_item(C, need, m0expr, load, execmask=None):
    s = load
    if execmask: s = f"s_mov_b64 exec, {execmask}\n{s}\ns_mov_b64 exec, -1"
    o = []
    if C.m0 != m0expr: o.append(m0expr)
    C.m0 = m0expr
    return o + [vop(C, ("d", need), s)]

def slab_tables(C, wmul):
    P, S = C.P, C.S
    if OPT["com"]:
        P(f"s_bfe_u32 {S['t0']}, s2, 0x20006\ns_mul_i32 {S['t0']}, {S['t0']}, 3\ns_lshr_b32 {S['t0']}, {S['t0']}, 1\ns_add_u32 {S['t0']}, {S['t0']}, {S['rbl']}")
        P(f"s_sub_u32 {S['t1']}, {S['t0']}, 6\ns_cmp_ge_u32 {S['t0']}, 6\ns_cselect_b32 {S['t0']}, {S['t1']}, {S['t0']}\ns_lshl_b32 {S['t0']}, {S['t0']}, 7")
        for d in range(1, 7):
            P(f"s_add_u32 {C.kxs[d]}, {C.kxs[d-1] if d > 1 else S['t0']}, 128\ns_cmp_eq_u32 {C.kxs[d]}, 896\ns_cselect_b32 {C.kxs[d]}, 128, {C.kxs[d]}\ns_mul_i32 {C.kws[d]}, {C.kxs[d]}, {wmul}")
        return
    for d in range(1, 7):
        P(f"s_add_u32 {C.kxs[d]}, {C.kxs[d-1]}, 128\ns_cmp_eq_u32 {C.kxs[d]}, 896\ns_cselect_b32 {C.kxs[d]}, 0, {C.kxs[d]}\ns_mul_i32 {C.kws[d]}, {C.kxs[d]}, {wmul}")

class Role: pass

def ffn_head(C):
    P, S, lane, t = C.P, C.S, C.lane, C.t
    Rl = Role(); Rl.vm = C.vm = Cnt("vmcnt", 63); C.vm.issue(("pf", 0)); C.m0 = None
    va = Rl.va = Alloc("v", C.vbase, 256)
    NW, NX = 4, 3; WB, XB = 0, 65536
    xd = C.xd; wd = Rl.wd = [va() for _ in range(8)]
    w = S['w']
    P(f"s_mul_i32 {S['t0']}, {S['cb']}, 448\ns_and_b32 {S['t0']}, {S['t0']}, 0xffffff80\ns_mul_i32 {S['t1']}, {w}, {8*3584}\ns_add_u32 {S['t0']}, {S['t0']}, {S['t1']}")
    P(f"v_lshrrev_b32 {t[0]}, 5, {lane}\nv_bfe_u32 {t[1]}, {lane}, 1, 4\nv_xor_b32 {t[1]}, {t[0]}, {t[1]}\nv_xor_b32 {t[1]}, {S['b1']}, {t[1]}")
    P(f"v_mul_u32_u24 {t[0]}, 3584, {t[0]}\nv_lshl_add_u32 {t[0]}, {t[1]}, 5, {t[0]}\nv_and_b32 {t[1]}, 1, {lane}\nv_lshl_add_u32 {t[0]}, {t[1]}, 4, {t[0]}")
    P(f"v_add_u32 {wd[0]}, {S['t0']}, {t[0]}\nv_xor_b32 {t[3]}, 64, {wd[0]}")
    P(f"v_add_u32 {wd[1]}, {2*3584 - 1024}, {t[3]}\nv_add_u32 {wd[2]}, {4*3584 - 2048}, {wd[0]}\nv_add_u32 {wd[3]}, {6*3584 - 3072}, {t[3]}")
    P(f"s_mul_i32 {S['kw']}, {S['kx']}, {64*3584//128}")
    P(f"s_memrealtime {C.mT}\ns_or_b32 {S['t0']}, s2, {w}\ns_cmp_eq_u32 {S['t0']}, 0\ns_cselect_b32 {C.sD[2]}, 256, 0\ns_mov_b32 {C.sD[3]}, 0x20000\nv_mov_b32 {t[0]}, 0")
    karg(C)
    P(f"s_or_b32 {S['t0']}, {C.mT[0]}, 1\nv_mov_b32 {t[1]}, {S['t0']}\ns_mov_b32 {C.sD[0]}, {C.ptr[14]}\ns_mov_b32 {C.sD[1]}, {C.ptr[15]}\nbuffer_store_dword {t[1]}, {t[0]}, {C.sD}, 0 offen sc1")
    C.vm.issue(("non", 0))
    srd(P, C.sW, C.ptr[8], C.ptr[9], 448 * 3584)
    items = []
    for d in range(7):
        for j in range(4): items.append(dict(k="x", d=d, j=j, need=2*d, free=(2*(d-NX)+1 if d >= NX else -1)))
        for s in (2*d, 2*d+1):
            for j in range(4): items.append(dict(k="w", s=s, j=j, need=s, free=(s-NW if s >= NW else -1)))
    def emit_item(i):
        it = items[i]; j = it["j"]
        if it["k"] == "x":
            return dma_item(C, it["need"], f"s_add_u32 m0, {S['xm0']}, {XB + (it['d'] % NX)*16384}",
                            f"buffer_load_dwordx4 {xd[j]}, {C.sX}, {C.kxs[it['d']]} offen offset:{j*1024}{NTX} lds")
        return dma_item(C, it["need"], f"s_add_u32 m0, {S['xm0']}, {WB + (it['s'] % NW)*16384}",
                        f"buffer_load_dwordx4 {wd[j + 4*(it['s']&1)]}, {C.sW}, {C.kws[it['s']>>1]} offen offset:{j*1024}{NTW} lds")
    Rl.sched = schedule(items, OPT["pro"], OPT["rate"], 14); Rl.emit_item = emit_item
    for i in Rl.sched[-1][:8]: emit(C, emit_item(i))
    for j in range(4): P(f"v_add_u32 {wd[4+j]}, {32*3584}, {wd[j]}")
    for i in Rl.sched[-1][8:OPT["first"]]: emit(C, emit_item(i))
    return Rl

def tlb_touch(C):
    P, S = C.P, C.S
    if OPT["tlb"] & 1:
        for k in (10, 4, 12, 14): P(f"s_load_dword s97, {C.ptr[k:k+2]}, 0")
        for off in range(0, WS_USED, 1 << 21):
            P(f"s_add_u32 {C.tm[0]}, {C.wsp[0]}, {off}\ns_addc_u32 {C.tm[1]}, {C.wsp[1]}, 0\ns_load_dword s97, {C.tm}, 0")
    if OPT["tlb"] & 2:
        P(f"v_mov_b32 {C.t[6]}, 0")
        for k in (10, 4, 12): P(f"global_load_dword v2, {C.t[6]}, {C.ptr[k:k+2]}"); C.vm.issue(("pf", 0))
        P(f"v_and_b32 {C.t[6]}, 7, {C.lane}\nv_lshlrev_b32 {C.t[6]}, 21, {C.t[6]}\nglobal_load_dword v2, {C.t[6]}, {C.wsp}"); C.vm.issue(("pf", 0))

def karg(C):
    P, S = C.P, C.S
    P("s_waitcnt lgkmcnt(0)")
    P(f"s_add_u32 {C.sX[0]}, {C.ptr[0]}, {S['t2']}\ns_addc_u32 {C.sX[1]}, {C.ptr[1]}, 0\ns_sub_u32 {C.sX[2]}, {XBYTES}, {S['t2']}\ns_mov_b32 {C.sX[3]}, 0x20000")

def ffn_body(C, Rl):
    P, S, lane, t = C.P, C.S, C.lane, C.t
    C.role = "F"; vm = C.vm = Rl.vm; C.lim = NB - OPT["late"]
    va = Rl.va; aa = Alloc("a", 0, C.abase)
    NW, NX = 4, 3; WB, XB = 0, 65536
    sWS = C.sWS; w = S['w']
    stamp(C, "iss")
    tlb_touch(C)
    xr = [[va() for _ in range(2)] for _ in range(2)]
    wr_ = [va() for _ in range(7)]
    acc = [[va(4, 4) for _ in range(4)] for _ in range(7)]
    cs = [va(4, 4) for _ in range(7)]
    rs = [va(4, 4) for _ in range(2)]
    ones = aa(4)
    fb = [dict(x=[aa(4) for _ in range(4)], w=[aa(4) for _ in range(7)]) for _ in range(2)]
    if OPT["wsoff"]: P(f"s_add_u32 {C.wsp[0]}, {C.wsp[0]}, {OPT['wsoff'] << 20}\ns_addc_u32 {C.wsp[1]}, {C.wsp[1]}, 0")
    srd(P, sWS, C.wsp[0], C.wsp[1], WS_REC)
    wr, wc = S['half'], S['hh']
    n_, g_ = va(), va()
    P(f"v_and_b32 {n_}, 15, {lane}\nv_lshrrev_b32 {g_}, 4, {lane}")
    P(f"s_lshl_b32 {S['t0']}, {wr}, 13\ns_lshl_b32 {S['t1']}, {wc}, 12\ns_add_u32 {S['t0']}, {S['t0']}, {S['t1']}\ns_add_u32 {S['t0']}, {S['t0']}, {XB}")
    P(f"v_lshrrev_b32 {t[0]}, 1, {n_}\nv_xor_b32 {t[0]}, {g_}, {t[0]}\nv_lshlrev_b32 {t[0]}, 4, {t[0]}\nv_lshl_add_u32 {t[0]}, {n_}, 7, {t[0]}")
    P(f"v_add_u32 {xr[0][0]}, {S['t0']}, {t[0]}\nv_xor_b32 {xr[0][1]}, 64, {xr[0][0]}\nv_xor_b32 {xr[1][0]}, 4096, {xr[0][0]}\nv_xor_b32 {xr[1][1]}, 4096, {xr[0][1]}")
    P(f"v_bfe_u32 {t[0]}, {lane}, 2, 2\nv_lshl_add_u32 {t[1]}, {g_}, 3, {t[0]}\nv_lshlrev_b32 {t[1]}, 9, {t[1]}\nv_and_b32 {t[2]}, 3, {lane}\nv_lshl_add_u32 {t[1]}, {t[2]}, 3, {t[1]}")
    P(f"v_bfe_u32 {t[0]}, {lane}, 2, 3")
    P(f"s_lshl_b32 {S['b1']}, {wr}, 2\ns_mul_i32 {S['b2']}, {wr}, -3")
    P(f"s_and_b32 {S['t0']}, {S['cb']}, 1\ns_lshl_b32 {S['t0']}, {S['t0']}, 1\ns_mul_i32 {S['t1']}, {wc}, 7\ns_add_u32 {S['t0']}, {S['t0']}, {S['t1']}")
    P(f"s_add_u32 {S['t1']}, {S['t0']}, {S['b2']}\ns_add_u32 {S['t0']}, {S['t0']}, {S['b1']}")
    for c in range(7):
        P(f"s_add_u32 {S['t2']}, {S['t0'] if c <= 2 else S['t1']}, {c}")
        P(f"v_xor_b32 {t[2]}, {S['t2']}, {t[0]}\nv_lshl_add_u32 {wr_[c]}, {t[2]}, 5, {t[1]}")
    P(f"v_mov_b32 {t[0]}, {ONES}")
    for i in range(4): P(f"v_accvgpr_write_b32 {ones[i]}, {t[0]}")
    b2 = B2(C)
    RSB = b2.xchunk * 8192; CSB = RSB + 1024
    xw = RSB & 0x30000; RSB -= xw; CSB -= xw
    a_rs, a_rs2, a_cs, a_cs2 = va(), va(), va(), va()
    st = [va(), va()]
    P(f"s_lshl_b32 {S['t0']}, {wr}, 8\ns_lshl_b32 {S['t1']}, {wc}, 7\ns_add_u32 {S['t0']}, {S['t0']}, {S['t1']}\ns_add_u32 {S['t0']}, {S['t0']}, {xw}")
    P(f"v_lshlrev_b32 {a_rs}, 2, {n_}\nv_add_u32 {a_rs}, {S['t0']}, {a_rs}\nv_xor_b32 {a_rs2}, 128, {a_rs}")
    P(f"s_lshl_b32 {S['t0']}, {wc}, 3\ns_add_u32 {S['t1']}, {S['t0']}, {S['b2']}\ns_add_u32 {S['t0']}, {S['t0']}, {S['b1']}")
    P(f"s_lshl_b32 {S['t0']}, {S['t0']}, 6\ns_add_u32 {S['t1']}, {S['t1']}, 4\ns_lshl_b32 {S['t1']}, {S['t1']}, 6")
    P(f"v_lshlrev_b32 {a_cs}, 4, {g_}\nv_add_u32 {a_cs}, {xw}, {a_cs}\nv_add_u32 {a_cs2}, {S['t1']}, {a_cs}\nv_add_u32 {a_cs}, {S['t0']}, {a_cs}")
    P(f"s_lshl_b32 {S['t0']}, {wc}, 10\nv_lshlrev_b32 {st[0]}, 4, {lane}\nv_add_u32 {st[0]}, {S['t0']}, {st[0]}\nv_xor_b32 {st[1]}, 1024, {st[0]}")
    P(f"s_lshl_b32 {S['t0']}, {S['e']}, 3\ns_add_u32 {S['t0']}, {S['t0']}, {S['rbl']}\ns_lshl_b32 {S['t0']}, {S['t0']}, 1\ns_add_u32 {S['t0']}, {S['t0']}, {wr}")
    P(f"s_mul_i32 {S['t0']}, {S['t0']}, {A2_KS}\ns_mul_i32 {S['t1']}, {S['cb']}, 14\ns_add_u32 {S['t0']}, {S['t0']}, {S['t1']}\ns_mul_i32 {S['t1']}, {wc}, 7\ns_add_u32 {S['t0']}, {S['t0']}, {S['t1']}\ns_add_u32 {S['t0']}, {S['t0']}, 32")
    P(f"s_add_u32 {S['b1']}, {S['b1']}, {S['t0']}\ns_add_u32 {S['b2']}, {S['b2']}, {S['t0']}\ns_lshl_b32 {S['b1']}, {S['b1']}, 11\ns_lshl_b32 {S['b2']}, {S['b2']}, 11")
    if OPT["xst"]:
        pca, pra, gca, gsc, lca = [va() for _ in range(5)]
        for m_, bit in ((C.mT, 1), (C.mU, 2), (C.mW, 4), (C.mH, 8)):
            P(f"v_and_b32 {t[0]}, {bit}, {lane}\nv_cmp_ne_u32 {m_}, 0, {t[0]}")
        P(f"s_lshl_b32 {S['t2']}, {S['e']}, 3\ns_add_u32 {S['t0']}, {S['t2']}, {S['cb']}\ns_lshl_b32 {S['t0']}, {S['t0']}, 14\ns_add_u32 {S['t0']}, {S['t0']}, {SCOL_OFF}")
        P(f"s_lshl_b32 {S['t1']}, {w}, 12\ns_add_u32 {S['t1']}, {S['t1']}, {S['t0']}\nv_lshl_add_u32 {gca}, {lane}, 4, {S['t1']}")
        P(f"s_lshl_b32 {S['t1']}, {wc}, 1\ns_add_u32 {S['t1']}, {S['t1']}, {wr}\ns_lshl_b32 {S['t1']}, {S['t1']}, 3\ns_add_u32 {S['t1']}, {S['t1']}, {S['rbl']}\ns_lshl_b32 {S['t1']}, {S['t1']}, 9\ns_add_u32 {S['t0']}, {S['t0']}, {S['t1']}")
        P(f"v_bfe_u32 {t[0]}, {lane}, 2, 2\nv_lshlrev_b32 {t[0]}, 4, {t[0]}\nv_lshl_add_u32 {t[0]}, {g_}, 2, {t[0]}\nv_and_b32 {t[1]}, 3, {lane}\nv_add_u32 {t[0]}, {t[0]}, {t[1]}\nv_lshl_add_u32 {pca}, {t[0]}, 3, {S['t0']}")
        P(f"s_add_u32 {S['t0']}, {S['t2']}, {S['rbl']}\ns_lshl_b32 {S['t0']}, {S['t0']}, 2\ns_add_u32 {S['t0']}, {S['t0']}, {w}\ns_lshl_b32 {S['t0']}, {S['t0']}, 12\ns_add_u32 {S['t0']}, {S['t0']}, {SROW_OFF}")
        P(f"v_lshl_add_u32 {t[0]}, {n_}, 4, {S['t0']}\nv_cmp_lt_u32 vcc, 31, {lane}\nv_cndmask_b32 {gca}, {gca}, {t[0]}, vcc")
        P(f"s_lshl_b32 {S['t1']}, {S['cb']}, 9\ns_add_u32 {S['t0']}, {S['t0']}, {S['t1']}\nv_lshl_add_u32 {pra}, {lane}, 3, {S['t0']}\nv_mov_b32 {t[1]}, {BIG}\nv_cndmask_b32 {pra}, {pra}, {t[1]}, vcc")
        P(f"v_mov_b32 {gsc}, 1.0\nv_mov_b32 {t[1]}, {f2h(-1.0/448)}\nv_cndmask_b32 {gsc}, {gsc}, {t[1]}, vcc")
        P(f"s_lshl_b32 {S['t0']}, {w}, 8\ns_add_u32 {S['t0']}, {S['t0']}, {xw + 1024}\nv_lshl_add_u32 {lca}, {lane}, 3, {S['t0']}")
        P(f"s_lshl_b32 {S['t0']}, {w}, 7\ns_add_u32 {S['t0']}, {S['t0']}, {xw}\nv_lshl_add_u32 {t[0]}, {n_}, 3, {S['t0']}\nv_cndmask_b32 {lca}, {lca}, {t[0]}, vcc")
    p2_setup(C)
    slab_tables(C, 64*3584//128); C.m0 = None
    rest = Rl.sched[-1][OPT["first"]:]
    for i in rest[:OPT["wpos"]]: emit(C, Rl.emit_item(i))
    P("WARM_F:")
    for i in rest[OPT["wpos"]:]: emit(C, Rl.emit_item(i))
    def reads(s):
        b = fb[s & 1]
        xs = ((s >> 1) % NX) * 16384; ws = WB + (s % NW) * 16384
        X = [f"ds_read_b128 {b['x'][i]}, {xr[i>>1][s&1]} offset:{xs + (i&1)*2048}" for i in range(4)]
        W = []
        for c in range(7):
            W.append(f"ds_read_b64_tr_b16 {b['w'][c][0:2]}, {wr_[c]} offset:{ws}")
            W.append(f"ds_read_b64_tr_b16 {b['w'][c][2:4]}, {wr_[c]} offset:{ws + 2048}")
        return X + W
    def mfmas(s):
        b = fb[s & 1]; o = []
        def mm(d, a, bb): o.append(f"v_mfma_f32_16x16x32_bf16 {d}, {a}, {bb}, {d if s else 0}")
        if s < 2 or not OPT["xst"]:
            for i in range(2): mm(rs[i], ones, b['x'][i])
            for c in range(4): mm(cs[c], b['w'][c], ones)
        for c in range(7):
            for i in range(4): mm(acc[c][i], b['w'][c], b['x'][i])
        if s == 13 and not OPT["xst"]:
            wrs = [f"ds_write_b32 {a_rs}, {rs[i][0]} offset:{RSB + i*64}" for i in range(2)] + [f"ds_write_b128 {a_cs}, {cs[c]} offset:{CSB + c*64}" for c in range(4)]
            for k_, x in enumerate(wrs): o[14 + k_] += "\n" + x
        return o
    nm = [va(2), va(2)]
    NEG = f2h(-1.0/448)
    hook = None
    if OPT["xst"]:
        G = OPT["gat"]
        allcs = R("v", cs[0].i, 28); assert cs[6].i == cs[0].i + 24
        gq = [allcs[4*p:4*p+4] for p in range(7)]
        gl = [f"buffer_load_dwordx4 {gq[p]}, {gca}, {sWS}, 0 offen offset:{512*p} sc1" for p in range(7)]
        bad = rs[0][0]
        al = [g[k] for g in gq for k in (1, 3)]
        chk = [f"v_xor_b32 {bad}, {S['tag']}, {al[0]}"] + [f"v_bitop3_b32 {bad}, {x}, {S['tag']}, {bad} bitop3:0xbe" for x in al[1:]]
        def hook(s_):
            o = []
            if s_ == 2:
                def tg():
                    l0 = len(P.l); get_tag(C); x = "\n".join(P.l[l0:]); del P.l[l0:]; return x
                o.append(Lazy(tg, "svsss"))
                for c in range(4):
                    o += [f"v_cndmask_b32 {cs[c][0]}, {cs[c][0]}, {cs[c][1]}, {C.mT}", f"v_cndmask_b32 {cs[c][2]}, {cs[c][2]}, {cs[c][3]}, {C.mT}", f"v_cndmask_b32 {cs[c][0]}, {cs[c][0]}, {cs[c][2]}, {C.mU}"]
            if s_ == 3:
                o += [f"v_cndmask_b32 {cs[0][0]}, {cs[0][0]}, {cs[1][0]}, {C.mW}", f"v_cndmask_b32 {cs[2][0]}, {cs[2][0]}, {cs[3][0]}, {C.mW}", f"v_cndmask_b32 {cs[0][0]}, {cs[0][0]}, {cs[2][0]}, {C.mH}",
                      f"v_mov_b32 {cs[0][1]}, {S['tag']}", vop(C, ("st1", 0), f"buffer_store_dwordx2 {cs[0][0:2]}, {pca}, {sWS}, 0 offen sc1"),
                      f"v_cmp_eq_u32 vcc, 1, {g_}", f"v_mov_b32 {rs[0][1]}, {S['tag']}", f"v_cndmask_b32 {rs[0][0]}, {rs[0][0]}, {rs[1][0]}, vcc",
                      vop(C, ("st1", 0), f"buffer_store_dwordx2 {rs[0][0:2]}, {pra}, {sWS}, 0 offen sc1")]
            k_ = OPT["gsp"]
            if G - k_ < s_ <= G:
                i_ = s_ - (G - k_ + 1); o += [vop(C, ("ga", 0), x) for x in gl[i_ * 7 // k_:(i_ + 1) * 7 // k_]]
            if s_ == G + OPT['gck']:
                o.append(Lazy(lambda: vm.wait(lambda q: q[0] == "ga")))
                o += chk + [f"v_cmp_ne_u32 vcc, 0, {bad}", "s_cmp_lg_u64 vcc, 0\ns_cbranch_scc1 GA_S\nGA_X:"]
                C.slow.append(f"GA_S:\ns_mov_b32 {S['t2']}, 0\nGA_L:\n" + "\n".join(gl) + "\ns_waitcnt vmcnt(0)\n" + "\n".join(chk) +
                              f"\nv_cmp_ne_u32 vcc, 0, {bad}\ns_add_u32 {S['t2']}, {S['t2']}, 1\ns_cmp_ge_u32 {S['t2']}, {SPIN_MAX}\ns_cbranch_scc1 GA_X\ns_cmp_lg_u64 vcc, 0\ns_cbranch_scc1 GA_L\ns_branch GA_X")
            if s_ == G + OPT['gck'] + 1:
                for k in (0, 2):
                    g = [x[k] for x in gq]
                    o += [f"v_add_f32 {g[0]}, {g[0]}, {g[1]}", f"v_add_f32 {g[2]}, {g[2]}, {g[3]}", f"v_add_f32 {g[4]}, {g[4]}, {g[5]}",
                          f"v_add_f32 {g[0]}, {g[0]}, {g[2]}", f"v_add_f32 {g[4]}, {g[4]}, {g[6]}", f"v_add_f32 {g[0]}, {g[0]}, {g[4]}"]
                o += [f"v_mul_f32 {gq[0][0]}, {gsc}, {gq[0][0]}", f"v_mul_f32 {gq[0][1]}, {gsc}, {gq[0][2]}", f"ds_write_b64 {lca}, {gq[0][0:2]} offset:{RSB}"]
            if s_ == G + OPT['gck'] + 2:
                o += [f"ds_read_b32 {nm[0][i]}, {a_rs} offset:{RSB + 64*i}" for i in range(2)] + [f"ds_read_b32 {nm[1][i]}, {a_rs2} offset:{RSB + 64*i}" for i in range(2)]
                o += [f"ds_read_b128 {cs[c]}, {a_cs} offset:{CSB + c*64}" for c in range(4)] + [f"ds_read_b128 {cs[c]}, {a_cs2} offset:{CSB + (c-4)*64}" for c in range(4, 7)]
            return o
    run_loop(C, Rl.emit_item, Rl.sched, reads, mfmas, b2, OPT["fearly"], OPT["fstart"], hook=hook, nonce_at=0 if OPT["xst"] else 6, rate2=OPT["b2rate"])
    if not OPT["xst"]:
        P("s_waitcnt lgkmcnt(0)\ns_barrier"); b2.lgkm()
        P(f"ds_read_b32 {nm[1][0]}, {a_rs2} offset:{RSB}\nds_read_b32 {nm[1][1]}, {a_rs2} offset:{RSB+64}")
        for c in range(4, 7): P(f"ds_read_b128 {cs[c]}, {a_cs2} offset:{CSB + (c-4)*64}")
    if OPT["xst"] and OPT["gat"] + OPT["gck"] + 2 == 13: P("s_waitcnt lgkmcnt(0)"); b2.lgkm()
    emit(C, b2.moves(C.hist[11]))
    if not OPT["xst"]: P(f"v_mul_f32 {nm[0][0]}, {NEG}, {rs[0][0]}\nv_mul_f32 {nm[0][1]}, {NEG}, {rs[1][0]}")
    Z = [va(4, 4) for _ in range(4)]
    units = [(c, 0) for c in range(4)] + [(c, 1) for c in range(4)] + [(c, pr) for c in range(4, 7) for pr in range(2)]
    if OPT["xst"]: units = [(c, pr) for c in range(7) for pr in range(2)]
    pend = None
    old = b2.loaded
    for ui, (c, pr) in enumerate(units):
        if ui == 4:
            P("s_waitcnt lgkmcnt(0)"); b2.lgkm()
            if not OPT["xst"]: P(f"v_mul_f32 {nm[1][0]}, {NEG}, {nm[1][0]}\nv_mul_f32 {nm[1][1]}, {NEG}, {nm[1][1]}")
        z = Z[ui % 4]
        for ii in range(2):
            a = acc[c][2*pr+ii]
            sel = "op_sel_hi:[1,0,1]" if ii == 0 else "op_sel:[0,1,0] op_sel_hi:[1,1,1]"
            P(f"v_pk_fma_f32 {a[0:2]}, {cs[c][0:2]}, {nm[pr]}, {a[0:2]} {sel}")
            P(f"v_pk_fma_f32 {a[2:4]}, {cs[c][2:4]}, {nm[pr]}, {a[2:4]} {sel}")
        if pend: P(pend); vm.issue(("st", 0))
        for ii in range(2):
            a = acc[c][2*pr+ii]
            P(f"v_cvt_pk_bf16_f32 {z[2*ii]}, {a[0]}, {a[1]}\nv_cvt_pk_bf16_f32 {z[2*ii+1]}, {a[2]}, {a[3]}")
        for q in range(4): P(f"v_pk_max_i16 {z[q]}, {z[q]}, 0")
        if OPT["fepi"] and ui % OPT["fepi"] == 0: emit(C, b2.loads(1, C.lim))
        pend = (f"s_add_u32 {S['t0']}, {S['b1'] if c <= 2 else S['b2']}, {c*2048}\n"
                f"v_permlane16_swap_b32 {z[0]}, {z[2]}\nv_permlane16_swap_b32 {z[1]}, {z[3]}\n"
                f"buffer_store_dwordx4 {z}, {st[pr]}, {sWS}, {S['t0']} offen sc1")
    P(pend); vm.issue(("st", 0))
    stamp(C, "epiend")
    emit(C, b2.moves(old))
    b2.drain(OPT["post"], C.lim)
    if not OPT["xst"]: get_tag(C)
    stamp(C, "tag")
    if NPRE and OPT["fpost"]:
        P.ext([x for t_ in range(NPRE) for x in b2.tr(t_, C.breg[t_], C.rB) + b2.tr(t_, C.breg[14 + t_], C.rP)])
    P(vm.wait(lambda q: q[0] == "st") + " lgkmcnt(0)"); stamp(C, "ack"); P("s_barrier")
    if NPRE and OPT["fpost"]: b2.free += [b2.ch[t_] for t_ in range(NPRE)]
    flag_store(C)
    stamp(C, "flag")
    emit(C, xtile(C))
    b2.drain(max(C.lim - b2.loaded - OPT["pr"], 0), C.lim)
    emit(C, [poll_req(C)])
    b2.drain(99, C.lim)
    stamp(C, "b2iss")
    poll_check(C, "PF_F", 3)
    stamp(C, "polled")
    for tt in range(OPT["LA"]): emit(C, aload(C, tt))
    return max(va.hi, phase2(C, b2, None))

XS = 18432
def qkv_head(C):
    P, S, lane, t = C.P, C.S, C.lane, C.t
    Rl = Role(); Rl.vm = C.vm = Cnt("vmcnt", 63); C.vm.issue(("pf", 0)); C.m0 = None
    va = Rl.va = Alloc("v", C.vbase, 256)
    NW, NX = 4, 3; XB, WB = 0, 3 * XS
    xd = C.xd; xh = va(); wd = [va() for _ in range(6)]
    w = S['w']; hp = S['cb']; mW, mH = C.mW, C.mH
    P(f"s_mul_i32 {S['t1']}, {w}, {32*1792}\ns_add_u32 {S['t1']}, {S['t1']}, {8*1792}\ns_cmp_eq_u32 {S['rbl']}, 0\ns_cselect_b32 {S['t1']}, {BIG}, {S['t1']}")
    P(f"v_subrev_u32 {xh}, {S['t1']}, {t[3]}")
    P(f"s_lshl_b32 {S['t1']}, {w}, 4\ns_mov_b64 {mH}, 0xffff\ns_lshl_b64 {mH}, {mH}, {S['t1']}")
    P(f"v_and_b32 {t[0]}, 2, {t[4]}\nv_add_u32 {t[0]}, {S['b1']}, {t[0]}\nv_sub_u32 {t[0]}, {t[5]}, {t[0]}\nv_and_b32 {t[0]}, 7, {t[0]}")
    P(f"v_cmp_ne_u32 {mW}, 7, {t[0]}\nv_mov_b32 {t[2]}, {BIG}")
    P(f"s_mul_i32 {S['t0']}, {hp}, 112\ns_mul_i32 {S['t1']}, {w}, {8*2688}\ns_add_u32 {S['t0']}, {S['t0']}, {S['t1']}")
    P(f"v_mul_u32_u24 {t[1]}, 2688, {t[4]}\nv_lshl_add_u32 {t[1]}, {t[0]}, 4, {t[1]}\nv_add_u32 {t[1]}, {S['t0']}, {t[1]}\nv_cndmask_b32 {wd[2]}, {t[2]}, {t[1]}, {mW}")
    P(f"v_add_u32 {wd[1]}, 128, {wd[2]}\nv_add_u32 {wd[0]}, 256, {wd[2]}")
    P(f"s_mul_i32 {S['kw']}, {S['kx']}, {64*2688//128}\ns_mul_i32 {S['wm0']}, {w}, 3072")
    karg(C)
    P(f"s_sub_u32 {C.sW[0]}, {C.ptr[2]}, 256\ns_subb_u32 {C.sW[1]}, {C.ptr[3]}, 0\ns_mov_b32 {C.sW[2]}, {448*2688 + 256}\ns_mov_b32 {C.sW[3]}, 0x20000")
    items = []
    for d in range(7):
        fr = (2*(d-NX)+1 if d >= NX else -1)
        for j in (0, 1, 2, 3, -1): items.append(dict(k="x", d=d, j=j, need=2*d, free=fr))
        for s in (2*d, 2*d+1):
            for p in range(3): items.append(dict(k="w", s=s, j=p, need=s, free=(s-NW if s >= NW else -1)))
    def emit_item(i):
        it = items[i]; j = it["j"]
        if it["k"] == "x":
            sb = XB + (it['d'] % NX) * XS
            if j < 0: return dma_item(C, it["need"], f"s_mov_b32 m0, {sb + 1024}", f"buffer_load_dwordx4 {xh}, {C.sX}, {C.kxs[it['d']]} offen{NTX} lds", mH)
            return dma_item(C, it["need"], f"s_add_u32 m0, {S['xm0']}, {sb + 2048}", f"buffer_load_dwordx4 {xd[j]}, {C.sX}, {C.kxs[it['d']]} offen offset:{j*1024}{NTX} lds")
        return dma_item(C, it["need"], f"s_add_u32 m0, {S['wm0']}, {WB + (it['s'] % NW)*12288}",
                        f"buffer_load_dwordx4 {wd[j + 3*(it['s']&1)]}, {C.sW}, {C.kws[it['s']>>1]} offen offset:{j*1024}{NTW} lds", mW if j == 1 else None)
    Rl.sched = schedule(items, OPT["pro"] * 11 // 12, OPT["rate"] - 1, 14); Rl.emit_item = emit_item
    for i in Rl.sched[-1][:8]: emit(C, emit_item(i))
    for j in range(3): P(f"v_add_u32 {wd[3+j]}, {32*2688}, {wd[j]}")
    for i in Rl.sched[-1][8:min(OPT["first"], 11)]: emit(C, emit_item(i))
    return Rl

def qkv_body(C, Rl):
    P, S, lane, t = C.P, C.S, C.lane, C.t
    C.role = "Q"; vm = C.vm = Rl.vm; C.lim = NB - OPT["late"]
    va = Rl.va; aa = Alloc("a", 0, C.abase)
    NW, NX = 4, 3; XB, WB = 0, 3 * XS
    sWS, mT = C.sWS, C.mT
    w = S['w']; hp = S['cb']; hh, half = S['hh'], S['half']
    stamp(C, "iss")
    tlb_touch(C)
    xr = [va() for _ in range(2)]; xr0 = [va() for _ in range(2)]
    wr_ = [va() for _ in range(2)]
    acc = [[[va(4, 4) for _ in range(5)] for _ in range(2)] for _ in range(3)]
    dg = [va(4, 4) for _ in range(5)]
    cprev, ccur, cfirst = va(4, 4), va(4, 4), va(4, 4)
    mprev, mcur = va(2), va(2)
    fb = [dict(x=[aa(4) for _ in range(5)], w=[[aa(4) for _ in range(2)] for _ in range(3)]) for _ in range(2)]
    if OPT["wsoff"]: P(f"s_add_u32 {C.wsp[0]}, {C.wsp[0]}, {OPT['wsoff'] << 20}\ns_addc_u32 {C.wsp[1]}, {C.wsp[1]}, 0")
    srd(P, sWS, C.wsp[0], C.wsp[1], WS_REC)
    n_, g_ = va(), va()
    P(f"v_and_b32 {n_}, 15, {lane}\nv_lshrrev_b32 {g_}, 4, {lane}")
    tmpcs = [va(4, 4) for _ in range(4)]
    c1, c0 = tmpcs[0], tmpcs[1]
    for i in range(4): P(f"v_mov_b32 {c1[i]}, {ONES}\nv_mov_b32 {c0[i]}, 0")
    P(f"v_and_b32 {t[0]}, 7, {lane}\nv_and_b32 {t[1]}, 2, {lane}\nv_bfe_u32 {t[2]}, {lane}, 3, 1\nv_lshl_add_u32 {t[1]}, {t[2]}, 2, {t[1]}")
    P(f"v_add_u32 {t[1]}, 7, {t[1]}\nv_and_b32 {t[1]}, 7, {t[1]}\nv_lshlrev_b32 {t[1]}, 4, {t[1]}\nv_lshl_add_u32 {t[0]}, {t[0]}, 7, {t[1]}")
    P(f"v_lshrrev_b32 {t[1]}, 3, {lane}\nv_mul_u32_u24 {t[1]}, 3072, {t[1]}\ns_mul_i32 {S['t0']}, {hh}, {2*12288}\ns_add_u32 {S['t0']}, {S['t0']}, {WB}")
    P(f"v_add3_u32 {t[0]}, {t[0]}, {t[1]}, {S['t0']}")
    P(f"ds_write_b128 {t[0]}, {c1} offset:1024")
    P(f"s_min_u32 {S['t0']}, {w}, 2\ns_mul_i32 {S['t0']}, {S['t0']}, {XS}\nv_lshlrev_b32 {t[1]}, 4, {lane}\nv_add_u32 {t[1]}, {S['t0']}, {t[1]}\nds_write_b128 {t[1]}, {c1} offset:{XB}")
    P(f"v_lshrrev_b32 {t[0]}, 1, {n_}\nv_xor_b32 {t[0]}, {g_}, {t[0]}\nv_lshlrev_b32 {t[0]}, 4, {t[0]}\nv_lshl_add_u32 {t[0]}, {n_}, 7, {t[0]}")
    P(f"s_lshl_b32 {S['t0']}, {half}, 13\nv_add_u32 {t[1]}, {S['t0']}, {t[0]}\nv_add_u32 {xr[0]}, {XB + 2048}, {t[1]}\nv_xor_b32 {xr[1]}, 64, {xr[0]}")
    P(f"v_cmp_gt_u32 vcc, 8, {n_}\nv_cndmask_b32 {xr0[0]}, {t[1]}, {t[0]}, vcc\nv_xor_b32 {xr0[1]}, 64, {xr0[0]}")
    P(f"v_bfe_u32 {t[0]}, {lane}, 2, 2\nv_mul_u32_u24 {t[1]}, 3072, {g_}\nv_lshl_add_u32 {t[0]}, {t[0]}, 7, {t[1]}\nv_add_u32 {t[0]}, {WB}, {t[0]}")
    P(f"v_bfe_u32 {t[1]}, {lane}, 3, 2\nv_lshlrev_b32 {t[1]}, 5, {t[1]}\nv_and_b32 {t[2]}, 3, {lane}")
    P(f"s_mul_i32 {S['t0']}, {hh}, 56\nv_lshl_add_u32 {t[3]}, {t[2]}, 3, {S['t0']}")
    P(f"v_add_u32 {t[4]}, {t[3]}, {t[1]}\nv_and_b32 {t[4]}, 127, {t[4]}\nv_add_u32 {wr_[0]}, {t[0]}, {t[4]}")
    P(f"s_lshl_b32 {S['t0']}, {hh}, 3\ns_sub_u32 {S['t0']}, 120, {S['t0']}\nv_mov_b32 {t[4]}, {S['t0']}\nv_add_u32 {t[3]}, 32, {t[3]}")
    P(f"v_cmp_eq_u32 vcc, 3, {t[2]}\nv_cndmask_b32 {t[3]}, {t[3]}, {t[4]}, vcc")
    P(f"v_add_u32 {t[4]}, {t[3]}, {t[1]}\nv_and_b32 {t[4]}, 127, {t[4]}\nv_add_u32 {wr_[1]}, {t[0]}, {t[4]}")
    P(f"v_lshlrev_b32 {t[0]}, 2, {g_}\nv_sub_u32 {t[0]}, {n_}, {t[0]}\nv_mov_b32 {t[1]}, {NINF}")
    P(f"s_or_b32 {S['t0']}, {S['rbl']}, {half}\ns_cmp_eq_u32 {S['t0']}, 0\ns_cselect_b32 {S['t0']}, {NINF}, 0")
    for r in range(4):
        P(f"v_subrev_u32 {t[2]}, {r}, {t[0]}")
        P(f"v_cmp_gt_i32 vcc, -8, {t[2]}\nv_cndmask_b32 {cprev[r]}, {t[1]}, {c0[0]}, vcc")
        P(f"v_cmp_gt_u32 vcc, 8, {t[2]}\nv_cndmask_b32 {ccur[r]}, {t[1]}, {c0[0]}, vcc")
        P(f"v_or_b32 {cfirst[r]}, {S['t0']}, {cprev[r]}")
    for (m, c) in ((mprev, cprev), (mcur, ccur)):
        for q in range(2):
            P(f"v_ashrrev_i32 {t[2]}, 31, {c[2*q]}\nv_ashrrev_i32 {t[3]}, 31, {c[2*q+1]}\nv_and_b32 {t[2]}, 0xffff, {t[2]}\nv_and_b32 {t[3]}, 0xffff0000, {t[3]}")
            P(f"v_or_b32 {t[2]}, {t[2]}, {t[3]}\nv_not_b32 {m[q]}, {t[2]}")
    a1, a2, av_w, av_r, sr, so = va(), va(), va(), va(), va(), va()
    VCH = [0, 1, 2, 8, 9]
    av_w2, av_r2 = va(), va()
    P(f"v_lshlrev_b32 {a1}, 2, {n_}\nv_bfe_u32 {a2}, {lane}, 2, 2\nv_lshl_add_u32 {a2}, {a2}, 6, {a1}\nv_add_u32 {a1}, 192, {a1}")
    P(f"v_and_b32 {t[2]}, 1, {lane}\nv_cmp_eq_u32 {mT}, 1, {t[2]}\nv_and_b32 {t[2]}, 2, {lane}\nv_cmp_eq_u32 {C.mU}, 2, {t[2]}")
    P(f"s_lshl_b32 {S['t1']}, {w}, 11\nv_mul_u32_u24 {av_w}, 80, {n_}\nv_lshl_add_u32 {av_w}, {g_}, 4, {av_w}\nv_add_u32 {av_w}, {S['t1']}, {av_w}")
    P(f"v_lshrrev_b32 {av_r}, 2, {lane}\nv_mul_u32_u24 {av_r}, 80, {av_r}\nv_and_b32 {t[4]}, 3, {lane}\nv_lshl_add_u32 {av_r}, {t[4]}, 4, {av_r}\nv_add_u32 {av_r}, {S['t1']}, {av_r}\nv_add_u32 {av_w2}, 65536, {av_w}\nv_add_u32 {av_r2}, 65536, {av_r}")
    P(f"v_lshlrev_b32 {so}, 4, {lane}")
    P(f"s_lshl_b32 {S['t1']}, {S['e']}, 3\ns_add_u32 {S['t1']}, {S['t1']}, {S['rbl']}\ns_lshl_b32 {S['t1']}, {S['t1']}, 1\ns_add_u32 {S['t1']}, {S['t1']}, {half}")
    P(f"s_lshl_b32 {S['t0']}, {hp}, 1\ns_add_u32 {S['t0']}, {S['t0']}, {hh}\ns_lshl_b32 {S['t0']}, {S['t0']}, 12\ns_mul_i32 {S['b1']}, {S['t1']}, {A2_KS*2048}\ns_add_u32 {S['b1']}, {S['b1']}, {S['t0']}")
    P(f"s_lshl_b32 {S['t1']}, {S['t1']}, 8\ns_lshl_b32 {S['t0']}, {hp}, 13\ns_add_u32 {S['t1']}, {S['t1']}, {S['t0']}\ns_add_u32 {S['t1']}, {S['t1']}, {RSTD_OFF}\ns_cmp_eq_u32 {hh}, 0\ns_cselect_b32 {S['t1']}, {S['t1']}, {BIG}")
    P(f"v_lshl_add_u32 {sr}, {lane}, 2, {S['t1']}")
    p2_setup(C)
    slab_tables(C, 64*2688//128); C.m0 = None
    rest = Rl.sched[-1][min(OPT["first"], 11):]
    for i in rest[:max(OPT["wpos"] - 1, 0)]: emit(C, Rl.emit_item(i))
    P("WARM_Q:")
    for i in rest[max(OPT["wpos"] - 1, 0):]: emit(C, Rl.emit_item(i))
    def reads(s):
        b = fb[s & 1]
        xs = ((s >> 1) % NX) * XS; ws = (s % NW) * 12288
        X = [f"ds_read_b128 {b['x'][0]}, {xr0[s&1]} offset:{xs}"] + [f"ds_read_b128 {b['x'][j]}, {xr[s&1]} offset:{xs + (j-1)*2048}" for j in range(1, 5)]
        W = []
        for p in (1, 2, 0):
            for tt in range(2):
                W.append(f"ds_read_b64_tr_b16 {b['w'][p][tt][0:2]}, {wr_[tt]} offset:{ws + p*1024}")
                W.append(f"ds_read_b64_tr_b16 {b['w'][p][tt][2:4]}, {wr_[tt]} offset:{ws + p*1024 + 512}")
        return X + W
    Q, K, V = acc
    ST = [va(2) for _ in range(5)]
    sq = [t[0], t[1], t[2], t[3], t[4]]
    csK = tmpcs[0:2]; csV = tmpcs[2:4]; csQ = [Q[0][0], Q[1][0]]
    def bc(d_, s_): return [f"v_mov_b32_dpp {d_[tt][r]}, {s_[tt][0][r]} row_newbcast:0 row_mask:0xf bank_mask:0xf" for tt in (1, 0) for r in range(4)]
    def mfmas(s):
        b = fb[s & 1]; o = []
        def mm(d, a, bb): o.append(f"v_mfma_f32_16x16x32_bf16 {d}, {a}, {bb}, {d if s else 0}")
        for j in range(5): mm(dg[j], b['x'][j], b['x'][j])
        for p in (1, 2, 0):
            for tt in (1, 0):
                for j in range(5): mm(acc[p][tt][j], b['w'][p][tt], b['x'][j])
        if s == 13:
            ex = []
            for j in range(5):
                ex += [f"v_cndmask_b32 {dg[j][0]}, {dg[j][0]}, {dg[j][1]}, {mT}", f"v_cndmask_b32 {dg[j][2]}, {dg[j][2]}, {dg[j][3]}, {mT}",
                       f"v_cndmask_b32 {dg[j][0]}, {dg[j][0]}, {dg[j][2]}, {C.mU}\nds_bpermute_b32 {sq[j]}, {a2}, {dg[j][0]}\nds_bpermute_b32 {ST[j][0]}, {a1}, {K[1][j][0]}"]
            ex += bc(csK, K)
            for k_, x in enumerate(ex): o[12 + k_] += "\n" + x
        return o
    b2 = B2(C)
    run_loop(C, Rl.emit_item, Rl.sched, reads, mfmas, b2, OPT["qearly"], OPT["qstart"], rate2=OPT["qrate"])
    P.ext(bc(csV, V))
    emit(C, b2.moves(C.hist[11]))
    P("s_waitcnt lgkmcnt(0)"); b2.lgkm()
    P(f"s_mov_b32 {S['t0']}, {f2h(1.0/448)}")
    for j in range(5): P(f"v_mul_f32 {ST[j][0]}, {f2h(-1.0/448)}, {ST[j][0]}")
    for j in range(5): P(f"v_mul_f32 {ST[j][1]}, {ST[j][0]}, {ST[j][0]}")
    for j in range(5): P(f"v_fma_f32 {ST[j][1]}, {sq[j]}, {S['t0']}, -{ST[j][1]}")
    for j in range(5): P(f"v_max_f32 {ST[j][1]}, 0, {ST[j][1]}")
    for j in range(5): P(f"v_add_f32 {ST[j][1]}, {f2h(1e-5)}, {ST[j][1]}")
    for j in range(5): P(f"v_rsq_f32 {ST[j][1]}, {ST[j][1]}")
    P.ext(bc(csQ, Q))
    LO = "op_sel_hi:[1,0,1]"; HI = "op_sel:[0,1] op_sel_hi:[1,1]"
    def correct(A_, cs_, j, scale, dst):
        o = []
        for tt in range(2):
            a = A_[tt][j]
            o.append(f"v_pk_fma_f32 {a[0:2]}, {cs_[tt][0:2]}, {ST[j]}, {a[0:2]} {LO}")
            o.append(f"v_pk_fma_f32 {a[2:4]}, {cs_[tt][2:4]}, {ST[j]}, {a[2:4]} {LO}")
        if scale:
            for tt in range(2):
                a = A_[tt][j]
                o.append(f"v_pk_mul_f32 {a[0:2]}, {a[0:2]}, {ST[j]} {HI}")
                o.append(f"v_pk_mul_f32 {a[2:4]}, {a[2:4]}, {ST[j]} {HI}")
        for tt in range(2):
            a = A_[tt][j]
            o.append(f"v_cvt_pk_bf16_f32 {dst[2*tt]}, {a[0]}, {a[1]}")
            o.append(f"v_cvt_pk_bf16_f32 {dst[2*tt+1]}, {a[2]}, {a[3]}")
        return o
    def more(n): return b2.loads(n, C.lim)
    seq = []
    for j in range(5): seq.extend(correct(V, csV, j, True, V[0][j]))
    emit(C, merge(seq, (more(OPT["qe"]), 0, len(seq))))
    for j in range(5): P(f"ds_write_b128 {av_w2 if VCH[j] >= 8 else av_w}, {V[0][j]} offset:{(VCH[j]*8192) & 0xffff}")
    seq = []
    l0 = b2.loaded
    for j in range(5): seq.extend(correct(K, csK, j, True, K[0][j]))
    emit(C, merge(seq, (more(OPT["qe"]), 0, len(seq))))
    emit(C, b2.moves(l0))
    Vt = [R("a", C.abase - 20, 10), R("a", C.abase - 10, 10)]
    P("s_waitcnt lgkmcnt(0)"); b2.lgkm()
    for tt in range(2):
        for j in range(5): P(f"ds_read_b64_tr_b16 {Vt[tt][2*j:2*j+2]}, {av_r2 if VCH[j] >= 8 else av_r} offset:{((VCH[j]*8192) & 0xffff) + 8*tt}")
    seq = []
    for j in range(1, 5): seq.extend(correct(Q, csQ, j, False, Q[0][j]))
    emit(C, merge(seq, (more(OPT["qe"] - 1), 0, len(seq))))
    S0 = {j: K[1][j] for j in range(1, 5)}; S1 = {j: V[1][j] for j in range(1, 5)}
    rg = [f"v_cmp_eq_u32 vcc, 1, {g_}", f"v_cndmask_b32 {t[5]}, {ST[1][1]}, {ST[2][1]}, vcc", f"v_cmp_eq_u32 vcc, 2, {g_}", f"v_cndmask_b32 {t[5]}, {t[5]}, {ST[3][1]}, vcc",
          f"v_cmp_eq_u32 vcc, 3, {g_}", f"v_cndmask_b32 {t[5]}, {t[5]}, {ST[4][1]}, vcc", f"v_cmp_lt_u32 vcc, 31, {lane}"]
    seq = []
    for j in range(1, 5):
        seq.append(f"v_mfma_f32_16x16x32_bf16 {S0[j]}, {K[0][j-1]}, {Q[0][j]}, {cfirst if j == 1 else cprev}")
        seq.append(f"v_mfma_f32_16x16x32_bf16 {S1[j]}, {K[0][j]}, {Q[0][j]}, {ccur}")
    P.ext(merge(seq, (rg, 0, 8)))
    get_tag(C)
    P("s_waitcnt lgkmcnt(0)"); b2.release(20)
    emit(C, xtile(C))
    cq = f2h(28 ** -0.5 * math.log2(math.e))
    def softmax(a, b, tm):
        o = []
        X, Y = S0[a], S0[b]
        c, m1, m2 = tm[0], tm[1], tm[2]
        o.append(f"v_cndmask_b32 {c}, {ST[a][1]}, {ST[b][1]}, vcc")
        for r in range(4): o.append(f"v_max_f32 {X[r]}, {X[r]}, {S1[a][r]}")
        for r in range(4): o.append(f"v_max_f32 {Y[r]}, {Y[r]}, {S1[b][r]}")
        o.append(f"v_mul_f32 {c}, {cq}, {c}")
        for r in range(4): o.append(f"v_permlane32_swap_b32 {X[r]}, {Y[r]}")
        for r in range(4): o.append(f"v_max_f32 {X[r]}, {X[r]}, {Y[r]}")
        o.append(f"v_max3_f32 {m1}, {X[0]}, {X[1]}, {X[2]}")
        o.append(f"v_max_f32 {m1}, {m1}, {X[3]}")
        o.append(f"v_mov_b32 {m2}, {m1}")
        o.append(f"v_permlane16_swap_b32 {m1}, {m2}")
        o.append(f"v_max_f32 {m1}, {m1}, {m2}")
        o.append(f"v_mul_f32 {m1}, {m1}, {c}")
        for r in range(4): o.append(f"v_fma_f32 {X[r]}, {X[r]}, {c}, -{m1}")
        for r in range(4): o.append(f"v_exp_f32 {X[r]}, {X[r]}")
        o.append(f"v_add_f32 {m1}, {X[0]}, {X[1]}")
        o.append(f"v_add_f32 {m2}, {X[2]}, {X[3]}")
        o.append(f"v_add_f32 {m1}, {m1}, {m2}")
        o.append(f"v_mov_b32 {m2}, {m1}")
        o.append(f"v_permlane16_swap_b32 {m1}, {m2}")
        o.append(f"v_add_f32 {m1}, {m1}, {m2}")
        o.append(f"v_rcp_f32 {m1}, {m1}")
        for r in range(4): o.append(f"v_mul_f32 {X[r]}, {X[r]}, {m1}")
        o.append(f"v_cvt_pk_bf16_f32 {X[0]}, {X[0]}, {X[1]}")
        o.append(f"v_cvt_pk_bf16_f32 {X[1]}, {X[2]}, {X[3]}")
        o.append(f"v_mov_b32 {Y[0]}, {X[0]}")
        o.append(f"v_mov_b32 {Y[1]}, {X[1]}")
        o.append(f"v_permlane32_swap_b32 {X[0]}, {Y[0]}")
        o.append(f"v_permlane32_swap_b32 {X[1]}, {Y[1]}")
        for Zr in (X, Y):
            o.append(f"v_and_b32 {Zr[2]}, {Zr[0]}, {mcur[0]}")
            o.append(f"v_and_b32 {Zr[3]}, {Zr[1]}, {mcur[1]}")
            o.append(f"v_and_b32 {Zr[0]}, {Zr[0]}, {mprev[0]}")
            o.append(f"v_and_b32 {Zr[1]}, {Zr[1]}, {mprev[1]}")
        return o
    seq = []
    for x_, y_ in zip(softmax(1, 2, dg[1]), softmax(3, 4, dg[2])): seq += [x_, y_]
    l0 = b2.loaded
    emit(C, merge(seq, (more(OPT["qsm"]) + [poll_req(C)], 0, len(seq) * 2 // 3)))
    emit(C, b2.moves(l0))
    P("s_waitcnt lgkmcnt(0)"); b2.lgkm()
    O = [{j: Q[1][j] for j in range(1, 5)}, {j: V[1][j] for j in range(1, 5)}]
    for j in range(1, 5):
        for tt in range(2):
            P(f"v_mfma_f32_16x16x32_bf16 {O[tt][j]}, {Vt[tt][2*(j-1):2*(j-1)+4]}, {S0[j]}, 0")
    Z = {(tt, pr): K[0][2*tt+pr] for tt in range(2) for pr in range(2)}
    for pr in range(2):
        for tt in range(2):
            z = Z[tt, pr]
            for ii in range(2):
                o_ = O[tt][1 + 2*pr + ii]
                P(f"v_cvt_pk_bf16_f32 {z[2*ii]}, {o_[0]}, {o_[1]}\nv_cvt_pk_bf16_f32 {z[2*ii+1]}, {o_[2]}, {o_[3]}")
    for pr in range(2):
        for tt in range(2):
            z = Z[tt, pr]
            P(f"v_permlane16_swap_b32 {z[0]}, {z[2]}\nv_permlane16_swap_b32 {z[1]}, {z[3]}")
    def stores():
        for pr in range(2):
            for tt in range(2):
                P(f"buffer_store_dwordx4 {Z[tt, pr]}, {so}, {sWS}, {S['b1']} offen offset:{tt*2048 + pr*1024} sc1"); vm.issue(("st", 0))
        P(f"buffer_store_dword {t[5]}, {sr}, {sWS}, 0 offen sc1"); vm.issue(("st", 0))
    stamp(C, "epiend")
    stores()
    P("s_cmp_ge_u32 s2, 224\ns_cbranch_scc1 Q_FIN")
    q0 = list(vm.q); l0_ = len(P.l)
    P("Q_FIN:\ns_waitcnt vmcnt(0)\ns_barrier"); flag_store(C)
    if OPT["epf"]:
        sl0 = list(C.slow)
        P(f"s_mul_i32 {S['b2']}, {S['T']}, {A2_KS*2048}\nv_lshlrev_b32 {t[0]}, 7, {lane}")
        if OPT["epf"] & 1:
            poll_check(C, "EP_F", 3, first=False)
            P(f"s_and_b32 {S['t0']}, s2, 1\ns_lshl_b32 {S['t0']}, {S['t0']}, 2\ns_add_u32 {S['t0']}, {S['t0']}, {w}\ns_mul_i32 {S['t0']}, {S['t0']}, {14*2048}\ns_add_u32 {S['t0']}, {S['t0']}, {S['b2']}\ns_add_u32 {S['t0']}, {S['t0']}, {32*2048}")
            for k in range(4):
                if k == 3: P("s_mov_b32 exec_hi, 0")
                P(f"buffer_load_dword v2, {t[0]}, {sWS}, {S['t0']} offen sc1\ns_add_u32 {S['t0']}, {S['t0']}, 8192")
            P("s_mov_b64 exec, -1")
        if OPT["epf"] & 2:
            poll_check(C, "EP_Q", 12, first=False)
            P(f"s_lshl_b32 {S['t0']}, {w}, 14\ns_add_u32 {S['t0']}, {S['t0']}, {S['b2']}")
            for k in range(2): P(f"buffer_load_dword v2, {t[0]}, {sWS}, {S['t0']} offen sc1\ns_add_u32 {S['t0']}, {S['t0']}, 8192")
    if OPT["stamps"] == 1:
        nm0 = list(C.names); stamp(C, "xflag"); C.role = "E"; stamp_flush(C); C.role = "Q"; C.names = nm0
    P("s_endpgm")
    C.slow.append("\n".join(P.l[l0_:])); del P.l[l0_:]
    vm.q = q0
    b2.drain(99, C.lim)
    poll_check(C, "PF_Q", 3)
    stamp(C, "polled")
    for tt in range(OPT["LA"]): emit(C, aload(C, tt))
    return max(va.hi, phase2(C, b2, 0))

def page_pads(l, w):
    import subprocess, re, os
    def sizes(lines):
        src = '.amdgcn_target "amdgcn-amd-amdhsa--gfx950"\n.text\n' + "\n".join(f"LN{i}:\n{x}" for i, x in enumerate(lines)) + f"\nLN{len(lines)}:\n"
        open("_pp.s", "w").write(src)
        subprocess.run(["clang", "-x", "assembler", "-target", "amdgcn-amd-amdhsa", "-mcpu=gfx950", "-c", "_pp.s", "-o", "_pp.o"], check=True)
        out = subprocess.run(["llvm-objdump", "-t", "_pp.o"], capture_output=True, text=True).stdout
        ad = {}
        for x in out.split("\n"):
            m = re.match(r"([0-9a-f]+) .* LN(\d+)$", x)
            if m: ad[int(m.group(2))] = int(m.group(1), 16)
        return ad
    for role, start in (("F", "R_FFN:"), ("Q", "R_QKV:")):
        i = l.index(f"WARM_{role}:")
        l[i+1:i+1] = ["s_mov_b64 exec, 0", f"s_cmp_eq_u32 {w}, 0", f"s_cbranch_scc1 PAD{role}1", f"s_cmp_eq_u32 {w}, 1", f"s_cbranch_scc1 PAD{role}2",
                      f"s_cmp_eq_u32 {w}, 2", f"s_cbranch_scc1 PAD{role}3", f"s_branch PAD{role}4", f"BACK_{role}:", "s_mov_b64 exec, -1"]
    tmp = l + [f"PAD{r}{k}:" for r in "FQ" for k in range(1, 5)]
    ad = sizes(tmp)
    ins = []
    for role, start in (("F", "R_FFN:"), ("Q", "R_QKV:")):
        a = l.index(start); b = l.index(f"END_{role}:")
        base = ad[a + 1]; k = 1; masked = False; pos = []
        for i in range(a + 1, b):
            if not masked and ad[i] - base + 4 * len(pos) >= 4096 * k: pos.append(i); k += 1
            if l[i].startswith("s_mov_b64 exec,"): masked = not l[i].endswith("-1")
        n = len(pos)
        for k, i in enumerate(pos, 1): ins.append((i, [f"PAD{role}{k}:", f"s_cbranch_execz {f'PAD{role}{k+4}' if k + 4 <= n else f'BACK_{role}'}"]))
        for k in range(n + 1, 5): ins.append((l.index(f"BACK_{role}:"), [f"PAD{role}{k}:"]))
    for i, x in sorted(ins, key=lambda z: -z[0]): l[i:i] = x
    return l

def main():
    C = Ctx(); P = C.P = Prog()
    sa = Alloc("s", 3, 98); S = C.S = {}
    S['w'] = sa()
    C.ptr = sa(16, 4); C.wsp = sa(2); pc = sa(2)
    C.sX, C.sW, C.sWS, C.sB2, C.sBo, C.sD, C.sP = [sa(4) for _ in range(7)]
    C.mW, C.mH, C.mT, C.mU = sa(2), sa(2), sa(2), sa(2)
    C.tm = pc
    for n in "e rbl cb t0 t1 t2 kx kw wm0 xm0 b1 b2 hh half T cb2 bo bo_s bbeg bend sbeg send ri rr tb bm0 tag".split(): S[n] = sa()
    ns = 102
    assert sa.hi <= 90, sa.hi
    C.names = []; C.allnames = {}; C.slow = []
    dead = [C.ptr[i] for i in (2, 3, 4, 5, 6, 7, 8, 9, 10, 11, 14, 15)]
    C.kxs = [S['kx']] + dead[:6]; C.kws = [S['kw']] + dead[6:]
    C.lane = lane = R("v", 0)
    va = Alloc("v", 3, 256)
    t = C.t = [va() for _ in range(7)]
    C.vA = [va(), va()]; C.vB = [va(), va()]; C.rB = [[va(), va()] for _ in range(3)]; C.rP = [[va(), va()] for _ in range(3)]; C.vXd = va()
    C.vF, C.vZ, C.vN, C.vPF, C.vST, C.vFL = [va() for _ in range(6)]
    C.xd = xd = [va() for _ in range(4)]
    C.vbase = va.p
    C.abase = 96
    C.NA = OPT["LA"] + 1
    C.vring = 256 - 8 * C.NA
    C.aring = [[R("v", C.vring + 8*i + 4*j, 4) for j in range(2)] for i in range(C.NA)]
    na = 256
    pre = list(range(NPRE)) + list(range(14, 14 + NPRE))
    order = [i for i in range(28) if i not in pre] + pre
    C.breg = [[R("a", 8*order.index(i), 4), R("a", 8*order.index(i) + 4, 4)] for i in range(28)]
    w = S['w']
    P(f"{NAME}_kernel:")
    stamp(C, "start")
    if OPT["spin"]: P("s_memrealtime s[98:99]")
    P("s_cmp_ge_u32 s2, 256\ns_cbranch_scc1 K_END")
    P(f"s_load_dwordx16 {C.ptr}, s[0:1], 0\ns_load_dwordx2 {C.wsp}, s[0:1], 64")
    P(f"s_getpc_b64 {pc}\ns_lshr_b32 {S['t0']}, s2, 3\ns_lshl_b32 {S['t0']}, {S['t0']}, 11\nv_lshl_add_u32 v1, v0, 3, {S['t0']}\nglobal_load_dword v2, v1, {pc}")
    P(f"v_lshrrev_b32 v1, 6, v0\nv_and_b32 v0, 63, v0\nv_readfirstlane_b32 {w}, v1")
    P(f"s_bfe_u32 {S['e']}, s2, 0x10002\ns_bfe_u32 {S['rbl']}, s2, 0x30003")
    P(f"s_and_b32 {S['t0']}, s2, 3\ns_lshl_b32 {S['t0']}, {S['t0']}, 1\ns_bfe_u32 {S['t1']}, s2, 0x10006\ns_add_u32 {S['cb']}, {S['t0']}, {S['t1']}")
    if OPT["rot"] and not OPT["com"]:
        P(f"s_lshr_b32 {S['t0']}, s2, 7\ns_lshl_b32 {S['t0']}, {S['t0']}, 1\ns_add_u32 {S['t0']}, {S['t0']}, {S['rbl']}\ns_add_u32 {S['t0']}, {S['t0']}, {S['cb']}")
        P(f"s_mul_i32 {S['t1']}, {S['t0']}, 37\ns_lshr_b32 {S['t1']}, {S['t1']}, 8\ns_mul_i32 {S['t1']}, {S['t1']}, 7\ns_sub_u32 {S['t0']}, {S['t0']}, {S['t1']}")
    else:
        P(f"s_mov_b32 {S['t0']}, 0")
    P(f"s_lshl_b32 {S['kx']}, {S['t0']}, 7\ns_mul_i32 {S['t2']}, {S['e']}, 896")
    P(f"s_lshl_b32 {S['t0']}, {S['rbl']}, 7\ns_lshl_b32 {S['t1']}, {w}, 5\ns_add_u32 {S['t0']}, {S['t0']}, {S['t1']}")
    P(f"v_lshrrev_b32 {t[4]}, 3, {lane}\nv_add_u32 {t[0]}, {S['t0']}, {t[4]}\nv_mul_u32_u24 {t[0]}, 1792, {t[0]}")
    P(f"v_lshrrev_b32 {t[1]}, 4, {lane}\nv_and_b32 {t[5]}, 7, {lane}\nv_xor_b32 {t[2]}, {t[1]}, {t[5]}")
    P(f"v_lshl_add_u32 {xd[0]}, {t[2]}, 4, {t[0]}")
    P(f"v_xor_b32 {t[3]}, 64, {xd[0]}\nv_add_u32 {xd[1]}, {8*1792 - 1024}, {t[3]}\nv_add_u32 {xd[2]}, {16*1792 - 2048}, {xd[0]}\nv_add_u32 {xd[3]}, {24*1792 - 3072}, {t[3]}")
    P(f"s_and_b32 {S['hh']}, {w}, 1\ns_lshr_b32 {S['half']}, {w}, 1\ns_lshl_b32 {S['b1']}, {S['hh']}, 2\ns_lshl_b32 {S['xm0']}, {w}, 12")
    P("s_cmp_lt_u32 s2, 128\ns_cbranch_scc1 H_FFN")
    rq = qkv_head(C)
    P("s_branch R_QKV\nH_FFN:")
    rf = ffn_head(C)
    if OPT["pads"]: P("s_branch R_FFN\n.p2align 12")
    P("R_FFN:")
    nv1 = ffn_body(C, rf)
    P("END_F:")
    if OPT["pads"]: P(".p2align 12")
    P("R_QKV:"); C.names = C.names[:1]
    nv2 = qkv_body(C, rq)
    P("END_Q:")
    for x in C.slow: P(x)
    P("K_END:\ns_endpgm")
    l, npad = pad_hazards(P.l)
    if OPT["pads"] == 1: l = page_pads(l, w)
    out = [f"; generated by gen11.py {OPT} (hazard pads {npad})",
           f"; stamps {C.allnames}",
           "; @launch grid=(256,1,1) block=(256,1,1) lds=163840",
           '.amdgcn_target "amdgcn-amd-amdhsa--gfx950"\n.text',
           f".globl {NAME}_kernel\n.p2align 8\n.type {NAME}_kernel,@function"]
    out.extend(l)
    out.append(".fill 8192, 4, 0xbf800000")
    out.append(kernel_desc(f"{NAME}_kernel", max(nv1, nv2), na, ns))
    print("\n".join(out))
main()
```

```python
import sys, math, struct
from asmlib import *

NAME = "recurrent_scan__sliding_local_dilated__dense_activation_relu__prompt"
OPT = dict(rot=1, pro=20, rate=8, LA=5, RX=27, CK=32, gsn=2, TB2=30, R1=16, stamps=0, b2start=9, b2rate=6, qrate=6, mlag=3, TB=30, fe_per=22, pfm=3, rot2=2, post=4, spin=0, xsq=1, qg=9, qc=13, qgs=3, sqs=3, ffl=1, pal=0, pas=1, alr=5, fb='3204', qb='12333', exe=80, qe1=1, qe2=4, qe3=1, atab=11, smooth=3, gm=1, gentle=1, rdf=80, epf=0, rots2=0, otouch=0, fpost=1, wsoff=0, tlb=0, qe=3, pr=5, gsp=2, xst=1, gat=9, npl=2, fine=0, enc='', encwg=0,
           fearly=1, fstart=10, qearly=1, qstart=9, nreg=17, late=0, npre=4, pmv=13, pads=1, wpos=4, gck=3, fepi=0, qsm=5, ntx=0, ntw=0, first=8, com=0, pfs=1, pfd=0, slp=0, rots=1, ahead=2, slack=3, sp2=1, stfirst=1, rotm=7, rotk=1)
for a in sys.argv[1:]:
    k, v = a.split("="); assert k in OPT, k; OPT[k] = int(v) if k not in ("enc", "fb", "qb") else v

f2h = lambda x: hex(struct.unpack("<I", struct.pack("<f", x))[0])
NT2 = 36
A2_KS = 144
RSTD_OFF = 2048 * A2_KS * 32
FLAG_OFF = RSTD_OFF + 8 * 8192
SCOL_OFF = FLAG_OFF + 256 * 128
SROW_OFF = SCOL_OFF + 16 * 16384
XF_OFF = SROW_OFF + 16 * 16384
WS_USED = XF_OFF + 256 * 4 * 3072
STAMP_OFF = 16 << 20
WS_REC = (STAMP_OFF + (1 << 20)) if OPT["stamps"] else WS_USED
assert (OPT["wsoff"] << 20) + WS_REC <= 256 << 20
XBYTES = 2048 * 896
NTX = " nt" if OPT["ntx"] else ""; NTW = " nt" if OPT["ntw"] else ""
ONES = "0x3f803f80"; NINF = "0xff800000"; BIG = "0x80000000"
NB = 22
NPRE = OPT["npre"]
assert OPT["late"] + NPRE >= 3 and NPRE % 2 == 0
REL = {"F": [12, 12, 13, 13, 10, 10, 11, 11, 13, 13, 9, 9, 11, 11] + [-1] * 6,
       "Q": [20, 20, 20, 9, 11, 11, 12, 12, 20, 20, 10, 11, 11, -1] + [-1] * 6}
XCH = 19
SPIN_MAX = 1 << 16

def srd(P, d, lo, hi, n):
    P(f"s_mov_b32 {d[0]}, {lo}\ns_mov_b32 {d[1]}, {hi}\ns_mov_b32 {d[2]}, {n}\ns_mov_b32 {d[3]}, 0x20000")

class Cnt:
    def __init__(self, name, mx): self.q = []; self.name = name; self.mx = mx
    def issue(self, tag): self.q.append(tag)
    def cnt(self, pred):
        last = -1
        for i, t in enumerate(self.q):
            if pred(t): last = i
        return min(len(self.q) - 1 - last, self.mx)
    def wait(self, pred): return f"s_waitcnt {self.name}({self.cnt(pred)})"

class Ctx: pass
class Lazy:
    def __init__(self, fn, ty="s"): self.fn = fn; self.ty = ty
def emit(C, seq):
    for x in seq: C.P(x.fn() if isinstance(x, Lazy) else x)
def vop(C, tag, text):
    def f():
        C.vm.issue(tag); return text
    return Lazy(f, types_of(text))
def lop(C, tag, text):
    def f():
        C.lg.issue(tag); return text
    return Lazy(f, types_of(text))

def stamp(C, name):
    if OPT["enc"] == name: C.P("s_memrealtime s[100:101]")
    if not OPT["stamps"] or (OPT["stamps"] == 3 and name not in ("start", "end")): return
    i = len(C.names); C.names.append(name)
    if i and OPT["fine"] == 1 and name in ("tb",): C.P("s_nop 15\ns_nop 15")
    if i: C.P(f"v_writelane_b32 {C.vST}, s{90 + 2*((i-1)&1)}, {i-1}")
    C.P(f"{'s_memrealtime' if OPT['stamps'] != 2 else 's_memtime'} s[{90 + 2*(i&1)}:{91 + 2*(i&1)}]")

def stamp_flush(C):
    if not OPT["stamps"]: return
    P, S = C.P, C.S
    i = len(C.names)
    P(f"s_waitcnt lgkmcnt(0)\nv_writelane_b32 {C.vST}, s{90 + 2*((i-1)&1)}, {i-1}")
    P(f"s_lshl_b32 {S['t0']}, s2, 2\ns_add_u32 {S['t0']}, {S['t0']}, {S['w']}\ns_lshl_b32 {S['t0']}, {S['t0']}, 8\ns_add_u32 {S['t0']}, {S['t0']}, {STAMP_OFF}")
    P(f"v_lshl_add_u32 v1, v0, 2, {S['t0']}\nbuffer_store_dword {C.vST}, v1, {C.sWS}, 0 offen")
    C.allnames[C.role] = list(C.names)

def itype(line):
    op = line.split()[0]
    if op.endswith(":"): return ""
    if op.startswith("ds_write"): return "W"
    if op.startswith("ds_"): return "t"
    if op.startswith(("buffer_", "global_")): return "m"
    if op.startswith(("v_exp", "v_rcp", "v_rsq", "v_permlane")): return "T"
    if op.startswith("v_"): return "v"
    return "s"
def types_of(it):
    if isinstance(it, Lazy): return it.ty
    return "".join(itype(x) for x in it.split("\n"))
def gap_end(ty):
    t = 4; prev = ""; pstart = 0
    for c in ty:
        if c == "s": t += 4
        elif c in "vT": t = max(t, 8) + (4 if c == "v" else 8)
        else:
            st = t
            if prev in ("v", "T"): st = t + 4
            elif prev in ("t", "m", "W") and (prev == "m") != (c == "m"): st = pstart + 4
            pstart = st; t = st + (8 if c != "W" else 28)
        prev = c
    return t
def spread(main, *streams, clk=16):
    n = len(main)
    qs = []
    for items, a, b in streams:
        k = len(items)
        qs.append([(a * n + (i + 0.5) * (b - a) * n / max(k, 1), it, types_of(it)) for i, it in enumerate(items)])
    out = []
    for g, m in enumerate(main):
        out.append(m)
        prevW = g > 0 and "W" in ty
        ty = "".join(itype(x) for x in m.split("\n")[1:])
        while True:
            cand = [q for q in qs if q and (q[0][0] <= g + OPT["ahead"] or g == n - 1)]
            last_m0 = isinstance(out[-1], str) and " m0," in out[-1].split("\n")[-1]
            fit = [q for q in cand if gap_end(ty + ("s" if last_m0 and q[0][2][:1] == "m" else "") + q[0][2]) <= clk]
            if prevW: fit = [q for q in fit if "W" not in q[0][2]]
            if not fit:
                fit = [q for q in cand if g == n - 1 or (ty == "" and q[0][0] <= g + 1 and not (prevW and "W" in q[0][2])) or q[0][0] <= g - OPT["slack"]]
                if not fit: break
            pr = lambda q: ({"t": 0, "m": 0, "W": 0, "s": 1}.get(q[0][2][:1], 2) if q[0][0] <= g + 1 else 3, q[0][0])
            q = min(fit, key=pr)
            out.append(q[0][1]); ty += q[0][2]; q.pop(0)
    return out

def adv(reg, step, wrap, start=0):
    return f"s_add_u32 {reg}, {reg}, {step}\ns_cmp_eq_u32 {reg}, {wrap}\ns_cselect_b32 {reg}, {start}, {reg}"

def schedule(items, pro, rate, nsteps):
    sched = {s: [] for s in range(-1, nsteps)}
    i = 0
    for s in range(-1, nsteps):
        cap = pro if s == -1 else (rate if (s < OPT["smooth"] or not OPT["smooth"]) else 6)
        n = 0
        while i < len(items) and items[i]["free"] <= s and (n < cap or items[i]["need"] - 2 <= s):
            sched[s].append(i); i += 1; n += 1
    assert i == len(items)
    return sched

class B2:
    def __init__(self, C):
        self.C = C; self.loaded = 0
        rel = REL[C.role]
        self.pend = sorted((rel[i], i) for i in range(20) if i != XCH)
        self.free = []; self.ch = {}
        self.xchunk = XCH
    def release(self, step):
        while self.pend and self.pend[0][0] <= step: self.free.append(self.pend.pop(0)[1])
    def lgkm(self): pass
    def moves(self, *a): return []
    def win(self, t):
        b = self.ch[t] * 8192
        return (b >> 16, b & 0xffff)
    def dma(self, t):
        C = self.C; S = C.S
        if t < 14: sB = C.sB2; so = S['bo']; post = f"s_add_u32 {so}, {so}, 14336" if (t & 1) == 0 else adv(so, 14336, S['bend'], S['bbeg'])
        else: sB = C.sBo; so = S['bo_s']; post = f"s_add_u32 {so}, {so}, {16 * 896}" if (t & 1) == 0 else adv(so, 12 * 896, S['send'], S['sbeg'])
        out = [f"s_add_u32 m0, {S['bm0']}, {self.ch[t] * 8192}"]
        for j in range(2):
            out.append(vop(C, ("b2", t), f"buffer_load_dwordx4 {C.vB[j]}, {sB}, {so} offen offset:{j*1024} lds"))
        pl = post.split("\n")
        out.append(pl[0])
        if len(pl) > 1: out.append("\n".join(pl[1:]))
        return out
    def tr(self, t, dst, regs):
        win, off = self.win(t); rb = regs[win]
        o = []
        for f in range(2):
            o.append(f"ds_read_b64_tr_b16 {dst[f][0:2]}, {rb[f]} offset:{off}")
            o.append(f"ds_read_b64_tr_b16 {dst[f][2:4]}, {rb[f]} offset:{off + 512}")
        return o
    def next_load(self, lim=NB):
        if self.loaded < lim and self.free:
            self.ch[self.loaded] = self.free.pop(0); self.loaded += 1
            return self.dma(self.loaded - 1)
        return None
    def loads(self, n, lim=NB):
        o = []
        for _ in range(n):
            x = self.next_load(lim)
            if x is None: break
            o.extend(x)
        return o
    def drain(self, n, lim):
        emit(self.C, self.loads(n, lim))

def p2_setup(C):
    P, S, t, lane, w = C.P, C.S, C.t, C.lane, C.S['w']
    P(f"s_bfe_u32 {S['t0']}, s2, 0x20001\ns_lshl_b32 {S['t0']}, {S['t0']}, 2\ns_bfe_u32 {S['ri']}, s2, 0x20003\ns_add_u32 {S['t0']}, {S['t0']}, {S['ri']}\ns_lshl_b32 {S['t0']}, {S['t0']}, 1")
    P(f"s_and_b32 {S['t2']}, s2, 1\ns_add_u32 {S['T']}, {S['t0']}, {S['t2']}\ns_lshr_b32 {S['cb2']}, s2, 5")
    G = max(OPT["rot2"], 1)
    tab = sum(((c % G) * 7 // G) << (4 * c) for c in range(8))
    P(f"s_lshl_b32 {S['t0']}, {S['cb2']}, 2\ns_lshr_b32 {S['t0']}, {tab}, {S['t0']}\ns_and_b32 {S['t0']}, {S['t0']}, 15\ns_lshl_b32 {S['t1']}, {S['ri']}, 1\ns_add_u32 {S['t0']}, {S['t0']}, {S['t1']}")
    P(f"s_sub_u32 {S['t1']}, {S['t0']}, 7\ns_cmp_ge_u32 {S['t0']}, 7\ns_cselect_b32 {S['rr']}, {S['t1']}, {S['t0']}")
    if OPT["rots2"]: P(f"s_lshl_b32 {S['t0']}, {S['cb2']}, 1\ns_add_u32 {S['ri']}, {S['ri']}, {S['t0']}\ns_and_b32 {S['ri']}, {S['ri']}, 3")
    P(f"s_lshl_b32 {S['t2']}, {S['t2']}, 2\ns_add_u32 {S['t2']}, {S['t2']}, {w}")
    P(f"s_mul_i32 {S['bbeg']}, {S['t2']}, {14*14336}\ns_add_u32 {S['bend']}, {S['bbeg']}, {14*14336}\ns_mul_i32 {S['t1']}, {S['rr']}, {2*14336}\ns_add_u32 {S['bo']}, {S['bbeg']}, {S['t1']}")
    P(f"s_mul_i32 {S['sbeg']}, {w}, {112*896}\ns_add_u32 {S['send']}, {S['sbeg']}, {112*896}\ns_mul_i32 {S['t1']}, {S['ri']}, {28*896}\ns_add_u32 {S['bo_s']}, {S['sbeg']}, {S['t1']}")
    P(f"s_xor_b32 {S['t0']}, {S['T']}, 1\ns_mul_i32 {S['t0']}, {S['t0']}, {A2_KS}\ns_add_u32 {S['t0']}, {S['t0']}, 32\ns_lshl_b32 {S['t0']}, {S['t0']}, 1\ns_add_u32 {S['t0']}, {S['t0']}, {S['hh']}\ns_lshl_b32 {S['t0']}, {S['t0']}, 10")
    P(f"v_lshl_add_u32 {t[0]}, {lane}, 4, {S['t0']}\ns_mul_i32 {S['t1']}, {S['t2']}, {14*2048}\nv_add_u32 {C.vA[0]}, {S['t1']}, {t[0]}\ns_xor_b32 {S['t1']}, {S['t2']}, 1\ns_mul_i32 {S['t1']}, {S['t1']}, {14*2048}\nv_add_u32 {C.vA[1]}, {S['t1']}, {t[0]}")
    P(f"v_lshrrev_b32 {t[0]}, 3, {lane}\nv_mul_u32_u24 {t[0]}, 896, {t[0]}\nv_bfe_u32 {t[1]}, {lane}, 4, 1\nv_lshlrev_b32 {t[1]}, 2, {t[1]}\nv_and_b32 {t[2]}, 7, {lane}\nv_xor_b32 {t[1]}, {t[1]}, {t[2]}")
    P(f"s_lshl_b32 {S['t1']}, {S['cb2']}, 7\nv_lshl_add_u32 {t[0]}, {t[1]}, 4, {t[0]}\nv_add_u32 {C.vB[0]}, {S['t1']}, {t[0]}\nv_add_u32 {C.vB[1]}, {7168 - 1024}, {C.vB[0]}")
    P(f"s_lshl_b32 {S['bm0']}, {w}, 11")
    P(f"s_cmp_lt_u32 s2, 224\ns_cselect_b32 {S['t0']}, {1792*896}, 0\ns_cselect_b32 {S['t1']}, {448*896}, 0")
    srd(P, C.sB2, C.ptr[10], C.ptr[11], S['t0'])
    srd(P, C.sBo, C.ptr[4], C.ptr[5], S['t1'])
    P(f"s_lshl_b32 {S['t1']}, {S['half']}, 6")
    P(f"v_bfe_u32 {t[0]}, {lane}, 2, 2\nv_lshrrev_b32 {t[1]}, 5, {lane}\nv_lshl_add_u32 {t[0]}, {t[1]}, 3, {t[0]}\nv_lshlrev_b32 {t[0]}, 7, {t[0]}")
    P(f"v_bfe_u32 {t[1]}, {lane}, 3, 1\nv_lshl_add_u32 {t[0]}, {t[1]}, 6, {t[0]}\nv_bfe_u32 {t[1]}, {lane}, 4, 1\nv_lshl_add_u32 {t[0]}, {t[1]}, 5, {t[0]}")
    P(f"v_and_b32 {t[1]}, 3, {lane}\nv_lshl_add_u32 {t[0]}, {t[1]}, 3, {t[0]}\nv_xor_b32 {t[0]}, {S['t1']}, {t[0]}")
    P(f"v_add_u32 {C.rB[0][0]}, {S['bm0']}, {t[0]}\nv_xor_b32 {C.rB[0][1]}, 64, {C.rB[0][0]}")
    for i in (1, 2): P(f"v_add_u32 {C.rB[i][0]}, {65536*i}, {C.rB[0][0]}\nv_add_u32 {C.rB[i][1]}, {65536*i}, {C.rB[0][1]}")
    for i in range(3):
        for j in range(2): P(f"v_xor_b32 {C.rP[i][j]}, 2048, {C.rB[i][j]}")
    P(f"s_and_b32 {S['t0']}, {S['T']}, 15\ns_mul_i32 {S['t0']}, {S['t0']}, {64*1792}\ns_lshr_b32 {S['t1']}, {S['T']}, 4\ns_mul_i32 {S['t1']}, {S['t1']}, 896\ns_add_u32 {S['t0']}, {S['t0']}, {S['t1']}")
    P(f"s_lshl_b32 {S['t1']}, {S['cb2']}, 7\ns_add_u32 {S['tb']}, {S['t0']}, {S['t1']}\ns_mul_i32 {S['t0']}, {w}, {16*1792}\ns_add_u32 {S['t0']}, {S['t0']}, {S['tb']}")
    P(f"v_lshrrev_b32 {t[0]}, 3, {lane}\nv_and_b32 {t[1]}, 7, {lane}\nv_xor_b32 {t[1]}, {t[0]}, {t[1]}\nv_mul_u32_u24 {t[0]}, 1792, {t[0]}\nv_lshl_add_u32 {t[0]}, {t[1]}, 4, {t[0]}\nv_add_u32 {C.vXd}, {S['t0']}, {t[0]}")
    P(f"s_lshr_b32 {S['t0']}, {S['T']}, 4\ns_lshl_b32 {S['t0']}, {S['t0']}, 2\ns_bfe_u32 {S['t1']}, {S['T']}, 0x30001\ns_lshl_b32 {S['t1']}, {S['t1']}, 3\ns_add_u32 {S['t0']}, {S['t0']}, {S['t1']}")
    P(f"s_lshl_b32 {S['t0']}, {S['t0']}, 7\ns_add_u32 {S['t0']}, {S['t0']}, {FLAG_OFF}\nv_and_b32 {t[0]}, 1, {lane}\nv_lshl_add_u32 {C.vF}, {t[0]}, 13, {S['t0']}")
    P(f"s_lshr_b32 {S['t2']}, {S['t2']}, 1\ns_lshl_b32 {S['t2']}, {S['t2']}, 7\ns_lshl_b32 {S['t1']}, {w}, 7\ns_add_u32 {S['t1']}, {S['t1']}, 16384")
    P(f"v_mov_b32 {t[0]}, {S['t2']}\nv_mov_b32 {t[1]}, {S['t1']}\nv_cmp_lt_u32 vcc, 1, {lane}\nv_cndmask_b32 {t[0]}, {t[0]}, {t[1]}, vcc")
    P(f"v_xor_b32 {t[1]}, 128, {t[1]}\nv_cmp_lt_u32 vcc, 3, {lane}\nv_cndmask_b32 {t[0]}, {t[0]}, {t[1]}, vcc\nv_add_u32 {C.vF}, {C.vF}, {t[0]}")
    P(f"v_mov_b32 {t[0]}, {BIG}\nv_cmp_lt_u32 vcc, 5, {lane}\nv_cndmask_b32 {C.vF}, {C.vF}, {t[0]}, vcc")
    srd(P, C.sD, C.ptr[14], C.ptr[15], 256)
    P(f"v_mov_b32 {C.vZ}, 0")
    if OPT["pfm"] == 3 and C.role == "Q":
        srd(P, C.sP, C.ptr[10], C.ptr[11], 1792 * 896)
        P(f"s_sub_u32 {S['t0']}, s2, 224\ns_lshl_b32 {S['t0']}, {S['t0']}, 2\ns_add_u32 {S['t0']}, {S['t0']}, {w}\ns_lshl_b32 {S['t0']}, {S['t0']}, 13\ns_cmp_lt_u32 s2, 224\ns_cselect_b32 {S['t0']}, {BIG}, {S['t0']}")
        P(f"v_lshl_add_u32 {C.vPF}, {lane}, 7, {S['t0']}")
        P(f"s_lshl_b32 {S['t0']}, {S['e']}, 3\ns_add_u32 {S['t0']}, {S['t0']}, {S['rbl']}\ns_and_b32 {S['t1']}, {S['cb']}, 1\ns_lshl_b32 {S['t1']}, {S['t1']}, 4\ns_add_u32 {S['t0']}, {S['t0']}, {S['t1']}\ns_lshl_b32 {S['t0']}, {S['t0']}, 2\ns_add_u32 {S['t0']}, {S['t0']}, {w}")
        P(f"s_add_u32 {S['t1']}, {S['t0']}, 128\ns_sub_u32 {S['t2']}, {S['t0']}, 68\ns_cmp_lt_u32 {S['t0']}, 68\ns_cselect_b32 {S['t0']}, {S['t1']}, {S['t2']}")
        P(f"s_cselect_b32 {C.sP2[0]}, {C.ptr[10]}, {C.ptr[4]}\ns_cselect_b32 {C.sP2[1]}, {C.ptr[11]}, {C.ptr[5]}\ns_mov_b32 {C.sP2[2]}, {448*896}\ns_cselect_b32 {C.sP2[2]}, {1792*896}, {C.sP2[2]}\ns_mov_b32 {C.sP2[3]}, 0x20000")
        P(f"s_lshl_b32 {S['t0']}, {S['t0']}, 13\ns_add_u32 {S['t1']}, {S['cb']}, 1\ns_and_b32 {S['t1']}, {S['t1']}, 7\ns_cmp_lt_u32 {S['t1']}, 2\ns_cselect_b32 {S['t0']}, {S['t0']}, {BIG}")
        P(f"v_lshl_add_u32 {C.vFL}, {lane}, 7, {S['t0']}")
    elif OPT["pfm"] and C.role == "Q":
        if OPT["pfm"] == 2: base, lpw = 224, 128
        else: base, lpw = 128, 32
        nw2 = 12544 // lpw
        P(f"s_sub_u32 {S['t0']}, s2, {base}\ns_lshl_b32 {S['t0']}, {S['t0']}, 2\ns_add_u32 {S['t0']}, {S['t0']}, {w}\ns_sub_u32 {S['t1']}, {S['t0']}, {nw2}\ns_cmp_lt_u32 {S['t0']}, {nw2}\ns_cselect_b32 {S['t0']}, {S['t0']}, {S['t1']}")
        P(f"s_cselect_b32 {C.sP[0]}, {C.ptr[10]}, {C.ptr[4]}\ns_cselect_b32 {C.sP[1]}, {C.ptr[11]}, {C.ptr[5]}\ns_mov_b32 {C.sP[2]}, {448*896}\ns_cselect_b32 {C.sP[2]}, {1792*896}, {C.sP[2]}\ns_mov_b32 {C.sP[3]}, 0x20000")
        P(f"s_cmp_lt_u32 s2, {base}\ns_cselect_b32 {C.sP[2]}, 0, {C.sP[2]}\ns_cselect_b32 {S['t0']}, 0, {S['t0']}")
        P(f"s_mul_i32 {S['t0']}, {S['t0']}, {lpw*128}\nv_lshl_add_u32 {C.vPF}, {lane}, {8 if lpw == 128 else 6}, {S['t0']}")

def a_tables(C):
    S = C.S; o = [f"s_lshl_b32 {C.kxs[0]}, {S['rr']}, 12"]
    for d in range(1, 7): o += [f"s_add_u32 {C.kxs[d]}, {C.kxs[d-1]}, 4096", f"s_cmp_eq_u32 {C.kxs[d]}, {7*4096}\ns_cselect_b32 {C.kxs[d]}, 0, {C.kxs[d]}"]
    o.append(f"s_lshl_b32 {C.kws[1]}, {S['ri']}, 12")
    for d in range(1, 4): o += [f"s_add_u32 {C.kws[1+d]}, {C.kws[d]}, 4096", f"s_and_b32 {C.kws[1+d]}, {C.kws[1+d]}, 0x3fff"]
    return o

def run_loop(C, emit_item, sched, reads, mfmas, b2, early, estart, nsteps=14, hook=None, nonce_at=6, rate2=8):
    P, S, vm = C.P, C.S, C.vm
    if OPT["pfm"] == 2 and C.role == "Q" and OPT["pfs"] < 0:
        for j in range(2): vm.issue(("pf", 0)); P(f"buffer_load_dword v2, {C.vPF}, {C.sP}, 0 offen offset:{128*j}")
    P(vm.wait(lambda q: q[0] == "d" and q[1] <= 0) + " lgkmcnt(0)")
    P("s_barrier")
    stamp(C, "d0")
    P.ext(reads(0))
    hist = {}
    for s in range(nsteps):
        post = C.role == "F" and OPT["fpost"]
        pmv = 99 if post else OPT["pmv"]
        pm = NPRE and s == pmv
        if pm: assert b2.loaded >= NPRE
        if s + 1 < nsteps or pm: P(vm.wait(lambda q: (q[0] == "d" and q[1] <= s + 1) or (pm and q[0] == "b2" and q[1] < NPRE)) + " lgkmcnt(0)")
        else: P("s_waitcnt lgkmcnt(0)")
        P("s_barrier")
        if s in (1, 2, 4, 7, 10, 13) or (OPT["fine"] == 2 and s >= 1): stamp(C, f"s{s}")
        m = mfmas(s)
        rd = reads(s + 1) if s + 1 < nsteps else []
        dm = []; C.m0 = None
        for i in sched[s]: dm.extend(emit_item(i))
        if OPT["pfm"] == 2 and C.role == "Q":
            for j in range(2):
                if s == OPT["pfs"] + j * OPT["pfd"]: dm = [vop(C, ("pf", 0), f"buffer_load_dword v2, {C.vPF}, {C.sP}, 0 offen offset:{128*j}")] + dm
        if OPT["pfm"] == 3 and C.role == "Q" and s == OPT["pfs"]:
            dm = [vop(C, ("pf", 0), f"buffer_load_dword v2, {C.vPF}, {C.sP}, 0 offen"), vop(C, ("pf", 0), f"buffer_load_dword v2, {C.vFL}, {C.sP2}, 0 offen")] + dm
        if OPT["pfm"] == 4 and C.role == "Q" and s == OPT["pfs"]:
            dm = dm + [vop(C, ("pf", 0), f"buffer_load_dword v2, {C.vPF}, {C.sP}, 0 offen")]
        if OPT["pal"] and s == OPT["pas"]: dm = dm + [vop(C, ("pa", 0), x) for x in C.pal]
        if s == nonce_at: dm.insert(0, vop(C, ("nonce", 0), f"buffer_load_dword {C.vN}, {C.vZ}, {C.sD}, 0 offen sc1"))
        mv = []
        b2.release(s)
        if NPRE and s == pmv + 1: b2.free += [b2.ch[t_] for t_ in range(NPRE)]
        if NPRE and s == pmv - 1 and not post:
            assert b2.loaded >= NPRE
            mv = [Lazy(lambda: vm.wait(lambda q: q[0] == "b2" and q[1] < NPRE))] + [x for t_ in range(NPRE) for x in b2.tr(t_, C.breg[t_], C.rB)]
        if pm and not post: mv = [x for t_ in range(NPRE) for x in b2.tr(t_, C.breg[14 + t_], C.rP)]
        plan = OPT["fb"] if C.role == "F" else OPT["qb"]
        if plan:
            if s >= nsteps - len(plan): dm.extend(b2.loads(int(plan[s - nsteps + len(plan)]), C.lim))
        elif s >= estart:
            n = sum(1 for x in dm if isinstance(x, Lazy))
            k = max((rate2 + 1 - n) // 2, early) if s >= OPT["b2start"] else early
            dm.extend(b2.loads(k, C.lim))
        hist[s] = b2.loaded
        ex = hook(s) if hook else []
        if s == OPT["atab"]:
            assert not any(sched[k_] for k_ in range(s, nsteps))
            mv = mv + a_tables(C)
        emit(C, spread(m, (rd, 0, OPT["rdf"] / 100), (dm, 0, 0.95), (mv, 0.3, 0.9), (ex, 0.05 if (C.role == "F" or OPT["xsq"]) else 0.33, OPT["exe"] / 100 if C.role == "F" else 1.0)))
    C.hist = hist
    stamp(C, "loopend")

def get_tag(C):
    P, S, role = C.P, C.S, C.role
    P(C.vm.wait(lambda q: q[0] == "nonce"))
    P(f"v_readfirstlane_b32 {S['tag']}, {C.vN}\ns_cmp_eq_u32 {S['tag']}, 0\ns_cbranch_scc1 TAGSL_{role}\nTAGOK_{role}:")
    C.slow.append(f"TAGSL_{role}:\ns_mov_b32 {S['t2']}, 0\nTAGLP_{role}:\nbuffer_load_dword {C.vN}, {C.vZ}, {C.sD}, 0 offen sc1\ns_waitcnt vmcnt(0)\nv_readfirstlane_b32 {S['tag']}, {C.vN}\ns_add_u32 {S['t2']}, {S['t2']}, 1\n"
                  f"s_cmp_ge_u32 {S['t2']}, {SPIN_MAX}\ns_cbranch_scc1 TAGOK_{role}\ns_cmp_eq_u32 {S['tag']}, 0\ns_cbranch_scc1 TAGLP_{role}\ns_branch TAGOK_{role}")

def flag_store(C):
    P, S, t = C.P, C.S, C.t
    P(f"s_lshl_b32 {S['t0']}, s2, 7\ns_add_u32 {S['t0']}, {S['t0']}, {FLAG_OFF}\ns_cmp_eq_u32 {S['w']}, 0\ns_cselect_b32 {S['t0']}, {S['t0']}, {BIG}")
    if OPT["ffl"]:
        P(f"v_lshl_add_u32 {t[5]}, {C.lane}, 2, {S['t0']}\nv_mov_b32 {t[6]}, {S['tag']}\ns_mov_b32 exec_hi, 0\nbuffer_store_dword {t[6]}, {t[5]}, {C.sWS}, 0 offen sc1\ns_mov_b64 exec, -1")
    else:
        P(f"v_mov_b32 {t[5]}, {S['t0']}\nv_mov_b32 {t[6]}, {S['tag']}\ns_mov_b64 exec, 1\nbuffer_store_dword {t[6]}, {t[5]}, {C.sWS}, 0 offen sc1\ns_mov_b64 exec, -1")
    C.vm.issue(("flag", 0))

def poll_req(C): return vop(C, ("pl", 0), f"buffer_load_dword {C.vFL}, {C.vF}, {C.sWS}, 0 offen sc1")
def poll_check(C, label, mask, first=True):
    P, S = C.P, C.S
    loop = (f"s_mov_b32 {S['t2']}, 0\n{label}:\nbuffer_load_dword {C.vFL}, {C.vF}, {C.sWS}, 0 offen sc1\ns_waitcnt vmcnt(0)\nv_cmp_eq_u32 vcc, {S['tag']}, {C.vFL}\ns_add_u32 {S['t2']}, {S['t2']}, 1\n"
            f"s_cmp_ge_u32 {S['t2']}, {SPIN_MAX}\ns_cbranch_scc1 {label}_X\ns_and_b32 {S['t0']}, vcc_lo, {mask}\ns_cmp_lg_u32 {S['t0']}, {mask}\ns_cbranch_scc1 {label}")
    if OPT["slp"]: loop = loop.replace(f"{label}:\nbuffer_load", f"s_branch {label}_F\n{label}:\ns_sleep {OPT['slp']}\n{label}_F:\nbuffer_load") if not first else loop.replace(f"{label}:\nbuffer_load", f"{label}:\ns_sleep {OPT['slp']}\nbuffer_load")
    if first:
        P(C.vm.wait(lambda q: q[0] == "pl"))
        P(f"v_cmp_eq_u32 vcc, {S['tag']}, {C.vFL}\ns_and_b32 {S['t0']}, vcc_lo, {mask}\ns_cmp_lg_u32 {S['t0']}, {mask}\ns_cbranch_scc1 {label}_S\n{label}_X:")
        C.slow.append(f"{label}_S:\n{loop}\ns_branch {label}_X")
    else:
        P(loop + f"\n{label}_X:")

def xtile(C):
    S = C.S
    o = [f"s_mov_b32 {C.sX[0]}, {C.ptr[0]}\ns_mov_b32 {C.sX[1]}, {C.ptr[1]}\ns_mov_b32 {C.sX[2]}, {XBYTES}\ns_mov_b32 {S['t1']}, {8*1792 - 1024}\ns_add_u32 m0, {S['bm0']}, {XCH*8192}"]
    return o + [vop(C, ("e", 0), f"buffer_load_dwordx4 {C.vXd}, {C.sX}, {S['t1'] if j else 0} offen offset:{1024*j} lds") for j in range(2)] + \
        ([vop(C, ("pf", 0), f"global_load_dword v2, {C.vZ}, {C.ptr[12:14]}")] if OPT["otouch"] else [])

def aload(C, tt):
    if tt < 28: seg = tt // 7; so = C.kxs[tt % 7]
    else: seg = 4 + (tt - 28) // 4; so = C.kws[1 + (tt - 28) % 4]
    return [vop(C, ("a", tt), f"buffer_load_dwordx4 {C.aring[tt % C.NA][j]}, {C.vA[seg]}, {C.sWS}, {so} offen offset:{2048*j} sc1") for j in range(2)]

def phase2(C, b2, flag_at):
    P, S, vm, t, lane, w = C.P, C.S, C.vm, C.t, C.lane, C.S['w']
    role = C.role; LA = OPT["LA"]; NA = C.NA; aring = C.aring
    lg = C.lg = Cnt("lgkmcnt", 15)
    va = Alloc("v", C.vbase, C.vring)
    acc = [[va(16, 4) for _ in range(2)] for _ in range(3)]
    G = va(12, 4)
    xv = [va(2) for _ in range(4)]; kk = va(2); vO = va(); vL = va(); Rr = va(8, 4)
    rstd, k1 = kk[0], kk[1]
    vXr = va(); vR = va(); vGs = va(); vGr = va(); wad = va(); rad = va()
    rP = C.rP
    C.vA = C.vA[:2] + [va() for _ in range(4)]
    breg = C.breg
    sb = [[[R("a", 224 + 16*p + 8*j + 4*f, 4) for f in range(2)] for j in range(2)] for p in range(2)]
    sO = C.sW
    n_, hf = t[3], t[4]
    su = []
    def U(s): su.extend(s.split("\n"))
    U(f"v_and_b32 {n_}, 31, {lane}\nv_lshrrev_b32 {hf}, 5, {lane}\nv_lshlrev_b32 {vL}, 4, {lane}")
    U(f"s_and_b32 {S['b1']}, {S['T']}, 1\ns_mul_i32 {S['b1']}, {S['b1']}, {2*A2_KS*2048}\ns_sub_u32 {S['b1']}, {S['b1']}, {A2_KS*2048}\nv_add_u32 {C.vA[2]}, {S['b1']}, {C.vA[0]}\nv_add_u32 {C.vA[3]}, {S['b1']}, {C.vA[1]}")
    U(f"s_mul_i32 {S['b1']}, {S['T']}, {2*A2_KS}\ns_add_u32 {S['b1']}, {S['b1']}, {S['hh']}\ns_lshl_b32 {S['b1']}, {S['b1']}, 10\nv_add_u32 {t[0]}, {S['b1']}, {vL}")
    U(f"s_lshl_b32 {S['b1']}, {w}, 14\nv_add_u32 {C.vA[4]}, {S['b1']}, {t[0]}\ns_xor_b32 {S['b1']}, {S['b1']}, 16384\nv_add_u32 {C.vA[5]}, {S['b1']}, {t[0]}")
    U(f"s_lshl_b32 {S['b1']}, s2, 2\ns_add_u32 {S['b1']}, {S['b1']}, {w}\ns_mul_i32 {S['b2']}, {S['b1']}, 3072\ns_add_u32 {S['b2']}, {S['b2']}, {XF_OFF}\nv_add_u32 {vGr}, {S['b2']}, {vL}")
    U(f"s_xor_b32 {S['b2']}, {S['b1']}, 4\ns_mul_i32 {S['b2']}, {S['b2']}, 3072\ns_add_u32 {S['b2']}, {S['b2']}, {XF_OFF}\nv_add_u32 {vGs}, {S['b2']}, {vL}")
    for g in range(3): U(f"v_mov_b32 {G[4*g+3]}, {S['tag']}")
    U(f"s_mov_b32 {sO[0]}, {C.ptr[12]}\ns_mov_b32 {sO[1]}, {C.ptr[13]}\ns_mov_b32 {sO[2]}, {XBYTES}")
    U(f"s_lshl_b32 {S['b2']}, {S['hh']}, 12\ns_add_u32 {S['b2']}, {S['b2']}, {XCH*8192}")
    U(f"v_lshlrev_b32 {t[0]}, 7, {n_}\nv_lshl_add_u32 {t[0]}, {hf}, 3, {t[0]}")
    U(f"s_lshl_b32 {S['wm0']}, {S['half']}, 2\nv_and_b32 {t[1]}, 7, {lane}\nv_xor_b32 {t[1]}, {S['wm0']}, {t[1]}\nv_lshl_add_u32 {t[0]}, {t[1]}, 4, {t[0]}\nv_add_u32 {vXr}, {S['b2']}, {t[0]}")
    U(f"s_mul_i32 {S['b2']}, {S['hh']}, {32*1792}\ns_add_u32 {S['b2']}, {S['b2']}, {S['tb']}\ns_lshl_b32 {S['wm0']}, {S['half']}, 6\ns_add_u32 {S['b2']}, {S['b2']}, {S['wm0']}")
    U(f"v_mul_u32_u24 {t[0]}, 1792, {n_}\nv_add_u32 {t[0]}, {S['b2']}, {t[0]}\nv_lshl_add_u32 {vO}, {hf}, 4, {t[0]}")
    U(f"s_lshl_b32 {S['b2']}, {S['T']}, 1\ns_add_u32 {S['b2']}, {S['b2']}, {S['hh']}\ns_lshl_b32 {S['b2']}, {S['b2']}, 7\ns_lshl_b32 {S['wm0']}, {w}, 14\ns_add_u32 {S['b2']}, {S['b2']}, {S['wm0']}\ns_add_u32 {S['b2']}, {S['b2']}, {RSTD_OFF}")
    U(f"v_lshl_add_u32 {vR}, {n_}, 2, {S['b2']}")
    assert b2.loaded >= 14
    w2ch = [b2.ch[t_] for t_ in range(NPRE, 14)]
    wn = max(range(3), key=lambda k: sum(1 for c in w2ch if c >> 3 == k))
    pch = [c for c in w2ch if c >> 3 == wn][:4]; assert len(pch) == 4
    U(f"s_add_u32 {S['b2']}, {S['bm0']}, {65536*wn}\nv_add_u32 {wad}, {S['b2']}, {vL}\nv_xor_b32 {rad}, 4096, {wad}")
    slot = lambda i, a: ((pch[2*i + (a >> 1)] * 8192) & 0xffff) + (a & 1) * 1024
    NSU = 13
    F, Fp = acc[1]; Sv, Sp = acc[2]; E, X = acc[0]
    gd = lambda k: G[4*(k // 3) + k % 3]
    gw = [lop(C, ("gw", 0), f"ds_write_b128 {wad}, {X[4*a:4*a+4]} offset:{slot(1, a)}") for a in range(4)]
    gr = [lop(C, ("gr", 0), f"ds_read_b128 {X[4*a:4*a+4]}, {rad} offset:{slot(1, a)}") for a in range(4)]
    gs = [Lazy(lambda: lg.wait(lambda q: q[0] == "gr"))]
    for k in range(8):
        gs += [f"v_add_f32 {E[r]}, {E[r]}, {X[r]}" for r in (2*k, 2*k+1)] + [f"v_cvt_pk_bf16_f32 {gd(k)}, {E[2*k]}, {E[2*k+1]}"]
        if k in (2, 5, 7): gs.append(vop(C, ("xs", 0), f"buffer_store_dwordx4 {G[4*(k//3):4*(k//3) + 4]}, {vGs}, {C.sWS}, 0 offen offset:{1024*(k//3)} sc1"))
    gl = [f"buffer_load_dwordx4 {G[4*g:4*g+4]}, {vGr}, {C.sWS}, 0 offen offset:{1024*g} sc1" for g in range(3)]
    U(f"s_mov_b32 {S['b1']}, 0x3f80\ns_mov_b32 {S['b2']}, 0x3f800000")
    ck = [f"v_xor_b32 {G[4*g+3]}, {S['tag']}, {G[4*g+3]}" for g in range(3)] + [f"v_or3_b32 {G[3]}, {G[3]}, {G[7]}, {G[11]}", f"v_cmp_ne_u32 vcc, 0, {G[3]}"]
    one = (f"s_mov_b64 exec, 1\nXG_P{role}:\nbuffer_load_dword {G[11]}, {vGr}, {C.sWS}, 0 offen offset:{2048 + 1008 + 12} sc1\ns_waitcnt vmcnt(0)\nv_readfirstlane_b32 {S['t0']}, {G[11]}\n"
           f"s_add_u32 {S['t2']}, {S['t2']}, 1\ns_cmp_ge_u32 {S['t2']}, {4*SPIN_MAX}\ns_cbranch_scc1 XG_Q{role}\ns_cmp_lg_u32 {S['t0']}, {S['tag']}\ns_cbranch_scc1 XG_P{role}\nXG_Q{role}:\ns_mov_b64 exec, -1\ns_mov_b32 {S['t2']}, 0\n") if OPT["gentle"] else ""
    C.slow.append(f"XG_S{role}:\ns_mov_b32 {S['t2']}, 0\n{one}XG_L{role}:\n" + "\n".join(gl) + "\ns_waitcnt vmcnt(0)\n" + "\n".join(ck) +
                  f"\ns_add_u32 {S['t2']}, {S['t2']}, 1\ns_cmp_ge_u32 {S['t2']}, {SPIN_MAX}\ns_cbranch_scc1 XG_X{role}\ns_cmp_lg_u64 vcc, 0\ns_cbranch_scc1 XG_L{role}\ns_branch XG_X{role}")
    ck = [Lazy(lambda: vm.wait(lambda q: q[0] == "xl"))] + ck + [f"s_cmp_lg_u64 vcc, 0\ns_cbranch_scc1 XG_S{role}\nXG_X{role}:"]
    def fe_plain(a):
        o = [Lazy(lambda a=a: lg.wait(lambda q: q == ("fr", a)))]
        R_ = range(4*a, 4*a+4)
        o += [f"v_add_f32 {F[r]}, {F[r]}, {Fp[r]}" for r in R_]
        o += [(f"v_lshlrev_b32 {E[r]}, 16, {gd(r//2)}" if r % 2 == 0 else f"v_and_b32 {E[r]}, 0xffff0000, {gd(r//2)}") for r in R_]
        o += [f"v_add_f32 {F[r]}, {F[r]}, {E[r]}" for r in R_]
        o += [f"v_mul_f32 {E[r]}, {F[r]}, {k1}" for r in R_] + [f"v_exp_f32 {E[r]}, {E[r]}" for r in R_] + [f"v_mul_f32 {F[r]}, {F[r]}, {rstd}" for r in R_]
        o += [f"v_add_f32 {E[r]}, 1.0, {E[r]}" for r in R_] + [f"v_rcp_f32 {E[r]}, {E[r]}" for r in R_]
        o += [f"v_mul_f32 {F[r]}, {F[r]}, {E[r]}" for r in R_]
        return o
    def fe_pk(a):
        o = [Lazy(lambda a=a: lg.wait(lambda q: q == ("fr", a)))]
        R_ = range(4*a, 4*a+4); H = [slice(4*a, 4*a+2), slice(4*a+2, 4*a+4)]
        o += [f"v_pk_add_f32 {F[h]}, {F[h]}, {Fp[h]}" for h in H]
        o += [f"v_pk_mul_f32 {E[h]}, {F[h]}, {kk} op_sel:[0,1] op_sel_hi:[1,1]" for h in H]
        o += [f"v_exp_f32 {E[r]}, {E[r]}" for r in R_] + [f"v_pk_mul_f32 {F[h]}, {F[h]}, {kk} op_sel_hi:[1,0]" for h in H]
        o += [f"v_pk_add_f32 {E[h]}, {E[h]}, 1.0 op_sel_hi:[1,0]" for h in H] + [f"v_rcp_f32 {E[r]}, {E[r]}" for r in R_]
        o += [f"v_pk_mul_f32 {F[h]}, {F[h]}, {E[h]}" for h in H]
        return o
    NPL = OPT["npl"]
    fe1 = [x for a in range(NPL) for x in fe_plain(a)]
    fe2 = [f"v_dot2c_f32_bf16 {F[r]}, {S['b1'] if r % 2 == 0 else S['b2']}, {gd(r//2)}" for r in range(4*NPL, 16)] + [x for a in range(NPL, 4) for x in fe_pk(a)]
    fw = [lop(C, ("fw", 0), f"ds_write_b128 {wad}, {Fp[4*a:4*a+4]} offset:{slot(0, a)}") for a in range(4)]
    fr = [lop(C, ("fr", a), f"ds_read_b128 {Fp[4*a:4*a+4]}, {rad} offset:{slot(0, a)}") for a in range(4)]
    sw = [lop(C, ("sw", 0), f"ds_write_b128 {wad}, {Sp[4*a:4*a+4]} offset:{slot(1, a)}") for a in range(4)]
    sr = [lop(C, ("sr", a), f"ds_read_b128 {Sp[4*a:4*a+4]}, {rad} offset:{slot(1, a)}") for a in range(4)]
    xr = []
    for a in range(4): xr += [f"v_xor_b32 {t[0]}, {16*a}, {vXr}", lop(C, ("xr", 0), f"ds_read_b64 {xv[a]}, {t[0]}")]
    xu = [Lazy(lambda: lg.wait(lambda q: q[0] == "xr"))]
    for a in range(4):
        for h in range(2): xu += [f"v_lshlrev_b32 {X[4*a+2*h]}, 16, {xv[a][h]}", f"v_and_b32 {X[4*a+2*h+1]}, 0xffff0000, {xv[a][h]}"]
    TPOLL = 28 - LA - 4
    BV, BF, TB = 5 + NPRE // 2, 14, OPT['TB2']
    assert OPT['late'] == 0
    R1 = OPT['R1']
    RX, CK = OPT["RX"], OPT["CK"]
    def trs_for(tt):
        o = []
        for j in range(2):
            if tt < 14 and 2 * (tt % 7) < NPRE: continue
            if tt < 14: o += b2.tr(2 * (tt % 7) + j, breg[2*tt + j], C.rB if tt < 7 else rP)
            else: o += b2.tr(14 + 2 * ((tt - 28) & 3) + j, breg[2 * (tt - 28) + j], C.rB if tt < 32 else rP)
        return [lop(C, ("tr", tt), y) for y in o]
    P(vm.wait(lambda q: q[0] == "b2" and q[1] <= 3) + " lgkmcnt(0)")
    emit(C, trs_for(0) + trs_for(1))
    for tt in range(NT2):
        nb = min(2 * tt + 5, 13) if tt < 14 else NB - 1
        assert nb < b2.loaded
        P(vm.wait(lambda q: q == ("a", tt) or (q[0] == "b2" and q[1] <= nb) or (tt == flag_at and q[0] == "st") or (tt == 14 and q[0] == "e") or (tt == TB and q[0] == "rs")))
        if tt in ((0, 7, 14, 21, 28) if OPT["fine"] != 1 else range(36)): stamp(C, f"a{tt}")
        if tt == flag_at:
            P("s_barrier"); flag_store(C); stamp(C, "flag")
        if tt < 14 and any(q == ("tr", tt) for q in lg.q): P(lg.wait(lambda q: q == ("tr", tt)))
        if tt == 28: P(lg.wait(lambda q: q[0] == "tr"))
        if tt == TB: P(lg.wait(lambda q: q[0] == "fw"))
        if tt == R1: P(lg.wait(lambda q: q[0] == "gw"))
        if tt in (BV, BF, R1, TB): P("s_barrier")
        if tt == BF: b2.free += [c for c in w2ch if c not in pch]
        trs = trs_for(tt + 2) if tt + 2 < 14 else (trs_for(tt + 9) if 19 <= tt < 27 else [])
        ld = []; va_ = []
        if tt < NSU:
            k = len(su); va_ = su[tt * k // NSU:(tt + 1) * k // NSU]
        if tt == TPOLL: ld.append(poll_req(C))
        if tt + LA == 28:
            def chk():
                l0 = len(P.l); poll_check(C, f"PS_{role}", 60); x = "\n".join(P.l[l0:]); del P.l[l0:]; return x
            ld.append(Lazy(chk, "svsss"))
            ld.append(vop(C, ("rs", 0), f"buffer_load_dword {rstd}, {vR}, {C.sWS}, 0 offen sc1"))
        if tt + LA < NT2: ld.extend(aload(C, tt + LA))
        if tt >= 17 or (tt < 14 and tt % 2 == 1): ld.extend(b2.loads(1))
        if 14 <= tt < R1: va_ = gw[(tt - 14) * 4 // (R1 - 14):(tt - 13) * 4 // (R1 - 14)]
        if tt == R1: va_ = gr
        gn = OPT["gsn"]
        if R1 < tt <= R1 + gn: va_ = gs[(tt - R1 - 1) * len(gs) // gn:(tt - R1) * len(gs) // gn]
        if tt == 20: va_ = xr
        if tt in (21, 22): va_ = xu[(tt - 21) * 9:(tt - 20) * 9]
        if tt == RX: ld += [vop(C, ("xl", 0), x) for x in gl]
        if 28 <= tt < TB: va_ = fw[(tt - 28) * 4 // (TB - 28):(tt - 27) * 4 // (TB - 28)]
        if tt == TB: va_ = fr + [f"v_mul_f32 {k1}, {f2h(-math.log2(math.e))}, {rstd}"]
        if tt == CK: va_ = va_ + ck
        if tt > CK:
            k = len(fe1); i = tt - CK - 1; nn = NT2 - 1 - CK; va_ = va_ + fe1[i * k // nn:(i + 1) * k // nn]
        ps = 0 if tt < 14 else (1 if tt < 28 else 2)
        last = tt in (13, 27, 35)
        order = ((1, 0), (0, 0), (1, 1), (0, 1)) if not last else ((1, 0), (1, 1), (0, 0), (0, 1))
        Bf = lambda j, f: breg[2*(tt % 14) + j][f]
        m = [f"v_mfma_f32_32x32x16_bf16 {acc[ps][f]}, {Bf(j, f)}, {aring[tt % NA][j]}, {0 if (tt in (0, 14, 28) and j == 0) else acc[ps][f]}" for f, j in order]
        if OPT['sp2']: emit(C, spread(m, (trs, 0, 0.9), (ld, 0, 0.9), (va_, 0.3 if tt in (14, 28) else 0, 0.95), clk=32))
        else: emit(C, merge(m, (trs, 0, 3), (ld, 0, 4), (va_, 1 if tt in (14, 28) else 0, 4)))
    assert b2.loaded == NB and CK >= TB and (CK < NT2 - 1 or NPL == 0)
    stamp(C, "p2end")
    h = min(len(fe2), 14)
    emit(C, merge(fe2[:h], (sw, 0, h)) if h else sw)
    P(lg.wait(lambda q: q[0] == "sw")); P("s_barrier")
    if OPT["fine"] == 1: stamp(C, "sb")
    emit(C, sr)
    emit(C, fe2[h:])
    if OPT["fine"] == 1: stamp(C, "fedone")
    for a in range(4):
        P(lg.wait(lambda q: q == ("sr", a)))
        H = [slice(4*a, 4*a+2), slice(4*a+2, 4*a+4)]
        for h_ in H: P(f"v_pk_add_f32 {Sv[h_]}, {Sv[h_]}, {Sp[h_]}")
        for h_ in H: P(f"v_pk_fma_f32 {Sv[h_]}, {Sv[h_]}, {F[h_]}, {X[h_]}")
        P(f"v_cvt_pk_bf16_f32 {Rr[2*a]}, {Sv[4*a]}, {Sv[4*a+1]}\nv_cvt_pk_bf16_f32 {Rr[2*a+1]}, {Sv[4*a+2]}, {Sv[4*a+3]}")
        if a & 1:
            p = a >> 1
            P(f"v_permlane32_swap_b32 {Rr[4*p]}, {Rr[4*p+2]}\nv_permlane32_swap_b32 {Rr[4*p+1]}, {Rr[4*p+3]}")
            P(f"buffer_store_dwordx4 {Rr[4*p:4*p+4]}, {vO}, {sO}, 0 offen offset:{32*p}")
    if OPT["stamps"]:
        stamp(C, "stored"); P("s_waitcnt vmcnt(0)"); stamp(C, "end")
    if OPT["enc"] == "end": P("s_waitcnt vmcnt(0)\ns_memrealtime s[100:101]")
    if OPT["spin"] and (OPT["encwg"] == -1 or (OPT["encwg"] == -2 and role == "F") or (OPT["encwg"] == -3 and role == "Q") or (OPT["encwg"] >= 0 and role == ("F" if OPT["encwg"] < 128 else "Q"))):
        if OPT["encwg"] >= 0: P(f"s_cmp_lg_u32 s2, {OPT['encwg']}\ns_cbranch_scc1 SPN2{role}")
        P(f"s_waitcnt lgkmcnt(0)\ns_mov_b32 {S['t1']}, {OPT['spin']}")
        if OPT["enc"]: P(f"s_sub_u32 {S['t0']}, s100, s98\ns_lshl_b32 {S['t0']}, {S['t0']}, 2\ns_add_u32 {S['t1']}, {S['t1']}, {S['t0']}\ns_min_u32 {S['t1']}, {S['t1']}, 20000")
        P(f"SPN1{role}:\ns_sleep 2\ns_memrealtime {C.tm}\ns_waitcnt lgkmcnt(0)\ns_sub_u32 {S['t0']}, {C.tm[0]}, s98\ns_cmp_lt_u32 {S['t0']}, {S['t1']}\ns_cbranch_scc1 SPN1{role}\nSPN2{role}:")
    stamp_flush(C)
    P("s_endpgm")
    del C.lg
    C.vA = C.vA[:2]
    return 256

def dma_item(C, need, m0expr, load, execmask=None):
    s = load
    if execmask: s = f"s_mov_b64 exec, {execmask}\n{s}\ns_mov_b64 exec, -1"
    o = []
    if C.m0 != m0expr: o.append(m0expr)
    C.m0 = m0expr
    return o + [vop(C, ("d", need), s)]

def slab_tables(C, wmul):
    P, S = C.P, C.S
    if OPT["com"]:
        P(f"s_bfe_u32 {S['t0']}, s2, 0x20006\ns_mul_i32 {S['t0']}, {S['t0']}, 3\ns_lshr_b32 {S['t0']}, {S['t0']}, 1\ns_add_u32 {S['t0']}, {S['t0']}, {S['rbl']}")
        P(f"s_sub_u32 {S['t1']}, {S['t0']}, 6\ns_cmp_ge_u32 {S['t0']}, 6\ns_cselect_b32 {S['t0']}, {S['t1']}, {S['t0']}\ns_lshl_b32 {S['t0']}, {S['t0']}, 7")
        for d in range(1, 7):
            P(f"s_add_u32 {C.kxs[d]}, {C.kxs[d-1] if d > 1 else S['t0']}, 128\ns_cmp_eq_u32 {C.kxs[d]}, 896\ns_cselect_b32 {C.kxs[d]}, 128, {C.kxs[d]}\ns_mul_i32 {C.kws[d]}, {C.kxs[d]}, {wmul}")
        return
    for d in range(1, 7):
        P(f"s_add_u32 {C.kxs[d]}, {C.kxs[d-1]}, 128\ns_cmp_eq_u32 {C.kxs[d]}, 896\ns_cselect_b32 {C.kxs[d]}, 0, {C.kxs[d]}\ns_mul_i32 {C.kws[d]}, {C.kxs[d]}, {wmul}")

class Role: pass

def ffn_head(C):
    P, S, lane, t = C.P, C.S, C.lane, C.t
    Rl = Role(); Rl.vm = C.vm = Cnt("vmcnt", 63); C.vm.issue(("pf", 0)); C.m0 = None
    va = Rl.va = Alloc("v", C.vbase, 256)
    NW, NX = 4, 3; WB, XB = 0, 65536
    xd = C.xd; wd = Rl.wd = [va() for _ in range(8)]
    w = S['w']
    P(f"s_mul_i32 {S['t0']}, {S['cb']}, 448\ns_and_b32 {S['t0']}, {S['t0']}, 0xffffff80\ns_mul_i32 {S['t1']}, {w}, {8*3584}\ns_add_u32 {S['t0']}, {S['t0']}, {S['t1']}")
    P(f"v_lshrrev_b32 {t[0]}, 5, {lane}\nv_bfe_u32 {t[1]}, {lane}, 1, 4\nv_xor_b32 {t[1]}, {t[0]}, {t[1]}\nv_xor_b32 {t[1]}, {S['b1']}, {t[1]}")
    P(f"v_mul_u32_u24 {t[0]}, 3584, {t[0]}\nv_lshl_add_u32 {t[0]}, {t[1]}, 5, {t[0]}\nv_and_b32 {t[1]}, 1, {lane}\nv_lshl_add_u32 {t[0]}, {t[1]}, 4, {t[0]}")
    P(f"v_add_u32 {wd[0]}, {S['t0']}, {t[0]}\nv_xor_b32 {t[3]}, 64, {wd[0]}")
    P(f"v_add_u32 {wd[1]}, {2*3584 - 1024}, {t[3]}\nv_add_u32 {wd[2]}, {4*3584 - 2048}, {wd[0]}\nv_add_u32 {wd[3]}, {6*3584 - 3072}, {t[3]}")
    P(f"s_mul_i32 {S['kw']}, {S['kx']}, {64*3584//128}")
    P(f"s_memrealtime {C.mT}\ns_or_b32 {S['t0']}, s2, {w}\ns_cmp_eq_u32 {S['t0']}, 0\ns_cselect_b32 {C.sD[2]}, 256, 0\ns_mov_b32 {C.sD[3]}, 0x20000\nv_mov_b32 {t[0]}, 0")
    karg(C)
    P(f"s_or_b32 {S['t0']}, {C.mT[0]}, 1\nv_mov_b32 {t[1]}, {S['t0']}\ns_mov_b32 {C.sD[0]}, {C.ptr[14]}\ns_mov_b32 {C.sD[1]}, {C.ptr[15]}\nbuffer_store_dword {t[1]}, {t[0]}, {C.sD}, 0 offen sc1")
    C.vm.issue(("non", 0))
    srd(P, C.sW, C.ptr[8], C.ptr[9], 448 * 3584)
    items = []
    for d in range(7):
        for j in range(4): items.append(dict(k="x", d=d, j=j, need=2*d, free=(2*(d-NX)+1 if d >= NX else -1)))
        for s in (2*d, 2*d+1):
            for j in range(4): items.append(dict(k="w", s=s, j=j, need=s, free=(s-NW if s >= NW else -1)))
    def emit_item(i):
        it = items[i]; j = it["j"]
        if it["k"] == "x":
            return dma_item(C, it["need"], f"s_add_u32 m0, {S['xm0']}, {XB + (it['d'] % NX)*16384}",
                            f"buffer_load_dwordx4 {xd[j]}, {C.sX}, {C.kxs[it['d']]} offen offset:{j*1024}{NTX} lds")
        return dma_item(C, it["need"], f"s_add_u32 m0, {S['xm0']}, {WB + (it['s'] % NW)*16384}",
                        f"buffer_load_dwordx4 {wd[j + 4*(it['s']&1)]}, {C.sW}, {C.kws[it['s']>>1]} offen offset:{j*1024}{NTW} lds")
    Rl.sched = schedule(items, OPT["pro"], OPT["rate"], 14); Rl.emit_item = emit_item
    for i in Rl.sched[-1][:8]: emit(C, emit_item(i))
    for j in range(4): P(f"v_add_u32 {wd[4+j]}, {32*3584}, {wd[j]}")
    for i in Rl.sched[-1][8:OPT["first"]]: emit(C, emit_item(i))
    return Rl

def tlb_touch(C):
    P, S = C.P, C.S
    if OPT["tlb"] & 1:
        for k in (10, 4, 12, 14): P(f"s_load_dword s97, {C.ptr[k:k+2]}, 0")
        for off in range(0, WS_USED, 1 << 21):
            P(f"s_add_u32 {C.tm[0]}, {C.wsp[0]}, {off}\ns_addc_u32 {C.tm[1]}, {C.wsp[1]}, 0\ns_load_dword s97, {C.tm}, 0")
    if OPT["tlb"] & 2:
        P(f"v_mov_b32 {C.t[6]}, 0")
        for k in (10, 4, 12): P(f"global_load_dword v2, {C.t[6]}, {C.ptr[k:k+2]}"); C.vm.issue(("pf", 0))
        P(f"v_and_b32 {C.t[6]}, 7, {C.lane}\nv_lshlrev_b32 {C.t[6]}, 21, {C.t[6]}\nglobal_load_dword v2, {C.t[6]}, {C.wsp}"); C.vm.issue(("pf", 0))

def pal_xf(C, va):
    P, S = C.P, C.S
    v = va()
    P(f"s_lshl_b32 {S['t0']}, s2, 2\ns_add_u32 {S['t0']}, {S['t0']}, {S['w']}\ns_xor_b32 {S['t0']}, {S['t0']}, 4\ns_mul_i32 {S['t0']}, {S['t0']}, 3072\ns_add_u32 {S['t0']}, {S['t0']}, {XF_OFF}")
    P(f"v_mul_u32_u24 {v}, 48, {C.lane}\nv_add_u32 {v}, {S['t0']}, {v}")
    return f"buffer_store_dword {C.lane}, {v}, {C.sWS}, 0 offen sc1"

def karg(C):
    P, S = C.P, C.S
    P("s_waitcnt lgkmcnt(0)")
    P(f"s_add_u32 {C.sX[0]}, {C.ptr[0]}, {S['t2']}\ns_addc_u32 {C.sX[1]}, {C.ptr[1]}, 0\ns_sub_u32 {C.sX[2]}, {XBYTES}, {S['t2']}\ns_mov_b32 {C.sX[3]}, 0x20000")

def ffn_body(C, Rl):
    P, S, lane, t = C.P, C.S, C.lane, C.t
    C.role = "F"; vm = C.vm = Rl.vm; C.lim = NB - OPT["late"]
    va = Rl.va; aa = Alloc("a", 0, C.abase)
    NW, NX = 4, 3; WB, XB = 0, 65536
    sWS = C.sWS; w = S['w']
    stamp(C, "iss")
    tlb_touch(C)
    xr = [[va() for _ in range(2)] for _ in range(2)]
    wr_ = [va() for _ in range(7)]
    acc = [[va(4, 4) for _ in range(4)] for _ in range(7)]
    cs = [va(4, 4) for _ in range(7)]
    rs = [va(4, 4) for _ in range(2)]
    dq = [cs[4], cs[5]]
    ones = aa(4)
    fb = [dict(x=[aa(4) for _ in range(4)], w=[aa(4) for _ in range(7)]) for _ in range(2)]
    if OPT["wsoff"]: P(f"s_add_u32 {C.wsp[0]}, {C.wsp[0]}, {OPT['wsoff'] << 20}\ns_addc_u32 {C.wsp[1]}, {C.wsp[1]}, 0")
    srd(P, sWS, C.wsp[0], C.wsp[1], WS_REC)
    wr, wc = S['half'], S['hh']
    n_, g_ = va(), va()
    P(f"v_and_b32 {n_}, 15, {lane}\nv_lshrrev_b32 {g_}, 4, {lane}")
    P(f"s_lshl_b32 {S['t0']}, {wr}, 13\ns_lshl_b32 {S['t1']}, {wc}, 12\ns_add_u32 {S['t0']}, {S['t0']}, {S['t1']}\ns_add_u32 {S['t0']}, {S['t0']}, {XB}")
    P(f"v_lshrrev_b32 {t[0]}, 1, {n_}\nv_xor_b32 {t[0]}, {g_}, {t[0]}\nv_lshlrev_b32 {t[0]}, 4, {t[0]}\nv_lshl_add_u32 {t[0]}, {n_}, 7, {t[0]}")
    P(f"v_add_u32 {xr[0][0]}, {S['t0']}, {t[0]}\nv_xor_b32 {xr[0][1]}, 64, {xr[0][0]}\nv_xor_b32 {xr[1][0]}, 4096, {xr[0][0]}\nv_xor_b32 {xr[1][1]}, 4096, {xr[0][1]}")
    P(f"v_bfe_u32 {t[0]}, {lane}, 2, 2\nv_lshl_add_u32 {t[1]}, {g_}, 3, {t[0]}\nv_lshlrev_b32 {t[1]}, 9, {t[1]}\nv_and_b32 {t[2]}, 3, {lane}\nv_lshl_add_u32 {t[1]}, {t[2]}, 3, {t[1]}")
    P(f"v_bfe_u32 {t[0]}, {lane}, 2, 3")
    P(f"s_lshl_b32 {S['b1']}, {wr}, 2\ns_mul_i32 {S['b2']}, {wr}, -3")
    P(f"s_and_b32 {S['t0']}, {S['cb']}, 1\ns_lshl_b32 {S['t0']}, {S['t0']}, 1\ns_mul_i32 {S['t1']}, {wc}, 7\ns_add_u32 {S['t0']}, {S['t0']}, {S['t1']}")
    P(f"s_add_u32 {S['t1']}, {S['t0']}, {S['b2']}\ns_add_u32 {S['t0']}, {S['t0']}, {S['b1']}")
    for c in range(7):
        P(f"s_add_u32 {S['t2']}, {S['t0'] if c <= 2 else S['t1']}, {c}")
        P(f"v_xor_b32 {t[2]}, {S['t2']}, {t[0]}\nv_lshl_add_u32 {wr_[c]}, {t[2]}, 5, {t[1]}")
    P(f"v_mov_b32 {t[0]}, {ONES}")
    for i in range(4): P(f"v_accvgpr_write_b32 {ones[i]}, {t[0]}")
    b2 = B2(C)
    RSB = b2.xchunk * 8192; CSB = RSB + 1024
    xw = RSB & 0x30000; RSB -= xw; CSB -= xw
    a_rs, a_rs2, a_cs, a_cs2 = va(), va(), va(), va()
    st = [va(), va()]
    P(f"s_lshl_b32 {S['t0']}, {wr}, 8\ns_lshl_b32 {S['t1']}, {wc}, 7\ns_add_u32 {S['t0']}, {S['t0']}, {S['t1']}\ns_add_u32 {S['t0']}, {S['t0']}, {xw}")
    P(f"v_lshlrev_b32 {a_rs}, 2, {n_}\nv_add_u32 {a_rs}, {S['t0']}, {a_rs}\nv_xor_b32 {a_rs2}, 128, {a_rs}")
    P(f"s_lshl_b32 {S['t0']}, {wc}, 3\ns_add_u32 {S['t1']}, {S['t0']}, {S['b2']}\ns_add_u32 {S['t0']}, {S['t0']}, {S['b1']}")
    P(f"s_lshl_b32 {S['t0']}, {S['t0']}, 6\ns_add_u32 {S['t1']}, {S['t1']}, 4\ns_lshl_b32 {S['t1']}, {S['t1']}, 6")
    P(f"v_lshlrev_b32 {a_cs}, 4, {g_}\nv_add_u32 {a_cs}, {xw}, {a_cs}\nv_add_u32 {a_cs2}, {S['t1']}, {a_cs}\nv_add_u32 {a_cs}, {S['t0']}, {a_cs}")
    P(f"s_lshl_b32 {S['t0']}, {wc}, 10\nv_lshlrev_b32 {st[0]}, 4, {lane}\nv_add_u32 {st[0]}, {S['t0']}, {st[0]}\nv_xor_b32 {st[1]}, 1024, {st[0]}")
    P(f"s_lshl_b32 {S['t0']}, {S['e']}, 3\ns_add_u32 {S['t0']}, {S['t0']}, {S['rbl']}\ns_lshl_b32 {S['t0']}, {S['t0']}, 1\ns_add_u32 {S['t0']}, {S['t0']}, {wr}")
    P(f"s_mul_i32 {S['t0']}, {S['t0']}, {A2_KS}\ns_mul_i32 {S['t1']}, {S['cb']}, 14\ns_add_u32 {S['t0']}, {S['t0']}, {S['t1']}\ns_mul_i32 {S['t1']}, {wc}, 7\ns_add_u32 {S['t0']}, {S['t0']}, {S['t1']}\ns_add_u32 {S['t0']}, {S['t0']}, 32")
    P(f"s_add_u32 {S['b1']}, {S['b1']}, {S['t0']}\ns_add_u32 {S['b2']}, {S['b2']}, {S['t0']}\ns_lshl_b32 {S['b1']}, {S['b1']}, 11\ns_lshl_b32 {S['b2']}, {S['b2']}, 11")
    if OPT["pal"]:
        vpa = va(); vpb = va()
        P(f"s_lshl_b32 {S['t0']}, {S['t0']}, 11\nv_lshl_add_u32 {vpa}, {lane}, 7, {S['t0']}\nv_add_u32 {vpb}, 6144, {vpa}")
        C.pal = [f"buffer_store_dword {lane}, {vpa}, {sWS}, 0 offen sc1", f"buffer_store_dword {lane}, {vpb}, {sWS}, 0 offen sc1"]
        if OPT["pal"] & 2: C.pal.append(pal_xf(C, va))
    if OPT["xst"]:
        pca, pra, gca, gsc, lca = [va() for _ in range(5)]
        for m_, bit in ((C.mT, 1), (C.mU, 2), (C.mW, 4), (C.mH, 8)):
            P(f"v_and_b32 {t[0]}, {bit}, {lane}\nv_cmp_ne_u32 {m_}, 0, {t[0]}")
        P(f"s_lshl_b32 {S['t2']}, {S['e']}, 3\ns_add_u32 {S['t0']}, {S['t2']}, {S['cb']}\ns_lshl_b32 {S['t0']}, {S['t0']}, 14\ns_add_u32 {S['t0']}, {S['t0']}, {SCOL_OFF}")
        P(f"s_lshl_b32 {S['t1']}, {w}, 12\ns_add_u32 {S['t1']}, {S['t1']}, {S['t0']}\nv_lshl_add_u32 {gca}, {lane}, 4, {S['t1']}")
        P(f"s_lshl_b32 {S['t1']}, {wc}, 1\ns_add_u32 {S['t1']}, {S['t1']}, {wr}\ns_lshl_b32 {S['t1']}, {S['t1']}, 3\ns_add_u32 {S['t1']}, {S['t1']}, {S['rbl']}\ns_lshl_b32 {S['t1']}, {S['t1']}, 9\ns_add_u32 {S['t0']}, {S['t0']}, {S['t1']}")
        P(f"v_bfe_u32 {t[0]}, {lane}, 2, 2\nv_lshlrev_b32 {t[0]}, 4, {t[0]}\nv_lshl_add_u32 {t[0]}, {g_}, 2, {t[0]}\nv_and_b32 {t[1]}, 3, {lane}\nv_add_u32 {t[0]}, {t[0]}, {t[1]}\nv_lshl_add_u32 {pca}, {t[0]}, 3, {S['t0']}")
        P(f"s_add_u32 {S['t0']}, {S['t2']}, {S['rbl']}\ns_lshl_b32 {S['t0']}, {S['t0']}, 2\ns_add_u32 {S['t0']}, {S['t0']}, {w}\ns_lshl_b32 {S['t0']}, {S['t0']}, 12\ns_add_u32 {S['t0']}, {S['t0']}, {SROW_OFF}")
        P(f"v_lshl_add_u32 {t[0]}, {n_}, 4, {S['t0']}\nv_cmp_lt_u32 vcc, 31, {lane}\nv_cndmask_b32 {gca}, {gca}, {t[0]}, vcc")
        P(f"s_lshl_b32 {S['t1']}, {S['cb']}, 9\ns_add_u32 {S['t0']}, {S['t0']}, {S['t1']}\nv_lshl_add_u32 {pra}, {lane}, 3, {S['t0']}\nv_mov_b32 {t[1]}, {BIG}\nv_cndmask_b32 {pra}, {pra}, {t[1]}, vcc")
        if OPT["xsq"]:
            pqa = va()
            P(f"v_lshl_add_u32 {pqa}, {n_}, 4, {S['t0']}\nv_lshrrev_b32 {t[2]}, 2, {n_}\nv_cmp_eq_u32 {C.tm}, {t[2]}, {g_}\nv_cndmask_b32 {pqa}, {t[1]}, {pqa}, {C.tm}")
        P(f"v_mov_b32 {gsc}, 1.0\nv_mov_b32 {t[1]}, {f2h(-1.0/448)}\nv_cndmask_b32 {gsc}, {gsc}, {t[1]}, vcc")
        P(f"s_lshl_b32 {S['t0']}, {w}, 8\ns_add_u32 {S['t0']}, {S['t0']}, {xw + 1024}\nv_lshl_add_u32 {lca}, {lane}, 3, {S['t0']}")
        P(f"s_lshl_b32 {S['t0']}, {w}, 7\ns_add_u32 {S['t0']}, {S['t0']}, {xw}\nv_lshl_add_u32 {t[0]}, {n_}, 3, {S['t0']}\nv_cndmask_b32 {lca}, {lca}, {t[0]}, vcc")
    p2_setup(C)
    slab_tables(C, 64*3584//128); C.m0 = None
    rest = Rl.sched[-1][OPT["first"]:]
    for i in rest[:OPT["wpos"]]: emit(C, Rl.emit_item(i))
    P("WARM_F:")
    for i in rest[OPT["wpos"]:]: emit(C, Rl.emit_item(i))
    def reads(s):
        b = fb[s & 1]
        xs = ((s >> 1) % NX) * 16384; ws = WB + (s % NW) * 16384
        X = [f"ds_read_b128 {b['x'][i]}, {xr[i>>1][s&1]} offset:{xs + (i&1)*2048}" for i in range(4)]
        W = []
        for c in range(7):
            W.append(f"ds_read_b64_tr_b16 {b['w'][c][0:2]}, {wr_[c]} offset:{ws}")
            W.append(f"ds_read_b64_tr_b16 {b['w'][c][2:4]}, {wr_[c]} offset:{ws + 2048}")
        return X + W
    def mfmas(s):
        b = fb[s & 1]; o = []
        def mm(d, a, bb): o.append(f"v_mfma_f32_16x16x32_bf16 {d}, {a}, {bb}, {d if s else 0}")
        if s < 2 or not OPT["xst"]:
            for i in range(2): mm(rs[i], ones, b['x'][i])
            if OPT["xsq"]:
                for i in range(2): mm(dq[i], b['x'][i], b['x'][i])
            for c in range(4): mm(cs[c], b['w'][c], ones)
        for c in range(7):
            for i in range(4): mm(acc[c][i], b['w'][c], b['x'][i])
        if s == 13 and not OPT["xst"]:
            wrs = [f"ds_write_b32 {a_rs}, {rs[i][0]} offset:{RSB + i*64}" for i in range(2)] + [f"ds_write_b128 {a_cs}, {cs[c]} offset:{CSB + c*64}" for c in range(4)]
            for k_, x in enumerate(wrs): o[14 + k_] += "\n" + x
        return o
    nm = [va(2), va(2)]
    NEG = f2h(-1.0/448)
    hook = None
    if OPT["xst"]:
        G = OPT["gat"]
        allcs = R("v", cs[0].i, 28); assert cs[6].i == cs[0].i + 24
        gq = [allcs[4*p:4*p+4] for p in range(7)]
        gl = [f"buffer_load_dwordx4 {gq[p]}, {gca}, {sWS}, 0 offen offset:{512*p} sc1" for p in range(7)]
        bad = rs[0][0]
        al = [g[k] for g in gq for k in (1, 3)]
        chk = [f"v_xor_b32 {bad}, {S['tag']}, {al[0]}"] + [f"v_bitop3_b32 {bad}, {x}, {S['tag']}, {bad} bitop3:0xbe" for x in al[1:]]
        def hook(s_):
            o = []
            if s_ == 2:
                def tg():
                    l0 = len(P.l); get_tag(C); x = "\n".join(P.l[l0:]); del P.l[l0:]; return x
                o.append(Lazy(tg, "svsss"))
                for c in range(4):
                    o += [f"v_cndmask_b32 {cs[c][0]}, {cs[c][0]}, {cs[c][1]}, {C.mT}", f"v_cndmask_b32 {cs[c][2]}, {cs[c][2]}, {cs[c][3]}, {C.mT}", f"v_cndmask_b32 {cs[c][0]}, {cs[c][0]}, {cs[c][2]}, {C.mU}"]
            if s_ == 3:
                o += [f"v_cndmask_b32 {cs[0][0]}, {cs[0][0]}, {cs[1][0]}, {C.mW}", f"v_cndmask_b32 {cs[2][0]}, {cs[2][0]}, {cs[3][0]}, {C.mW}", f"v_cndmask_b32 {cs[0][0]}, {cs[0][0]}, {cs[2][0]}, {C.mH}",
                      f"v_mov_b32 {cs[0][1]}, {S['tag']}", vop(C, ("st1", 0), f"buffer_store_dwordx2 {cs[0][0:2]}, {pca}, {sWS}, 0 offen sc1"),
                      f"v_cmp_eq_u32 vcc, 1, {g_}", f"v_mov_b32 {rs[0][1]}, {S['tag']}", f"v_cndmask_b32 {rs[0][0]}, {rs[0][0]}, {rs[1][0]}, vcc",
                      vop(C, ("st1", 0), f"buffer_store_dwordx2 {rs[0][0:2]}, {pra}, {sWS}, 0 offen sc1")]
            if s_ == OPT["sqs"] and OPT["xsq"]:
                for i in range(2):
                    o += [f"v_cndmask_b32 {dq[i][0]}, {dq[i][0]}, {dq[i][1]}, {C.mT}", f"v_cndmask_b32 {dq[i][2]}, {dq[i][2]}, {dq[i][3]}, {C.mT}"]
                o += [f"v_cndmask_b32 {dq[0][0]}, {dq[0][0]}, {dq[0][2]}, {C.mU}", f"v_cndmask_b32 {dq[0][2]}, {dq[1][0]}, {dq[1][2]}, {C.mU}",
                      f"v_mov_b32 {dq[0][1]}, {S['tag']}", f"v_mov_b32 {dq[0][3]}, {S['tag']}",
                      vop(C, ("st1", 0), f"buffer_store_dwordx4 {dq[0]}, {pqa}, {sWS}, 0 offen offset:256 sc1")]
            k_ = OPT["gsp"]
            if G - k_ < s_ <= G:
                i_ = s_ - (G - k_ + 1); o += [vop(C, ("ga", 0), x) for x in gl[i_ * 7 // k_:(i_ + 1) * 7 // k_]]
            if s_ == G + OPT['gck']:
                o.append(Lazy(lambda: vm.wait(lambda q: q[0] == "ga")))
                o += chk + [f"v_cmp_ne_u32 vcc, 0, {bad}", "s_cmp_lg_u64 vcc, 0\ns_cbranch_scc1 GA_S\nGA_X:"]
                C.slow.append(f"GA_S:\ns_mov_b32 {S['t2']}, 0\nGA_L:\n" + "\n".join(gl) + "\ns_waitcnt vmcnt(0)\n" + "\n".join(chk) +
                              f"\nv_cmp_ne_u32 vcc, 0, {bad}\ns_add_u32 {S['t2']}, {S['t2']}, 1\ns_cmp_ge_u32 {S['t2']}, {SPIN_MAX}\ns_cbranch_scc1 GA_X\ns_cmp_lg_u64 vcc, 0\ns_cbranch_scc1 GA_L\ns_branch GA_X")
            if s_ == G + OPT['gck'] + 1 - OPT['gm']:
                for k in (0, 2):
                    g = [x[k] for x in gq]
                    o += [f"v_add_f32 {g[0]}, {g[0]}, {g[1]}", f"v_add_f32 {g[2]}, {g[2]}, {g[3]}", f"v_add_f32 {g[4]}, {g[4]}, {g[5]}",
                          f"v_add_f32 {g[0]}, {g[0]}, {g[2]}", f"v_add_f32 {g[4]}, {g[4]}, {g[6]}", f"v_add_f32 {g[0]}, {g[0]}, {g[4]}"]
                o += [f"v_mul_f32 {gq[0][0]}, {gsc}, {gq[0][0]}", f"v_mul_f32 {gq[0][1]}, {gsc}, {gq[0][2]}", f"ds_write_b64 {lca}, {gq[0][0:2]} offset:{RSB}"]
            if s_ == G + OPT['gck'] + 2 - OPT['gm']:
                o += [f"ds_read_b32 {nm[0][i]}, {a_rs} offset:{RSB + 64*i}" for i in range(2)] + [f"ds_read_b32 {nm[1][i]}, {a_rs2} offset:{RSB + 64*i}" for i in range(2)]
                o += [f"ds_read_b128 {cs[c]}, {a_cs} offset:{CSB + c*64}" for c in range(4)] + [f"ds_read_b128 {cs[c]}, {a_cs2} offset:{CSB + (c-4)*64}" for c in range(4, 7)]
            return o
    run_loop(C, Rl.emit_item, Rl.sched, reads, mfmas, b2, OPT["fearly"], OPT["fstart"], hook=hook, nonce_at=0 if OPT["xst"] else 6, rate2=OPT["b2rate"])
    if not OPT["xst"]:
        P("s_waitcnt lgkmcnt(0)\ns_barrier"); b2.lgkm()
        P(f"ds_read_b32 {nm[1][0]}, {a_rs2} offset:{RSB}\nds_read_b32 {nm[1][1]}, {a_rs2} offset:{RSB+64}")
        for c in range(4, 7): P(f"ds_read_b128 {cs[c]}, {a_cs2} offset:{CSB + (c-4)*64}")
    if OPT["xst"] and OPT["gat"] + OPT["gck"] + 2 - OPT["gm"] == 13: P("s_waitcnt lgkmcnt(0)"); b2.lgkm()
    emit(C, b2.moves(C.hist[11]))
    if not OPT["xst"]: P(f"v_mul_f32 {nm[0][0]}, {NEG}, {rs[0][0]}\nv_mul_f32 {nm[0][1]}, {NEG}, {rs[1][0]}")
    Z = [va(4, 4) for _ in range(4)]
    units = [(c, 0) for c in range(4)] + [(c, 1) for c in range(4)] + [(c, pr) for c in range(4, 7) for pr in range(2)]
    if OPT["xst"]: units = [(c, pr) for c in range(7) for pr in range(2)]
    pend = None
    old = b2.loaded
    for ui, (c, pr) in enumerate(units):
        if ui == 4:
            P("s_waitcnt lgkmcnt(0)"); b2.lgkm()
            if not OPT["xst"]: P(f"v_mul_f32 {nm[1][0]}, {NEG}, {nm[1][0]}\nv_mul_f32 {nm[1][1]}, {NEG}, {nm[1][1]}")
        z = Z[ui % 4]
        for ii in range(2):
            a = acc[c][2*pr+ii]
            sel = "op_sel_hi:[1,0,1]" if ii == 0 else "op_sel:[0,1,0] op_sel_hi:[1,1,1]"
            P(f"v_pk_fma_f32 {a[0:2]}, {cs[c][0:2]}, {nm[pr]}, {a[0:2]} {sel}")
            P(f"v_pk_fma_f32 {a[2:4]}, {cs[c][2:4]}, {nm[pr]}, {a[2:4]} {sel}")
        if pend: P(pend); vm.issue(("st", 0))
        for ii in range(2):
            a = acc[c][2*pr+ii]
            P(f"v_cvt_pk_bf16_f32 {z[2*ii]}, {a[0]}, {a[1]}\nv_cvt_pk_bf16_f32 {z[2*ii+1]}, {a[2]}, {a[3]}")
        for q in range(4): P(f"v_pk_max_i16 {z[q]}, {z[q]}, 0")
        if OPT["fepi"] and ui % OPT["fepi"] == 0: emit(C, b2.loads(1, C.lim))
        pend = (f"s_add_u32 {S['t0']}, {S['b1'] if c <= 2 else S['b2']}, {c*2048}\n"
                f"v_permlane16_swap_b32 {z[0]}, {z[2]}\nv_permlane16_swap_b32 {z[1]}, {z[3]}\n"
                f"buffer_store_dwordx4 {z}, {st[pr]}, {sWS}, {S['t0']} offen sc1")
    P(pend); vm.issue(("st", 0))
    stamp(C, "epiend")
    emit(C, b2.moves(old))
    b2.drain(OPT["post"], C.lim)
    if not OPT["xst"]: get_tag(C)
    stamp(C, "tag")
    assert old >= NPRE
    P(vm.wait(lambda q: q[0] == "st")); stamp(C, "ack"); P("s_barrier")
    flag_store(C)
    stamp(C, "flag")
    emit(C, xtile(C))
    if NPRE and OPT["fpost"]:
        mvs = [x for t_ in range(NPRE) for x in b2.tr(t_, C.breg[t_], C.rB) + b2.tr(t_, C.breg[14 + t_], C.rP)]
        emit(C, merge(mvs, (b2.loads(2, C.lim), 0, len(mvs))))
        P("s_waitcnt lgkmcnt(0)\ns_barrier")
        b2.free += [b2.ch[t_] for t_ in range(NPRE)]
    b2.drain(max(C.lim - b2.loaded - OPT["pr"], 0), C.lim)
    emit(C, [poll_req(C)])
    b2.drain(99, C.lim)
    stamp(C, "b2iss")
    poll_check(C, "PF_F", 3)
    stamp(C, "polled")
    for tt in range(OPT["LA"]): emit(C, aload(C, tt))
    return max(va.hi, phase2(C, b2, None))

XS = 18432
def qkv_head(C):
    P, S, lane, t = C.P, C.S, C.lane, C.t
    Rl = Role(); Rl.vm = C.vm = Cnt("vmcnt", 63); C.vm.issue(("pf", 0)); C.m0 = None
    va = Rl.va = Alloc("v", C.vbase, 256)
    NW, NX = 4, 3; XB, WB = 0, 3 * XS
    xd = C.xd; xh = va(); wd = [va() for _ in range(6)]
    w = S['w']; hp = S['cb']; mW, mH = C.mW, C.mH
    P(f"s_mul_i32 {S['t1']}, {w}, {32*1792}\ns_add_u32 {S['t1']}, {S['t1']}, {8*1792}\ns_cmp_eq_u32 {S['rbl']}, 0\ns_cselect_b32 {S['t1']}, {BIG}, {S['t1']}")
    P(f"v_subrev_u32 {xh}, {S['t1']}, {t[3]}")
    P(f"s_lshl_b32 {S['t1']}, {w}, 4\ns_mov_b64 {mH}, 0xffff\ns_lshl_b64 {mH}, {mH}, {S['t1']}")
    P(f"v_and_b32 {t[0]}, 2, {t[4]}\nv_add_u32 {t[0]}, {S['b1']}, {t[0]}\nv_sub_u32 {t[0]}, {t[5]}, {t[0]}\nv_and_b32 {t[0]}, 7, {t[0]}")
    P(f"v_cmp_ne_u32 {mW}, 7, {t[0]}\nv_mov_b32 {t[2]}, {BIG}")
    P(f"s_mul_i32 {S['t0']}, {hp}, 112\ns_mul_i32 {S['t1']}, {w}, {8*2688}\ns_add_u32 {S['t0']}, {S['t0']}, {S['t1']}")
    P(f"v_mul_u32_u24 {t[1]}, 2688, {t[4]}\nv_lshl_add_u32 {t[1]}, {t[0]}, 4, {t[1]}\nv_add_u32 {t[1]}, {S['t0']}, {t[1]}\nv_cndmask_b32 {wd[2]}, {t[2]}, {t[1]}, {mW}")
    P(f"v_add_u32 {wd[1]}, 128, {wd[2]}\nv_add_u32 {wd[0]}, 256, {wd[2]}")
    P(f"s_mul_i32 {S['kw']}, {S['kx']}, {64*2688//128}\ns_mul_i32 {S['wm0']}, {w}, 3072")
    karg(C)
    P(f"s_sub_u32 {C.sW[0]}, {C.ptr[2]}, 256\ns_subb_u32 {C.sW[1]}, {C.ptr[3]}, 0\ns_mov_b32 {C.sW[2]}, {448*2688 + 256}\ns_mov_b32 {C.sW[3]}, 0x20000")
    items = []
    for d in range(7):
        fr = (2*(d-NX)+1 if d >= NX else -1)
        for j in (0, 1, 2, 3, -1): items.append(dict(k="x", d=d, j=j, need=2*d, free=fr))
        for s in (2*d, 2*d+1):
            for p in range(3): items.append(dict(k="w", s=s, j=p, need=s, free=(s-NW if s >= NW else -1)))
    def emit_item(i):
        it = items[i]; j = it["j"]
        if it["k"] == "x":
            sb = XB + (it['d'] % NX) * XS
            if j < 0: return dma_item(C, it["need"], f"s_mov_b32 m0, {sb + 1024}", f"buffer_load_dwordx4 {xh}, {C.sX}, {C.kxs[it['d']]} offen{NTX} lds", mH)
            return dma_item(C, it["need"], f"s_add_u32 m0, {S['xm0']}, {sb + 2048}", f"buffer_load_dwordx4 {xd[j]}, {C.sX}, {C.kxs[it['d']]} offen offset:{j*1024}{NTX} lds")
        return dma_item(C, it["need"], f"s_add_u32 m0, {S['wm0']}, {WB + (it['s'] % NW)*12288}",
                        f"buffer_load_dwordx4 {wd[j + 3*(it['s']&1)]}, {C.sW}, {C.kws[it['s']>>1]} offen offset:{j*1024}{NTW} lds", mW if j == 1 else None)
    Rl.sched = schedule(items, OPT["pro"] * 11 // 12, OPT["rate"] - 1, 14); Rl.emit_item = emit_item
    for i in Rl.sched[-1][:8]: emit(C, emit_item(i))
    for j in range(3): P(f"v_add_u32 {wd[3+j]}, {32*2688}, {wd[j]}")
    for i in Rl.sched[-1][8:min(OPT["first"], 11)]: emit(C, emit_item(i))
    return Rl

def qkv_body(C, Rl):
    P, S, lane, t = C.P, C.S, C.lane, C.t
    C.role = "Q"; vm = C.vm = Rl.vm; C.lim = NB - OPT["late"]
    va = Rl.va; aa = Alloc("a", 0, C.abase)
    NW, NX = 4, 3; XB, WB = 0, 3 * XS
    sWS, mT = C.sWS, C.mT
    w = S['w']; hp = S['cb']; hh, half = S['hh'], S['half']
    stamp(C, "iss")
    tlb_touch(C)
    xr = [va() for _ in range(2)]; xr0 = [va() for _ in range(2)]
    wr_ = [va() for _ in range(2)]
    acc = [[[va(4, 4) for _ in range(5)] for _ in range(2)] for _ in range(3)]
    dg = [va(4, 4) for _ in range(5 if not OPT["xsq"] else 3)]
    cprev, ccur, cfirst = va(4, 4), va(4, 4), va(4, 4)
    mprev, mcur = va(2), va(2)
    fb = [dict(x=[aa(4) for _ in range(5)], w=[[aa(4) for _ in range(2)] for _ in range(3)]) for _ in range(2)]
    if OPT["wsoff"]: P(f"s_add_u32 {C.wsp[0]}, {C.wsp[0]}, {OPT['wsoff'] << 20}\ns_addc_u32 {C.wsp[1]}, {C.wsp[1]}, 0")
    srd(P, sWS, C.wsp[0], C.wsp[1], WS_REC)
    n_, g_ = va(), va()
    P(f"v_and_b32 {n_}, 15, {lane}\nv_lshrrev_b32 {g_}, 4, {lane}")
    tmpcs = [va(4, 4) for _ in range(4)]
    c1, c0 = tmpcs[0], tmpcs[1]
    for i in range(4): P(f"v_mov_b32 {c1[i]}, {ONES}\nv_mov_b32 {c0[i]}, 0")
    P(f"v_and_b32 {t[0]}, 7, {lane}\nv_and_b32 {t[1]}, 2, {lane}\nv_bfe_u32 {t[2]}, {lane}, 3, 1\nv_lshl_add_u32 {t[1]}, {t[2]}, 2, {t[1]}")
    P(f"v_add_u32 {t[1]}, 7, {t[1]}\nv_and_b32 {t[1]}, 7, {t[1]}\nv_lshlrev_b32 {t[1]}, 4, {t[1]}\nv_lshl_add_u32 {t[0]}, {t[0]}, 7, {t[1]}")
    P(f"v_lshrrev_b32 {t[1]}, 3, {lane}\nv_mul_u32_u24 {t[1]}, 3072, {t[1]}\ns_mul_i32 {S['t0']}, {hh}, {2*12288}\ns_add_u32 {S['t0']}, {S['t0']}, {WB}")
    P(f"v_add3_u32 {t[0]}, {t[0]}, {t[1]}, {S['t0']}")
    P(f"ds_write_b128 {t[0]}, {c1} offset:1024")
    P(f"s_min_u32 {S['t0']}, {w}, 2\ns_mul_i32 {S['t0']}, {S['t0']}, {XS}\nv_lshlrev_b32 {t[1]}, 4, {lane}\nv_add_u32 {t[1]}, {S['t0']}, {t[1]}\nds_write_b128 {t[1]}, {c1} offset:{XB}")
    P(f"v_lshrrev_b32 {t[0]}, 1, {n_}\nv_xor_b32 {t[0]}, {g_}, {t[0]}\nv_lshlrev_b32 {t[0]}, 4, {t[0]}\nv_lshl_add_u32 {t[0]}, {n_}, 7, {t[0]}")
    P(f"s_lshl_b32 {S['t0']}, {half}, 13\nv_add_u32 {t[1]}, {S['t0']}, {t[0]}\nv_add_u32 {xr[0]}, {XB + 2048}, {t[1]}\nv_xor_b32 {xr[1]}, 64, {xr[0]}")
    P(f"v_cmp_gt_u32 vcc, 8, {n_}\nv_cndmask_b32 {xr0[0]}, {t[1]}, {t[0]}, vcc\nv_xor_b32 {xr0[1]}, 64, {xr0[0]}")
    P(f"v_bfe_u32 {t[0]}, {lane}, 2, 2\nv_mul_u32_u24 {t[1]}, 3072, {g_}\nv_lshl_add_u32 {t[0]}, {t[0]}, 7, {t[1]}\nv_add_u32 {t[0]}, {WB}, {t[0]}")
    P(f"v_bfe_u32 {t[1]}, {lane}, 3, 2\nv_lshlrev_b32 {t[1]}, 5, {t[1]}\nv_and_b32 {t[2]}, 3, {lane}")
    P(f"s_mul_i32 {S['t0']}, {hh}, 56\nv_lshl_add_u32 {t[3]}, {t[2]}, 3, {S['t0']}")
    P(f"v_add_u32 {t[4]}, {t[3]}, {t[1]}\nv_and_b32 {t[4]}, 127, {t[4]}\nv_add_u32 {wr_[0]}, {t[0]}, {t[4]}")
    P(f"s_lshl_b32 {S['t0']}, {hh}, 3\ns_sub_u32 {S['t0']}, 120, {S['t0']}\nv_mov_b32 {t[4]}, {S['t0']}\nv_add_u32 {t[3]}, 32, {t[3]}")
    P(f"v_cmp_eq_u32 vcc, 3, {t[2]}\nv_cndmask_b32 {t[3]}, {t[3]}, {t[4]}, vcc")
    P(f"v_add_u32 {t[4]}, {t[3]}, {t[1]}\nv_and_b32 {t[4]}, 127, {t[4]}\nv_add_u32 {wr_[1]}, {t[0]}, {t[4]}")
    P(f"v_lshlrev_b32 {t[0]}, 2, {g_}\nv_sub_u32 {t[0]}, {n_}, {t[0]}\nv_mov_b32 {t[1]}, {NINF}")
    P(f"s_or_b32 {S['t0']}, {S['rbl']}, {half}\ns_cmp_eq_u32 {S['t0']}, 0\ns_cselect_b32 {S['t0']}, {NINF}, 0")
    for r in range(4):
        P(f"v_subrev_u32 {t[2]}, {r}, {t[0]}")
        P(f"v_cmp_gt_i32 vcc, -8, {t[2]}\nv_cndmask_b32 {cprev[r]}, {t[1]}, {c0[0]}, vcc")
        P(f"v_cmp_gt_u32 vcc, 8, {t[2]}\nv_cndmask_b32 {ccur[r]}, {t[1]}, {c0[0]}, vcc")
        P(f"v_or_b32 {cfirst[r]}, {S['t0']}, {cprev[r]}")
    for (m, c) in ((mprev, cprev), (mcur, ccur)):
        for q in range(2):
            P(f"v_ashrrev_i32 {t[2]}, 31, {c[2*q]}\nv_ashrrev_i32 {t[3]}, 31, {c[2*q+1]}\nv_and_b32 {t[2]}, 0xffff, {t[2]}\nv_and_b32 {t[3]}, 0xffff0000, {t[3]}")
            P(f"v_or_b32 {t[2]}, {t[2]}, {t[3]}\nv_not_b32 {m[q]}, {t[2]}")
    a1, a2, av_w, av_r, sr, so = va(), va(), va(), va(), va(), va()
    VCH = [0, 1, 2, 8, 9]
    av_w2, av_r2 = va(), va()
    P(f"v_lshlrev_b32 {a1}, 2, {n_}\nv_bfe_u32 {a2}, {lane}, 2, 2\nv_lshl_add_u32 {a2}, {a2}, 6, {a1}\nv_add_u32 {a1}, 192, {a1}")
    P(f"v_and_b32 {t[2]}, 1, {lane}\nv_cmp_eq_u32 {mT}, 1, {t[2]}\nv_and_b32 {t[2]}, 2, {lane}\nv_cmp_eq_u32 {C.mU}, 2, {t[2]}")
    P(f"s_lshl_b32 {S['t1']}, {w}, 11\nv_mul_u32_u24 {av_w}, 80, {n_}\nv_lshl_add_u32 {av_w}, {g_}, 4, {av_w}\nv_add_u32 {av_w}, {S['t1']}, {av_w}")
    P(f"v_lshrrev_b32 {av_r}, 2, {lane}\nv_mul_u32_u24 {av_r}, 80, {av_r}\nv_and_b32 {t[4]}, 3, {lane}\nv_lshl_add_u32 {av_r}, {t[4]}, 4, {av_r}\nv_add_u32 {av_r}, {S['t1']}, {av_r}\nv_add_u32 {av_w2}, 65536, {av_w}\nv_add_u32 {av_r2}, 65536, {av_r}")
    P(f"v_lshlrev_b32 {so}, 4, {lane}")
    P(f"s_lshl_b32 {S['t1']}, {S['e']}, 3\ns_add_u32 {S['t1']}, {S['t1']}, {S['rbl']}\ns_lshl_b32 {S['t1']}, {S['t1']}, 1\ns_add_u32 {S['t1']}, {S['t1']}, {half}")
    P(f"s_lshl_b32 {S['t0']}, {hp}, 1\ns_add_u32 {S['t0']}, {S['t0']}, {hh}\ns_lshl_b32 {S['t0']}, {S['t0']}, 12\ns_mul_i32 {S['b1']}, {S['t1']}, {A2_KS*2048}\ns_add_u32 {S['b1']}, {S['b1']}, {S['t0']}")
    P(f"s_lshl_b32 {S['t1']}, {S['t1']}, 8\ns_lshl_b32 {S['t0']}, {hp}, 13\ns_add_u32 {S['t1']}, {S['t1']}, {S['t0']}\ns_add_u32 {S['t1']}, {S['t1']}, {RSTD_OFF}\ns_cmp_eq_u32 {hh}, 0\ns_cselect_b32 {S['t1']}, {S['t1']}, {BIG}")
    P(f"v_lshl_add_u32 {sr}, {lane}, 2, {S['t1']}")
    if OPT["xsq"]:
        qga = a2
        P(f"s_lshl_b32 {S['t0']}, {S['e']}, 3\ns_add_u32 {S['t0']}, {S['t0']}, {S['rbl']}\ns_lshl_b32 {S['t0']}, {S['t0']}, 1\ns_add_u32 {S['t0']}, {S['t0']}, {half}\ns_lshl_b32 {S['t0']}, {S['t0']}, 13\ns_add_u32 {S['t0']}, {S['t0']}, {SROW_OFF + 256}")
        P(f"s_or_b32 {S['t1']}, {S['rbl']}, {half}\ns_cmp_eq_u32 {S['t1']}, 0\ns_cselect_b32 {S['t1']}, 0, -4096")
        P(f"v_lshlrev_b32 {t[0]}, 12, {g_}\nv_mov_b32 {t[1]}, {S['t1']}\nv_cmp_lt_u32 vcc, 31, {lane}\nv_cndmask_b32 {t[0]}, {t[0]}, {t[1]}, vcc\nv_add_u32 {t[0]}, {S['t0']}, {t[0]}\nv_lshl_add_u32 {qga}, {n_}, 4, {t[0]}")
    if OPT["pal"]:
        vpa = va()
        P(f"v_lshl_add_u32 {vpa}, {lane}, 6, {S['b1']}")
        C.pal = [f"buffer_store_dword {lane}, {vpa}, {sWS}, 0 offen sc1"]
        if OPT["pal"] & 2: C.pal.append(pal_xf(C, va))
    p2_setup(C)
    slab_tables(C, 64*2688//128); C.m0 = None
    rest = Rl.sched[-1][min(OPT["first"], 11):]
    for i in rest[:max(OPT["wpos"] - 1, 0)]: emit(C, Rl.emit_item(i))
    P("WARM_Q:")
    for i in rest[max(OPT["wpos"] - 1, 0):]: emit(C, Rl.emit_item(i))
    def reads(s):
        b = fb[s & 1]
        xs = ((s >> 1) % NX) * XS; ws = (s % NW) * 12288
        X = [f"ds_read_b128 {b['x'][0]}, {xr0[s&1]} offset:{xs}"] + [f"ds_read_b128 {b['x'][j]}, {xr[s&1]} offset:{xs + (j-1)*2048}" for j in range(1, 5)]
        W = []
        for p in (1, 2, 0):
            for tt in range(2):
                W.append(f"ds_read_b64_tr_b16 {b['w'][p][tt][0:2]}, {wr_[tt]} offset:{ws + p*1024}")
                W.append(f"ds_read_b64_tr_b16 {b['w'][p][tt][2:4]}, {wr_[tt]} offset:{ws + p*1024 + 512}")
        return X + W
    Q, K, V = acc
    ST = [va(2) for _ in range(5)]
    sq = [t[0], t[1], t[2], t[3], t[4]]
    csK = tmpcs[0:2]; csV = tmpcs[2:4]; csQ = [Q[0][0], Q[1][0]]
    def bc(d_, s_): return [f"v_mov_b32_dpp {d_[tt][r]}, {s_[tt][0][r]} row_newbcast:0 row_mask:0xf bank_mask:0xf" for tt in (1, 0) for r in range(4)]
    def mfmas(s):
        b = fb[s & 1]; o = []
        def mm(d, a, bb): o.append(f"v_mfma_f32_16x16x32_bf16 {d}, {a}, {bb}, {d if s else 0}")
        if not OPT["xsq"]:
            for j in range(5): mm(dg[j], b['x'][j], b['x'][j])
        for p in (1, 2, 0):
            for tt in (1, 0):
                for j in range(5): mm(acc[p][tt][j], b['w'][p][tt], b['x'][j])
        return o
    def qhook(s_):
        ex = []
        if OPT["xsq"]:
            gq = dg + tmpcs
            gl = [f"buffer_load_dwordx4 {gq[p]}, {qga}, {sWS}, 0 offen offset:{512*p} sc1" for p in range(7)]
            bad = t[5]
            al = [g[k] for g in gq for k in (1, 3)]
            chk = [f"v_xor_b32 {bad}, {S['tag']}, {al[0]}"] + [f"v_bitop3_b32 {bad}, {x}, {S['tag']}, {bad} bitop3:0xbe" for x in al[1:]]
            if s_ == 8:
                def tg():
                    l0 = len(P.l); get_tag(C); x = "\n".join(P.l[l0:]); del P.l[l0:]; return x
                ex.append(Lazy(tg, "svsss"))
            k_ = OPT["qgs"]
            if OPT["qg"] - k_ < s_ <= OPT["qg"]:
                i_ = s_ - (OPT["qg"] - k_ + 1); ex += [vop(C, ("ga", 0), x) for x in gl[i_ * 7 // k_:(i_ + 1) * 7 // k_]]
            if s_ == OPT["qc"]:
                ex.append(Lazy(lambda: vm.wait(lambda q: q[0] == "ga")))
                ex += chk + [f"v_cmp_ne_u32 vcc, 0, {bad}", "s_cmp_lg_u64 vcc, 0\ns_cbranch_scc1 GQ_S\nGQ_X:"]
                C.slow.append(f"GQ_S:\ns_mov_b32 {S['t2']}, 0\nGQ_L:\n" + "\n".join(gl) + "\ns_waitcnt vmcnt(0)\n" + "\n".join(chk) +
                              f"\nv_cmp_ne_u32 vcc, 0, {bad}\ns_add_u32 {S['t2']}, {S['t2']}, 1\ns_cmp_ge_u32 {S['t2']}, {SPIN_MAX}\ns_cbranch_scc1 GQ_X\ns_cmp_lg_u64 vcc, 0\ns_cbranch_scc1 GQ_L\ns_branch GQ_X")
            if s_ == 13:
                for k, d_ in ((0, sq[1]), (2, sq[2])):
                    g = [x[k] for x in gq]
                    ex += [f"v_add_f32 {g[0]}, {g[0]}, {g[1]}", f"v_add_f32 {g[2]}, {g[2]}, {g[3]}", f"v_add_f32 {g[4]}, {g[4]}, {g[5]}",
                           f"v_add_f32 {g[0]}, {g[0]}, {g[2]}", f"v_add_f32 {g[4]}, {g[4]}, {g[6]}", f"v_add_f32 {d_}, {g[0]}, {g[4]}"]
                u = dg[0]
                ex += [f"v_mov_b32 {sq[3]}, {sq[1]}", f"v_mov_b32 {sq[4]}, {sq[2]}"]
                ex += [f"ds_bpermute_b32 {ST[j][0]}, {a1}, {K[1][j][0]}" for j in range(2)]
                ex += [f"v_permlane16_swap_b32 {sq[1]}, {sq[3]}", f"v_permlane16_swap_b32 {sq[2]}, {sq[4]}"]
                ex += [f"v_mov_b32 {u[0]}, {sq[1]}", f"v_mov_b32 {u[1]}, {sq[3]}", f"v_mov_b32 {sq[0]}, {sq[2]}", f"v_mov_b32 {u[2]}, {sq[4]}"]
                ex += [f"ds_bpermute_b32 {ST[j][0]}, {a1}, {K[1][j][0]}" for j in range(2, 5)]
                ex += [f"v_permlane32_swap_b32 {sq[1]}, {u[0]}", f"v_permlane32_swap_b32 {sq[3]}, {u[1]}", f"v_permlane32_swap_b32 {sq[2]}, {sq[0]}", f"v_permlane32_swap_b32 {sq[4]}, {u[2]}"]
            return ex
        if s_ != 13: return []
        for j in range(5):
            ex += [f"v_cndmask_b32 {dg[j][0]}, {dg[j][0]}, {dg[j][1]}, {mT}", f"v_cndmask_b32 {dg[j][2]}, {dg[j][2]}, {dg[j][3]}, {mT}",
                   f"v_cndmask_b32 {dg[j][0]}, {dg[j][0]}, {dg[j][2]}, {C.mU}"]
            if j: ex += [f"ds_bpermute_b32 {sq[j-1]}, {a2}, {dg[j-1][0]}"]
        ex += [f"ds_bpermute_b32 {sq[4]}, {a2}, {dg[4][0]}"]
        k = bc(csK, K)
        for j in range(5): ex += [f"ds_bpermute_b32 {ST[j][0]}, {a1}, {K[1][j][0]}", k[j]]
        return ex + k[5:]
    b2 = B2(C)
    run_loop(C, Rl.emit_item, Rl.sched, reads, mfmas, b2, OPT["qearly"], OPT["qstart"], rate2=OPT["qrate"], hook=qhook)
    if OPT["xsq"]: P.ext(bc(csK, K))
    P.ext(bc(csV, V))
    emit(C, b2.moves(C.hist[11]))
    P("s_waitcnt lgkmcnt(0)")
    if NPRE and OPT["pmv"] == 13:
        P("s_barrier"); b2.free += [b2.ch[t_] for t_ in range(NPRE)]
    if OPT["fine"] == 3: stamp(C, "q1")
    P(f"s_mov_b32 {S['t0']}, {f2h(1.0/448)}")
    for j in range(5): P(f"v_mul_f32 {ST[j][0]}, {f2h(-1.0/448)}, {ST[j][0]}")
    for j in range(5): P(f"v_mul_f32 {ST[j][1]}, {ST[j][0]}, {ST[j][0]}")
    for j in range(5): P(f"v_fma_f32 {ST[j][1]}, {sq[j]}, {S['t0']}, -{ST[j][1]}")
    for j in range(5): P(f"v_max_f32 {ST[j][1]}, 0, {ST[j][1]}")
    for j in range(5): P(f"v_add_f32 {ST[j][1]}, {f2h(1e-5)}, {ST[j][1]}")
    for j in range(5): P(f"v_rsq_f32 {ST[j][1]}, {ST[j][1]}")
    P.ext(bc(csQ, Q))
    if OPT["fine"] == 3: stamp(C, "q2")
    LO = "op_sel_hi:[1,0,1]"; HI = "op_sel:[0,1] op_sel_hi:[1,1]"
    def correct(A_, cs_, j, scale, dst):
        o = []
        for tt in range(2):
            a = A_[tt][j]
            o.append(f"v_pk_fma_f32 {a[0:2]}, {cs_[tt][0:2]}, {ST[j]}, {a[0:2]} {LO}")
            o.append(f"v_pk_fma_f32 {a[2:4]}, {cs_[tt][2:4]}, {ST[j]}, {a[2:4]} {LO}")
        if scale:
            for tt in range(2):
                a = A_[tt][j]
                o.append(f"v_pk_mul_f32 {a[0:2]}, {a[0:2]}, {ST[j]} {HI}")
                o.append(f"v_pk_mul_f32 {a[2:4]}, {a[2:4]}, {ST[j]} {HI}")
        for tt in range(2):
            a = A_[tt][j]
            o.append(f"v_cvt_pk_bf16_f32 {dst[2*tt]}, {a[0]}, {a[1]}")
            o.append(f"v_cvt_pk_bf16_f32 {dst[2*tt+1]}, {a[2]}, {a[3]}")
        return o
    def more(n): return b2.loads(n, C.lim)
    def grp(x):
        o = []
        for it in x:
            if isinstance(it, str) and " m0," in it: o.append([])
            o[-1].append(it)
        return o
    def weave(blocks, lumps):
        for i_, blk in enumerate(blocks):
            P.ext(blk)
            for lp in lumps[i_ * len(lumps) // len(blocks):(i_ + 1) * len(lumps) // len(blocks)]: emit(C, lp)
    vw = [f"ds_write_b128 {av_w2 if VCH[j] >= 8 else av_w}, {V[0][j]} offset:{(VCH[j]*8192) & 0xffff}" for j in range(5)]
    weave([correct(V, csV, j, True, V[0][j]) + [vw[j]] for j in range(5)], grp(more(OPT["qe1"])))
    if OPT["fine"] == 3: stamp(C, "q4")
    Vt = [R("a", C.abase - 20, 10), R("a", C.abase - 10, 10)]
    vr = lambda j: [f"ds_read_b64_tr_b16 {Vt[tt][2*j:2*j+2]}, {av_r2 if VCH[j] >= 8 else av_r} offset:{((VCH[j]*8192) & 0xffff) + 8*tt}" for tt in range(2)]
    weave([correct(K, csK, j, True, K[0][j]) + vr(j) for j in range(5)], grp(more(OPT["qe2"])))
    if OPT["fine"] == 3: stamp(C, "q6")
    weave([correct(Q, csQ, j, False, Q[0][j]) for j in range(1, 5)], grp(more(OPT["qe3"])))
    if OPT["fine"] == 3: stamp(C, "q7")
    S0 = {j: K[1][j] for j in range(1, 5)}; S1 = {j: V[1][j] for j in range(1, 5)}
    rg = [f"v_cmp_eq_u32 vcc, 1, {g_}", f"v_cndmask_b32 {t[5]}, {ST[1][1]}, {ST[2][1]}, vcc", f"v_cmp_eq_u32 vcc, 2, {g_}", f"v_cndmask_b32 {t[5]}, {t[5]}, {ST[3][1]}, vcc",
          f"v_cmp_eq_u32 vcc, 3, {g_}", f"v_cndmask_b32 {t[5]}, {t[5]}, {ST[4][1]}, vcc", f"v_cmp_lt_u32 vcc, 31, {lane}"]
    seq = []
    for j in range(1, 5):
        seq.append(f"v_mfma_f32_16x16x32_bf16 {S0[j]}, {K[0][j-1]}, {Q[0][j]}, {cfirst if j == 1 else cprev}")
        seq.append(f"v_mfma_f32_16x16x32_bf16 {S1[j]}, {K[0][j]}, {Q[0][j]}, {ccur}")
    P.ext(merge(seq, (rg, 0, 8)))
    if not OPT["xsq"]: get_tag(C)
    P("s_waitcnt lgkmcnt(0)"); b2.release(20)
    emit(C, xtile(C))
    if OPT["fine"] == 3: stamp(C, "q8")
    cq = f2h(28 ** -0.5 * math.log2(math.e))
    def softmax(a, b, tm):
        o = []
        X, Y = S0[a], S0[b]
        c, m1, m2 = tm[0], tm[1], tm[2]
        o.append(f"v_cndmask_b32 {c}, {ST[a][1]}, {ST[b][1]}, vcc")
        for r in range(4): o.append(f"v_max_f32 {X[r]}, {X[r]}, {S1[a][r]}")
        for r in range(4): o.append(f"v_max_f32 {Y[r]}, {Y[r]}, {S1[b][r]}")
        o.append(f"v_mul_f32 {c}, {cq}, {c}")
        for r in range(4): o.append(f"v_permlane32_swap_b32 {X[r]}, {Y[r]}")
        for r in range(4): o.append(f"v_max_f32 {X[r]}, {X[r]}, {Y[r]}")
        o.append(f"v_max3_f32 {m1}, {X[0]}, {X[1]}, {X[2]}")
        o.append(f"v_max_f32 {m1}, {m1}, {X[3]}")
        o.append(f"v_mov_b32 {m2}, {m1}")
        o.append(f"v_permlane16_swap_b32 {m1}, {m2}")
        o.append(f"v_max_f32 {m1}, {m1}, {m2}")
        o.append(f"v_mul_f32 {m1}, {m1}, {c}")
        for r in range(4): o.append(f"v_fma_f32 {X[r]}, {X[r]}, {c}, -{m1}")
        for r in range(4): o.append(f"v_exp_f32 {X[r]}, {X[r]}")
        o.append(f"v_add_f32 {m1}, {X[0]}, {X[1]}")
        o.append(f"v_add_f32 {m2}, {X[2]}, {X[3]}")
        o.append(f"v_add_f32 {m1}, {m1}, {m2}")
        o.append(f"v_mov_b32 {m2}, {m1}")
        o.append(f"v_permlane16_swap_b32 {m1}, {m2}")
        o.append(f"v_add_f32 {m1}, {m1}, {m2}")
        o.append(f"v_rcp_f32 {m1}, {m1}")
        for r in range(4): o.append(f"v_mul_f32 {X[r]}, {X[r]}, {m1}")
        o.append(f"v_cvt_pk_bf16_f32 {X[0]}, {X[0]}, {X[1]}")
        o.append(f"v_cvt_pk_bf16_f32 {X[1]}, {X[2]}, {X[3]}")
        o.append(f"v_mov_b32 {Y[0]}, {X[0]}")
        o.append(f"v_mov_b32 {Y[1]}, {X[1]}")
        o.append(f"v_permlane32_swap_b32 {X[0]}, {Y[0]}")
        o.append(f"v_permlane32_swap_b32 {X[1]}, {Y[1]}")
        for Zr in (X, Y):
            o.append(f"v_and_b32 {Zr[2]}, {Zr[0]}, {mcur[0]}")
            o.append(f"v_and_b32 {Zr[3]}, {Zr[1]}, {mcur[1]}")
            o.append(f"v_and_b32 {Zr[0]}, {Zr[0]}, {mprev[0]}")
            o.append(f"v_and_b32 {Zr[1]}, {Zr[1]}, {mprev[1]}")
        return o
    seq = []
    for x_, y_ in zip(softmax(1, 2, dg[1]), softmax(3, 4, dg[2])): seq += [x_, y_]
    l0 = b2.loaded
    emit(C, merge(seq, (more(OPT["qsm"]) + [poll_req(C)], 0, len(seq) * 2 // 3)))
    emit(C, b2.moves(l0))
    P("s_waitcnt lgkmcnt(0)"); b2.lgkm()
    if OPT["fine"] == 3: stamp(C, "q9")
    O = [{j: Q[1][j] for j in range(1, 5)}, {j: V[1][j] for j in range(1, 5)}]
    for j in range(1, 5):
        for tt in range(2):
            P(f"v_mfma_f32_16x16x32_bf16 {O[tt][j]}, {Vt[tt][2*(j-1):2*(j-1)+4]}, {S0[j]}, 0")
    Z = {(tt, pr): K[0][2*tt+pr] for tt in range(2) for pr in range(2)}
    for pr in range(2):
        for tt in range(2):
            z = Z[tt, pr]
            for ii in range(2):
                o_ = O[tt][1 + 2*pr + ii]
                P(f"v_cvt_pk_bf16_f32 {z[2*ii]}, {o_[0]}, {o_[1]}\nv_cvt_pk_bf16_f32 {z[2*ii+1]}, {o_[2]}, {o_[3]}")
    for pr in range(2):
        for tt in range(2):
            z = Z[tt, pr]
            P(f"v_permlane16_swap_b32 {z[0]}, {z[2]}\nv_permlane16_swap_b32 {z[1]}, {z[3]}")
    def stores():
        for pr in range(2):
            for tt in range(2):
                P(f"buffer_store_dwordx4 {Z[tt, pr]}, {so}, {sWS}, {S['b1']} offen offset:{tt*2048 + pr*1024} sc1"); vm.issue(("st", 0))
        P(f"buffer_store_dword {t[5]}, {sr}, {sWS}, 0 offen sc1"); vm.issue(("st", 0))
    stamp(C, "epiend")
    stores()
    P("s_cmp_ge_u32 s2, 224\ns_cbranch_scc1 Q_FIN")
    q0 = list(vm.q); l0_ = len(P.l)
    P("Q_FIN:\ns_waitcnt vmcnt(0)\ns_barrier"); flag_store(C)
    if OPT["epf"]:
        sl0 = list(C.slow)
        P(f"s_mul_i32 {S['b2']}, {S['T']}, {A2_KS*2048}\nv_lshlrev_b32 {t[0]}, 7, {lane}")
        if OPT["epf"] & 1:
            poll_check(C, "EP_F", 3, first=False)
            P(f"s_and_b32 {S['t0']}, s2, 1\ns_lshl_b32 {S['t0']}, {S['t0']}, 2\ns_add_u32 {S['t0']}, {S['t0']}, {w}\ns_mul_i32 {S['t0']}, {S['t0']}, {14*2048}\ns_add_u32 {S['t0']}, {S['t0']}, {S['b2']}\ns_add_u32 {S['t0']}, {S['t0']}, {32*2048}")
            for k in range(4):
                if k == 3: P("s_mov_b32 exec_hi, 0")
                P(f"buffer_load_dword v2, {t[0]}, {sWS}, {S['t0']} offen sc1\ns_add_u32 {S['t0']}, {S['t0']}, 8192")
            P("s_mov_b64 exec, -1")
        if OPT["epf"] & 2:
            poll_check(C, "EP_Q", 12, first=False)
            P(f"s_lshl_b32 {S['t0']}, {w}, 14\ns_add_u32 {S['t0']}, {S['t0']}, {S['b2']}")
            for k in range(2): P(f"buffer_load_dword v2, {t[0]}, {sWS}, {S['t0']} offen sc1\ns_add_u32 {S['t0']}, {S['t0']}, 8192")
    if OPT["stamps"] == 1:
        nm0 = list(C.names); stamp(C, "xflag"); C.role = "E"; stamp_flush(C); C.role = "Q"; C.names = nm0
    P("s_endpgm")
    C.slow.append("\n".join(P.l[l0_:])); del P.l[l0_:]
    vm.q = q0
    b2.drain(99, C.lim)
    poll_check(C, "PF_Q", 3)
    stamp(C, "polled")
    for tt in range(OPT["LA"]): emit(C, aload(C, tt))
    return max(va.hi, phase2(C, b2, 0))

def page_pads(l, w):
    import subprocess, re, os
    def sizes(lines):
        src = '.amdgcn_target "amdgcn-amd-amdhsa--gfx950"\n.text\n' + "\n".join(f"LN{i}:\n{x}" for i, x in enumerate(lines)) + f"\nLN{len(lines)}:\n"
        open("_pp.s", "w").write(src)
        subprocess.run(["clang", "-x", "assembler", "-target", "amdgcn-amd-amdhsa", "-mcpu=gfx950", "-c", "_pp.s", "-o", "_pp.o"], check=True)
        out = subprocess.run(["llvm-objdump", "-t", "_pp.o"], capture_output=True, text=True).stdout
        ad = {}
        for x in out.split("\n"):
            m = re.match(r"([0-9a-f]+) .* LN(\d+)$", x)
            if m: ad[int(m.group(2))] = int(m.group(1), 16)
        return ad
    for role, start in (("F", "R_FFN:"), ("Q", "R_QKV:")):
        i = l.index(f"WARM_{role}:")
        l[i+1:i+1] = ["s_mov_b64 exec, 0", f"s_cmp_eq_u32 {w}, 0", f"s_cbranch_scc1 PAD{role}1", f"s_cmp_eq_u32 {w}, 1", f"s_cbranch_scc1 PAD{role}2",
                      f"s_cmp_eq_u32 {w}, 2", f"s_cbranch_scc1 PAD{role}3", f"s_branch PAD{role}4", f"BACK_{role}:", "s_mov_b64 exec, -1"]
    tmp = l + [f"PAD{r}{k}:" for r in "FQ" for k in range(1, 5)]
    ad = sizes(tmp)
    ins = []
    for role, start in (("F", "R_FFN:"), ("Q", "R_QKV:")):
        a = l.index(start); b = l.index(f"END_{role}:")
        base = ad[a + 1]; k = 1; masked = False; pos = []; sh = 0
        big = lambda i: l[i].startswith("v_") and not l[i].startswith("v_mfma") and ad[i + 1] - ad[i] == 8
        for i in range(a + 1, b):
            newpad = not masked and ad[i] - base + sh >= 4096 * k
            if newpad: pos.append(i); k += 1; sh += 4
            if OPT["alr"] and big(i) and (newpad or not big(i - 1)) and (ad[i] - base + sh) % 8:
                n_ = 0
                while big(i + n_): n_ += 1
                if n_ >= OPT["alr"]: ins.append((i + 0.5, ["s_nop 0"])); sh += 4
            if l[i].startswith(("s_mov_b64 exec,", "s_mov_b32 exec_hi")): masked = not l[i].endswith("-1")
        n = len(pos)
        for k, i in enumerate(pos, 1): ins.append((i, [f"PAD{role}{k}:", f"s_cbranch_execz {f'PAD{role}{k+4}' if k + 4 <= n else f'BACK_{role}'}"]))
        for k in range(n + 1, 5): ins.append((l.index(f"BACK_{role}:"), [f"PAD{role}{k}:"]))
    for i, x in sorted(ins, key=lambda z: -z[0]): l[int(i):int(i)] = x
    return l

def main():
    C = Ctx(); P = C.P = Prog()
    sa = Alloc("s", 3, 98); S = C.S = {}
    S['w'] = sa()
    C.ptr = sa(16, 4); C.wsp = sa(2); pc = sa(2)
    C.sX, C.sW, C.sWS, C.sB2, C.sBo, C.sD, C.sP = [sa(4) for _ in range(7)]
    C.mW, C.mH, C.mT, C.mU = sa(2), sa(2), sa(2), sa(2)
    C.tm = pc
    C.sP2 = R('s', 92, 4) if not OPT['stamps'] else R('s', 96, 4)
    assert not (OPT['stamps'] and OPT['spin'])
    for n in "e rbl cb t0 t1 t2 kx kw wm0 xm0 b1 b2 hh half T cb2 bo bo_s bbeg bend sbeg send ri rr tb bm0 tag".split(): S[n] = sa()
    ns = 102
    assert sa.hi <= 90, sa.hi
    C.names = []; C.allnames = {}; C.slow = []
    dead = [C.ptr[i] for i in (2, 3, 4, 5, 6, 7, 8, 9, 10, 11, 14, 15)]
    C.kxs = [S['kx']] + dead[:6]; C.kws = [S['kw']] + dead[6:]
    C.lane = lane = R("v", 0)
    va = Alloc("v", 3, 256)
    t = C.t = [va() for _ in range(7)]
    C.vA = [va(), va()]; C.vB = [va(), va()]; C.rB = [[va(), va()] for _ in range(3)]; C.rP = [[va(), va()] for _ in range(3)]; C.vXd = va()
    C.vF, C.vZ, C.vN, C.vPF, C.vST, C.vFL = [va() for _ in range(6)]
    C.xd = xd = [va() for _ in range(4)]
    C.vbase = va.p
    C.abase = 96
    C.NA = OPT["LA"] + 1
    C.vring = 256 - 8 * C.NA
    C.aring = [[R("v", C.vring + 8*i + 4*j, 4) for j in range(2)] for i in range(C.NA)]
    na = 256
    pre = list(range(NPRE)) + list(range(14, 14 + NPRE))
    order = [i for i in range(28) if i not in pre] + pre
    C.breg = [[R("a", 8*order.index(i), 4), R("a", 8*order.index(i) + 4, 4)] for i in range(28)]
    w = S['w']
    P(f"{NAME}_kernel:")
    stamp(C, "start")
    if OPT["spin"]: P("s_memrealtime s[98:99]")
    P("s_cmp_ge_u32 s2, 256\ns_cbranch_scc1 K_END")
    P(f"s_load_dwordx16 {C.ptr}, s[0:1], 0\ns_load_dwordx2 {C.wsp}, s[0:1], 64")
    P(f"s_getpc_b64 {pc}\ns_lshr_b32 {S['t0']}, s2, 3\ns_lshl_b32 {S['t0']}, {S['t0']}, 11\nv_lshl_add_u32 v1, v0, 3, {S['t0']}\nglobal_load_dword v2, v1, {pc}")
    P(f"v_lshrrev_b32 v1, 6, v0\nv_and_b32 v0, 63, v0\nv_readfirstlane_b32 {w}, v1")
    P(f"s_bfe_u32 {S['e']}, s2, 0x10002\ns_bfe_u32 {S['rbl']}, s2, 0x30003")
    P(f"s_and_b32 {S['t0']}, s2, 3\ns_lshl_b32 {S['t0']}, {S['t0']}, 1\ns_bfe_u32 {S['t1']}, s2, 0x10006\ns_add_u32 {S['cb']}, {S['t0']}, {S['t1']}")
    if OPT["rot"] and not OPT["com"]:
        P(f"s_lshr_b32 {S['t0']}, s2, 7\ns_lshl_b32 {S['t0']}, {S['t0']}, 1\ns_add_u32 {S['t0']}, {S['t0']}, {S['rbl']}\ns_add_u32 {S['t0']}, {S['t0']}, {S['cb']}")
        P(f"s_mul_i32 {S['t1']}, {S['t0']}, 37\ns_lshr_b32 {S['t1']}, {S['t1']}, 8\ns_mul_i32 {S['t1']}, {S['t1']}, 7\ns_sub_u32 {S['t0']}, {S['t0']}, {S['t1']}")
    else:
        P(f"s_mov_b32 {S['t0']}, 0")
    P(f"s_lshl_b32 {S['kx']}, {S['t0']}, 7\ns_mul_i32 {S['t2']}, {S['e']}, 896")
    P(f"s_lshl_b32 {S['t0']}, {S['rbl']}, 7\ns_lshl_b32 {S['t1']}, {w}, 5\ns_add_u32 {S['t0']}, {S['t0']}, {S['t1']}")
    P(f"v_lshrrev_b32 {t[4]}, 3, {lane}\nv_add_u32 {t[0]}, {S['t0']}, {t[4]}\nv_mul_u32_u24 {t[0]}, 1792, {t[0]}")
    P(f"v_lshrrev_b32 {t[1]}, 4, {lane}\nv_and_b32 {t[5]}, 7, {lane}\nv_xor_b32 {t[2]}, {t[1]}, {t[5]}")
    P(f"v_lshl_add_u32 {xd[0]}, {t[2]}, 4, {t[0]}")
    P(f"v_xor_b32 {t[3]}, 64, {xd[0]}\nv_add_u32 {xd[1]}, {8*1792 - 1024}, {t[3]}\nv_add_u32 {xd[2]}, {16*1792 - 2048}, {xd[0]}\nv_add_u32 {xd[3]}, {24*1792 - 3072}, {t[3]}")
    P(f"s_and_b32 {S['hh']}, {w}, 1\ns_lshr_b32 {S['half']}, {w}, 1\ns_lshl_b32 {S['b1']}, {S['hh']}, 2\ns_lshl_b32 {S['xm0']}, {w}, 12")
    P("s_cmp_lt_u32 s2, 128\ns_cbranch_scc1 H_FFN")
    rq = qkv_head(C)
    P("s_branch R_QKV\nH_FFN:")
    rf = ffn_head(C)
    if OPT["pads"]: P("s_branch R_FFN\n.p2align 12")
    P("R_FFN:")
    nv1 = ffn_body(C, rf)
    P("END_F:")
    if OPT["pads"]: P(".p2align 12")
    P("R_QKV:"); C.names = C.names[:1]
    nv2 = qkv_body(C, rq)
    P("END_Q:")
    for x in C.slow: P(x)
    P("K_END:\ns_endpgm")
    l, npad = pad_hazards(P.l)
    if OPT["pads"] == 1: l = page_pads(l, w)
    out = [f"; generated by gen13.py {OPT} (hazard pads {npad})",
           f"; stamps {C.allnames}",
           "; @launch grid=(256,1,1) block=(256,1,1) lds=163840",
           '.amdgcn_target "amdgcn-amd-amdhsa--gfx950"\n.text',
           f".globl {NAME}_kernel\n.p2align 8\n.type {NAME}_kernel,@function"]
    out.extend(l)
    out.append(".fill 8192, 4, 0xbf800000")
    out.append(kernel_desc(f"{NAME}_kernel", max(nv1, nv2), na, ns))
    print("\n".join(out))
main()
```

```python
import sys, math, struct
from asmlib import *

NAME = "recurrent_scan__sliding_local_dilated__dense_activation_relu__prompt"
OPT = dict(rot=1, pro=20, rate=8, LA=5, RX=27, CK=32, gsn=2, TB2=30, R1=16, stamps=0, b2start=9, b2rate=6, qrate=6, mlag=3, TB=30, fe_per=22, pfm=2, rot2=2, post=4, spin=0, rq=1, rm=1, wof=14, rqm=0, proq=18, r0=0, dm0=95, ost=0, pre=1, LA0=5, tp=4, xsq=1, qg=10, qc=13, qgs=3, sqs=3, ffl=1, pal=0, pas=1, alr=5, fb='3204', qb='12333', exe=80, qe1=1, qe2=4, qe3=1, atab=11, smooth=3, gm=1, gentle=1, rdf=80, epf=0, rots2=0, otouch=0, fpost=1, wsoff=0, tlb=0, qe=3, pr=5, gsp=2, xst=1, gat=9, npl=2, fine=0, enc='', encwg=0,
           fearly=1, fstart=10, qearly=1, qstart=9, nreg=17, late=0, npre=4, pmv=13, pads=1, wpos=4, gck=3, fepi=0, qsm=5, ntx=0, ntw=0, first=8, com=0, pfs=1, pfd=0, slp=0, rots=1, ahead=2, slack=3, sp2=1, stfirst=1, rotm=7, rotk=1)
for a in sys.argv[1:]:
    k, v = a.split("="); assert k in OPT, k; OPT[k] = int(v) if k not in ("enc", "fb", "qb") else v

f2h = lambda x: hex(struct.unpack("<I", struct.pack("<f", x))[0])
NT2 = 36
A2_KS = 144
RSTD_OFF = 2048 * A2_KS * 32
FLAG_OFF = RSTD_OFF + 8 * 8192
SCOL_OFF = FLAG_OFF + 256 * 128
SROW_OFF = SCOL_OFF + 16 * 16384
XF_OFF = SROW_OFF + 16 * 16384
WS_USED = XF_OFF + 256 * 4 * 3072
STAMP_OFF = 16 << 20
WS_REC = (STAMP_OFF + (1 << 20)) if OPT["stamps"] else WS_USED
assert (OPT["wsoff"] << 20) + WS_REC <= 256 << 20
XBYTES = 2048 * 896
NTX = " nt" if OPT["ntx"] else ""; NTW = " nt" if OPT["ntw"] else ""
ONES = "0x3f803f80"; NINF = "0xff800000"; BIG = "0x80000000"
NB = 22
NPRE = OPT["npre"]
assert OPT["late"] + NPRE >= 3 and NPRE % 2 == 0
REL = {"F": [12, 12, 13, 13, 10, 10, 11, 11, 13, 13, 9, 9, 11, 11] + [-1] * 6,
       "Q": [20, 20, 20, 9, 11, 11, 12, 12, 20, 20, 10, 11, 11, -1] + [-1] * 6}
XCH = 19
SPIN_MAX = 1 << 16

def srd(P, d, lo, hi, n):
    P(f"s_mov_b32 {d[0]}, {lo}\ns_mov_b32 {d[1]}, {hi}\ns_mov_b32 {d[2]}, {n}\ns_mov_b32 {d[3]}, 0x20000")

class Cnt:
    def __init__(self, name, mx): self.q = []; self.name = name; self.mx = mx
    def issue(self, tag): self.q.append(tag)
    def cnt(self, pred):
        last = -1
        for i, t in enumerate(self.q):
            if pred(t): last = i
        return min(len(self.q) - 1 - last, self.mx)
    def wait(self, pred): return f"s_waitcnt {self.name}({self.cnt(pred)})"

class Ctx: pass
class Lazy:
    def __init__(self, fn, ty="s"): self.fn = fn; self.ty = ty
def emit(C, seq):
    for x in seq: C.P(x.fn() if isinstance(x, Lazy) else x)
def vop(C, tag, text):
    def f():
        C.vm.issue(tag); return text
    return Lazy(f, types_of(text))
def lop(C, tag, text):
    def f():
        C.lg.issue(tag); return text
    return Lazy(f, types_of(text))

def stamp(C, name):
    if OPT["enc"] == name: C.P("s_memrealtime s[100:101]")
    if not OPT["stamps"] or (OPT["stamps"] == 3 and name not in ("start", "end")): return
    i = len(C.names); C.names.append(name)
    if i and OPT["fine"] == 1 and name in ("tb",): C.P("s_nop 15\ns_nop 15")
    if i: C.P(f"v_writelane_b32 {C.vST}, s{90 + 2*((i-1)&1)}, {i-1}")
    C.P(f"{'s_memrealtime' if OPT['stamps'] != 2 else 's_memtime'} s[{90 + 2*(i&1)}:{91 + 2*(i&1)}]")

def stamp_flush(C):
    if not OPT["stamps"]: return
    P, S = C.P, C.S
    i = len(C.names)
    P(f"s_waitcnt lgkmcnt(0)\nv_writelane_b32 {C.vST}, s{90 + 2*((i-1)&1)}, {i-1}")
    P(f"s_lshl_b32 {S['t0']}, s2, 2\ns_add_u32 {S['t0']}, {S['t0']}, {S['w']}\ns_lshl_b32 {S['t0']}, {S['t0']}, 8\ns_add_u32 {S['t0']}, {S['t0']}, {STAMP_OFF}")
    P(f"v_lshl_add_u32 v1, v0, 2, {S['t0']}\nbuffer_store_dword {C.vST}, v1, {C.sWS}, 0 offen")
    C.allnames[C.role] = list(C.names)

def itype(line):
    op = line.split()[0]
    if op.endswith(":"): return ""
    if op.startswith("ds_write"): return "W"
    if op.startswith("ds_"): return "t"
    if op.startswith(("buffer_", "global_")): return "m"
    if op.startswith(("v_exp", "v_rcp", "v_rsq", "v_permlane")): return "T"
    if op.startswith("v_"): return "v"
    return "s"
def types_of(it):
    if isinstance(it, Lazy): return it.ty
    return "".join(itype(x) for x in it.split("\n"))
def gap_end(ty):
    t = 4; prev = ""; pstart = 0
    for c in ty:
        if c == "s": t += 4
        elif c in "vT": t = max(t, 8) + (4 if c == "v" else 8)
        else:
            st = t
            if prev in ("v", "T"): st = t + 4
            elif prev in ("t", "m", "W") and (prev == "m") != (c == "m"): st = pstart + 4
            pstart = st; t = st + (8 if c != "W" else 28)
        prev = c
    return t
def spread(main, *streams, clk=16):
    n = len(main)
    qs = []
    for items, a, b in streams:
        k = len(items)
        qs.append([(a * n + (i + 0.5) * (b - a) * n / max(k, 1), it, types_of(it)) for i, it in enumerate(items)])
    out = []
    for g, m in enumerate(main):
        out.append(m)
        prevW = g > 0 and "W" in ty
        ty = "".join(itype(x) for x in m.split("\n")[1:])
        while True:
            cand = [q for q in qs if q and (q[0][0] <= g + OPT["ahead"] or g == n - 1)]
            last_m0 = isinstance(out[-1], str) and " m0," in out[-1].split("\n")[-1]
            fit = [q for q in cand if gap_end(ty + ("s" if last_m0 and q[0][2][:1] == "m" else "") + q[0][2]) <= clk]
            if prevW: fit = [q for q in fit if "W" not in q[0][2]]
            if not fit:
                fit = [q for q in cand if g == n - 1 or (ty == "" and q[0][0] <= g + 1 and not (prevW and "W" in q[0][2])) or q[0][0] <= g - OPT["slack"]]
                if not fit: break
            pr = lambda q: ({"t": 0, "m": 0, "W": 0, "s": 1}.get(q[0][2][:1], 2) if q[0][0] <= g + 1 else 3, q[0][0])
            q = min(fit, key=pr)
            out.append(q[0][1]); ty += q[0][2]; q.pop(0)
    return out

def adv(reg, step, wrap, start=0):
    return f"s_add_u32 {reg}, {reg}, {step}\ns_cmp_eq_u32 {reg}, {wrap}\ns_cselect_b32 {reg}, {start}, {reg}"

def schedule(items, pro, rate, nsteps):
    sched = {s: [] for s in range(-1, nsteps)}
    i = 0
    for s in range(-1, nsteps):
        cap = pro if s == -1 else (rate if (s < OPT["smooth"] or not OPT["smooth"]) else 6)
        if s == 0 and OPT["r0"]: cap = OPT["r0"]
        n = 0
        while i < len(items) and items[i]["free"] <= s and (n < cap or items[i]["need"] - 2 <= s):
            sched[s].append(i); i += 1; n += 1
    assert i == len(items)
    return sched

class B2:
    def __init__(self, C):
        self.C = C; self.loaded = 0
        rel = REL[C.role]
        self.pend = sorted((rel[i], i) for i in range(20) if i != XCH)
        self.free = []; self.ch = {}
        k = OPT["wof"]
        self.seq = list(range(k)) + [14, 15] + list(range(k, 14)) + list(range(16, NB))
        self.xchunk = XCH
    def release(self, step):
        while self.pend and self.pend[0][0] <= step: self.free.append(self.pend.pop(0)[1])
    def lgkm(self): pass
    def moves(self, *a): return []
    def win(self, t):
        b = self.ch[t] * 8192
        return (b >> 16, b & 0xffff)
    def dma(self, t):
        C = self.C; S = C.S
        if t < 14: sB = C.sB2; so = S['bo']; post = f"s_add_u32 {so}, {so}, 14336" if (t & 1) == 0 else adv(so, 14336, S['bend'], S['bbeg'])
        else: sB = C.sBo; so = S['bo_s']; post = f"s_add_u32 {so}, {so}, {16 * 896}" if (t & 1) == 0 else adv(so, 12 * 896, S['send'], S['sbeg'])
        out = [f"s_add_u32 m0, {S['bm0']}, {self.ch[t] * 8192}"]
        for j in range(2):
            out.append(vop(C, ("b2", t), f"buffer_load_dwordx4 {C.vB[j]}, {sB}, {so} offen offset:{j*1024} lds"))
        pl = post.split("\n")
        out.append(pl[0])
        if len(pl) > 1: out.append("\n".join(pl[1:]))
        return out
    def tr(self, t, dst, regs):
        win, off = self.win(t); rb = regs[win]
        o = []
        for f in range(2):
            o.append(f"ds_read_b64_tr_b16 {dst[f][0:2]}, {rb[f]} offset:{off}")
            o.append(f"ds_read_b64_tr_b16 {dst[f][2:4]}, {rb[f]} offset:{off + 512}")
        return o
    def next_load(self, lim=NB):
        if self.loaded < lim and self.free:
            t = self.seq[self.loaded]
            self.ch[t] = self.free.pop(0); self.loaded += 1
            return self.dma(t)
        return None
    def loads(self, n, lim=NB):
        o = []
        for _ in range(n):
            x = self.next_load(lim)
            if x is None: break
            o.extend(x)
        return o
    def drain(self, n, lim):
        emit(self.C, self.loads(n, lim))

def p2_setup(C):
    P, S, t, lane, w = C.P, C.S, C.t, C.lane, C.S['w']
    P(f"s_bfe_u32 {S['t0']}, s2, 0x20001\ns_lshl_b32 {S['t0']}, {S['t0']}, 2\ns_bfe_u32 {S['ri']}, s2, 0x20003\ns_add_u32 {S['t0']}, {S['t0']}, {S['ri']}\ns_lshl_b32 {S['t0']}, {S['t0']}, 1")
    P(f"s_and_b32 {S['t2']}, s2, 1\ns_add_u32 {S['T']}, {S['t0']}, {S['t2']}\ns_lshr_b32 {S['cb2']}, s2, 5")
    G = max(OPT["rot2"], 1)
    tab = sum(((c % G) * 7 // G) << (4 * c) for c in range(8))
    P(f"s_lshl_b32 {S['t0']}, {S['cb2']}, 2\ns_lshr_b32 {S['t0']}, {tab}, {S['t0']}\ns_and_b32 {S['t0']}, {S['t0']}, 15\ns_lshl_b32 {S['t1']}, {S['ri']}, 1\ns_add_u32 {S['t0']}, {S['t0']}, {S['t1']}")
    P(f"s_sub_u32 {S['t1']}, {S['t0']}, 7\ns_cmp_ge_u32 {S['t0']}, 7\ns_cselect_b32 {S['rr']}, {S['t1']}, {S['t0']}")
    if OPT["rots2"]: P(f"s_lshl_b32 {S['t0']}, {S['cb2']}, 1\ns_add_u32 {S['ri']}, {S['ri']}, {S['t0']}\ns_and_b32 {S['ri']}, {S['ri']}, 3")
    P(f"s_lshl_b32 {S['t2']}, {S['t2']}, 2\ns_add_u32 {S['t2']}, {S['t2']}, {w}")
    P(f"s_mul_i32 {S['bbeg']}, {S['t2']}, {14*14336}\ns_add_u32 {S['bend']}, {S['bbeg']}, {14*14336}\ns_mul_i32 {S['t1']}, {S['rr']}, {2*14336}\ns_add_u32 {S['bo']}, {S['bbeg']}, {S['t1']}")
    P(f"s_mul_i32 {S['sbeg']}, {w}, {112*896}\ns_add_u32 {S['send']}, {S['sbeg']}, {112*896}\ns_mul_i32 {S['t1']}, {S['ri']}, {28*896}\ns_add_u32 {S['bo_s']}, {S['sbeg']}, {S['t1']}")
    P(f"s_xor_b32 {S['t0']}, {S['T']}, 1\ns_mul_i32 {S['t0']}, {S['t0']}, {A2_KS}\ns_add_u32 {S['t0']}, {S['t0']}, 32\ns_lshl_b32 {S['t0']}, {S['t0']}, 1\ns_add_u32 {S['t0']}, {S['t0']}, {S['hh']}\ns_lshl_b32 {S['t0']}, {S['t0']}, 10")
    P(f"v_lshl_add_u32 {t[0]}, {lane}, 4, {S['t0']}\ns_mul_i32 {S['t1']}, {S['t2']}, {14*2048}\nv_add_u32 {C.vA[0]}, {S['t1']}, {t[0]}\ns_xor_b32 {S['t1']}, {S['t2']}, 1\ns_mul_i32 {S['t1']}, {S['t1']}, {14*2048}\nv_add_u32 {C.vA[1]}, {S['t1']}, {t[0]}")
    P(f"v_lshrrev_b32 {t[0]}, 3, {lane}\nv_mul_u32_u24 {t[0]}, 896, {t[0]}\nv_bfe_u32 {t[1]}, {lane}, 4, 1\nv_lshlrev_b32 {t[1]}, 2, {t[1]}\nv_and_b32 {t[2]}, 7, {lane}\nv_xor_b32 {t[1]}, {t[1]}, {t[2]}")
    P(f"s_lshl_b32 {S['t1']}, {S['cb2']}, 7\nv_lshl_add_u32 {t[0]}, {t[1]}, 4, {t[0]}\nv_add_u32 {C.vB[0]}, {S['t1']}, {t[0]}\nv_add_u32 {C.vB[1]}, {7168 - 1024}, {C.vB[0]}")
    P(f"s_lshl_b32 {S['bm0']}, {w}, 11")
    P(f"s_cmp_lt_u32 s2, 224\ns_cselect_b32 {S['t0']}, {1792*896}, 0\ns_cselect_b32 {S['t1']}, {448*896}, 0")
    srd(P, C.sB2, C.ptr[10], C.ptr[11], S['t0'])
    srd(P, C.sBo, C.ptr[4], C.ptr[5], S['t1'])
    P(f"s_lshl_b32 {S['t1']}, {S['half']}, 6")
    P(f"v_bfe_u32 {t[0]}, {lane}, 2, 2\nv_lshrrev_b32 {t[1]}, 5, {lane}\nv_lshl_add_u32 {t[0]}, {t[1]}, 3, {t[0]}\nv_lshlrev_b32 {t[0]}, 7, {t[0]}")
    P(f"v_bfe_u32 {t[1]}, {lane}, 3, 1\nv_lshl_add_u32 {t[0]}, {t[1]}, 6, {t[0]}\nv_bfe_u32 {t[1]}, {lane}, 4, 1\nv_lshl_add_u32 {t[0]}, {t[1]}, 5, {t[0]}")
    P(f"v_and_b32 {t[1]}, 3, {lane}\nv_lshl_add_u32 {t[0]}, {t[1]}, 3, {t[0]}\nv_xor_b32 {t[0]}, {S['t1']}, {t[0]}")
    P(f"v_add_u32 {C.rB[0][0]}, {S['bm0']}, {t[0]}\nv_xor_b32 {C.rB[0][1]}, 64, {C.rB[0][0]}")
    for i in (1, 2): P(f"v_add_u32 {C.rB[i][0]}, {65536*i}, {C.rB[0][0]}\nv_add_u32 {C.rB[i][1]}, {65536*i}, {C.rB[0][1]}")
    for i in range(3):
        for j in range(2): P(f"v_xor_b32 {C.rP[i][j]}, 2048, {C.rB[i][j]}")
    P(f"s_and_b32 {S['t0']}, {S['T']}, 15\ns_mul_i32 {S['t0']}, {S['t0']}, {64*1792}\ns_lshr_b32 {S['t1']}, {S['T']}, 4\ns_mul_i32 {S['t1']}, {S['t1']}, 896\ns_add_u32 {S['t0']}, {S['t0']}, {S['t1']}")
    P(f"s_lshl_b32 {S['t1']}, {S['cb2']}, 7\ns_add_u32 {S['tb']}, {S['t0']}, {S['t1']}\ns_mul_i32 {S['t0']}, {w}, {16*1792}\ns_add_u32 {S['t0']}, {S['t0']}, {S['tb']}")
    P(f"v_lshrrev_b32 {t[0]}, 3, {lane}\nv_and_b32 {t[1]}, 7, {lane}\nv_xor_b32 {t[1]}, {t[0]}, {t[1]}\nv_mul_u32_u24 {t[0]}, 1792, {t[0]}\nv_lshl_add_u32 {t[0]}, {t[1]}, 4, {t[0]}\nv_add_u32 {C.vXd}, {S['t0']}, {t[0]}")
    P(f"s_lshr_b32 {S['t0']}, {S['T']}, 4\ns_lshl_b32 {S['t0']}, {S['t0']}, 2\ns_bfe_u32 {S['t1']}, {S['T']}, 0x30001\ns_lshl_b32 {S['t1']}, {S['t1']}, 3\ns_add_u32 {S['t0']}, {S['t0']}, {S['t1']}")
    P(f"s_lshl_b32 {S['t0']}, {S['t0']}, 7\ns_add_u32 {S['t0']}, {S['t0']}, {FLAG_OFF}\nv_and_b32 {t[0]}, 1, {lane}\nv_lshl_add_u32 {C.vF}, {t[0]}, 13, {S['t0']}")
    P(f"s_lshr_b32 {S['t2']}, {S['t2']}, 1\ns_lshl_b32 {S['t2']}, {S['t2']}, 7\ns_lshl_b32 {S['t1']}, {w}, 7\ns_add_u32 {S['t1']}, {S['t1']}, 16384")
    P(f"v_mov_b32 {t[0]}, {S['t2']}\nv_mov_b32 {t[1]}, {S['t1']}\nv_cmp_lt_u32 vcc, 1, {lane}\nv_cndmask_b32 {t[0]}, {t[0]}, {t[1]}, vcc")
    P(f"v_xor_b32 {t[1]}, 128, {t[1]}\nv_cmp_lt_u32 vcc, 3, {lane}\nv_cndmask_b32 {t[0]}, {t[0]}, {t[1]}, vcc\nv_add_u32 {C.vF}, {C.vF}, {t[0]}")
    P(f"v_mov_b32 {t[0]}, {BIG}\nv_cmp_lt_u32 vcc, 5, {lane}\nv_cndmask_b32 {C.vF}, {C.vF}, {t[0]}, vcc")
    srd(P, C.sD, C.ptr[14], C.ptr[15], 256)
    P(f"v_mov_b32 {C.vZ}, 0")
    if OPT["pfm"] == 3 and C.role == "Q":
        srd(P, C.sP, C.ptr[10], C.ptr[11], 1792 * 896)
        P(f"s_sub_u32 {S['t0']}, s2, 224\ns_lshl_b32 {S['t0']}, {S['t0']}, 2\ns_add_u32 {S['t0']}, {S['t0']}, {w}\ns_lshl_b32 {S['t0']}, {S['t0']}, 13\ns_cmp_lt_u32 s2, 224\ns_cselect_b32 {S['t0']}, {BIG}, {S['t0']}")
        P(f"v_lshl_add_u32 {C.vPF}, {lane}, 7, {S['t0']}")
        P(f"s_lshl_b32 {S['t0']}, {S['e']}, 3\ns_add_u32 {S['t0']}, {S['t0']}, {S['rbl']}\ns_and_b32 {S['t1']}, {S['cb']}, 1\ns_lshl_b32 {S['t1']}, {S['t1']}, 4\ns_add_u32 {S['t0']}, {S['t0']}, {S['t1']}\ns_lshl_b32 {S['t0']}, {S['t0']}, 2\ns_add_u32 {S['t0']}, {S['t0']}, {w}")
        P(f"s_add_u32 {S['t1']}, {S['t0']}, 128\ns_sub_u32 {S['t2']}, {S['t0']}, 68\ns_cmp_lt_u32 {S['t0']}, 68\ns_cselect_b32 {S['t0']}, {S['t1']}, {S['t2']}")
        P(f"s_cselect_b32 {C.sP2[0]}, {C.ptr[10]}, {C.ptr[4]}\ns_cselect_b32 {C.sP2[1]}, {C.ptr[11]}, {C.ptr[5]}\ns_mov_b32 {C.sP2[2]}, {448*896}\ns_cselect_b32 {C.sP2[2]}, {1792*896}, {C.sP2[2]}\ns_mov_b32 {C.sP2[3]}, 0x20000")
        P(f"s_lshl_b32 {S['t0']}, {S['t0']}, 13\ns_add_u32 {S['t1']}, {S['cb']}, 1\ns_and_b32 {S['t1']}, {S['t1']}, 7\ns_cmp_lt_u32 {S['t1']}, 2\ns_cselect_b32 {S['t0']}, {S['t0']}, {BIG}")
        P(f"v_lshl_add_u32 {C.vFL}, {lane}, 7, {S['t0']}")
    elif OPT["pfm"] and C.role == "Q":
        if OPT["pfm"] == 2: base, lpw = 224, 128
        else: base, lpw = 128, 32
        nw2 = 12544 // lpw
        P(f"s_sub_u32 {S['t0']}, s2, {base}\ns_lshl_b32 {S['t0']}, {S['t0']}, 2\ns_add_u32 {S['t0']}, {S['t0']}, {w}\ns_sub_u32 {S['t1']}, {S['t0']}, {nw2}\ns_cmp_lt_u32 {S['t0']}, {nw2}\ns_cselect_b32 {S['t0']}, {S['t0']}, {S['t1']}")
        P(f"s_cselect_b32 {C.sP[0]}, {C.ptr[10]}, {C.ptr[4]}\ns_cselect_b32 {C.sP[1]}, {C.ptr[11]}, {C.ptr[5]}\ns_mov_b32 {C.sP[2]}, {448*896}\ns_cselect_b32 {C.sP[2]}, {1792*896}, {C.sP[2]}\ns_mov_b32 {C.sP[3]}, 0x20000")
        P(f"s_cmp_lt_u32 s2, {base}\ns_cselect_b32 {C.sP[2]}, 0, {C.sP[2]}\ns_cselect_b32 {S['t0']}, 0, {S['t0']}")
        P(f"s_mul_i32 {S['t0']}, {S['t0']}, {lpw*128}\nv_lshl_add_u32 {C.vPF}, {lane}, {8 if lpw == 128 else 6}, {S['t0']}")

def a_tables(C):
    S = C.S; o = [f"s_lshl_b32 {C.kxs[0]}, {S['rr']}, 12"]
    for d in range(1, 7): o += [f"s_add_u32 {C.kxs[d]}, {C.kxs[d-1]}, 4096", f"s_cmp_eq_u32 {C.kxs[d]}, {7*4096}\ns_cselect_b32 {C.kxs[d]}, 0, {C.kxs[d]}"]
    o.append(f"s_lshl_b32 {C.kws[1]}, {S['ri']}, 12")
    for d in range(1, 4): o += [f"s_add_u32 {C.kws[1+d]}, {C.kws[d]}, 4096", f"s_and_b32 {C.kws[1+d]}, {C.kws[1+d]}, 0x3fff"]
    return o

def run_loop(C, emit_item, sched, reads, mfmas, b2, early, estart, nsteps=14, hook=None, nonce_at=6, rate2=8):
    P, S, vm = C.P, C.S, C.vm
    if OPT["pfm"] == 2 and C.role == "Q" and OPT["pfs"] < 0:
        for j in range(2): vm.issue(("pf", 0)); P(f"buffer_load_dword v2, {C.vPF}, {C.sP}, 0 offen offset:{128*j}")
    P(vm.wait(lambda q: q[0] == "d" and q[1] <= 0) + " lgkmcnt(0)")
    P("s_barrier")
    stamp(C, "d0")
    P.ext(reads(0))
    hist = {}
    for s in range(nsteps):
        post = C.role == "F" and OPT["fpost"]
        pmv = 99 if post else OPT["pmv"]
        pm = NPRE and s == pmv
        if pm: assert b2.loaded >= NPRE
        if s + 1 < nsteps or pm: P(vm.wait(lambda q: (q[0] == "d" and q[1] <= s + 1) or (pm and q[0] == "b2" and q[1] < NPRE)) + " lgkmcnt(0)")
        else: P("s_waitcnt lgkmcnt(0)")
        P("s_barrier")
        if s in (1, 2, 4, 7, 10, 13) or (OPT["fine"] == 2 and s >= 1): stamp(C, f"s{s}")
        m = mfmas(s)
        rd = reads(s + 1) if s + 1 < nsteps else []
        dm = []; C.m0 = None
        for i in sched[s]: dm.extend(emit_item(i))
        if OPT["pfm"] == 2 and C.role == "Q":
            for j in range(2):
                if s == OPT["pfs"] + j * OPT["pfd"]: dm = [vop(C, ("pf", 0), f"buffer_load_dword v2, {C.vPF}, {C.sP}, 0 offen offset:{128*j}")] + dm
        if OPT["pfm"] == 3 and C.role == "Q" and s == OPT["pfs"]:
            dm = [vop(C, ("pf", 0), f"buffer_load_dword v2, {C.vPF}, {C.sP}, 0 offen"), vop(C, ("pf", 0), f"buffer_load_dword v2, {C.vFL}, {C.sP2}, 0 offen")] + dm
        if OPT["pfm"] == 4 and C.role == "Q" and s == OPT["pfs"]:
            dm = dm + [vop(C, ("pf", 0), f"buffer_load_dword v2, {C.vPF}, {C.sP}, 0 offen")]
        if OPT["pal"] and s == OPT["pas"]: dm = dm + [vop(C, ("pa", 0), x) for x in C.pal]
        if s == nonce_at: dm.insert(0, vop(C, ("nonce", 0), f"buffer_load_dword {C.vN}, {C.vZ}, {C.sD}, 0 offen sc1"))
        mv = []
        b2.release(s)
        if NPRE and s == pmv + 1: b2.free += [b2.ch[t_] for t_ in range(NPRE)]
        if NPRE and s == pmv - 1 and not post:
            assert b2.loaded >= NPRE
            mv = [Lazy(lambda: vm.wait(lambda q: q[0] == "b2" and q[1] < NPRE))] + [x for t_ in range(NPRE) for x in b2.tr(t_, C.breg[t_], C.rB)]
        if pm and not post: mv = [x for t_ in range(NPRE) for x in b2.tr(t_, C.breg[14 + t_], C.rP)]
        plan = OPT["fb"] if C.role == "F" else OPT["qb"]
        if plan:
            if s >= nsteps - len(plan): dm.extend(b2.loads(int(plan[s - nsteps + len(plan)]), C.lim))
        elif s >= estart:
            n = sum(1 for x in dm if isinstance(x, Lazy))
            k = max((rate2 + 1 - n) // 2, early) if s >= OPT["b2start"] else early
            dm.extend(b2.loads(k, C.lim))
        hist[s] = b2.loaded
        ex = hook(s) if hook else []
        if s == OPT["atab"]:
            assert not any(sched[k_] for k_ in range(s, nsteps))
            mv = mv + a_tables(C)
        emit(C, spread(m, (rd, 0, OPT["rdf"] / 100), (dm, 0, 0.95 if s else OPT["dm0"] / 100), (mv, 0.3, 0.9), (ex, 0.05 if (C.role == "F" or OPT["xsq"]) else 0.33, OPT["exe"] / 100 if C.role == "F" else 1.0)))
    C.hist = hist
    stamp(C, "loopend")

def get_tag(C):
    P, S, role = C.P, C.S, C.role
    P(C.vm.wait(lambda q: q[0] == "nonce"))
    P(f"v_readfirstlane_b32 {S['tag']}, {C.vN}\ns_cmp_eq_u32 {S['tag']}, 0\ns_cbranch_scc1 TAGSL_{role}\nTAGOK_{role}:")
    C.slow.append(f"TAGSL_{role}:\ns_mov_b32 {S['t2']}, 0\nTAGLP_{role}:\nbuffer_load_dword {C.vN}, {C.vZ}, {C.sD}, 0 offen sc1\ns_waitcnt vmcnt(0)\nv_readfirstlane_b32 {S['tag']}, {C.vN}\ns_add_u32 {S['t2']}, {S['t2']}, 1\n"
                  f"s_cmp_ge_u32 {S['t2']}, {SPIN_MAX}\ns_cbranch_scc1 TAGOK_{role}\ns_cmp_eq_u32 {S['tag']}, 0\ns_cbranch_scc1 TAGLP_{role}\ns_branch TAGOK_{role}")

def flag_store(C):
    P, S, t = C.P, C.S, C.t
    P(f"s_lshl_b32 {S['t0']}, s2, 7\ns_add_u32 {S['t0']}, {S['t0']}, {FLAG_OFF}\ns_cmp_eq_u32 {S['w']}, 0\ns_cselect_b32 {S['t0']}, {S['t0']}, {BIG}")
    if OPT["ffl"]:
        P(f"v_lshl_add_u32 {t[5]}, {C.lane}, 2, {S['t0']}\nv_mov_b32 {t[6]}, {S['tag']}\ns_mov_b32 exec_hi, 0\nbuffer_store_dword {t[6]}, {t[5]}, {C.sWS}, 0 offen sc1\ns_mov_b64 exec, -1")
    else:
        P(f"v_mov_b32 {t[5]}, {S['t0']}\nv_mov_b32 {t[6]}, {S['tag']}\ns_mov_b64 exec, 1\nbuffer_store_dword {t[6]}, {t[5]}, {C.sWS}, 0 offen sc1\ns_mov_b64 exec, -1")
    C.vm.issue(("flag", 0))

def poll_req(C): return vop(C, ("pl", 0), f"buffer_load_dword {C.vFL}, {C.vF}, {C.sWS}, 0 offen sc1")
def poll_check(C, label, mask, first=True):
    P, S = C.P, C.S
    loop = (f"s_mov_b32 {S['t2']}, 0\n{label}:\nbuffer_load_dword {C.vFL}, {C.vF}, {C.sWS}, 0 offen sc1\ns_waitcnt vmcnt(0)\nv_cmp_eq_u32 vcc, {S['tag']}, {C.vFL}\ns_add_u32 {S['t2']}, {S['t2']}, 1\n"
            f"s_cmp_ge_u32 {S['t2']}, {SPIN_MAX}\ns_cbranch_scc1 {label}_X\ns_and_b32 {S['t0']}, vcc_lo, {mask}\ns_cmp_lg_u32 {S['t0']}, {mask}\ns_cbranch_scc1 {label}")
    if OPT["slp"]: loop = loop.replace(f"{label}:\nbuffer_load", f"s_branch {label}_F\n{label}:\ns_sleep {OPT['slp']}\n{label}_F:\nbuffer_load") if not first else loop.replace(f"{label}:\nbuffer_load", f"{label}:\ns_sleep {OPT['slp']}\nbuffer_load")
    if first:
        P(C.vm.wait(lambda q: q[0] == "pl"))
        P(f"v_cmp_eq_u32 vcc, {S['tag']}, {C.vFL}\ns_and_b32 {S['t0']}, vcc_lo, {mask}\ns_cmp_lg_u32 {S['t0']}, {mask}\ns_cbranch_scc1 {label}_S\n{label}_X:")
        C.slow.append(f"{label}_S:\n{loop}\ns_branch {label}_X")
    else:
        P(loop + f"\n{label}_X:")

def xtile(C):
    S = C.S
    o = [f"s_mov_b32 {C.sX[0]}, {C.ptr[0]}\ns_mov_b32 {C.sX[1]}, {C.ptr[1]}\ns_mov_b32 {C.sX[2]}, {XBYTES}\ns_mov_b32 {S['t1']}, {8*1792 - 1024}\ns_add_u32 m0, {S['bm0']}, {XCH*8192}"]
    return o + [vop(C, ("e", 0), f"buffer_load_dwordx4 {C.vXd}, {C.sX}, {S['t1'] if j else 0} offen offset:{1024*j} lds") for j in range(2)] + \
        ([vop(C, ("pf", 0), f"global_load_dword v2, {C.vZ}, {C.ptr[12:14]}")] if OPT["otouch"] else [])

def aload(C, tt):
    if tt < 28: seg = tt // 7; so = C.kxs[tt % 7]
    else: seg = 4 + (tt - 28) // 4; so = C.kws[1 + (tt - 28) % 4]
    return [vop(C, ("a", tt), f"buffer_load_dwordx4 {C.aring[tt % C.NA][j]}, {C.vA[seg]}, {C.sWS}, {so} offen offset:{2048*j} sc1") for j in range(2)]

def phase2(C, b2, flag_at):
    P, S, vm, t, lane, w = C.P, C.S, C.vm, C.t, C.lane, C.S['w']
    role = C.role; LA = OPT["LA"]; NA = C.NA; aring = C.aring
    lg = C.lg = Cnt("lgkmcnt", 15)
    va = Alloc("v", C.vbase, C.vring)
    acc = [[va(16, 4) for _ in range(2)] for _ in range(3)]
    G = va(12, 4)
    xv = [va(2) for _ in range(4)]; kk = va(2); vO = va(); vL = va(); Rr = va(8, 4)
    rstd, k1 = kk[0], kk[1]
    vXr = va(); vR = va(); vGs = va(); vGr = va(); wad = va(); rad = va()
    rP = C.rP
    C.vA = C.vA[:2] + [va() for _ in range(4)]
    breg = C.breg
    sb = [[[R("a", 224 + 16*p + 8*j + 4*f, 4) for f in range(2)] for j in range(2)] for p in range(2)]
    sO = C.sW
    n_, hf = t[3], t[4]
    su = []
    def U(s): su.extend(s.split("\n"))
    U(f"v_and_b32 {n_}, 31, {lane}\nv_lshrrev_b32 {hf}, 5, {lane}\nv_lshlrev_b32 {vL}, 4, {lane}")
    U(f"s_and_b32 {S['b1']}, {S['T']}, 1\ns_mul_i32 {S['b1']}, {S['b1']}, {2*A2_KS*2048}\ns_sub_u32 {S['b1']}, {S['b1']}, {A2_KS*2048}\nv_add_u32 {C.vA[2]}, {S['b1']}, {C.vA[0]}\nv_add_u32 {C.vA[3]}, {S['b1']}, {C.vA[1]}")
    U(f"s_mul_i32 {S['b1']}, {S['T']}, {2*A2_KS}\ns_add_u32 {S['b1']}, {S['b1']}, {S['hh']}\ns_lshl_b32 {S['b1']}, {S['b1']}, 10\nv_add_u32 {t[0]}, {S['b1']}, {vL}")
    U(f"s_lshl_b32 {S['b1']}, {w}, 14\nv_add_u32 {C.vA[4]}, {S['b1']}, {t[0]}\ns_xor_b32 {S['b1']}, {S['b1']}, 16384\nv_add_u32 {C.vA[5]}, {S['b1']}, {t[0]}")
    U(f"s_lshl_b32 {S['b1']}, s2, 2\ns_add_u32 {S['b1']}, {S['b1']}, {w}\ns_mul_i32 {S['b2']}, {S['b1']}, 3072\ns_add_u32 {S['b2']}, {S['b2']}, {XF_OFF}\nv_add_u32 {vGr}, {S['b2']}, {vL}")
    U(f"s_xor_b32 {S['b2']}, {S['b1']}, 4\ns_mul_i32 {S['b2']}, {S['b2']}, 3072\ns_add_u32 {S['b2']}, {S['b2']}, {XF_OFF}\nv_add_u32 {vGs}, {S['b2']}, {vL}")
    for g in range(3): U(f"v_mov_b32 {G[4*g+3]}, {S['tag']}")
    U(f"s_mov_b32 {sO[0]}, {C.ptr[12]}\ns_mov_b32 {sO[1]}, {C.ptr[13]}\ns_mov_b32 {sO[2]}, {XBYTES}")
    U(f"s_lshl_b32 {S['b2']}, {S['hh']}, 12\ns_add_u32 {S['b2']}, {S['b2']}, {XCH*8192}")
    U(f"v_lshlrev_b32 {t[0]}, 7, {n_}\nv_lshl_add_u32 {t[0]}, {hf}, 3, {t[0]}")
    U(f"s_lshl_b32 {S['wm0']}, {S['half']}, 2\nv_and_b32 {t[1]}, 7, {lane}\nv_xor_b32 {t[1]}, {S['wm0']}, {t[1]}\nv_lshl_add_u32 {t[0]}, {t[1]}, 4, {t[0]}\nv_add_u32 {vXr}, {S['b2']}, {t[0]}")
    U(f"s_mul_i32 {S['b2']}, {S['hh']}, {32*1792}\ns_add_u32 {S['b2']}, {S['b2']}, {S['tb']}\ns_lshl_b32 {S['wm0']}, {S['half']}, 6\ns_add_u32 {S['b2']}, {S['b2']}, {S['wm0']}")
    U(f"v_mul_u32_u24 {t[0]}, 1792, {n_}\nv_add_u32 {t[0]}, {S['b2']}, {t[0]}\nv_lshl_add_u32 {vO}, {hf}, 4, {t[0]}")
    U(f"s_lshl_b32 {S['b2']}, {S['T']}, 1\ns_add_u32 {S['b2']}, {S['b2']}, {S['hh']}\ns_lshl_b32 {S['b2']}, {S['b2']}, 7\ns_lshl_b32 {S['wm0']}, {w}, 14\ns_add_u32 {S['b2']}, {S['b2']}, {S['wm0']}\ns_add_u32 {S['b2']}, {S['b2']}, {RSTD_OFF}")
    U(f"v_lshl_add_u32 {vR}, {n_}, 2, {S['b2']}")
    assert b2.loaded == NB
    w2ch = [b2.ch[t_] for t_ in range(NPRE, 14)]
    wn = max(range(3), key=lambda k: sum(1 for c in w2ch if c >> 3 == k))
    pch = [c for c in w2ch if c >> 3 == wn][:4]; assert len(pch) == 4
    U(f"s_add_u32 {S['b2']}, {S['bm0']}, {65536*wn}\nv_add_u32 {wad}, {S['b2']}, {vL}\nv_xor_b32 {rad}, 4096, {wad}")
    slot = lambda i, a: ((pch[2*i + (a >> 1)] * 8192) & 0xffff) + (a & 1) * 1024
    NSU = 13
    F, Fp = acc[1]; Sv, Sp = acc[2]; E, X = acc[0]
    gd = lambda k: G[4*(k // 3) + k % 3]
    gw = [lop(C, ("gw", 0), f"ds_write_b128 {wad}, {X[4*a:4*a+4]} offset:{slot(1, a)}") for a in range(4)]
    gr = [lop(C, ("gr", 0), f"ds_read_b128 {X[4*a:4*a+4]}, {rad} offset:{slot(1, a)}") for a in range(4)]
    gs = [Lazy(lambda: lg.wait(lambda q: q[0] == "gr"))]
    for k in range(8):
        gs += [f"v_add_f32 {E[r]}, {E[r]}, {X[r]}" for r in (2*k, 2*k+1)] + [f"v_cvt_pk_bf16_f32 {gd(k)}, {E[2*k]}, {E[2*k+1]}"]
        if k in (2, 5, 7): gs.append(vop(C, ("xs", 0), f"buffer_store_dwordx4 {G[4*(k//3):4*(k//3) + 4]}, {vGs}, {C.sWS}, 0 offen offset:{1024*(k//3)} sc1"))
    gl = [f"buffer_load_dwordx4 {G[4*g:4*g+4]}, {vGr}, {C.sWS}, 0 offen offset:{1024*g} sc1" for g in range(3)]
    U(f"s_mov_b32 {S['b1']}, 0x3f80\ns_mov_b32 {S['b2']}, 0x3f800000")
    ck = [f"v_xor_b32 {G[4*g+3]}, {S['tag']}, {G[4*g+3]}" for g in range(3)] + [f"v_or3_b32 {G[3]}, {G[3]}, {G[7]}, {G[11]}", f"v_cmp_ne_u32 vcc, 0, {G[3]}"]
    one = (f"s_mov_b64 exec, 1\nXG_P{role}:\nbuffer_load_dword {G[11]}, {vGr}, {C.sWS}, 0 offen offset:{2048 + 1008 + 12} sc1\ns_waitcnt vmcnt(0)\nv_readfirstlane_b32 {S['t0']}, {G[11]}\n"
           f"s_add_u32 {S['t2']}, {S['t2']}, 1\ns_cmp_ge_u32 {S['t2']}, {4*SPIN_MAX}\ns_cbranch_scc1 XG_Q{role}\ns_cmp_lg_u32 {S['t0']}, {S['tag']}\ns_cbranch_scc1 XG_P{role}\nXG_Q{role}:\ns_mov_b64 exec, -1\ns_mov_b32 {S['t2']}, 0\n") if OPT["gentle"] else ""
    C.slow.append(f"XG_S{role}:\ns_mov_b32 {S['t2']}, 0\n{one}XG_L{role}:\n" + "\n".join(gl) + "\ns_waitcnt vmcnt(0)\n" + "\n".join(ck) +
                  f"\ns_add_u32 {S['t2']}, {S['t2']}, 1\ns_cmp_ge_u32 {S['t2']}, {SPIN_MAX}\ns_cbranch_scc1 XG_X{role}\ns_cmp_lg_u64 vcc, 0\ns_cbranch_scc1 XG_L{role}\ns_branch XG_X{role}")
    ck = [Lazy(lambda: vm.wait(lambda q: q[0] == "xl"))] + ck + [f"s_cmp_lg_u64 vcc, 0\ns_cbranch_scc1 XG_S{role}\nXG_X{role}:"]
    def fe_plain(a):
        R_ = range(4*a, 4*a+4)
        o = [] if OPT["pre"] else [Lazy(lambda a=a: lg.wait(lambda q: q == ("fr", a)))] + [f"v_add_f32 {F[r]}, {F[r]}, {Fp[r]}" for r in R_]
        o += [(f"v_lshlrev_b32 {E[r]}, 16, {gd(r//2)}" if r % 2 == 0 else f"v_and_b32 {E[r]}, 0xffff0000, {gd(r//2)}") for r in R_]
        o += [f"v_add_f32 {F[r]}, {F[r]}, {E[r]}" for r in R_]
        o += [f"v_mul_f32 {E[r]}, {F[r]}, {k1}" for r in R_] + [f"v_exp_f32 {E[r]}, {E[r]}" for r in R_] + [f"v_mul_f32 {F[r]}, {F[r]}, {rstd}" for r in R_]
        o += [f"v_add_f32 {E[r]}, 1.0, {E[r]}" for r in R_] + [f"v_rcp_f32 {E[r]}, {E[r]}" for r in R_]
        o += [f"v_mul_f32 {F[r]}, {F[r]}, {E[r]}" for r in R_]
        return o
    def fe_pk(a):
        R_ = range(4*a, 4*a+4); H = [slice(4*a, 4*a+2), slice(4*a+2, 4*a+4)]
        o = [] if OPT["pre"] else [Lazy(lambda a=a: lg.wait(lambda q: q == ("fr", a)))] + [f"v_pk_add_f32 {F[h]}, {F[h]}, {Fp[h]}" for h in H]
        o += [f"v_pk_mul_f32 {E[h]}, {F[h]}, {kk} op_sel:[0,1] op_sel_hi:[1,1]" for h in H]
        o += [f"v_exp_f32 {E[r]}, {E[r]}" for r in R_] + [f"v_pk_mul_f32 {F[h]}, {F[h]}, {kk} op_sel_hi:[1,0]" for h in H]
        o += [f"v_pk_add_f32 {E[h]}, {E[h]}, 1.0 op_sel_hi:[1,0]" for h in H] + [f"v_rcp_f32 {E[r]}, {E[r]}" for r in R_]
        o += [f"v_pk_mul_f32 {F[h]}, {F[h]}, {E[h]}" for h in H]
        return o
    NPL = OPT["npl"]
    fe1 = [x for a in range(NPL) for x in fe_plain(a)]
    fe2 = [f"v_dot2c_f32_bf16 {F[r]}, {S['b1'] if r % 2 == 0 else S['b2']}, {gd(r//2)}" for r in range(4*NPL, 16)] + [x for a in range(NPL, 4) for x in fe_pk(a)]
    fw = [lop(C, ("fw", 0), f"ds_write_b128 {wad}, {Fp[4*a:4*a+4]} offset:{slot(0, a)}") for a in range(4)]
    fr = [lop(C, ("fr", a), f"ds_read_b128 {Fp[4*a:4*a+4]}, {rad} offset:{slot(0, a)}") for a in range(4)]
    sw = [lop(C, ("sw", 0), f"ds_write_b128 {wad}, {Sp[4*a:4*a+4]} offset:{slot(1, a)}") for a in range(4)]
    sr = [lop(C, ("sr", a), f"ds_read_b128 {Sp[4*a:4*a+4]}, {rad} offset:{slot(1, a)}") for a in range(4)]
    xr = []
    for a in range(4): xr += [f"v_xor_b32 {t[0]}, {16*a}, {vXr}", lop(C, ("xr", 0), f"ds_read_b64 {xv[a]}, {t[0]}")]
    xu = [Lazy(lambda: lg.wait(lambda q: q[0] == "xr"))]
    for a in range(4):
        for h in range(2): xu += [f"v_lshlrev_b32 {X[4*a+2*h]}, 16, {xv[a][h]}", f"v_and_b32 {X[4*a+2*h+1]}, 0xffff0000, {xv[a][h]}"]
    TPOLL = 28 - LA - OPT["tp"]
    nxt = min(OPT["LA0"], LA)
    BV, BF, TB = 5 + NPRE // 2, 14, OPT['TB2']
    assert OPT['late'] == 0
    R1 = OPT['R1']
    RX, CK = OPT["RX"], OPT["CK"]
    def trs_for(tt):
        o = []
        for j in range(2):
            if tt < 14 and 2 * (tt % 7) < NPRE: continue
            if tt < 14: o += b2.tr(2 * (tt % 7) + j, breg[2*tt + j], C.rB if tt < 7 else rP)
            else: o += b2.tr(14 + 2 * ((tt - 28) & 3) + j, breg[2 * (tt - 28) + j], C.rB if tt < 32 else rP)
        return [lop(C, ("tr", tt), y) for y in o]
    P(vm.wait(lambda q: q[0] == "b2" and q[1] <= 3) + " lgkmcnt(0)")
    emit(C, trs_for(0) + trs_for(1))
    for tt in range(NT2):
        nb = min(2 * tt + 5, 13) if tt < 14 else NB - 1
        assert nb < b2.loaded
        P(vm.wait(lambda q: q == ("a", tt) or (q[0] == "b2" and q[1] <= nb) or (tt == flag_at and q[0] == "st") or (tt == 14 and q[0] == "e") or (tt == TB and q[0] == "rs")))
        if tt in ((0, 7, 14, 21, 28) if OPT["fine"] != 1 else range(36)): stamp(C, f"a{tt}")
        if tt == flag_at:
            P("s_barrier"); flag_store(C); stamp(C, "flag")
        if tt < 14 and any(q == ("tr", tt) for q in lg.q): P(lg.wait(lambda q: q == ("tr", tt)))
        if tt == 28: P(lg.wait(lambda q: q[0] == "tr"))
        if tt == TB: P(lg.wait(lambda q: q[0] == "fw"))
        if tt == R1: P(lg.wait(lambda q: q[0] == "gw"))
        if tt in (BV, BF, R1, TB): P("s_barrier")
        if tt == BF: b2.free += [c for c in w2ch if c not in pch]
        trs = trs_for(tt + 2) if tt + 2 < 14 else (trs_for(tt + 9) if 19 <= tt < 27 else [])
        ld = []; va_ = []
        if tt < NSU:
            k = len(su); va_ = su[tt * k // NSU:(tt + 1) * k // NSU]
        if tt == TPOLL: ld.append(poll_req(C))
        if tt + LA == 28:
            def chk():
                l0 = len(P.l); poll_check(C, f"PS_{role}", 60); x = "\n".join(P.l[l0:]); del P.l[l0:]; return x
            ld.append(Lazy(chk, "svsss"))
            ld.append(vop(C, ("rs", 0), f"buffer_load_dword {rstd}, {vR}, {C.sWS}, 0 offen sc1"))
        for _ in range(2):
            if nxt <= tt + LA and nxt < NT2: ld.extend(aload(C, nxt)); nxt += 1
        if tt >= 17 or (tt < 14 and tt % 2 == 1): ld.extend(b2.loads(1))
        if 14 <= tt < R1: va_ = gw[(tt - 14) * 4 // (R1 - 14):(tt - 13) * 4 // (R1 - 14)]
        if tt == R1: va_ = gr
        gn = OPT["gsn"]
        if R1 < tt <= R1 + gn: va_ = gs[(tt - R1 - 1) * len(gs) // gn:(tt - R1) * len(gs) // gn]
        if tt == 20: va_ = xr
        if tt in (21, 22): va_ = xu[(tt - 21) * 9:(tt - 20) * 9]
        if tt == RX: ld += [vop(C, ("xl", 0), x) for x in gl]
        if 28 <= tt < TB: va_ = fw[(tt - 28) * 4 // (TB - 28):(tt - 27) * 4 // (TB - 28)]
        if tt == TB: va_ = fr + [f"v_mul_f32 {k1}, {f2h(-math.log2(math.e))}, {rstd}"]
        if tt == TB + 1 and OPT["pre"]:
            assert CK > TB
            va_ = va_ + [Lazy(lambda: lg.wait(lambda q: q[0] == "fr"))] + [f"v_add_f32 {F[r]}, {F[r]}, {Fp[r]}" for r in range(16)]
        if tt == CK: va_ = va_ + ck
        if tt > CK:
            k = len(fe1); i = tt - CK - 1; nn = NT2 - 1 - CK; va_ = va_ + fe1[i * k // nn:(i + 1) * k // nn]
        ps = 0 if tt < 14 else (1 if tt < 28 else 2)
        last = tt in (13, 27, 35)
        order = ((1, 0), (0, 0), (1, 1), (0, 1)) if not last else ((1, 0), (1, 1), (0, 0), (0, 1))
        Bf = lambda j, f: breg[2*(tt % 14) + j][f]
        m = [f"v_mfma_f32_32x32x16_bf16 {acc[ps][f]}, {Bf(j, f)}, {aring[tt % NA][j]}, {0 if (tt in (0, 14, 28) and j == 0) else acc[ps][f]}" for f, j in order]
        if OPT['sp2']: emit(C, spread(m, (trs, 0, 0.9), (ld, 0, 0.9), (va_, 0.3 if tt in (14, 28) else 0, 0.95), clk=32))
        else: emit(C, merge(m, (trs, 0, 3), (ld, 0, 4), (va_, 1 if tt in (14, 28) else 0, 4)))
    assert b2.loaded == NB and CK >= TB and (CK < NT2 - 1 or NPL == 0)
    stamp(C, "p2end")
    h = min(len(fe2), 14)
    emit(C, merge(fe2[:h], (sw, 0, h)) if h else sw)
    P(lg.wait(lambda q: q[0] == "sw")); P("s_barrier")
    if OPT["fine"] == 1: stamp(C, "sb")
    emit(C, sr)
    emit(C, fe2[h:])
    if OPT["fine"] == 1: stamp(C, "fedone")
    for a in range(4):
        P(lg.wait(lambda q: q == ("sr", a)))
        H = [slice(4*a, 4*a+2), slice(4*a+2, 4*a+4)]
        for h_ in H: P(f"v_pk_add_f32 {Sv[h_]}, {Sv[h_]}, {Sp[h_]}")
        for h_ in H: P(f"v_pk_fma_f32 {Sv[h_]}, {Sv[h_]}, {F[h_]}, {X[h_]}")
        P(f"v_cvt_pk_bf16_f32 {Rr[2*a]}, {Sv[4*a]}, {Sv[4*a+1]}\nv_cvt_pk_bf16_f32 {Rr[2*a+1]}, {Sv[4*a+2]}, {Sv[4*a+3]}")
        if a & 1:
            p = a >> 1
            P(f"v_permlane32_swap_b32 {Rr[4*p]}, {Rr[4*p+2]}\nv_permlane32_swap_b32 {Rr[4*p+1]}, {Rr[4*p+3]}")
            P(f"buffer_store_dwordx4 {Rr[4*p:4*p+4]}, {vO}, {sO}, 0 offen offset:{32*p}{['', ' sc1', ' nt', ' sc1 nt', ' sc0 sc1'][OPT['ost']]}")
    if OPT["stamps"]:
        stamp(C, "stored"); P("s_waitcnt vmcnt(0)"); stamp(C, "end")
    if OPT["enc"] == "end": P("s_waitcnt vmcnt(0)\ns_memrealtime s[100:101]")
    if OPT["spin"] and (OPT["encwg"] == -1 or (OPT["encwg"] == -2 and role == "F") or (OPT["encwg"] == -3 and role == "Q") or (OPT["encwg"] >= 0 and role == ("F" if OPT["encwg"] < 128 else "Q"))):
        if OPT["encwg"] >= 0: P(f"s_cmp_lg_u32 s2, {OPT['encwg']}\ns_cbranch_scc1 SPN2{role}")
        P(f"s_waitcnt lgkmcnt(0)\ns_mov_b32 {S['t1']}, {OPT['spin']}")
        if OPT["enc"]: P(f"s_sub_u32 {S['t0']}, s100, s98\ns_lshl_b32 {S['t0']}, {S['t0']}, 2\ns_add_u32 {S['t1']}, {S['t1']}, {S['t0']}\ns_min_u32 {S['t1']}, {S['t1']}, 20000")
        P(f"SPN1{role}:\ns_sleep 2\ns_memrealtime {C.tm}\ns_waitcnt lgkmcnt(0)\ns_sub_u32 {S['t0']}, {C.tm[0]}, s98\ns_cmp_lt_u32 {S['t0']}, {S['t1']}\ns_cbranch_scc1 SPN1{role}\nSPN2{role}:")
    stamp_flush(C)
    P("s_endpgm")
    del C.lg
    C.vA = C.vA[:2]
    return 256

def dma_item(C, need, m0expr, load, execmask=None):
    s = load
    if execmask: s = f"s_mov_b64 exec, {execmask}\n{s}\ns_mov_b64 exec, -1"
    o = []
    if C.m0 != m0expr: o.append(m0expr)
    C.m0 = m0expr
    return o + [vop(C, ("d", need), s)]

def slab_tables(C, wmul):
    P, S = C.P, C.S
    if OPT["com"]:
        P(f"s_bfe_u32 {S['t0']}, s2, 0x20006\ns_mul_i32 {S['t0']}, {S['t0']}, 3\ns_lshr_b32 {S['t0']}, {S['t0']}, 1\ns_add_u32 {S['t0']}, {S['t0']}, {S['rbl']}")
        P(f"s_sub_u32 {S['t1']}, {S['t0']}, 6\ns_cmp_ge_u32 {S['t0']}, 6\ns_cselect_b32 {S['t0']}, {S['t1']}, {S['t0']}\ns_lshl_b32 {S['t0']}, {S['t0']}, 7")
        for d in range(1, 7):
            P(f"s_add_u32 {C.kxs[d]}, {C.kxs[d-1] if d > 1 else S['t0']}, 128\ns_cmp_eq_u32 {C.kxs[d]}, 896\ns_cselect_b32 {C.kxs[d]}, 128, {C.kxs[d]}\ns_mul_i32 {C.kws[d]}, {C.kxs[d]}, {wmul}")
        return
    for d in range(1, 7):
        P(f"s_add_u32 {C.kxs[d]}, {C.kxs[d-1]}, 128\ns_cmp_eq_u32 {C.kxs[d]}, 896\ns_cselect_b32 {C.kxs[d]}, 0, {C.kxs[d]}\ns_mul_i32 {C.kws[d]}, {C.kxs[d]}, {wmul}")

class Role: pass

def ffn_head(C):
    P, S, lane, t = C.P, C.S, C.lane, C.t
    Rl = Role(); Rl.vm = C.vm = Cnt("vmcnt", 63); C.vm.issue(("pf", 0)); C.m0 = None
    va = Rl.va = Alloc("v", C.vbase, 256)
    NW, NX = 4, 3; WB, XB = 0, 65536
    xd = C.xd; wd = Rl.wd = [va() for _ in range(8)]
    w = S['w']
    P(f"s_mul_i32 {S['t0']}, {S['cb']}, 448\ns_and_b32 {S['t0']}, {S['t0']}, 0xffffff80\ns_mul_i32 {S['t1']}, {w}, {8*3584}\ns_add_u32 {S['t0']}, {S['t0']}, {S['t1']}")
    P(f"v_lshrrev_b32 {t[0]}, 5, {lane}\nv_bfe_u32 {t[1]}, {lane}, 1, 4\nv_xor_b32 {t[1]}, {t[0]}, {t[1]}\nv_xor_b32 {t[1]}, {S['b1']}, {t[1]}")
    P(f"v_mul_u32_u24 {t[0]}, 3584, {t[0]}\nv_lshl_add_u32 {t[0]}, {t[1]}, 5, {t[0]}\nv_and_b32 {t[1]}, 1, {lane}\nv_lshl_add_u32 {t[0]}, {t[1]}, 4, {t[0]}")
    P(f"v_add_u32 {wd[0]}, {S['t0']}, {t[0]}\nv_xor_b32 {t[3]}, 64, {wd[0]}")
    P(f"v_add_u32 {wd[1]}, {2*3584 - 1024}, {t[3]}\nv_add_u32 {wd[2]}, {4*3584 - 2048}, {wd[0]}\nv_add_u32 {wd[3]}, {6*3584 - 3072}, {t[3]}")
    P(f"s_mul_i32 {S['kw']}, {S['kx']}, {64*3584//128}")
    P(f"s_memrealtime {C.mT}\ns_or_b32 {S['t0']}, s2, {w}\ns_cmp_eq_u32 {S['t0']}, 0\ns_cselect_b32 {C.sD[2]}, 256, 0\ns_mov_b32 {C.sD[3]}, 0x20000\nv_mov_b32 {t[0]}, 0")
    karg(C)
    P(f"s_or_b32 {S['t0']}, {C.mT[0]}, 1\nv_mov_b32 {t[1]}, {S['t0']}\ns_mov_b32 {C.sD[0]}, {C.ptr[14]}\ns_mov_b32 {C.sD[1]}, {C.ptr[15]}\nbuffer_store_dword {t[1]}, {t[0]}, {C.sD}, 0 offen sc1")
    C.vm.issue(("non", 0))
    srd(P, C.sW, C.ptr[8], C.ptr[9], 448 * 3584)
    items = []
    for d in range(7):
        for j in range(4): items.append(dict(k="x", d=d, j=j, need=2*d, free=(2*(d-NX)+1 if d >= NX else -1)))
        for s in (2*d, 2*d+1):
            for j in range(4): items.append(dict(k="w", s=s, j=j, need=s, free=(s-NW if s >= NW else -1)))
    def emit_item(i):
        it = items[i]; j = it["j"]
        if it["k"] == "x":
            return dma_item(C, it["need"], f"s_add_u32 m0, {S['xm0']}, {XB + (it['d'] % NX)*16384}",
                            f"buffer_load_dwordx4 {xd[j]}, {C.sX}, {C.kxs[it['d']]} offen offset:{j*1024}{NTX} lds")
        return dma_item(C, it["need"], f"s_add_u32 m0, {S['xm0']}, {WB + (it['s'] % NW)*16384}",
                        f"buffer_load_dwordx4 {wd[j + 4*(it['s']&1)]}, {C.sW}, {C.kws[it['s']>>1]} offen offset:{j*1024}{NTW} lds")
    Rl.sched = schedule(items, OPT["pro"], OPT["rate"], 14); Rl.emit_item = emit_item
    for i in Rl.sched[-1][:8]: emit(C, emit_item(i))
    for j in range(4): P(f"v_add_u32 {wd[4+j]}, {32*3584}, {wd[j]}")
    for i in Rl.sched[-1][8:OPT["first"]]: emit(C, emit_item(i))
    return Rl

def tlb_touch(C):
    P, S = C.P, C.S
    if OPT["tlb"] & 1:
        for k in (10, 4, 12, 14): P(f"s_load_dword s97, {C.ptr[k:k+2]}, 0")
        for off in range(0, WS_USED, 1 << 21):
            P(f"s_add_u32 {C.tm[0]}, {C.wsp[0]}, {off}\ns_addc_u32 {C.tm[1]}, {C.wsp[1]}, 0\ns_load_dword s97, {C.tm}, 0")
    if OPT["tlb"] & 2:
        P(f"v_mov_b32 {C.t[6]}, 0")
        for k in (10, 4, 12): P(f"global_load_dword v2, {C.t[6]}, {C.ptr[k:k+2]}"); C.vm.issue(("pf", 0))
        P(f"v_and_b32 {C.t[6]}, 7, {C.lane}\nv_lshlrev_b32 {C.t[6]}, 21, {C.t[6]}\nglobal_load_dword v2, {C.t[6]}, {C.wsp}"); C.vm.issue(("pf", 0))

def pal_xf(C, va):
    P, S = C.P, C.S
    v = va()
    P(f"s_lshl_b32 {S['t0']}, s2, 2\ns_add_u32 {S['t0']}, {S['t0']}, {S['w']}\ns_xor_b32 {S['t0']}, {S['t0']}, 4\ns_mul_i32 {S['t0']}, {S['t0']}, 3072\ns_add_u32 {S['t0']}, {S['t0']}, {XF_OFF}")
    P(f"v_mul_u32_u24 {v}, 48, {C.lane}\nv_add_u32 {v}, {S['t0']}, {v}")
    return f"buffer_store_dword {C.lane}, {v}, {C.sWS}, 0 offen sc1"

def karg(C):
    P, S = C.P, C.S
    P("s_waitcnt lgkmcnt(0)")
    P(f"s_add_u32 {C.sX[0]}, {C.ptr[0]}, {S['t2']}\ns_addc_u32 {C.sX[1]}, {C.ptr[1]}, 0\ns_sub_u32 {C.sX[2]}, {XBYTES}, {S['t2']}\ns_mov_b32 {C.sX[3]}, 0x20000")

def ffn_body(C, Rl):
    P, S, lane, t = C.P, C.S, C.lane, C.t
    C.role = "F"; vm = C.vm = Rl.vm; C.lim = NB - OPT["late"]
    va = Rl.va; aa = Alloc("a", 0, C.abase)
    NW, NX = 4, 3; WB, XB = 0, 65536
    sWS = C.sWS; w = S['w']
    stamp(C, "iss")
    tlb_touch(C)
    xr = [[va() for _ in range(2)] for _ in range(2)]
    wr_ = [va() for _ in range(7)]
    acc = [[va(4, 4) for _ in range(4)] for _ in range(7)]
    cs = [va(4, 4) for _ in range(7)]
    rs = [va(4, 4) for _ in range(2)]
    dq = [cs[4], cs[5]]
    ones = aa(4)
    fb = [dict(x=[aa(4) for _ in range(4)], w=[aa(4) for _ in range(7)]) for _ in range(2)]
    if OPT["wsoff"]: P(f"s_add_u32 {C.wsp[0]}, {C.wsp[0]}, {OPT['wsoff'] << 20}\ns_addc_u32 {C.wsp[1]}, {C.wsp[1]}, 0")
    srd(P, sWS, C.wsp[0], C.wsp[1], WS_REC)
    wr, wc = S['half'], S['hh']
    n_, g_ = va(), va()
    P(f"v_and_b32 {n_}, 15, {lane}\nv_lshrrev_b32 {g_}, 4, {lane}")
    P(f"s_lshl_b32 {S['t0']}, {wr}, 13\ns_lshl_b32 {S['t1']}, {wc}, 12\ns_add_u32 {S['t0']}, {S['t0']}, {S['t1']}\ns_add_u32 {S['t0']}, {S['t0']}, {XB}")
    P(f"v_lshrrev_b32 {t[0]}, 1, {n_}\nv_xor_b32 {t[0]}, {g_}, {t[0]}\nv_lshlrev_b32 {t[0]}, 4, {t[0]}\nv_lshl_add_u32 {t[0]}, {n_}, 7, {t[0]}")
    P(f"v_add_u32 {xr[0][0]}, {S['t0']}, {t[0]}\nv_xor_b32 {xr[0][1]}, 64, {xr[0][0]}\nv_xor_b32 {xr[1][0]}, 4096, {xr[0][0]}\nv_xor_b32 {xr[1][1]}, 4096, {xr[0][1]}")
    P(f"v_bfe_u32 {t[0]}, {lane}, 2, 2\nv_lshl_add_u32 {t[1]}, {g_}, 3, {t[0]}\nv_lshlrev_b32 {t[1]}, 9, {t[1]}\nv_and_b32 {t[2]}, 3, {lane}\nv_lshl_add_u32 {t[1]}, {t[2]}, 3, {t[1]}")
    P(f"v_bfe_u32 {t[0]}, {lane}, 2, 3")
    P(f"s_lshl_b32 {S['b1']}, {wr}, 2\ns_mul_i32 {S['b2']}, {wr}, -3")
    P(f"s_and_b32 {S['t0']}, {S['cb']}, 1\ns_lshl_b32 {S['t0']}, {S['t0']}, 1\ns_mul_i32 {S['t1']}, {wc}, 7\ns_add_u32 {S['t0']}, {S['t0']}, {S['t1']}")
    P(f"s_add_u32 {S['t1']}, {S['t0']}, {S['b2']}\ns_add_u32 {S['t0']}, {S['t0']}, {S['b1']}")
    for c in range(7):
        P(f"s_add_u32 {S['t2']}, {S['t0'] if c <= 2 else S['t1']}, {c}")
        P(f"v_xor_b32 {t[2]}, {S['t2']}, {t[0]}\nv_lshl_add_u32 {wr_[c]}, {t[2]}, 5, {t[1]}")
    P(f"v_mov_b32 {t[0]}, {ONES}")
    for i in range(4): P(f"v_accvgpr_write_b32 {ones[i]}, {t[0]}")
    b2 = B2(C)
    RSB = b2.xchunk * 8192; CSB = RSB + 1024
    xw = RSB & 0x30000; RSB -= xw; CSB -= xw
    a_rs, a_rs2, a_cs, a_cs2 = va(), va(), va(), va()
    st = [va(), va()]
    P(f"s_lshl_b32 {S['t0']}, {wr}, 8\ns_lshl_b32 {S['t1']}, {wc}, 7\ns_add_u32 {S['t0']}, {S['t0']}, {S['t1']}\ns_add_u32 {S['t0']}, {S['t0']}, {xw}")
    P(f"v_lshlrev_b32 {a_rs}, 2, {n_}\nv_add_u32 {a_rs}, {S['t0']}, {a_rs}\nv_xor_b32 {a_rs2}, 128, {a_rs}")
    P(f"s_lshl_b32 {S['t0']}, {wc}, 3\ns_add_u32 {S['t1']}, {S['t0']}, {S['b2']}\ns_add_u32 {S['t0']}, {S['t0']}, {S['b1']}")
    P(f"s_lshl_b32 {S['t0']}, {S['t0']}, 6\ns_add_u32 {S['t1']}, {S['t1']}, 4\ns_lshl_b32 {S['t1']}, {S['t1']}, 6")
    P(f"v_lshlrev_b32 {a_cs}, 4, {g_}\nv_add_u32 {a_cs}, {xw}, {a_cs}\nv_add_u32 {a_cs2}, {S['t1']}, {a_cs}\nv_add_u32 {a_cs}, {S['t0']}, {a_cs}")
    P(f"s_lshl_b32 {S['t0']}, {wc}, 10\nv_lshlrev_b32 {st[0]}, 4, {lane}\nv_add_u32 {st[0]}, {S['t0']}, {st[0]}\nv_xor_b32 {st[1]}, 1024, {st[0]}")
    P(f"s_lshl_b32 {S['t0']}, {S['e']}, 3\ns_add_u32 {S['t0']}, {S['t0']}, {S['rbl']}\ns_lshl_b32 {S['t0']}, {S['t0']}, 1\ns_add_u32 {S['t0']}, {S['t0']}, {wr}")
    P(f"s_mul_i32 {S['t0']}, {S['t0']}, {A2_KS}\ns_mul_i32 {S['t1']}, {S['cb']}, 14\ns_add_u32 {S['t0']}, {S['t0']}, {S['t1']}\ns_mul_i32 {S['t1']}, {wc}, 7\ns_add_u32 {S['t0']}, {S['t0']}, {S['t1']}\ns_add_u32 {S['t0']}, {S['t0']}, 32")
    P(f"s_add_u32 {S['b1']}, {S['b1']}, {S['t0']}\ns_add_u32 {S['b2']}, {S['b2']}, {S['t0']}\ns_lshl_b32 {S['b1']}, {S['b1']}, 11\ns_lshl_b32 {S['b2']}, {S['b2']}, 11")
    if OPT["pal"]:
        vpa = va(); vpb = va()
        P(f"s_lshl_b32 {S['t0']}, {S['t0']}, 11\nv_lshl_add_u32 {vpa}, {lane}, 7, {S['t0']}\nv_add_u32 {vpb}, 6144, {vpa}")
        C.pal = [f"buffer_store_dword {lane}, {vpa}, {sWS}, 0 offen sc1", f"buffer_store_dword {lane}, {vpb}, {sWS}, 0 offen sc1"]
        if OPT["pal"] & 2: C.pal.append(pal_xf(C, va))
    if OPT["xst"]:
        pca, pra, gca, gsc, lca = [va() for _ in range(5)]
        for m_, bit in ((C.mT, 1), (C.mU, 2), (C.mW, 4), (C.mH, 8)):
            P(f"v_and_b32 {t[0]}, {bit}, {lane}\nv_cmp_ne_u32 {m_}, 0, {t[0]}")
        P(f"s_lshl_b32 {S['t2']}, {S['e']}, 3\ns_add_u32 {S['t0']}, {S['t2']}, {S['cb']}\ns_lshl_b32 {S['t0']}, {S['t0']}, 14\ns_add_u32 {S['t0']}, {S['t0']}, {SCOL_OFF}")
        P(f"s_lshl_b32 {S['t1']}, {w}, 12\ns_add_u32 {S['t1']}, {S['t1']}, {S['t0']}\nv_lshl_add_u32 {gca}, {lane}, 4, {S['t1']}")
        P(f"s_lshl_b32 {S['t1']}, {wc}, 1\ns_add_u32 {S['t1']}, {S['t1']}, {wr}\ns_lshl_b32 {S['t1']}, {S['t1']}, 3\ns_add_u32 {S['t1']}, {S['t1']}, {S['rbl']}\ns_lshl_b32 {S['t1']}, {S['t1']}, 9\ns_add_u32 {S['t0']}, {S['t0']}, {S['t1']}")
        P(f"v_bfe_u32 {t[0]}, {lane}, 2, 2\nv_lshlrev_b32 {t[0]}, 4, {t[0]}\nv_lshl_add_u32 {t[0]}, {g_}, 2, {t[0]}\nv_and_b32 {t[1]}, 3, {lane}\nv_add_u32 {t[0]}, {t[0]}, {t[1]}\nv_lshl_add_u32 {pca}, {t[0]}, 3, {S['t0']}")
        P(f"s_add_u32 {S['t0']}, {S['t2']}, {S['rbl']}\ns_lshl_b32 {S['t0']}, {S['t0']}, 2\ns_add_u32 {S['t0']}, {S['t0']}, {w}\ns_lshl_b32 {S['t0']}, {S['t0']}, 12\ns_add_u32 {S['t0']}, {S['t0']}, {SROW_OFF}")
        P(f"v_lshl_add_u32 {t[0]}, {n_}, 4, {S['t0']}\nv_cmp_lt_u32 vcc, 31, {lane}\nv_cndmask_b32 {gca}, {gca}, {t[0]}, vcc")
        P(f"s_lshl_b32 {S['t1']}, {S['cb']}, 9\ns_add_u32 {S['t0']}, {S['t0']}, {S['t1']}\nv_lshl_add_u32 {pra}, {lane}, 3, {S['t0']}\nv_mov_b32 {t[1]}, {BIG}\nv_cndmask_b32 {pra}, {pra}, {t[1]}, vcc")
        if OPT["xsq"]:
            pqa = va()
            P(f"v_lshl_add_u32 {pqa}, {n_}, 4, {S['t0']}\nv_lshrrev_b32 {t[2]}, 2, {n_}\nv_cmp_eq_u32 {C.tm}, {t[2]}, {g_}\nv_cndmask_b32 {pqa}, {t[1]}, {pqa}, {C.tm}")
        P(f"v_mov_b32 {gsc}, 1.0\nv_mov_b32 {t[1]}, {f2h(-1.0/448)}\nv_cndmask_b32 {gsc}, {gsc}, {t[1]}, vcc")
        P(f"s_lshl_b32 {S['t0']}, {w}, 8\ns_add_u32 {S['t0']}, {S['t0']}, {xw + 1024}\nv_lshl_add_u32 {lca}, {lane}, 3, {S['t0']}")
        P(f"s_lshl_b32 {S['t0']}, {w}, 7\ns_add_u32 {S['t0']}, {S['t0']}, {xw}\nv_lshl_add_u32 {t[0]}, {n_}, 3, {S['t0']}\nv_cndmask_b32 {lca}, {lca}, {t[0]}, vcc")
    p2_setup(C)
    slab_tables(C, 64*3584//128); C.m0 = None
    rest = Rl.sched[-1][OPT["first"]:]
    for i in rest[:OPT["wpos"]]: emit(C, Rl.emit_item(i))
    P("WARM_F:")
    for i in rest[OPT["wpos"]:]: emit(C, Rl.emit_item(i))
    def reads(s):
        b = fb[s & 1]
        xs = ((s >> 1) % NX) * 16384; ws = WB + (s % NW) * 16384
        X = [f"ds_read_b128 {b['x'][i]}, {xr[i>>1][s&1]} offset:{xs + (i&1)*2048}" for i in range(4)]
        W = []
        for c in range(7):
            W.append(f"ds_read_b64_tr_b16 {b['w'][c][0:2]}, {wr_[c]} offset:{ws}")
            W.append(f"ds_read_b64_tr_b16 {b['w'][c][2:4]}, {wr_[c]} offset:{ws + 2048}")
        return X + W
    def mfmas(s):
        b = fb[s & 1]; o = []
        def mm(d, a, bb): o.append(f"v_mfma_f32_16x16x32_bf16 {d}, {a}, {bb}, {d if s else 0}")
        if s < 2 or not OPT["xst"]:
            for i in range(2): mm(rs[i], ones, b['x'][i])
            if OPT["xsq"]:
                for i in range(2): mm(dq[i], b['x'][i], b['x'][i])
            for c in range(4): mm(cs[c], b['w'][c], ones)
        for c in range(7):
            for i in range(4): mm(acc[c][i], b['w'][c], b['x'][i])
        if s == 13 and not OPT["xst"]:
            wrs = [f"ds_write_b32 {a_rs}, {rs[i][0]} offset:{RSB + i*64}" for i in range(2)] + [f"ds_write_b128 {a_cs}, {cs[c]} offset:{CSB + c*64}" for c in range(4)]
            for k_, x in enumerate(wrs): o[14 + k_] += "\n" + x
        return o
    nm = [va(2), va(2)]
    NEG = f2h(-1.0/448)
    hook = None
    if OPT["xst"]:
        G = OPT["gat"]
        allcs = R("v", cs[0].i, 28); assert cs[6].i == cs[0].i + 24
        gq = [allcs[4*p:4*p+4] for p in range(7)]
        gl = [f"buffer_load_dwordx4 {gq[p]}, {gca}, {sWS}, 0 offen offset:{512*p} sc1" for p in range(7)]
        bad = rs[0][0]
        al = [g[k] for g in gq for k in (1, 3)]
        chk = [f"v_xor_b32 {bad}, {S['tag']}, {al[0]}"] + [f"v_bitop3_b32 {bad}, {x}, {S['tag']}, {bad} bitop3:0xbe" for x in al[1:]]
        def hook(s_):
            o = []
            if s_ == 2:
                def tg():
                    l0 = len(P.l); get_tag(C); x = "\n".join(P.l[l0:]); del P.l[l0:]; return x
                o.append(Lazy(tg, "svsss"))
                for c in range(4):
                    o += [f"v_cndmask_b32 {cs[c][0]}, {cs[c][0]}, {cs[c][1]}, {C.mT}", f"v_cndmask_b32 {cs[c][2]}, {cs[c][2]}, {cs[c][3]}, {C.mT}", f"v_cndmask_b32 {cs[c][0]}, {cs[c][0]}, {cs[c][2]}, {C.mU}"]
            if s_ == 3:
                o += [f"v_cndmask_b32 {cs[0][0]}, {cs[0][0]}, {cs[1][0]}, {C.mW}", f"v_cndmask_b32 {cs[2][0]}, {cs[2][0]}, {cs[3][0]}, {C.mW}", f"v_cndmask_b32 {cs[0][0]}, {cs[0][0]}, {cs[2][0]}, {C.mH}",
                      f"v_mov_b32 {cs[0][1]}, {S['tag']}", vop(C, ("st1", 0), f"buffer_store_dwordx2 {cs[0][0:2]}, {pca}, {sWS}, 0 offen sc1"),
                      f"v_cmp_eq_u32 vcc, 1, {g_}", f"v_mov_b32 {rs[0][1]}, {S['tag']}", f"v_cndmask_b32 {rs[0][0]}, {rs[0][0]}, {rs[1][0]}, vcc",
                      vop(C, ("st1", 0), f"buffer_store_dwordx2 {rs[0][0:2]}, {pra}, {sWS}, 0 offen sc1")]
            if s_ == OPT["sqs"] and OPT["xsq"]:
                for i in range(2):
                    o += [f"v_cndmask_b32 {dq[i][0]}, {dq[i][0]}, {dq[i][1]}, {C.mT}", f"v_cndmask_b32 {dq[i][2]}, {dq[i][2]}, {dq[i][3]}, {C.mT}"]
                o += [f"v_cndmask_b32 {dq[0][0]}, {dq[0][0]}, {dq[0][2]}, {C.mU}", f"v_cndmask_b32 {dq[0][2]}, {dq[1][0]}, {dq[1][2]}, {C.mU}",
                      f"v_mov_b32 {dq[0][1]}, {S['tag']}", f"v_mov_b32 {dq[0][3]}, {S['tag']}",
                      vop(C, ("st1", 0), f"buffer_store_dwordx4 {dq[0]}, {pqa}, {sWS}, 0 offen offset:256 sc1")]
            k_ = OPT["gsp"]
            if G - k_ < s_ <= G:
                i_ = s_ - (G - k_ + 1); o += [vop(C, ("ga", 0), x) for x in gl[i_ * 7 // k_:(i_ + 1) * 7 // k_]]
            if s_ == G + OPT['gck']:
                o.append(Lazy(lambda: vm.wait(lambda q: q[0] == "ga")))
                o += chk + [f"v_cmp_ne_u32 vcc, 0, {bad}", "s_cmp_lg_u64 vcc, 0\ns_cbranch_scc1 GA_S\nGA_X:"]
                C.slow.append(f"GA_S:\ns_mov_b32 {S['t2']}, 0\nGA_L:\n" + "\n".join(gl) + "\ns_waitcnt vmcnt(0)\n" + "\n".join(chk) +
                              f"\nv_cmp_ne_u32 vcc, 0, {bad}\ns_add_u32 {S['t2']}, {S['t2']}, 1\ns_cmp_ge_u32 {S['t2']}, {SPIN_MAX}\ns_cbranch_scc1 GA_X\ns_cmp_lg_u64 vcc, 0\ns_cbranch_scc1 GA_L\ns_branch GA_X")
            if s_ == G + OPT['gck'] + 1 - OPT['gm']:
                for k in (0, 2):
                    g = [x[k] for x in gq]
                    o += [f"v_add_f32 {g[0]}, {g[0]}, {g[1]}", f"v_add_f32 {g[2]}, {g[2]}, {g[3]}", f"v_add_f32 {g[4]}, {g[4]}, {g[5]}",
                          f"v_add_f32 {g[0]}, {g[0]}, {g[2]}", f"v_add_f32 {g[4]}, {g[4]}, {g[6]}", f"v_add_f32 {g[0]}, {g[0]}, {g[4]}"]
                o += [f"v_mul_f32 {gq[0][0]}, {gsc}, {gq[0][0]}", f"v_mul_f32 {gq[0][1]}, {gsc}, {gq[0][2]}", f"ds_write_b64 {lca}, {gq[0][0:2]} offset:{RSB}"]
            if s_ == G + OPT['gck'] + 2 - OPT['gm']:
                o += [f"ds_read_b32 {nm[0][i]}, {a_rs} offset:{RSB + 64*i}" for i in range(2)] + [f"ds_read_b32 {nm[1][i]}, {a_rs2} offset:{RSB + 64*i}" for i in range(2)]
                o += [f"ds_read_b128 {cs[c]}, {a_cs} offset:{CSB + c*64}" for c in range(4)] + [f"ds_read_b128 {cs[c]}, {a_cs2} offset:{CSB + (c-4)*64}" for c in range(4, 7)]
            return o
    run_loop(C, Rl.emit_item, Rl.sched, reads, mfmas, b2, OPT["fearly"], OPT["fstart"], hook=hook, nonce_at=0 if OPT["xst"] else 6, rate2=OPT["b2rate"])
    if not OPT["xst"]:
        P("s_waitcnt lgkmcnt(0)\ns_barrier"); b2.lgkm()
        P(f"ds_read_b32 {nm[1][0]}, {a_rs2} offset:{RSB}\nds_read_b32 {nm[1][1]}, {a_rs2} offset:{RSB+64}")
        for c in range(4, 7): P(f"ds_read_b128 {cs[c]}, {a_cs2} offset:{CSB + (c-4)*64}")
    if OPT["xst"] and OPT["gat"] + OPT["gck"] + 2 - OPT["gm"] == 13: P("s_waitcnt lgkmcnt(0)"); b2.lgkm()
    emit(C, b2.moves(C.hist[11]))
    if not OPT["xst"]: P(f"v_mul_f32 {nm[0][0]}, {NEG}, {rs[0][0]}\nv_mul_f32 {nm[0][1]}, {NEG}, {rs[1][0]}")
    Z = [va(4, 4) for _ in range(4)]
    units = [(c, 0) for c in range(4)] + [(c, 1) for c in range(4)] + [(c, pr) for c in range(4, 7) for pr in range(2)]
    if OPT["xst"]: units = [(c, pr) for c in range(7) for pr in range(2)]
    pend = None
    old = b2.loaded
    for ui, (c, pr) in enumerate(units):
        if ui == 4:
            P("s_waitcnt lgkmcnt(0)"); b2.lgkm()
            if not OPT["xst"]: P(f"v_mul_f32 {nm[1][0]}, {NEG}, {nm[1][0]}\nv_mul_f32 {nm[1][1]}, {NEG}, {nm[1][1]}")
        z = Z[ui % 4]
        for ii in range(2):
            a = acc[c][2*pr+ii]
            sel = "op_sel_hi:[1,0,1]" if ii == 0 else "op_sel:[0,1,0] op_sel_hi:[1,1,1]"
            P(f"v_pk_fma_f32 {a[0:2]}, {cs[c][0:2]}, {nm[pr]}, {a[0:2]} {sel}")
            P(f"v_pk_fma_f32 {a[2:4]}, {cs[c][2:4]}, {nm[pr]}, {a[2:4]} {sel}")
        if pend: P(pend); vm.issue(("st", 0))
        for ii in range(2):
            a = acc[c][2*pr+ii]
            P(f"v_cvt_pk_bf16_f32 {z[2*ii]}, {a[0]}, {a[1]}\nv_cvt_pk_bf16_f32 {z[2*ii+1]}, {a[2]}, {a[3]}")
        for q in range(4): P(f"v_pk_max_i16 {z[q]}, {z[q]}, 0")
        if OPT["fepi"] and ui % OPT["fepi"] == 0: emit(C, b2.loads(1, C.lim))
        pend = (f"s_add_u32 {S['t0']}, {S['b1'] if c <= 2 else S['b2']}, {c*2048}\n"
                f"v_permlane16_swap_b32 {z[0]}, {z[2]}\nv_permlane16_swap_b32 {z[1]}, {z[3]}\n"
                f"buffer_store_dwordx4 {z}, {st[pr]}, {sWS}, {S['t0']} offen sc1")
    P(pend); vm.issue(("st", 0))
    stamp(C, "epiend")
    emit(C, b2.moves(old))
    b2.drain(OPT["post"], C.lim)
    if not OPT["xst"]: get_tag(C)
    stamp(C, "tag")
    assert old >= NPRE
    P(vm.wait(lambda q: q[0] == "st")); stamp(C, "ack"); P("s_barrier")
    flag_store(C)
    stamp(C, "flag")
    emit(C, xtile(C))
    if NPRE and OPT["fpost"]:
        mvs = [x for t_ in range(NPRE) for x in b2.tr(t_, C.breg[t_], C.rB) + b2.tr(t_, C.breg[14 + t_], C.rP)]
        emit(C, merge(mvs, (b2.loads(2, C.lim), 0, len(mvs))))
        P("s_waitcnt lgkmcnt(0)\ns_barrier")
        b2.free += [b2.ch[t_] for t_ in range(NPRE)]
    b2.drain(max(C.lim - b2.loaded - OPT["pr"], 0), C.lim)
    emit(C, [poll_req(C)])
    b2.drain(99, C.lim)
    stamp(C, "b2iss")
    poll_check(C, "PF_F", 3)
    stamp(C, "polled")
    for tt in range(min(OPT["LA0"], OPT["LA"])): emit(C, aload(C, tt))
    return max(va.hi, phase2(C, b2, None))

XS = 18432
def qkv_head(C):
    P, S, lane, t = C.P, C.S, C.lane, C.t
    Rl = Role(); Rl.vm = C.vm = Cnt("vmcnt", 63); C.vm.issue(("pf", 0)); C.m0 = None
    va = Rl.va = Alloc("v", C.vbase, 256)
    NW, NX = 4, 3; XB, WB = 0, 3 * XS
    xd = C.xd; xh = va(); wd = [va() for _ in range(6)]
    w = S['w']; hp = S['cb']; mW, mH = C.mW, C.mH
    P(f"s_mul_i32 {S['t1']}, {w}, {32*1792}\ns_add_u32 {S['t1']}, {S['t1']}, {8*1792}\ns_cmp_eq_u32 {S['rbl']}, 0\ns_cselect_b32 {S['t1']}, {BIG}, {S['t1']}")
    P(f"v_subrev_u32 {xh}, {S['t1']}, {t[3]}")
    P(f"s_lshl_b32 {S['t1']}, {w}, 4\ns_mov_b64 {mH}, 0xffff\ns_lshl_b64 {mH}, {mH}, {S['t1']}")
    P(f"v_and_b32 {t[0]}, 2, {t[4]}\nv_add_u32 {t[0]}, {S['b1']}, {t[0]}\nv_sub_u32 {t[0]}, {t[5]}, {t[0]}\nv_and_b32 {t[0]}, 7, {t[0]}")
    P(f"v_cmp_ne_u32 {mW}, 7, {t[0]}\nv_mov_b32 {t[2]}, {BIG}")
    P(f"s_mul_i32 {S['t0']}, {hp}, 112\ns_mul_i32 {S['t1']}, {w}, {8*2688}\ns_add_u32 {S['t0']}, {S['t0']}, {S['t1']}")
    P(f"v_mul_u32_u24 {t[1]}, 2688, {t[4]}\nv_lshl_add_u32 {t[1]}, {t[0]}, 4, {t[1]}\nv_add_u32 {t[1]}, {S['t0']}, {t[1]}\nv_cndmask_b32 {wd[2]}, {t[2]}, {t[1]}, {mW}")
    P(f"v_add_u32 {wd[1]}, 128, {wd[2]}\nv_add_u32 {wd[0]}, 256, {wd[2]}")
    P(f"s_mul_i32 {S['kw']}, {S['kx']}, {64*2688//128}\ns_mul_i32 {S['wm0']}, {w}, 3072")
    karg(C)
    P(f"s_sub_u32 {C.sW[0]}, {C.ptr[2]}, 256\ns_subb_u32 {C.sW[1]}, {C.ptr[3]}, 0\ns_mov_b32 {C.sW[2]}, {448*2688 + 256}\ns_mov_b32 {C.sW[3]}, 0x20000")
    items = []
    for d in range(7):
        fr = (2*(d-NX)+1 if d >= NX else -1)
        for j in (0, 1, 2, 3, -1): items.append(dict(k="x", d=d, j=j, need=2*d, free=fr))
        for s in (2*d, 2*d+1):
            for p in range(3): items.append(dict(k="w", s=s, j=p, need=s, free=(s-NW if s >= NW else -1)))
    def emit_item(i):
        it = items[i]; j = it["j"]
        if it["k"] == "x":
            sb = XB + (it['d'] % NX) * XS
            if j < 0: return dma_item(C, it["need"], f"s_mov_b32 m0, {sb + 1024}", f"buffer_load_dwordx4 {xh}, {C.sX}, {C.kxs[it['d']]} offen{NTX} lds", mH)
            return dma_item(C, it["need"], f"s_add_u32 m0, {S['xm0']}, {sb + 2048}", f"buffer_load_dwordx4 {xd[j]}, {C.sX}, {C.kxs[it['d']]} offen offset:{j*1024}{NTX} lds")
        return dma_item(C, it["need"], f"s_add_u32 m0, {S['wm0']}, {WB + (it['s'] % NW)*12288}",
                        f"buffer_load_dwordx4 {wd[j + 3*(it['s']&1)]}, {C.sW}, {C.kws[it['s']>>1]} offen offset:{j*1024}{NTW} lds", mW if j == 1 else None)
    Rl.sched = schedule(items, OPT["proq"], OPT["rate"] - 1, 14); Rl.emit_item = emit_item
    for i in Rl.sched[-1][:8]: emit(C, emit_item(i))
    for j in range(3): P(f"v_add_u32 {wd[3+j]}, {32*2688}, {wd[j]}")
    for i in Rl.sched[-1][8:min(OPT["first"], 11)]: emit(C, emit_item(i))
    return Rl

def qkv_body(C, Rl):
    P, S, lane, t = C.P, C.S, C.lane, C.t
    C.role = "Q"; vm = C.vm = Rl.vm; C.lim = NB - OPT["late"]
    va = Rl.va; aa = Alloc("a", 0, C.abase)
    NW, NX = 4, 3; XB, WB = 0, 3 * XS
    sWS, mT = C.sWS, C.mT
    w = S['w']; hp = S['cb']; hh, half = S['hh'], S['half']
    stamp(C, "iss")
    tlb_touch(C)
    xr = [va() for _ in range(2)]; xr0 = [va() for _ in range(2)]
    wr_ = [va() for _ in range(2)]
    acc = [[[va(4, 4) for _ in range(5)] for _ in range(2)] for _ in range(3)]
    dg = [va(4, 4) for _ in range(5 if not OPT["xsq"] else 3)]
    cprev, ccur, cfirst = va(4, 4), va(4, 4), va(4, 4)
    mprev, mcur = va(2), va(2)
    fb = [dict(x=[aa(4) for _ in range(5)], w=[[aa(4) for _ in range(2)] for _ in range(3)]) for _ in range(2)]
    if OPT["wsoff"]: P(f"s_add_u32 {C.wsp[0]}, {C.wsp[0]}, {OPT['wsoff'] << 20}\ns_addc_u32 {C.wsp[1]}, {C.wsp[1]}, 0")
    srd(P, sWS, C.wsp[0], C.wsp[1], WS_REC)
    n_, g_ = va(), va()
    P(f"v_and_b32 {n_}, 15, {lane}\nv_lshrrev_b32 {g_}, 4, {lane}")
    tmpcs = [va(4, 4) for _ in range(4)]
    c1, c0 = tmpcs[0], tmpcs[1]
    for i in range(4): P(f"v_mov_b32 {c1[i]}, {ONES}\nv_mov_b32 {c0[i]}, 0")
    P(f"v_and_b32 {t[0]}, 7, {lane}\nv_and_b32 {t[1]}, 2, {lane}\nv_bfe_u32 {t[2]}, {lane}, 3, 1\nv_lshl_add_u32 {t[1]}, {t[2]}, 2, {t[1]}")
    P(f"v_add_u32 {t[1]}, 7, {t[1]}\nv_and_b32 {t[1]}, 7, {t[1]}\nv_lshlrev_b32 {t[1]}, 4, {t[1]}\nv_lshl_add_u32 {t[0]}, {t[0]}, 7, {t[1]}")
    P(f"v_lshrrev_b32 {t[1]}, 3, {lane}\nv_mul_u32_u24 {t[1]}, 3072, {t[1]}\ns_mul_i32 {S['t0']}, {hh}, {2*12288}\ns_add_u32 {S['t0']}, {S['t0']}, {WB}")
    P(f"v_add3_u32 {t[0]}, {t[0]}, {t[1]}, {S['t0']}")
    P(f"ds_write_b128 {t[0]}, {c1} offset:1024")
    P(f"s_min_u32 {S['t0']}, {w}, 2\ns_mul_i32 {S['t0']}, {S['t0']}, {XS}\nv_lshlrev_b32 {t[1]}, 4, {lane}\nv_add_u32 {t[1]}, {S['t0']}, {t[1]}\nds_write_b128 {t[1]}, {c1} offset:{XB}")
    P(f"v_lshrrev_b32 {t[0]}, 1, {n_}\nv_xor_b32 {t[0]}, {g_}, {t[0]}\nv_lshlrev_b32 {t[0]}, 4, {t[0]}\nv_lshl_add_u32 {t[0]}, {n_}, 7, {t[0]}")
    P(f"s_lshl_b32 {S['t0']}, {half}, 13\nv_add_u32 {t[1]}, {S['t0']}, {t[0]}\nv_add_u32 {xr[0]}, {XB + 2048}, {t[1]}\nv_xor_b32 {xr[1]}, 64, {xr[0]}")
    P(f"v_cmp_gt_u32 vcc, 8, {n_}\nv_cndmask_b32 {xr0[0]}, {t[1]}, {t[0]}, vcc\nv_xor_b32 {xr0[1]}, 64, {xr0[0]}")
    P(f"v_bfe_u32 {t[0]}, {lane}, 2, 2\nv_mul_u32_u24 {t[1]}, 3072, {g_}\nv_lshl_add_u32 {t[0]}, {t[0]}, 7, {t[1]}\nv_add_u32 {t[0]}, {WB}, {t[0]}")
    P(f"v_bfe_u32 {t[1]}, {lane}, 3, 2\nv_lshlrev_b32 {t[1]}, 5, {t[1]}\nv_and_b32 {t[2]}, 3, {lane}")
    P(f"s_mul_i32 {S['t0']}, {hh}, 56\nv_lshl_add_u32 {t[3]}, {t[2]}, 3, {S['t0']}")
    P(f"v_add_u32 {t[4]}, {t[3]}, {t[1]}\nv_and_b32 {t[4]}, 127, {t[4]}\nv_add_u32 {wr_[0]}, {t[0]}, {t[4]}")
    P(f"s_lshl_b32 {S['t0']}, {hh}, 3\ns_sub_u32 {S['t0']}, 120, {S['t0']}\nv_mov_b32 {t[4]}, {S['t0']}\nv_add_u32 {t[3]}, 32, {t[3]}")
    P(f"v_cmp_eq_u32 vcc, 3, {t[2]}\nv_cndmask_b32 {t[3]}, {t[3]}, {t[4]}, vcc")
    P(f"v_add_u32 {t[4]}, {t[3]}, {t[1]}\nv_and_b32 {t[4]}, 127, {t[4]}\nv_add_u32 {wr_[1]}, {t[0]}, {t[4]}")
    P(f"v_lshlrev_b32 {t[0]}, 2, {g_}\nv_sub_u32 {t[0]}, {n_}, {t[0]}\nv_mov_b32 {t[1]}, {NINF}")
    P(f"s_or_b32 {S['t0']}, {S['rbl']}, {half}\ns_cmp_eq_u32 {S['t0']}, 0\ns_cselect_b32 {S['t0']}, {NINF}, 0")
    for r in range(4):
        P(f"v_subrev_u32 {t[2]}, {r}, {t[0]}")
        P(f"v_cmp_gt_i32 vcc, -8, {t[2]}\nv_cndmask_b32 {cprev[r]}, {t[1]}, {c0[0]}, vcc")
        P(f"v_cmp_gt_u32 vcc, 8, {t[2]}\nv_cndmask_b32 {ccur[r]}, {t[1]}, {c0[0]}, vcc")
        P(f"v_or_b32 {cfirst[r]}, {S['t0']}, {cprev[r]}")
    for (m, c) in ((mprev, cprev), (mcur, ccur)):
        for q in range(2):
            P(f"v_ashrrev_i32 {t[2]}, 31, {c[2*q]}\nv_ashrrev_i32 {t[3]}, 31, {c[2*q+1]}\nv_and_b32 {t[2]}, 0xffff, {t[2]}\nv_and_b32 {t[3]}, 0xffff0000, {t[3]}")
            P(f"v_or_b32 {t[2]}, {t[2]}, {t[3]}\nv_not_b32 {m[q]}, {t[2]}")
    a1, a2, av_w, av_r, sr, so = va(), va(), va(), va(), va(), va()
    VCH = [0, 1, 2, 8, 9]
    av_w2, av_r2 = va(), va()
    P(f"v_lshlrev_b32 {a1}, 2, {n_}\nv_bfe_u32 {a2}, {lane}, 2, 2\nv_lshl_add_u32 {a2}, {a2}, 6, {a1}\nv_add_u32 {a1}, 192, {a1}")
    P(f"v_and_b32 {t[2]}, 1, {lane}\nv_cmp_eq_u32 {mT}, 1, {t[2]}\nv_and_b32 {t[2]}, 2, {lane}\nv_cmp_eq_u32 {C.mU}, 2, {t[2]}")
    P(f"s_lshl_b32 {S['t1']}, {w}, 11\nv_mul_u32_u24 {av_w}, 80, {n_}\nv_lshl_add_u32 {av_w}, {g_}, 4, {av_w}\nv_add_u32 {av_w}, {S['t1']}, {av_w}")
    P(f"v_lshrrev_b32 {av_r}, 2, {lane}\nv_mul_u32_u24 {av_r}, 80, {av_r}\nv_and_b32 {t[4]}, 3, {lane}\nv_lshl_add_u32 {av_r}, {t[4]}, 4, {av_r}\nv_add_u32 {av_r}, {S['t1']}, {av_r}\nv_add_u32 {av_w2}, 65536, {av_w}\nv_add_u32 {av_r2}, 65536, {av_r}")
    P(f"v_lshlrev_b32 {so}, 4, {lane}")
    P(f"s_lshl_b32 {S['t1']}, {S['e']}, 3\ns_add_u32 {S['t1']}, {S['t1']}, {S['rbl']}\ns_lshl_b32 {S['t1']}, {S['t1']}, 1\ns_add_u32 {S['t1']}, {S['t1']}, {half}")
    P(f"s_lshl_b32 {S['t0']}, {hp}, 1\ns_add_u32 {S['t0']}, {S['t0']}, {hh}\ns_lshl_b32 {S['t0']}, {S['t0']}, 12\ns_mul_i32 {S['b1']}, {S['t1']}, {A2_KS*2048}\ns_add_u32 {S['b1']}, {S['b1']}, {S['t0']}")
    P(f"s_lshl_b32 {S['t1']}, {S['t1']}, 8\ns_lshl_b32 {S['t0']}, {hp}, 13\ns_add_u32 {S['t1']}, {S['t1']}, {S['t0']}\ns_add_u32 {S['t1']}, {S['t1']}, {RSTD_OFF}\ns_cmp_eq_u32 {hh}, 0\ns_cselect_b32 {S['t1']}, {S['t1']}, {BIG}")
    P(f"v_lshl_add_u32 {sr}, {lane}, 2, {S['t1']}")
    if OPT["xsq"]:
        qga = a2
        P(f"s_lshl_b32 {S['t0']}, {S['e']}, 3\ns_add_u32 {S['t0']}, {S['t0']}, {S['rbl']}\ns_lshl_b32 {S['t0']}, {S['t0']}, 1\ns_add_u32 {S['t0']}, {S['t0']}, {half}\ns_lshl_b32 {S['t0']}, {S['t0']}, 13\ns_add_u32 {S['t0']}, {S['t0']}, {SROW_OFF + 256}")
        P(f"s_or_b32 {S['t1']}, {S['rbl']}, {half}\ns_cmp_eq_u32 {S['t1']}, 0\ns_cselect_b32 {S['t1']}, 0, -4096")
        P(f"v_lshlrev_b32 {t[0]}, 12, {g_}\nv_mov_b32 {t[1]}, {S['t1']}\nv_cmp_lt_u32 vcc, 31, {lane}\nv_cndmask_b32 {t[0]}, {t[0]}, {t[1]}, vcc\nv_add_u32 {t[0]}, {S['t0']}, {t[0]}\nv_lshl_add_u32 {qga}, {n_}, 4, {t[0]}")
    if OPT["pal"]:
        vpa = va()
        P(f"v_lshl_add_u32 {vpa}, {lane}, 6, {S['b1']}")
        C.pal = [f"buffer_store_dword {lane}, {vpa}, {sWS}, 0 offen sc1"]
        if OPT["pal"] & 2: C.pal.append(pal_xf(C, va))
    p2_setup(C)
    slab_tables(C, 64*2688//128); C.m0 = None
    rest = Rl.sched[-1][min(OPT["first"], 11):]
    for i in rest[:max(OPT["wpos"] - 1, 0)]: emit(C, Rl.emit_item(i))
    P("WARM_Q:")
    for i in rest[max(OPT["wpos"] - 1, 0):]: emit(C, Rl.emit_item(i))
    def reads(s):
        b = fb[s & 1]
        xs = ((s >> 1) % NX) * XS; ws = (s % NW) * 12288
        X = [f"ds_read_b128 {b['x'][0]}, {xr0[s&1]} offset:{xs}"] + [f"ds_read_b128 {b['x'][j]}, {xr[s&1]} offset:{xs + (j-1)*2048}" for j in range(1, 5)]
        W = []
        for p in (1, 2, 0):
            for tt in range(2):
                W.append(f"ds_read_b64_tr_b16 {b['w'][p][tt][0:2]}, {wr_[tt]} offset:{ws + p*1024}")
                W.append(f"ds_read_b64_tr_b16 {b['w'][p][tt][2:4]}, {wr_[tt]} offset:{ws + p*1024 + 512}")
        return X + W
    Q, K, V = acc
    ST = [va(2) for _ in range(5)]
    sq = [t[0], t[1], t[2], t[3], t[4]]
    csK = tmpcs[0:2]; csV = tmpcs[2:4]; csQ = [Q[0][0], Q[1][0]]
    def bc(d_, s_): return [f"v_mov_b32_dpp {d_[tt][r]}, {s_[tt][0][r]} row_newbcast:0 row_mask:0xf bank_mask:0xf" for tt in (1, 0) for r in range(4)]
    def mfmas(s):
        b = fb[s & 1]; o = []
        def mm(d, a, bb): o.append(f"v_mfma_f32_16x16x32_bf16 {d}, {a}, {bb}, {d if s else 0}")
        if not OPT["xsq"]:
            for j in range(5): mm(dg[j], b['x'][j], b['x'][j])
        for p in (1, 2, 0):
            for tt in (1, 0):
                for j in range(5): mm(acc[p][tt][j], b['w'][p][tt], b['x'][j])
        return o
    def qhook(s_):
        ex = []
        if OPT["xsq"]:
            gq = dg + tmpcs
            gl = [f"buffer_load_dwordx4 {gq[p]}, {qga}, {sWS}, 0 offen offset:{512*p} sc1" for p in range(7)]
            bad = t[5]
            al = [g[k] for g in gq for k in (1, 3)]
            chk = [f"v_xor_b32 {bad}, {S['tag']}, {al[0]}"] + [f"v_bitop3_b32 {bad}, {x}, {S['tag']}, {bad} bitop3:0xbe" for x in al[1:]]
            if s_ == 8:
                def tg():
                    l0 = len(P.l); get_tag(C); x = "\n".join(P.l[l0:]); del P.l[l0:]; return x
                ex.append(Lazy(tg, "svsss"))
            k_ = OPT["qgs"]
            if OPT["qg"] - k_ < s_ <= OPT["qg"]:
                i_ = s_ - (OPT["qg"] - k_ + 1); ex += [vop(C, ("ga", 0), x) for x in gl[i_ * 7 // k_:(i_ + 1) * 7 // k_]]
            if s_ == OPT["qc"]:
                ex.append(Lazy(lambda: vm.wait(lambda q: q[0] == "ga")))
                ex += chk + [f"v_cmp_ne_u32 vcc, 0, {bad}", "s_cmp_lg_u64 vcc, 0\ns_cbranch_scc1 GQ_S\nGQ_X:"]
                C.slow.append(f"GQ_S:\ns_mov_b32 {S['t2']}, 0\nGQ_L:\n" + "\n".join(gl) + "\ns_waitcnt vmcnt(0)\n" + "\n".join(chk) +
                              f"\nv_cmp_ne_u32 vcc, 0, {bad}\ns_add_u32 {S['t2']}, {S['t2']}, 1\ns_cmp_ge_u32 {S['t2']}, {SPIN_MAX}\ns_cbranch_scc1 GQ_X\ns_cmp_lg_u64 vcc, 0\ns_cbranch_scc1 GQ_L\ns_branch GQ_X")
            if s_ == 13:
                for k, d_ in ((0, sq[1]), (2, sq[2])):
                    g = [x[k] for x in gq]
                    ex += [f"v_add_f32 {g[0]}, {g[0]}, {g[1]}", f"v_add_f32 {g[2]}, {g[2]}, {g[3]}", f"v_add_f32 {g[4]}, {g[4]}, {g[5]}",
                           f"v_add_f32 {g[0]}, {g[0]}, {g[2]}", f"v_add_f32 {g[4]}, {g[4]}, {g[6]}", f"v_add_f32 {d_}, {g[0]}, {g[4]}"]
                u = dg[0]
                ex += [f"v_mov_b32 {sq[3]}, {sq[1]}", f"v_mov_b32 {sq[4]}, {sq[2]}"]
                ex += [f"ds_bpermute_b32 {ST[j][0]}, {a1}, {K[1][j][0]}" for j in range(2)]
                ex += [f"v_permlane16_swap_b32 {sq[1]}, {sq[3]}", f"v_permlane16_swap_b32 {sq[2]}, {sq[4]}"]
                ex += [f"v_mov_b32 {u[0]}, {sq[1]}", f"v_mov_b32 {u[1]}, {sq[3]}", f"v_mov_b32 {sq[0]}, {sq[2]}", f"v_mov_b32 {u[2]}, {sq[4]}"]
                ex += [f"ds_bpermute_b32 {ST[j][0]}, {a1}, {K[1][j][0]}" for j in range(2, 5)]
                ex += [f"v_permlane32_swap_b32 {sq[1]}, {u[0]}", f"v_permlane32_swap_b32 {sq[3]}, {u[1]}", f"v_permlane32_swap_b32 {sq[2]}, {sq[0]}", f"v_permlane32_swap_b32 {sq[4]}, {u[2]}"]
            return ex
        if s_ != 13: return []
        for j in range(5):
            ex += [f"v_cndmask_b32 {dg[j][0]}, {dg[j][0]}, {dg[j][1]}, {mT}", f"v_cndmask_b32 {dg[j][2]}, {dg[j][2]}, {dg[j][3]}, {mT}",
                   f"v_cndmask_b32 {dg[j][0]}, {dg[j][0]}, {dg[j][2]}, {C.mU}"]
            if j: ex += [f"ds_bpermute_b32 {sq[j-1]}, {a2}, {dg[j-1][0]}"]
        ex += [f"ds_bpermute_b32 {sq[4]}, {a2}, {dg[4][0]}"]
        k = bc(csK, K)
        for j in range(5): ex += [f"ds_bpermute_b32 {ST[j][0]}, {a1}, {K[1][j][0]}", k[j]]
        return ex + k[5:]
    b2 = B2(C)
    run_loop(C, Rl.emit_item, Rl.sched, reads, mfmas, b2, OPT["qearly"], OPT["qstart"], rate2=OPT["qrate"], hook=qhook)
    if OPT["xsq"]: P.ext(bc(csK, K))
    P.ext(bc(csV, V))
    emit(C, b2.moves(C.hist[11]))
    P("s_waitcnt lgkmcnt(0)")
    if NPRE and OPT["pmv"] == 13:
        P("s_barrier"); b2.free += [b2.ch[t_] for t_ in range(NPRE)]
    if OPT["fine"] == 3: stamp(C, "q1")
    P(f"s_mov_b32 {S['t0']}, {f2h(1.0/448)}")
    for j in range(5): P(f"v_mul_f32 {ST[j][0]}, {f2h(-1.0/448)}, {ST[j][0]}")
    for j in range(5): P(f"v_mul_f32 {ST[j][1]}, {ST[j][0]}, {ST[j][0]}")
    for j in range(5): P(f"v_fma_f32 {ST[j][1]}, {sq[j]}, {S['t0']}, -{ST[j][1]}")
    for j in range(5): P(f"v_max_f32 {ST[j][1]}, 0, {ST[j][1]}")
    for j in range(5): P(f"v_add_f32 {ST[j][1]}, {f2h(1e-5)}, {ST[j][1]}")
    for j in range(5): P(f"v_rsq_f32 {ST[j][1]}, {ST[j][1]}")
    P.ext(bc(csQ, Q))
    if OPT["fine"] == 3: stamp(C, "q2")
    LO = "op_sel_hi:[1,0,1]"; HI = "op_sel:[0,1] op_sel_hi:[1,1]"
    def correct(A_, cs_, j, scale, dst):
        o = []
        for tt in range(2):
            a = A_[tt][j]
            o.append(f"v_pk_fma_f32 {a[0:2]}, {cs_[tt][0:2]}, {ST[j]}, {a[0:2]} {LO}")
            o.append(f"v_pk_fma_f32 {a[2:4]}, {cs_[tt][2:4]}, {ST[j]}, {a[2:4]} {LO}")
        if scale:
            for tt in range(2):
                a = A_[tt][j]
                o.append(f"v_pk_mul_f32 {a[0:2]}, {a[0:2]}, {ST[j]} {HI}")
                o.append(f"v_pk_mul_f32 {a[2:4]}, {a[2:4]}, {ST[j]} {HI}")
        for tt in range(2):
            a = A_[tt][j]
            o.append(f"v_cvt_pk_bf16_f32 {dst[2*tt]}, {a[0]}, {a[1]}")
            o.append(f"v_cvt_pk_bf16_f32 {dst[2*tt+1]}, {a[2]}, {a[3]}")
        return o
    def more(n): return b2.loads(n, C.lim)
    def grp(x):
        o = []
        for it in x:
            if isinstance(it, str) and " m0," in it: o.append([])
            o[-1].append(it)
        return o
    def weave(blocks, lumps):
        for i_, blk in enumerate(blocks):
            P.ext(blk)
            for lp in lumps[i_ * len(lumps) // len(blocks):(i_ + 1) * len(lumps) // len(blocks)]: emit(C, lp)
    vw = [f"ds_write_b128 {av_w2 if VCH[j] >= 8 else av_w}, {V[0][j]} offset:{(VCH[j]*8192) & 0xffff}" for j in range(5)]
    weave([correct(V, csV, j, True, V[0][j]) + [vw[j]] for j in range(5)], grp(more(OPT["qe1"])))
    if OPT["fine"] == 3: stamp(C, "q4")
    Vt = [R("a", C.abase - 20, 10), R("a", C.abase - 10, 10)]
    vr = lambda j: [f"ds_read_b64_tr_b16 {Vt[tt][2*j:2*j+2]}, {av_r2 if VCH[j] >= 8 else av_r} offset:{((VCH[j]*8192) & 0xffff) + 8*tt}" for tt in range(2)]
    weave([correct(K, csK, j, True, K[0][j]) + vr(j) for j in range(5)], grp(more(OPT["qe2"])))
    if OPT["fine"] == 3: stamp(C, "q6")
    weave([correct(Q, csQ, j, False, Q[0][j]) for j in range(1, 5)], grp(more(OPT["qe3"])))
    if OPT["fine"] == 3: stamp(C, "q7")
    S0 = {j: K[1][j] for j in range(1, 5)}; S1 = {j: V[1][j] for j in range(1, 5)}
    rg = [f"v_cmp_eq_u32 vcc, 1, {g_}", f"v_cndmask_b32 {t[5]}, {ST[1][1]}, {ST[2][1]}, vcc", f"v_cmp_eq_u32 vcc, 2, {g_}", f"v_cndmask_b32 {t[5]}, {t[5]}, {ST[3][1]}, vcc",
          f"v_cmp_eq_u32 vcc, 3, {g_}", f"v_cndmask_b32 {t[5]}, {t[5]}, {ST[4][1]}, vcc", f"v_cmp_lt_u32 vcc, 31, {lane}"]
    seq = []
    for j in range(1, 5):
        seq.append(f"v_mfma_f32_16x16x32_bf16 {S0[j]}, {K[0][j-1]}, {Q[0][j]}, {cfirst if j == 1 else cprev}")
        seq.append(f"v_mfma_f32_16x16x32_bf16 {S1[j]}, {K[0][j]}, {Q[0][j]}, {ccur}")
    P.ext(merge(seq, (rg, 0, 8)))
    if not OPT["xsq"]: get_tag(C)
    P("s_waitcnt lgkmcnt(0)"); b2.release(20)
    emit(C, xtile(C))
    if OPT["fine"] == 3: stamp(C, "q8")
    cq = f2h(28 ** -0.5 * math.log2(math.e))
    def softmax(a, b, tm):
        o = []
        X, Y = S0[a], S0[b]
        c, m1, m2 = tm[0], tm[1], tm[2]
        o.append(f"v_cndmask_b32 {c}, {ST[a][1]}, {ST[b][1]}, vcc")
        for r in range(4): o.append(f"v_max_f32 {X[r]}, {X[r]}, {S1[a][r]}")
        for r in range(4): o.append(f"v_max_f32 {Y[r]}, {Y[r]}, {S1[b][r]}")
        o.append(f"v_mul_f32 {c}, {cq}, {c}")
        for r in range(4): o.append(f"v_permlane32_swap_b32 {X[r]}, {Y[r]}")
        for r in range(4): o.append(f"v_max_f32 {X[r]}, {X[r]}, {Y[r]}")
        o.append(f"v_max3_f32 {m1}, {X[0]}, {X[1]}, {X[2]}")
        o.append(f"v_max_f32 {m1}, {m1}, {X[3]}")
        o.append(f"v_mov_b32 {m2}, {m1}")
        o.append(f"v_permlane16_swap_b32 {m1}, {m2}")
        o.append(f"v_max_f32 {m1}, {m1}, {m2}")
        o.append(f"v_mul_f32 {m1}, {m1}, {c}")
        for r in range(4): o.append(f"v_fma_f32 {X[r]}, {X[r]}, {c}, -{m1}")
        for r in range(4): o.append(f"v_exp_f32 {X[r]}, {X[r]}")
        o.append(f"v_add_f32 {m1}, {X[0]}, {X[1]}")
        o.append(f"v_add_f32 {m2}, {X[2]}, {X[3]}")
        o.append(f"v_add_f32 {m1}, {m1}, {m2}")
        o.append(f"v_mov_b32 {m2}, {m1}")
        o.append(f"v_permlane16_swap_b32 {m1}, {m2}")
        o.append(f"v_add_f32 {m1}, {m1}, {m2}")
        o.append(f"v_rcp_f32 {m1}, {m1}")
        for r in range(4): o.append(f"v_mul_f32 {X[r]}, {X[r]}, {m1}")
        o.append(f"v_cvt_pk_bf16_f32 {X[0]}, {X[0]}, {X[1]}")
        o.append(f"v_cvt_pk_bf16_f32 {X[1]}, {X[2]}, {X[3]}")
        o.append(f"v_mov_b32 {Y[0]}, {X[0]}")
        o.append(f"v_mov_b32 {Y[1]}, {X[1]}")
        o.append(f"v_permlane32_swap_b32 {X[0]}, {Y[0]}")
        o.append(f"v_permlane32_swap_b32 {X[1]}, {Y[1]}")
        for Zr in (X, Y):
            o.append(f"v_and_b32 {Zr[2]}, {Zr[0]}, {mcur[0]}")
            o.append(f"v_and_b32 {Zr[3]}, {Zr[1]}, {mcur[1]}")
            o.append(f"v_and_b32 {Zr[0]}, {Zr[0]}, {mprev[0]}")
            o.append(f"v_and_b32 {Zr[1]}, {Zr[1]}, {mprev[1]}")
        return o
    seq = []
    for x_, y_ in zip(softmax(1, 2, dg[1]), softmax(3, 4, dg[2])): seq += [x_, y_]
    l0 = b2.loaded
    emit(C, merge(seq, (more(OPT["qsm"]) + [poll_req(C)], 0, len(seq) * 2 // 3)))
    emit(C, b2.moves(l0))
    P("s_waitcnt lgkmcnt(0)"); b2.lgkm()
    if OPT["fine"] == 3: stamp(C, "q9")
    O = [{j: Q[1][j] for j in range(1, 5)}, {j: V[1][j] for j in range(1, 5)}]
    for j in range(1, 5):
        for tt in range(2):
            P(f"v_mfma_f32_16x16x32_bf16 {O[tt][j]}, {Vt[tt][2*(j-1):2*(j-1)+4]}, {S0[j]}, 0")
    Z = {(tt, pr): K[0][2*tt+pr] for tt in range(2) for pr in range(2)}
    for pr in range(2):
        for tt in range(2):
            z = Z[tt, pr]
            for ii in range(2):
                o_ = O[tt][1 + 2*pr + ii]
                P(f"v_cvt_pk_bf16_f32 {z[2*ii]}, {o_[0]}, {o_[1]}\nv_cvt_pk_bf16_f32 {z[2*ii+1]}, {o_[2]}, {o_[3]}")
    for pr in range(2):
        for tt in range(2):
            z = Z[tt, pr]
            P(f"v_permlane16_swap_b32 {z[0]}, {z[2]}\nv_permlane16_swap_b32 {z[1]}, {z[3]}")
    def stores():
        for pr in range(2):
            for tt in range(2):
                P(f"buffer_store_dwordx4 {Z[tt, pr]}, {so}, {sWS}, {S['b1']} offen offset:{tt*2048 + pr*1024} sc1"); vm.issue(("st", 0))
        P(f"buffer_store_dword {t[5]}, {sr}, {sWS}, 0 offen sc1"); vm.issue(("st", 0))
    stamp(C, "epiend")
    stores()
    P("s_cmp_ge_u32 s2, 224\ns_cbranch_scc1 Q_FIN")
    q0 = list(vm.q); l0_ = len(P.l)
    P("Q_FIN:\ns_waitcnt vmcnt(0)\ns_barrier"); flag_store(C)
    if OPT["epf"]:
        sl0 = list(C.slow)
        P(f"s_mul_i32 {S['b2']}, {S['T']}, {A2_KS*2048}\nv_lshlrev_b32 {t[0]}, 7, {lane}")
        if OPT["epf"] & 1:
            poll_check(C, "EP_F", 3, first=False)
            P(f"s_and_b32 {S['t0']}, s2, 1\ns_lshl_b32 {S['t0']}, {S['t0']}, 2\ns_add_u32 {S['t0']}, {S['t0']}, {w}\ns_mul_i32 {S['t0']}, {S['t0']}, {14*2048}\ns_add_u32 {S['t0']}, {S['t0']}, {S['b2']}\ns_add_u32 {S['t0']}, {S['t0']}, {32*2048}")
            for k in range(4):
                if k == 3: P("s_mov_b32 exec_hi, 0")
                P(f"buffer_load_dword v2, {t[0]}, {sWS}, {S['t0']} offen sc1\ns_add_u32 {S['t0']}, {S['t0']}, 8192")
            P("s_mov_b64 exec, -1")
        if OPT["epf"] & 2:
            poll_check(C, "EP_Q", 12, first=False)
            P(f"s_lshl_b32 {S['t0']}, {w}, 14\ns_add_u32 {S['t0']}, {S['t0']}, {S['b2']}")
            for k in range(2): P(f"buffer_load_dword v2, {t[0]}, {sWS}, {S['t0']} offen sc1\ns_add_u32 {S['t0']}, {S['t0']}, 8192")
    if OPT["stamps"] == 1:
        nm0 = list(C.names); stamp(C, "xflag"); C.role = "E"; stamp_flush(C); C.role = "Q"; C.names = nm0
    P("s_endpgm")
    C.slow.append("\n".join(P.l[l0_:])); del P.l[l0_:]
    vm.q = q0
    b2.drain(99, C.lim)
    poll_check(C, "PF_Q", 3)
    stamp(C, "polled")
    for tt in range(min(OPT["LA0"], OPT["LA"])): emit(C, aload(C, tt))
    return max(va.hi, phase2(C, b2, 0))

def page_pads(l, w):
    import subprocess, re, os
    def sizes(lines):
        src = '.amdgcn_target "amdgcn-amd-amdhsa--gfx950"\n.text\n' + "\n".join(f"LN{i}:\n{x}" for i, x in enumerate(lines)) + f"\nLN{len(lines)}:\n"
        open("_pp.s", "w").write(src)
        subprocess.run(["clang", "-x", "assembler", "-target", "amdgcn-amd-amdhsa", "-mcpu=gfx950", "-c", "_pp.s", "-o", "_pp.o"], check=True)
        out = subprocess.run(["llvm-objdump", "-t", "_pp.o"], capture_output=True, text=True).stdout
        ad = {}
        for x in out.split("\n"):
            m = re.match(r"([0-9a-f]+) .* LN(\d+)$", x)
            if m: ad[int(m.group(2))] = int(m.group(1), 16)
        return ad
    for role, start in (("F", "R_FFN:"), ("Q", "R_QKV:")):
        i = l.index(f"WARM_{role}:")
        l[i+1:i+1] = ["s_mov_b64 exec, 0", f"s_cmp_eq_u32 {w}, 0", f"s_cbranch_scc1 PAD{role}1", f"s_cmp_eq_u32 {w}, 1", f"s_cbranch_scc1 PAD{role}2",
                      f"s_cmp_eq_u32 {w}, 2", f"s_cbranch_scc1 PAD{role}3", f"s_branch PAD{role}4", f"BACK_{role}:", "s_mov_b64 exec, -1"]
    tmp = l + [f"PAD{r}{k}:" for r in "FQ" for k in range(1, 5)]
    ad = sizes(tmp)
    ins = []
    for role, start in (("F", "R_FFN:"), ("Q", "R_QKV:")):
        a = l.index(start); b = l.index(f"END_{role}:")
        base = ad[a + 1]; k = 1; masked = False; pos = []; sh = 0
        big = lambda i: l[i].startswith("v_") and not l[i].startswith("v_mfma") and ad[i + 1] - ad[i] == 8
        for i in range(a + 1, b):
            newpad = not masked and ad[i] - base + sh >= 4096 * k
            if newpad: pos.append(i); k += 1; sh += 4
            if OPT["alr"] and big(i) and (newpad or not big(i - 1)) and (ad[i] - base + sh) % 8:
                n_ = 0
                while big(i + n_): n_ += 1
                if n_ >= OPT["alr"]: ins.append((i + 0.5, ["s_nop 0"])); sh += 4
            if l[i].startswith(("s_mov_b64 exec,", "s_mov_b32 exec_hi")): masked = not l[i].endswith("-1")
        n = len(pos)
        for k, i in enumerate(pos, 1): ins.append((i, [f"PAD{role}{k}:", f"s_cbranch_execz {f'PAD{role}{k+4}' if k + 4 <= n else f'BACK_{role}'}"]))
        for k in range(n + 1, 5): ins.append((l.index(f"BACK_{role}:"), [f"PAD{role}{k}:"]))
    for i, x in sorted(ins, key=lambda z: -z[0]): l[int(i):int(i)] = x
    return l

def main():
    C = Ctx(); P = C.P = Prog()
    sa = Alloc("s", 3, 98); S = C.S = {}
    S['w'] = sa()
    C.ptr = sa(16, 4); C.wsp = sa(2); pc = sa(2)
    C.sX, C.sW, C.sWS, C.sB2, C.sBo, C.sD, C.sP = [sa(4) for _ in range(7)]
    C.mW, C.mH, C.mT, C.mU = sa(2), sa(2), sa(2), sa(2)
    C.tm = pc
    C.sP2 = R('s', 92, 4) if not OPT['stamps'] else R('s', 96, 4)
    assert not (OPT['stamps'] and OPT['spin'])
    for n in "e rbl cb t0 t1 t2 kx kw wm0 xm0 b1 b2 hh half T cb2 bo bo_s bbeg bend sbeg send ri rr tb bm0 tag".split(): S[n] = sa()
    ns = 102
    assert sa.hi <= 90, sa.hi
    C.names = []; C.allnames = {}; C.slow = []
    dead = [C.ptr[i] for i in (2, 3, 4, 5, 6, 7, 8, 9, 10, 11, 14, 15)]
    C.kxs = [S['kx']] + dead[:6]; C.kws = [S['kw']] + dead[6:]
    C.lane = lane = R("v", 0)
    va = Alloc("v", 3, 256)
    t = C.t = [va() for _ in range(7)]
    C.vA = [va(), va()]; C.vB = [va(), va()]; C.rB = [[va(), va()] for _ in range(3)]; C.rP = [[va(), va()] for _ in range(3)]; C.vXd = va()
    C.vF, C.vZ, C.vN, C.vPF, C.vST, C.vFL = [va() for _ in range(6)]
    C.xd = xd = [va() for _ in range(4)]
    C.vbase = va.p
    C.abase = 96
    C.NA = OPT["LA"] + 1
    C.vring = 256 - 8 * C.NA
    C.aring = [[R("v", C.vring + 8*i + 4*j, 4) for j in range(2)] for i in range(C.NA)]
    na = 256
    pre = list(range(NPRE)) + list(range(14, 14 + NPRE))
    order = [i for i in range(28) if i not in pre] + pre
    C.breg = [[R("a", 8*order.index(i), 4), R("a", 8*order.index(i) + 4, 4)] for i in range(28)]
    w = S['w']
    P(f"{NAME}_kernel:")
    stamp(C, "start")
    if OPT["spin"]: P("s_memrealtime s[98:99]")
    P("s_cmp_ge_u32 s2, 256\ns_cbranch_scc1 K_END")
    P(f"s_load_dwordx16 {C.ptr}, s[0:1], 0\ns_load_dwordx2 {C.wsp}, s[0:1], 64")
    P(f"s_getpc_b64 {pc}\ns_lshr_b32 {S['t0']}, s2, 3\ns_lshl_b32 {S['t0']}, {S['t0']}, 11\nv_lshl_add_u32 v1, v0, 3, {S['t0']}\nglobal_load_dword v2, v1, {pc}")
    P(f"v_lshrrev_b32 v1, 6, v0\nv_and_b32 v0, 63, v0\nv_readfirstlane_b32 {w}, v1")
    P(f"s_bfe_u32 {S['e']}, s2, 0x10002\ns_bfe_u32 {S['rbl']}, s2, 0x30003")
    P(f"s_and_b32 {S['t0']}, s2, 3\ns_lshl_b32 {S['t0']}, {S['t0']}, 1\ns_bfe_u32 {S['t1']}, s2, 0x10006\ns_add_u32 {S['cb']}, {S['t0']}, {S['t1']}")
    if OPT["rot"] and not OPT["com"]:
        P(f"s_lshr_b32 {S['t0']}, s2, 7\ns_mul_i32 {S['t0']}, {S['t0']}, {OPT['rq']}\ns_add_u32 {S['t0']}, {S['t0']}, {S['rbl']}\ns_mul_i32 {S['t1']}, {S['cb']}, {OPT['rm']}\ns_add_u32 {S['t0']}, {S['t0']}, {S['t1']}")
        if OPT["rqm"]: P(f"s_lshr_b32 {S['t1']}, s2, 6\ns_cmp_eq_u32 {S['t1']}, {3 if OPT['rqm'] == 1 else 2}\ns_cselect_b32 {S['t1']}, {-1 if OPT['rqm'] == 1 else 1}, 0\ns_add_u32 {S['t0']}, {S['t0']}, {S['t1']}")
        assert all(v - ((v * 37) >> 8) * 7 == v % 7 for v in range(8 + 7 * OPT['rm'] + OPT['rq']))
        P(f"s_mul_i32 {S['t1']}, {S['t0']}, 37\ns_lshr_b32 {S['t1']}, {S['t1']}, 8\ns_mul_i32 {S['t1']}, {S['t1']}, 7\ns_sub_u32 {S['t0']}, {S['t0']}, {S['t1']}")
    else:
        P(f"s_mov_b32 {S['t0']}, 0")
    P(f"s_lshl_b32 {S['kx']}, {S['t0']}, 7\ns_mul_i32 {S['t2']}, {S['e']}, 896")
    P(f"s_lshl_b32 {S['t0']}, {S['rbl']}, 7\ns_lshl_b32 {S['t1']}, {w}, 5\ns_add_u32 {S['t0']}, {S['t0']}, {S['t1']}")
    P(f"v_lshrrev_b32 {t[4]}, 3, {lane}\nv_add_u32 {t[0]}, {S['t0']}, {t[4]}\nv_mul_u32_u24 {t[0]}, 1792, {t[0]}")
    P(f"v_lshrrev_b32 {t[1]}, 4, {lane}\nv_and_b32 {t[5]}, 7, {lane}\nv_xor_b32 {t[2]}, {t[1]}, {t[5]}")
    P(f"v_lshl_add_u32 {xd[0]}, {t[2]}, 4, {t[0]}")
    P(f"v_xor_b32 {t[3]}, 64, {xd[0]}\nv_add_u32 {xd[1]}, {8*1792 - 1024}, {t[3]}\nv_add_u32 {xd[2]}, {16*1792 - 2048}, {xd[0]}\nv_add_u32 {xd[3]}, {24*1792 - 3072}, {t[3]}")
    P(f"s_and_b32 {S['hh']}, {w}, 1\ns_lshr_b32 {S['half']}, {w}, 1\ns_lshl_b32 {S['b1']}, {S['hh']}, 2\ns_lshl_b32 {S['xm0']}, {w}, 12")
    P("s_cmp_lt_u32 s2, 128\ns_cbranch_scc1 H_FFN")
    rq = qkv_head(C)
    P("s_branch R_QKV\nH_FFN:")
    rf = ffn_head(C)
    if OPT["pads"]: P("s_branch R_FFN\n.p2align 12")
    P("R_FFN:")
    nv1 = ffn_body(C, rf)
    P("END_F:")
    if OPT["pads"]: P(".p2align 12")
    P("R_QKV:"); C.names = C.names[:1]
    nv2 = qkv_body(C, rq)
    P("END_Q:")
    for x in C.slow: P(x)
    P("K_END:\ns_endpgm")
    l, npad = pad_hazards(P.l)
    if OPT["pads"] == 1: l = page_pads(l, w)
    out = [f"; generated by gen13.py {OPT} (hazard pads {npad})",
           f"; stamps {C.allnames}",
           "; @launch grid=(256,1,1) block=(256,1,1) lds=163840",
           '.amdgcn_target "amdgcn-amd-amdhsa--gfx950"\n.text',
           f".globl {NAME}_kernel\n.p2align 8\n.type {NAME}_kernel,@function"]
    out.extend(l)
    out.append(".fill 8192, 4, 0xbf800000")
    out.append(kernel_desc(f"{NAME}_kernel", max(nv1, nv2), na, ns))
    print("\n".join(out))
main()
```
